```python
import torch

def _softmax(x, axis=-1):
    return torch.softmax(x, dim=axis)

def _gelu(x):
    return torch.nn.functional.gelu(x, approximate='tanh')

def _silu(x):
    return torch.nn.functional.silu(x)

def _sigmoid(x):
    return torch.sigmoid(x)

def _layernorm(x, axis=-1, eps=1e-05):
    m = x.mean(dim=axis, keepdim=True)
    v = x.var(dim=axis, keepdim=True, unbiased=False)
    return (x - m) / torch.sqrt(v + eps)

def _scatter_add(tgt, idx, src, axis=0):
    return tgt.clone().index_add_(axis, idx, src)

def _segment_sum(src, seg, n):
    out = torch.zeros((n,) + src.shape[1:], dtype=src.dtype)
    return out.index_add_(0, seg, src)

def _pad(x, pw):
    flat = tuple((v for pair in reversed(pw) for v in pair))
    return torch.nn.functional.pad(x, flat)
kernel_name = 'standalone__varlen_attn_packed__ragged'

def setup_inputs():

    _w = lambda a: (lambda t: t.to(torch.bfloat16) if t.is_floating_point() else t)(torch.as_tensor(a))
    cu = torch.tensor([0, 289, 520, 939, 1289, 1402, 1666, 1973, 2275], dtype=torch.int64)
    T, H, D = (int(cu[-1]), 16, 128)
    return {'q': _w((lambda *s: torch.randn(*s, dtype=torch.bfloat16) * 0.8)(T, H, D)), 'k': _w((lambda *s: torch.randn(*s, dtype=torch.bfloat16) * 0.8)(T, H, D)), 'v': _w((lambda *s: torch.randn(*s, dtype=torch.bfloat16) * 0.05)(T, H, D)), 'cu': _w(cu)}

def reference(q, k, v, cu):
    T, H, D = q.shape
    out = torch.zeros_like(q)
    scale = D ** (-0.5)
    outs = []
    for i in range(len(cu) - 1):
        s, e = (int(cu[i]), int(cu[i + 1]))
        qi, ki, vi = (q[s:e].clone(), k[s:e].clone(), v[s:e].clone())
        p = _softmax(torch.einsum('qhd,khd->hqk', qi, ki) * scale, axis=-1)
        outs.append(torch.einsum('hqk,khd->qhd', p, vi))
    return torch.concatenate(outs, axis=0)
```

```python
import sys, struct, math

NAME = "standalone__varlen_attn_packed__ragged"
CU = [0, 289, 520, 939, 1289, 1402, 1666, 1973, 2275]
LEN = [CU[i + 1] - CU[i] for i in range(8)]
T_TOT = 2275
ROWB = 4096
TENSOR_BYTES = T_TOT * ROWB

HEADER = """; Kernarg layout for this problem (56 bytes, ptrs only, base s[0:1]):
"""


def f2u(x):
    return struct.unpack("<I", struct.pack("<f", x))[0]


def cdiv(a, b):
    return (a + b - 1) // b


ROLES = [
    (2, 0, 4), (2, 4, 4), (2, 8, 3), (2, 11, 3),
    (1, 0, 8),
    (6, 0, 5), (6, 5, 5), (7, 0, 5), (7, 5, 5), (0, 0, 5), (0, 5, 5),
    (5, 0, 6),
    ("dual", (5, 6, 3), (4, 0, 4)),
    (3, 0, 4), (3, 4, 4), (3, 8, 3),
]


def nrec(rows):
    return (rows - 1) * ROWB + 256 if rows > 0 else 0


def build_table():
    tab = []
    for role in ROLES:
        if role[0] == "dual":
            (sa, ta, na), (sb, tb, nb) = role[1], role[2]
            rowA, lenA = CU[sa], LEN[sa]
            rowB, lenB = CU[sb], LEN[sb]
            step = 32
            n_it = max(cdiv(lenA, 32), cdiv(lenB, 32))
            nq, n1 = na + nb, na
            qa = CU[sa] + 32 * ta
            qb_adj = CU[sb] + 32 * tb - 32 * n1
            waves = [None] * 8
            for i in range(na):
                waves[i] = (sa, ta + i, i, 1, 0, 0, 0)
            free = [w for w in (4, 5, 6, 3, 7) if waves[w] is None]
            for i in range(nb):
                waves[free[i]] = (sb, tb + i, na + i, 0, 1, 0, 0)
        else:
            s, t0, nq = role
            rowA, lenA = CU[s], LEN[s]
            rowB, lenB = CU[s] + 32, LEN[s] - 32
            step = 64
            n_it = cdiv(lenA, 64)
            n1 = nq
            qa = CU[s] + 32 * t0
            qb_adj = 0
            waves = [None] * 8
            if nq <= 4:
                for i in range(nq):
                    waves[i] = (s, t0 + i, i, 1, 0, 1, i + 4)
                    waves[i + 4] = (s, t0 + i, i, 0, 1, 2, i)
            elif nq <= 6:
                for i in range(4):
                    waves[i] = (s, t0 + i, i, 1, 1, 0, 0)
                for i in range(4, nq):
                    w = 4 + 2 * (i - 4)
                    waves[w] = (s, t0 + i, i, 1, 0, 1, w + 1)
                    waves[w + 1] = (s, t0 + i, i, 0, 1, 2, w)
            else:
                for i in range(nq):
                    waves[i] = (s, t0 + i, i, 1, 1, 0, 0)
        for w in range(8):
            e = [rowA * ROWB, nrec(lenA), rowB * ROWB, nrec(lenB),
                 n_it | (step << 8) | (nq << 16) | (n1 << 24),
                 qa | (qb_adj << 16)]
            wv = waves[w]
            if wv is None:
                e += [0, 0]
            else:
                s, tile, ql, ua, ub, split, partner = wv
                remA = lenA if ua else 0
                remB = lenB if ub else 0
                orow = CU[s] + 32 * tile
                onr = min(32, CU[s + 1] - orow)
                assert onr > 0
                tail = LEN[s] % 32
                if tail == 0:
                    tail = 32
                e += [remA | (remB << 16),
                      orow | (onr << 12) | (ql << 18) | (split << 21) | (partner << 23) | (tail << 26)]
            tab.append(e)
    return tab


class R:
    pass


v = R()
v.tid = 0
v.kdma = 1
v.vdma = 2
v.qdma = 3
v.ka0r, v.ka1r, v.valr, v.vahr = 4, 5, 6, 7
v.ka0, v.ka1, v.val, v.vah = 8, 9, 10, 11
v.m = 12
v.nmc = 13
v.l = 14
v.ps = 15
v.t0, v.t1, v.t2, v.t3 = 16, 17, 18, 19
v.ooff = 20
v.lane = 21
v.xa = 22
v.xp = 23
v.Q = 24
v.O = 56
v.S = 120
v.B = 136
v.KF = 152
v.VF = 184
v.X = 216
v.P = 232
NV = 240

s = R()
s.q, s.k, s.vv, s.cu, s.out = 4, 6, 8, 10, 12
s.tab = 16
s.kA, s.kB, s.vA, s.vB, s.sq, s.so = 24, 28, 32, 36, 40, 44
s.wave = 48
s.hoff = 49
s.nit = 50
s.stepb = 51
s.step = 52
s.nq = 53
s.n1 = 54
s.remA = 55
s.remB = 56
s.lds = 57
s.dslot = 58
s.nld = 59
s.c = 60
s.first = 61
s.which = 62
s.rem = 63
s.t0, s.t1, s.t2, s.t3 = 64, 65, 66, 67
s.split = 68
s.pc = 70
s.thr = 72
s.w1k = 73
NS = 80

C_SCALE = (128 ** -0.5) * math.log2(math.e)
THRESH = 4096.0
LDS_TOTAL = 163840
QBASE = 98304

out = []


def e(x):
    out.append("    " + x)


def lab(x):
    out.append(x + ":")


def vr(b, n):
    return "v[%d:%d]" % (b, b + n - 1)


def sr(b, n):
    return "s[%d:%d]" % (b, b + n - 1)


def dma_iter():
    e("s_mov_b32 m0, s%d" % s.dslot)
    e("s_nop 0")
    e("buffer_load_dwordx4 v%d, %s, 0 offen lds" % (v.kdma, sr(s.kA, 4)))
    e("s_add_u32 m0, s%d, 0x4000" % s.dslot)
    e("s_nop 0")
    e("buffer_load_dwordx4 v%d, %s, 0 offen lds" % (v.kdma, sr(s.kB, 4)))
    e("s_add_u32 m0, s%d, 0x2000" % s.dslot)
    e("s_nop 0")
    e("buffer_load_dwordx4 v%d, %s, 0 offen lds" % (v.vdma, sr(s.vA, 4)))
    e("s_add_u32 m0, s%d, 0x6000" % s.dslot)
    e("s_nop 0")
    e("buffer_load_dwordx4 v%d, %s, 0 offen lds" % (v.vdma, sr(s.vB, 4)))
    e("v_add_u32 v%d, s%d, v%d" % (v.kdma, s.stepb, v.kdma))
    e("v_add_u32 v%d, s%d, v%d" % (v.vdma, s.stepb, v.vdma))
    e("s_add_u32 s%d, s%d, 0x8000" % (s.dslot, s.dslot))
    e("s_cmp_ge_u32 s%d, %d" % (s.dslot, LDS_TOTAL))
    e("s_cselect_b32 s%d, s%d, s%d" % (s.dslot, s.w1k, s.dslot))
    e("s_sub_u32 s%d, s%d, 1" % (s.nld, s.nld))


def make_srd(dst, ptr, off_sreg, nrec_src):
    e("s_add_u32 s%d, s%d, s%d" % (dst, ptr, off_sreg))
    e("s_addc_u32 s%d, s%d, 0" % (dst + 1, ptr + 1))
    e("s_and_b32 s%d, s%d, 0xffff" % (dst + 1, dst + 1))
    e("s_mov_b32 s%d, %s" % (dst + 2, nrec_src))
    e("s_mov_b32 s%d, 0x20000" % (dst + 3))


def gen():
    K = NAME + "_kernel"
    out.append(HEADER + "; @launch grid=(256,1,1) block=(512,1,1) lds=%d" % LDS_TOTAL)
    out.append('.amdgcn_target "amdgcn-amd-amdhsa--gfx950"')
    out.append(".text")
    out.append(".globl " + K)
    out.append(".p2align 8")
    out.append(".type %s,@function" % K)
    lab(K)
    e("s_cmp_ge_u32 s2, 256")
    e("s_cbranch_scc1 L_end")
    e("s_load_dwordx8 s[4:11], s[0:1], 0")
    e("s_load_dwordx2 s[12:13], s[0:1], 32")
    e("v_lshrrev_b32 v%d, 6, v0" % v.t0)
    e("v_and_b32 v%d, 63, v0" % v.lane)
    e("v_readfirstlane_b32 s%d, v%d" % (s.wave, v.t0))
    e("s_getpc_b64 %s" % sr(s.pc, 2))
    lab("L_pc")
    e("s_lshr_b32 s%d, s2, 4" % s.t0)
    e("s_lshl_b32 s%d, s%d, 3" % (s.t0, s.t0))
    e("s_add_u32 s%d, s%d, s%d" % (s.t0, s.t0, s.wave))
    e("s_lshl_b32 s%d, s%d, 5" % (s.t0, s.t0))
    e("s_add_u32 s%d, s%d, L_table-L_pc" % (s.t0, s.t0))
    e("s_load_dwordx8 %s, %s, s%d" % (sr(s.tab, 8), sr(s.pc, 2), s.t0))
    e("s_and_b32 s%d, s2, 7" % s.t1)
    e("s_lshl_b32 s%d, s%d, 1" % (s.t1, s.t1))
    e("s_bfe_u32 s%d, s2, 0x10003" % s.t2)
    e("s_add_u32 s%d, s%d, s%d" % (s.t1, s.t1, s.t2))
    e("s_lshl_b32 s%d, s%d, 8" % (s.hoff, s.t1))
    e("s_lshl_b32 s%d, s%d, 10" % (s.w1k, s.wave))
    e("s_mov_b32 s%d, 0x%x" % (s.c, f2u(C_SCALE)))
    e("s_mov_b32 s%d, 0x%x" % (s.thr, f2u(THRESH)))
    L = v.lane
    e("s_and_b32 s%d, s%d, 1" % (s.t0, s.wave))
    e("s_lshl_b32 s%d, s%d, 1" % (s.t0, s.t0))
    e("v_lshrrev_b32 v%d, 5, v%d" % (v.t0, L))
    e("v_add_u32 v%d, s%d, v%d" % (v.t0, s.t0, v.t0))
    e("v_and_b32 v%d, 3, v%d" % (v.t1, L))
    e("v_xor_b32 v%d, v%d, v%d" % (v.t1, v.t1, v.t0))
    e("v_and_b32 v%d, 12, v%d" % (v.t2, L))
    e("v_add_u32 v%d, v%d, v%d" % (v.t0, v.t0, v.t2))
    e("s_bfe_u32 s%d, s%d, 0x10001" % (s.t1, s.wave))
    e("s_lshl_b32 s%d, s%d, 16" % (s.t1, s.t1))
    e("s_lshr_b32 s%d, s%d, 2" % (s.t2, s.wave))
    e("s_lshl_b32 s%d, s%d, 7" % (s.t2, s.t2))
    e("s_add_u32 s%d, s%d, s%d" % (s.t1, s.t1, s.t2))
    e("v_lshlrev_b32 v%d, 12, v%d" % (v.t0, v.t0))
    e("v_lshl_add_u32 v%d, v%d, 4, v%d" % (v.t0, v.t1, v.t0))
    e("v_and_b32 v%d, 16, v%d" % (v.t2, L))
    e("v_lshl_add_u32 v%d, v%d, 2, v%d" % (v.t0, v.t2, v.t0))
    e("v_add_u32 v%d, s%d, v%d" % (v.kdma, s.t1, v.t0))
    e("v_bfe_u32 v%d, v%d, 2, 2" % (v.t0, L))
    e("v_lshlrev_b32 v%d, 12, v%d" % (v.t0, v.t0))
    e("v_and_b32 v%d, 3, v%d" % (v.t1, L))
    e("v_lshl_add_u32 v%d, v%d, 4, v%d" % (v.t0, v.t1, v.t0))
    e("v_lshrrev_b32 v%d, 4, v%d" % (v.t1, L))
    e("v_lshl_add_u32 v%d, v%d, 6, v%d" % (v.t0, v.t1, v.t0))
    e("s_lshl_b32 s%d, s%d, 14" % (s.t1, s.wave))
    e("v_add_u32 v%d, s%d, v%d" % (v.vdma, s.t1, v.t0))
    e("v_bfe_u32 v%d, v%d, 4, 1" % (v.t0, L))
    e("v_lshlrev_b32 v%d, 11, v%d" % (v.t0, v.t0))
    e("v_bfe_u32 v%d, v%d, 1, 1" % (v.t1, L))
    e("v_lshl_add_u32 v%d, v%d, 10, v%d" % (v.t0, v.t1, v.t0))
    e("v_and_b32 v%d, 1, v%d" % (v.t1, L))
    e("v_lshl_add_u32 v%d, v%d, 9, v%d" % (v.t0, v.t1, v.t0))
    e("v_bfe_u32 v%d, v%d, 2, 2" % (v.t1, L))
    e("v_lshl_add_u32 v%d, v%d, 6, v%d" % (v.t0, v.t1, v.t0))
    e("v_lshrrev_b32 v%d, 5, v%d" % (v.t1, L))
    e("v_and_b32 v%d, 3, v%d" % (v.t2, L))
    e("v_xor_b32 v%d, v%d, v%d" % (v.t1, v.t1, v.t2))
    e("v_lshl_add_u32 v%d, v%d, 4, v%d" % (v.ka0r, v.t1, v.t0))
    e("v_xor_b32 v%d, 32, v%d" % (v.ka1r, v.ka0r))
    e("v_lshrrev_b32 v%d, 5, v%d" % (v.t0, L))
    e("v_lshlrev_b32 v%d, 10, v%d" % (v.t0, v.t0))
    e("v_bfe_u32 v%d, v%d, 2, 2" % (v.t1, L))
    e("v_lshl_add_u32 v%d, v%d, 6, v%d" % (v.t0, v.t1, v.t0))
    e("v_bfe_u32 v%d, v%d, 4, 1" % (v.t1, L))
    e("v_lshl_add_u32 v%d, v%d, 5, v%d" % (v.t0, v.t1, v.t0))
    e("v_and_b32 v%d, 3, v%d" % (v.t1, L))
    e("v_lshl_add_u32 v%d, v%d, 3, v%d" % (v.t0, v.t1, v.t0))
    e("v_add_u32 v%d, 0x2000, v%d" % (v.valr, v.t0))
    e("v_and_b32 v%d, 31, v%d" % (v.t0, L))
    e("v_lshlrev_b32 v%d, 12, v%d" % (v.t0, v.t0))
    e("v_lshrrev_b32 v%d, 5, v%d" % (v.t1, L))
    e("v_lshl_add_u32 v%d, v%d, 4, v%d" % (v.ooff, v.t1, v.t0))
    e("s_waitcnt lgkmcnt(0)")
    T = s.tab
    e("s_add_u32 s%d, s%d, s%d" % (s.t0, T + 0, s.hoff))
    e("s_add_u32 s%d, s%d, s%d" % (s.t1, T + 2, s.hoff))
    e("s_sub_u32 s%d, %d, s%d" % (s.t2, TENSOR_BYTES, s.hoff))
    make_srd(s.sq, s.q, s.hoff, "s%d" % s.t2)
    make_srd(s.kA, s.k, s.t0, "s%d" % (T + 1))
    make_srd(s.kB, s.k, s.t1, "s%d" % (T + 3))
    make_srd(s.vA, s.vv, s.t0, "s%d" % (T + 1))
    make_srd(s.vB, s.vv, s.t1, "s%d" % (T + 3))
    e("s_and_b32 s%d, s%d, 0xff" % (s.nit, T + 4))
    e("s_bfe_u32 s%d, s%d, 0x80008" % (s.step, T + 4))
    e("s_lshl_b32 s%d, s%d, 12" % (s.stepb, s.step))
    e("s_bfe_u32 s%d, s%d, 0x80010" % (s.nq, T + 4))
    e("s_lshr_b32 s%d, s%d, 24" % (s.n1, T + 4))
    e("s_and_b32 s%d, s%d, 0xffff" % (s.t0, T + 5))
    e("s_lshr_b32 s%d, s%d, 16" % (s.t1, T + 5))
    e("s_lshl_b32 s%d, s%d, 12" % (s.t0, s.t0))
    e("s_lshl_b32 s%d, s%d, 12" % (s.t1, s.t1))
    e("s_mov_b32 s%d, 0" % s.t2)
    e("s_add_u32 m0, s%d, %d" % (s.w1k, QBASE))
    lab("L_qld")
    e("s_cmp_lt_u32 s%d, s%d" % (s.t2, s.n1))
    e("s_cselect_b32 s%d, s%d, s%d" % (s.t3, s.t0, s.t1))
    e("v_add_u32 v%d, s%d, v%d" % (v.qdma, s.t3, v.kdma))
    e("s_add_u32 s%d, s%d, 0x20000" % (s.t0, s.t0))
    e("s_add_u32 s%d, s%d, 0x20000" % (s.t1, s.t1))
    e("buffer_load_dwordx4 v%d, %s, 0 offen lds" % (v.qdma, sr(s.sq, 4)))
    e("s_add_u32 m0, m0, 0x2000")
    e("s_add_u32 s%d, s%d, 1" % (s.t2, s.t2))
    e("s_cmp_lt_u32 s%d, s%d" % (s.t2, s.nq))
    e("s_cbranch_scc1 L_qld")
    e("s_mov_b32 s%d, s%d" % (s.dslot, s.w1k))
    e("s_mov_b32 s%d, s%d" % (s.nld, s.nit))
    for _ in range(3):
        dma_iter()
    e("s_and_b32 s%d, s%d, 0xffff" % (s.remA, T + 6))
    e("s_lshr_b32 s%d, s%d, 16" % (s.remB, T + 6))
    e("s_and_b32 s%d, s%d, 0xfff" % (s.t0, T + 7))
    e("s_lshl_b32 s%d, s%d, 12" % (s.t0, s.t0))
    e("s_add_u32 s%d, s%d, s%d" % (s.t0, s.t0, s.hoff))
    e("s_bfe_u32 s%d, s%d, 0x6000c" % (s.t1, T + 7))
    e("s_lshl_b32 s%d, s%d, 12" % (s.t1, s.t1))
    e("s_sub_u32 s%d, s%d, %d" % (s.t1, s.t1, 4096 - 256))
    e("s_max_i32 s%d, s%d, 0" % (s.t1, s.t1))
    make_srd(s.so, s.out, s.t0, "s%d" % s.t1)
    e("s_bfe_u32 s%d, s%d, 0x20015" % (s.split, T + 7))
    e("s_cmp_eq_u32 s%d, 2" % s.split)
    e("s_cselect_b32 s%d, 512, 0" % s.t0)
    e("s_cselect_b32 s%d, 0, 512" % s.t1)
    e("s_cselect_b32 s%d, 128, 0" % s.t2)
    e("v_add_u32 v%d, s%d, v%d" % (v.vahr, s.t1, v.valr))
    e("v_add_u32 v%d, s%d, v%d" % (v.valr, s.t0, v.valr))
    e("v_add_u32 v%d, s%d, v%d" % (v.ooff, s.t2, v.ooff))
    e("s_mul_i32 s%d, s%d, 9216" % (s.t0, s.wave))
    e("s_bfe_u32 s%d, s%d, 0x30017" % (s.t1, T + 7))
    e("s_mul_i32 s%d, s%d, 9216" % (s.t1, s.t1))
    e("v_lshlrev_b32 v%d, 4, v%d" % (v.t0, L))
    e("v_add_u32 v%d, s%d, v%d" % (v.xa, s.t0, v.t0))
    e("v_add_u32 v%d, s%d, v%d" % (v.xp, s.t1, v.t0))
    e("s_lshr_b32 s%d, s%d, 26" % (s.t0, T + 7))
    e("s_sub_u32 s%d, s%d, 1" % (s.t0, s.t0))
    e("v_lshrrev_b32 v%d, 5, v%d" % (v.t0, L))
    e("v_lshlrev_b32 v%d, 2, v%d" % (v.t0, v.t0))
    e("v_sub_u32 v%d, s%d, v%d" % (v.t0, s.t0, v.t0))
    for r in range(16):
        cst = 8 * (r // 4) + r % 4
        e("v_subrev_u32 v%d, %d, v%d" % (v.B + r, cst, v.t0))
        e("v_ashrrev_i32 v%d, 31, v%d" % (v.B + r, v.B + r))
        e("v_and_b32 v%d, 0xff800000, v%d" % (v.B + r, v.B + r))
    for r in range(64):
        e("v_mov_b32 v%d, 0" % (v.O + r))
    e("v_mov_b32 v%d, 0" % v.l)
    e("v_mov_b32 v%d, 0xff800000" % v.m)
    e("s_mov_b32 s%d, 1" % s.first)
    e("s_bfe_u32 s%d, s%d, 0x30012" % (s.t0, T + 7))
    e("s_lshl_b32 s%d, s%d, 13" % (s.t0, s.t0))
    e("s_add_u32 s%d, s%d, %d" % (s.t0, s.t0, QBASE))
    e("v_add_u32 v%d, s%d, v%d" % (v.ka0, s.t0, v.ka0r))
    e("v_add_u32 v%d, s%d, v%d" % (v.ka1, s.t0, v.ka1r))
    e("s_waitcnt vmcnt(12)")
    e("s_barrier")
    for t in range(8):
        e("ds_read_b128 %s, v%d offset:%d" % (vr(v.Q + 4 * t, 4), v.ka1 if t % 2 else v.ka0,
                                              (t // 4) * 4096 + ((t // 2) % 2) * 256))
    e("s_waitcnt lgkmcnt(0)")
    e("s_barrier")
    dma_iter()
    e("s_mov_b32 s%d, 0" % s.lds)
    lab("L_loop")
    e("s_cmp_ge_u32 s%d, 4" % s.nit)
    e("s_cbranch_scc1 L_w12")
    e("s_cmp_eq_u32 s%d, 3" % s.nit)
    e("s_cbranch_scc1 L_w8")
    e("s_cmp_eq_u32 s%d, 2" % s.nit)
    e("s_cbranch_scc1 L_w4")
    e("s_waitcnt vmcnt(0)")
    lab("L_w4")
    e("s_waitcnt vmcnt(4)")
    lab("L_w8")
    e("s_waitcnt vmcnt(8)")
    lab("L_w12")
    e("s_waitcnt vmcnt(12)")
    e("s_barrier")
    e("s_cmp_eq_u32 s%d, 0" % s.nld)
    e("s_cbranch_scc1 L_nold")
    dma_iter()
    lab("L_nold")
    e("s_mov_b32 s%d, 0" % s.which)
    e("s_mov_b32 s%d, s%d" % (s.rem, s.remA))
    lab("L_unit")
    e("s_cmp_le_i32 s%d, 0" % s.rem)
    e("s_cbranch_scc1 L_skip")
    e("v_add_u32 v%d, s%d, v%d" % (v.ka0, s.lds, v.ka0r))
    e("v_add_u32 v%d, s%d, v%d" % (v.ka1, s.lds, v.ka1r))
    e("v_add_u32 v%d, s%d, v%d" % (v.val, s.lds, v.valr))
    e("v_add_u32 v%d, s%d, v%d" % (v.vah, s.lds, v.vahr))
    for t in range(8):
        e("ds_read_b128 %s, v%d offset:%d" % (vr(v.KF + 4 * t, 4), v.ka1 if t % 2 else v.ka0,
                                              (t // 4) * 4096 + ((t // 2) % 2) * 256))
    vreads = []
    for t in range(2):
        for bb in range(4):
            for ss in range(2):
                reg = v.VF + (t * 4 + bb) * 4 + ss * 2
                vreads.append("ds_read_b64_tr_b16 %s, v%d offset:%d" % (
                    vr(reg, 2), v.vah if bb >= 2 else v.val, (4 * t + 2 * ss) * 1024 + (bb % 2) * 256))
    e("s_cmp_lt_i32 s%d, 32" % s.rem)
    e("s_waitcnt lgkmcnt(7)")
    e("s_cbranch_scc1 L_mask")
    e("v_mfma_f32_32x32x16_bf16 %s, %s, %s, 0" % (vr(v.S, 16), vr(v.KF, 4), vr(v.Q, 4)))
    e("s_branch L_m1")
    lab("L_mask")
    e("v_mfma_f32_32x32x16_bf16 %s, %s, %s, %s" % (vr(v.S, 16), vr(v.KF, 4), vr(v.Q, 4), vr(v.B, 16)))
    lab("L_m1")
    e(vreads[0])
    e(vreads[1])
    for t in range(1, 8):
        e("s_waitcnt lgkmcnt(%d)" % (7 + t))
        e("v_mfma_f32_32x32x16_bf16 %s, %s, %s, %s" % (vr(v.S, 16), vr(v.KF + 4 * t, 4), vr(v.Q + 4 * t, 4), vr(v.S, 16)))
        e(vreads[2 * t])
        e(vreads[2 * t + 1])
    e("s_cmp_lg_u32 s%d, 0" % s.first)
    e("s_nop 8")
    e("s_cbranch_scc1 L_resc")
    lab("L_soft")
    for r in range(16):
        e("v_fma_f32 v%d, v%d, s%d, v%d" % (v.X + r, v.S + r, s.c, v.nmc))
    for r in range(16):
        e("v_exp_f32 v%d, v%d" % (v.X + r, v.X + r))
    e("v_add_f32 v%d, v%d, v%d" % (v.ps, v.X + 0, v.X + 1))
    e("v_add_f32 v%d, v%d, v%d" % (v.t0, v.X + 2, v.X + 3))
    for r in range(4, 16, 2):
        e("v_add_f32 v%d, v%d, v%d" % (v.ps, v.ps, v.X + r))
        e("v_add_f32 v%d, v%d, v%d" % (v.t0, v.t0, v.X + r + 1))
    e("v_add_f32 v%d, v%d, v%d" % (v.ps, v.ps, v.t0))
    e("v_cmp_lt_f32 vcc, s%d, v%d" % (s.thr, v.ps))
    for i in range(8):
        e("v_cvt_pk_bf16_f32 v%d, v%d, v%d" % (v.P + i, v.X + 2 * i, v.X + 2 * i + 1))
    e("s_cbranch_vccnz L_resc")
    e("v_add_f32 v%d, v%d, v%d" % (v.l, v.l, v.ps))
    e("s_waitcnt lgkmcnt(0)")
    for t in range(2):
        for bb in range(4):
            e("v_mfma_f32_32x32x16_bf16 %s, %s, %s, %s" % (
                vr(v.O + 16 * bb, 16), vr(v.VF + (t * 4 + bb) * 4, 4), vr(v.P + 4 * t, 4), vr(v.O + 16 * bb, 16)))
    lab("L_skip")
    e("s_add_u32 s%d, s%d, 0x4000" % (s.lds, s.lds))
    e("s_mov_b32 s%d, s%d" % (s.rem, s.remB))
    e("s_xor_b32 s%d, s%d, 1" % (s.which, s.which))
    e("s_cbranch_scc1 L_unit")
    e("s_cmp_ge_u32 s%d, %d" % (s.lds, LDS_TOTAL))
    e("s_cselect_b32 s%d, 0, s%d" % (s.lds, s.lds))
    e("s_sub_i32 s%d, s%d, s%d" % (s.remA, s.remA, s.step))
    e("s_sub_i32 s%d, s%d, s%d" % (s.remB, s.remB, s.step))
    e("s_sub_u32 s%d, s%d, 1" % (s.nit, s.nit))
    e("s_cmp_lg_u32 s%d, 0" % s.nit)
    e("s_cbranch_scc1 L_loop")
    e("v_mov_b32 v%d, v%d" % (v.t0, v.l))
    e("s_nop 1")
    e("v_permlane32_swap_b32 v%d, v%d" % (v.l, v.t0))
    e("s_nop 1")
    e("v_add_f32 v%d, v%d, v%d" % (v.l, v.l, v.t0))
    e("s_nop 8")
    e("s_barrier")
    e("s_cmp_eq_u32 s%d, 0" % s.split)
    e("s_cbranch_scc1 L_nox1")
    for k in range(8):
        e("ds_write_b128 v%d, %s offset:%d" % (v.xa, vr(v.O + 32 + 4 * k, 4), k * 1024))
    e("ds_write_b128 v%d, %s offset:8192" % (v.xa, vr(v.m, 4)))
    e("s_waitcnt lgkmcnt(0)")
    lab("L_nox1")
    e("s_barrier")
    e("s_cmp_lg_u32 s%d, 0" % s.first)
    e("s_cbranch_scc1 L_end")
    e("s_cmp_eq_u32 s%d, 0" % s.split)
    e("s_cbranch_scc1 L_nosplit")
    e("ds_read_b128 %s, v%d offset:8192" % (vr(v.X, 4), v.xp))
    for k in range(8):
        e("ds_read_b128 %s, v%d offset:%d" % (vr(v.KF + 4 * k, 4), v.xp, k * 1024))
    e("s_waitcnt lgkmcnt(8)")
    mp, lp = v.X, v.X + 2
    e("v_max_f32 v%d, v%d, v%d" % (v.t0, v.m, mp))
    e("v_sub_f32 v%d, v%d, v%d" % (v.t1, v.m, v.t0))
    e("v_sub_f32 v%d, v%d, v%d" % (v.t2, mp, v.t0))
    e("v_mul_f32 v%d, s%d, v%d" % (v.t1, s.c, v.t1))
    e("v_mul_f32 v%d, s%d, v%d" % (v.t2, s.c, v.t2))
    e("v_exp_f32 v%d, v%d" % (v.t1, v.t1))
    e("v_exp_f32 v%d, v%d" % (v.t2, v.t2))
    e("s_nop 0")
    e("v_mul_f32 v%d, v%d, v%d" % (v.t3, v.l, v.t1))
    e("v_fmac_f32 v%d, v%d, v%d" % (v.t3, lp, v.t2))
    e("v_rcp_f32 v%d, v%d" % (v.t3, v.t3))
    e("s_nop 0")
    e("v_mul_f32 v%d, v%d, v%d" % (v.t1, v.t1, v.t3))
    e("v_mul_f32 v%d, v%d, v%d" % (v.t2, v.t2, v.t3))
    e("s_waitcnt lgkmcnt(0)")
    for i in range(32):
        e("v_mul_f32 v%d, v%d, v%d" % (v.O + i, v.O + i, v.t1))
        e("v_fmac_f32 v%d, v%d, v%d" % (v.O + i, v.KF + i, v.t2))
    e("s_branch L_st_lo")
    lab("L_nosplit")
    e("v_rcp_f32 v%d, v%d" % (v.t3, v.l))
    e("s_nop 0")
    for i in range(64):
        e("v_mul_f32 v%d, v%d, v%d" % (v.O + i, v.O + i, v.t3))

    def store_half(hi):
        for bb in (hi * 2, hi * 2 + 1):
            for g in (0, 2):
                d = v.VF + ((bb * 2 + g // 2) % 8) * 4
                o = v.O + 16 * bb + 4 * g
                for i in range(4):
                    e("v_cvt_pk_bf16_f32 v%d, v%d, v%d" % (d + i, o + 2 * i, o + 2 * i + 1))
                e("s_nop 1")
                e("v_permlane32_swap_b32 v%d, v%d" % (d, d + 2))
                e("v_permlane32_swap_b32 v%d, v%d" % (d + 1, d + 3))
                e("buffer_store_dwordx4 %s, v%d, %s, 0 offen offset:%d" % (vr(d, 4), v.ooff, sr(s.so, 4), 64 * bb + 16 * g))
    store_half(1)
    lab("L_st_lo")
    store_half(0)
    lab("L_end")
    e("s_endpgm")
    lab("L_resc")
    e("v_max3_f32 v%d, v%d, v%d, v%d" % (v.t0, v.S, v.S + 1, v.S + 2))
    for r in range(3, 15, 2):
        e("v_max3_f32 v%d, v%d, v%d, v%d" % (v.t0, v.t0, v.S + r, v.S + r + 1))
    e("v_max3_f32 v%d, v%d, v%d, v%d" % (v.t0, v.t0, v.S + 15, v.m))
    e("v_mov_b32 v%d, v%d" % (v.t1, v.t0))
    e("s_nop 1")
    e("v_permlane32_swap_b32 v%d, v%d" % (v.t0, v.t1))
    e("s_nop 1")
    e("v_max_f32 v%d, v%d, v%d" % (v.t0, v.t0, v.t1))
    e("v_sub_f32 v%d, v%d, v%d" % (v.t1, v.m, v.t0))
    e("v_mul_f32 v%d, s%d, v%d" % (v.t1, s.c, v.t1))
    e("v_exp_f32 v%d, v%d" % (v.t1, v.t1))
    e("v_mov_b32 v%d, v%d" % (v.m, v.t0))
    e("v_mul_f32 v%d, s%d, v%d" % (v.nmc, s.c, v.t0))
    e("v_sub_f32 v%d, 0, v%d" % (v.nmc, v.nmc))
    e("s_cmp_lg_u32 s%d, 0" % s.first)
    e("s_mov_b32 s%d, 0" % s.first)
    e("s_cbranch_scc1 L_soft")
    e("v_mul_f32 v%d, v%d, v%d" % (v.l, v.l, v.t1))
    for i in range(64):
        e("v_mul_f32 v%d, v%d, v%d" % (v.O + i, v.O + i, v.t1))
    e("s_branch L_soft")
    out.append(".p2align 6")
    out.append(".type L_table,@object")
    lab("L_table")
    for ent in build_table():
        out.append("    .long " + ", ".join("0x%x" % x for x in ent))
    out.append(".size L_table, .-L_table")
    out.append('.section .rodata,"a"')
    out.append(".p2align 6")
    out.append(".amdhsa_kernel " + K)
    out.append("  .amdhsa_next_free_vgpr %d" % NV)
    out.append("  .amdhsa_next_free_sgpr %d" % NS)
    out.append("  .amdhsa_accum_offset %d" % NV)
    out.append("  .amdhsa_group_segment_fixed_size 0")
    out.append("  .amdhsa_kernarg_size 56")
    out.append("  .amdhsa_user_sgpr_count 2")
    out.append("  .amdhsa_user_sgpr_kernarg_segment_ptr 1")
    out.append("  .amdhsa_system_sgpr_workgroup_id_x 1")
    out.append(".end_amdhsa_kernel")
    return "\n".join(out) + "\n"


if __name__ == "__main__":
    path = sys.argv[1] if len(sys.argv) > 1 else "cdna_kernels/%s.s" % NAME
    open(path, "w").write(gen())
    print("wrote", path)
```

```python
import sys, struct, math

NAME = "standalone__varlen_attn_packed__ragged"
CU = [0, 289, 520, 939, 1289, 1402, 1666, 1973, 2275]
LEN = [CU[i + 1] - CU[i] for i in range(8)]
T_TOT = 2275
ROWB = 4096
TENSOR_BYTES = T_TOT * ROWB

OPT = {}
for a in sys.argv[1:]:
    if a.startswith("--"):
        k, _, val = a[2:].partition("=")
        OPT[k] = val if val else "1"
STAMPS = "stamps" in OPT
LDF_Q = OPT.get("ldq", "nt").replace("+", " ").replace("none", "")
LDF_K = OPT.get("ldk", "nt").replace("+", " ").replace("none", "")
STF = OPT.get("st", "none").replace("+", " ").replace("none", "")
ORDER = OPT.get("order", "inter")

HEADER = """; Kernarg layout for this problem (56 bytes, ptrs only, base s[0:1]):
"""


def f2u(x):
    return struct.unpack("<I", struct.pack("<f", x))[0]


def cdiv(a, b):
    return (a + b - 1) // b


ROLES = [
    (2, 0, 4, 0, 4), (2, 4, 4, 1, 4), (2, 8, 3, 2, 4), (2, 11, 3, 3, 4),
    (1, 0, 8, 0, 1),
    (6, 0, 5, 0, 2), (6, 5, 5, 1, 2), (7, 0, 5, 0, 2), (7, 5, 5, 1, 2), (0, 0, 5, 0, 2), (0, 5, 5, 1, 2),
    (5, 0, 6, 0, 2),
    ("dual", (5, 6, 3, 1, 2), (4, 0, 4, 0, 1)),
    (3, 0, 4, 0, 3), (3, 4, 4, 1, 3), (3, 8, 3, 2, 3),
]


def block_order(nkv, a, n):
    if ORDER == "seq" or n == 1:
        return list(range(nkv))
    if ORDER == "rot":
        off = (a * nkv) // n
        return [(p + off) % nkv for p in range(nkv)]
    own = [j for j in range(nkv) if j % n == a]
    rounds = cdiv(nkv, n)
    res = []
    lead = int(OPT.get("lead", "2"))
    res += own[:lead]
    for r in range(rounds):
        oth = [r * n + (a + d) % n for d in range(1, n)]
        res += [j for j in oth if j < nkv]
        if r + lead < len(own):
            res.append(own[r + lead])
    assert sorted(res) == list(range(nkv)), res
    return res


def nrec(rows):
    return (rows - 1) * ROWB + 256 if rows > 0 else 0


def pack_list(lst):
    lst = list(lst) + [15] * (16 - len(lst))
    x = 0
    for i, b in enumerate(lst):
        x |= b << (4 * i)
    return x & 0xffffffff, x >> 32


def build_tables():
    near, far = [], []
    for role in ROLES:
        waves = [None] * 8
        if role[0] == "dual":
            (sa, ta, na, aa, nsa), (sb, tb, nb, ab, nsb) = role[1], role[2]
            la = block_order(cdiv(LEN[sa], 32), aa, nsa)
            lb = block_order(cdiv(LEN[sb], 32), ab, nsb)
            nq, n1 = na + nb, na
            qa = CU[sa] + 32 * ta
            qb_adj = CU[sb] + 32 * tb - 32 * n1
            for i in range(na):
                waves[i] = (sa, ta + i, i, 1, 0, 0)
            free = [w for w in (4, 5, 6, 3, 7) if waves[w] is None]
            for i in range(nb):
                waves[free[i]] = (sb, tb + i, na + i, 2, 0, 0)
        else:
            sa, t0, nq, aa, nsa = role
            sb = sa
            o = block_order(cdiv(LEN[sa], 32), aa, nsa)
            la, lb = o[0::2], o[1::2]
            n1 = nq
            qa = CU[sa] + 32 * t0
            qb_adj = 0
            if nq <= 4:
                for i in range(nq):
                    waves[i] = (sa, t0 + i, i, 1, 1, i + 4)
                    waves[i + 4] = (sa, t0 + i, i, 2, 2, i)
            elif nq <= 6:
                for i in range(4):
                    waves[i] = (sa, t0 + i, i, 3, 0, 0)
                for i in range(4, nq):
                    w = 4 + 2 * (i - 4)
                    waves[w] = (sa, t0 + i, i, 1, 1, w + 1)
                    waves[w + 1] = (sa, t0 + i, i, 2, 2, w)
            else:
                for i in range(nq):
                    waves[i] = (sa, t0 + i, i, 3, 0, 0)
        n_it = max(len(la), len(lb))
        a0, a1 = pack_list(la)
        b0, b1 = pack_list(lb)
        near.append([CU[sa] | (LEN[sa] << 12) | (n_it << 24) | (nq << 28),
                     CU[sb] | (LEN[sb] << 12) | (n1 << 28),
                     a0, a1, b0, b1, qa << 12, qb_adj << 12])
        busy = (n_it - 1) % 4
        regions = [k for k in range(4) if k != busy] + [4 + k for k in range(4) if k != busy] + [8, 9]
        for w in range(8):
            wv = waves[w]
            if wv is None:
                far.append([0, 0, 0, 0])
                continue
            sq, tile, ql, mode, split, partner = wv
            nkv = cdiv(LEN[sq], 32)
            if mode == 1:
                blocks = la
            elif mode == 2:
                blocks = lb
            else:
                blocks = [x for p in zip(la, lb + [None]) for x in p if x is not None]
            U = len(blocks)
            assert U >= 2
            tail = LEN[sq] % 32
            ustar = blocks.index(nkv - 1) if (tail and (nkv - 1) in blocks) else 255
            orow = CU[sq] + 32 * tile
            onr = min(32, CU[sq + 1] - orow)
            assert onr > 0
            ustep = 8192 if mode == 3 else 16384
            uoff0 = 8192 if mode == 2 else 0
            far.append([orow * ROWB, nrec(onr),
                        U | (ustar << 8) | (ql << 16) | (split << 20) | (partner << 24) | ((mode == 3) << 28) | ((mode == 2) << 29),
                        tail | (regions[w] << 8) | (regions[partner] << 12)])
    return near, far


class R:
    pass


v = R()
v.kdma, v.vdma = 1, 2
v.ka0r, v.ka1r, v.valr, v.vahr = 3, 4, 5, 6
v.ka0, v.ka1, v.val, v.vah = 7, 8, 9, 10
v.lane = 11
v.nmc, v.l = 12, 13
v.ps = 14
v.t0, v.t1, v.t2, v.t3 = 15, 16, 17, 18
v.pf = 19
v.st = 20
v.fl = 21
v.Q = 24
v.O = 56
v.S = 120
v.B = 136
v.KF = 152
v.VF = 184
v.X = 216
v.E = 232
v.P = 240
NV = 248

s = R()
s.q, s.k, s.vv, s.cu, s.out = 4, 6, 8, 10, 12
s.near = 16
s.lA, s.lB = 18, 20
s.far = 24
s.kA, s.kB, s.vA, s.vB, s.sq, s.so = 28, 32, 36, 40, 44, 48
s.wave, s.hoff, s.w1k = 52, 53, 54
s.n = 55
s.c, s.thr = 56, 57
s.oKA, s.oKB, s.oVA, s.oVB = 58, 59, 60, 61
s.mK, s.mV = 62, 63
s.flag = 64
s.U = 65
s.um = 66
s.ustep = 67
s.koff, s.voff = 68, 69
s.pat = 70
s.split = 71
s.t0, s.t1, s.t2, s.t3 = 72, 73, 74, 75
s.pc = 76
s.stp = 78
s.ws = 80
s.sti = 82
s.ret = 83
s.slot = 84
NS = 88

C_SCALE = (128 ** -0.5) * math.log2(math.e)
THRESH = 4096.0
LDS_TOTAL = 163840
QBASE = 98304
VRING = 65536
FLAGS = LDS_TOTAL - 64

out = []
_lbl = [0]


def e(x):
    out.append("    " + x)


def lab(x):
    out.append(x + ":")


def newlab(p):
    _lbl[0] += 1
    return "L_%s%d" % (p, _lbl[0])


def vr(b, n):
    return "v[%d:%d]" % (b, b + n - 1)


def sr(b, n):
    return "s[%d:%d]" % (b, b + n - 1)


def stamp(k=None, real=False):
    if not STAMPS:
        return
    e("%s s[%d:%d]" % ("s_memrealtime" if real else "s_memtime", s.stp, s.stp + 1))
    e("s_waitcnt lgkmcnt(0)")
    if k is None:
        e("s_mov_b32 m0, s%d" % s.sti)
        e("s_nop 0")
        e("v_writelane_b32 v%d, s%d, m0" % (v.st, s.stp))
        e("s_add_u32 s%d, s%d, 1" % (s.sti, s.sti))
    else:
        e("v_writelane_b32 v%d, s%d, %d" % (v.st, s.stp, k))


def make_srd(dst, ptr, off_sreg, nrec_src):
    e("s_add_u32 s%d, s%d, s%d" % (dst, ptr, off_sreg))
    e("s_addc_u32 s%d, s%d, 0" % (dst + 1, ptr + 1))
    e("s_and_b32 s%d, s%d, 0xffff" % (dst + 1, dst + 1))
    e("s_mov_b32 s%d, %s" % (dst + 2, nrec_src))
    e("s_mov_b32 s%d, 0x20000" % (dst + 3))


def step_prep():
    return [
        "s_mov_b32 s%d, s%d" % (s.oVA, s.oKA),
        "s_mov_b32 s%d, s%d" % (s.oVB, s.oKB),
        "s_and_b32 s%d, s%d, 15" % (s.oKA, s.lA),
        "s_and_b32 s%d, s%d, 15" % (s.oKB, s.lB),
        "s_lshl_b32 s%d, s%d, 17" % (s.oKA, s.oKA),
        "s_lshl_b32 s%d, s%d, 17" % (s.oKB, s.oKB),
        "s_lshr_b64 %s, %s, 4" % (sr(s.lA, 2), sr(s.lA, 2)),
        "s_lshr_b64 %s, %s, 4" % (sr(s.lB, 2), sr(s.lB, 2)),
        "s_add_u32 s%d, s%d, %d" % (s.mV, s.mK, VRING),
        "s_add_u32 s%d, s%d, 0x4000" % (s.mK, s.mK),
        "s_and_b32 s%d, s%d, 0xffff" % (s.mK, s.mK),
    ]


def dma(which, cond=True):
    srd = {"KA": s.kA, "KB": s.kB, "VA": s.vA, "VB": s.vB}[which]
    off = {"KA": s.oKA, "KB": s.oKB, "VA": s.oVA, "VB": s.oVB}[which]
    base = s.mK if which[0] == "K" else s.mV
    vo = v.kdma if which[0] == "K" else v.vdma
    r = []
    if which[1] == "A":
        r.append("s_mov_b32 m0, s%d" % base)
    else:
        r.append("s_add_u32 m0, s%d, 0x2000" % base)
    ld = "buffer_load_dwordx4 v%d, %s, s%d offen %s lds" % (vo, sr(srd, 4), off, LDF_K)
    if cond:
        l = newlab("d")
        r.append("s_cmp_eq_u32 s%d, 0" % s.flag)
        r.append("s_cbranch_scc1 %s" % l)
        r.append(ld)
        r.append(l + ":")
    else:
        r.append("s_nop 0")
        r.append(ld)
    return r


def dma2(kv, cond=True, mid=()):
    a = dma(kv + "A", False)
    b = dma(kv + "B", False)
    if not cond:
        return a + b
    l = newlab("d")
    return [a[0], "s_cmp_eq_u32 s%d, 0" % s.flag, "s_cbranch_scc1 %s" % l, a[2], b[0], b[1], b[2], l + ":"]


def emit(lst):
    for x in lst:
        if x.endswith(":"):
            out.append(x)
        else:
            e(x)


def sigma():
    l0, l1 = newlab("s"), newlab("s")
    r = step_prep()
    r += [
        "s_cmp_ge_u32 s%d, 3" % s.n,
        "s_cselect_b32 s%d, 1, 0" % s.flag,
        "s_cmp_ge_u32 s%d, 2" % s.n,
        "s_cbranch_scc1 %s" % l0,
        "s_waitcnt vmcnt(0)",
        l0 + ":",
        "s_sub_u32 s%d, s%d, 1" % (s.n, s.n),
    ]
    emit(r)
    stamp()
    e("s_waitcnt vmcnt(4)")
    stamp()
    e("s_barrier")
    stamp()


def kread(t, dst):
    return "ds_read_b128 %s, v%d offset:%d" % (vr(dst + 4 * t, 4), v.ka1 if t % 2 else v.ka0,
                                               (t // 4) * 4096 + ((t // 2) % 2) * 256)


def vread(i):
    t, bb, ss = i // 8, (i // 2) % 4, i % 2
    reg = v.VF + (t * 4 + bb) * 4 + ss * 2
    return "ds_read_b64_tr_b16 %s, v%d offset:%d" % (vr(reg, 2), v.vah if bb >= 2 else v.val,
                                                     (4 * t + 2 * ss) * 1024 + (bb % 2) * 256)


def qk(t):
    return "v_mfma_f32_32x32x16_bf16 %s, %s, %s, %s" % (vr(v.S, 16), vr(v.KF + 4 * t, 4), vr(v.Q + 4 * t, 4), vr(v.S, 16))


def qk0():
    l0, l1 = newlab("m"), newlab("m")
    return [
        "s_cbranch_scc1 %s" % l0,
        "v_mfma_f32_32x32x16_bf16 %s, %s, %s, 0" % (vr(v.S, 16), vr(v.KF, 4), vr(v.Q, 4)),
        "s_branch %s" % l1,
        l0 + ":",
        "v_mfma_f32_32x32x16_bf16 %s, %s, %s, %s" % (vr(v.S, 16), vr(v.KF, 4), vr(v.Q, 4), vr(v.B, 16)),
        l1 + ":",
    ]


def pv(i):
    t, bb = i // 4, i % 4
    return "v_mfma_f32_32x32x16_bf16 %s, %s, %s, %s" % (
        vr(v.O + 16 * bb, 16), vr(v.VF + (t * 4 + bb) * 4, 4), vr(v.P + 4 * t, 4), vr(v.O + 16 * bb, 16))


def fma(r):
    return "v_fma_f32 v%d, v%d, s%d, v%d" % (v.X + r, v.S + r, s.c, v.nmc)


def ex(r):
    return "v_exp_f32 v%d, v%d" % (v.E + r % 8, v.X + r)


def add(r):
    if r == 0:
        return None
    if r == 1:
        return "v_add_f32 v%d, v%d, v%d" % (v.ps, v.E, v.E + 1)
    return "v_add_f32 v%d, v%d, v%d" % (v.ps, v.ps, v.E + r % 8)


def cvt(i):
    return "v_cvt_pk_bf16_f32 v%d, v%d, v%d" % (v.P + i, v.E + (2 * i) % 8, v.E + (2 * i + 1) % 8)


def kaddr():
    return ["v_add_u32 v%d, s%d, v%d" % (v.ka0, s.koff, v.ka0r),
            "v_add_u32 v%d, s%d, v%d" % (v.ka1, s.koff, v.ka1r),
            "s_add_u32 s%d, s%d, s%d" % (s.koff, s.koff, s.ustep),
            "s_and_b32 s%d, s%d, 0xffff" % (s.koff, s.koff)]


def vaddr():
    return ["v_add_u32 v%d, s%d, v%d" % (v.val, s.voff, v.valr),
            "v_add_u32 v%d, s%d, v%d" % (v.vah, s.voff, v.vahr),
            "s_add_u32 s%d, s%d, s%d" % (s.voff, s.voff, s.ustep),
            "s_and_b32 s%d, s%d, 0xffff" % (s.voff, s.voff)]


def soft_half_plain(h):
    r = [ex(8 * h + i) for i in range(8)]
    r += [x for x in (add(8 * h + i) for i in range(8)) if x]
    r += [cvt(4 * h + i) for i in range(4)]
    return r


def gen():
    K = NAME + "_kernel"
    near, far = build_tables()
    out.append(HEADER + "; @launch grid=(256,1,1) block=(512,1,1) lds=%d" % LDS_TOTAL)
    out.append('.amdgcn_target "amdgcn-amd-amdhsa--gfx950"')
    out.append(".text")
    out.append(".globl " + K)
    out.append(".p2align 12")
    out.append(".p2align 8")
    out.append(".type %s,@function" % K)
    lab(K)
    e("s_cmp_ge_u32 s2, 256")
    e("s_cbranch_scc1 L_end")
    e("s_load_dwordx8 s[4:11], s[0:1], 0")
    e("s_load_dwordx2 s[12:13], s[0:1], 32")
    e("s_getpc_b64 %s" % sr(s.pc, 2))
    lab("L_pc")
    e("s_lshr_b32 s%d, s2, 4" % s.t0)
    e("s_lshl_b32 s%d, s%d, 5" % (s.t1, s.t0))
    e("s_add_u32 s%d, s%d, L_near-L_pc" % (s.t1, s.t1))
    e("s_load_dwordx8 %s, %s, s%d" % (sr(s.near, 8), sr(s.pc, 2), s.t1))
    e("v_mul_u32_u24 v%d, 24, v0" % v.t0)
    e("global_load_dword v%d, v%d, %s" % (v.pf, v.t0, sr(s.pc, 2)))
    e("s_branch L_start")
    out.append(".p2align 5")
    out.append(".type L_near,@object")
    lab("L_near")
    for ent in near:
        out.append("    .long " + ", ".join("0x%x" % x for x in ent))
    out.append(".size L_near, .-L_near")
    out.append(".type L_start,@function")
    lab("L_start")
    if STAMPS:
        e("v_mov_b32 v%d, 0" % v.st)
        e("s_mov_b32 s%d, 8" % s.sti)
        e("s_memrealtime s[%d:%d]" % (s.stp, s.stp + 1))
        e("s_memtime s[%d:%d]" % (s.ws, s.ws + 1))
    e("v_lshrrev_b32 v%d, 6, v0" % v.t0)
    e("v_and_b32 v%d, 63, v0" % v.lane)
    e("v_readfirstlane_b32 s%d, v%d" % (s.wave, v.t0))
    e("s_and_b32 s%d, s2, 7" % s.t1)
    e("s_lshl_b32 s%d, s%d, 9" % (s.t1, s.t1))
    e("s_bfe_u32 s%d, s2, 0x10003" % s.t2)
    e("s_lshl_b32 s%d, s%d, 8" % (s.t2, s.t2))
    e("s_add_u32 s%d, s%d, s%d" % (s.hoff, s.t1, s.t2))
    e("s_lshl_b32 s%d, s%d, 10" % (s.w1k, s.wave))
    e("s_lshl_b32 s%d, s%d, 3" % (s.t0, s.t0))
    e("s_add_u32 s%d, s%d, s%d" % (s.t0, s.t0, s.wave))
    e("s_lshl_b32 s%d, s%d, 4" % (s.t0, s.t0))
    e("s_add_u32 s%d, s%d, L_far-L_pc" % (s.slot, s.t0))
    L = v.lane
    e("s_and_b32 s%d, s%d, 1" % (s.t0, s.wave))
    e("s_lshl_b32 s%d, s%d, 1" % (s.t0, s.t0))
    e("v_lshrrev_b32 v%d, 5, v%d" % (v.t0, L))
    e("v_add_u32 v%d, s%d, v%d" % (v.t0, s.t0, v.t0))
    e("v_and_b32 v%d, 3, v%d" % (v.t1, L))
    e("v_xor_b32 v%d, v%d, v%d" % (v.t1, v.t1, v.t0))
    e("v_and_b32 v%d, 12, v%d" % (v.t2, L))
    e("v_add_u32 v%d, v%d, v%d" % (v.t0, v.t0, v.t2))
    e("s_bfe_u32 s%d, s%d, 0x10001" % (s.t1, s.wave))
    e("s_lshl_b32 s%d, s%d, 16" % (s.t1, s.t1))
    e("s_lshr_b32 s%d, s%d, 2" % (s.t2, s.wave))
    e("s_lshl_b32 s%d, s%d, 7" % (s.t2, s.t2))
    e("s_add_u32 s%d, s%d, s%d" % (s.t1, s.t1, s.t2))
    e("v_lshlrev_b32 v%d, 12, v%d" % (v.t0, v.t0))
    e("v_lshl_add_u32 v%d, v%d, 4, v%d" % (v.t0, v.t1, v.t0))
    e("v_and_b32 v%d, 16, v%d" % (v.t2, L))
    e("v_lshl_add_u32 v%d, v%d, 2, v%d" % (v.t0, v.t2, v.t0))
    e("v_add_u32 v%d, s%d, v%d" % (v.kdma, s.t1, v.t0))
    e("v_bfe_u32 v%d, v%d, 2, 2" % (v.t0, L))
    e("v_lshlrev_b32 v%d, 12, v%d" % (v.t0, v.t0))
    e("v_and_b32 v%d, 3, v%d" % (v.t1, L))
    e("v_lshl_add_u32 v%d, v%d, 4, v%d" % (v.t0, v.t1, v.t0))
    e("v_lshrrev_b32 v%d, 4, v%d" % (v.t1, L))
    e("v_lshl_add_u32 v%d, v%d, 6, v%d" % (v.t0, v.t1, v.t0))
    e("s_lshl_b32 s%d, s%d, 14" % (s.t1, s.wave))
    e("v_add_u32 v%d, s%d, v%d" % (v.vdma, s.t1, v.t0))
    e("s_sub_u32 s%d, %d, s%d" % (s.sq + 2, TENSOR_BYTES, s.hoff))
    e("s_mov_b32 s%d, 0x20000" % (s.sq + 3))
    e("s_add_u32 m0, s%d, %d" % (s.w1k, QBASE))
    e("s_mov_b32 s%d, 0" % s.t2)
    e("s_waitcnt lgkmcnt(0)")
    if STAMPS:
        e("v_writelane_b32 v%d, s%d, 0" % (v.st, s.stp))
        e("v_writelane_b32 v%d, s%d, 1" % (v.st, s.ws))
        stamp(2)
        e("s_load_dwordx2 %s, s[0:1], 48" % sr(s.ws, 2))
    e("s_load_dwordx4 %s, %s, s%d" % (sr(s.far, 4), sr(s.pc, 2), s.slot))
    N = s.near
    e("s_add_u32 s%d, s%d, s%d" % (s.sq, s.q, s.hoff))
    e("s_addc_u32 s%d, s%d, 0" % (s.sq + 1, s.q + 1))
    e("s_and_b32 s%d, s%d, 0xffff" % (s.sq + 1, s.sq + 1))
    e("s_lshr_b32 s%d, s%d, 28" % (s.t0, N + 0))
    e("s_lshr_b32 s%d, s%d, 28" % (s.t1, N + 1))
    lab("L_qld")
    e("s_cmp_lt_u32 s%d, s%d" % (s.t2, s.t1))
    e("s_cselect_b32 s%d, s%d, s%d" % (s.t3, N + 6, N + 7))
    e("s_add_u32 s%d, s%d, 0x20000" % (N + 6, N + 6))
    e("s_add_u32 s%d, s%d, 0x20000" % (N + 7, N + 7))
    e("buffer_load_dwordx4 v%d, %s, s%d offen %s lds" % (v.kdma, sr(s.sq, 4), s.t3, LDF_Q))
    e("s_add_u32 m0, m0, 0x2000")
    e("s_add_u32 s%d, s%d, 1" % (s.t2, s.t2))
    e("s_cmp_lt_u32 s%d, s%d" % (s.t2, s.t0))
    e("s_cbranch_scc1 L_qld")
    for (w, ks, vs) in ((N + 0, s.kA, s.vA), (N + 1, s.kB, s.vB)):
        e("s_and_b32 s%d, s%d, 0xfff" % (s.t0, w))
        e("s_lshl_b32 s%d, s%d, 12" % (s.t0, s.t0))
        e("s_add_u32 s%d, s%d, s%d" % (s.t0, s.t0, s.hoff))
        e("s_and_b32 s%d, s%d, 0xfff000" % (s.t1, w))
        e("s_sub_u32 s%d, s%d, %d" % (s.t1, s.t1, 4096 - 256))
        make_srd(ks, s.k, s.t0, "s%d" % s.t1)
        make_srd(vs, s.vv, s.t0, "s%d" % s.t1)
    e("s_bfe_u32 s%d, s%d, 0x40018" % (s.n, N + 0))
    e("s_add_u32 s%d, s%d, 1" % (s.n, s.n))
    e("s_add_u32 s%d, s%d, 0xc000" % (s.mK, s.w1k))
    emit(step_prep())
    emit(dma("KA", False))
    emit(dma("KB", False))
    if OPT.get("early1"):
        emit(step_prep())
        for w in ("KA", "KB", "VA", "VB"):
            emit(dma(w, False))
    stamp(3)
    e("v_bfe_u32 v%d, v%d, 4, 1" % (v.t0, L))
    e("v_lshlrev_b32 v%d, 11, v%d" % (v.t0, v.t0))
    e("v_bfe_u32 v%d, v%d, 1, 1" % (v.t1, L))
    e("v_lshl_add_u32 v%d, v%d, 10, v%d" % (v.t0, v.t1, v.t0))
    e("v_and_b32 v%d, 1, v%d" % (v.t1, L))
    e("v_lshl_add_u32 v%d, v%d, 9, v%d" % (v.t0, v.t1, v.t0))
    e("v_bfe_u32 v%d, v%d, 2, 2" % (v.t1, L))
    e("v_lshl_add_u32 v%d, v%d, 6, v%d" % (v.t0, v.t1, v.t0))
    e("v_lshrrev_b32 v%d, 5, v%d" % (v.t1, L))
    e("v_and_b32 v%d, 3, v%d" % (v.t2, L))
    e("v_xor_b32 v%d, v%d, v%d" % (v.t1, v.t1, v.t2))
    e("v_lshl_add_u32 v%d, v%d, 4, v%d" % (v.ka0r, v.t1, v.t0))
    e("v_xor_b32 v%d, 32, v%d" % (v.ka1r, v.ka0r))
    e("v_lshrrev_b32 v%d, 5, v%d" % (v.t0, L))
    e("v_lshlrev_b32 v%d, 10, v%d" % (v.t0, v.t0))
    e("v_bfe_u32 v%d, v%d, 2, 2" % (v.t1, L))
    e("v_lshl_add_u32 v%d, v%d, 6, v%d" % (v.t0, v.t1, v.t0))
    e("v_bfe_u32 v%d, v%d, 4, 1" % (v.t1, L))
    e("v_lshl_add_u32 v%d, v%d, 5, v%d" % (v.t0, v.t1, v.t0))
    e("v_and_b32 v%d, 3, v%d" % (v.t1, L))
    e("v_lshl_add_u32 v%d, v%d, 3, v%d" % (v.t0, v.t1, v.t0))
    e("v_add_u32 v%d, 0x%x, v%d" % (v.valr, VRING, v.t0))
    for r in range(0, 64, 2):
        e("v_pk_mov_b32 %s, 0, 0" % vr(v.O + r, 2))
    e("v_mov_b32 v%d, 0" % v.l)
    e("s_mov_b32 s%d, 0x%x" % (s.c, f2u(C_SCALE)))
    e("s_mov_b32 s%d, 0x%x" % (s.thr, f2u(THRESH)))
    if not OPT.get("early1"):
        if OPT.get("bar1"):
            e("s_barrier")
        emit(step_prep())
        for w in ("KA", "KB", "VA", "VB"):
            emit(dma(w, False))
    e("s_waitcnt lgkmcnt(0)")
    F = s.far
    e("s_lshl_b32 s%d, s%d, 2" % (s.t0, s.wave))
    e("s_add_u32 s%d, s%d, %d" % (s.t0, s.t0, FLAGS))
    e("v_mov_b32 v%d, s%d" % (v.fl, s.t0))
    e("s_bfe_u32 s%d, s%d, 0x20014" % (s.split, F + 2))
    e("s_cbranch_scc0 L_noflag")
    e("ds_write_b32 v%d, v%d" % (v.fl, v.l))
    e("s_waitcnt lgkmcnt(0)")
    lab("L_noflag")
    e("s_add_u32 s%d, s%d, s%d" % (s.t0, F + 0, s.hoff))
    make_srd(s.so, s.out, s.t0, "s%d" % (F + 1))
    e("s_and_b32 s%d, s%d, 0xff" % (s.U, F + 2))
    e("s_bfe_u32 s%d, s%d, 0x80008" % (s.um, F + 2))
    e("s_bitcmp1_b32 s%d, 28" % (F + 2))
    e("s_cselect_b32 s%d, 0x2000, 0" % s.t0)
    e("s_sub_u32 s%d, 0x4000, s%d" % (s.ustep, s.t0))
    e("s_bitcmp1_b32 s%d, 29" % (F + 2))
    e("s_cselect_b32 s%d, 0x2000, 0" % s.koff)
    e("s_mov_b32 s%d, s%d" % (s.voff, s.koff))
    e("s_cmp_eq_u32 s%d, 2" % s.split)
    e("s_cselect_b32 s%d, 512, 0" % s.t0)
    e("s_cselect_b32 s%d, 0, 512" % s.t1)
    e("v_add_u32 v%d, s%d, v%d" % (v.vahr, s.t1, v.valr))
    e("v_add_u32 v%d, s%d, v%d" % (v.valr, s.t0, v.valr))
    e("s_and_b32 s%d, s%d, 0xff" % (s.t0, F + 3))
    e("s_sub_u32 s%d, s%d, 1" % (s.t0, s.t0))
    e("v_lshrrev_b32 v%d, 5, v%d" % (v.t0, L))
    e("v_lshlrev_b32 v%d, 2, v%d" % (v.t0, v.t0))
    e("v_sub_u32 v%d, s%d, v%d" % (v.t0, s.t0, v.t0))
    e("v_mov_b32 v%d, 0xff800000" % v.t1)
    for r in range(16):
        cst = 8 * (r // 4) + r % 4
        e("v_subrev_u32 v%d, %d, v%d" % (v.B + r, cst, v.t0))
        e("v_ashrrev_i32 v%d, 31, v%d" % (v.B + r, v.B + r))
        e("v_and_b32 v%d, v%d, v%d" % (v.B + r, v.t1, v.B + r))
    e("s_cmp_eq_u32 s%d, 0" % s.U)
    e("s_cbranch_scc1 L_service")
    e("s_bfe_u32 s%d, s%d, 0x30010" % (s.t0, F + 2))
    e("s_lshl_b32 s%d, s%d, 13" % (s.t0, s.t0))
    e("s_add_u32 s%d, s%d, %d" % (s.t0, s.t0, QBASE))
    e("v_add_u32 v%d, s%d, v%d" % (v.ka0, s.t0, v.ka0r))
    e("v_add_u32 v%d, s%d, v%d" % (v.ka1, s.t0, v.ka1r))
    e("s_sub_u32 s%d, s%d, 1" % (s.U, s.U))
    ool = []

    def qk0x():
        l0, l1 = newlab("m"), newlab("m")
        ool.append([l0 + ":",
                    "v_mfma_f32_32x32x16_bf16 %s, %s, %s, %s" % (vr(v.S, 16), vr(v.KF, 4), vr(v.Q, 4), vr(v.B, 16)),
                    "s_branch %s" % l1])
        return ["s_cbranch_scc1 %s" % l0,
                "v_mfma_f32_32x32x16_bf16 %s, %s, %s, 0" % (vr(v.S, 16), vr(v.KF, 4), vr(v.Q, 4)),
                l1 + ":"]

    def sig_pre():
        return step_prep() + ["s_cmp_ge_u32 s%d, 3" % s.n,
                              "s_cselect_b32 s%d, 1, 0" % s.flag,
                              "s_sub_u32 s%d, s%d, 1" % (s.n, s.n)]

    def sig_sync():
        l0, l1 = newlab("s"), newlab("s")
        ool.append([l0 + ":", "s_waitcnt vmcnt(0)", "s_branch %s" % l1])
        emit(["s_cmp_eq_u32 s%d, 0" % s.n, "s_cbranch_scc1 %s" % l0, l1 + ":"])
        stamp()
        e("s_waitcnt vmcnt(4)")
        stamp()
        e("s_barrier")
        stamp()

    rets = []

    def check():
        k = len(rets)
        rets.append("L_ret%d" % k)
        emit(["s_mov_b32 s%d, %d" % (s.ret, k), "s_cbranch_vccnz L_resc", "L_ret%d:" % k,
              "v_add_f32 v%d, v%d, v%d" % (v.l, v.l, v.ps)])

    def qk_phase(vdma, sig):
        emit(vaddr())
        e("s_cmp_eq_u32 s%d, 0" % s.um)
        e("s_waitcnt lgkmcnt(0)")
        emit(qk0x())
        sp = sig_pre() if sig else []
        gaps = [
            ["s_sub_u32 s%d, s%d, 1" % (s.um, s.um), vread(0), vread(1), ex(8), ex(9)],
            [vread(2), vread(3), ex(10), ex(11), add(8)],
            [vread(4), vread(5), add(9), cvt(4)] + (dma2("V") if vdma else []),
            [vread(6), vread(7), ex(12), ex(13), add(10)] + sp[0:3],
            [vread(8), vread(9), add(11), cvt(5), ex(14)] + sp[3:6],
            [vread(10), vread(11), ex(15), add(12), add(13)] + sp[6:9],
            [vread(12), vread(13), cvt(6), add(14)] + sp[9:14],
            [vread(14), vread(15), add(15), cvt(7), "v_cmp_lt_f32 vcc, s%d, v%d" % (s.thr, v.ps)],
        ]
        emit(gaps[0])
        for t in range(1, 8):
            e(qk(t))
            emit(gaps[t])
        emit(kaddr())
        check()
        if sig:
            sig_sync()

    def pv_phase(kdma):
        gaps = [
            [kread(0, v.KF), kread(1, v.KF), fma(0), fma(1), fma(2), fma(3)],
            [kread(2, v.KF), kread(3, v.KF), fma(4), fma(5), ex(0), ex(1)],
            [kread(4, v.KF), kread(5, v.KF), fma(6), fma(7), fma(8), fma(9)],
            [kread(6, v.KF), kread(7, v.KF), ex(2), ex(3), add(1)],
            [cvt(0), add(2), ex(4), ex(5), fma(10)],
            [add(3), cvt(1)] + (dma2("K") if kdma else [fma(11), fma(12)]),
            [ex(6), ex(7), add(4), add(5), cvt(2)] + ([fma(11)] if kdma else []),
            [add(6), add(7), cvt(3)] + ([fma(12)] if kdma else []) + [fma(13), fma(14), fma(15),
             "s_sub_u32 s%d, s%d, 1" % (s.U, s.U), "s_cmp_lg_u32 s%d, 0" % s.U],
        ]
        waits = {0: 8, 4: 8}
        for i in range(8):
            if i in waits:
                e("s_waitcnt lgkmcnt(%d)" % waits[i])
            e(pv(i))
            emit(gaps[i])

    emit(sig_pre())
    sig_sync()
    for t in range(8):
        e(kread(t, v.Q))
    emit(kaddr())
    e("s_waitcnt lgkmcnt(4)")
    for t in range(8):
        e(kread(t, v.KF))
    emit(dma2("K"))
    e("s_cmp_eq_u32 s%d, 0" % s.um)
    e("s_waitcnt lgkmcnt(7)")
    emit(qk0x())
    e("s_sub_u32 s%d, s%d, 1" % (s.um, s.um))
    for t in range(1, 8):
        e("s_waitcnt lgkmcnt(%d)" % (7 - t))
        e(qk(t))
    emit(dma2("V"))
    emit(sig_pre())
    e("v_max3_f32 v%d, v%d, v%d, v%d" % (v.t0, v.S, v.S + 1, v.S + 2))
    for r in range(3, 15, 2):
        e("v_max3_f32 v%d, v%d, v%d, v%d" % (v.t0, v.t0, v.S + r, v.S + r + 1))
    e("v_max_f32 v%d, v%d, v%d" % (v.t0, v.t0, v.S + 15))
    e("v_mov_b32 v%d, v%d" % (v.t1, v.t0))
    e("s_nop 1")
    e("v_permlane32_swap_b32 v%d, v%d" % (v.t0, v.t1))
    e("s_nop 1")
    e("v_max_f32 v%d, v%d, v%d" % (v.t0, v.t0, v.t1))
    e("v_mul_f32 v%d, s%d, v%d" % (v.t0, s.c, v.t0))
    e("v_sub_f32 v%d, 0, v%d" % (v.nmc, v.t0))
    for r in range(16):
        e(fma(r))
    emit(soft_half_plain(0))
    emit(kaddr())
    sig_sync()
    for t in range(8):
        e(kread(t, v.KF))
    emit(dma2("K"))
    e("s_bitcmp1_b32 s%d, 28" % (F + 2))
    e("s_cbranch_scc1 L_mloop")
    out.append(".p2align 4")
    lab("L_sloop")
    qk_phase(True, True)
    pv_phase(True)
    e("s_cbranch_scc1 L_sloop")
    e("s_branch L_tail")
    out.append(".p2align 4")
    lab("L_mloop")
    qk_phase(True, False)
    e("s_mov_b32 s%d, 0" % s.flag)
    pv_phase(False)
    e("s_cbranch_scc0 L_tail")
    qk_phase(False, True)
    pv_phase(True)
    e("s_cbranch_scc1 L_mloop")
    lab("L_tail")
    emit(vaddr())
    for i in range(12):
        e(vread(i))
    emit(dma2("V"))
    sh = soft_half_plain(1)
    emit(sh[:8])
    for i in range(12, 16):
        e(vread(i))
    emit(sh[8:])
    e("v_cmp_lt_f32 vcc, s%d, v%d" % (s.thr, v.ps))
    check()
    e("s_waitcnt lgkmcnt(0)")
    for i in range(8):
        e(pv(i))
    e("s_mov_b32 s%d, 1" % s.U)
    lab("L_service")
    e("s_cmp_eq_u32 s%d, 0" % s.n)
    e("s_cbranch_scc1 L_epi")
    emit(sig_pre())
    sig_sync()
    emit(dma2("K"))
    emit(dma2("V"))
    e("s_branch L_service")
    lab("L_epi")
    stamp(5)
    e("s_cmp_eq_u32 s%d, 0" % s.U)
    e("s_cbranch_scc1 L_fin")
    xa, xp = v.ka0, v.ka1
    tw, tr0, tr1, oo = v.val, v.vah, v.ka0r, v.ka1r
    e("v_mov_b32 v%d, v%d" % (v.t0, v.l))
    e("s_bfe_u32 s%d, s%d, 0x40008" % (s.t0, F + 3))
    e("s_lshl_b32 s%d, s%d, 14" % (s.t0, s.t0))
    e("v_permlane32_swap_b32 v%d, v%d" % (v.l, v.t0))
    e("v_lshlrev_b32 v%d, 4, v%d" % (v.t1, L))
    e("s_bfe_u32 s%d, s%d, 0x4000c" % (s.t1, F + 3))
    e("v_add_f32 v%d, v%d, v%d" % (v.l, v.l, v.t0))
    e("s_lshl_b32 s%d, s%d, 14" % (s.t1, s.t1))
    e("v_add_u32 v%d, s%d, v%d" % (xa, s.t0, v.t1))
    e("v_add_u32 v%d, s%d, v%d" % (xp, s.t1, v.t1))
    e("v_and_b32 v%d, 31, v%d" % (v.t0, L))
    e("v_lshrrev_b32 v%d, 5, v%d" % (v.t1, L))
    e("v_lshlrev_b32 v%d, 3, v%d" % (v.t1, v.t1))
    e("v_and_b32 v%d, 7, v%d" % (v.t2, L))
    e("v_lshl_add_u32 v%d, v%d, 4, v%d" % (v.t1, v.t2, v.t1))
    e("s_cmp_eq_u32 s%d, 0" % s.split)
    e("s_cbranch_scc1 L_nosplit")
    for k in range(8):
        e("ds_write_b128 v%d, %s offset:%d" % (xa, vr(v.O + 32 + 4 * k, 4), k * 1024))
    e("ds_write_b64 v%d, %s offset:8192" % (xa, vr(v.nmc, 2)))
    e("v_mov_b32 v%d, 1" % v.t3)
    e("ds_write_b32 v%d, v%d" % (v.fl, v.t3))
    e("s_add_u32 s%d, s%d, 0x2400" % (s.t0, s.t0))
    e("v_lshl_add_u32 v%d, v%d, 7, v%d" % (v.t0, v.t0, v.t1))
    e("v_add_u32 v%d, s%d, v%d" % (tw, s.t0, v.t0))
    e("s_bfe_u32 s%d, s%d, 0x30018" % (s.t1, F + 2))
    e("s_lshl_b32 s%d, s%d, 2" % (s.t1, s.t1))
    e("s_add_u32 s%d, s%d, %d" % (s.t1, s.t1, FLAGS))
    e("v_mov_b32 v%d, s%d" % (v.t2, s.t1))
    lab("L_poll")
    e("ds_read_b32 v%d, v%d" % (v.t3, v.t2))
    e("s_waitcnt lgkmcnt(0)")
    e("v_readfirstlane_b32 s%d, v%d" % (s.t1, v.t3))
    e("s_cmp_eq_u32 s%d, 0" % s.t1)
    e("s_cbranch_scc1 L_poll")
    stamp(4)
    e("ds_read_b64 %s, v%d offset:8192" % (vr(v.X, 2), xp))
    for k in range(8):
        e("ds_read_b128 %s, v%d offset:%d" % (vr(v.KF + 4 * k, 4), xp, k * 1024))
    e("s_waitcnt lgkmcnt(8)")
    mp, lp = v.X, v.X + 1
    fa, fb = v.X + 2, v.X + 4
    e("v_min_f32 v%d, v%d, v%d" % (v.t0, v.nmc, mp))
    e("v_sub_f32 v%d, v%d, v%d" % (v.t1, v.t0, v.nmc))
    e("v_sub_f32 v%d, v%d, v%d" % (v.t2, v.t0, mp))
    e("v_exp_f32 v%d, v%d" % (v.t1, v.t1))
    e("v_exp_f32 v%d, v%d" % (v.t2, v.t2))
    e("s_nop 0")
    e("v_mul_f32 v%d, v%d, v%d" % (v.t3, v.l, v.t1))
    e("v_fmac_f32 v%d, v%d, v%d" % (v.t3, lp, v.t2))
    e("v_rcp_f32 v%d, v%d" % (v.t3, v.t3))
    e("s_nop 0")
    e("v_mul_f32 v%d, v%d, v%d" % (fa, v.t1, v.t3))
    e("v_mul_f32 v%d, v%d, v%d" % (fb, v.t2, v.t3))
    for i in range(0, 32, 2):
        e("v_pk_mul_f32 %s, %s, %s op_sel_hi:[1,0]" % (vr(v.O + i, 2), vr(v.O + i, 2), vr(fa, 2)))
    e("s_waitcnt lgkmcnt(0)")
    for i in range(0, 32, 2):
        e("v_pk_fma_f32 %s, %s, %s, %s op_sel_hi:[1,0,1]" % (vr(v.O + i, 2), vr(v.KF + i, 2), vr(fb, 2), vr(v.O + i, 2)))

    def pack_write(bbs):
        for bb in bbs:
            for g in range(4):
                c = 4 * bb + g
                o = v.O + 16 * bb + 4 * g
                d = v.VF + 2 * (c % 16)
                e("v_cvt_pk_bf16_f32 v%d, v%d, v%d" % (d, o, o + 1))
                e("v_cvt_pk_bf16_f32 v%d, v%d, v%d" % (d + 1, o + 2, o + 3))
                a = v.E + (c % 8)
                if bb in (bbs[0], bbs[0] + 1):
                    e("v_xor_b32 v%d, %d, v%d" % (a, (c % 8) * 16, tw))
                e("ds_write_b64 v%d, %s offset:%d" % (a, vr(d, 2), (c // 8) * 128))
    pack_write([0, 1])
    e("v_lshrrev_b32 v%d, 3, v%d" % (v.t0, L))
    e("v_and_b32 v%d, 7, v%d" % (v.t1, L))
    e("v_xor_b32 v%d, v%d, v%d" % (v.t2, v.t1, v.t0))
    e("v_lshlrev_b32 v%d, 4, v%d" % (v.t2, v.t2))
    e("v_lshl_add_u32 v%d, v%d, 7, v%d" % (v.t2, v.t0, v.t2))
    e("v_add_u32 v%d, s%d, v%d" % (tr0, s.t0, v.t2))
    e("v_lshlrev_b32 v%d, 12, v%d" % (v.t0, v.t0))
    e("v_lshl_add_u32 v%d, v%d, 4, v%d" % (oo, v.t1, v.t0))
    e("s_cmp_eq_u32 s%d, 2" % s.split)
    e("s_cselect_b32 s%d, 128, 0" % s.t1)
    for k in range(4):
        e("ds_read_b128 %s, v%d offset:%d" % (vr(v.KF + 4 * k, 4), tr0, k * 1024))
    for k in range(4):
        e("s_waitcnt lgkmcnt(%d)" % (3 - k))
        e("buffer_store_dwordx4 %s, v%d, %s, s%d offen %s" % (vr(v.KF + 4 * k, 4), oo, sr(s.so, 4), s.t1, STF))
        e("s_add_u32 s%d, s%d, 0x8000" % (s.t1, s.t1))
    e("s_branch L_fin")
    lab("L_nosplit")
    e("v_rcp_f32 v%d, v%d" % (v.X + 2, v.l))
    e("v_lshl_add_u32 v%d, v%d, 8, v%d" % (v.t0, v.t0, v.t1))
    e("v_add_u32 v%d, s%d, v%d" % (tw, s.t0, v.t0))
    for i in range(0, 64, 2):
        e("v_pk_mul_f32 %s, %s, %s op_sel_hi:[1,0]" % (vr(v.O + i, 2), vr(v.O + i, 2), vr(v.X + 2, 2)))
    pack_write([0, 1, 2, 3])
    e("v_lshrrev_b32 v%d, 4, v%d" % (v.t0, L))
    e("v_and_b32 v%d, 15, v%d" % (v.t1, L))
    e("v_xor_b32 v%d, v%d, v%d" % (v.t2, v.t1, v.t0))
    e("v_lshlrev_b32 v%d, 4, v%d" % (v.t2, v.t2))
    e("v_lshl_add_u32 v%d, v%d, 8, v%d" % (v.t2, v.t0, v.t2))
    e("v_add_u32 v%d, s%d, v%d" % (tr0, s.t0, v.t2))
    e("v_xor_b32 v%d, 64, v%d" % (tr1, tr0))
    e("v_lshlrev_b32 v%d, 12, v%d" % (v.t0, v.t0))
    e("v_lshl_add_u32 v%d, v%d, 4, v%d" % (oo, v.t1, v.t0))
    e("s_mov_b32 s%d, 0" % s.t1)
    stamp(4)
    for k in range(8):
        e("ds_read_b128 %s, v%d offset:%d" % (vr(v.KF + 4 * k, 4), tr1 if k % 2 else tr0, k * 1024))
    for k in range(8):
        e("s_waitcnt lgkmcnt(%d)" % (7 - k))
        e("buffer_store_dwordx4 %s, v%d, %s, s%d offen %s" % (vr(v.KF + 4 * k, 4), oo, sr(s.so, 4), s.t1, STF))
        e("s_add_u32 s%d, s%d, 0x4000" % (s.t1, s.t1))
    lab("L_fin")
    if STAMPS:
        stamp(6)
        e("s_waitcnt vmcnt(0)")
        stamp(7)
        stamp(61, True)
        e("s_getreg_b32 s%d, hwreg(HW_REG_XCC_ID)" % s.stp)
        e("v_writelane_b32 v%d, s%d, 62" % (v.st, s.stp))
        e("s_lshl_b32 s%d, s2, 3" % s.t0)
        e("s_add_u32 s%d, s%d, s%d" % (s.t0, s.t0, s.wave))
        e("s_lshl_b32 s%d, s%d, 8" % (s.t0, s.t0))
        e("v_lshlrev_b32 v%d, 2, v%d" % (v.t0, v.lane))
        e("v_add_u32 v%d, s%d, v%d" % (v.t0, s.t0, v.t0))
        e("global_store_dword v%d, v%d, %s" % (v.t0, v.st, sr(s.ws, 2)))
    lab("L_end")
    e("s_endpgm")
    for blk in ool:
        emit(blk)
    lab("L_resc")
    e("v_max3_f32 v%d, v%d, v%d, v%d" % (v.t0, v.X, v.X + 1, v.X + 2))
    for r in range(3, 15, 2):
        e("v_max3_f32 v%d, v%d, v%d, v%d" % (v.t0, v.t0, v.X + r, v.X + r + 1))
    e("v_max3_f32 v%d, v%d, v%d, 0" % (v.t0, v.t0, v.X + 15))
    e("v_mov_b32 v%d, v%d" % (v.t1, v.t0))
    e("s_nop 1")
    e("v_permlane32_swap_b32 v%d, v%d" % (v.t0, v.t1))
    e("s_nop 1")
    e("v_max_f32 v%d, v%d, v%d" % (v.t0, v.t0, v.t1))
    e("v_exp_f32 v%d, -v%d" % (v.t1, v.t0))
    e("v_sub_f32 v%d, v%d, v%d" % (v.nmc, v.nmc, v.t0))
    for r in range(16):
        e("v_sub_f32 v%d, v%d, v%d" % (v.X + r, v.X + r, v.t0))
    e("v_mul_f32 v%d, v%d, v%d" % (v.l, v.l, v.t1))
    for i in range(64):
        e("v_mul_f32 v%d, v%d, v%d" % (v.O + i, v.O + i, v.t1))
    emit(soft_half_plain(0))
    emit(soft_half_plain(1))
    for k, r in enumerate(rets[:-1]):
        e("s_cmp_eq_u32 s%d, %d" % (s.ret, k))
        e("s_cbranch_scc1 %s" % r)
    e("s_branch %s" % rets[-1])
    out.append(".p2align 6")
    out.append(".type L_far,@object")
    lab("L_far")
    for ent in far:
        out.append("    .long " + ", ".join("0x%x" % x for x in ent))
    out.append(".size L_far, .-L_far")
    lab("L_codeend")
    out.append("    .fill 512, 4, 0xbf800000")
    out.append('.section .rodata,"a"')
    out.append(".p2align 6")
    out.append(".amdhsa_kernel " + K)
    out.append("  .amdhsa_next_free_vgpr %d" % NV)
    out.append("  .amdhsa_next_free_sgpr %d" % NS)
    out.append("  .amdhsa_accum_offset %d" % NV)
    out.append("  .amdhsa_group_segment_fixed_size 0")
    out.append("  .amdhsa_kernarg_size 56")
    out.append("  .amdhsa_user_sgpr_count 2")
    out.append("  .amdhsa_user_sgpr_kernarg_segment_ptr 1")
    out.append("  .amdhsa_system_sgpr_workgroup_id_x 1")
    out.append(".end_amdhsa_kernel")
    return "\n".join(out) + "\n"


if __name__ == "__main__":
    args = [a for a in sys.argv[1:] if a.endswith(".s")]
    path = args[0] if args else "cdna_kernels/%s.s" % NAME
    open(path, "w").write(gen())
    print("wrote", path)
```

```python
import sys, struct, math

NAME = "standalone__varlen_attn_packed__ragged"
CU = [0, 289, 520, 939, 1289, 1402, 1666, 1973, 2275]
LEN = [CU[i + 1] - CU[i] for i in range(8)]
T_TOT = 2275
ROWB = 4096
TENSOR_BYTES = T_TOT * ROWB

OPT = {}
for a in sys.argv[1:]:
    if a.startswith("--"):
        k, _, val = a[2:].partition("=")
        OPT[k] = val if val else "1"
STAMPS = "stamps" in OPT or "lite" in OPT
LITE = "lite" in OPT
LDF_Q = OPT.get("ldq", "nt").replace("+", " ").replace("none", "")
LDF_K = OPT.get("ldk", "nt").replace("+", " ").replace("none", "")
STF = OPT.get("st", "none").replace("+", " ").replace("none", "")
FLY = int(OPT.get("fly", "4"))

HEADER = """; Kernarg layout for this problem (56 bytes, ptrs only, base s[0:1]):
;   offset   0: d_in[0] q  shape=(2275, 16, 128) dtype=bfloat16 strides=(4096, 256, 2) contiguous=True
;   offset   8: d_in[1] k  shape=(2275, 16, 128) dtype=bfloat16 strides=(4096, 256, 2) contiguous=True
;   offset  16: d_in[2] v  shape=(2275, 16, 128) dtype=bfloat16 strides=(4096, 256, 2) contiguous=True
;   offset  32: d_out     shape=(2275, 16, 128) dtype=bfloat16 (2 bytes/elem)
"""


def f2u(x):
    return struct.unpack("<I", struct.pack("<f", x))[0]


def cdiv(a, b):
    return (a + b - 1) // b


LDS_TOTAL = 163840
QBASE = 98304
XTRA = 131072
MLBASE = XTRA + 16384
PRGB = XTRA + 7 * 4096 + 2048
RDYB = XTRA + 6 * 4096 + 3072
CNTB = XTRA + 6 * 4096 + 2048
BIG = 0x4000

ROLES = [
    (2, 0, 4), (2, 4, 4), (2, 8, 3), (2, 11, 3),
    (3, 0, 5), (3, 5, 5),
    (5, 0, 6),
    (6, 0, 5), (6, 5, 5), (7, 0, 5), (7, 5, 5), (0, 0, 5), (0, 5, 5),
    (1, 0, 6),
    ("dual", (3, 10, 1), (5, 6, 3)),
    ("dual", (1, 6, 2), (4, 0, 4)),
]


def nrec(rows):
    return (rows - 1) * ROWB + 256 if rows > 0 else 0


def build_tables():
    near, far, desc = [], [], []
    for ri, role in enumerate(ROLES):
        W = [None] * 8
        groups = []
        if role[0] == "dual":
            (sa, ta, na), (sb, tb, nb) = role[1], role[2]
            rowA, lenA, rowB, lenB, step = CU[sa], LEN[sa], CU[sb], LEN[sb], 32
            n_it = max(cdiv(lenA, 32), cdiv(lenB, 32))
            tiles = [(sa, ta + i, 0) for i in range(na)] + [(sb, tb + i, 1) for i in range(nb)]
            nq = len(tiles)
            for i in range(4):
                sq, tl, st = tiles[i]
                W[i] = dict(seq=sq, tile=tl, ql=i, type=2, stream=st, its=list(range(cdiv(LEN[sq], 32))), hastail=1)
            for i in range(4, nq):
                sq, tl, st = tiles[i]
                nb_ = cdiv(LEN[sq], 32)
                W[i + 2] = dict(seq=sq, tile=tl, ql=i, type=3, stream=st, its=list(range(nb_)), hastail=1,
                                G=1, reg=XTRA + 4096 * i)
        else:
            sa, t0, nq = role
            rowA, lenA, rowB, lenB, step = CU[sa], LEN[sa], CU[sa] + 32, LEN[sa] - 32, 64
            nkv = cdiv(lenA, 32)
            n_it = cdiv(nkv, 2)
            tiles = [(sa, t0 + i, 0) for i in range(nq)]
            for i in range(min(nq, 4)):
                W[i] = dict(seq=sa, tile=t0 + i, ql=i, type=1, stream=0, its=list(range(nkv)), hastail=1)
            nh = 4 // (nq - 4) if nq > 4 else 0
            for i in range(4, nq):
                ws = [4 + (i - 4) * nh + k for k in range(nh)]
                for k, w in enumerate(ws):
                    blocks = [p for p in range(nkv) if p % nh == k]
                    W[w] = dict(seq=sa, tile=t0 + i, ql=i, type=3, stream=k % 2, its=[p // 2 for p in blocks],
                                hastail=int((nkv - 1) in blocks))
                groups.append(ws)
        qrows = [CU[sq] + 32 * tl for sq, tl, _ in tiles] + [0xfff] * (6 - nq)
        near.append([rowA * ROWB, nrec(lenA), rowB * ROWB, nrec(lenB), step * ROWB | (2 * n_it + 1),
                     qrows[0] | qrows[1] << 16, qrows[2] | qrows[3] << 16, qrows[4] | qrows[5] << 16])
        areas = [((n_it + 1) % 4) * 32768, ((n_it + 2) % 4) * 32768]
        recv = [areas[0], areas[0] + 12288, areas[1], areas[1] + 12288]
        for i in range(4):
            if W[i]:
                W[i]["reg"] = XTRA + 4096 * i
        for gi, g in enumerate(groups):
            G = len(g)
            for k, w in enumerate(g):
                W[w]["reg"] = recv[w - 4]
                W[w]["G"], W[w]["k"], W[w]["gi"] = G, k, gi
                if G == 4:
                    W[w]["send"] = [recv[g[(j + k) % 4] - 4] + (j - 1) * 4096 for j in (1, 2, 3)]
                    W[w]["src"] = [g[(k - j) % 4] for j in (1, 2, 3)]
                else:
                    o = g[1 - k]
                    W[w]["send"] = [0, recv[o - 4], recv[o - 4] + 4096]
                    W[w]["src"] = [o, o, o]
        for wi in range(8):
            w = W[wi]
            desc.append(w)
            if w is None:
                far.append([0] * 8)
                continue
            sq, its, typ, sc = w["seq"], w["its"], w["type"], w["stream"]
            tail = LEN[sq] % 32
            orow = CU[sq] + 32 * w["tile"]
            onr = min(32, CU[sq + 1] - orow)
            assert onr > 0 and tail > 0
            U = len(its) - 1
            a0, st = its[0], its[1] - its[0]
            assert all(its[i] == a0 + st * i for i in range(len(its))) and st <= 2 and a0 <= 1 and U >= 1
            if typ == 1:
                inc, prg0, prg1, need1, need2 = 1, 2, 4, 0, 2
            elif typ == 2:
                inc, prg0, prg1, need1, need2 = 2, 2, 4 + sc, sc, 4 + sc
            else:
                inc, prg0, prg1, need1, need2 = 2 * st, 2 * a0 + sc + 2, 2 * (a0 + 1) + sc + 2, 3, 2 * (a0 + st) + sc
            w.update(U=U, a0=a0, st=st, inc=inc, prg0=prg0, prg1=prg1, need1=need1, need2=need2, n_it=n_it)
            hm = 0
            if typ != 3:
                nlast = 2 * n_it + 1
                pub = prg0
                w["pubs"] = []
                for b in range(U):
                    val = prg1 + inc * (b + 1)
                    want = pub < nlast - 5 and (typ == 2 or b % 2 == 1 or OPT.get("puball"))
                    if groups and pub < nlast - 1 <= val:
                        want = True
                    if typ == 2 or U - 1 - b <= 1:
                        hm |= 1 << (U - 1 - b)
                    if want and OPT.get("nodpub"):
                        hm |= 0x10001 << (U - 1 - b)
                        pub = val
                        w["pubs"].append(b)
            G, k, gi = w.get("G", 0), w.get("k", 0), w.get("gi", 0)
            rot = k * (4 // G) if G > 1 else 0
            ent = [orow * ROWB, nrec(onr),
                   U | typ << 8 | inc << 12 | (tail if w["hastail"] else 32) << 16 | G << 24 | rot << 28 | gi << 30,
                   prg0 | prg1 << 8 | need1 << 16 | need2 << 24,
                   w["reg"] | w["ql"] << 20 | (1 - sc) << 24 | a0 << 25 | st << 26]
            if G > 1:
                ent += [w["send"][j] | ((w["src"][j] - 4) << 24) for j in range(3)]
            if typ != 3:
                ent += [hm, prg1 - need2]
            ent += [0] * (8 - len(ent))
            far.append(ent)
    return near, far, desc


class R:
    pass


v = R()
v.kd0, v.kd1, v.vd0, v.vd1 = 1, 2, 3, 4
v.ka0r, v.ka1r = 5, 6
v.ka0, v.ka1 = 7, 8
v.rdya, v.rdy = 9, 10
v.lane = 11
v.nmc, v.l = 12, 13
v.ps = 14
v.t0, v.t1, v.t2, v.t3 = 15, 16, 17, 18
v.pf = 19
v.st = 20
v.prga, v.prg = 21, 22
v.fo = 23
v.pra = 0
v.Q = 24
v.O = 56
v.S = 120
v.B = 136
v.KF = 152
v.VF = 184
v.X = 216
v.E = 232
v.P = 240
v.var = 248
v.va = 252
NV = 256

s = R()
s.q, s.k, s.vv, s.cu, s.out = 4, 6, 8, 10, 12
s.near = 16
s.far = 24
s.kA, s.kB, s.vA, s.vB, s.sq, s.so = 32, 36, 40, 44, 48, 52
s.wave, s.hoff = 56, 57
s.n = 58
s.thr = 59
s.soff = 60
s.dslot = 61
s.U = 62
s.mu = 63
s.koff, s.voff = 64, 65
s.need, s.chk = 66, 67
s.t0, s.t1, s.t2, s.t3 = 68, 69, 70, 71
s.pc = 72
s.stp = 74
s.ws = 76
s.sti = 78
s.ret = 79
s.foff = 80
s.reg = 81
s.m1 = 82
s.lnd = 83
s.inc = 84
s.col = 85
s.astep = 88
s.sret = 89
s.guard = 90
s.iss = 91
s.d0, s.rdw = 92, 93
s.stepb = 97
NS = 100

C_SCALE = (128 ** -0.5) * math.log2(math.e)
CL = "0x%x" % f2u(C_SCALE)
THRESH = 4096.0

out = []


def e(x):
    out.append("    " + x)


def lab(x):
    out.append(x + ":")


def vr(b, n):
    return "v[%d:%d]" % (b, b + n - 1)


def sr(b, n):
    return "s[%d:%d]" % (b, b + n - 1)


def emit(lst):
    for x in lst:
        if x is None:
            continue
        if x.endswith(":"):
            out.append(x)
        else:
            e(x)


def stamp_l(k=None, real=False):
    if not STAMPS or (LITE and k not in (7, 61)):
        return []
    r = ["%s s[%d:%d]" % ("s_memrealtime" if real else "s_memtime", s.stp, s.stp + 1), "s_waitcnt lgkmcnt(0)"]
    if k is None:
        r += ["s_mov_b32 s%d, m0" % (s.stp + 1), "s_mov_b32 m0, s%d" % s.sti, "s_nop 0",
              "v_writelane_b32 v%d, s%d, m0" % (v.st, s.stp),
              "s_add_u32 s%d, s%d, 1" % (s.sti, s.sti), "s_mov_b32 m0, s%d" % (s.stp + 1)]
    else:
        r += ["v_writelane_b32 v%d, s%d, %d" % (v.st, s.stp, k)]
    return r


def stamp(k=None, real=False):
    emit(stamp_l(k, real))


def kread(t, dst, st=0):
    return "ds_read_b128 %s, v%d offset:%d" % (vr(dst + 4 * t, 4), v.ka1 if t % 2 else v.ka0,
                                               (t // 4) * 16384 + ((t // 2) % 2) * 256 + st * 1024)


def vread(i, st=0):
    t, bb, ss = i // 8, (i // 2) % 4, i % 2
    reg = v.VF + (t * 4 + bb) * 4 + ss * 2
    return "ds_read_b64_tr_b16 %s, v%d offset:%d" % (vr(reg, 2), v.va + bb, (4 * t + 2 * ss) * 4096 + st * 1024)


def ld(kv, col, half, so):
    srd = {("K", 0): s.kA, ("K", 1): s.kB, ("V", 0): s.vA, ("V", 1): s.vB}[(kv, col)]
    off = (2048 if kv == "V" else 0) + (1024 if col == 0 else 0)
    vo = {("K", 0): v.kd0, ("K", 1): v.kd1, ("V", 0): v.vd0, ("V", 1): v.vd1}[(kv, half)]
    return "buffer_load_dwordx4 v%d, %s, s%d offen %s%s lds" % (vo, sr(srd, 4), so, "offset:%d " % off if off else "", LDF_K)


STEP_ADV = ["s_add_u32 s%d, s%d, s%d" % (s.soff, s.soff, s.stepb),
            "s_add_u32 s%d, s%d, 0x8000" % (s.dslot, s.dslot),
            "s_and_b32 s%d, s%d, 0x1ffff" % (s.dslot, s.dslot)]


FLAG = ["s_mov_b32 m0, s%d" % s.rdw,
        "v_add_u32 v%d, 4, v%d" % (v.fo, v.fo),
        "global_load_lds_dword v%d, %s" % (v.fo, sr(s.pc, 2))]


def chunk(col, k_only=False, pace=0, flag=True):
    p = []
    if pace:
        p = ["s_sleep %d" % pace if pace < 16 else "s_nop %d" % (pace - 16)]
    r = []
    for half, m in ((0, "s_mov_b32 m0, s%d" % s.dslot), (1, "s_add_u32 m0, s%d, 0x4000" % s.dslot)):
        r += [m, "s_nop 0"]
        if not k_only:
            r += [ld("V", col, half, s.soff)] + p
        r += [ld("K", col, half, s.soff)] + p
    return r + (FLAG if flag else [])


def qk(t):
    return "v_mfma_f32_32x32x16_bf16 %s, %s, %s, %s" % (vr(v.S, 16), vr(v.KF + 4 * t, 4), vr(v.Q + 4 * t, 4), vr(v.S, 16))


def pv(i):
    t, bb = i // 4, i % 4
    return "v_mfma_f32_32x32x16_bf16 %s, %s, %s, %s" % (
        vr(v.O + 16 * bb, 16), vr(v.VF + (t * 4 + bb) * 4, 4), vr(v.P + 4 * t, 4), vr(v.O + 16 * bb, 16))


def F(r):
    return "v_fmamk_f32 v%d, v%d, %s, v%d" % (v.X + r, v.S + r, CL, v.nmc)


def ex(r):
    return "v_exp_f32 v%d, v%d" % (v.E + r % 8, v.X + r)


def add(r):
    if r == 0:
        return None
    if r == 1:
        return "v_add_f32 v%d, v%d, v%d" % (v.ps, v.E, v.E + 1)
    return "v_add_f32 v%d, v%d, v%d" % (v.ps, v.ps, v.E + r % 8)


def cvt(i):
    return "v_cvt_pk_bf16_f32 v%d, v%d, v%d" % (v.P + i, v.E + (2 * i) % 8, v.E + (2 * i + 1) % 8)


def soft_half_plain(h):
    r = [ex(8 * h + i) for i in range(8)]
    r += [x for x in (add(8 * h + i) for i in range(8)) if x]
    r += [cvt(4 * h + i) for i in range(4)]
    return r


CMP = "v_cmp_lt_f32 vcc, s%d, v%d" % (s.thr, v.ps)
LADD = "v_add_f32 v%d, v%d, v%d" % (v.l, v.l, v.ps)
PRGW = "ds_write_b32 v%d, v%d" % (v.prga, v.prg)
RDYR = "ds_read_b32 v%d, v%d" % (v.rdy, v.rdya)
PRGINC = "v_add_u32 v%d, s%d, v%d" % (v.prg, s.inc, v.prg)
NEEDINC = "s_add_u32 s%d, s%d, s%d" % (s.need, s.need, s.inc)
QK0 = "v_mfma_f32_32x32x16_bf16 %s, %s, %s, 0" % (vr(v.S, 16), vr(v.KF, 4), vr(v.Q, 4))
QK0M = "v_mfma_f32_32x32x16_bf16 %s, %s, %s, %s" % (vr(v.S, 16), vr(v.KF, 4), vr(v.Q, 4), vr(v.B, 16))
rets, srets = [], []


def newret():
    rets.append("L_ret%d" % len(rets))
    return len(rets) - 1


def kaddr():
    return ["v_add_u32 v%d, s%d, v%d" % (v.ka0, s.koff, v.ka0r),
            "v_add_u32 v%d, s%d, v%d" % (v.ka1, s.koff, v.ka1r)]


def vaddr():
    return ["v_add_u32 v%d, s%d, v%d" % (v.va + j, s.voff, v.var + j) for j in range(4)]


def adv(reg):
    return ["s_add_u32 s%d, s%d, s%d" % (reg, reg, s.astep), "s_and_b32 s%d, s%d, 0x1ffff" % (reg, reg)]


def spin(n="1"):
    r = ["s_sleep %s" % n]
    if not OPT.get("nosafe"):
        r += ["s_sub_u32 s%d, s%d, 1" % (s.guard, s.guard), "s_cbranch_scc1 L_end"]
    return r


def sync_call(target=None):
    k = len(srets)
    srets.append(target or "L_sr%d" % k)
    return ["s_mov_b32 s%d, %d" % (s.sret, k), "s_branch L_sync"] + ([] if target else ["L_sr%d:" % k])


_pl = [0]


ool = []


def poll_rdy():
    _pl[0] += 1
    a, b = "L_pa%d" % _pl[0], "L_pb%d" % _pl[0]
    ool.append([a + ":"] + spin() + [RDYR, "s_waitcnt lgkmcnt(0)", "s_branch %s" % b])
    return ["s_min_u32 s%d, s%d, s%d" % (s.t2, s.need, s.n), b + ":",
            "v_cmp_ge_u32 vcc, s%d, v%d" % (s.t2, v.rdy), "s_cbranch_vccnz %s" % a]


def body(kind):
    odd, hlp = kind != "even", kind == "hlp"
    st = 0 if odd else 1
    V = lambda i: vread(i, st)
    K = lambda t: kread(t, v.KF, st)
    W = lambda n: "s_waitcnt lgkmcnt(%d)" % n
    k = newret()
    q = [
        [NEEDINC, V(0), V(1), ex(8), add(7), cvt(3)],
        ["s_mov_b32 s%d, %d" % (s.ret, k), V(2), V(3), ex(9), ex(10)],
        [W(4), V(4), V(5), ex(11), add(8), add(9)],
        ["s_sub_u32 s%d, s%d, 1" % (s.U, s.U), V(6), V(7), ex(12), ex(13)],
        [None, V(8), V(9), ex(14), add(10), add(11)],
        [None, V(10), V(11), ex(15), add(12), add(13)],
        [W(4), V(12), V(13), add(14), add(15), CMP, cvt(4)],
        ["s_cbranch_vccnz L_resc", "L_ret%d:" % k, V(14), V(15), LADD, cvt(5), cvt(6), cvt(7)],
    ]
    p = [
        ["s_nop 0", K(0), K(1), K(2), F(0), F(1), F(2)],
        [None, K(3), ex(0), F(3), F(4), F(5)],
        [None, K(4), ex(1), F(6), F(7), F(8)],
        [W(5), K(5), ex(2), add(1), F(9), F(10)],
        [None, K(6), ex(3), add(2), cvt(0), F(11)],
        [None, K(7), ex(4), add(3), cvt(1), F(12)],
        [W(4), ex(5), ex(6), add(4), F(13)],
        [None, ex(7), add(5), add(6), cvt(2), F(14), F(15)],
    ]
    if odd:
        q[4][0], q[5][0] = adv(s.voff)
        p[4][0], p[5][0] = adv(s.koff)
        va, ka = vaddr(), kaddr()
        p[1].append(va[0])
        p[3].append(va[1])
        p[4].append(va[2])
        p[5].append(va[3])
        p[6].append(ka[0])
        p[7].append(ka[1])
    if not hlp:
        p[0][0] = "s_min_u32 s%d, s%d, s%d" % (s.chk, s.need, s.n)
        p[1][0] = "s_bitcmp1_b32 s%d, s%d" % (s.far + 5, s.U)
        p[2][0] = "s_cselect_b32 s%d, -1, s%d" % (s.chk, s.chk)
        p[2][2:2] = [RDYR]
        p[6][0] = W(3)
        if odd and (not OPT.get("nodpub")):
            q[2].append("v_add_u32 v%d, 8, v%d" % (v.fo, v.fo))
            q[3][1:1] = ["global_load_lds_dword v%d, %s" % (v.fo, sr(s.pc, 2))]
        p[7][3:3] = ["v_cmp_ge_u32 vcc, s%d, v%d" % (s.chk, v.rdy)]
    else:
        q[1].append(PRGINC)
        q[7][4:4] = [PRGW]
        sc = sync_call()
        q[3][1:1] = [sc[0]]
        p[0][0:1] = stamp_l() + sc[1:] + stamp_l()
    lab("L_%s_m" % kind)
    e(QK0)
    lab("L_%s_a" % kind)
    emit(q[0])
    for t in range(1, 8):
        e(qk(t))
        emit(q[t])
    for i in range(8):
        e(pv(i))
        emit(p[i])
    if not hlp:
        stamp()


def gen():
    K = NAME + "_kernel"
    near, far, _ = build_tables()
    PACE = int(OPT.get("pace", "0"))
    out.append(HEADER + "; @launch grid=(256,1,1) block=(512,1,1) lds=%d" % LDS_TOTAL)
    out.append('.amdgcn_target "amdgcn-amd-amdhsa--gfx950"')
    out.append(".text")
    out.append(".globl " + K)
    out.append(".p2align 12")
    out.append(".p2align 8")
    out.append(".type %s,@function" % K)
    lab(K)
    e("s_cmp_ge_u32 s2, 256")
    e("s_cbranch_scc1 L_end")
    e("s_load_dwordx8 s[4:11], s[0:1], 0")
    e("s_load_dwordx2 s[12:13], s[0:1], 32")
    e("s_getpc_b64 %s" % sr(s.pc, 2))
    lab("L_pc")
    e("s_lshr_b32 s%d, s2, 4" % s.t0)
    e("s_lshl_b32 s%d, s%d, 5" % (s.t1, s.t0))
    e("s_add_u32 s%d, s%d, L_near-L_pc" % (s.t1, s.t1))
    e("s_load_dwordx8 %s, %s, s%d" % (sr(s.near, 8), sr(s.pc, 2), s.t1))
    e("v_mul_u32_u24 v%d, PFSTRIDE, v0" % v.t0)
    e("global_load_dword v%d, v%d, %s" % (v.pf, v.t0, sr(s.pc, 2)))
    e("s_branch L_start")
    out.append(".p2align 5")
    out.append(".type L_near,@object")
    lab("L_near")
    for ent in near:
        out.append("    .long " + ", ".join("0x%x" % x for x in ent))
    out.append(".size L_near, .-L_near")
    out.append(".type L_start,@function")
    lab("L_start")
    if STAMPS:
        e("v_mov_b32 v%d, 0" % v.st)
        e("s_mov_b32 s%d, 8" % s.sti)
        e("s_memrealtime s[%d:%d]" % (s.stp, s.stp + 1))
        e("s_memtime s[%d:%d]" % (s.ws, s.ws + 1))
    L, N, Fa = v.lane, s.near, s.far
    e("v_lshrrev_b32 v%d, 6, v0" % v.t0)
    e("v_and_b32 v%d, 63, v0" % L)
    e("v_readfirstlane_b32 s%d, v%d" % (s.wave, v.t0))
    hm_ = OPT.get("hmap", "0")
    if hm_ == "2":
        e("s_and_b32 s%d, s2, 15" % s.t1)
        e("s_lshl_b32 s%d, s%d, 8" % (s.hoff, s.t1))
    elif hm_ == "3":
        e("s_and_b32 s%d, s2, 7" % s.t1)
        e("s_lshl_b32 s%d, s%d, 9" % (s.t1, s.t1))
        e("s_bfe_u32 s%d, s2, 0x10003" % s.t2)
        e("s_mul_i32 s%d, s%d, 0x300" % (s.t2, s.t2))
        e("s_xor_b32 s%d, s%d, s%d" % (s.hoff, s.t1, s.t2))
    else:
        if hm_ == "1":
            e("s_add_u32 s%d, s2, 1" % s.t1)
            e("s_and_b32 s%d, s%d, 7" % (s.t1, s.t1))
        else:
            e("s_and_b32 s%d, s2, 7" % s.t1)
        e("s_lshl_b32 s%d, s%d, 9" % (s.t1, s.t1))
        e("s_bfe_u32 s%d, s2, 0x10003" % s.t2)
        e("s_lshl_b32 s%d, s%d, 8" % (s.t2, s.t2))
        e("s_add_u32 s%d, s%d, s%d" % (s.hoff, s.t1, s.t2))
    e("s_lshl_b32 s%d, s%d, 3" % (s.t0, s.t0))
    e("s_add_u32 s%d, s%d, s%d" % (s.t0, s.t0, s.wave))
    e("s_lshl_b32 s%d, s%d, 5" % (s.t0, s.t0))
    e("s_add_u32 s%d, s%d, L_far-L_pc" % (s.foff, s.t0))
    e("s_cmp_lt_u32 s%d, 4" % s.wave)
    e("s_cbranch_scc1 L_mainpro")
    e("s_and_b32 s%d, s%d, 1" % (s.t0, s.wave))
    e("s_lshl_b32 s%d, s%d, 1" % (s.t0, s.t0))
    e("v_lshrrev_b32 v%d, 5, v%d" % (v.t0, L))
    e("v_add_u32 v%d, s%d, v%d" % (v.t0, s.t0, v.t0))
    e("v_and_b32 v%d, 3, v%d" % (v.t1, L))
    e("v_xor_b32 v%d, v%d, v%d" % (v.t1, v.t1, v.t0))
    e("v_and_b32 v%d, 12, v%d" % (v.t2, L))
    e("v_add_u32 v%d, v%d, v%d" % (v.t0, v.t0, v.t2))
    e("s_bfe_u32 s%d, s%d, 0x10001" % (s.t1, s.wave))
    e("s_lshl_b32 s%d, s%d, 16" % (s.t1, s.t1))
    e("v_lshlrev_b32 v%d, 12, v%d" % (v.t0, v.t0))
    e("v_lshl_add_u32 v%d, v%d, 4, v%d" % (v.t0, v.t1, v.t0))
    e("v_and_b32 v%d, 16, v%d" % (v.t2, L))
    e("v_lshl_add_u32 v%d, v%d, 2, v%d" % (v.t0, v.t2, v.t0))
    e("v_add_u32 v%d, s%d, v%d" % (v.kd0, s.t1, v.t0))
    e("v_add_u32 v%d, 0x80, v%d" % (v.kd1, v.kd0))
    e("s_and_b32 s%d, s%d, 3" % (s.t3, s.wave))
    e("s_lshl_b32 s%d, s%d, 12" % (s.dslot, s.t3))
    e("s_sub_u32 s%d, %d, s%d" % (s.sq + 2, TENSOR_BYTES, s.hoff))
    for b in (s.sq, s.kA, s.kB, s.vA, s.vB):
        e("s_mov_b32 s%d, 0x20000" % (b + 3))
    e("s_mov_b32 s%d, 0" % s.soff)
    e("s_add_u32 s%d, s%d, %d" % (s.d0, s.dslot, QBASE))
    e("s_waitcnt lgkmcnt(0)")
    if STAMPS:
        e("v_writelane_b32 v%d, s%d, 0" % (v.st, s.stp))
        e("v_writelane_b32 v%d, s%d, 1" % (v.st, s.ws))
        stamp(2)
        e("s_load_dwordx2 %s, s[0:1], 48" % sr(s.ws, 2))

    def qtile(i):
        w = N + 5 + i // 2
        r = ["s_and_b32 s%d, s%d, 0xffff" % (s.t0, w) if i % 2 == 0 else "s_lshr_b32 s%d, s%d, 16" % (s.t0, w),
             "s_add_u32 m0, s%d, %d" % (s.d0, (i // 4) * 32768 + (i % 4) * 1024),
             "s_lshl_b32 s%d, s%d, 12" % (s.t0, s.t0),
             "buffer_load_dwordx4 v%d, %s, s%d offen %s lds" % (v.kd0, sr(s.sq, 4), s.t0, LDF_Q),
             "s_add_u32 m0, m0, 0x4000", "s_nop 0",
             "buffer_load_dwordx4 v%d, %s, s%d offen %s lds" % (v.kd1, sr(s.sq, 4), s.t0, LDF_Q)]
        return r
    e("s_add_u32 s%d, s%d, s%d" % (s.sq, s.q, s.hoff))
    e("s_addc_u32 s%d, s%d, 0" % (s.sq + 1, s.q + 1))
    emit(qtile(0))
    e("s_add_u32 s%d, s%d, s%d" % (N + 0, N + 0, s.hoff))
    e("s_add_u32 s%d, s%d, s%d" % (s.kA, s.k, N + 0))
    e("s_addc_u32 s%d, s%d, 0" % (s.kA + 1, s.k + 1))
    e("s_sub_u32 s%d, s%d, 1024" % (s.kA, s.kA))
    e("s_subb_u32 s%d, s%d, 0" % (s.kA + 1, s.kA + 1))
    e("s_add_u32 s%d, s%d, 1024" % (s.kA + 2, N + 1))
    emit(chunk(0, True, flag=False))
    for i in (1, 2, 3):
        emit(qtile(i))
    e("s_add_u32 s%d, s%d, s%d" % (N + 2, N + 2, s.hoff))
    e("s_add_u32 s%d, s%d, s%d" % (s.kB, s.k, N + 2))
    e("s_addc_u32 s%d, s%d, 0" % (s.kB + 1, s.k + 1))
    e("s_mov_b32 s%d, s%d" % (s.kB + 2, N + 3))
    e("s_and_b32 s%d, s%d, 0xfffff000" % (s.stepb, N + 4))
    e("s_lshl_b32 s%d, s%d, 8" % (s.rdw, s.t3))
    e("s_add_u32 s%d, s%d, %d" % (s.rdw, s.rdw, RDYB))
    e("v_mov_b32 v%d, L_cnt-L_pc" % v.fo)
    for (srd, off, nr, d) in ((s.vA, N + 0, N + 1, 3072), (s.vB, N + 2, N + 3, 2048)):
        e("s_add_u32 s%d, s%d, %d" % (s.t0, s.stepb, d))
        e("s_add_u32 s%d, s%d, s%d" % (srd, s.vv, off))
        e("s_addc_u32 s%d, s%d, 0" % (srd + 1, s.vv + 1))
        e("s_sub_u32 s%d, s%d, s%d" % (srd, srd, s.t0))
        e("s_subb_u32 s%d, s%d, 0" % (srd + 1, srd + 1))
        e("s_add_u32 s%d, s%d, s%d" % (srd + 2, nr, s.t0))
    e("v_bfe_u32 v%d, v%d, 2, 2" % (v.t0, L))
    e("v_lshlrev_b32 v%d, 12, v%d" % (v.t0, v.t0))
    e("v_and_b32 v%d, 3, v%d" % (v.t1, L))
    e("v_lshl_add_u32 v%d, v%d, 4, v%d" % (v.t0, v.t1, v.t0))
    e("v_lshrrev_b32 v%d, 4, v%d" % (v.t1, L))
    e("v_lshl_add_u32 v%d, v%d, 6, v%d" % (v.t0, v.t1, v.t0))
    e("s_lshl_b32 s%d, s%d, 14" % (s.t3, s.t3))
    e("v_add_u32 v%d, s%d, v%d" % (v.vd0, s.t3, v.t0))
    e("v_add_u32 v%d, 0x10000, v%d" % (v.vd1, v.vd0))
    e("v_and_b32 v%d, 7, v%d" % (v.t0, L))
    e("v_mul_u32_u24 v%d, 0x104, v%d" % (v.t0, v.t0))
    e("v_add_u32 v%d, %d, v%d" % (v.pra, PRGB, v.t0))
    stamp(3)
    e("s_setprio %s" % OPT.get("hprio", "3"))
    e("s_branch L_common")
    lab("L_mainpro")
    for b in (s.sq, s.kA, s.kB, s.vA, s.vB):
        e("s_mov_b64 %s, s[0:1]" % sr(b, 2))
        e("s_mov_b32 s%d, 0" % (b + 2))
        e("s_mov_b32 s%d, 0x20000" % (b + 3))
    for r in (v.kd0, v.kd1, v.vd0, v.vd1, v.fo):
        e("v_mov_b32 v%d, 0" % r)
    if STAMPS:
        e("s_waitcnt lgkmcnt(0)")
        e("v_writelane_b32 v%d, s%d, 0" % (v.st, s.stp))
        e("v_writelane_b32 v%d, s%d, 1" % (v.st, s.ws))
        stamp(2)
        e("s_load_dwordx2 %s, s[0:1], 48" % sr(s.ws, 2))
    lab("L_common")
    e("s_lshl_b32 s%d, s%d, 8" % (s.t0, s.wave))
    e("s_add_u32 s%d, s%d, %d" % (s.t0, s.t0, PRGB - 4096))
    e("v_lshl_add_u32 v%d, v%d, 2, s%d" % (v.prga, L, s.t0))
    e("v_mov_b32 v%d, 0" % v.l)
    e("ds_write_b32 v%d, v%d" % (v.prga, v.l))
    e("ds_write_b32 v%d, v%d offset:4096" % (v.prga, v.l))
    e("v_add_u32 v%d, 0x1000, v%d" % (v.prga, v.prga))
    e("s_waitcnt lgkmcnt(0)")
    e("s_load_dwordx8 %s, %s, s%d" % (sr(Fa, 8), sr(s.pc, 2), s.foff))
    e("s_barrier")
    e("s_cmp_lt_u32 s%d, 4" % s.wave)
    e("s_cbranch_scc1 L_common2")
    emit(FLAG + chunk(1, True) + STEP_ADV + chunk(0))
    lab("L_common2")
    e("v_bfe_u32 v%d, v%d, 4, 1" % (v.t0, L))
    e("v_lshlrev_b32 v%d, 13, v%d" % (v.t0, v.t0))
    e("v_bfe_u32 v%d, v%d, 1, 1" % (v.t1, L))
    e("v_lshl_add_u32 v%d, v%d, 12, v%d" % (v.t0, v.t1, v.t0))
    e("v_and_b32 v%d, 1, v%d" % (v.t1, L))
    e("v_lshl_add_u32 v%d, v%d, 9, v%d" % (v.t0, v.t1, v.t0))
    e("v_bfe_u32 v%d, v%d, 2, 2" % (v.t1, L))
    e("v_lshl_add_u32 v%d, v%d, 6, v%d" % (v.t0, v.t1, v.t0))
    e("v_lshrrev_b32 v%d, 5, v%d" % (v.t1, L))
    e("v_and_b32 v%d, 3, v%d" % (v.t2, L))
    e("v_xor_b32 v%d, v%d, v%d" % (v.t1, v.t1, v.t2))
    e("v_lshl_add_u32 v%d, v%d, 4, v%d" % (v.ka0r, v.t1, v.t0))
    e("v_xor_b32 v%d, 32, v%d" % (v.ka1r, v.ka0r))
    e("v_lshrrev_b32 v%d, 5, v%d" % (v.t0, L))
    e("v_lshlrev_b32 v%d, 12, v%d" % (v.t0, v.t0))
    e("v_bfe_u32 v%d, v%d, 2, 2" % (v.t1, L))
    e("v_lshl_add_u32 v%d, v%d, 6, v%d" % (v.t0, v.t1, v.t0))
    e("v_bfe_u32 v%d, v%d, 4, 1" % (v.t1, L))
    e("v_lshl_add_u32 v%d, v%d, 5, v%d" % (v.t0, v.t1, v.t0))
    e("v_lshl_add_u32 v%d, v%d, 3, v%d" % (v.t0, v.t2, v.t0))
    e("v_add_u32 v%d, 0x800, v%d" % (v.var, v.t0))
    e("s_mov_b32 s%d, 0x%x" % (s.thr, f2u(THRESH)))
    e("v_mul_u32_u24 v%d, 0x104, v%d" % (v.t1, v.t2))
    e("v_add_u32 v%d, %d, v%d" % (v.rdya, RDYB, v.t1))
    e("s_mov_b32 s%d, 0x8000" % s.guard)
    e("v_mov_b32 v%d, 0" % v.rdy)
    e("s_waitcnt lgkmcnt(0)")
    e("s_add_u32 s%d, s%d, s%d" % (s.t0, Fa + 0, s.hoff))
    e("s_add_u32 s%d, s%d, s%d" % (s.so, s.out, s.t0))
    e("s_addc_u32 s%d, s%d, 0" % (s.so + 1, s.out + 1))
    e("s_mov_b32 s%d, s%d" % (s.so + 2, Fa + 1))
    e("s_mov_b32 s%d, 0x20000" % (s.so + 3))
    e("s_and_b32 s%d, s%d, 0xff" % (s.n, N + 4))
    e("s_bfe_u32 s%d, s%d, 0x40008" % (s.t3, Fa + 2))
    e("s_cbranch_scc1 L_work")
    e("v_mov_b32 v%d, %d" % (v.prg, BIG))
    e(PRGW)
    e("s_cmp_lt_u32 s%d, 4" % s.wave)
    e("s_cbranch_scc1 L_fin")
    e("s_branch L_presig")
    lab("L_work")
    for r in range(0, 64, 2):
        e("v_pk_mov_b32 %s, 0, 0" % vr(v.O + r, 2))
    e("s_and_b32 s%d, s%d, 0xff" % (s.U, Fa + 2))
    e("s_bfe_u32 s%d, s%d, 0x4000c" % (s.inc, Fa + 2))
    e("s_and_b32 s%d, s%d, 0xfffff" % (s.reg, Fa + 4))
    e("s_bfe_u32 s%d, s%d, 0x80010" % (s.t0, Fa + 2))
    e("s_sub_u32 s%d, s%d, 1" % (s.t0, s.t0))
    e("v_lshrrev_b32 v%d, 5, v%d" % (v.t0, L))
    e("v_lshlrev_b32 v%d, 2, v%d" % (v.t0, v.t0))
    e("v_sub_u32 v%d, s%d, v%d" % (v.t0, s.t0, v.t0))
    e("v_mov_b32 v%d, 0xff800000" % v.t1)
    for r in range(16):
        cst = 8 * (r // 4) + r % 4
        e("v_subrev_u32 v%d, %d, v%d" % (v.B + r, cst, v.t0))
        e("v_ashrrev_i32 v%d, 31, v%d" % (v.B + r, v.B + r))
        e("v_and_b32 v%d, v%d, v%d" % (v.B + r, v.t1, v.B + r))
    e("s_bfe_u32 s%d, s%d, 0x20014" % (s.t0, Fa + 4))
    e("s_lshl_b32 s%d, s%d, 10" % (s.t0, s.t0))
    e("s_bfe_u32 s%d, s%d, 0x10016" % (s.t1, Fa + 4))
    e("s_lshl_b32 s%d, s%d, 15" % (s.t1, s.t1))
    e("s_add_u32 s%d, s%d, s%d" % (s.t0, s.t0, s.t1))
    e("s_add_u32 s%d, s%d, %d" % (s.koff, s.t0, QBASE))
    emit(kaddr())
    e("s_cmp_lg_u32 s%d, 1" % s.t3)
    e("s_cselect_b32 s%d, 1, 0" % s.m1)
    e("s_bfe_u32 s%d, s%d, 0x2001a" % (s.t0, Fa + 4))
    e("s_lshl_b32 s%d, s%d, 15" % (s.astep, s.t0))
    e("s_bfe_u32 s%d, s%d, 0x10019" % (s.t2, Fa + 4))
    e("s_bfe_u32 s%d, s%d, 0x10018" % (s.t0, Fa + 4))
    e("s_lshl_b32 s%d, s%d, 10" % (s.t0, s.t0))
    e("s_mul_i32 s%d, s%d, s%d" % (s.t1, s.t0, s.m1))
    e("s_sub_u32 s%d, s%d, s%d" % (s.t0, s.t0, s.t1))
    e("s_lshl_b32 s%d, s%d, 15" % (s.voff, s.t2))
    e("s_add_u32 s%d, s%d, s%d" % (s.koff, s.voff, s.t0))
    e("s_add_u32 s%d, s%d, 0x8000" % (s.voff, s.voff))
    e("v_add_u32 v%d, s%d, v%d" % (v.ka0r, s.t1, v.ka0r))
    e("v_add_u32 v%d, s%d, v%d" % (v.ka1r, s.t1, v.ka1r))
    e("s_bfe_u32 s%d, s%d, 0x2001c" % (s.t0, Fa + 2))
    for j in (3, 2, 1, 0):
        e("s_add_u32 s%d, s%d, %d" % (s.col, s.t0, j))
        e("s_and_b32 s%d, s%d, 3" % (s.col, s.col))
        e("s_lshl_b32 s%d, s%d, 8" % (s.col, s.col))
        e("s_add_u32 s%d, s%d, s%d" % (s.col, s.col, s.t1))
        e("v_add_u32 v%d, s%d, v%d" % (v.var + j, s.col, v.var))
    emit(vaddr())
    e("s_and_b32 s%d, s%d, 0xff" % (s.t0, Fa + 3))
    e("v_mov_b32 v%d, s%d" % (v.prg, s.t0))
    e("s_bfe_u32 s%d, s%d, 0x80010" % (s.need, Fa + 3))
    e("s_cmp_lt_u32 s%d, 4" % s.wave)
    e("s_cbranch_scc1 L_sig0")
    e(PRGW)
    lab("L_presig")
    emit(qtile(4) + qtile(5))
    emit(chunk(1) + STEP_ADV)
    e("s_mov_b32 s%d, 4" % s.iss)
    stamp()
    e("s_cmp_eq_u32 s%d, 0" % s.t3)
    e("s_cbranch_scc1 L_hdone")
    emit(sync_call("L_head"))
    lab("L_sig0")
    stamp()
    emit(poll_rdy())
    stamp()
    lab("L_head")
    for t in range(8):
        e(kread(t, v.Q))
    e(PRGW)
    emit(kaddr())
    e("s_waitcnt lgkmcnt(5)")
    for t in range(8):
        e(kread(t, v.KF))
    e("s_add_u32 s%d, s%d, s%d" % (s.t0, s.koff, s.astep))
    e("s_mul_i32 s%d, s%d, s%d" % (s.koff, s.t0, s.m1))
    e("s_lshr_b32 s%d, s%d, 24" % (s.need, Fa + 3))
    e("s_bfe_u32 s%d, s%d, 0x80008" % (s.t0, Fa + 3))
    e("v_mov_b32 v%d, s%d" % (v.prg, s.t0))
    e("s_waitcnt lgkmcnt(7)")
    e(QK0)
    for t in range(1, 8):
        e("s_waitcnt lgkmcnt(%d)" % (7 - t))
        e(qk(t))
    emit(kaddr())
    emit(adv(s.koff))
    e("s_nop 8")
    e("v_max3_f32 v%d, v%d, v%d, v%d" % (v.t0, v.S, v.S + 1, v.S + 2))
    for r in range(3, 15, 2):
        e("v_max3_f32 v%d, v%d, v%d, v%d" % (v.t0, v.t0, v.S + r, v.S + r + 1))
    e("v_max_f32 v%d, v%d, v%d" % (v.t0, v.t0, v.S + 15))
    e("v_mov_b32 v%d, v%d" % (v.t1, v.t0))
    e("s_nop 1")
    e("v_permlane32_swap_b32 v%d, v%d" % (v.t0, v.t1))
    e("s_nop 1")
    e("v_max_f32 v%d, v%d, v%d" % (v.t0, v.t0, v.t1))
    e("v_mul_f32 v%d, 0x%x, v%d" % (v.nmc, f2u(-C_SCALE), v.t0))
    for r in range(16):
        e(F(r))
    e(RDYR)
    emit([ex(i) for i in range(8)] + [add(i) for i in range(1, 7)] + [cvt(0), cvt(1), cvt(2)])
    e("s_cmp_lt_u32 s%d, 4" % s.wave)
    e("s_waitcnt lgkmcnt(0)")
    e("s_cbranch_scc0 L_hlp_in")
    stamp()
    emit(poll_rdy())
    stamp()
    for t in range(8):
        e(kread(t, v.KF))
    emit(kaddr())
    if (not OPT.get("nodpub")):
        e("s_bfe_u32 s%d, s%d, 0x80008" % (s.t0, Fa + 3))
        e("s_sub_u32 s%d, s%d, s%d" % (s.t0, s.t0, s.m1))
        e("s_lshl_b32 s%d, s%d, 2" % (s.t0, s.t0))
        e("s_add_u32 s%d, s%d, L_cnt-L_pc-4" % (s.t0, s.t0))
        e("v_mov_b32 v%d, s%d" % (v.fo, s.t0))
        e("s_lshl_b32 s%d, s%d, 8" % (s.t0, s.wave))
        e("s_add_u32 m0, s%d, %d" % (s.t0, PRGB))
    e("s_cmp_eq_u32 s%d, 1" % s.m1)
    e("s_waitcnt lgkmcnt(4)")
    e("s_cbranch_scc1 L_odd_m")
    out.append(".p2align 4")
    body("even")
    e("s_cbranch_vccnz L_hnd_even")
    body("odd")
    e("s_cbranch_vccz L_even_m")
    e("s_add_u32 s%d, s%d, 16" % (s.t0, s.U))
    e("s_bitcmp0_b32 s%d, s%d" % (Fa + 5, s.t0))
    e("s_cbranch_scc1 L_np1")
    e("s_add_u32 s%d, s%d, s%d" % (s.t0, s.need, Fa + 6))
    e("v_mov_b32 v%d, s%d" % (v.prg, s.t0))
    e(PRGW)
    lab("L_np1")
    emit(poll_rdy())
    e("s_cmp_le_u32 s%d, 1" % s.U)
    e("s_cbranch_scc1 L_ho1")
    e("s_cmp_eq_u32 s%d, 0" % s.m1)
    e("s_cbranch_scc0 L_odd_m")
    e("s_branch L_even_m")
    lab("L_ho1")
    e("s_cmp_eq_u32 s%d, 0" % s.U)
    e("s_cbranch_scc1 L_tail0")
    e("s_cmp_eq_u32 s%d, 0" % s.m1)
    e(QK0M)
    e("s_cbranch_scc1 L_even_a")
    e("s_branch L_odd_a")
    lab("L_hnd_even")
    e("s_add_u32 s%d, s%d, 16" % (s.t0, s.U))
    e("s_bitcmp0_b32 s%d, s%d" % (Fa + 5, s.t0))
    e("s_cbranch_scc1 L_np2")
    e("s_add_u32 s%d, s%d, s%d" % (s.t0, s.need, Fa + 6))
    e("v_mov_b32 v%d, s%d" % (v.prg, s.t0))
    e(PRGW)
    lab("L_np2")
    emit(poll_rdy())
    e("s_cmp_gt_u32 s%d, 1" % s.U)
    e("s_cbranch_scc1 L_odd_m")
    e("s_cmp_eq_u32 s%d, 0" % s.U)
    e("s_cbranch_scc1 L_tail")
    e(QK0M)
    e("s_branch L_odd_a")
    lab("L_hlp_in")
    e(PRGW)
    stamp()
    emit(sync_call())
    stamp()
    for t in range(8):
        e(kread(t, v.KF))
    emit(kaddr())
    e("s_waitcnt lgkmcnt(4)")
    e("s_branch L_hnd_hlp")
    body("hlp")
    lab("L_hnd_hlp")
    e("s_cmp_gt_u32 s%d, 1" % s.U)
    e("s_cbranch_scc1 L_hlp_m")
    e("s_cmp_eq_u32 s%d, 0" % s.U)
    e("s_cbranch_scc1 L_tail")
    e(QK0M)
    e("s_branch L_hlp_a")
    lab("L_tail0")
    e("s_cmp_eq_u32 s%d, 1" % s.m1)
    e("s_cbranch_scc1 L_tail")
    for j in range(4):
        e("v_add_u32 v%d, 0x400, v%d" % (v.va + j, v.va + j))
    lab("L_tail")
    k = newret()
    vord = [0, 1, 8, 9, 2, 3, 10, 11, 4, 5, 12, 13, 6, 7, 14, 15]
    for i in vord[:12]:
        e(vread(i))
    emit([ex(8), add(7), cvt(3)] + [ex(i) for i in range(9, 16)])
    e("v_mov_b32 v%d, %d" % (v.prg, BIG))
    if (not OPT.get("nodpub")):
        e("s_cmp_lt_u32 s%d, 4" % s.wave)
        e("s_cbranch_scc0 L_t1")
        e("s_waitcnt vmcnt(0)")
        lab("L_t1")
    for i in vord[12:]:
        e(vread(i))
    e(PRGW)
    emit([add(i) for i in range(8, 16)] + [CMP, cvt(4), "s_mov_b32 s%d, %d" % (s.ret, k), "s_cbranch_vccnz L_resc",
                                           "L_ret%d:" % k, cvt(5), cvt(6), cvt(7), LADD])
    e("s_cmp_lt_u32 s%d, 4" % s.wave)
    e("s_waitcnt lgkmcnt(0)")
    e("s_cbranch_scc0 L_htail")
    lab("L_tail2")
    tw, tr0, oo, rl = v.ka1, v.va, v.ka1r, v.X + 2

    def lsum():
        return ["v_mov_b32 v%d, v%d" % (v.t0, v.l), "s_nop 1",
                "v_permlane32_swap_b32 v%d, v%d" % (v.l, v.t0), "s_nop 1",
                "v_add_f32 v%d, v%d, v%d" % (v.l, v.l, v.t0)]

    def st_addr():
        r = ["v_and_b32 v%d, 31, v%d" % (v.t0, L),
             "v_lshrrev_b32 v%d, 5, v%d" % (v.t1, L),
             "v_lshlrev_b32 v%d, 3, v%d" % (v.t1, v.t1),
             "v_and_b32 v%d, 7, v%d" % (v.t2, L),
             "v_lshl_add_u32 v%d, v%d, 4, v%d" % (v.t1, v.t2, v.t1),
             "v_lshl_add_u32 v%d, v%d, 7, v%d" % (v.t0, v.t0, v.t1),
             "v_add_u32 v%d, s%d, v%d" % (tw, s.reg, v.t0)]
        r += ["v_xor_b32 v%d, %d, v%d" % (v.E + c, c * 16, tw) for c in range(8)]
        r += ["v_lshrrev_b32 v%d, 3, v%d" % (v.t0, L),
              "v_xor_b32 v%d, v%d, v%d" % (v.t1, v.t2, v.t0),
              "v_lshlrev_b32 v%d, 4, v%d" % (v.t1, v.t1),
              "v_lshl_add_u32 v%d, v%d, 7, v%d" % (v.t1, v.t0, v.t1),
              "v_add_u32 v%d, s%d, v%d" % (tr0, s.reg, v.t1),
              "v_lshlrev_b32 v%d, 12, v%d" % (v.t0, v.t0),
              "v_lshl_add_u32 v%d, v%d, 4, v%d" % (oo, v.t2, v.t0)]
        return r

    def pack_q(bb, norm=True):
        r = []
        for g in range(4):
            c = 4 * bb + g
            o = v.O + 4 * c
            d = v.S + 2 * c
            if norm:
                r += ["v_pk_mul_f32 %s, %s, %s op_sel_hi:[1,0]" % (vr(o + i, 2), vr(o + i, 2), vr(rl, 2)) for i in (0, 2)]
            r += ["v_cvt_pk_bf16_f32 v%d, v%d, v%d" % (d, o, o + 1),
                  "v_cvt_pk_bf16_f32 v%d, v%d, v%d" % (d + 1, o + 2, o + 3),
                  "ds_write_b64 v%d, %s" % (v.E + c % 8, vr(d, 2))]
        return r

    def rd_half(hh):
        return ["ds_read_b128 %s, v%d offset:%d" % (vr(v.KF + 16 * hh + 4 * k, 4), tr0, k * 1024) for k in range(4)]

    def st_one(hh, k):
        return ["buffer_store_dwordx4 %s, v%d, %s, s%d offen offset:%d %s" % (
                    vr(v.KF + 16 * hh + 4 * k, 4), oo, sr(s.so, 4), s.col + k if k < 3 else s.t1, 128 * hh, STF)]

    sa = st_addr()
    emit([pv(0)] + lsum() + ["v_rcp_f32 v%d, v%d" % (rl, v.l)])
    emit([pv(4)] + sa[0:6])
    emit([pv(1)] + sa[6:12])
    emit([pv(5)] + sa[12:18])
    emit([pv(2)] + sa[18:] + ["s_mov_b32 s%d, 0" % s.col, "s_mov_b32 s%d, 0x8000" % (s.col + 1)])
    emit([pv(6), "s_mov_b32 s%d, 0x10000" % (s.col + 2), "s_mov_b32 s%d, 0x18000" % s.t1])
    emit([pv(3), pv(7)])
    stamp(5)
    emit(pack_q(0) + pack_q(1) + rd_half(0))
    p2 = pack_q(2)
    emit(p2[:10] + ["s_waitcnt lgkmcnt(5)"] + st_one(0, 0) + p2[10:] + ["s_waitcnt lgkmcnt(4)"] + st_one(0, 1))
    p3 = pack_q(3)
    emit(p3[:10] + st_one(0, 2) + p3[10:] + st_one(0, 3) + rd_half(1))
    stamp(4)
    for k in range(4):
        emit(["s_waitcnt lgkmcnt(%d)" % (3 - k)] + st_one(1, k))
    lab("L_fin")
    if STAMPS:
        stamp(6)
        e("s_waitcnt vmcnt(0)")
        stamp(7)
        stamp(61, True)
        e("s_getreg_b32 s%d, hwreg(HW_REG_XCC_ID)" % s.stp)
        e("v_writelane_b32 v%d, s%d, 62" % (v.st, s.stp))
        e("s_lshl_b32 s%d, s2, 3" % s.t0)
        e("s_add_u32 s%d, s%d, s%d" % (s.t0, s.t0, s.wave))
        e("s_lshl_b32 s%d, s%d, 8" % (s.t0, s.t0))
        e("v_lshlrev_b32 v%d, 2, v%d" % (v.t0, v.lane))
        e("v_add_u32 v%d, s%d, v%d" % (v.t0, s.t0, v.t0))
        e("global_store_dword v%d, v%d, %s" % (v.t0, v.st, sr(s.ws, 2)))
    lab("L_end")
    e("s_endpgm")
    for blk in ool:
        emit(blk)
    lab("L_sync")
    e("s_setprio %s" % OPT.get("sprio", "0"))
    e("s_min_u32 s%d, s%d, s%d" % (s.t2, s.need, s.n))
    e("s_add_u32 s%d, s%d, %s" % (s.t3, s.t2, OPT.get("look", "2")))
    e("s_min_u32 s%d, s%d, s%d" % (s.t3, s.t3, s.n))
    lab("L_svc")
    e("ds_read_b32 v%d, v%d" % (v.t1, v.pra))
    e(RDYR)
    e("s_sub_i32 s%d, s%d, 5" % (s.t1, s.iss))
    e("s_cmp_gt_u32 s%d, s%d" % (s.iss, s.t3))
    e("s_waitcnt lgkmcnt(0)")
    e("s_cbranch_scc0 L_svc1")
    e("v_cmp_ge_u32 vcc, s%d, v%d" % (s.t2, v.rdy))
    e("s_cbranch_vccz L_svcx")
    e("s_cmp_gt_u32 s%d, s%d" % (s.iss, s.n))
    e("s_cbranch_scc1 L_svcs")
    lab("L_svc1")
    e("v_cmp_gt_i32 vcc, s%d, v%d" % (s.t1, v.t1))
    e("s_cbranch_vccnz L_svc2")
    e("s_add_u32 s%d, s%d, 1" % (s.iss, s.iss))
    if OPT.get("cap"):
        e("s_waitcnt vmcnt(%s)" % OPT["cap"])
    e("s_bitcmp0_b32 s%d, 0" % s.iss)
    e("s_cbranch_scc1 L_svcB")
    emit(chunk(0, pace=PACE))
    e("s_branch L_svc")
    lab("L_svcB")
    emit(chunk(1, pace=PACE) + STEP_ADV)
    e("s_branch L_svc")
    lab("L_svc2")
    e("v_cmp_ge_u32 vcc, s%d, v%d" % (s.t2, v.rdy))
    e("s_cbranch_vccz L_svcx")
    lab("L_svcs")
    emit(spin(OPT.get("slp", "2")))
    e("s_branch L_svc")
    lab("L_svcx")
    e("s_setprio %s" % OPT.get("hprio", "3"))
    SRET_AT = len(out)
    lab("L_htail")
    e("s_mov_b32 s%d, s%d" % (s.need, s.n))
    e("s_bitcmp0_b32 s%d, 24" % (Fa + 2))
    e("s_cbranch_scc1 L_htail2")
    emit(sync_call("L_tail2"))
    lab("L_htail2")
    for i in range(8):
        e(pv(i))
    lab("L_hdone")
    e("s_mov_b32 s%d, s%d" % (s.need, s.n))
    emit(sync_call())
    e("s_sub_u32 s%d, s%d, 1" % (s.t2, s.n))
    e("s_bfe_u32 s%d, s%d, 0x40018" % (s.n, Fa + 2))
    e("s_cbranch_scc0 L_fin")
    e("s_setprio %s" % OPT.get("eprio", "0"))
    e("s_branch L_pe1")
    lab("L_pe0")
    emit(spin(OPT.get("slp", "2")))
    lab("L_pe1")
    e("ds_read_b32 v%d, v%d" % (v.t1, v.pra))
    e("s_waitcnt lgkmcnt(0)")
    e("v_cmp_gt_u32 vcc, s%d, v%d" % (s.t2, v.t1))
    e("s_cbranch_vccnz L_pe0")
    stamp(5)
    l16, l8, xa, cnt = v.ka0, v.ka0r, v.var, v.var + 1
    emit(lsum())
    e("v_lshlrev_b32 v%d, 4, v%d" % (l16, L))
    e("v_lshlrev_b32 v%d, 3, v%d" % (l8, L))
    e("s_lshl_b32 s%d, s%d, 9" % (s.t0, s.wave))
    e("s_add_u32 s%d, s%d, %d" % (s.t0, s.t0, MLBASE - 2048))
    e("v_add_u32 v%d, s%d, v%d" % (xa, s.t0, l8))
    e("ds_write_b64 v%d, %s" % (xa, vr(v.nmc, 2)))
    e("s_cmp_eq_u32 s%d, 2" % s.n)
    e("s_cbranch_scc1 L_sd2")
    for j in (1, 2, 3):
        if j == 2:
            lab("L_sd2")
        e("s_and_b32 s%d, s%d, 0xffffff" % (s.t0, Fa + 4 + j))
        e("v_add_u32 v%d, s%d, v%d" % (xa, s.t0, l16))
        for k in range(4):
            e("ds_write_b128 v%d, %s offset:%d" % (xa, vr(v.O + 16 * j + 4 * k, 4), k * 1024))
    e("s_lshr_b32 s%d, s%d, 30" % (s.t0, Fa + 2))
    e("s_lshl_b32 s%d, s%d, 2" % (s.t0, s.t0))
    e("s_add_u32 s%d, s%d, %d" % (s.t0, s.t0, CNTB))
    e("v_mov_b32 v%d, s%d" % (cnt, s.t0))
    e("v_mov_b32 v%d, 1" % v.t3)
    e("s_mov_b64 exec, 1")
    e("ds_add_u32 v%d, v%d" % (cnt, v.t3))
    e("s_mov_b64 exec, -1")
    emit(st_addr())
    e("v_add_u32 v%d, s%d, v%d" % (xa, s.reg, l16))
    for j in range(3):
        e("s_lshr_b32 s%d, s%d, 24" % (s.t0, Fa + 5 + j))
        e("s_lshl_b32 s%d, s%d, 9" % (s.t0, s.t0))
        e("s_add_u32 s%d, s%d, %d" % (s.t0, s.t0, MLBASE))
        e("v_add_u32 v%d, s%d, v%d" % (v.P + j, s.t0, l8))
    e("s_branch L_poll1")
    lab("L_poll")
    emit(spin())
    lab("L_poll1")
    e("ds_read_b32 v%d, v%d" % (v.t3, cnt))
    e("s_waitcnt lgkmcnt(0)")
    e("v_cmp_ne_u32 vcc, s%d, v%d" % (s.n, v.t3))
    e("s_cbranch_vccnz L_poll")
    stamp(4)
    for j in range(3):
        e("ds_read_b64 %s, v%d" % (vr(v.X + 2 * j, 2), v.P + j))
    for k in range(12):
        e("ds_read_b128 %s, v%d offset:%d" % (vr(v.KF + 16 + 4 * k, 4), xa, k * 1024))
    RX = v.KF + 16
    f0, f1, f2, f3 = v.X + 8, v.X + 9, v.X + 10, v.X + 11
    e("s_bfe_u32 s%d, s%d, 0x2001c" % (s.col, Fa + 2))
    e("s_lshl_b32 s%d, s%d, 6" % (s.col, s.col))
    e("s_add_u32 s%d, s%d, 0x8000" % (s.col + 1, s.col))
    e("s_add_u32 s%d, s%d, 0x10000" % (s.col + 2, s.col))
    e("s_add_u32 s%d, s%d, 0x18000" % (s.t1, s.col))
    e("s_waitcnt lgkmcnt(12)")
    e("v_min3_f32 v%d, v%d, v%d, v%d" % (v.t3, v.nmc, v.X, v.X + 2))
    e("v_min_f32 v%d, v%d, v%d" % (v.t3, v.t3, v.X + 4))
    e("v_sub_f32 v%d, v%d, v%d" % (f0, v.t3, v.nmc))
    for j, f in enumerate((f1, f2, f3)):
        e("v_sub_f32 v%d, v%d, v%d" % (f, v.t3, v.X + 2 * j))
    for f in (f0, f1, f2, f3):
        e("v_exp_f32 v%d, v%d" % (f, f))
    e("v_mul_f32 v%d, v%d, v%d" % (v.l, v.l, f0))
    e("v_fmac_f32 v%d, v%d, v%d" % (v.l, v.X + 1, f1))
    e("s_cmp_eq_u32 s%d, 2" % s.n)
    e("s_cbranch_scc1 L_mg2")
    e("v_fmac_f32 v%d, v%d, v%d" % (v.l, v.X + 3, f2))
    e("v_fmac_f32 v%d, v%d, v%d" % (v.l, v.X + 5, f3))
    e("v_rcp_f32 v%d, v%d" % (v.t3, v.l))
    e("v_and_b32 v%d, 4, v%d" % (v.t0, L))
    e("v_lshl_add_u32 v%d, v%d, 28, v%d" % (oo, v.t0, oo))
    for f in (f0, f1, f2, f3):
        e("v_mul_f32 v%d, v%d, v%d" % (f, f, v.t3))
    for i in range(16):
        e("v_mul_f32 v%d, v%d, v%d" % (v.O + i, v.O + i, f0))
    for j, f in enumerate((f1, f2, f3)):
        e("s_waitcnt lgkmcnt(%d)" % (8 - 4 * j))
        for i in range(16):
            e("v_fmac_f32 v%d, v%d, v%d" % (v.O + i, RX + 16 * j + i, f))
    e("s_branch L_mg3")
    lab("L_mg2")
    e("v_rcp_f32 v%d, v%d" % (v.t3, v.l))
    e("s_nop 0")
    for f in (f0, f1):
        e("v_mul_f32 v%d, v%d, v%d" % (f, f, v.t3))
    for i in range(32):
        e("v_mul_f32 v%d, v%d, v%d" % (v.O + i, v.O + i, f0))
    e("s_waitcnt lgkmcnt(0)")
    for i in range(32):
        e("v_fmac_f32 v%d, v%d, v%d" % (v.O + i, RX + i, f1))
    emit(pack_q(1, False))
    lab("L_mg3")
    emit(pack_q(0, False) + rd_half(0))
    for k in range(4):
        emit(["s_waitcnt lgkmcnt(%d)" % (3 - k)] + st_one(0, k))
    e("s_branch L_fin")
    lab("L_resc")
    e("v_max3_f32 v%d, v%d, v%d, v%d" % (v.t0, v.X, v.X + 1, v.X + 2))
    for r in range(3, 15, 2):
        e("v_max3_f32 v%d, v%d, v%d, v%d" % (v.t0, v.t0, v.X + r, v.X + r + 1))
    e("v_max3_f32 v%d, v%d, v%d, 0" % (v.t0, v.t0, v.X + 15))
    e("v_mov_b32 v%d, v%d" % (v.t1, v.t0))
    e("s_nop 1")
    e("v_permlane32_swap_b32 v%d, v%d" % (v.t0, v.t1))
    e("s_nop 1")
    e("v_max_f32 v%d, v%d, v%d" % (v.t0, v.t0, v.t1))
    e("v_exp_f32 v%d, -v%d" % (v.t1, v.t0))
    e("v_sub_f32 v%d, v%d, v%d" % (v.nmc, v.nmc, v.t0))
    for r in range(16):
        e("v_sub_f32 v%d, v%d, v%d" % (v.X + r, v.X + r, v.t0))
    e("v_mul_f32 v%d, v%d, v%d" % (v.l, v.l, v.t1))
    for i in range(64):
        e("v_mul_f32 v%d, v%d, v%d" % (v.O + i, v.O + i, v.t1))
    emit(soft_half_plain(0))
    emit(soft_half_plain(1))
    for k, r in enumerate(rets[:-1]):
        e("s_cmp_eq_u32 s%d, %d" % (s.ret, k))
        e("s_cbranch_scc1 %s" % r)
    e("s_branch %s" % rets[-1])
    rl_ = []
    order = [2, 1, 0, 3, 4]
    assert len(srets) == len(order)
    for k in order[:-1]:
        rl_ += ["    s_cmp_eq_u32 s%d, %d" % (s.sret, k), "    s_cbranch_scc1 %s" % srets[k]]
    rl_ += ["    s_branch %s" % srets[order[-1]]]
    out[SRET_AT:SRET_AT] = rl_
    out.append(".p2align 6")
    out.append(".type L_far,@object")
    lab("L_far")
    for ent in far:
        out.append("    .long " + ", ".join("0x%x" % x for x in ent))
    lab("L_cnt")
    out.append("    .long " + ", ".join(str(i) for i in range(32)))
    out.append(".size L_far, .-L_far")
    lab("L_codeend")
    out.append("    .fill 512, 4, 0xbf800000")
    out.append('.section .rodata,"a"')
    out.append(".p2align 6")
    out.append(".amdhsa_kernel " + K)
    out.append("  .amdhsa_next_free_vgpr %d" % NV)
    out.append("  .amdhsa_next_free_sgpr %d" % NS)
    out.append("  .amdhsa_accum_offset %d" % NV)
    out.append("  .amdhsa_group_segment_fixed_size 0")
    out.append("  .amdhsa_kernarg_size 56")
    out.append("  .amdhsa_user_sgpr_count 2")
    out.append("  .amdhsa_user_sgpr_kernarg_segment_ptr 1")
    out.append("  .amdhsa_system_sgpr_workgroup_id_x 1")
    out.append(".end_amdhsa_kernel")
    txt = "\n".join(out) + "\n"
    return txt.replace("PFSTRIDE", OPT.get("pf", "28"))


if __name__ == "__main__":
    args = [a for a in sys.argv[1:] if a.endswith(".s")]
    path = args[0] if args else "cdna_kernels/%s.s" % NAME
    open(path, "w").write(gen())
    print("wrote", path)
```

```python
import sys, struct, math

NAME = "standalone__varlen_attn_packed__ragged"
CU = [0, 289, 520, 939, 1289, 1402, 1666, 1973, 2275]
LEN = [CU[i + 1] - CU[i] for i in range(8)]
T_TOT = 2275
ROWB = 4096
TENSOR_BYTES = T_TOT * ROWB

OPT = {}
for a in sys.argv[1:]:
    if a.startswith("--"):
        k, _, val = a[2:].partition("=")
        OPT[k] = val if val else "1"
STAMPS = "stamps" in OPT or "lite" in OPT
LITE = "lite" in OPT
LDF_Q = OPT.get("ldq", "nt").replace("+", " ").replace("none", "")
LDF_K = OPT.get("ldk", "nt").replace("+", " ").replace("none", "")
STF = OPT.get("st", "none").replace("+", " ").replace("none", "")
FLY = int(OPT.get("fly", "4"))

HEADER = """; Kernarg layout for this problem (56 bytes, ptrs only, base s[0:1]):
;   offset   0: d_in[0] q  shape=(2275, 16, 128) dtype=bfloat16 strides=(4096, 256, 2) contiguous=True
;   offset   8: d_in[1] k  shape=(2275, 16, 128) dtype=bfloat16 strides=(4096, 256, 2) contiguous=True
;   offset  16: d_in[2] v  shape=(2275, 16, 128) dtype=bfloat16 strides=(4096, 256, 2) contiguous=True
;   offset  32: d_out     shape=(2275, 16, 128) dtype=bfloat16 (2 bytes/elem)
"""


def f2u(x):
    return struct.unpack("<I", struct.pack("<f", x))[0]


def cdiv(a, b):
    return (a + b - 1) // b


LDS_TOTAL = 163840
QBASE = 98304
XTRA = 131072
MLBASE = XTRA + 16384
PRGB = XTRA + 7 * 4096 + 2048
RDYB = XTRA + 6 * 4096 + 3072
CNTB = XTRA + 6 * 4096 + 2048
BIG = 0x4000

ROLES = [
    (2, 0, 4), (2, 4, 4), (2, 8, 3), (2, 11, 3),
    (3, 0, 5), (3, 5, 5),
    (5, 0, 6),
    (6, 0, 5), (6, 5, 5), (7, 0, 5), (7, 5, 5), (0, 0, 5), (0, 5, 5),
    (1, 0, 6),
    ("dual", (3, 10, 1), (5, 6, 3)),
    ("dual", (1, 6, 2), (4, 0, 4)),
]


def nrec(rows):
    return (rows - 1) * ROWB + 256 if rows > 0 else 0


def build_tables():
    near, far, desc = [], [], []
    for ri, role in enumerate(ROLES):
        W = [None] * 8
        groups = []
        if role[0] == "dual":
            (sa, ta, na), (sb, tb, nb) = role[1], role[2]
            rowA, lenA, rowB, lenB, step = CU[sa], LEN[sa], CU[sb], LEN[sb], 32
            n_it = max(cdiv(lenA, 32), cdiv(lenB, 32))
            tiles = [(sa, ta + i, 0) for i in range(na)] + [(sb, tb + i, 1) for i in range(nb)]
            nq = len(tiles)
            for i in range(4):
                sq, tl, st = tiles[i]
                W[i] = dict(seq=sq, tile=tl, ql=i, type=2, stream=st, its=list(range(cdiv(LEN[sq], 32))), hastail=1)
            for i in range(4, nq):
                sq, tl, st = tiles[i]
                nb_ = cdiv(LEN[sq], 32)
                W[i + 2] = dict(seq=sq, tile=tl, ql=i, type=3, stream=st, its=list(range(nb_)), hastail=1,
                                G=1, reg=XTRA + 4096 * i)
        else:
            sa, t0, nq = role
            rowA, lenA, rowB, lenB, step = CU[sa], LEN[sa], CU[sa] + 32, LEN[sa] - 32, 64
            nkv = cdiv(lenA, 32)
            n_it = cdiv(nkv, 2)
            tiles = [(sa, t0 + i, 0) for i in range(nq)]
            for i in range(min(nq, 4)):
                W[i] = dict(seq=sa, tile=t0 + i, ql=i, type=1, stream=0, its=list(range(nkv)), hastail=1)
            nh = 4 // (nq - 4) if nq > 4 else 0
            for i in range(4, nq):
                ws = [4 + (i - 4) * nh + k for k in range(nh)]
                for k, w in enumerate(ws):
                    blocks = [p for p in range(nkv) if p % nh == k]
                    W[w] = dict(seq=sa, tile=t0 + i, ql=i, type=3, stream=k % 2, its=[p // 2 for p in blocks],
                                hastail=int((nkv - 1) in blocks))
                groups.append(ws)
        qrows = [CU[sq] + 32 * tl for sq, tl, _ in tiles] + [0xfff] * (6 - nq)
        near.append([rowA * ROWB, nrec(lenA), rowB * ROWB, nrec(lenB), step * ROWB | (2 * n_it + 1),
                     qrows[0] | qrows[1] << 16, qrows[2] | qrows[3] << 16, qrows[4] | qrows[5] << 16])
        areas = [((n_it + 1) % 4) * 32768, ((n_it + 2) % 4) * 32768]
        recv = [areas[0], areas[0] + 12288, areas[1], areas[1] + 12288]
        for i in range(4):
            if W[i]:
                W[i]["reg"] = XTRA + 4096 * i
        for gi, g in enumerate(groups):
            G = len(g)
            for k, w in enumerate(g):
                W[w]["reg"] = recv[w - 4]
                W[w]["G"], W[w]["k"], W[w]["gi"] = G, k, gi
                if G == 4:
                    W[w]["send"] = [recv[g[(j + k) % 4] - 4] + (j - 1) * 4096 for j in (1, 2, 3)]
                    W[w]["src"] = [g[(k - j) % 4] for j in (1, 2, 3)]
                else:
                    o = g[1 - k]
                    W[w]["send"] = [0, recv[o - 4], recv[o - 4] + 4096]
                    W[w]["src"] = [o, o, o]
        for wi in range(8):
            w = W[wi]
            desc.append(w)
            if w is None:
                far.append([0] * 8)
                continue
            sq, its, typ, sc = w["seq"], w["its"], w["type"], w["stream"]
            tail = LEN[sq] % 32
            orow = CU[sq] + 32 * w["tile"]
            onr = min(32, CU[sq + 1] - orow)
            assert onr > 0 and tail > 0
            U = len(its) - 1
            a0, st = its[0], its[1] - its[0]
            assert all(its[i] == a0 + st * i for i in range(len(its))) and st <= 2 and a0 <= 1 and U >= 1
            if typ == 1:
                inc, prg0, prg1, need1, need2 = 1, 2, 4, 0, 2
            elif typ == 2:
                inc, prg0, prg1, need1, need2 = 2, 2, 4 + sc, sc, 4 + sc
            else:
                inc, prg0, prg1, need1, need2 = 2 * st, 2 * a0 + sc + 2, 2 * (a0 + 1) + sc + 2, 3, 2 * (a0 + st) + sc
            w.update(U=U, a0=a0, st=st, inc=inc, prg0=prg0, prg1=prg1, need1=need1, need2=need2, n_it=n_it)
            hm = 0
            if typ != 3:
                nlast = 2 * n_it + 1
                pub = prg0
                w["pubs"] = []
                for b in range(U):
                    val = prg1 + inc * (b + 1)
                    want = pub < nlast - 5 and (typ == 2 or b % 2 == 1 or OPT.get("puball"))
                    if groups and pub < nlast - 1 <= val:
                        want = True
                    if typ == 2 or U - 1 - b <= 1:
                        hm |= 1 << (U - 1 - b)
                    if want and OPT.get("nodpub"):
                        hm |= 0x10001 << (U - 1 - b)
                        pub = val
                        w["pubs"].append(b)
            G, k, gi = w.get("G", 0), w.get("k", 0), w.get("gi", 0)
            rot = k * (4 // G) if G > 1 else 0
            ent = [orow * ROWB, nrec(onr),
                   U | typ << 8 | inc << 12 | (tail if w["hastail"] else 32) << 16 | G << 24 | rot << 28 | gi << 30,
                   prg0 | prg1 << 8 | need1 << 16 | need2 << 24,
                   w["reg"] | w["ql"] << 20 | (1 - sc) << 24 | a0 << 25 | st << 26]
            if G > 1:
                ent += [w["send"][j] | ((w["src"][j] - 4) << 24) for j in range(3)]
            if typ != 3:
                ent += [hm, prg1 - need2]
            ent += [0] * (8 - len(ent))
            far.append(ent)
    return near, far, desc


class R:
    pass


v = R()
v.kd0, v.kd1, v.vd0, v.vd1 = 1, 2, 3, 4
v.ka0r, v.ka1r = 5, 6
v.ka0, v.ka1 = 7, 8
v.rdya, v.rdy = 9, 10
v.lane = 11
v.nmc, v.l = 12, 13
v.ps = 14
v.t0, v.t1, v.t2, v.t3 = 15, 16, 17, 18
v.pf = 19
v.st = 20
v.prga, v.prg = 21, 22
v.fo = 23
v.pra = 0
v.Q = 24
v.O = 56
v.S = 120
v.B = 136
v.KF = 152
v.VF = 184
v.X = 216
v.E = 232
v.P = 240
v.var = 248
v.va = 252
NV = 256

s = R()
s.q, s.k, s.vv, s.cu, s.out = 4, 6, 8, 10, 12
s.near = 16
s.far = 24
s.kA, s.kB, s.vA, s.vB, s.sq, s.so = 32, 36, 40, 44, 48, 52
s.wave, s.hoff = 56, 57
s.n = 58
s.thr = 59
s.soff = 60
s.dslot = 61
s.U = 62
s.mu = 63
s.koff, s.voff = 64, 65
s.need, s.chk = 66, 67
s.t0, s.t1, s.t2, s.t3 = 68, 69, 70, 71
s.pc = 72
s.stp = 74
s.ws = 76
s.sti = 78
s.ret = 79
s.foff = 80
s.reg = 81
s.m1 = 82
s.lnd = 83
s.inc = 84
s.col = 85
s.astep = 88
s.sret = 89
s.guard = 90
s.iss = 91
s.d0, s.rdw = 92, 93
s.stepb = 97
NS = 100

C_SCALE = (128 ** -0.5) * math.log2(math.e)
CL = "0x%x" % f2u(C_SCALE)
THRESH = 4096.0

out = []


def e(x):
    out.append("    " + x)


def lab(x):
    out.append(x + ":")


def vr(b, n):
    return "v[%d:%d]" % (b, b + n - 1)


def sr(b, n):
    return "s[%d:%d]" % (b, b + n - 1)


def emit(lst):
    for x in lst:
        if x is None:
            continue
        if x.endswith(":"):
            out.append(x)
        else:
            e(x)


def stamp_l(k=None, real=False):
    if not STAMPS or (LITE and k not in (7, 61)):
        return []
    r = ["%s s[%d:%d]" % ("s_memrealtime" if real else "s_memtime", s.stp, s.stp + 1), "s_waitcnt lgkmcnt(0)"]
    if k is None:
        r += ["s_mov_b32 s%d, m0" % (s.stp + 1), "s_mov_b32 m0, s%d" % s.sti, "s_nop 0",
              "v_writelane_b32 v%d, s%d, m0" % (v.st, s.stp),
              "s_add_u32 s%d, s%d, 1" % (s.sti, s.sti), "s_mov_b32 m0, s%d" % (s.stp + 1)]
    else:
        r += ["v_writelane_b32 v%d, s%d, %d" % (v.st, s.stp, k)]
    return r


def stamp(k=None, real=False):
    emit(stamp_l(k, real))


def kread(t, dst, st=0):
    return "ds_read_b128 %s, v%d offset:%d" % (vr(dst + 4 * t, 4), v.ka1 if t % 2 else v.ka0,
                                               (t // 4) * 16384 + ((t // 2) % 2) * 256 + st * 1024)


def vread(i, st=0):
    t, bb, ss = i // 8, (i // 2) % 4, i % 2
    reg = v.VF + (t * 4 + bb) * 4 + ss * 2
    return "ds_read_b64_tr_b16 %s, v%d offset:%d" % (vr(reg, 2), v.va + bb, (4 * t + 2 * ss) * 4096 + st * 1024)


def ld(kv, col, half, so):
    srd = {("K", 0): s.kA, ("K", 1): s.kB, ("V", 0): s.vA, ("V", 1): s.vB}[(kv, col)]
    off = (2048 if kv == "V" else 0) + (1024 if col == 0 else 0)
    vo = {("K", 0): v.kd0, ("K", 1): v.kd1, ("V", 0): v.vd0, ("V", 1): v.vd1}[(kv, half)]
    return "buffer_load_dwordx4 v%d, %s, s%d offen %s%s lds" % (vo, sr(srd, 4), so, "offset:%d " % off if off else "", LDF_K)


STEP_ADV = ["s_add_u32 s%d, s%d, s%d" % (s.soff, s.soff, s.stepb),
            "s_add_u32 s%d, s%d, 0x8000" % (s.dslot, s.dslot),
            "s_and_b32 s%d, s%d, 0x1ffff" % (s.dslot, s.dslot)]


FLAG = ["s_mov_b32 m0, s%d" % s.rdw,
        "v_add_u32 v%d, 4, v%d" % (v.fo, v.fo),
        "global_load_lds_dword v%d, %s" % (v.fo, sr(s.pc, 2))]


def chunk(col, k_only=False, pace=0, flag=True):
    p = []
    if pace:
        p = ["s_sleep %d" % pace if pace < 16 else "s_nop %d" % (pace - 16)]
    r = []
    for half, m in ((0, "s_mov_b32 m0, s%d" % s.dslot), (1, "s_add_u32 m0, s%d, 0x4000" % s.dslot)):
        r += [m, "s_nop 0"]
        if not k_only:
            r += [ld("V", col, half, s.soff)] + p
        r += [ld("K", col, half, s.soff)] + p
    return r + (FLAG if flag else [])


def qk(t):
    return "v_mfma_f32_32x32x16_bf16 %s, %s, %s, %s" % (vr(v.S, 16), vr(v.KF + 4 * t, 4), vr(v.Q + 4 * t, 4), vr(v.S, 16))


def pv(i):
    t, bb = i // 4, i % 4
    return "v_mfma_f32_32x32x16_bf16 %s, %s, %s, %s" % (
        vr(v.O + 16 * bb, 16), vr(v.VF + (t * 4 + bb) * 4, 4), vr(v.P + 4 * t, 4), vr(v.O + 16 * bb, 16))


def F(r):
    return "v_fmamk_f32 v%d, v%d, %s, v%d" % (v.X + r, v.S + r, CL, v.nmc)


def ex(r):
    return "v_exp_f32 v%d, v%d" % (v.E + r % 8, v.X + r)


def add(r):
    if r == 0:
        return None
    if r == 1:
        return "v_add_f32 v%d, v%d, v%d" % (v.ps, v.E, v.E + 1)
    return "v_add_f32 v%d, v%d, v%d" % (v.ps, v.ps, v.E + r % 8)


def cvt(i):
    return "v_cvt_pk_bf16_f32 v%d, v%d, v%d" % (v.P + i, v.E + (2 * i) % 8, v.E + (2 * i + 1) % 8)


def soft_half_plain(h):
    r = [ex(8 * h + i) for i in range(8)]
    r += [x for x in (add(8 * h + i) for i in range(8)) if x]
    r += [cvt(4 * h + i) for i in range(4)]
    return r


CMP = "v_cmp_lt_f32 vcc, s%d, v%d" % (s.thr, v.ps)
LADD = "v_add_f32 v%d, v%d, v%d" % (v.l, v.l, v.ps)
PRGW = "ds_write_b32 v%d, v%d" % (v.prga, v.prg)
RDYR = "ds_read_b32 v%d, v%d" % (v.rdy, v.rdya)
PRGINC = "v_add_u32 v%d, s%d, v%d" % (v.prg, s.inc, v.prg)
NEEDINC = "s_add_u32 s%d, s%d, s%d" % (s.need, s.need, s.inc)
QK0 = "v_mfma_f32_32x32x16_bf16 %s, %s, %s, 0" % (vr(v.S, 16), vr(v.KF, 4), vr(v.Q, 4))
QK0M = "v_mfma_f32_32x32x16_bf16 %s, %s, %s, %s" % (vr(v.S, 16), vr(v.KF, 4), vr(v.Q, 4), vr(v.B, 16))
rets, srets = [], []


def newret():
    rets.append("L_ret%d" % len(rets))
    return len(rets) - 1


def kaddr():
    return ["v_add_u32 v%d, s%d, v%d" % (v.ka0, s.koff, v.ka0r),
            "v_add_u32 v%d, s%d, v%d" % (v.ka1, s.koff, v.ka1r)]


def vaddr():
    return ["v_add_u32 v%d, s%d, v%d" % (v.va + j, s.voff, v.var + j) for j in range(4)]


def adv(reg):
    return ["s_add_u32 s%d, s%d, s%d" % (reg, reg, s.astep), "s_and_b32 s%d, s%d, 0x1ffff" % (reg, reg)]


def spin(n="1"):
    r = ["s_sleep %s" % n]
    if not OPT.get("nosafe"):
        r += ["s_sub_u32 s%d, s%d, 1" % (s.guard, s.guard), "s_cbranch_scc1 L_end"]
    return r


def sync_call(target=None):
    k = len(srets)
    srets.append(target or "L_sr%d" % k)
    return ["s_mov_b32 s%d, %d" % (s.sret, k), "s_branch L_sync"] + ([] if target else ["L_sr%d:" % k])


_pl = [0]


ool = []


def poll_rdy():
    _pl[0] += 1
    a, b = "L_pa%d" % _pl[0], "L_pb%d" % _pl[0]
    ool.append([a + ":"] + spin() + [RDYR, "s_waitcnt lgkmcnt(0)", "s_branch %s" % b])
    return ["s_min_u32 s%d, s%d, s%d" % (s.t2, s.need, s.n), b + ":",
            "v_cmp_ge_u32 vcc, s%d, v%d" % (s.t2, v.rdy), "s_cbranch_vccnz %s" % a]


def body(kind):
    odd, hlp = kind != "even", kind == "hlp"
    st = 0 if odd else 1
    V = lambda i: vread(i, st)
    K = lambda t: kread(t, v.KF, st)
    W = lambda n: "s_waitcnt lgkmcnt(%d)" % n
    k = newret()
    q = [
        [NEEDINC, V(0), V(1), ex(8), add(7), cvt(3)],
        ["s_mov_b32 s%d, %d" % (s.ret, k), V(2), V(3), ex(9), ex(10)],
        [W(4), V(4), V(5), ex(11), add(8), add(9)],
        ["s_sub_u32 s%d, s%d, 1" % (s.U, s.U), V(6), V(7), ex(12), ex(13)],
        [None, V(8), V(9), ex(14), add(10), add(11)],
        [None, V(10), V(11), ex(15), add(12), add(13)],
        [W(4), V(12), V(13), add(14), add(15), CMP, cvt(4)],
        ["s_cbranch_vccnz L_resc", "L_ret%d:" % k, V(14), V(15), LADD, cvt(5), cvt(6), cvt(7)],
    ]
    p = [
        ["s_nop 0", K(0), K(1), K(2), F(0), F(1), F(2)],
        [None, K(3), ex(0), F(3), F(4), F(5)],
        [None, K(4), ex(1), F(6), F(7), F(8)],
        [W(5), K(5), ex(2), add(1), F(9), F(10)],
        [None, K(6), ex(3), add(2), cvt(0), F(11)],
        [None, K(7), ex(4), add(3), cvt(1), F(12)],
        [W(4), ex(5), ex(6), add(4), F(13)],
        [None, ex(7), add(5), add(6), cvt(2), F(14), F(15)],
    ]
    if odd:
        q[4][0], q[5][0] = adv(s.voff)
        p[4][0], p[5][0] = adv(s.koff)
        va, ka = vaddr(), kaddr()
        p[1].append(va[0])
        p[3].append(va[1])
        p[4].append(va[2])
        p[5].append(va[3])
        p[6].append(ka[0])
        p[7].append(ka[1])
    if not hlp:
        p[0][0] = "s_min_u32 s%d, s%d, s%d" % (s.chk, s.need, s.n)
        p[1][0] = "s_bitcmp1_b32 s%d, s%d" % (s.far + 5, s.U)
        p[2][0] = "s_cselect_b32 s%d, -1, s%d" % (s.chk, s.chk)
        p[2][2:2] = [RDYR]
        p[6][0] = W(3)
        if odd and (not OPT.get("nodpub")):
            q[2].append("v_add_u32 v%d, 8, v%d" % (v.fo, v.fo))
            q[3][1:1] = ["global_load_lds_dword v%d, %s" % (v.fo, sr(s.pc, 2))]
        p[7][3:3] = ["v_cmp_ge_u32 vcc, s%d, v%d" % (s.chk, v.rdy)]
    else:
        q[1].append(PRGINC)
        q[7][4:4] = [PRGW]
        sc = sync_call()
        q[3][1:1] = [sc[0]]
        p[0][0:1] = stamp_l() + sc[1:] + stamp_l()
    lab("L_%s_m" % kind)
    e(QK0)
    lab("L_%s_a" % kind)
    emit(q[0])
    for t in range(1, 8):
        e(qk(t))
        emit(q[t])
    for i in range(8):
        e(pv(i))
        emit(p[i])
    if not hlp:
        stamp()


def gen():
    K = NAME + "_kernel"
    near, far, _ = build_tables()
    PACE = int(OPT.get("pace", "0"))
    out.append(HEADER + "; @launch grid=(256,1,1) block=(512,1,1) lds=%d" % LDS_TOTAL)
    out.append('.amdgcn_target "amdgcn-amd-amdhsa--gfx950"')
    out.append(".text")
    out.append(".globl " + K)
    out.append(".p2align 12")
    out.append(".p2align 8")
    out.append(".type %s,@function" % K)
    lab(K)
    e("s_cmp_ge_u32 s2, 256")
    e("s_cbranch_scc1 L_end")
    e("s_load_dwordx8 s[4:11], s[0:1], 0")
    e("s_load_dwordx2 s[12:13], s[0:1], 32")
    e("s_getpc_b64 %s" % sr(s.pc, 2))
    lab("L_pc")
    e("s_lshr_b32 s%d, s2, 4" % s.t0)
    e("s_lshl_b32 s%d, s%d, 5" % (s.t1, s.t0))
    e("s_add_u32 s%d, s%d, L_near-L_pc" % (s.t1, s.t1))
    e("s_load_dwordx8 %s, %s, s%d" % (sr(s.near, 8), sr(s.pc, 2), s.t1))
    e("v_mul_u32_u24 v%d, PFSTRIDE, v0" % v.t0)
    e("global_load_dword v%d, v%d, %s" % (v.pf, v.t0, sr(s.pc, 2)))
    e("s_branch L_start")
    out.append(".p2align 5")
    out.append(".type L_near,@object")
    lab("L_near")
    for ent in near:
        out.append("    .long " + ", ".join("0x%x" % x for x in ent))
    out.append(".size L_near, .-L_near")
    out.append(".type L_start,@function")
    lab("L_start")
    if STAMPS:
        e("v_mov_b32 v%d, 0" % v.st)
        e("s_mov_b32 s%d, 8" % s.sti)
        e("s_memrealtime s[%d:%d]" % (s.stp, s.stp + 1))
        e("s_memtime s[%d:%d]" % (s.ws, s.ws + 1))
    L, N, Fa = v.lane, s.near, s.far
    e("v_lshrrev_b32 v%d, 6, v0" % v.t0)
    e("v_and_b32 v%d, 63, v0" % L)
    e("v_readfirstlane_b32 s%d, v%d" % (s.wave, v.t0))
    hm_ = OPT.get("hmap", "0")
    if hm_ == "2":
        e("s_and_b32 s%d, s2, 15" % s.t1)
        e("s_lshl_b32 s%d, s%d, 8" % (s.hoff, s.t1))
    elif hm_ == "3":
        e("s_and_b32 s%d, s2, 7" % s.t1)
        e("s_lshl_b32 s%d, s%d, 9" % (s.t1, s.t1))
        e("s_bfe_u32 s%d, s2, 0x10003" % s.t2)
        e("s_mul_i32 s%d, s%d, 0x300" % (s.t2, s.t2))
        e("s_xor_b32 s%d, s%d, s%d" % (s.hoff, s.t1, s.t2))
    else:
        if hm_ == "1":
            e("s_add_u32 s%d, s2, 1" % s.t1)
            e("s_and_b32 s%d, s%d, 7" % (s.t1, s.t1))
        else:
            e("s_and_b32 s%d, s2, 7" % s.t1)
        e("s_lshl_b32 s%d, s%d, 9" % (s.t1, s.t1))
        e("s_bfe_u32 s%d, s2, 0x10003" % s.t2)
        e("s_lshl_b32 s%d, s%d, 8" % (s.t2, s.t2))
        e("s_add_u32 s%d, s%d, s%d" % (s.hoff, s.t1, s.t2))
    e("s_lshl_b32 s%d, s%d, 3" % (s.t0, s.t0))
    e("s_add_u32 s%d, s%d, s%d" % (s.t0, s.t0, s.wave))
    e("s_lshl_b32 s%d, s%d, 5" % (s.t0, s.t0))
    e("s_add_u32 s%d, s%d, L_far-L_pc" % (s.foff, s.t0))
    e("s_cmp_lt_u32 s%d, 4" % s.wave)
    e("s_cbranch_scc1 L_mainpro")
    e("s_and_b32 s%d, s%d, 1" % (s.t0, s.wave))
    e("s_lshl_b32 s%d, s%d, 1" % (s.t0, s.t0))
    e("v_lshrrev_b32 v%d, 5, v%d" % (v.t0, L))
    e("v_add_u32 v%d, s%d, v%d" % (v.t0, s.t0, v.t0))
    e("v_and_b32 v%d, 3, v%d" % (v.t1, L))
    e("v_xor_b32 v%d, v%d, v%d" % (v.t1, v.t1, v.t0))
    e("v_and_b32 v%d, 12, v%d" % (v.t2, L))
    e("v_add_u32 v%d, v%d, v%d" % (v.t0, v.t0, v.t2))
    e("s_bfe_u32 s%d, s%d, 0x10001" % (s.t1, s.wave))
    e("s_lshl_b32 s%d, s%d, 16" % (s.t1, s.t1))
    e("v_lshlrev_b32 v%d, 12, v%d" % (v.t0, v.t0))
    e("v_lshl_add_u32 v%d, v%d, 4, v%d" % (v.t0, v.t1, v.t0))
    e("v_and_b32 v%d, 16, v%d" % (v.t2, L))
    e("v_lshl_add_u32 v%d, v%d, 2, v%d" % (v.t0, v.t2, v.t0))
    e("v_add_u32 v%d, s%d, v%d" % (v.kd0, s.t1, v.t0))
    e("v_add_u32 v%d, 0x80, v%d" % (v.kd1, v.kd0))
    e("s_and_b32 s%d, s%d, 3" % (s.t3, s.wave))
    e("s_lshl_b32 s%d, s%d, 12" % (s.dslot, s.t3))
    e("s_sub_u32 s%d, %d, s%d" % (s.sq + 2, TENSOR_BYTES, s.hoff))
    for b in (s.sq, s.kA, s.kB, s.vA, s.vB):
        e("s_mov_b32 s%d, 0x20000" % (b + 3))
    e("s_mov_b32 s%d, 0" % s.soff)
    e("s_add_u32 s%d, s%d, %d" % (s.d0, s.dslot, QBASE))
    e("s_waitcnt lgkmcnt(0)")
    if STAMPS:
        e("v_writelane_b32 v%d, s%d, 0" % (v.st, s.stp))
        e("v_writelane_b32 v%d, s%d, 1" % (v.st, s.ws))
        stamp(2)
        e("s_load_dwordx2 %s, s[0:1], %d" % (sr(s.ws, 2), 40 if OPT.get("dbg") else 48))

    def qtile(i):
        w = N + 5 + i // 2
        r = ["s_and_b32 s%d, s%d, 0xffff" % (s.t0, w) if i % 2 == 0 else "s_lshr_b32 s%d, s%d, 16" % (s.t0, w),
             "s_add_u32 m0, s%d, %d" % (s.d0, (i // 4) * 32768 + (i % 4) * 1024),
             "s_lshl_b32 s%d, s%d, 12" % (s.t0, s.t0),
             "buffer_load_dwordx4 v%d, %s, s%d offen %s lds" % (v.kd0, sr(s.sq, 4), s.t0, LDF_Q),
             "s_add_u32 m0, m0, 0x4000", "s_nop 0",
             "buffer_load_dwordx4 v%d, %s, s%d offen %s lds" % (v.kd1, sr(s.sq, 4), s.t0, LDF_Q)]
        return r
    e("s_add_u32 s%d, s%d, s%d" % (s.sq, s.q, s.hoff))
    e("s_addc_u32 s%d, s%d, 0" % (s.sq + 1, s.q + 1))
    emit(qtile(0))
    e("s_add_u32 s%d, s%d, s%d" % (N + 0, N + 0, s.hoff))
    e("s_add_u32 s%d, s%d, s%d" % (s.kA, s.k, N + 0))
    e("s_addc_u32 s%d, s%d, 0" % (s.kA + 1, s.k + 1))
    e("s_sub_u32 s%d, s%d, 1024" % (s.kA, s.kA))
    e("s_subb_u32 s%d, s%d, 0" % (s.kA + 1, s.kA + 1))
    e("s_add_u32 s%d, s%d, 1024" % (s.kA + 2, N + 1))
    emit(chunk(0, True, flag=False))
    for i in (1, 2, 3):
        emit(qtile(i))
    e("s_add_u32 s%d, s%d, s%d" % (N + 2, N + 2, s.hoff))
    e("s_add_u32 s%d, s%d, s%d" % (s.kB, s.k, N + 2))
    e("s_addc_u32 s%d, s%d, 0" % (s.kB + 1, s.k + 1))
    e("s_mov_b32 s%d, s%d" % (s.kB + 2, N + 3))
    e("s_and_b32 s%d, s%d, 0xfffff000" % (s.stepb, N + 4))
    e("s_lshl_b32 s%d, s%d, 8" % (s.rdw, s.t3))
    e("s_add_u32 s%d, s%d, %d" % (s.rdw, s.rdw, RDYB))
    e("v_mov_b32 v%d, L_cnt-L_pc" % v.fo)
    for (srd, off, nr, d) in ((s.vA, N + 0, N + 1, 3072), (s.vB, N + 2, N + 3, 2048)):
        e("s_add_u32 s%d, s%d, %d" % (s.t0, s.stepb, d))
        e("s_add_u32 s%d, s%d, s%d" % (srd, s.vv, off))
        e("s_addc_u32 s%d, s%d, 0" % (srd + 1, s.vv + 1))
        e("s_sub_u32 s%d, s%d, s%d" % (srd, srd, s.t0))
        e("s_subb_u32 s%d, s%d, 0" % (srd + 1, srd + 1))
        e("s_add_u32 s%d, s%d, s%d" % (srd + 2, nr, s.t0))
    e("v_bfe_u32 v%d, v%d, 2, 2" % (v.t0, L))
    e("v_lshlrev_b32 v%d, 12, v%d" % (v.t0, v.t0))
    e("v_and_b32 v%d, 3, v%d" % (v.t1, L))
    e("v_lshl_add_u32 v%d, v%d, 4, v%d" % (v.t0, v.t1, v.t0))
    e("v_lshrrev_b32 v%d, 4, v%d" % (v.t1, L))
    e("v_lshl_add_u32 v%d, v%d, 6, v%d" % (v.t0, v.t1, v.t0))
    e("s_lshl_b32 s%d, s%d, 14" % (s.t3, s.t3))
    e("v_add_u32 v%d, s%d, v%d" % (v.vd0, s.t3, v.t0))
    e("v_add_u32 v%d, 0x10000, v%d" % (v.vd1, v.vd0))
    e("v_and_b32 v%d, 7, v%d" % (v.t0, L))
    e("v_mul_u32_u24 v%d, 0x104, v%d" % (v.t0, v.t0))
    e("v_add_u32 v%d, %d, v%d" % (v.pra, PRGB, v.t0))
    stamp(3)
    e("s_setprio %s" % OPT.get("hprio", "3"))
    e("s_branch L_common")
    lab("L_mainpro")
    for b in (s.sq, s.kA, s.kB, s.vA, s.vB):
        e("s_mov_b64 %s, s[0:1]" % sr(b, 2))
        e("s_mov_b32 s%d, 0" % (b + 2))
        e("s_mov_b32 s%d, 0x20000" % (b + 3))
    for r in (v.kd0, v.kd1, v.vd0, v.vd1, v.fo):
        e("v_mov_b32 v%d, 0" % r)
    if STAMPS:
        e("s_waitcnt lgkmcnt(0)")
        e("v_writelane_b32 v%d, s%d, 0" % (v.st, s.stp))
        e("v_writelane_b32 v%d, s%d, 1" % (v.st, s.ws))
        stamp(2)
        e("s_load_dwordx2 %s, s[0:1], %d" % (sr(s.ws, 2), 40 if OPT.get("dbg") else 48))
    lab("L_common")
    e("s_lshl_b32 s%d, s%d, 8" % (s.t0, s.wave))
    e("s_add_u32 s%d, s%d, %d" % (s.t0, s.t0, PRGB - 4096))
    e("v_lshl_add_u32 v%d, v%d, 2, s%d" % (v.prga, L, s.t0))
    e("v_mov_b32 v%d, 0" % v.l)
    e("ds_write_b32 v%d, v%d" % (v.prga, v.l))
    e("ds_write_b32 v%d, v%d offset:4096" % (v.prga, v.l))
    e("v_add_u32 v%d, 0x1000, v%d" % (v.prga, v.prga))
    e("s_waitcnt lgkmcnt(0)")
    e("s_load_dwordx8 %s, %s, s%d" % (sr(Fa, 8), sr(s.pc, 2), s.foff))
    e("s_barrier")
    e("s_cmp_lt_u32 s%d, 4" % s.wave)
    e("s_cbranch_scc1 L_common2")
    emit(FLAG + chunk(1, True) + STEP_ADV + chunk(0))
    lab("L_common2")
    e("v_bfe_u32 v%d, v%d, 4, 1" % (v.t0, L))
    e("v_lshlrev_b32 v%d, 13, v%d" % (v.t0, v.t0))
    e("v_bfe_u32 v%d, v%d, 1, 1" % (v.t1, L))
    e("v_lshl_add_u32 v%d, v%d, 12, v%d" % (v.t0, v.t1, v.t0))
    e("v_and_b32 v%d, 1, v%d" % (v.t1, L))
    e("v_lshl_add_u32 v%d, v%d, 9, v%d" % (v.t0, v.t1, v.t0))
    e("v_bfe_u32 v%d, v%d, 2, 2" % (v.t1, L))
    e("v_lshl_add_u32 v%d, v%d, 6, v%d" % (v.t0, v.t1, v.t0))
    e("v_lshrrev_b32 v%d, 5, v%d" % (v.t1, L))
    e("v_and_b32 v%d, 3, v%d" % (v.t2, L))
    e("v_xor_b32 v%d, v%d, v%d" % (v.t1, v.t1, v.t2))
    e("v_lshl_add_u32 v%d, v%d, 4, v%d" % (v.ka0r, v.t1, v.t0))
    e("v_xor_b32 v%d, 32, v%d" % (v.ka1r, v.ka0r))
    e("v_lshrrev_b32 v%d, 5, v%d" % (v.t0, L))
    e("v_lshlrev_b32 v%d, 12, v%d" % (v.t0, v.t0))
    e("v_bfe_u32 v%d, v%d, 2, 2" % (v.t1, L))
    e("v_lshl_add_u32 v%d, v%d, 6, v%d" % (v.t0, v.t1, v.t0))
    e("v_bfe_u32 v%d, v%d, 4, 1" % (v.t1, L))
    e("v_lshl_add_u32 v%d, v%d, 5, v%d" % (v.t0, v.t1, v.t0))
    e("v_lshl_add_u32 v%d, v%d, 3, v%d" % (v.t0, v.t2, v.t0))
    e("v_add_u32 v%d, 0x800, v%d" % (v.var, v.t0))
    e("s_mov_b32 s%d, 0x%x" % (s.thr, f2u(THRESH)))
    e("v_mul_u32_u24 v%d, 0x104, v%d" % (v.t1, v.t2))
    e("v_add_u32 v%d, %d, v%d" % (v.rdya, RDYB, v.t1))
    e("s_mov_b32 s%d, 0x8000" % s.guard)
    e("v_mov_b32 v%d, 0" % v.rdy)
    e("s_waitcnt lgkmcnt(0)")
    e("s_add_u32 s%d, s%d, s%d" % (s.t0, Fa + 0, s.hoff))
    e("s_add_u32 s%d, s%d, s%d" % (s.so, s.out, s.t0))
    e("s_addc_u32 s%d, s%d, 0" % (s.so + 1, s.out + 1))
    e("s_mov_b32 s%d, s%d" % (s.so + 2, Fa + 1))
    e("s_mov_b32 s%d, 0x20000" % (s.so + 3))
    e("s_and_b32 s%d, s%d, 0xff" % (s.n, N + 4))
    e("s_bfe_u32 s%d, s%d, 0x40008" % (s.t3, Fa + 2))
    e("s_cbranch_scc1 L_work")
    e("v_mov_b32 v%d, %d" % (v.prg, BIG))
    e(PRGW)
    e("s_cmp_lt_u32 s%d, 4" % s.wave)
    e("s_cbranch_scc1 L_fin")
    e("s_branch L_presig")
    lab("L_work")
    for r in range(0, 64, 2):
        e("v_pk_mov_b32 %s, 0, 0" % vr(v.O + r, 2))
    e("s_and_b32 s%d, s%d, 0xff" % (s.U, Fa + 2))
    e("s_bfe_u32 s%d, s%d, 0x4000c" % (s.inc, Fa + 2))
    e("s_and_b32 s%d, s%d, 0xfffff" % (s.reg, Fa + 4))
    e("s_bfe_u32 s%d, s%d, 0x80010" % (s.t0, Fa + 2))
    e("s_sub_u32 s%d, s%d, 1" % (s.t0, s.t0))
    e("v_lshrrev_b32 v%d, 5, v%d" % (v.t0, L))
    e("v_lshlrev_b32 v%d, 2, v%d" % (v.t0, v.t0))
    e("v_sub_u32 v%d, s%d, v%d" % (v.t0, s.t0, v.t0))
    e("v_mov_b32 v%d, 0xff800000" % v.t1)
    for r in range(16):
        cst = 8 * (r // 4) + r % 4
        e("v_subrev_u32 v%d, %d, v%d" % (v.B + r, cst, v.t0))
        e("v_ashrrev_i32 v%d, 31, v%d" % (v.B + r, v.B + r))
        e("v_and_b32 v%d, v%d, v%d" % (v.B + r, v.t1, v.B + r))
    e("s_bfe_u32 s%d, s%d, 0x20014" % (s.t0, Fa + 4))
    e("s_lshl_b32 s%d, s%d, 10" % (s.t0, s.t0))
    e("s_bfe_u32 s%d, s%d, 0x10016" % (s.t1, Fa + 4))
    e("s_lshl_b32 s%d, s%d, 15" % (s.t1, s.t1))
    e("s_add_u32 s%d, s%d, s%d" % (s.t0, s.t0, s.t1))
    e("s_add_u32 s%d, s%d, %d" % (s.koff, s.t0, QBASE))
    emit(kaddr())
    e("s_cmp_lg_u32 s%d, 1" % s.t3)
    e("s_cselect_b32 s%d, 1, 0" % s.m1)
    e("s_bfe_u32 s%d, s%d, 0x2001a" % (s.t0, Fa + 4))
    e("s_lshl_b32 s%d, s%d, 15" % (s.astep, s.t0))
    e("s_bfe_u32 s%d, s%d, 0x10019" % (s.t2, Fa + 4))
    e("s_bfe_u32 s%d, s%d, 0x10018" % (s.t0, Fa + 4))
    e("s_lshl_b32 s%d, s%d, 10" % (s.t0, s.t0))
    e("s_mul_i32 s%d, s%d, s%d" % (s.t1, s.t0, s.m1))
    e("s_sub_u32 s%d, s%d, s%d" % (s.t0, s.t0, s.t1))
    e("s_lshl_b32 s%d, s%d, 15" % (s.voff, s.t2))
    e("s_add_u32 s%d, s%d, s%d" % (s.koff, s.voff, s.t0))
    e("s_add_u32 s%d, s%d, 0x8000" % (s.voff, s.voff))
    e("v_add_u32 v%d, s%d, v%d" % (v.ka0r, s.t1, v.ka0r))
    e("v_add_u32 v%d, s%d, v%d" % (v.ka1r, s.t1, v.ka1r))
    e("s_bfe_u32 s%d, s%d, 0x2001c" % (s.t0, Fa + 2))
    for j in (3, 2, 1, 0):
        e("s_add_u32 s%d, s%d, %d" % (s.col, s.t0, j))
        e("s_and_b32 s%d, s%d, 3" % (s.col, s.col))
        e("s_lshl_b32 s%d, s%d, 8" % (s.col, s.col))
        e("s_add_u32 s%d, s%d, s%d" % (s.col, s.col, s.t1))
        e("v_add_u32 v%d, s%d, v%d" % (v.var + j, s.col, v.var))
    emit(vaddr())
    e("s_and_b32 s%d, s%d, 0xff" % (s.t0, Fa + 3))
    e("v_mov_b32 v%d, s%d" % (v.prg, s.t0))
    e("s_bfe_u32 s%d, s%d, 0x80010" % (s.need, Fa + 3))
    e("s_cmp_lt_u32 s%d, 4" % s.wave)
    e("s_cbranch_scc1 L_sig0")
    e(PRGW)
    lab("L_presig")
    emit(qtile(4) + qtile(5))
    emit(chunk(1) + STEP_ADV)
    e("s_mov_b32 s%d, 4" % s.iss)
    stamp()
    e("s_cmp_eq_u32 s%d, 0" % s.t3)
    e("s_cbranch_scc1 L_hdone")
    emit(sync_call("L_head"))
    lab("L_sig0")
    stamp()
    emit(poll_rdy())
    stamp()
    lab("L_head")
    for t in range(8):
        e(kread(t, v.Q))
    e(PRGW)
    emit(kaddr())
    e("s_waitcnt lgkmcnt(5)")
    for t in range(8):
        e(kread(t, v.KF))
    e("s_add_u32 s%d, s%d, s%d" % (s.t0, s.koff, s.astep))
    e("s_mul_i32 s%d, s%d, s%d" % (s.koff, s.t0, s.m1))
    e("s_lshr_b32 s%d, s%d, 24" % (s.need, Fa + 3))
    e("s_bfe_u32 s%d, s%d, 0x80008" % (s.t0, Fa + 3))
    e("v_mov_b32 v%d, s%d" % (v.prg, s.t0))
    e("s_waitcnt lgkmcnt(7)")
    e(QK0)
    for t in range(1, 8):
        e("s_waitcnt lgkmcnt(%d)" % (7 - t))
        e(qk(t))
    emit(kaddr())
    emit(adv(s.koff))
    e("s_nop 8")
    e("v_max3_f32 v%d, v%d, v%d, v%d" % (v.t0, v.S, v.S + 1, v.S + 2))
    for r in range(3, 15, 2):
        e("v_max3_f32 v%d, v%d, v%d, v%d" % (v.t0, v.t0, v.S + r, v.S + r + 1))
    e("v_max_f32 v%d, v%d, v%d" % (v.t0, v.t0, v.S + 15))
    e("v_mov_b32 v%d, v%d" % (v.t1, v.t0))
    e("s_nop 1")
    e("v_permlane32_swap_b32 v%d, v%d" % (v.t0, v.t1))
    e("s_nop 1")
    e("v_max_f32 v%d, v%d, v%d" % (v.t0, v.t0, v.t1))
    e("v_mul_f32 v%d, 0x%x, v%d" % (v.nmc, f2u(-C_SCALE), v.t0))
    for r in range(16):
        e(F(r))
    e(RDYR)
    emit([ex(i) for i in range(8)] + [add(i) for i in range(1, 7)] + [cvt(0), cvt(1), cvt(2)])
    e("s_cmp_lt_u32 s%d, 4" % s.wave)
    e("s_waitcnt lgkmcnt(0)")
    e("s_cbranch_scc0 L_hlp_in")
    stamp()
    emit(poll_rdy())
    stamp()
    for t in range(8):
        e(kread(t, v.KF))
    emit(kaddr())
    if (not OPT.get("nodpub")):
        e("s_bfe_u32 s%d, s%d, 0x80008" % (s.t0, Fa + 3))
        e("s_sub_u32 s%d, s%d, s%d" % (s.t0, s.t0, s.m1))
        e("s_lshl_b32 s%d, s%d, 2" % (s.t0, s.t0))
        e("s_add_u32 s%d, s%d, L_cnt-L_pc-4" % (s.t0, s.t0))
        e("v_mov_b32 v%d, s%d" % (v.fo, s.t0))
        e("s_lshl_b32 s%d, s%d, 8" % (s.t0, s.wave))
        e("s_add_u32 m0, s%d, %d" % (s.t0, PRGB))
    e("s_cmp_eq_u32 s%d, 1" % s.m1)
    e("s_waitcnt lgkmcnt(4)")
    e("s_cbranch_scc1 L_odd_m")
    out.append(".p2align 4")
    body("even")
    e("s_cbranch_vccnz L_hnd_even")
    body("odd")
    e("s_cbranch_vccz L_even_m")
    e("s_add_u32 s%d, s%d, 16" % (s.t0, s.U))
    e("s_bitcmp0_b32 s%d, s%d" % (Fa + 5, s.t0))
    e("s_cbranch_scc1 L_np1")
    e("s_add_u32 s%d, s%d, s%d" % (s.t0, s.need, Fa + 6))
    e("v_mov_b32 v%d, s%d" % (v.prg, s.t0))
    e(PRGW)
    lab("L_np1")
    emit(poll_rdy())
    e("s_cmp_le_u32 s%d, 1" % s.U)
    e("s_cbranch_scc1 L_ho1")
    e("s_cmp_eq_u32 s%d, 0" % s.m1)
    e("s_cbranch_scc0 L_odd_m")
    e("s_branch L_even_m")
    lab("L_ho1")
    e("s_cmp_eq_u32 s%d, 0" % s.U)
    e("s_cbranch_scc1 L_tail0")
    e("s_cmp_eq_u32 s%d, 0" % s.m1)
    e(QK0M)
    e("s_cbranch_scc1 L_even_a")
    e("s_branch L_odd_a")
    lab("L_hnd_even")
    e("s_add_u32 s%d, s%d, 16" % (s.t0, s.U))
    e("s_bitcmp0_b32 s%d, s%d" % (Fa + 5, s.t0))
    e("s_cbranch_scc1 L_np2")
    e("s_add_u32 s%d, s%d, s%d" % (s.t0, s.need, Fa + 6))
    e("v_mov_b32 v%d, s%d" % (v.prg, s.t0))
    e(PRGW)
    lab("L_np2")
    emit(poll_rdy())
    e("s_cmp_gt_u32 s%d, 1" % s.U)
    e("s_cbranch_scc1 L_odd_m")
    e("s_cmp_eq_u32 s%d, 0" % s.U)
    e("s_cbranch_scc1 L_tail")
    e(QK0M)
    e("s_branch L_odd_a")
    lab("L_hlp_in")
    e(PRGW)
    stamp()
    emit(sync_call())
    stamp()
    for t in range(8):
        e(kread(t, v.KF))
    emit(kaddr())
    e("s_waitcnt lgkmcnt(4)")
    e("s_branch L_hnd_hlp")
    body("hlp")
    lab("L_hnd_hlp")
    e("s_cmp_gt_u32 s%d, 1" % s.U)
    e("s_cbranch_scc1 L_hlp_m")
    e("s_cmp_eq_u32 s%d, 0" % s.U)
    e("s_cbranch_scc1 L_tail")
    e(QK0M)
    e("s_branch L_hlp_a")
    lab("L_tail0")
    e("s_cmp_eq_u32 s%d, 1" % s.m1)
    e("s_cbranch_scc1 L_tail")
    for j in range(4):
        e("v_add_u32 v%d, 0x400, v%d" % (v.va + j, v.va + j))
    lab("L_tail")
    k = newret()
    vord = [0, 1, 8, 9, 2, 3, 10, 11, 4, 5, 12, 13, 6, 7, 14, 15]
    for i in vord[:12]:
        e(vread(i))
    emit([ex(8), add(7), cvt(3)] + [ex(i) for i in range(9, 16)])
    e("v_mov_b32 v%d, %d" % (v.prg, BIG))
    if (not OPT.get("nodpub")):
        e("s_cmp_lt_u32 s%d, 4" % s.wave)
        e("s_cbranch_scc0 L_t1")
        e("s_waitcnt vmcnt(0)")
        lab("L_t1")
    for i in vord[12:]:
        e(vread(i))
    e(PRGW)
    emit([add(i) for i in range(8, 16)] + [CMP, cvt(4), "s_mov_b32 s%d, %d" % (s.ret, k), "s_cbranch_vccnz L_resc",
                                           "L_ret%d:" % k, cvt(5), cvt(6), cvt(7), LADD])
    e("s_cmp_lt_u32 s%d, 4" % s.wave)
    e("s_waitcnt lgkmcnt(0)")
    e("s_cbranch_scc0 L_htail")
    lab("L_tail2")
    tw, tr0, oo, rl = v.ka1, v.va, v.ka1r, v.X + 2

    def lsum():
        return ["v_mov_b32 v%d, v%d" % (v.t0, v.l), "s_nop 1",
                "v_permlane32_swap_b32 v%d, v%d" % (v.l, v.t0), "s_nop 1",
                "v_add_f32 v%d, v%d, v%d" % (v.l, v.l, v.t0)]

    def st_addr():
        r = ["v_and_b32 v%d, 31, v%d" % (v.t0, L),
             "v_lshrrev_b32 v%d, 5, v%d" % (v.t1, L),
             "v_lshlrev_b32 v%d, 3, v%d" % (v.t1, v.t1),
             "v_and_b32 v%d, 7, v%d" % (v.t2, L),
             "v_lshl_add_u32 v%d, v%d, 4, v%d" % (v.t1, v.t2, v.t1),
             "v_lshl_add_u32 v%d, v%d, 7, v%d" % (v.t0, v.t0, v.t1),
             "v_add_u32 v%d, s%d, v%d" % (tw, s.reg, v.t0)]
        r += ["v_xor_b32 v%d, %d, v%d" % (v.E + c, c * 16, tw) for c in range(8)]
        r += ["v_lshrrev_b32 v%d, 3, v%d" % (v.t0, L),
              "v_xor_b32 v%d, v%d, v%d" % (v.t1, v.t2, v.t0),
              "v_lshlrev_b32 v%d, 4, v%d" % (v.t1, v.t1),
              "v_lshl_add_u32 v%d, v%d, 7, v%d" % (v.t1, v.t0, v.t1),
              "v_add_u32 v%d, s%d, v%d" % (tr0, s.reg, v.t1),
              "v_lshlrev_b32 v%d, 12, v%d" % (v.t0, v.t0),
              "v_lshl_add_u32 v%d, v%d, 4, v%d" % (oo, v.t2, v.t0)]
        return r

    def pack_q(bb, norm=True):
        r = []
        for g in range(4):
            c = 4 * bb + g
            o = v.O + 4 * c
            d = v.S + 2 * c
            if norm:
                r += ["v_pk_mul_f32 %s, %s, %s op_sel_hi:[1,0]" % (vr(o + i, 2), vr(o + i, 2), vr(rl, 2)) for i in (0, 2)]
            r += ["v_cvt_pk_bf16_f32 v%d, v%d, v%d" % (d, o, o + 1),
                  "v_cvt_pk_bf16_f32 v%d, v%d, v%d" % (d + 1, o + 2, o + 3),
                  "ds_write_b64 v%d, %s" % (v.E + c % 8, vr(d, 2))]
        return r

    def rd_half(hh):
        return ["ds_read_b128 %s, v%d offset:%d" % (vr(v.KF + 16 * hh + 4 * k, 4), tr0, k * 1024) for k in range(4)]

    def st_one(hh, k):
        return ["buffer_store_dwordx4 %s, v%d, %s, s%d offen offset:%d %s" % (
                    vr(v.KF + 16 * hh + 4 * k, 4), oo, sr(s.so, 4), s.col + k if k < 3 else s.t1, 128 * hh, STF)]

    sa = st_addr()
    emit([pv(0)] + lsum() + ["v_rcp_f32 v%d, v%d" % (rl, v.l)])
    emit([pv(4)] + sa[0:6])
    emit([pv(1)] + sa[6:12])
    emit([pv(5)] + sa[12:18])
    emit([pv(2)] + sa[18:] + ["s_mov_b32 s%d, 0" % s.col, "s_mov_b32 s%d, 0x8000" % (s.col + 1)])
    emit([pv(6), "s_mov_b32 s%d, 0x10000" % (s.col + 2), "s_mov_b32 s%d, 0x18000" % s.t1])
    emit([pv(3), pv(7)])
    stamp(5)
    emit(pack_q(0) + pack_q(1) + rd_half(0))
    p2 = pack_q(2)
    emit(p2[:10] + ["s_waitcnt lgkmcnt(5)"] + st_one(0, 0) + p2[10:] + ["s_waitcnt lgkmcnt(4)"] + st_one(0, 1))
    p3 = pack_q(3)
    emit(p3[:10] + st_one(0, 2) + p3[10:] + st_one(0, 3) + rd_half(1))
    stamp(4)
    for k in range(4):
        emit(["s_waitcnt lgkmcnt(%d)" % (3 - k)] + st_one(1, k))
    lab("L_fin")
    if STAMPS:
        stamp(6)
        e("s_waitcnt vmcnt(0)")
        stamp(7)
        stamp(61, True)
        e("s_getreg_b32 s%d, hwreg(HW_REG_XCC_ID)" % s.stp)
        e("v_writelane_b32 v%d, s%d, 62" % (v.st, s.stp))
        e("s_lshl_b32 s%d, s2, 3" % s.t0)
        e("s_add_u32 s%d, s%d, s%d" % (s.t0, s.t0, s.wave))
        e("s_lshl_b32 s%d, s%d, 8" % (s.t0, s.t0))
        e("v_lshlrev_b32 v%d, 2, v%d" % (v.t0, v.lane))
        e("v_add_u32 v%d, s%d, v%d" % (v.t0, s.t0, v.t0))
        if OPT.get("dbg"):
            e("v_readlane_b32 s%d, v%d, 0" % (s.t0, v.st))
            e("v_readlane_b32 s%d, v%d, 61" % (s.t1, v.st))
            e("v_readlane_b32 s%d, v%d, 1" % (s.t2, v.st))
            e("s_not_b32 s%d, s%d" % (s.t3, s.t0))
            e("v_cmp_ne_u32 vcc, 0, v%d" % v.st)
            e("v_subrev_u32 v%d, s%d, v%d" % (v.t1, s.t2, v.st))
            e("s_nop 1")
            e("v_cndmask_b32 v%d, 0, v%d, vcc" % (v.t1, v.t1))
            e("v_writelane_b32 v%d, s%d, 0" % (v.t1, s.t3))
            e("v_writelane_b32 v%d, s%d, 1" % (v.t1, s.t1))
            e("v_writelane_b32 v%d, s%d, 15" % (v.t1, s.t0))
            e("v_lshlrev_b32 v%d, 2, v%d" % (v.t0, v.lane))
            e("s_cmp_lt_u32 s%d, 4" % s.wave)
            e("s_cselect_b32 s%d, 0xffff, 0x80ff" % s.t0 if False else "s_mov_b32 s%d, 0x80ff" % s.t0)
            e("s_cselect_b32 exec_lo, 0xffff, s%d" % s.t0)
            e("s_mov_b32 exec_hi, 0")
            e("global_atomic_umax v%d, v%d, %s" % (v.t0, v.t1, sr(s.ws, 2)))
        else:
            e("global_store_dword v%d, v%d, %s" % (v.t0, v.st, sr(s.ws, 2)))
    lab("L_end")
    e("s_endpgm")
    for blk in ool:
        emit(blk)
    lab("L_sync")
    e("s_setprio %s" % OPT.get("sprio", "0"))
    e("s_min_u32 s%d, s%d, s%d" % (s.t2, s.need, s.n))
    e("s_add_u32 s%d, s%d, %s" % (s.t3, s.t2, OPT.get("look", "2")))
    e("s_min_u32 s%d, s%d, s%d" % (s.t3, s.t3, s.n))
    lab("L_svc")
    e("ds_read_b32 v%d, v%d" % (v.t1, v.pra))
    e(RDYR)
    e("s_sub_i32 s%d, s%d, 5" % (s.t1, s.iss))
    e("s_cmp_gt_u32 s%d, s%d" % (s.iss, s.t3))
    e("s_waitcnt lgkmcnt(0)")
    e("s_cbranch_scc0 L_svc1")
    e("v_cmp_ge_u32 vcc, s%d, v%d" % (s.t2, v.rdy))
    e("s_cbranch_vccz L_svcx")
    e("s_cmp_gt_u32 s%d, s%d" % (s.iss, s.n))
    e("s_cbranch_scc1 L_svcs")
    lab("L_svc1")
    e("v_cmp_gt_i32 vcc, s%d, v%d" % (s.t1, v.t1))
    e("s_cbranch_vccnz L_svc2")
    e("s_add_u32 s%d, s%d, 1" % (s.iss, s.iss))
    if OPT.get("cap"):
        e("s_waitcnt vmcnt(%s)" % OPT["cap"])
    e("s_bitcmp0_b32 s%d, 0" % s.iss)
    e("s_cbranch_scc1 L_svcB")
    emit(chunk(0, pace=PACE))
    e("s_branch L_svc")
    lab("L_svcB")
    emit(chunk(1, pace=PACE) + STEP_ADV)
    e("s_branch L_svc")
    lab("L_svc2")
    e("v_cmp_ge_u32 vcc, s%d, v%d" % (s.t2, v.rdy))
    e("s_cbranch_vccz L_svcx")
    lab("L_svcs")
    emit(spin(OPT.get("slp", "2")))
    e("s_branch L_svc")
    lab("L_svcx")
    e("s_setprio %s" % OPT.get("hprio", "3"))
    SRET_AT = len(out)
    lab("L_htail")
    e("s_mov_b32 s%d, s%d" % (s.need, s.n))
    e("s_bitcmp0_b32 s%d, 24" % (Fa + 2))
    e("s_cbranch_scc1 L_htail2")
    emit(sync_call("L_tail2"))
    lab("L_htail2")
    for i in range(8):
        e(pv(i))
    lab("L_hdone")
    e("s_mov_b32 s%d, s%d" % (s.need, s.n))
    emit(sync_call())
    e("s_sub_u32 s%d, s%d, 1" % (s.t2, s.n))
    e("s_bfe_u32 s%d, s%d, 0x40018" % (s.n, Fa + 2))
    e("s_cbranch_scc0 L_fin")
    e("s_setprio %s" % OPT.get("eprio", "0"))
    e("s_branch L_pe1")
    lab("L_pe0")
    emit(spin(OPT.get("slp", "2")))
    lab("L_pe1")
    e("ds_read_b32 v%d, v%d" % (v.t1, v.pra))
    e("s_waitcnt lgkmcnt(0)")
    e("v_cmp_gt_u32 vcc, s%d, v%d" % (s.t2, v.t1))
    e("s_cbranch_vccnz L_pe0")
    stamp(5)
    l16, l8, xa, cnt = v.ka0, v.ka0r, v.var, v.var + 1
    emit(lsum())
    e("v_lshlrev_b32 v%d, 4, v%d" % (l16, L))
    e("v_lshlrev_b32 v%d, 3, v%d" % (l8, L))
    e("s_lshl_b32 s%d, s%d, 9" % (s.t0, s.wave))
    e("s_add_u32 s%d, s%d, %d" % (s.t0, s.t0, MLBASE - 2048))
    e("v_add_u32 v%d, s%d, v%d" % (xa, s.t0, l8))
    e("ds_write_b64 v%d, %s" % (xa, vr(v.nmc, 2)))
    e("s_cmp_eq_u32 s%d, 2" % s.n)
    e("s_cbranch_scc1 L_sd2")
    for j in (1, 2, 3):
        if j == 2:
            lab("L_sd2")
        e("s_and_b32 s%d, s%d, 0xffffff" % (s.t0, Fa + 4 + j))
        e("v_add_u32 v%d, s%d, v%d" % (xa, s.t0, l16))
        for k in range(4):
            e("ds_write_b128 v%d, %s offset:%d" % (xa, vr(v.O + 16 * j + 4 * k, 4), k * 1024))
    e("s_lshr_b32 s%d, s%d, 30" % (s.t0, Fa + 2))
    e("s_lshl_b32 s%d, s%d, 2" % (s.t0, s.t0))
    e("s_add_u32 s%d, s%d, %d" % (s.t0, s.t0, CNTB))
    e("v_mov_b32 v%d, s%d" % (cnt, s.t0))
    e("v_mov_b32 v%d, 1" % v.t3)
    e("s_mov_b64 exec, 1")
    e("ds_add_u32 v%d, v%d" % (cnt, v.t3))
    e("s_mov_b64 exec, -1")
    emit(st_addr())
    e("v_add_u32 v%d, s%d, v%d" % (xa, s.reg, l16))
    for j in range(3):
        e("s_lshr_b32 s%d, s%d, 24" % (s.t0, Fa + 5 + j))
        e("s_lshl_b32 s%d, s%d, 9" % (s.t0, s.t0))
        e("s_add_u32 s%d, s%d, %d" % (s.t0, s.t0, MLBASE))
        e("v_add_u32 v%d, s%d, v%d" % (v.P + j, s.t0, l8))
    e("s_branch L_poll1")
    lab("L_poll")
    emit(spin())
    lab("L_poll1")
    e("ds_read_b32 v%d, v%d" % (v.t3, cnt))
    e("s_waitcnt lgkmcnt(0)")
    e("v_cmp_ne_u32 vcc, s%d, v%d" % (s.n, v.t3))
    e("s_cbranch_vccnz L_poll")
    stamp(4)
    for j in range(3):
        e("ds_read_b64 %s, v%d" % (vr(v.X + 2 * j, 2), v.P + j))
    for k in range(12):
        e("ds_read_b128 %s, v%d offset:%d" % (vr(v.KF + 16 + 4 * k, 4), xa, k * 1024))
    RX = v.KF + 16
    f0, f1, f2, f3 = v.X + 8, v.X + 9, v.X + 10, v.X + 11
    e("s_bfe_u32 s%d, s%d, 0x2001c" % (s.col, Fa + 2))
    e("s_lshl_b32 s%d, s%d, 6" % (s.col, s.col))
    e("s_add_u32 s%d, s%d, 0x8000" % (s.col + 1, s.col))
    e("s_add_u32 s%d, s%d, 0x10000" % (s.col + 2, s.col))
    e("s_add_u32 s%d, s%d, 0x18000" % (s.t1, s.col))
    e("s_waitcnt lgkmcnt(12)")
    e("v_min3_f32 v%d, v%d, v%d, v%d" % (v.t3, v.nmc, v.X, v.X + 2))
    e("v_min_f32 v%d, v%d, v%d" % (v.t3, v.t3, v.X + 4))
    e("v_sub_f32 v%d, v%d, v%d" % (f0, v.t3, v.nmc))
    for j, f in enumerate((f1, f2, f3)):
        e("v_sub_f32 v%d, v%d, v%d" % (f, v.t3, v.X + 2 * j))
    for f in (f0, f1, f2, f3):
        e("v_exp_f32 v%d, v%d" % (f, f))
    e("v_mul_f32 v%d, v%d, v%d" % (v.l, v.l, f0))
    e("v_fmac_f32 v%d, v%d, v%d" % (v.l, v.X + 1, f1))
    e("s_cmp_eq_u32 s%d, 2" % s.n)
    e("s_cbranch_scc1 L_mg2")
    e("v_fmac_f32 v%d, v%d, v%d" % (v.l, v.X + 3, f2))
    e("v_fmac_f32 v%d, v%d, v%d" % (v.l, v.X + 5, f3))
    e("v_rcp_f32 v%d, v%d" % (v.t3, v.l))
    e("v_and_b32 v%d, 4, v%d" % (v.t0, L))
    e("v_lshl_add_u32 v%d, v%d, 28, v%d" % (oo, v.t0, oo))
    for f in (f0, f1, f2, f3):
        e("v_mul_f32 v%d, v%d, v%d" % (f, f, v.t3))
    for i in range(16):
        e("v_mul_f32 v%d, v%d, v%d" % (v.O + i, v.O + i, f0))
    for j, f in enumerate((f1, f2, f3)):
        e("s_waitcnt lgkmcnt(%d)" % (8 - 4 * j))
        for i in range(16):
            e("v_fmac_f32 v%d, v%d, v%d" % (v.O + i, RX + 16 * j + i, f))
    e("s_branch L_mg3")
    lab("L_mg2")
    e("v_rcp_f32 v%d, v%d" % (v.t3, v.l))
    e("s_nop 0")
    for f in (f0, f1):
        e("v_mul_f32 v%d, v%d, v%d" % (f, f, v.t3))
    for i in range(32):
        e("v_mul_f32 v%d, v%d, v%d" % (v.O + i, v.O + i, f0))
    e("s_waitcnt lgkmcnt(0)")
    for i in range(32):
        e("v_fmac_f32 v%d, v%d, v%d" % (v.O + i, RX + i, f1))
    emit(pack_q(1, False))
    lab("L_mg3")
    emit(pack_q(0, False) + rd_half(0))
    for k in range(4):
        emit(["s_waitcnt lgkmcnt(%d)" % (3 - k)] + st_one(0, k))
    e("s_branch L_fin")
    lab("L_resc")
    e("v_max3_f32 v%d, v%d, v%d, v%d" % (v.t0, v.X, v.X + 1, v.X + 2))
    for r in range(3, 15, 2):
        e("v_max3_f32 v%d, v%d, v%d, v%d" % (v.t0, v.t0, v.X + r, v.X + r + 1))
    e("v_max3_f32 v%d, v%d, v%d, 0" % (v.t0, v.t0, v.X + 15))
    e("v_mov_b32 v%d, v%d" % (v.t1, v.t0))
    e("s_nop 1")
    e("v_permlane32_swap_b32 v%d, v%d" % (v.t0, v.t1))
    e("s_nop 1")
    e("v_max_f32 v%d, v%d, v%d" % (v.t0, v.t0, v.t1))
    e("v_exp_f32 v%d, -v%d" % (v.t1, v.t0))
    e("v_sub_f32 v%d, v%d, v%d" % (v.nmc, v.nmc, v.t0))
    for r in range(16):
        e("v_sub_f32 v%d, v%d, v%d" % (v.X + r, v.X + r, v.t0))
    e("v_mul_f32 v%d, v%d, v%d" % (v.l, v.l, v.t1))
    for i in range(64):
        e("v_mul_f32 v%d, v%d, v%d" % (v.O + i, v.O + i, v.t1))
    emit(soft_half_plain(0))
    emit(soft_half_plain(1))
    for k, r in enumerate(rets[:-1]):
        e("s_cmp_eq_u32 s%d, %d" % (s.ret, k))
        e("s_cbranch_scc1 %s" % r)
    e("s_branch %s" % rets[-1])
    rl_ = []
    order = [2, 1, 0, 3, 4]
    assert len(srets) == len(order)
    for k in order[:-1]:
        rl_ += ["    s_cmp_eq_u32 s%d, %d" % (s.sret, k), "    s_cbranch_scc1 %s" % srets[k]]
    rl_ += ["    s_branch %s" % srets[order[-1]]]
    out[SRET_AT:SRET_AT] = rl_
    out.append(".p2align 6")
    out.append(".type L_far,@object")
    lab("L_far")
    for ent in far:
        out.append("    .long " + ", ".join("0x%x" % x for x in ent))
    lab("L_cnt")
    out.append("    .long " + ", ".join(str(i) for i in range(32)))
    out.append(".size L_far, .-L_far")
    lab("L_codeend")
    out.append("    .fill 512, 4, 0xbf800000")
    out.append('.section .rodata,"a"')
    out.append(".p2align 6")
    out.append(".amdhsa_kernel " + K)
    out.append("  .amdhsa_next_free_vgpr %d" % NV)
    out.append("  .amdhsa_next_free_sgpr %d" % NS)
    out.append("  .amdhsa_accum_offset %d" % NV)
    out.append("  .amdhsa_group_segment_fixed_size 0")
    out.append("  .amdhsa_kernarg_size 56")
    out.append("  .amdhsa_user_sgpr_count 2")
    out.append("  .amdhsa_user_sgpr_kernarg_segment_ptr 1")
    out.append("  .amdhsa_system_sgpr_workgroup_id_x 1")
    out.append(".end_amdhsa_kernel")
    txt = "\n".join(out) + "\n"
    return txt.replace("PFSTRIDE", OPT.get("pf", "28"))


if __name__ == "__main__":
    args = [a for a in sys.argv[1:] if a.endswith(".s")]
    path = args[0] if args else "cdna_kernels/%s.s" % NAME
    open(path, "w").write(gen())
    print("wrote", path)
```

```python
import sys, struct, math

NAME = "standalone__varlen_attn_packed__ragged"
CU = [0, 289, 520, 939, 1289, 1402, 1666, 1973, 2275]
LEN = [CU[i + 1] - CU[i] for i in range(8)]
T_TOT = 2275
ROWB = 4096
TENSOR_BYTES = T_TOT * ROWB

OPT = {}
for a in sys.argv[1:]:
    if a.startswith("--"):
        k, _, val = a[2:].partition("=")
        OPT[k] = val if val else "1"
STAMPS = "stamps" in OPT or "lite" in OPT
LITE = "lite" in OPT
LDF_Q = OPT.get("ldq", "nt").replace("+", " ").replace("none", "")
LDF_K = OPT.get("ldk", "nt").replace("+", " ").replace("none", "")
STF = OPT.get("st", "none").replace("+", " ").replace("none", "")
FLY = int(OPT.get("fly", "4"))

HEADER = """; Kernarg layout for this problem (56 bytes, ptrs only, base s[0:1]):
;   offset   0: d_in[0] q  shape=(2275, 16, 128) dtype=bfloat16 strides=(4096, 256, 2) contiguous=True
;   offset   8: d_in[1] k  shape=(2275, 16, 128) dtype=bfloat16 strides=(4096, 256, 2) contiguous=True
;   offset  16: d_in[2] v  shape=(2275, 16, 128) dtype=bfloat16 strides=(4096, 256, 2) contiguous=True
;   offset  32: d_out     shape=(2275, 16, 128) dtype=bfloat16 (2 bytes/elem)
"""


def f2u(x):
    return struct.unpack("<I", struct.pack("<f", x))[0]


def cdiv(a, b):
    return (a + b - 1) // b


LDS_TOTAL = 163840
QBASE = 98304
XTRA = 131072
MLBASE = XTRA + 16384
PRGB = XTRA + 7 * 4096 + 2048
RDYB = XTRA + 6 * 4096 + 3072
CNTB = XTRA + 6 * 4096 + 2048
BIG = 0x4000

ROLES = [
    (2, 0, 4), (2, 4, 4), (2, 8, 3), (2, 11, 3),
    (3, 0, 5), (3, 5, 5),
    (5, 0, 6),
    (6, 0, 5), (6, 5, 5), (7, 0, 5), (7, 5, 5), (0, 0, 5), (0, 5, 5),
    (1, 0, 6),
    ("dual", (3, 10, 1), (5, 6, 3)),
    ("dual", (1, 6, 2), (4, 0, 4)),
]


def nrec(rows):
    return (rows - 1) * ROWB + 256 if rows > 0 else 0


def build_tables():
    near, far, desc = [], [], []
    for ri, role in enumerate(ROLES):
        W = [None] * 8
        groups = []
        if role[0] == "dual":
            (sa, ta, na), (sb, tb, nb) = role[1], role[2]
            rowA, lenA, rowB, lenB, step = CU[sa], LEN[sa], CU[sb], LEN[sb], 32
            n_it = max(cdiv(lenA, 32), cdiv(lenB, 32))
            tiles = [(sa, ta + i, 0) for i in range(na)] + [(sb, tb + i, 1) for i in range(nb)]
            nq = len(tiles)
            for i in range(4):
                sq, tl, st = tiles[i]
                W[i] = dict(seq=sq, tile=tl, ql=i, type=2, stream=st, its=list(range(cdiv(LEN[sq], 32))), hastail=1)
            for i in range(4, nq):
                sq, tl, st = tiles[i]
                nb_ = cdiv(LEN[sq], 32)
                W[i + 2] = dict(seq=sq, tile=tl, ql=i, type=3, stream=st, its=list(range(nb_)), hastail=1,
                                G=1, reg=XTRA + 4096 * i)
        else:
            sa, t0, nq = role
            rowA, lenA, rowB, lenB, step = CU[sa], LEN[sa], CU[sa] + 32, LEN[sa] - 32, 64
            nkv = cdiv(lenA, 32)
            n_it = cdiv(nkv, 2)
            tiles = [(sa, t0 + i, 0) for i in range(nq)]
            for i in range(min(nq, 4)):
                W[i] = dict(seq=sa, tile=t0 + i, ql=i, type=1, stream=0, its=list(range(nkv)), hastail=1)
            nh = 4 // (nq - 4) if nq > 4 else 0
            for i in range(4, nq):
                ws = [4 + (i - 4) * nh + k for k in range(nh)]
                for k, w in enumerate(ws):
                    blocks = [p for p in range(nkv) if p % nh == k]
                    W[w] = dict(seq=sa, tile=t0 + i, ql=i, type=3, stream=k % 2, its=[p // 2 for p in blocks],
                                hastail=int((nkv - 1) in blocks))
                groups.append(ws)
        qrows = [CU[sq] + 32 * tl for sq, tl, _ in tiles] + [0xfff] * (6 - nq)
        near.append([rowA * ROWB, nrec(lenA), rowB * ROWB, nrec(lenB), step * ROWB | (2 * n_it + 1),
                     qrows[0] | qrows[1] << 16, qrows[2] | qrows[3] << 16, qrows[4] | qrows[5] << 16])
        areas = [((n_it + 1) % 4) * 32768, ((n_it + 2) % 4) * 32768]
        recv = [areas[0], areas[0] + 12288, areas[1], areas[1] + 12288]
        for i in range(4):
            if W[i]:
                W[i]["reg"] = XTRA + 4096 * i
        for gi, g in enumerate(groups):
            G = len(g)
            for k, w in enumerate(g):
                W[w]["reg"] = recv[w - 4]
                W[w]["G"], W[w]["k"], W[w]["gi"] = G, k, gi
                if G == 4:
                    W[w]["send"] = [recv[g[(j + k) % 4] - 4] + (j - 1) * 4096 for j in (1, 2, 3)]
                    W[w]["src"] = [g[(k - j) % 4] for j in (1, 2, 3)]
                else:
                    o = g[1 - k]
                    W[w]["send"] = [0, recv[o - 4], recv[o - 4] + 4096]
                    W[w]["src"] = [o, o, o]
        for wi in range(8):
            w = W[wi]
            desc.append(w)
            if w is None:
                far.append([0] * 8)
                continue
            sq, its, typ, sc = w["seq"], w["its"], w["type"], w["stream"]
            tail = LEN[sq] % 32
            orow = CU[sq] + 32 * w["tile"]
            onr = min(32, CU[sq + 1] - orow)
            assert onr > 0 and tail > 0
            U = len(its) - 1
            a0, st = its[0], its[1] - its[0]
            assert all(its[i] == a0 + st * i for i in range(len(its))) and st <= 2 and a0 <= 1 and U >= 1
            if typ == 1:
                inc, prg0, prg1, need1, need2 = 1, 2, 4, 0, 2
            elif typ == 2:
                inc, prg0, prg1, need1, need2 = 2, 2, 4 + sc, sc, 4 + sc
            else:
                inc, prg0, prg1, need1, need2 = 2 * st, 2 * a0 + sc + 2, 2 * (a0 + 1) + sc + 2, 3, 2 * (a0 + st) + sc
            w.update(U=U, a0=a0, st=st, inc=inc, prg0=prg0, prg1=prg1, need1=need1, need2=need2, n_it=n_it)
            hm = 0
            if typ != 3:
                nlast = 2 * n_it + 1
                pub = prg0
                w["pubs"] = []
                for b in range(U):
                    val = prg1 + inc * (b + 1)
                    want = pub < nlast - 5 and (typ == 2 or b % 2 == 1 or OPT.get("puball"))
                    if groups and pub < nlast - 1 <= val:
                        want = True
                    if typ == 2 or U - 1 - b <= 1:
                        hm |= 1 << (U - 1 - b)
                    if want and OPT.get("nodpub"):
                        hm |= 0x10001 << (U - 1 - b)
                        pub = val
                        w["pubs"].append(b)
            G, k, gi = w.get("G", 0), w.get("k", 0), w.get("gi", 0)
            rot = k * (4 // G) if G > 1 else 0
            ent = [orow * ROWB, nrec(onr),
                   U | typ << 8 | inc << 12 | (tail if w["hastail"] else 32) << 16 | G << 24 | rot << 28 | gi << 30,
                   prg0 | prg1 << 8 | need1 << 16 | need2 << 24,
                   w["reg"] | w["ql"] << 20 | (1 - sc) << 24 | a0 << 25 | st << 26]
            if G > 1:
                ent += [w["send"][j] | ((w["src"][j] - 4) << 24) for j in range(3)]
            if typ != 3:
                ent += [hm, prg1 - need2]
            ent += [0] * (8 - len(ent))
            far.append(ent)
    return near, far, desc


class R:
    pass


v = R()
v.kd0, v.kd1, v.vd0, v.vd1 = 1, 2, 3, 4
v.ka0r, v.ka1r = 5, 6
v.ka0, v.ka1 = 7, 8
v.rdya, v.rdy = 9, 10
v.lane = 11
v.nmc, v.l = 12, 13
v.ps = 14
v.t0, v.t1, v.t2, v.t3 = 15, 16, 17, 18
v.pf = 19
v.st = 20
v.prga, v.prg = 21, 22
v.fo = 23
v.pra = 0
v.Q = 24
v.O = 56
v.S = 120
v.B = 136
v.KF = 152
v.VF = 184
v.X = 216
v.E = 232
v.P = 240
v.var = 248
v.va = 252
NV = 256

s = R()
s.q, s.k, s.vv, s.cu, s.out = 4, 6, 8, 10, 12
s.near = 16
s.far = 24
s.kA, s.kB, s.vA, s.vB, s.sq, s.so = 32, 36, 40, 44, 48, 52
s.wave, s.hoff = 56, 57
s.n = 58
s.thr = 59
s.soff = 60
s.dslot = 61
s.U = 62
s.mu = 63
s.koff, s.voff = 64, 65
s.need, s.chk = 66, 67
s.t0, s.t1, s.t2, s.t3 = 68, 69, 70, 71
s.pc = 72
s.stp = 74
s.ws = 76
s.sti = 78
s.ret = 79
s.foff = 80
s.reg = 81
s.m1 = 82
s.lnd = 83
s.inc = 84
s.col = 85
s.astep = 88
s.sret = 89
s.guard = 90
s.iss = 91
s.d0, s.rdw = 92, 93
s.stepb = 97
NS = 100

C_SCALE = (128 ** -0.5) * math.log2(math.e)
CL = "0x%x" % f2u(C_SCALE)
THRESH = 4096.0

out = []


def e(x):
    out.append("    " + x)


def lab(x):
    out.append(x + ":")


def vr(b, n):
    return "v[%d:%d]" % (b, b + n - 1)


def sr(b, n):
    return "s[%d:%d]" % (b, b + n - 1)


def emit(lst):
    for x in lst:
        if x is None:
            continue
        if x.endswith(":"):
            out.append(x)
        else:
            e(x)


def stamp_l(k=None, real=False):
    if not STAMPS or (LITE and k not in (7, 61)):
        return []
    r = ["%s s[%d:%d]" % ("s_memrealtime" if real else "s_memtime", s.stp, s.stp + 1), "s_waitcnt lgkmcnt(0)"]
    if k is None:
        r += ["s_mov_b32 s%d, m0" % (s.stp + 1), "s_mov_b32 m0, s%d" % s.sti, "s_nop 0",
              "v_writelane_b32 v%d, s%d, m0" % (v.st, s.stp),
              "s_add_u32 s%d, s%d, 1" % (s.sti, s.sti), "s_mov_b32 m0, s%d" % (s.stp + 1)]
    else:
        r += ["v_writelane_b32 v%d, s%d, %d" % (v.st, s.stp, k)]
    return r


def stamp(k=None, real=False):
    emit(stamp_l(k, real))


SPIN = OPT.get("spin")


def mark(name):
    if SPIN == name:
        e("s_memrealtime s[%d:%d]" % (s.stp, s.stp + 1))
        e("s_waitcnt lgkmcnt(0)")


def kread(t, dst, st=0):
    return "ds_read_b128 %s, v%d offset:%d" % (vr(dst + 4 * t, 4), v.ka1 if t % 2 else v.ka0,
                                               (t // 4) * 16384 + ((t // 2) % 2) * 256 + st * 1024)


def vread(i, st=0):
    t, bb, ss = i // 8, (i // 2) % 4, i % 2
    reg = v.VF + (t * 4 + bb) * 4 + ss * 2
    return "ds_read_b64_tr_b16 %s, v%d offset:%d" % (vr(reg, 2), v.va + bb, (4 * t + 2 * ss) * 4096 + st * 1024)


def ld(kv, col, half, so):
    srd = {("K", 0): s.kA, ("K", 1): s.kB, ("V", 0): s.vA, ("V", 1): s.vB}[(kv, col)]
    off = (2048 if kv == "V" else 0) + (1024 if col == 0 else 0)
    vo = {("K", 0): v.kd0, ("K", 1): v.kd1, ("V", 0): v.vd0, ("V", 1): v.vd1}[(kv, half)]
    return "buffer_load_dwordx4 v%d, %s, s%d offen %s%s lds" % (vo, sr(srd, 4), so, "offset:%d " % off if off else "", LDF_K)


STEP_ADV = ["s_add_u32 s%d, s%d, s%d" % (s.soff, s.soff, s.stepb),
            "s_add_u32 s%d, s%d, 0x8000" % (s.dslot, s.dslot),
            "s_and_b32 s%d, s%d, 0x1ffff" % (s.dslot, s.dslot)]


FLAG = ["s_mov_b32 m0, s%d" % s.rdw,
        "v_add_u32 v%d, 4, v%d" % (v.fo, v.fo),
        "global_load_lds_dword v%d, %s" % (v.fo, sr(s.pc, 2))]


def chunk(col, k_only=False, pace=0, flag=True):
    p = []
    if pace:
        p = ["s_sleep %d" % pace if pace < 16 else "s_nop %d" % (pace - 16)]
    r = []
    for half, m in ((0, "s_mov_b32 m0, s%d" % s.dslot), (1, "s_add_u32 m0, s%d, 0x4000" % s.dslot)):
        r += [m, "s_nop 0"]
        if not k_only:
            r += [ld("V", col, half, s.soff)] + p
        r += [ld("K", col, half, s.soff)] + p
    return r + (FLAG if flag else [])


def qk(t):
    return "v_mfma_f32_32x32x16_bf16 %s, %s, %s, %s" % (vr(v.S, 16), vr(v.KF + 4 * t, 4), vr(v.Q + 4 * t, 4), vr(v.S, 16))


def pv(i):
    t, bb = i // 4, i % 4
    return "v_mfma_f32_32x32x16_bf16 %s, %s, %s, %s" % (
        vr(v.O + 16 * bb, 16), vr(v.VF + (t * 4 + bb) * 4, 4), vr(v.P + 4 * t, 4), vr(v.O + 16 * bb, 16))


def F(r):
    return "v_fmamk_f32 v%d, v%d, %s, v%d" % (v.X + r, v.S + r, CL, v.nmc)


def ex(r):
    return "v_exp_f32 v%d, v%d" % (v.E + r % 8, v.X + r)


def add(r):
    if r == 0:
        return None
    if r == 1:
        return "v_add_f32 v%d, v%d, v%d" % (v.ps, v.E, v.E + 1)
    return "v_add_f32 v%d, v%d, v%d" % (v.ps, v.ps, v.E + r % 8)


def cvt(i):
    return "v_cvt_pk_bf16_f32 v%d, v%d, v%d" % (v.P + i, v.E + (2 * i) % 8, v.E + (2 * i + 1) % 8)


def soft_half_plain(h):
    r = [ex(8 * h + i) for i in range(8)]
    r += [x for x in (add(8 * h + i) for i in range(8)) if x]
    r += [cvt(4 * h + i) for i in range(4)]
    return r


CMP = "v_cmp_lt_f32 vcc, s%d, v%d" % (s.thr, v.ps)
LADD = "v_add_f32 v%d, v%d, v%d" % (v.l, v.l, v.ps)
PRGW = "ds_write_b32 v%d, v%d" % (v.prga, v.prg)
RDYR = "ds_read_b32 v%d, v%d" % (v.rdy, v.rdya)
PRGINC = "v_add_u32 v%d, s%d, v%d" % (v.prg, s.inc, v.prg)
NEEDINC = "s_add_u32 s%d, s%d, s%d" % (s.need, s.need, s.inc)
QK0 = "v_mfma_f32_32x32x16_bf16 %s, %s, %s, 0" % (vr(v.S, 16), vr(v.KF, 4), vr(v.Q, 4))
QK0M = "v_mfma_f32_32x32x16_bf16 %s, %s, %s, %s" % (vr(v.S, 16), vr(v.KF, 4), vr(v.Q, 4), vr(v.B, 16))
rets, srets = [], []


def newret():
    rets.append("L_ret%d" % len(rets))
    return len(rets) - 1


def kaddr():
    return ["v_add_u32 v%d, s%d, v%d" % (v.ka0, s.koff, v.ka0r),
            "v_add_u32 v%d, s%d, v%d" % (v.ka1, s.koff, v.ka1r)]


def vaddr():
    return ["v_add_u32 v%d, s%d, v%d" % (v.va + j, s.voff, v.var + j) for j in range(4)]


def adv(reg):
    return ["s_add_u32 s%d, s%d, s%d" % (reg, reg, s.astep), "s_and_b32 s%d, s%d, 0x1ffff" % (reg, reg)]


def spin(n="1"):
    r = ["s_sleep %s" % n]
    if not OPT.get("nosafe"):
        r += ["s_sub_u32 s%d, s%d, 1" % (s.guard, s.guard), "s_cbranch_scc1 L_end"]
    return r


def sync_call(target=None):
    k = len(srets)
    srets.append(target or "L_sr%d" % k)
    return ["s_mov_b32 s%d, %d" % (s.sret, k), "s_branch L_sync"] + ([] if target else ["L_sr%d:" % k])


_pl = [0]


ool = []


def poll_rdy():
    _pl[0] += 1
    a, b = "L_pa%d" % _pl[0], "L_pb%d" % _pl[0]
    ool.append([a + ":"] + spin() + [RDYR, "s_waitcnt lgkmcnt(0)", "s_branch %s" % b])
    return ["s_min_u32 s%d, s%d, s%d" % (s.t2, s.need, s.n), b + ":",
            "v_cmp_ge_u32 vcc, s%d, v%d" % (s.t2, v.rdy), "s_cbranch_vccnz %s" % a]


def body(kind):
    odd, hlp = kind != "even", kind == "hlp"
    st = 0 if odd else 1
    V = lambda i: vread(i, st)
    K = lambda t: kread(t, v.KF, st)
    W = lambda n: "s_waitcnt lgkmcnt(%d)" % n
    k = newret()
    q = [
        [NEEDINC, V(0), V(1), ex(8), add(7), cvt(3)],
        ["s_mov_b32 s%d, %d" % (s.ret, k), V(2), V(3), ex(9), ex(10)],
        [W(4), V(4), V(5), ex(11), add(8), add(9)],
        ["s_sub_u32 s%d, s%d, 1" % (s.U, s.U), V(6), V(7), ex(12), ex(13)],
        [None, V(8), V(9), ex(14), add(10), add(11)],
        [None, V(10), V(11), ex(15), add(12), add(13)],
        [W(4), V(12), V(13), add(14), add(15), CMP, cvt(4)],
        ["s_cbranch_vccnz L_resc", "L_ret%d:" % k, V(14), V(15), LADD, cvt(5), cvt(6), cvt(7)],
    ]
    p = [
        ["s_nop 0", K(0), K(1), K(2), F(0), F(1), F(2)],
        [None, K(3), ex(0), F(3), F(4), F(5)],
        [None, K(4), ex(1), F(6), F(7), F(8)],
        [W(5), K(5), ex(2), add(1), F(9), F(10)],
        [None, K(6), ex(3), add(2), cvt(0), F(11)],
        [None, K(7), ex(4), add(3), cvt(1), F(12)],
        [W(4), ex(5), ex(6), add(4), F(13)],
        [None, ex(7), add(5), add(6), cvt(2), F(14), F(15)],
    ]
    if odd:
        q[4][0], q[5][0] = adv(s.voff)
        p[4][0], p[5][0] = adv(s.koff)
        va, ka = vaddr(), kaddr()
        p[1].append(va[0])
        p[3].append(va[1])
        p[4].append(va[2])
        p[5].append(va[3])
        p[6].append(ka[0])
        p[7].append(ka[1])
    if not hlp:
        p[0][0] = "s_min_u32 s%d, s%d, s%d" % (s.chk, s.need, s.n)
        p[1][0] = "s_bitcmp1_b32 s%d, s%d" % (s.far + 5, s.U)
        p[2][0] = "s_cselect_b32 s%d, -1, s%d" % (s.chk, s.chk)
        p[2][2:2] = [RDYR]
        p[6][0] = W(3)
        if odd and (not OPT.get("nodpub")):
            q[2].append("v_add_u32 v%d, 8, v%d" % (v.fo, v.fo))
            q[3][1:1] = ["global_load_lds_dword v%d, %s" % (v.fo, sr(s.pc, 2))]
        p[7][3:3] = ["v_cmp_ge_u32 vcc, s%d, v%d" % (s.chk, v.rdy)]
    else:
        q[1].append(PRGINC)
        q[7][4:4] = [PRGW]
        sc = sync_call()
        q[3][1:1] = [sc[0]]
        p[0][0:1] = stamp_l() + sc[1:] + stamp_l()
    lab("L_%s_m" % kind)
    e(QK0)
    lab("L_%s_a" % kind)
    emit(q[0])
    for t in range(1, 8):
        e(qk(t))
        emit(q[t])
    for i in range(8):
        e(pv(i))
        emit(p[i])
    if not hlp:
        stamp()


def gen():
    K = NAME + "_kernel"
    near, far, _ = build_tables()
    PACE = int(OPT.get("pace", "0"))
    out.append(HEADER + "; @launch grid=(256,1,1) block=(512,1,1) lds=%d" % LDS_TOTAL)
    out.append('.amdgcn_target "amdgcn-amd-amdhsa--gfx950"')
    out.append(".text")
    out.append(".globl " + K)
    out.append(".p2align 12")
    out.append(".p2align 8")
    out.append(".type %s,@function" % K)
    lab(K)
    e("s_cmp_ge_u32 s2, 256")
    e("s_cbranch_scc1 L_end")
    if SPIN:
        e("s_memrealtime s[%d:%d]" % (s.ws, s.ws + 1))
        e("s_memrealtime s[%d:%d]" % (s.stp, s.stp + 1))
    e("s_load_dwordx8 s[4:11], s[0:1], 0")
    e("s_load_dwordx2 s[12:13], s[0:1], 32")
    e("s_getpc_b64 %s" % sr(s.pc, 2))
    lab("L_pc")
    e("s_lshr_b32 s%d, s2, 4" % s.t0)
    e("s_lshl_b32 s%d, s%d, 5" % (s.t1, s.t0))
    e("s_add_u32 s%d, s%d, L_near-L_pc" % (s.t1, s.t1))
    e("s_load_dwordx8 %s, %s, s%d" % (sr(s.near, 8), sr(s.pc, 2), s.t1))
    e("v_mul_u32_u24 v%d, PFSTRIDE, v0" % v.t0)
    e("global_load_dword v%d, v%d, %s" % (v.pf, v.t0, sr(s.pc, 2)))
    e("s_branch L_start")
    out.append(".p2align 5")
    out.append(".type L_near,@object")
    lab("L_near")
    for ent in near:
        out.append("    .long " + ", ".join("0x%x" % x for x in ent))
    out.append(".size L_near, .-L_near")
    out.append(".type L_start,@function")
    lab("L_start")
    if STAMPS:
        e("v_mov_b32 v%d, 0" % v.st)
        e("s_mov_b32 s%d, 8" % s.sti)
        e("s_memrealtime s[%d:%d]" % (s.stp, s.stp + 1))
        e("s_memtime s[%d:%d]" % (s.ws, s.ws + 1))
    L, N, Fa = v.lane, s.near, s.far
    e("v_lshrrev_b32 v%d, 6, v0" % v.t0)
    e("v_and_b32 v%d, 63, v0" % L)
    e("v_readfirstlane_b32 s%d, v%d" % (s.wave, v.t0))
    hm_ = OPT.get("hmap", "0")
    if hm_ == "2":
        e("s_and_b32 s%d, s2, 15" % s.t1)
        e("s_lshl_b32 s%d, s%d, 8" % (s.hoff, s.t1))
    elif hm_ == "3":
        e("s_and_b32 s%d, s2, 7" % s.t1)
        e("s_lshl_b32 s%d, s%d, 9" % (s.t1, s.t1))
        e("s_bfe_u32 s%d, s2, 0x10003" % s.t2)
        e("s_mul_i32 s%d, s%d, 0x300" % (s.t2, s.t2))
        e("s_xor_b32 s%d, s%d, s%d" % (s.hoff, s.t1, s.t2))
    else:
        if hm_ == "1":
            e("s_add_u32 s%d, s2, 1" % s.t1)
            e("s_and_b32 s%d, s%d, 7" % (s.t1, s.t1))
        else:
            e("s_and_b32 s%d, s2, 7" % s.t1)
        e("s_lshl_b32 s%d, s%d, 9" % (s.t1, s.t1))
        e("s_bfe_u32 s%d, s2, 0x10003" % s.t2)
        e("s_lshl_b32 s%d, s%d, 8" % (s.t2, s.t2))
        e("s_add_u32 s%d, s%d, s%d" % (s.hoff, s.t1, s.t2))
    e("s_lshl_b32 s%d, s%d, 3" % (s.t0, s.t0))
    e("s_add_u32 s%d, s%d, s%d" % (s.t0, s.t0, s.wave))
    e("s_lshl_b32 s%d, s%d, 5" % (s.t0, s.t0))
    e("s_add_u32 s%d, s%d, L_far-L_pc" % (s.foff, s.t0))
    e("s_cmp_lt_u32 s%d, 4" % s.wave)
    e("s_cbranch_scc1 L_mainpro")
    e("s_and_b32 s%d, s%d, 1" % (s.t0, s.wave))
    e("s_lshl_b32 s%d, s%d, 1" % (s.t0, s.t0))
    e("v_lshrrev_b32 v%d, 5, v%d" % (v.t0, L))
    e("v_add_u32 v%d, s%d, v%d" % (v.t0, s.t0, v.t0))
    e("v_and_b32 v%d, 3, v%d" % (v.t1, L))
    e("v_xor_b32 v%d, v%d, v%d" % (v.t1, v.t1, v.t0))
    e("v_and_b32 v%d, 12, v%d" % (v.t2, L))
    e("v_add_u32 v%d, v%d, v%d" % (v.t0, v.t0, v.t2))
    e("s_bfe_u32 s%d, s%d, 0x10001" % (s.t1, s.wave))
    e("s_lshl_b32 s%d, s%d, 16" % (s.t1, s.t1))
    e("v_lshlrev_b32 v%d, 12, v%d" % (v.t0, v.t0))
    e("v_lshl_add_u32 v%d, v%d, 4, v%d" % (v.t0, v.t1, v.t0))
    e("v_and_b32 v%d, 16, v%d" % (v.t2, L))
    e("v_lshl_add_u32 v%d, v%d, 2, v%d" % (v.t0, v.t2, v.t0))
    e("v_add_u32 v%d, s%d, v%d" % (v.kd0, s.t1, v.t0))
    e("v_add_u32 v%d, 0x80, v%d" % (v.kd1, v.kd0))
    e("s_and_b32 s%d, s%d, 3" % (s.t3, s.wave))
    e("s_lshl_b32 s%d, s%d, 12" % (s.dslot, s.t3))
    e("s_sub_u32 s%d, %d, s%d" % (s.sq + 2, TENSOR_BYTES, s.hoff))
    for b in (s.sq, s.kA, s.kB, s.vA, s.vB):
        e("s_mov_b32 s%d, 0x20000" % (b + 3))
    e("s_mov_b32 s%d, 0" % s.soff)
    e("s_add_u32 s%d, s%d, %d" % (s.d0, s.dslot, QBASE))
    e("s_waitcnt lgkmcnt(0)")
    if STAMPS:
        e("v_writelane_b32 v%d, s%d, 0" % (v.st, s.stp))
        e("v_writelane_b32 v%d, s%d, 1" % (v.st, s.ws))
        stamp(2)
        e("s_load_dwordx2 %s, s[0:1], %d" % (sr(s.ws, 2), 40 if OPT.get("dbg") else 48))
    mark("karg")

    def qtile(i):
        w = N + 5 + i // 2
        r = ["s_and_b32 s%d, s%d, 0xffff" % (s.t0, w) if i % 2 == 0 else "s_lshr_b32 s%d, s%d, 16" % (s.t0, w),
             "s_add_u32 m0, s%d, %d" % (s.d0, (i // 4) * 32768 + (i % 4) * 1024),
             "s_lshl_b32 s%d, s%d, 12" % (s.t0, s.t0),
             "buffer_load_dwordx4 v%d, %s, s%d offen %s lds" % (v.kd0, sr(s.sq, 4), s.t0, LDF_Q),
             "s_add_u32 m0, m0, 0x4000", "s_nop 0",
             "buffer_load_dwordx4 v%d, %s, s%d offen %s lds" % (v.kd1, sr(s.sq, 4), s.t0, LDF_Q)]
        return r
    e("s_add_u32 s%d, s%d, s%d" % (s.sq, s.q, s.hoff))
    e("s_addc_u32 s%d, s%d, 0" % (s.sq + 1, s.q + 1))
    emit(qtile(0))
    e("s_add_u32 s%d, s%d, s%d" % (N + 0, N + 0, s.hoff))
    e("s_add_u32 s%d, s%d, s%d" % (s.kA, s.k, N + 0))
    e("s_addc_u32 s%d, s%d, 0" % (s.kA + 1, s.k + 1))
    e("s_sub_u32 s%d, s%d, 1024" % (s.kA, s.kA))
    e("s_subb_u32 s%d, s%d, 0" % (s.kA + 1, s.kA + 1))
    e("s_add_u32 s%d, s%d, 1024" % (s.kA + 2, N + 1))
    emit(chunk(0, True, flag=False))
    for i in (1, 2, 3):
        emit(qtile(i))
    e("s_add_u32 s%d, s%d, s%d" % (N + 2, N + 2, s.hoff))
    e("s_add_u32 s%d, s%d, s%d" % (s.kB, s.k, N + 2))
    e("s_addc_u32 s%d, s%d, 0" % (s.kB + 1, s.k + 1))
    e("s_mov_b32 s%d, s%d" % (s.kB + 2, N + 3))
    e("s_and_b32 s%d, s%d, 0xfffff000" % (s.stepb, N + 4))
    e("s_lshl_b32 s%d, s%d, 8" % (s.rdw, s.t3))
    e("s_add_u32 s%d, s%d, %d" % (s.rdw, s.rdw, RDYB))
    e("v_mov_b32 v%d, L_cnt-L_pc" % v.fo)
    for (srd, off, nr, d) in ((s.vA, N + 0, N + 1, 3072), (s.vB, N + 2, N + 3, 2048)):
        e("s_add_u32 s%d, s%d, %d" % (s.t0, s.stepb, d))
        e("s_add_u32 s%d, s%d, s%d" % (srd, s.vv, off))
        e("s_addc_u32 s%d, s%d, 0" % (srd + 1, s.vv + 1))
        e("s_sub_u32 s%d, s%d, s%d" % (srd, srd, s.t0))
        e("s_subb_u32 s%d, s%d, 0" % (srd + 1, srd + 1))
        e("s_add_u32 s%d, s%d, s%d" % (srd + 2, nr, s.t0))
    e("v_bfe_u32 v%d, v%d, 2, 2" % (v.t0, L))
    e("v_lshlrev_b32 v%d, 12, v%d" % (v.t0, v.t0))
    e("v_and_b32 v%d, 3, v%d" % (v.t1, L))
    e("v_lshl_add_u32 v%d, v%d, 4, v%d" % (v.t0, v.t1, v.t0))
    e("v_lshrrev_b32 v%d, 4, v%d" % (v.t1, L))
    e("v_lshl_add_u32 v%d, v%d, 6, v%d" % (v.t0, v.t1, v.t0))
    e("s_lshl_b32 s%d, s%d, 14" % (s.t3, s.t3))
    e("v_add_u32 v%d, s%d, v%d" % (v.vd0, s.t3, v.t0))
    e("v_add_u32 v%d, 0x10000, v%d" % (v.vd1, v.vd0))
    e("v_and_b32 v%d, 7, v%d" % (v.t0, L))
    e("v_mul_u32_u24 v%d, 0x104, v%d" % (v.t0, v.t0))
    e("v_add_u32 v%d, %d, v%d" % (v.pra, PRGB, v.t0))
    stamp(3)
    e("s_setprio %s" % OPT.get("hprio", "3"))
    e("s_branch L_common")
    lab("L_mainpro")
    for b in (s.sq, s.kA, s.kB, s.vA, s.vB):
        e("s_mov_b64 %s, s[0:1]" % sr(b, 2))
        e("s_mov_b32 s%d, 0" % (b + 2))
        e("s_mov_b32 s%d, 0x20000" % (b + 3))
    for r in (v.kd0, v.kd1, v.vd0, v.vd1, v.fo):
        e("v_mov_b32 v%d, 0" % r)
    if STAMPS:
        e("s_waitcnt lgkmcnt(0)")
        e("v_writelane_b32 v%d, s%d, 0" % (v.st, s.stp))
        e("v_writelane_b32 v%d, s%d, 1" % (v.st, s.ws))
        stamp(2)
        e("s_load_dwordx2 %s, s[0:1], %d" % (sr(s.ws, 2), 40 if OPT.get("dbg") else 48))
    lab("L_common")
    e("s_lshl_b32 s%d, s%d, 8" % (s.t0, s.wave))
    e("s_add_u32 s%d, s%d, %d" % (s.t0, s.t0, PRGB - 4096))
    e("v_lshl_add_u32 v%d, v%d, 2, s%d" % (v.prga, L, s.t0))
    e("v_mov_b32 v%d, 0" % v.l)
    e("ds_write_b32 v%d, v%d" % (v.prga, v.l))
    e("ds_write_b32 v%d, v%d offset:4096" % (v.prga, v.l))
    e("v_add_u32 v%d, 0x1000, v%d" % (v.prga, v.prga))
    e("s_waitcnt lgkmcnt(0)")
    e("s_load_dwordx8 %s, %s, s%d" % (sr(Fa, 8), sr(s.pc, 2), s.foff))
    e("s_barrier")
    e("s_cmp_lt_u32 s%d, 4" % s.wave)
    e("s_cbranch_scc1 L_common2")
    emit(FLAG + chunk(1, True) + STEP_ADV + chunk(0))
    lab("L_common2")
    e("v_bfe_u32 v%d, v%d, 4, 1" % (v.t0, L))
    e("v_lshlrev_b32 v%d, 13, v%d" % (v.t0, v.t0))
    e("v_bfe_u32 v%d, v%d, 1, 1" % (v.t1, L))
    e("v_lshl_add_u32 v%d, v%d, 12, v%d" % (v.t0, v.t1, v.t0))
    e("v_and_b32 v%d, 1, v%d" % (v.t1, L))
    e("v_lshl_add_u32 v%d, v%d, 9, v%d" % (v.t0, v.t1, v.t0))
    e("v_bfe_u32 v%d, v%d, 2, 2" % (v.t1, L))
    e("v_lshl_add_u32 v%d, v%d, 6, v%d" % (v.t0, v.t1, v.t0))
    e("v_lshrrev_b32 v%d, 5, v%d" % (v.t1, L))
    e("v_and_b32 v%d, 3, v%d" % (v.t2, L))
    e("v_xor_b32 v%d, v%d, v%d" % (v.t1, v.t1, v.t2))
    e("v_lshl_add_u32 v%d, v%d, 4, v%d" % (v.ka0r, v.t1, v.t0))
    e("v_xor_b32 v%d, 32, v%d" % (v.ka1r, v.ka0r))
    e("v_lshrrev_b32 v%d, 5, v%d" % (v.t0, L))
    e("v_lshlrev_b32 v%d, 12, v%d" % (v.t0, v.t0))
    e("v_bfe_u32 v%d, v%d, 2, 2" % (v.t1, L))
    e("v_lshl_add_u32 v%d, v%d, 6, v%d" % (v.t0, v.t1, v.t0))
    e("v_bfe_u32 v%d, v%d, 4, 1" % (v.t1, L))
    e("v_lshl_add_u32 v%d, v%d, 5, v%d" % (v.t0, v.t1, v.t0))
    e("v_lshl_add_u32 v%d, v%d, 3, v%d" % (v.t0, v.t2, v.t0))
    e("v_add_u32 v%d, 0x800, v%d" % (v.var, v.t0))
    e("s_mov_b32 s%d, 0x%x" % (s.thr, f2u(THRESH)))
    e("v_mul_u32_u24 v%d, 0x104, v%d" % (v.t1, v.t2))
    e("v_add_u32 v%d, %d, v%d" % (v.rdya, RDYB, v.t1))
    e("s_mov_b32 s%d, 0x8000" % s.guard)
    e("v_mov_b32 v%d, 0" % v.rdy)
    e("s_waitcnt lgkmcnt(0)")
    e("s_add_u32 s%d, s%d, s%d" % (s.t0, Fa + 0, s.hoff))
    e("s_add_u32 s%d, s%d, s%d" % (s.so, s.out, s.t0))
    e("s_addc_u32 s%d, s%d, 0" % (s.so + 1, s.out + 1))
    e("s_mov_b32 s%d, s%d" % (s.so + 2, Fa + 1))
    e("s_mov_b32 s%d, 0x20000" % (s.so + 3))
    e("s_and_b32 s%d, s%d, 0xff" % (s.n, N + 4))
    e("s_bfe_u32 s%d, s%d, 0x40008" % (s.t3, Fa + 2))
    e("s_cbranch_scc1 L_work")
    e("v_mov_b32 v%d, %d" % (v.prg, BIG))
    e(PRGW)
    e("s_cmp_lt_u32 s%d, 4" % s.wave)
    e("s_cbranch_scc1 L_fin")
    e("s_branch L_presig")
    lab("L_work")
    for r in range(0, 64, 2):
        e("v_pk_mov_b32 %s, 0, 0" % vr(v.O + r, 2))
    e("s_and_b32 s%d, s%d, 0xff" % (s.U, Fa + 2))
    e("s_bfe_u32 s%d, s%d, 0x4000c" % (s.inc, Fa + 2))
    e("s_and_b32 s%d, s%d, 0xfffff" % (s.reg, Fa + 4))
    e("s_bfe_u32 s%d, s%d, 0x80010" % (s.t0, Fa + 2))
    e("s_sub_u32 s%d, s%d, 1" % (s.t0, s.t0))
    e("v_lshrrev_b32 v%d, 5, v%d" % (v.t0, L))
    e("v_lshlrev_b32 v%d, 2, v%d" % (v.t0, v.t0))
    e("v_sub_u32 v%d, s%d, v%d" % (v.t0, s.t0, v.t0))
    e("v_mov_b32 v%d, 0xff800000" % v.t1)
    for r in range(16):
        cst = 8 * (r // 4) + r % 4
        e("v_subrev_u32 v%d, %d, v%d" % (v.B + r, cst, v.t0))
        e("v_ashrrev_i32 v%d, 31, v%d" % (v.B + r, v.B + r))
        e("v_and_b32 v%d, v%d, v%d" % (v.B + r, v.t1, v.B + r))
    e("s_bfe_u32 s%d, s%d, 0x20014" % (s.t0, Fa + 4))
    e("s_lshl_b32 s%d, s%d, 10" % (s.t0, s.t0))
    e("s_bfe_u32 s%d, s%d, 0x10016" % (s.t1, Fa + 4))
    e("s_lshl_b32 s%d, s%d, 15" % (s.t1, s.t1))
    e("s_add_u32 s%d, s%d, s%d" % (s.t0, s.t0, s.t1))
    e("s_add_u32 s%d, s%d, %d" % (s.koff, s.t0, QBASE))
    emit(kaddr())
    e("s_cmp_lg_u32 s%d, 1" % s.t3)
    e("s_cselect_b32 s%d, 1, 0" % s.m1)
    e("s_bfe_u32 s%d, s%d, 0x2001a" % (s.t0, Fa + 4))
    e("s_lshl_b32 s%d, s%d, 15" % (s.astep, s.t0))
    e("s_bfe_u32 s%d, s%d, 0x10019" % (s.t2, Fa + 4))
    e("s_bfe_u32 s%d, s%d, 0x10018" % (s.t0, Fa + 4))
    e("s_lshl_b32 s%d, s%d, 10" % (s.t0, s.t0))
    e("s_mul_i32 s%d, s%d, s%d" % (s.t1, s.t0, s.m1))
    e("s_sub_u32 s%d, s%d, s%d" % (s.t0, s.t0, s.t1))
    e("s_lshl_b32 s%d, s%d, 15" % (s.voff, s.t2))
    e("s_add_u32 s%d, s%d, s%d" % (s.koff, s.voff, s.t0))
    e("s_add_u32 s%d, s%d, 0x8000" % (s.voff, s.voff))
    e("v_add_u32 v%d, s%d, v%d" % (v.ka0r, s.t1, v.ka0r))
    e("v_add_u32 v%d, s%d, v%d" % (v.ka1r, s.t1, v.ka1r))
    e("s_bfe_u32 s%d, s%d, 0x2001c" % (s.t0, Fa + 2))
    for j in (3, 2, 1, 0):
        e("s_add_u32 s%d, s%d, %d" % (s.col, s.t0, j))
        e("s_and_b32 s%d, s%d, 3" % (s.col, s.col))
        e("s_lshl_b32 s%d, s%d, 8" % (s.col, s.col))
        e("s_add_u32 s%d, s%d, s%d" % (s.col, s.col, s.t1))
        e("v_add_u32 v%d, s%d, v%d" % (v.var + j, s.col, v.var))
    emit(vaddr())
    e("s_and_b32 s%d, s%d, 0xff" % (s.t0, Fa + 3))
    e("v_mov_b32 v%d, s%d" % (v.prg, s.t0))
    e("s_bfe_u32 s%d, s%d, 0x80010" % (s.need, Fa + 3))
    e("s_cmp_lt_u32 s%d, 4" % s.wave)
    e("s_cbranch_scc1 L_sig0")
    e(PRGW)
    lab("L_presig")
    emit(qtile(4) + qtile(5))
    emit(chunk(1) + STEP_ADV)
    e("s_mov_b32 s%d, 4" % s.iss)
    stamp()
    e("s_cmp_eq_u32 s%d, 0" % s.t3)
    e("s_cbranch_scc1 L_hdone")
    emit(sync_call("L_head"))
    lab("L_sig0")
    stamp()
    emit(poll_rdy())
    mark("sig0")
    stamp()
    lab("L_head")
    for t in range(8):
        e(kread(t, v.Q))
    e(PRGW)
    emit(kaddr())
    e("s_waitcnt lgkmcnt(5)")
    for t in range(8):
        e(kread(t, v.KF))
    e("s_add_u32 s%d, s%d, s%d" % (s.t0, s.koff, s.astep))
    e("s_mul_i32 s%d, s%d, s%d" % (s.koff, s.t0, s.m1))
    e("s_lshr_b32 s%d, s%d, 24" % (s.need, Fa + 3))
    e("s_bfe_u32 s%d, s%d, 0x80008" % (s.t0, Fa + 3))
    e("v_mov_b32 v%d, s%d" % (v.prg, s.t0))
    e("s_waitcnt lgkmcnt(7)")
    e(QK0)
    for t in range(1, 8):
        e("s_waitcnt lgkmcnt(%d)" % (7 - t))
        e(qk(t))
    emit(kaddr())
    emit(adv(s.koff))
    e("s_nop 8")
    e("v_max3_f32 v%d, v%d, v%d, v%d" % (v.t0, v.S, v.S + 1, v.S + 2))
    for r in range(3, 15, 2):
        e("v_max3_f32 v%d, v%d, v%d, v%d" % (v.t0, v.t0, v.S + r, v.S + r + 1))
    e("v_max_f32 v%d, v%d, v%d" % (v.t0, v.t0, v.S + 15))
    e("v_mov_b32 v%d, v%d" % (v.t1, v.t0))
    e("s_nop 1")
    e("v_permlane32_swap_b32 v%d, v%d" % (v.t0, v.t1))
    e("s_nop 1")
    e("v_max_f32 v%d, v%d, v%d" % (v.t0, v.t0, v.t1))
    e("v_mul_f32 v%d, 0x%x, v%d" % (v.nmc, f2u(-C_SCALE), v.t0))
    for r in range(16):
        e(F(r))
    e(RDYR)
    emit([ex(i) for i in range(8)] + [add(i) for i in range(1, 7)] + [cvt(0), cvt(1), cvt(2)])
    e("s_cmp_lt_u32 s%d, 4" % s.wave)
    e("s_waitcnt lgkmcnt(0)")
    e("s_cbranch_scc0 L_hlp_in")
    stamp()
    emit(poll_rdy())
    mark("loop")
    stamp()
    for t in range(8):
        e(kread(t, v.KF))
    emit(kaddr())
    if (not OPT.get("nodpub")):
        e("s_bfe_u32 s%d, s%d, 0x80008" % (s.t0, Fa + 3))
        e("s_sub_u32 s%d, s%d, s%d" % (s.t0, s.t0, s.m1))
        e("s_lshl_b32 s%d, s%d, 2" % (s.t0, s.t0))
        e("s_add_u32 s%d, s%d, L_cnt-L_pc-4" % (s.t0, s.t0))
        e("v_mov_b32 v%d, s%d" % (v.fo, s.t0))
        e("s_lshl_b32 s%d, s%d, 8" % (s.t0, s.wave))
        e("s_add_u32 m0, s%d, %d" % (s.t0, PRGB))
    e("s_cmp_eq_u32 s%d, 1" % s.m1)
    e("s_waitcnt lgkmcnt(4)")
    e("s_cbranch_scc1 L_odd_m")
    out.append(".p2align 4")
    body("even")
    e("s_cbranch_vccnz L_hnd_even")
    body("odd")
    e("s_cbranch_vccz L_even_m")
    e("s_add_u32 s%d, s%d, 16" % (s.t0, s.U))
    e("s_bitcmp0_b32 s%d, s%d" % (Fa + 5, s.t0))
    e("s_cbranch_scc1 L_np1")
    e("s_add_u32 s%d, s%d, s%d" % (s.t0, s.need, Fa + 6))
    e("v_mov_b32 v%d, s%d" % (v.prg, s.t0))
    e(PRGW)
    lab("L_np1")
    emit(poll_rdy())
    e("s_cmp_le_u32 s%d, 1" % s.U)
    e("s_cbranch_scc1 L_ho1")
    e("s_cmp_eq_u32 s%d, 0" % s.m1)
    e("s_cbranch_scc0 L_odd_m")
    e("s_branch L_even_m")
    lab("L_ho1")
    e("s_cmp_eq_u32 s%d, 0" % s.U)
    e("s_cbranch_scc1 L_tail0")
    e("s_cmp_eq_u32 s%d, 0" % s.m1)
    e(QK0M)
    e("s_cbranch_scc1 L_even_a")
    e("s_branch L_odd_a")
    lab("L_hnd_even")
    e("s_add_u32 s%d, s%d, 16" % (s.t0, s.U))
    e("s_bitcmp0_b32 s%d, s%d" % (Fa + 5, s.t0))
    e("s_cbranch_scc1 L_np2")
    e("s_add_u32 s%d, s%d, s%d" % (s.t0, s.need, Fa + 6))
    e("v_mov_b32 v%d, s%d" % (v.prg, s.t0))
    e(PRGW)
    lab("L_np2")
    emit(poll_rdy())
    e("s_cmp_gt_u32 s%d, 1" % s.U)
    e("s_cbranch_scc1 L_odd_m")
    e("s_cmp_eq_u32 s%d, 0" % s.U)
    e("s_cbranch_scc1 L_tail")
    e(QK0M)
    e("s_branch L_odd_a")
    lab("L_hlp_in")
    e(PRGW)
    stamp()
    emit(sync_call())
    stamp()
    for t in range(8):
        e(kread(t, v.KF))
    emit(kaddr())
    e("s_waitcnt lgkmcnt(4)")
    e("s_branch L_hnd_hlp")
    body("hlp")
    lab("L_hnd_hlp")
    e("s_cmp_gt_u32 s%d, 1" % s.U)
    e("s_cbranch_scc1 L_hlp_m")
    e("s_cmp_eq_u32 s%d, 0" % s.U)
    e("s_cbranch_scc1 L_tail")
    e(QK0M)
    e("s_branch L_hlp_a")
    lab("L_tail0")
    e("s_cmp_eq_u32 s%d, 1" % s.m1)
    e("s_cbranch_scc1 L_tail")
    for j in range(4):
        e("v_add_u32 v%d, 0x400, v%d" % (v.va + j, v.va + j))
    lab("L_tail")
    mark("tail")
    k = newret()
    vord = [0, 1, 8, 9, 2, 3, 10, 11, 4, 5, 12, 13, 6, 7, 14, 15]
    for i in vord[:12]:
        e(vread(i))
    emit([ex(8), add(7), cvt(3)] + [ex(i) for i in range(9, 16)])
    e("v_mov_b32 v%d, %d" % (v.prg, BIG))
    if (not OPT.get("nodpub")):
        e("s_cmp_lt_u32 s%d, 4" % s.wave)
        e("s_cbranch_scc0 L_t1")
        e("s_waitcnt vmcnt(0)")
        lab("L_t1")
    for i in vord[12:]:
        e(vread(i))
    e(PRGW)
    emit([add(i) for i in range(8, 16)] + [CMP, cvt(4), "s_mov_b32 s%d, %d" % (s.ret, k), "s_cbranch_vccnz L_resc",
                                           "L_ret%d:" % k, cvt(5), cvt(6), cvt(7), LADD])
    e("s_cmp_lt_u32 s%d, 4" % s.wave)
    e("s_waitcnt lgkmcnt(0)")
    e("s_cbranch_scc0 L_htail")
    lab("L_tail2")
    tw, tr0, oo, rl = v.ka1, v.va, v.ka1r, v.X + 2

    def lsum():
        return ["v_mov_b32 v%d, v%d" % (v.t0, v.l), "s_nop 1",
                "v_permlane32_swap_b32 v%d, v%d" % (v.l, v.t0), "s_nop 1",
                "v_add_f32 v%d, v%d, v%d" % (v.l, v.l, v.t0)]

    def st_addr():
        r = ["v_and_b32 v%d, 31, v%d" % (v.t0, L),
             "v_lshrrev_b32 v%d, 5, v%d" % (v.t1, L),
             "v_lshlrev_b32 v%d, 3, v%d" % (v.t1, v.t1),
             "v_and_b32 v%d, 7, v%d" % (v.t2, L),
             "v_lshl_add_u32 v%d, v%d, 4, v%d" % (v.t1, v.t2, v.t1),
             "v_lshl_add_u32 v%d, v%d, 7, v%d" % (v.t0, v.t0, v.t1),
             "v_add_u32 v%d, s%d, v%d" % (tw, s.reg, v.t0)]
        r += ["v_xor_b32 v%d, %d, v%d" % (v.E + c, c * 16, tw) for c in range(8)]
        r += ["v_lshrrev_b32 v%d, 3, v%d" % (v.t0, L),
              "v_xor_b32 v%d, v%d, v%d" % (v.t1, v.t2, v.t0),
              "v_lshlrev_b32 v%d, 4, v%d" % (v.t1, v.t1),
              "v_lshl_add_u32 v%d, v%d, 7, v%d" % (v.t1, v.t0, v.t1),
              "v_add_u32 v%d, s%d, v%d" % (tr0, s.reg, v.t1),
              "v_lshlrev_b32 v%d, 12, v%d" % (v.t0, v.t0),
              "v_lshl_add_u32 v%d, v%d, 4, v%d" % (oo, v.t2, v.t0)]
        return r

    def pack_q(bb, norm=True):
        r = []
        for g in range(4):
            c = 4 * bb + g
            o = v.O + 4 * c
            d = v.S + 2 * c
            if norm:
                r += ["v_pk_mul_f32 %s, %s, %s op_sel_hi:[1,0]" % (vr(o + i, 2), vr(o + i, 2), vr(rl, 2)) for i in (0, 2)]
            r += ["v_cvt_pk_bf16_f32 v%d, v%d, v%d" % (d, o, o + 1),
                  "v_cvt_pk_bf16_f32 v%d, v%d, v%d" % (d + 1, o + 2, o + 3),
                  "ds_write_b64 v%d, %s" % (v.E + c % 8, vr(d, 2))]
        return r

    def rd_half(hh):
        return ["ds_read_b128 %s, v%d offset:%d" % (vr(v.KF + 16 * hh + 4 * k, 4), tr0, k * 1024) for k in range(4)]

    def st_one(hh, k):
        return ["buffer_store_dwordx4 %s, v%d, %s, s%d offen offset:%d %s" % (
                    vr(v.KF + 16 * hh + 4 * k, 4), oo, sr(s.so, 4), s.col + k if k < 3 else s.t1, 128 * hh, STF)]

    sa = st_addr()
    emit([pv(0)] + lsum() + ["v_rcp_f32 v%d, v%d" % (rl, v.l)])
    emit([pv(4)] + sa[0:6])
    emit([pv(1)] + sa[6:12])
    emit([pv(5)] + sa[12:18])
    emit([pv(2)] + sa[18:] + ["s_mov_b32 s%d, 0" % s.col, "s_mov_b32 s%d, 0x8000" % (s.col + 1)])
    emit([pv(6), "s_mov_b32 s%d, 0x10000" % (s.col + 2), "s_mov_b32 s%d, 0x18000" % s.t1])
    emit([pv(3), pv(7)])
    stamp(5)
    emit(pack_q(0) + pack_q(1) + rd_half(0))
    p2 = pack_q(2)
    emit(p2[:10] + ["s_waitcnt lgkmcnt(5)"] + st_one(0, 0) + p2[10:] + ["s_waitcnt lgkmcnt(4)"] + st_one(0, 1))
    p3 = pack_q(3)
    emit(p3[:10] + st_one(0, 2) + p3[10:] + st_one(0, 3) + rd_half(1))
    stamp(4)
    for k in range(4):
        emit(["s_waitcnt lgkmcnt(%d)" % (3 - k)] + st_one(1, k))
    lab("L_fin")
    if SPIN:
        mark("st")
        e("s_waitcnt vmcnt(0)")
        mark("end")
        e("s_sub_u32 s%d, s%d, s%d" % (s.t0, s.stp, s.ws))
        e("s_mul_i32 s%d, s%d, 2" % (s.t0, s.t0))
        e("s_add_u32 s%d, s%d, 3000" % (s.t0, s.t0))
        lab("L_spin")
        e("s_sleep 2")
        e("s_memrealtime s[%d:%d]" % (s.stp, s.stp + 1))
        e("s_waitcnt lgkmcnt(0)")
        e("s_sub_u32 s%d, s%d, s%d" % (s.t1, s.stp, s.ws))
        e("s_cmp_lt_u32 s%d, s%d" % (s.t1, s.t0))
        e("s_cbranch_scc1 L_spin")
    if STAMPS:
        stamp(6)
        e("s_waitcnt vmcnt(0)")
        stamp(7)
        stamp(61, True)
        e("s_getreg_b32 s%d, hwreg(HW_REG_XCC_ID)" % s.stp)
        e("v_writelane_b32 v%d, s%d, 62" % (v.st, s.stp))
        e("s_lshl_b32 s%d, s2, 3" % s.t0)
        e("s_add_u32 s%d, s%d, s%d" % (s.t0, s.t0, s.wave))
        e("s_lshl_b32 s%d, s%d, 8" % (s.t0, s.t0))
        e("v_lshlrev_b32 v%d, 2, v%d" % (v.t0, v.lane))
        e("v_add_u32 v%d, s%d, v%d" % (v.t0, s.t0, v.t0))
        if OPT.get("dbg"):
            e("v_readlane_b32 s%d, v%d, 0" % (s.t0, v.st))
            e("v_readlane_b32 s%d, v%d, 61" % (s.t1, v.st))
            e("v_readlane_b32 s%d, v%d, 1" % (s.t2, v.st))
            e("s_not_b32 s%d, s%d" % (s.t3, s.t0))
            e("v_cmp_ne_u32 vcc, 0, v%d" % v.st)
            e("v_subrev_u32 v%d, s%d, v%d" % (v.t1, s.t2, v.st))
            e("s_nop 1")
            e("v_cndmask_b32 v%d, 0, v%d, vcc" % (v.t1, v.t1))
            e("v_writelane_b32 v%d, s%d, 0" % (v.t1, s.t3))
            e("v_writelane_b32 v%d, s%d, 1" % (v.t1, s.t1))
            e("v_writelane_b32 v%d, s%d, 15" % (v.t1, s.t0))
            e("v_lshlrev_b32 v%d, 2, v%d" % (v.t0, v.lane))
            e("s_cmp_lt_u32 s%d, 4" % s.wave)
            e("s_cselect_b32 s%d, 0xffff, 0x80ff" % s.t0 if False else "s_mov_b32 s%d, 0x80ff" % s.t0)
            e("s_cselect_b32 exec_lo, 0xffff, s%d" % s.t0)
            e("s_mov_b32 exec_hi, 0")
            e("global_atomic_umax v%d, v%d, %s" % (v.t0, v.t1, sr(s.ws, 2)))
        else:
            e("global_store_dword v%d, v%d, %s" % (v.t0, v.st, sr(s.ws, 2)))
    lab("L_end")
    e("s_endpgm")
    for blk in ool:
        emit(blk)
    lab("L_sync")
    e("s_setprio %s" % OPT.get("sprio", "0"))
    e("s_min_u32 s%d, s%d, s%d" % (s.t2, s.need, s.n))
    e("s_add_u32 s%d, s%d, %s" % (s.t3, s.t2, OPT.get("look", "2")))
    e("s_min_u32 s%d, s%d, s%d" % (s.t3, s.t3, s.n))
    lab("L_svc")
    e("ds_read_b32 v%d, v%d" % (v.t1, v.pra))
    e(RDYR)
    e("s_sub_i32 s%d, s%d, 5" % (s.t1, s.iss))
    e("s_cmp_gt_u32 s%d, s%d" % (s.iss, s.t3))
    e("s_waitcnt lgkmcnt(0)")
    e("s_cbranch_scc0 L_svc1")
    e("v_cmp_ge_u32 vcc, s%d, v%d" % (s.t2, v.rdy))
    e("s_cbranch_vccz L_svcx")
    e("s_cmp_gt_u32 s%d, s%d" % (s.iss, s.n))
    e("s_cbranch_scc1 L_svcs")
    lab("L_svc1")
    e("v_cmp_gt_i32 vcc, s%d, v%d" % (s.t1, v.t1))
    e("s_cbranch_vccnz L_svc2")
    e("s_add_u32 s%d, s%d, 1" % (s.iss, s.iss))
    if OPT.get("cap"):
        e("s_waitcnt vmcnt(%s)" % OPT["cap"])
    e("s_bitcmp0_b32 s%d, 0" % s.iss)
    e("s_cbranch_scc1 L_svcB")
    emit(chunk(0, pace=PACE))
    e("s_branch L_svc")
    lab("L_svcB")
    emit(chunk(1, pace=PACE) + STEP_ADV)
    e("s_branch L_svc")
    lab("L_svc2")
    e("v_cmp_ge_u32 vcc, s%d, v%d" % (s.t2, v.rdy))
    e("s_cbranch_vccz L_svcx")
    lab("L_svcs")
    emit(spin(OPT.get("slp", "2")))
    e("s_branch L_svc")
    lab("L_svcx")
    e("s_setprio %s" % OPT.get("hprio", "3"))
    SRET_AT = len(out)
    lab("L_htail")
    e("s_mov_b32 s%d, s%d" % (s.need, s.n))
    e("s_bitcmp0_b32 s%d, 24" % (Fa + 2))
    e("s_cbranch_scc1 L_htail2")
    emit(sync_call("L_tail2"))
    lab("L_htail2")
    for i in range(8):
        e(pv(i))
    lab("L_hdone")
    e("s_mov_b32 s%d, s%d" % (s.need, s.n))
    emit(sync_call())
    e("s_sub_u32 s%d, s%d, 1" % (s.t2, s.n))
    e("s_bfe_u32 s%d, s%d, 0x40018" % (s.n, Fa + 2))
    e("s_cbranch_scc0 L_fin")
    e("s_setprio %s" % OPT.get("eprio", "0"))
    e("s_branch L_pe1")
    lab("L_pe0")
    emit(spin(OPT.get("slp", "2")))
    lab("L_pe1")
    e("ds_read_b32 v%d, v%d" % (v.t1, v.pra))
    e("s_waitcnt lgkmcnt(0)")
    e("v_cmp_gt_u32 vcc, s%d, v%d" % (s.t2, v.t1))
    e("s_cbranch_vccnz L_pe0")
    stamp(5)
    l16, l8, xa, cnt = v.ka0, v.ka0r, v.var, v.var + 1
    emit(lsum())
    e("v_lshlrev_b32 v%d, 4, v%d" % (l16, L))
    e("v_lshlrev_b32 v%d, 3, v%d" % (l8, L))
    e("s_lshl_b32 s%d, s%d, 9" % (s.t0, s.wave))
    e("s_add_u32 s%d, s%d, %d" % (s.t0, s.t0, MLBASE - 2048))
    e("v_add_u32 v%d, s%d, v%d" % (xa, s.t0, l8))
    e("ds_write_b64 v%d, %s" % (xa, vr(v.nmc, 2)))
    e("s_cmp_eq_u32 s%d, 2" % s.n)
    e("s_cbranch_scc1 L_sd2")
    for j in (1, 2, 3):
        if j == 2:
            lab("L_sd2")
        e("s_and_b32 s%d, s%d, 0xffffff" % (s.t0, Fa + 4 + j))
        e("v_add_u32 v%d, s%d, v%d" % (xa, s.t0, l16))
        for k in range(4):
            e("ds_write_b128 v%d, %s offset:%d" % (xa, vr(v.O + 16 * j + 4 * k, 4), k * 1024))
    e("s_lshr_b32 s%d, s%d, 30" % (s.t0, Fa + 2))
    e("s_lshl_b32 s%d, s%d, 2" % (s.t0, s.t0))
    e("s_add_u32 s%d, s%d, %d" % (s.t0, s.t0, CNTB))
    e("v_mov_b32 v%d, s%d" % (cnt, s.t0))
    e("v_mov_b32 v%d, 1" % v.t3)
    e("s_mov_b64 exec, 1")
    e("ds_add_u32 v%d, v%d" % (cnt, v.t3))
    e("s_mov_b64 exec, -1")
    emit(st_addr())
    e("v_add_u32 v%d, s%d, v%d" % (xa, s.reg, l16))
    for j in range(3):
        e("s_lshr_b32 s%d, s%d, 24" % (s.t0, Fa + 5 + j))
        e("s_lshl_b32 s%d, s%d, 9" % (s.t0, s.t0))
        e("s_add_u32 s%d, s%d, %d" % (s.t0, s.t0, MLBASE))
        e("v_add_u32 v%d, s%d, v%d" % (v.P + j, s.t0, l8))
    e("s_branch L_poll1")
    lab("L_poll")
    emit(spin())
    lab("L_poll1")
    e("ds_read_b32 v%d, v%d" % (v.t3, cnt))
    e("s_waitcnt lgkmcnt(0)")
    e("v_cmp_ne_u32 vcc, s%d, v%d" % (s.n, v.t3))
    e("s_cbranch_vccnz L_poll")
    stamp(4)
    for j in range(3):
        e("ds_read_b64 %s, v%d" % (vr(v.X + 2 * j, 2), v.P + j))
    for k in range(12):
        e("ds_read_b128 %s, v%d offset:%d" % (vr(v.KF + 16 + 4 * k, 4), xa, k * 1024))
    RX = v.KF + 16
    f0, f1, f2, f3 = v.X + 8, v.X + 9, v.X + 10, v.X + 11
    e("s_bfe_u32 s%d, s%d, 0x2001c" % (s.col, Fa + 2))
    e("s_lshl_b32 s%d, s%d, 6" % (s.col, s.col))
    e("s_add_u32 s%d, s%d, 0x8000" % (s.col + 1, s.col))
    e("s_add_u32 s%d, s%d, 0x10000" % (s.col + 2, s.col))
    e("s_add_u32 s%d, s%d, 0x18000" % (s.t1, s.col))
    e("s_waitcnt lgkmcnt(12)")
    e("v_min3_f32 v%d, v%d, v%d, v%d" % (v.t3, v.nmc, v.X, v.X + 2))
    e("v_min_f32 v%d, v%d, v%d" % (v.t3, v.t3, v.X + 4))
    e("v_sub_f32 v%d, v%d, v%d" % (f0, v.t3, v.nmc))
    for j, f in enumerate((f1, f2, f3)):
        e("v_sub_f32 v%d, v%d, v%d" % (f, v.t3, v.X + 2 * j))
    for f in (f0, f1, f2, f3):
        e("v_exp_f32 v%d, v%d" % (f, f))
    e("v_mul_f32 v%d, v%d, v%d" % (v.l, v.l, f0))
    e("v_fmac_f32 v%d, v%d, v%d" % (v.l, v.X + 1, f1))
    e("s_cmp_eq_u32 s%d, 2" % s.n)
    e("s_cbranch_scc1 L_mg2")
    e("v_fmac_f32 v%d, v%d, v%d" % (v.l, v.X + 3, f2))
    e("v_fmac_f32 v%d, v%d, v%d" % (v.l, v.X + 5, f3))
    e("v_rcp_f32 v%d, v%d" % (v.t3, v.l))
    e("v_and_b32 v%d, 4, v%d" % (v.t0, L))
    e("v_lshl_add_u32 v%d, v%d, 28, v%d" % (oo, v.t0, oo))
    for f in (f0, f1, f2, f3):
        e("v_mul_f32 v%d, v%d, v%d" % (f, f, v.t3))
    for i in range(16):
        e("v_mul_f32 v%d, v%d, v%d" % (v.O + i, v.O + i, f0))
    for j, f in enumerate((f1, f2, f3)):
        e("s_waitcnt lgkmcnt(%d)" % (8 - 4 * j))
        for i in range(16):
            e("v_fmac_f32 v%d, v%d, v%d" % (v.O + i, RX + 16 * j + i, f))
    e("s_branch L_mg3")
    lab("L_mg2")
    e("v_rcp_f32 v%d, v%d" % (v.t3, v.l))
    e("s_nop 0")
    for f in (f0, f1):
        e("v_mul_f32 v%d, v%d, v%d" % (f, f, v.t3))
    for i in range(32):
        e("v_mul_f32 v%d, v%d, v%d" % (v.O + i, v.O + i, f0))
    e("s_waitcnt lgkmcnt(0)")
    for i in range(32):
        e("v_fmac_f32 v%d, v%d, v%d" % (v.O + i, RX + i, f1))
    emit(pack_q(1, False))
    lab("L_mg3")
    emit(pack_q(0, False) + rd_half(0))
    for k in range(4):
        emit(["s_waitcnt lgkmcnt(%d)" % (3 - k)] + st_one(0, k))
    e("s_branch L_fin")
    lab("L_resc")
    e("v_max3_f32 v%d, v%d, v%d, v%d" % (v.t0, v.X, v.X + 1, v.X + 2))
    for r in range(3, 15, 2):
        e("v_max3_f32 v%d, v%d, v%d, v%d" % (v.t0, v.t0, v.X + r, v.X + r + 1))
    e("v_max3_f32 v%d, v%d, v%d, 0" % (v.t0, v.t0, v.X + 15))
    e("v_mov_b32 v%d, v%d" % (v.t1, v.t0))
    e("s_nop 1")
    e("v_permlane32_swap_b32 v%d, v%d" % (v.t0, v.t1))
    e("s_nop 1")
    e("v_max_f32 v%d, v%d, v%d" % (v.t0, v.t0, v.t1))
    e("v_exp_f32 v%d, -v%d" % (v.t1, v.t0))
    e("v_sub_f32 v%d, v%d, v%d" % (v.nmc, v.nmc, v.t0))
    for r in range(16):
        e("v_sub_f32 v%d, v%d, v%d" % (v.X + r, v.X + r, v.t0))
    e("v_mul_f32 v%d, v%d, v%d" % (v.l, v.l, v.t1))
    for i in range(64):
        e("v_mul_f32 v%d, v%d, v%d" % (v.O + i, v.O + i, v.t1))
    emit(soft_half_plain(0))
    emit(soft_half_plain(1))
    for k, r in enumerate(rets[:-1]):
        e("s_cmp_eq_u32 s%d, %d" % (s.ret, k))
        e("s_cbranch_scc1 %s" % r)
    e("s_branch %s" % rets[-1])
    rl_ = []
    order = [2, 1, 0, 3, 4]
    assert len(srets) == len(order)
    for k in order[:-1]:
        rl_ += ["    s_cmp_eq_u32 s%d, %d" % (s.sret, k), "    s_cbranch_scc1 %s" % srets[k]]
    rl_ += ["    s_branch %s" % srets[order[-1]]]
    out[SRET_AT:SRET_AT] = rl_
    out.append(".p2align 6")
    out.append(".type L_far,@object")
    lab("L_far")
    for ent in far:
        out.append("    .long " + ", ".join("0x%x" % x for x in ent))
    lab("L_cnt")
    out.append("    .long " + ", ".join(str(i) for i in range(32)))
    out.append(".size L_far, .-L_far")
    lab("L_codeend")
    out.append("    .fill 512, 4, 0xbf800000")
    out.append('.section .rodata,"a"')
    out.append(".p2align 6")
    out.append(".amdhsa_kernel " + K)
    out.append("  .amdhsa_next_free_vgpr %d" % NV)
    out.append("  .amdhsa_next_free_sgpr %d" % NS)
    out.append("  .amdhsa_accum_offset %d" % NV)
    out.append("  .amdhsa_group_segment_fixed_size 0")
    out.append("  .amdhsa_kernarg_size 56")
    out.append("  .amdhsa_user_sgpr_count 2")
    out.append("  .amdhsa_user_sgpr_kernarg_segment_ptr 1")
    out.append("  .amdhsa_system_sgpr_workgroup_id_x 1")
    out.append(".end_amdhsa_kernel")
    txt = "\n".join(out) + "\n"
    return txt.replace("PFSTRIDE", OPT.get("pf", "28"))


if __name__ == "__main__":
    args = [a for a in sys.argv[1:] if a.endswith(".s")]
    path = args[0] if args else "cdna_kernels/%s.s" % NAME
    open(path, "w").write(gen())
    print("wrote", path)
```

```python
import sys, struct, math

NAME = "standalone__varlen_attn_packed__ragged"
CU = [0, 289, 520, 939, 1289, 1402, 1666, 1973, 2275]
LEN = [CU[i + 1] - CU[i] for i in range(8)]
T_TOT = 2275
ROWB = 4096
TENSOR_BYTES = T_TOT * ROWB

OPT = {}
for a in sys.argv[1:]:
    if a.startswith("--"):
        k, _, val = a[2:].partition("=")
        OPT[k] = val if val else "1"
STAMPS = "stamps" in OPT or "lite" in OPT
LITE = "lite" in OPT
LDF_Q = OPT.get("ldq", "none").replace("+", " ").replace("none", "")
LDF_K = OPT.get("ldk", "none").replace("+", " ").replace("none", "")
STF = OPT.get("st", "none").replace("+", " ").replace("none", "")
FLY = int(OPT.get("fly", "4"))

HEADER = """; Kernarg layout for this problem (56 bytes, ptrs only, base s[0:1]):
;   offset   0: d_in[0] q  shape=(2275, 16, 128) dtype=bfloat16 strides=(4096, 256, 2) contiguous=True
;   offset   8: d_in[1] k  shape=(2275, 16, 128) dtype=bfloat16 strides=(4096, 256, 2) contiguous=True
;   offset  16: d_in[2] v  shape=(2275, 16, 128) dtype=bfloat16 strides=(4096, 256, 2) contiguous=True
;   offset  32: d_out     shape=(2275, 16, 128) dtype=bfloat16 (2 bytes/elem)
"""


def f2u(x):
    return struct.unpack("<I", struct.pack("<f", x))[0]


def cdiv(a, b):
    return (a + b - 1) // b


LDS_TOTAL = 163840
QBASE = 98304
XTRA = 131072
MLBASE = XTRA + 16384
PRGB = XTRA + 7 * 4096 + 2048
RDYB = XTRA + 6 * 4096 + 3072
CNTB = XTRA + 6 * 4096 + 2048
BIG = 0x4000

ROLES = [
    ("dual", (1, 6, 2), (4, 0, 4)),
    (5, 0, 6),
    (3, 0, 5), (3, 5, 5),
    ("dual", (3, 10, 1), (5, 6, 3)),
    (1, 0, 6),
    (6, 0, 5), (6, 5, 5),
    (7, 0, 5), (7, 5, 5), (0, 0, 5), (0, 5, 5),
    (2, 0, 4), (2, 4, 4), (2, 8, 3), (2, 11, 3),
]
QE = int(OPT.get("qe", "1"))


def nrec(rows):
    return (rows - 1) * ROWB + 256 if rows > 0 else 0


def build_tables():
    near, far, desc = [], [], []
    for ri, role in enumerate(ROLES):
        W = [None] * 8
        groups = []
        if role[0] == "dual":
            (sa, ta, na), (sb, tb, nb) = role[1], role[2]
            rowA, lenA, rowB, lenB, step = CU[sa], LEN[sa], CU[sb], LEN[sb], 32
            n_it = max(cdiv(lenA, 32), cdiv(lenB, 32))
            tiles = [(sa, ta + i, 0) for i in range(na)] + [(sb, tb + i, 1) for i in range(nb)]
            nq = len(tiles)
            for i in range(4):
                sq, tl, st = tiles[i]
                W[i] = dict(seq=sq, tile=tl, ql=i, type=2, stream=st, its=list(range(cdiv(LEN[sq], 32))), hastail=1)
            for i in range(4, nq):
                sq, tl, st = tiles[i]
                nb_ = cdiv(LEN[sq], 32)
                W[i + 2] = dict(seq=sq, tile=tl, ql=i, type=3, stream=st, its=list(range(nb_)), hastail=1,
                                G=1, reg=XTRA + 4096 * i)
        else:
            sa, t0, nq = role
            rowA, lenA, rowB, lenB, step = CU[sa], LEN[sa], CU[sa] + 32, LEN[sa] - 32, 64
            nkv = cdiv(lenA, 32)
            n_it = cdiv(nkv, 2)
            tiles = [(sa, t0 + i, 0) for i in range(nq)]
            for i in range(min(nq, 4)):
                W[i] = dict(seq=sa, tile=t0 + i, ql=i, type=1, stream=0, its=list(range(nkv)), hastail=1)
            nh = 4 // (nq - 4) if nq > 4 else 0
            for i in range(4, nq):
                ws = [4 + (i - 4) * nh + k for k in range(nh)]
                for k, w in enumerate(ws):
                    blocks = [p for p in range(nkv) if p % nh == k]
                    W[w] = dict(seq=sa, tile=t0 + i, ql=i, type=3, stream=k % 2, its=[p // 2 for p in blocks],
                                hastail=int((nkv - 1) in blocks))
                groups.append(ws)
        qrows = [CU[sq] + 32 * tl for sq, tl, _ in tiles] + [0xfff] * (6 - nq)
        near.append([rowA * ROWB, nrec(lenA), rowB * ROWB, nrec(lenB), step * ROWB | (2 * n_it + 1),
                     qrows[0] | qrows[1] << 16, qrows[2] | qrows[3] << 16, qrows[4] | qrows[5] << 16])
        areas = [((n_it + 1) % 4) * 32768, ((n_it + 2) % 4) * 32768]
        recv = [areas[0], areas[0] + 12288, areas[1], areas[1] + 12288]
        for i in range(4):
            if W[i]:
                W[i]["reg"] = XTRA + 4096 * i
        for gi, g in enumerate(groups):
            G = len(g)
            for k, w in enumerate(g):
                W[w]["reg"] = recv[w - 4]
                W[w]["G"], W[w]["k"], W[w]["gi"] = G, k, gi
                if G == 4:
                    W[w]["send"] = [recv[g[(j + k) % 4] - 4] + (j - 1) * 4096 for j in (1, 2, 3)]
                    W[w]["src"] = [g[(k - j) % 4] for j in (1, 2, 3)]
                else:
                    o = g[1 - k]
                    W[w]["send"] = [0, recv[o - 4], recv[o - 4] + 4096]
                    W[w]["src"] = [o, o, o]
        for wi in range(8):
            w = W[wi]
            desc.append(w)
            if w is None:
                far.append([0] * 8)
                continue
            sq, its, typ, sc = w["seq"], w["its"], w["type"], w["stream"]
            tail = LEN[sq] % 32
            orow = CU[sq] + 32 * w["tile"]
            onr = min(32, CU[sq + 1] - orow)
            assert onr > 0 and tail > 0
            U = len(its) - 1
            a0, st = its[0], its[1] - its[0]
            assert all(its[i] == a0 + st * i for i in range(len(its))) and st <= 2 and a0 <= 1 and U >= 1
            if typ == 1:
                inc, prg0, prg1, need1, need2 = 1, 2, 4, 0, 2
            elif typ == 2:
                inc, prg0, prg1, need1, need2 = 2, 2, 4 + sc, sc, 4 + sc
            else:
                inc, prg0, prg1, need1, need2 = 2 * st, 2 * a0 + sc + 2, 2 * (a0 + 1) + sc + 2, max(QE if QE else 3, 2 * a0 + sc), 2 * (a0 + st) + sc
            w.update(U=U, a0=a0, st=st, inc=inc, prg0=prg0, prg1=prg1, need1=need1, need2=need2, n_it=n_it)
            hm = 0
            if typ != 3:
                nlast = 2 * n_it + 1
                pub = prg0
                w["pubs"] = []
                for b in range(U):
                    val = prg1 + inc * (b + 1)
                    want = pub < nlast - 5 and (typ == 2 or b % 2 == 1 or OPT.get("puball"))
                    if groups and pub < nlast - 1 <= val:
                        want = True
                    if typ == 2 or U - 1 - b <= 1:
                        hm |= 1 << (U - 1 - b)
                    if want and OPT.get("nodpub"):
                        hm |= 0x10001 << (U - 1 - b)
                        pub = val
                        w["pubs"].append(b)
            G, k, gi = w.get("G", 0), w.get("k", 0), w.get("gi", 0)
            rot = k * (4 // G) if G > 1 else 0
            ent = [orow * ROWB, nrec(onr),
                   U | typ << 8 | inc << 12 | (tail if w["hastail"] else 32) << 16 | G << 24 | rot << 28 | gi << 30,
                   prg0 | prg1 << 8 | need1 << 16 | need2 << 24,
                   w["reg"] | w["ql"] << 20 | (1 - sc) << 24 | a0 << 25 | st << 26]
            if G > 1:
                ent += [w["send"][j] | ((w["src"][j] - 4) << 24) for j in range(3)]
            if typ != 3:
                ent += [hm, prg1 - need2]
            ent += [0] * (8 - len(ent))
            far.append(ent)
    return near, far, desc


class R:
    pass


v = R()
v.kd0, v.kd1, v.vd0, v.vd1 = 1, 2, 3, 4
v.ka0r, v.ka1r = 5, 6
v.ka0, v.ka1 = 7, 8
v.rdya, v.rdy = 9, 10
v.lane = 11
v.nmc, v.l = 12, 13
v.ps = 14
v.t0, v.t1, v.t2, v.t3 = 15, 16, 17, 18
v.pf = 19
v.st = 20
v.prga, v.prg = 21, 22
v.fo = 23
v.pra = 0
v.Q = 24
v.O = 56
v.S = 120
v.B = 136
v.KF = 152
v.VF = 184
v.X = 216
v.E = 232
v.P = 240
v.var = 248
v.va = 252
NV = 256

s = R()
s.q, s.k, s.vv, s.cu, s.out = 4, 6, 8, 10, 12
s.near = 16
s.far = 24
s.kA, s.kB, s.vA, s.vB, s.sq, s.so = 32, 36, 40, 44, 48, 52
s.wave, s.hoff = 56, 57
s.n = 58
s.thr = 59
s.soff = 60
s.dslot = 61
s.U = 62
s.mu = 63
s.koff, s.voff = 64, 65
s.need, s.chk = 66, 67
s.t0, s.t1, s.t2, s.t3 = 68, 69, 70, 71
s.pc = 72
s.stp = 74
s.ws = 76
s.sti = 78
s.ret = 79
s.foff = 80
s.reg = 81
s.m1 = 82
s.lnd = 83
s.inc = 84
s.col = 85
s.astep = 88
s.sret = 89
s.guard = 90
s.iss = 91
s.d0, s.rdw = 92, 93
s.stepb = 97
NS = 100

C_SCALE = (128 ** -0.5) * math.log2(math.e)
CL = "0x%x" % f2u(C_SCALE)
THRESH = 4096.0

out = []


def e(x):
    out.append("    " + x)


def lab(x):
    out.append(x + ":")


def vr(b, n):
    return "v[%d:%d]" % (b, b + n - 1)


def sr(b, n):
    return "s[%d:%d]" % (b, b + n - 1)


def emit(lst):
    for x in lst:
        if x is None:
            continue
        if x.endswith(":"):
            out.append(x)
        else:
            e(x)


def stamp_l(k=None, real=False):
    if not STAMPS or (LITE and k not in (7, 61)):
        return []
    if OPT.get("rt") and k is None and not real:
        return stamp_l(None, True) + stamp_l(None, "c")
    real = real is True
    r = ["%s s[%d:%d]" % ("s_memrealtime" if real else "s_memtime", s.stp, s.stp + 1), "s_waitcnt lgkmcnt(0)"]
    if k is None:
        r += ["s_mov_b32 s%d, m0" % (s.stp + 1), "s_mov_b32 m0, s%d" % s.sti, "s_nop 0",
              "v_writelane_b32 v%d, s%d, m0" % (v.st, s.stp),
              "s_add_u32 s%d, s%d, 1" % (s.sti, s.sti), "s_mov_b32 m0, s%d" % (s.stp + 1)]
    else:
        r += ["v_writelane_b32 v%d, s%d, %d" % (v.st, s.stp, k)]
    return r


def stamp(k=None, real=False):
    emit(stamp_l(k, real))


SPIN = OPT.get("spin")


def mark(name):
    if SPIN == name:
        e("s_memrealtime s[%d:%d]" % (s.stp, s.stp + 1))
        e("s_waitcnt lgkmcnt(0)")


def kread(t, dst, st=0):
    return "ds_read_b128 %s, v%d offset:%d" % (vr(dst + 4 * t, 4), v.ka1 if t % 2 else v.ka0,
                                               (t // 4) * 16384 + ((t // 2) % 2) * 256 + st * 1024)


def vread(i, st=0):
    t, bb, ss = i // 8, (i // 2) % 4, i % 2
    reg = v.VF + (t * 4 + bb) * 4 + ss * 2
    return "ds_read_b64_tr_b16 %s, v%d offset:%d" % (vr(reg, 2), v.va + bb, (4 * t + 2 * ss) * 4096 + st * 1024)


def ld(kv, col, half, so):
    srd = {("K", 0): s.kA, ("K", 1): s.kB, ("V", 0): s.vA, ("V", 1): s.vB}[(kv, col)]
    off = (2048 if kv == "V" else 0) + (1024 if col == 0 else 0)
    vo = {("K", 0): v.kd0, ("K", 1): v.kd1, ("V", 0): v.vd0, ("V", 1): v.vd1}[(kv, half)]
    return "buffer_load_dwordx4 v%d, %s, s%d offen %s%s lds" % (vo, sr(srd, 4), so, "offset:%d " % off if off else "", LDF_K)


STEP_ADV = ["s_add_u32 s%d, s%d, s%d" % (s.soff, s.soff, s.stepb),
            "s_add_u32 s%d, s%d, 0x8000" % (s.dslot, s.dslot),
            "s_and_b32 s%d, s%d, 0x1ffff" % (s.dslot, s.dslot)]


FLAG = ["s_mov_b32 m0, s%d" % s.rdw,
        "v_add_u32 v%d, 4, v%d" % (v.fo, v.fo),
        "global_load_lds_dword v%d, %s" % (v.fo, sr(s.pc, 2))]


def chunk(col, k_only=False, pace=0, flag=True):
    p = []
    if pace:
        p = ["s_sleep %d" % pace if pace < 16 else "s_nop %d" % (pace - 16)]
    r = []
    for half, m in ((0, "s_mov_b32 m0, s%d" % s.dslot), (1, "s_add_u32 m0, s%d, 0x4000" % s.dslot)):
        r += [m, "s_nop 0"]
        if not k_only:
            r += [ld("V", col, half, s.soff)] + p
        r += [ld("K", col, half, s.soff)] + p
    return r + (FLAG if flag else [])


def qk(t):
    return "v_mfma_f32_32x32x16_bf16 %s, %s, %s, %s" % (vr(v.S, 16), vr(v.KF + 4 * t, 4), vr(v.Q + 4 * t, 4), vr(v.S, 16))


def pv(i):
    t, bb = i // 4, i % 4
    return "v_mfma_f32_32x32x16_bf16 %s, %s, %s, %s" % (
        vr(v.O + 16 * bb, 16), vr(v.VF + (t * 4 + bb) * 4, 4), vr(v.P + 4 * t, 4), vr(v.O + 16 * bb, 16))


def F(r):
    return "v_fmamk_f32 v%d, v%d, %s, v%d" % (v.X + r, v.S + r, CL, v.nmc)


def ex(r):
    return "v_exp_f32 v%d, v%d" % (v.E + r % 8, v.X + r)


def add(r):
    if r == 0:
        return None
    if r == 1:
        return "v_add_f32 v%d, v%d, v%d" % (v.ps, v.E, v.E + 1)
    return "v_add_f32 v%d, v%d, v%d" % (v.ps, v.ps, v.E + r % 8)


def cvt(i):
    return "v_cvt_pk_bf16_f32 v%d, v%d, v%d" % (v.P + i, v.E + (2 * i) % 8, v.E + (2 * i + 1) % 8)


def soft_half_plain(h):
    r = [ex(8 * h + i) for i in range(8)]
    r += [x for x in (add(8 * h + i) for i in range(8)) if x]
    r += [cvt(4 * h + i) for i in range(4)]
    return r


CMP = "v_cmp_lt_f32 vcc, s%d, v%d" % (s.thr, v.ps)
LADD = "v_add_f32 v%d, v%d, v%d" % (v.l, v.l, v.ps)
PRGW = "ds_write_b32 v%d, v%d" % (v.prga, v.prg)
RDYR = "ds_read_b32 v%d, v%d" % (v.rdy, v.rdya)
PRGINC = "v_add_u32 v%d, s%d, v%d" % (v.prg, s.inc, v.prg)
NEEDINC = "s_add_u32 s%d, s%d, s%d" % (s.need, s.need, s.inc)
QK0 = "v_mfma_f32_32x32x16_bf16 %s, %s, %s, 0" % (vr(v.S, 16), vr(v.KF, 4), vr(v.Q, 4))
QK0M = "v_mfma_f32_32x32x16_bf16 %s, %s, %s, %s" % (vr(v.S, 16), vr(v.KF, 4), vr(v.Q, 4), vr(v.B, 16))
rets, srets = [], []


def newret():
    rets.append("L_ret%d" % len(rets))
    return len(rets) - 1


def kaddr():
    return ["v_add_u32 v%d, s%d, v%d" % (v.ka0, s.koff, v.ka0r),
            "v_add_u32 v%d, s%d, v%d" % (v.ka1, s.koff, v.ka1r)]


def vaddr():
    return ["v_add_u32 v%d, s%d, v%d" % (v.va + j, s.voff, v.var + j) for j in range(4)]


def adv(reg):
    return ["s_add_u32 s%d, s%d, s%d" % (reg, reg, s.astep), "s_and_b32 s%d, s%d, 0x1ffff" % (reg, reg)]


def spin(n="1"):
    r = ["s_sleep %s" % n]
    if not OPT.get("nosafe"):
        r += ["s_sub_u32 s%d, s%d, 1" % (s.guard, s.guard), "s_cbranch_scc1 L_end"]
    return r


def sync_call(target=None):
    k = len(srets)
    srets.append(target or "L_sr%d" % k)
    return ["s_mov_b32 s%d, %d" % (s.sret, k), "s_branch L_sync"] + ([] if target else ["L_sr%d:" % k])


_pl = [0]


ool = []


def poll_rdy():
    _pl[0] += 1
    a, b = "L_pa%d" % _pl[0], "L_pb%d" % _pl[0]
    ool.append([a + ":"] + spin() + [RDYR, "s_waitcnt lgkmcnt(0)", "s_branch %s" % b])
    return ["s_min_u32 s%d, s%d, s%d" % (s.t2, s.need, s.n), b + ":",
            "v_cmp_ge_u32 vcc, s%d, v%d" % (s.t2, v.rdy), "s_cbranch_vccnz %s" % a]


def body(kind):
    odd, hlp = kind != "even", kind == "hlp"
    st = 0 if odd else 1
    V = lambda i: vread(i, st)
    K = lambda t: kread(t, v.KF, st)
    W = lambda n: "s_waitcnt lgkmcnt(%d)" % n
    k = newret()
    q = [
        [NEEDINC, V(0), V(1), ex(8), add(7), cvt(3)],
        ["s_mov_b32 s%d, %d" % (s.ret, k), V(2), V(3), ex(9), ex(10)],
        [W(4), V(4), V(5), ex(11), add(8), add(9)],
        ["s_sub_u32 s%d, s%d, 1" % (s.U, s.U), V(6), V(7), ex(12), ex(13)],
        [None, V(8), V(9), ex(14), add(10), add(11)],
        [None, V(10), V(11), ex(15), add(12), add(13)],
        [W(4), V(12), V(13), add(14), add(15), CMP, cvt(4)],
        ["s_cbranch_vccnz L_resc", "L_ret%d:" % k, V(14), V(15), LADD, cvt(5), cvt(6), cvt(7)],
    ]
    p = [
        ["s_nop 0", K(0), K(1), K(2), F(0), F(1), F(2)],
        [None, K(3), ex(0), F(3), F(4), F(5)],
        [None, K(4), ex(1), F(6), F(7), F(8)],
        [W(5), K(5), ex(2), add(1), F(9), F(10)],
        [None, K(6), ex(3), add(2), cvt(0), F(11)],
        [None, K(7), ex(4), add(3), cvt(1), F(12)],
        [W(4), ex(5), ex(6), add(4), F(13)],
        [None, ex(7), add(5), add(6), cvt(2), F(14), F(15)],
    ]
    if odd:
        q[4][0], q[5][0] = adv(s.voff)
        p[4][0], p[5][0] = adv(s.koff)
        va, ka = vaddr(), kaddr()
        p[1].append(va[0])
        p[3].append(va[1])
        p[4].append(va[2])
        p[5].append(va[3])
        p[6].append(ka[0])
        p[7].append(ka[1])
    if not hlp:
        p[0][0] = "s_min_u32 s%d, s%d, s%d" % (s.chk, s.need, s.n)
        p[1][0] = "s_bitcmp1_b32 s%d, s%d" % (s.far + 5, s.U)
        p[2][0] = "s_cselect_b32 s%d, -1, s%d" % (s.chk, s.chk)
        p[2][2:2] = [RDYR]
        p[6][0] = W(3)
        if odd and (not OPT.get("nodpub")):
            q[2].append("v_add_u32 v%d, 8, v%d" % (v.fo, v.fo))
            q[3][1:1] = ["global_load_lds_dword v%d, %s" % (v.fo, sr(s.pc, 2))]
        p[7][3:3] = ["v_cmp_ge_u32 vcc, s%d, v%d" % (s.chk, v.rdy)]
    else:
        q[1].append(PRGINC)
        q[7][4:4] = [PRGW]
        sc = sync_call()
        q[3][1:1] = [sc[0]]
        p[0][0:1] = stamp_l() + sc[1:] + stamp_l()
    lab("L_%s_m" % kind)
    e(QK0)
    lab("L_%s_a" % kind)
    emit(q[0])
    for t in range(1, 8):
        e(qk(t))
        emit(q[t])
    for i in range(8):
        e(pv(i))
        emit(p[i])
    if not hlp:
        stamp()


def gen():
    K = NAME + "_kernel"
    near, far, _ = build_tables()
    PACE = int(OPT.get("pace", "0"))
    out.append(HEADER + "; @launch grid=(256,1,1) block=(512,1,1) lds=%d" % LDS_TOTAL)
    out.append('.amdgcn_target "amdgcn-amd-amdhsa--gfx950"')
    out.append(".text")
    out.append(".globl " + K)
    out.append(".p2align 12")
    out.append(".p2align 8")
    out.append(".type %s,@function" % K)
    lab(K)
    e("s_cmp_ge_u32 s2, 256")
    e("s_cbranch_scc1 L_end")
    if SPIN:
        e("s_memrealtime s[%d:%d]" % (s.ws, s.ws + 1))
        e("s_memrealtime s[%d:%d]" % (s.stp, s.stp + 1))
    e("s_load_dwordx8 s[4:11], s[0:1], 0")
    e("s_load_dwordx2 s[12:13], s[0:1], 32")
    e("s_getpc_b64 %s" % sr(s.pc, 2))
    lab("L_pc")
    if OPT.get("hmap", "4") == "4":
        e("s_lshr_b32 s%d, s2, 5" % s.t0)
        e("s_bfe_u32 s%d, s2, 0x10002" % s.t1)
        if OPT.get("swapg"):
            e("s_xor_b32 s%d, s%d, 1" % (s.t1, s.t1))
        e("s_lshl3_add_u32 s%d, s%d, s%d" % (s.t0, s.t1, s.t0))
    else:
        e("s_lshr_b32 s%d, s2, 4" % s.t0)
    e("s_lshl_b32 s%d, s%d, 5" % (s.t1, s.t0))
    e("s_add_u32 s%d, s%d, L_near-L_pc" % (s.t1, s.t1))
    e("s_load_dwordx8 %s, %s, s%d" % (sr(s.near, 8), sr(s.pc, 2), s.t1))
    e("v_mul_u32_u24 v%d, PFSTRIDE, v0" % v.t0)
    e("global_load_dword v%d, v%d, %s" % (v.pf, v.t0, sr(s.pc, 2)))
    e("s_branch L_start")
    out.append(".p2align 5")
    out.append(".type L_near,@object")
    lab("L_near")
    for ent in near:
        out.append("    .long " + ", ".join("0x%x" % x for x in ent))
    out.append(".size L_near, .-L_near")
    out.append(".type L_start,@function")
    lab("L_start")
    if STAMPS:
        e("v_mov_b32 v%d, 0" % v.st)
        e("s_mov_b32 s%d, 8" % s.sti)
        e("s_memrealtime s[%d:%d]" % (s.stp, s.stp + 1))
        e("s_memtime s[%d:%d]" % (s.ws, s.ws + 1))
    L, N, Fa = v.lane, s.near, s.far
    e("v_lshrrev_b32 v%d, 6, v0" % v.t0)
    e("v_and_b32 v%d, 63, v0" % L)
    e("v_readfirstlane_b32 s%d, v%d" % (s.wave, v.t0))
    if OPT.get("hmap", "4") == "4":
        e("s_and_b32 s%d, s2, 3" % s.t1)
        e("s_bfe_u32 s%d, s2, 0x20003" % s.t2)
        e("s_lshl2_add_u32 s%d, s%d, s%d" % (s.t1, s.t1, s.t2))
    else:
        e("s_and_b32 s%d, s2, 15" % s.t1)
    e("s_lshl_b32 s%d, s%d, 8" % (s.hoff, s.t1))
    e("s_lshl_b32 s%d, s%d, 3" % (s.t0, s.t0))
    e("s_add_u32 s%d, s%d, s%d" % (s.t0, s.t0, s.wave))
    e("s_lshl_b32 s%d, s%d, 5" % (s.t0, s.t0))
    e("s_add_u32 s%d, s%d, L_far-L_pc" % (s.foff, s.t0))
    e("s_cmp_lt_u32 s%d, 4" % s.wave)
    e("s_cbranch_scc1 L_mainpro")
    e("s_and_b32 s%d, s%d, 1" % (s.t0, s.wave))
    e("s_lshl_b32 s%d, s%d, 1" % (s.t0, s.t0))
    e("v_lshrrev_b32 v%d, 5, v%d" % (v.t0, L))
    e("v_add_u32 v%d, s%d, v%d" % (v.t0, s.t0, v.t0))
    e("v_and_b32 v%d, 3, v%d" % (v.t1, L))
    e("v_xor_b32 v%d, v%d, v%d" % (v.t1, v.t1, v.t0))
    e("v_and_b32 v%d, 12, v%d" % (v.t2, L))
    e("v_add_u32 v%d, v%d, v%d" % (v.t0, v.t0, v.t2))
    e("s_bfe_u32 s%d, s%d, 0x10001" % (s.t1, s.wave))
    e("s_lshl_b32 s%d, s%d, 16" % (s.t1, s.t1))
    e("v_lshlrev_b32 v%d, 12, v%d" % (v.t0, v.t0))
    e("v_lshl_add_u32 v%d, v%d, 4, v%d" % (v.t0, v.t1, v.t0))
    e("v_and_b32 v%d, 16, v%d" % (v.t2, L))
    e("v_lshl_add_u32 v%d, v%d, 2, v%d" % (v.t0, v.t2, v.t0))
    e("v_add_u32 v%d, s%d, v%d" % (v.kd0, s.t1, v.t0))
    e("v_add_u32 v%d, 0x80, v%d" % (v.kd1, v.kd0))
    e("s_and_b32 s%d, s%d, 3" % (s.t3, s.wave))
    e("s_lshl_b32 s%d, s%d, 12" % (s.dslot, s.t3))
    e("s_sub_u32 s%d, %d, s%d" % (s.sq + 2, TENSOR_BYTES, s.hoff))
    for b in (s.sq, s.kA, s.kB, s.vA, s.vB):
        e("s_mov_b32 s%d, 0x20000" % (b + 3))
    e("s_mov_b32 s%d, 0" % s.soff)
    e("s_add_u32 s%d, s%d, %d" % (s.d0, s.dslot, QBASE))
    e("s_waitcnt lgkmcnt(0)")
    if STAMPS:
        e("v_writelane_b32 v%d, s%d, 0" % (v.st, s.stp))
        e("v_writelane_b32 v%d, s%d, 1" % (v.st, s.ws))
        stamp(2)
        e("s_load_dwordx2 %s, s[0:1], %d" % (sr(s.ws, 2), 40 if OPT.get("dbg") else 48))
    mark("karg")

    def qtile(i):
        w = N + 5 + i // 2
        r = ["s_and_b32 s%d, s%d, 0xffff" % (s.t0, w) if i % 2 == 0 else "s_lshr_b32 s%d, s%d, 16" % (s.t0, w),
             "s_add_u32 m0, s%d, %d" % (s.d0, (i // 4) * 32768 + (i % 4) * 1024),
             "s_lshl_b32 s%d, s%d, 12" % (s.t0, s.t0),
             "buffer_load_dwordx4 v%d, %s, s%d offen %s lds" % (v.kd0, sr(s.sq, 4), s.t0, LDF_Q),
             "s_add_u32 m0, m0, 0x4000", "s_nop 0",
             "buffer_load_dwordx4 v%d, %s, s%d offen %s lds" % (v.kd1, sr(s.sq, 4), s.t0, LDF_Q)]
        return r
    e("s_add_u32 s%d, s%d, s%d" % (s.sq, s.q, s.hoff))
    e("s_addc_u32 s%d, s%d, 0" % (s.sq + 1, s.q + 1))
    emit(qtile(0))
    e("s_add_u32 s%d, s%d, s%d" % (N + 0, N + 0, s.hoff))
    e("s_add_u32 s%d, s%d, s%d" % (s.kA, s.k, N + 0))
    e("s_addc_u32 s%d, s%d, 0" % (s.kA + 1, s.k + 1))
    e("s_sub_u32 s%d, s%d, 1024" % (s.kA, s.kA))
    e("s_subb_u32 s%d, s%d, 0" % (s.kA + 1, s.kA + 1))
    e("s_add_u32 s%d, s%d, 1024" % (s.kA + 2, N + 1))
    emit(chunk(0, True, flag=False))
    for i in (1, 2, 3):
        emit(qtile(i))
    e("s_add_u32 s%d, s%d, s%d" % (N + 2, N + 2, s.hoff))
    e("s_add_u32 s%d, s%d, s%d" % (s.kB, s.k, N + 2))
    e("s_addc_u32 s%d, s%d, 0" % (s.kB + 1, s.k + 1))
    e("s_mov_b32 s%d, s%d" % (s.kB + 2, N + 3))
    e("s_and_b32 s%d, s%d, 0xfffff000" % (s.stepb, N + 4))
    e("s_lshl_b32 s%d, s%d, 8" % (s.rdw, s.t3))
    e("s_add_u32 s%d, s%d, %d" % (s.rdw, s.rdw, RDYB))
    e("v_mov_b32 v%d, L_cnt-L_pc" % v.fo)
    for (srd, off, nr, d) in ((s.vA, N + 0, N + 1, 3072), (s.vB, N + 2, N + 3, 2048)):
        e("s_add_u32 s%d, s%d, %d" % (s.t0, s.stepb, d))
        e("s_add_u32 s%d, s%d, s%d" % (srd, s.vv, off))
        e("s_addc_u32 s%d, s%d, 0" % (srd + 1, s.vv + 1))
        e("s_sub_u32 s%d, s%d, s%d" % (srd, srd, s.t0))
        e("s_subb_u32 s%d, s%d, 0" % (srd + 1, srd + 1))
        e("s_add_u32 s%d, s%d, s%d" % (srd + 2, nr, s.t0))
    e("v_bfe_u32 v%d, v%d, 2, 2" % (v.t0, L))
    e("v_lshlrev_b32 v%d, 12, v%d" % (v.t0, v.t0))
    e("v_and_b32 v%d, 3, v%d" % (v.t1, L))
    e("v_lshl_add_u32 v%d, v%d, 4, v%d" % (v.t0, v.t1, v.t0))
    e("v_lshrrev_b32 v%d, 4, v%d" % (v.t1, L))
    e("v_lshl_add_u32 v%d, v%d, 6, v%d" % (v.t0, v.t1, v.t0))
    e("s_lshl_b32 s%d, s%d, 14" % (s.t3, s.t3))
    e("v_add_u32 v%d, s%d, v%d" % (v.vd0, s.t3, v.t0))
    e("v_add_u32 v%d, 0x10000, v%d" % (v.vd1, v.vd0))
    e("v_and_b32 v%d, 7, v%d" % (v.t0, L))
    e("v_mul_u32_u24 v%d, 0x104, v%d" % (v.t0, v.t0))
    e("v_add_u32 v%d, %d, v%d" % (v.pra, PRGB, v.t0))
    stamp(3)
    e("s_setprio %s" % OPT.get("hprio", "3"))
    e("s_branch L_common")
    lab("L_mainpro")
    for b in (s.sq, s.kA, s.kB, s.vA, s.vB):
        e("s_mov_b64 %s, s[0:1]" % sr(b, 2))
        e("s_mov_b32 s%d, 0" % (b + 2))
        e("s_mov_b32 s%d, 0x20000" % (b + 3))
    for r in (v.kd0, v.kd1, v.vd0, v.vd1, v.fo):
        e("v_mov_b32 v%d, 0" % r)
    if STAMPS:
        e("s_waitcnt lgkmcnt(0)")
        e("v_writelane_b32 v%d, s%d, 0" % (v.st, s.stp))
        e("v_writelane_b32 v%d, s%d, 1" % (v.st, s.ws))
        stamp(2)
        e("s_load_dwordx2 %s, s[0:1], %d" % (sr(s.ws, 2), 40 if OPT.get("dbg") else 48))
    lab("L_common")
    e("s_lshl_b32 s%d, s%d, 8" % (s.t0, s.wave))
    e("s_add_u32 s%d, s%d, %d" % (s.t0, s.t0, PRGB - 4096))
    e("v_lshl_add_u32 v%d, v%d, 2, s%d" % (v.prga, L, s.t0))
    e("v_mov_b32 v%d, 0" % v.l)
    e("ds_write_b32 v%d, v%d" % (v.prga, v.l))
    e("ds_write_b32 v%d, v%d offset:4096" % (v.prga, v.l))
    e("v_add_u32 v%d, 0x1000, v%d" % (v.prga, v.prga))
    e("s_waitcnt lgkmcnt(0)")
    e("s_load_dwordx8 %s, %s, s%d" % (sr(Fa, 8), sr(s.pc, 2), s.foff))
    e("s_barrier")
    e("s_cmp_lt_u32 s%d, 4" % s.wave)
    e("s_cbranch_scc1 L_common2")
    QH = qtile(4) + qtile(5)
    emit(FLAG + (QH if QE == 1 else []) + chunk(1, True) + STEP_ADV + (QH if QE == 2 else []) + chunk(0))
    lab("L_common2")
    e("v_bfe_u32 v%d, v%d, 4, 1" % (v.t0, L))
    e("v_lshlrev_b32 v%d, 13, v%d" % (v.t0, v.t0))
    e("v_bfe_u32 v%d, v%d, 1, 1" % (v.t1, L))
    e("v_lshl_add_u32 v%d, v%d, 12, v%d" % (v.t0, v.t1, v.t0))
    e("v_and_b32 v%d, 1, v%d" % (v.t1, L))
    e("v_lshl_add_u32 v%d, v%d, 9, v%d" % (v.t0, v.t1, v.t0))
    e("v_bfe_u32 v%d, v%d, 2, 2" % (v.t1, L))
    e("v_lshl_add_u32 v%d, v%d, 6, v%d" % (v.t0, v.t1, v.t0))
    e("v_lshrrev_b32 v%d, 5, v%d" % (v.t1, L))
    e("v_and_b32 v%d, 3, v%d" % (v.t2, L))
    e("v_xor_b32 v%d, v%d, v%d" % (v.t1, v.t1, v.t2))
    e("v_lshl_add_u32 v%d, v%d, 4, v%d" % (v.ka0r, v.t1, v.t0))
    e("v_xor_b32 v%d, 32, v%d" % (v.ka1r, v.ka0r))
    e("v_lshrrev_b32 v%d, 5, v%d" % (v.t0, L))
    e("v_lshlrev_b32 v%d, 12, v%d" % (v.t0, v.t0))
    e("v_bfe_u32 v%d, v%d, 2, 2" % (v.t1, L))
    e("v_lshl_add_u32 v%d, v%d, 6, v%d" % (v.t0, v.t1, v.t0))
    e("v_bfe_u32 v%d, v%d, 4, 1" % (v.t1, L))
    e("v_lshl_add_u32 v%d, v%d, 5, v%d" % (v.t0, v.t1, v.t0))
    e("v_lshl_add_u32 v%d, v%d, 3, v%d" % (v.t0, v.t2, v.t0))
    e("v_add_u32 v%d, 0x800, v%d" % (v.var, v.t0))
    e("s_mov_b32 s%d, 0x%x" % (s.thr, f2u(THRESH)))
    e("v_mul_u32_u24 v%d, 0x104, v%d" % (v.t1, v.t2))
    e("v_add_u32 v%d, %d, v%d" % (v.rdya, RDYB, v.t1))
    e("s_mov_b32 s%d, 0x8000" % s.guard)
    e("v_mov_b32 v%d, 0" % v.rdy)
    e("s_waitcnt lgkmcnt(0)")
    e("s_add_u32 s%d, s%d, s%d" % (s.t0, Fa + 0, s.hoff))
    e("s_add_u32 s%d, s%d, s%d" % (s.so, s.out, s.t0))
    e("s_addc_u32 s%d, s%d, 0" % (s.so + 1, s.out + 1))
    e("s_mov_b32 s%d, s%d" % (s.so + 2, Fa + 1))
    e("s_mov_b32 s%d, 0x20000" % (s.so + 3))
    e("s_and_b32 s%d, s%d, 0xff" % (s.n, N + 4))
    e("s_bfe_u32 s%d, s%d, 0x40008" % (s.t3, Fa + 2))
    e("s_cbranch_scc1 L_work")
    e("v_mov_b32 v%d, %d" % (v.prg, BIG))
    e(PRGW)
    e("s_cmp_lt_u32 s%d, 4" % s.wave)
    e("s_cbranch_scc1 L_fin")
    e("s_branch L_presig")
    lab("L_work")
    for r in range(0, 64, 2):
        e("v_pk_mov_b32 %s, 0, 0" % vr(v.O + r, 2))
    e("s_and_b32 s%d, s%d, 0xff" % (s.U, Fa + 2))
    e("s_bfe_u32 s%d, s%d, 0x4000c" % (s.inc, Fa + 2))
    e("s_and_b32 s%d, s%d, 0xfffff" % (s.reg, Fa + 4))
    e("s_bfe_u32 s%d, s%d, 0x80010" % (s.t0, Fa + 2))
    e("s_sub_u32 s%d, s%d, 1" % (s.t0, s.t0))
    e("v_lshrrev_b32 v%d, 5, v%d" % (v.t0, L))
    e("v_lshlrev_b32 v%d, 2, v%d" % (v.t0, v.t0))
    e("v_sub_u32 v%d, s%d, v%d" % (v.t0, s.t0, v.t0))
    e("v_mov_b32 v%d, 0xff800000" % v.t1)
    for r in range(16):
        cst = 8 * (r // 4) + r % 4
        e("v_subrev_u32 v%d, %d, v%d" % (v.B + r, cst, v.t0))
        e("v_ashrrev_i32 v%d, 31, v%d" % (v.B + r, v.B + r))
        e("v_and_b32 v%d, v%d, v%d" % (v.B + r, v.t1, v.B + r))
    e("s_bfe_u32 s%d, s%d, 0x20014" % (s.t0, Fa + 4))
    e("s_lshl_b32 s%d, s%d, 10" % (s.t0, s.t0))
    e("s_bfe_u32 s%d, s%d, 0x10016" % (s.t1, Fa + 4))
    e("s_lshl_b32 s%d, s%d, 15" % (s.t1, s.t1))
    e("s_add_u32 s%d, s%d, s%d" % (s.t0, s.t0, s.t1))
    e("s_add_u32 s%d, s%d, %d" % (s.koff, s.t0, QBASE))
    emit(kaddr())
    e("s_cmp_lg_u32 s%d, 1" % s.t3)
    e("s_cselect_b32 s%d, 1, 0" % s.m1)
    e("s_bfe_u32 s%d, s%d, 0x2001a" % (s.t0, Fa + 4))
    e("s_lshl_b32 s%d, s%d, 15" % (s.astep, s.t0))
    e("s_bfe_u32 s%d, s%d, 0x10019" % (s.t2, Fa + 4))
    e("s_bfe_u32 s%d, s%d, 0x10018" % (s.t0, Fa + 4))
    e("s_lshl_b32 s%d, s%d, 10" % (s.t0, s.t0))
    e("s_mul_i32 s%d, s%d, s%d" % (s.t1, s.t0, s.m1))
    e("s_sub_u32 s%d, s%d, s%d" % (s.t0, s.t0, s.t1))
    e("s_lshl_b32 s%d, s%d, 15" % (s.voff, s.t2))
    e("s_add_u32 s%d, s%d, s%d" % (s.koff, s.voff, s.t0))
    e("s_add_u32 s%d, s%d, 0x8000" % (s.voff, s.voff))
    e("v_add_u32 v%d, s%d, v%d" % (v.ka0r, s.t1, v.ka0r))
    e("v_add_u32 v%d, s%d, v%d" % (v.ka1r, s.t1, v.ka1r))
    e("s_bfe_u32 s%d, s%d, 0x2001c" % (s.t0, Fa + 2))
    for j in (3, 2, 1, 0):
        e("s_add_u32 s%d, s%d, %d" % (s.col, s.t0, j))
        e("s_and_b32 s%d, s%d, 3" % (s.col, s.col))
        e("s_lshl_b32 s%d, s%d, 8" % (s.col, s.col))
        e("s_add_u32 s%d, s%d, s%d" % (s.col, s.col, s.t1))
        e("v_add_u32 v%d, s%d, v%d" % (v.var + j, s.col, v.var))
    emit(vaddr())
    e("s_and_b32 s%d, s%d, 0xff" % (s.t0, Fa + 3))
    e("v_mov_b32 v%d, s%d" % (v.prg, s.t0))
    e("s_bfe_u32 s%d, s%d, 0x80010" % (s.need, Fa + 3))
    e("s_cmp_lt_u32 s%d, 4" % s.wave)
    e("s_cbranch_scc1 L_sig0")
    e(PRGW)
    lab("L_presig")
    emit((QH if QE == 0 else []) + chunk(1) + STEP_ADV)
    e("s_mov_b32 s%d, 4" % s.iss)
    stamp()
    e("s_cmp_eq_u32 s%d, 0" % s.t3)
    e("s_cbranch_scc1 L_hdone")
    emit(sync_call("L_head"))
    lab("L_sig0")
    stamp()
    emit(poll_rdy())
    mark("sig0")
    stamp()
    lab("L_head")
    for t in range(8):
        e(kread(t, v.Q))
    e(PRGW)
    emit(kaddr())
    e("s_waitcnt lgkmcnt(5)")
    for t in range(8):
        e(kread(t, v.KF))
    e("s_add_u32 s%d, s%d, s%d" % (s.t0, s.koff, s.astep))
    e("s_mul_i32 s%d, s%d, s%d" % (s.koff, s.t0, s.m1))
    e("s_lshr_b32 s%d, s%d, 24" % (s.need, Fa + 3))
    e("s_bfe_u32 s%d, s%d, 0x80008" % (s.t0, Fa + 3))
    e("v_mov_b32 v%d, s%d" % (v.prg, s.t0))
    e("s_waitcnt lgkmcnt(7)")
    e(QK0)
    for t in range(1, 8):
        e("s_waitcnt lgkmcnt(%d)" % (7 - t))
        e(qk(t))
    emit(kaddr())
    emit(adv(s.koff))
    e("s_nop 8")
    e("v_max3_f32 v%d, v%d, v%d, v%d" % (v.t0, v.S, v.S + 1, v.S + 2))
    for r in range(3, 15, 2):
        e("v_max3_f32 v%d, v%d, v%d, v%d" % (v.t0, v.t0, v.S + r, v.S + r + 1))
    e("v_max_f32 v%d, v%d, v%d" % (v.t0, v.t0, v.S + 15))
    e("v_mov_b32 v%d, v%d" % (v.t1, v.t0))
    e("s_nop 1")
    e("v_permlane32_swap_b32 v%d, v%d" % (v.t0, v.t1))
    e("s_nop 1")
    e("v_max_f32 v%d, v%d, v%d" % (v.t0, v.t0, v.t1))
    e("v_mul_f32 v%d, 0x%x, v%d" % (v.nmc, f2u(-C_SCALE), v.t0))
    for r in range(16):
        e(F(r))
    e(RDYR)
    emit([ex(i) for i in range(8)] + [add(i) for i in range(1, 7)] + [cvt(0), cvt(1), cvt(2)])
    e("s_cmp_lt_u32 s%d, 4" % s.wave)
    e("s_waitcnt lgkmcnt(0)")
    e("s_cbranch_scc0 L_hlp_in")
    stamp()
    emit(poll_rdy())
    mark("loop")
    stamp()
    for t in range(8):
        e(kread(t, v.KF))
    emit(kaddr())
    if (not OPT.get("nodpub")):
        e("s_bfe_u32 s%d, s%d, 0x80008" % (s.t0, Fa + 3))
        e("s_sub_u32 s%d, s%d, s%d" % (s.t0, s.t0, s.m1))
        e("s_lshl_b32 s%d, s%d, 2" % (s.t0, s.t0))
        e("s_add_u32 s%d, s%d, L_cnt-L_pc-4" % (s.t0, s.t0))
        e("v_mov_b32 v%d, s%d" % (v.fo, s.t0))
        e("s_lshl_b32 s%d, s%d, 8" % (s.t0, s.wave))
        e("s_add_u32 m0, s%d, %d" % (s.t0, PRGB))
    e("s_cmp_eq_u32 s%d, 1" % s.m1)
    e("s_waitcnt lgkmcnt(4)")
    e("s_cbranch_scc1 L_odd_m")
    out.append(".p2align 4")
    body("even")
    e("s_cbranch_vccnz L_hnd_even")
    body("odd")
    e("s_cbranch_vccz L_even_m")
    e("s_add_u32 s%d, s%d, 16" % (s.t0, s.U))
    e("s_bitcmp0_b32 s%d, s%d" % (Fa + 5, s.t0))
    e("s_cbranch_scc1 L_np1")
    e("s_add_u32 s%d, s%d, s%d" % (s.t0, s.need, Fa + 6))
    e("v_mov_b32 v%d, s%d" % (v.prg, s.t0))
    e(PRGW)
    lab("L_np1")
    emit(poll_rdy())
    e("s_cmp_le_u32 s%d, 1" % s.U)
    e("s_cbranch_scc1 L_ho1")
    e("s_cmp_eq_u32 s%d, 0" % s.m1)
    e("s_cbranch_scc0 L_odd_m")
    e("s_branch L_even_m")
    lab("L_ho1")
    e("s_cmp_eq_u32 s%d, 0" % s.U)
    e("s_cbranch_scc1 L_tail0")
    e("s_cmp_eq_u32 s%d, 0" % s.m1)
    e(QK0M)
    e("s_cbranch_scc1 L_even_a")
    e("s_branch L_odd_a")
    lab("L_hnd_even")
    e("s_add_u32 s%d, s%d, 16" % (s.t0, s.U))
    e("s_bitcmp0_b32 s%d, s%d" % (Fa + 5, s.t0))
    e("s_cbranch_scc1 L_np2")
    e("s_add_u32 s%d, s%d, s%d" % (s.t0, s.need, Fa + 6))
    e("v_mov_b32 v%d, s%d" % (v.prg, s.t0))
    e(PRGW)
    lab("L_np2")
    emit(poll_rdy())
    e("s_cmp_gt_u32 s%d, 1" % s.U)
    e("s_cbranch_scc1 L_odd_m")
    e("s_cmp_eq_u32 s%d, 0" % s.U)
    e("s_cbranch_scc1 L_tail")
    e(QK0M)
    e("s_branch L_odd_a")
    lab("L_hlp_in")
    e(PRGW)
    stamp()
    emit(sync_call())
    stamp()
    for t in range(8):
        e(kread(t, v.KF))
    emit(kaddr())
    e("s_waitcnt lgkmcnt(4)")
    e("s_branch L_hnd_hlp")
    body("hlp")
    lab("L_hnd_hlp")
    e("s_cmp_gt_u32 s%d, 1" % s.U)
    e("s_cbranch_scc1 L_hlp_m")
    e("s_cmp_eq_u32 s%d, 0" % s.U)
    e("s_cbranch_scc1 L_tail")
    e(QK0M)
    e("s_branch L_hlp_a")
    lab("L_tail0")
    e("s_cmp_eq_u32 s%d, 1" % s.m1)
    e("s_cbranch_scc1 L_tail")
    for j in range(4):
        e("v_add_u32 v%d, 0x400, v%d" % (v.va + j, v.va + j))
    lab("L_tail")
    mark("tail")
    k = newret()
    vord = [0, 1, 8, 9, 2, 3, 10, 11, 4, 5, 12, 13, 6, 7, 14, 15]
    for i in vord[:12]:
        e(vread(i))
    emit([ex(8), add(7), cvt(3)] + [ex(i) for i in range(9, 16)])
    e("v_mov_b32 v%d, %d" % (v.prg, BIG))
    if (not OPT.get("nodpub")):
        e("s_cmp_lt_u32 s%d, 4" % s.wave)
        e("s_cbranch_scc0 L_t1")
        e("s_waitcnt vmcnt(0)")
        lab("L_t1")
    for i in vord[12:]:
        e(vread(i))
    e(PRGW)
    emit([add(i) for i in range(8, 16)] + [CMP, cvt(4), "s_mov_b32 s%d, %d" % (s.ret, k), "s_cbranch_vccnz L_resc",
                                           "L_ret%d:" % k, cvt(5), cvt(6), cvt(7), LADD])
    e("s_cmp_lt_u32 s%d, 4" % s.wave)
    e("s_waitcnt lgkmcnt(0)")
    e("s_cbranch_scc0 L_htail")
    lab("L_tail2")
    tw, tr0, oo, rl = v.ka1, v.va, v.ka1r, v.X + 2

    def lsum():
        return ["v_mov_b32 v%d, v%d" % (v.t0, v.l), "s_nop 1",
                "v_permlane32_swap_b32 v%d, v%d" % (v.l, v.t0), "s_nop 1",
                "v_add_f32 v%d, v%d, v%d" % (v.l, v.l, v.t0)]

    def st_addr():
        r = ["v_and_b32 v%d, 31, v%d" % (v.t0, L),
             "v_lshrrev_b32 v%d, 5, v%d" % (v.t1, L),
             "v_lshlrev_b32 v%d, 3, v%d" % (v.t1, v.t1),
             "v_and_b32 v%d, 7, v%d" % (v.t2, L),
             "v_lshl_add_u32 v%d, v%d, 4, v%d" % (v.t1, v.t2, v.t1),
             "v_lshl_add_u32 v%d, v%d, 7, v%d" % (v.t0, v.t0, v.t1),
             "v_add_u32 v%d, s%d, v%d" % (tw, s.reg, v.t0)]
        r += ["v_xor_b32 v%d, %d, v%d" % (v.E + c, c * 16, tw) for c in range(8)]
        r += ["v_lshrrev_b32 v%d, 3, v%d" % (v.t0, L),
              "v_xor_b32 v%d, v%d, v%d" % (v.t1, v.t2, v.t0),
              "v_lshlrev_b32 v%d, 4, v%d" % (v.t1, v.t1),
              "v_lshl_add_u32 v%d, v%d, 7, v%d" % (v.t1, v.t0, v.t1),
              "v_add_u32 v%d, s%d, v%d" % (tr0, s.reg, v.t1),
              "v_lshlrev_b32 v%d, 12, v%d" % (v.t0, v.t0),
              "v_lshl_add_u32 v%d, v%d, 4, v%d" % (oo, v.t2, v.t0)]
        return r

    def pack_q(bb, norm=True):
        r = []
        for g in range(4):
            c = 4 * bb + g
            o = v.O + 4 * c
            d = v.S + 2 * c
            if norm:
                r += ["v_pk_mul_f32 %s, %s, %s op_sel_hi:[1,0]" % (vr(o + i, 2), vr(o + i, 2), vr(rl, 2)) for i in (0, 2)]
            r += ["v_cvt_pk_bf16_f32 v%d, v%d, v%d" % (d, o, o + 1),
                  "v_cvt_pk_bf16_f32 v%d, v%d, v%d" % (d + 1, o + 2, o + 3),
                  "ds_write_b64 v%d, %s" % (v.E + c % 8, vr(d, 2))]
        return r

    def rd_half(hh):
        return ["ds_read_b128 %s, v%d offset:%d" % (vr(v.KF + 16 * hh + 4 * k, 4), tr0, k * 1024) for k in range(4)]

    def st_one(hh, k):
        return ["buffer_store_dwordx4 %s, v%d, %s, s%d offen offset:%d %s" % (
                    vr(v.KF + 16 * hh + 4 * k, 4), oo, sr(s.so, 4), s.col + k if k < 3 else s.t1, 128 * hh, STF)]

    sa = st_addr()
    emit([pv(0)] + lsum() + ["v_rcp_f32 v%d, v%d" % (rl, v.l)])
    emit([pv(4)] + sa[0:6])
    emit([pv(1)] + sa[6:12])
    emit([pv(5)] + sa[12:18])
    emit([pv(2)] + sa[18:] + ["s_mov_b32 s%d, 0" % s.col, "s_mov_b32 s%d, 0x8000" % (s.col + 1)])
    emit([pv(6), "s_mov_b32 s%d, 0x10000" % (s.col + 2), "s_mov_b32 s%d, 0x18000" % s.t1])
    emit([pv(3), pv(7)])
    stamp(5)
    emit(pack_q(0) + pack_q(1) + rd_half(0))
    p2 = pack_q(2)
    emit(p2[:10] + ["s_waitcnt lgkmcnt(5)"] + st_one(0, 0) + p2[10:] + ["s_waitcnt lgkmcnt(4)"] + st_one(0, 1))
    p3 = pack_q(3)
    emit(p3[:10] + st_one(0, 2) + p3[10:] + st_one(0, 3) + rd_half(1))
    stamp(4)
    for k in range(4):
        emit(["s_waitcnt lgkmcnt(%d)" % (3 - k)] + st_one(1, k))
    lab("L_fin")
    if SPIN:
        mark("st")
        e("s_waitcnt vmcnt(0)")
        mark("end")
        if SPIN == "glob":
            e("s_load_dwordx2 s[98:99], s[0:1], 40")
            e("s_not_b32 s%d, s%d" % (s.t0, s.ws))
            e("v_mov_b32 v%d, s%d" % (v.t1, s.t0))
            e("v_mov_b32 v%d, 0" % v.t0)
            e("s_waitcnt lgkmcnt(0)")
            e("s_cmp_lg_u32 s%d, 0" % s.wave)
            e("s_cbranch_scc1 L_g1")
            e("s_mov_b64 exec, 1")
            e("global_atomic_umax v%d, v%d, s[98:99]" % (v.t0, v.t1))
            e("s_mov_b64 exec, -1")
            lab("L_g1")
        e("s_sub_u32 s%d, s%d, s%d" % (s.t0, s.stp, s.ws))
        e("s_mul_i32 s%d, s%d, 2" % (s.t0, s.t0))
        e("s_add_u32 s%d, s%d, 3000" % (s.t0, s.t0))
        lab("L_spin")
        e("s_sleep 2")
        e("s_memrealtime s[%d:%d]" % (s.stp, s.stp + 1))
        e("s_waitcnt lgkmcnt(0)")
        e("s_sub_u32 s%d, s%d, s%d" % (s.t1, s.stp, s.ws))
        e("s_cmp_lt_u32 s%d, s%d" % (s.t1, s.t0))
        e("s_cbranch_scc1 L_spin")
        if SPIN == "glob":
            e("global_load_dword v%d, v%d, s[98:99] sc0 sc1" % (v.t1, v.t0))
            e("s_waitcnt vmcnt(0)")
            e("v_readfirstlane_b32 s%d, v%d" % (s.t2, v.t1))
            e("s_not_b32 s%d, s%d" % (s.t2, s.t2))
            lab("L_spin2")
            e("s_sleep 2")
            e("s_memrealtime s[%d:%d]" % (s.stp, s.stp + 1))
            e("s_waitcnt lgkmcnt(0)")
            e("s_sub_u32 s%d, s%d, s%d" % (s.t1, s.stp, s.t2))
            e("s_cmp_lt_u32 s%d, 4000" % s.t1)
            e("s_cbranch_scc1 L_spin2")
    if STAMPS:
        stamp(6)
        e("s_waitcnt vmcnt(0)")
        stamp(7)
        stamp(61, True)
        e("s_getreg_b32 s%d, hwreg(HW_REG_XCC_ID)" % s.stp)
        e("v_writelane_b32 v%d, s%d, 62" % (v.st, s.stp))
        e("s_lshl_b32 s%d, s2, 3" % s.t0)
        e("s_add_u32 s%d, s%d, s%d" % (s.t0, s.t0, s.wave))
        e("s_lshl_b32 s%d, s%d, 8" % (s.t0, s.t0))
        e("v_lshlrev_b32 v%d, 2, v%d" % (v.t0, v.lane))
        e("v_add_u32 v%d, s%d, v%d" % (v.t0, s.t0, v.t0))
        if OPT.get("dbg"):
            e("v_readlane_b32 s%d, v%d, 0" % (s.t0, v.st))
            e("v_readlane_b32 s%d, v%d, 61" % (s.t1, v.st))
            e("v_readlane_b32 s%d, v%d, 1" % (s.t2, v.st))
            e("s_not_b32 s%d, s%d" % (s.t3, s.t0))
            e("v_cmp_ne_u32 vcc, 0, v%d" % v.st)
            e("v_subrev_u32 v%d, s%d, v%d" % (v.t1, s.t2, v.st))
            e("s_nop 1")
            e("v_cndmask_b32 v%d, 0, v%d, vcc" % (v.t1, v.t1))
            e("v_writelane_b32 v%d, s%d, 0" % (v.t1, s.t3))
            e("v_writelane_b32 v%d, s%d, 1" % (v.t1, s.t1))
            e("v_writelane_b32 v%d, s%d, 15" % (v.t1, s.t0))
            e("v_lshlrev_b32 v%d, 2, v%d" % (v.t0, v.lane))
            e("s_cmp_lt_u32 s%d, 4" % s.wave)
            e("s_cselect_b32 s%d, 0xffff, 0x80ff" % s.t0 if False else "s_mov_b32 s%d, 0x80ff" % s.t0)
            e("s_cselect_b32 exec_lo, 0xffff, s%d" % s.t0)
            e("s_mov_b32 exec_hi, 0")
            e("global_atomic_umax v%d, v%d, %s" % (v.t0, v.t1, sr(s.ws, 2)))
        else:
            e("global_store_dword v%d, v%d, %s" % (v.t0, v.st, sr(s.ws, 2)))
    lab("L_end")
    e("s_endpgm")
    for blk in ool:
        emit(blk)
    lab("L_sync")
    e("s_setprio %s" % OPT.get("sprio", "0"))
    e("s_min_u32 s%d, s%d, s%d" % (s.t2, s.need, s.n))
    e("s_cmp_eq_u32 s%d, 0x20000" % s.stepb)
    e("s_cselect_b32 s%d, %s, %s" % (s.t3, OPT.get("lookd", "4"), OPT.get("look", "2")))
    e("s_add_u32 s%d, s%d, s%d" % (s.t3, s.t2, s.t3))
    e("s_min_u32 s%d, s%d, s%d" % (s.t3, s.t3, s.n))
    lab("L_svc")
    e("ds_read_b32 v%d, v%d" % (v.t1, v.pra))
    e(RDYR)
    e("s_sub_i32 s%d, s%d, 5" % (s.t1, s.iss))
    e("s_cmp_gt_u32 s%d, s%d" % (s.iss, s.t3))
    e("s_waitcnt lgkmcnt(0)")
    e("s_cbranch_scc0 L_svc1")
    e("v_cmp_ge_u32 vcc, s%d, v%d" % (s.t2, v.rdy))
    e("s_cbranch_vccz L_svcx")
    e("s_cmp_gt_u32 s%d, s%d" % (s.iss, s.n))
    e("s_cbranch_scc1 L_svcs")
    lab("L_svc1")
    e("v_cmp_gt_i32 vcc, s%d, v%d" % (s.t1, v.t1))
    e("s_cbranch_vccnz L_svc2")
    e("s_add_u32 s%d, s%d, 1" % (s.iss, s.iss))
    if OPT.get("cap", "10"):
        e("s_waitcnt vmcnt(%s)" % OPT.get("cap", "10"))
    e("s_bitcmp0_b32 s%d, 0" % s.iss)
    e("s_cbranch_scc1 L_svcB")
    emit(chunk(0, pace=PACE))
    e("s_branch L_svc")
    lab("L_svcB")
    emit(chunk(1, pace=PACE) + STEP_ADV)
    e("s_branch L_svc")
    lab("L_svc2")
    e("v_cmp_ge_u32 vcc, s%d, v%d" % (s.t2, v.rdy))
    e("s_cbranch_vccz L_svcx")
    lab("L_svcs")
    emit(spin(OPT.get("slp", "2")))
    e("s_branch L_svc")
    lab("L_svcx")
    e("s_setprio %s" % OPT.get("hprio", "3"))
    SRET_AT = len(out)
    lab("L_htail")
    e("s_mov_b32 s%d, s%d" % (s.need, s.n))
    e("s_bitcmp0_b32 s%d, 24" % (Fa + 2))
    e("s_cbranch_scc1 L_htail2")
    emit(sync_call("L_tail2"))
    lab("L_htail2")
    for i in range(8):
        e(pv(i))
    lab("L_hdone")
    e("s_mov_b32 s%d, s%d" % (s.need, s.n))
    emit(sync_call())
    e("s_sub_u32 s%d, s%d, 1" % (s.t2, s.n))
    e("s_bfe_u32 s%d, s%d, 0x40018" % (s.n, Fa + 2))
    e("s_cbranch_scc0 L_fin")
    e("s_setprio %s" % OPT.get("eprio", "0"))
    e("s_branch L_pe1")
    lab("L_pe0")
    emit(spin(OPT.get("slp", "2")))
    lab("L_pe1")
    e("ds_read_b32 v%d, v%d" % (v.t1, v.pra))
    e("s_waitcnt lgkmcnt(0)")
    e("v_cmp_gt_u32 vcc, s%d, v%d" % (s.t2, v.t1))
    e("s_cbranch_vccnz L_pe0")
    stamp(5)
    l16, l8, xa, cnt = v.ka0, v.ka0r, v.var, v.var + 1
    emit(lsum())
    e("v_lshlrev_b32 v%d, 4, v%d" % (l16, L))
    e("v_lshlrev_b32 v%d, 3, v%d" % (l8, L))
    e("s_lshl_b32 s%d, s%d, 9" % (s.t0, s.wave))
    e("s_add_u32 s%d, s%d, %d" % (s.t0, s.t0, MLBASE - 2048))
    e("v_add_u32 v%d, s%d, v%d" % (xa, s.t0, l8))
    e("ds_write_b64 v%d, %s" % (xa, vr(v.nmc, 2)))
    e("s_cmp_eq_u32 s%d, 2" % s.n)
    e("s_cbranch_scc1 L_sd2")
    for j in (1, 2, 3):
        if j == 2:
            lab("L_sd2")
        e("s_and_b32 s%d, s%d, 0xffffff" % (s.t0, Fa + 4 + j))
        e("v_add_u32 v%d, s%d, v%d" % (xa, s.t0, l16))
        for k in range(4):
            e("ds_write_b128 v%d, %s offset:%d" % (xa, vr(v.O + 16 * j + 4 * k, 4), k * 1024))
    e("s_lshr_b32 s%d, s%d, 30" % (s.t0, Fa + 2))
    e("s_lshl_b32 s%d, s%d, 2" % (s.t0, s.t0))
    e("s_add_u32 s%d, s%d, %d" % (s.t0, s.t0, CNTB))
    e("v_mov_b32 v%d, s%d" % (cnt, s.t0))
    e("v_mov_b32 v%d, 1" % v.t3)
    e("s_mov_b64 exec, 1")
    e("ds_add_u32 v%d, v%d" % (cnt, v.t3))
    e("s_mov_b64 exec, -1")
    emit(st_addr())
    e("v_add_u32 v%d, s%d, v%d" % (xa, s.reg, l16))
    for j in range(3):
        e("s_lshr_b32 s%d, s%d, 24" % (s.t0, Fa + 5 + j))
        e("s_lshl_b32 s%d, s%d, 9" % (s.t0, s.t0))
        e("s_add_u32 s%d, s%d, %d" % (s.t0, s.t0, MLBASE))
        e("v_add_u32 v%d, s%d, v%d" % (v.P + j, s.t0, l8))
    e("s_branch L_poll1")
    lab("L_poll")
    emit(spin())
    lab("L_poll1")
    e("ds_read_b32 v%d, v%d" % (v.t3, cnt))
    e("s_waitcnt lgkmcnt(0)")
    e("v_cmp_ne_u32 vcc, s%d, v%d" % (s.n, v.t3))
    e("s_cbranch_vccnz L_poll")
    stamp(4)
    for j in range(3):
        e("ds_read_b64 %s, v%d" % (vr(v.X + 2 * j, 2), v.P + j))
    for k in range(12):
        e("ds_read_b128 %s, v%d offset:%d" % (vr(v.KF + 16 + 4 * k, 4), xa, k * 1024))
    RX = v.KF + 16
    f0, f1, f2, f3 = v.X + 8, v.X + 9, v.X + 10, v.X + 11
    e("s_bfe_u32 s%d, s%d, 0x2001c" % (s.col, Fa + 2))
    e("s_lshl_b32 s%d, s%d, 6" % (s.col, s.col))
    e("s_add_u32 s%d, s%d, 0x8000" % (s.col + 1, s.col))
    e("s_add_u32 s%d, s%d, 0x10000" % (s.col + 2, s.col))
    e("s_add_u32 s%d, s%d, 0x18000" % (s.t1, s.col))
    e("s_waitcnt lgkmcnt(12)")
    e("v_min3_f32 v%d, v%d, v%d, v%d" % (v.t3, v.nmc, v.X, v.X + 2))
    e("v_min_f32 v%d, v%d, v%d" % (v.t3, v.t3, v.X + 4))
    e("v_sub_f32 v%d, v%d, v%d" % (f0, v.t3, v.nmc))
    for j, f in enumerate((f1, f2, f3)):
        e("v_sub_f32 v%d, v%d, v%d" % (f, v.t3, v.X + 2 * j))
    for f in (f0, f1, f2, f3):
        e("v_exp_f32 v%d, v%d" % (f, f))
    e("v_mul_f32 v%d, v%d, v%d" % (v.l, v.l, f0))
    e("v_fmac_f32 v%d, v%d, v%d" % (v.l, v.X + 1, f1))
    e("s_cmp_eq_u32 s%d, 2" % s.n)
    e("s_cbranch_scc1 L_mg2")
    e("v_fmac_f32 v%d, v%d, v%d" % (v.l, v.X + 3, f2))
    e("v_fmac_f32 v%d, v%d, v%d" % (v.l, v.X + 5, f3))
    e("v_rcp_f32 v%d, v%d" % (v.t3, v.l))
    e("v_and_b32 v%d, 4, v%d" % (v.t0, L))
    e("v_lshl_add_u32 v%d, v%d, 28, v%d" % (oo, v.t0, oo))
    for f in (f0, f1, f2, f3):
        e("v_mul_f32 v%d, v%d, v%d" % (f, f, v.t3))
    for i in range(16):
        e("v_mul_f32 v%d, v%d, v%d" % (v.O + i, v.O + i, f0))
    for j, f in enumerate((f1, f2, f3)):
        e("s_waitcnt lgkmcnt(%d)" % (8 - 4 * j))
        for i in range(16):
            e("v_fmac_f32 v%d, v%d, v%d" % (v.O + i, RX + 16 * j + i, f))
    e("s_branch L_mg3")
    lab("L_mg2")
    e("v_rcp_f32 v%d, v%d" % (v.t3, v.l))
    e("s_nop 0")
    for f in (f0, f1):
        e("v_mul_f32 v%d, v%d, v%d" % (f, f, v.t3))
    for i in range(32):
        e("v_mul_f32 v%d, v%d, v%d" % (v.O + i, v.O + i, f0))
    e("s_waitcnt lgkmcnt(0)")
    for i in range(32):
        e("v_fmac_f32 v%d, v%d, v%d" % (v.O + i, RX + i, f1))
    emit(pack_q(1, False))
    lab("L_mg3")
    emit(pack_q(0, False) + rd_half(0))
    for k in range(4):
        emit(["s_waitcnt lgkmcnt(%d)" % (3 - k)] + st_one(0, k))
    e("s_branch L_fin")
    lab("L_resc")
    e("v_max3_f32 v%d, v%d, v%d, v%d" % (v.t0, v.X, v.X + 1, v.X + 2))
    for r in range(3, 15, 2):
        e("v_max3_f32 v%d, v%d, v%d, v%d" % (v.t0, v.t0, v.X + r, v.X + r + 1))
    e("v_max3_f32 v%d, v%d, v%d, 0" % (v.t0, v.t0, v.X + 15))
    e("v_mov_b32 v%d, v%d" % (v.t1, v.t0))
    e("s_nop 1")
    e("v_permlane32_swap_b32 v%d, v%d" % (v.t0, v.t1))
    e("s_nop 1")
    e("v_max_f32 v%d, v%d, v%d" % (v.t0, v.t0, v.t1))
    e("v_exp_f32 v%d, -v%d" % (v.t1, v.t0))
    e("v_sub_f32 v%d, v%d, v%d" % (v.nmc, v.nmc, v.t0))
    for r in range(16):
        e("v_sub_f32 v%d, v%d, v%d" % (v.X + r, v.X + r, v.t0))
    e("v_mul_f32 v%d, v%d, v%d" % (v.l, v.l, v.t1))
    for i in range(64):
        e("v_mul_f32 v%d, v%d, v%d" % (v.O + i, v.O + i, v.t1))
    emit(soft_half_plain(0))
    emit(soft_half_plain(1))
    for k, r in enumerate(rets[:-1]):
        e("s_cmp_eq_u32 s%d, %d" % (s.ret, k))
        e("s_cbranch_scc1 %s" % r)
    e("s_branch %s" % rets[-1])
    rl_ = []
    order = [2, 1, 0, 3, 4]
    assert len(srets) == len(order)
    for k in order[:-1]:
        rl_ += ["    s_cmp_eq_u32 s%d, %d" % (s.sret, k), "    s_cbranch_scc1 %s" % srets[k]]
    rl_ += ["    s_branch %s" % srets[order[-1]]]
    out[SRET_AT:SRET_AT] = rl_
    out.append(".p2align 6")
    out.append(".type L_far,@object")
    lab("L_far")
    for ent in far:
        out.append("    .long " + ", ".join("0x%x" % x for x in ent))
    lab("L_cnt")
    out.append("    .long " + ", ".join(str(i) for i in range(32)))
    out.append(".size L_far, .-L_far")
    lab("L_codeend")
    out.append("    .fill 512, 4, 0xbf800000")
    out.append('.section .rodata,"a"')
    out.append(".p2align 6")
    out.append(".amdhsa_kernel " + K)
    out.append("  .amdhsa_next_free_vgpr %d" % NV)
    out.append("  .amdhsa_next_free_sgpr %d" % NS)
    out.append("  .amdhsa_accum_offset %d" % NV)
    out.append("  .amdhsa_group_segment_fixed_size 0")
    out.append("  .amdhsa_kernarg_size 56")
    out.append("  .amdhsa_user_sgpr_count 2")
    out.append("  .amdhsa_user_sgpr_kernarg_segment_ptr 1")
    out.append("  .amdhsa_system_sgpr_workgroup_id_x 1")
    out.append(".end_amdhsa_kernel")
    txt = "\n".join(out) + "\n"
    return txt.replace("PFSTRIDE", OPT.get("pf", "28"))


if __name__ == "__main__":
    args = [a for a in sys.argv[1:] if a.endswith(".s")]
    path = args[0] if args else "cdna_kernels/%s.s" % NAME
    open(path, "w").write(gen())
    print("wrote", path)
```

```python
import sys, struct, math

NAME = "standalone__varlen_attn_packed__ragged"
CU = [0, 289, 520, 939, 1289, 1402, 1666, 1973, 2275]
LEN = [CU[i + 1] - CU[i] for i in range(8)]
T_TOT = 2275
ROWB = 4096
TENSOR_BYTES = T_TOT * ROWB

OPT = {}
for a in sys.argv[1:]:
    if a.startswith("--"):
        k, _, val = a[2:].partition("=")
        OPT[k] = val if val else "1"
STAMPS = "stamps" in OPT or "lite" in OPT
LITE = "lite" in OPT
LDF_Q = OPT.get("ldq", "none").replace("+", " ").replace("none", "")
LDF_K = OPT.get("ldk", "none").replace("+", " ").replace("none", "")
STF = OPT.get("st", "sc1").replace("+", " ").replace("none", "")
FLY = int(OPT.get("fly", "4"))

HEADER = """; Kernarg layout for this problem (56 bytes, ptrs only, base s[0:1]):
;   offset   0: d_in[0] q  shape=(2275, 16, 128) dtype=bfloat16 strides=(4096, 256, 2) contiguous=True
;   offset   8: d_in[1] k  shape=(2275, 16, 128) dtype=bfloat16 strides=(4096, 256, 2) contiguous=True
;   offset  16: d_in[2] v  shape=(2275, 16, 128) dtype=bfloat16 strides=(4096, 256, 2) contiguous=True
;   offset  32: d_out     shape=(2275, 16, 128) dtype=bfloat16 (2 bytes/elem)
"""


def f2u(x):
    return struct.unpack("<I", struct.pack("<f", x))[0]


def cdiv(a, b):
    return (a + b - 1) // b


LDS_TOTAL = 163840
QBASE = 98304
XTRA = 131072
MLBASE = XTRA + 16384
PRGB = XTRA + 7 * 4096 + 2048
RDYB = XTRA + 6 * 4096 + 3072
CNTB = XTRA + 6 * 4096 + 2048
BIG = 0x4000

ROLES = [
    ("dual", (1, 6, 2), (4, 0, 4)),
    (5, 0, 6),
    (3, 0, 5), (3, 5, 5),
    ("dual", (3, 10, 1), (5, 6, 3)),
    (1, 0, 6),
    (6, 0, 5), (6, 5, 5),
    (7, 0, 5), (7, 5, 5), (0, 0, 5), (0, 5, 5),
    (2, 0, 4), (2, 4, 4), (2, 8, 3), (2, 11, 3),
]
QE = int(OPT.get("qe", "1"))


def nrec(rows):
    return (rows - 1) * ROWB + 256 if rows > 0 else 0


def build_tables():
    near, far, desc = [], [], []
    for ri, role in enumerate(ROLES):
        W = [None] * 8
        groups = []
        if role[0] == "dual":
            (sa, ta, na), (sb, tb, nb) = role[1], role[2]
            rowA, lenA, rowB, lenB, step = CU[sa], LEN[sa], CU[sb], LEN[sb], 32
            n_it = max(cdiv(lenA, 32), cdiv(lenB, 32))
            tiles = [(sa, ta + i, 0) for i in range(na)] + [(sb, tb + i, 1) for i in range(nb)]
            nq = len(tiles)
            for i in range(4):
                sq, tl, st = tiles[i]
                W[i] = dict(seq=sq, tile=tl, ql=i, type=2, stream=st, its=list(range(cdiv(LEN[sq], 32))), hastail=1)
            for i in range(4, nq):
                sq, tl, st = tiles[i]
                nb_ = cdiv(LEN[sq], 32)
                W[i + 2] = dict(seq=sq, tile=tl, ql=i, type=3, stream=st, its=list(range(nb_)), hastail=1,
                                G=1, reg=XTRA + 4096 * i)
        else:
            sa, t0, nq = role
            rowA, lenA, rowB, lenB, step = CU[sa], LEN[sa], CU[sa] + 32, LEN[sa] - 32, 64
            nkv = cdiv(lenA, 32)
            n_it = cdiv(nkv, 2)
            tiles = [(sa, t0 + i, 0) for i in range(nq)]
            for i in range(min(nq, 4)):
                W[i] = dict(seq=sa, tile=t0 + i, ql=i, type=1, stream=0, its=list(range(nkv)), hastail=1)
            nh = 4 // (nq - 4) if nq > 4 else 0
            for i in range(4, nq):
                ws = [4 + (i - 4) * nh + k for k in range(nh)]
                for k, w in enumerate(ws):
                    blocks = [p for p in range(nkv) if p % nh == k]
                    W[w] = dict(seq=sa, tile=t0 + i, ql=i, type=3, stream=k % 2, its=[p // 2 for p in blocks],
                                hastail=int((nkv - 1) in blocks))
                groups.append(ws)
        qrows = [CU[sq] + 32 * tl for sq, tl, _ in tiles] + [0xfff] * (6 - nq)
        qrows = [r | (0x1000 if i < nq and tiles[i][2] else 0) for i, r in enumerate(qrows)]
        near.append([rowA * ROWB, nrec(lenA), rowB * ROWB, nrec(lenB), step * ROWB | (2 * n_it + 1),
                     qrows[0] | qrows[1] << 16, qrows[2] | qrows[3] << 16, qrows[4] | qrows[5] << 16])
        areas = [((n_it + 1) % 4) * 32768, ((n_it + 2) % 4) * 32768]
        recv = [areas[0], areas[0] + 12288, areas[1], areas[1] + 12288]
        for i in range(4):
            if W[i]:
                W[i]["reg"] = XTRA + 4096 * i
        for gi, g in enumerate(groups):
            G = len(g)
            for k, w in enumerate(g):
                W[w]["reg"] = recv[w - 4]
                W[w]["G"], W[w]["k"], W[w]["gi"] = G, k, gi
                if G == 4:
                    W[w]["send"] = [recv[g[(j + k) % 4] - 4] + (j - 1) * 4096 for j in (1, 2, 3)]
                    W[w]["src"] = [g[(k - j) % 4] for j in (1, 2, 3)]
                else:
                    o = g[1 - k]
                    W[w]["send"] = [0, recv[o - 4], recv[o - 4] + 4096]
                    W[w]["src"] = [o, o, o]
        for wi in range(8):
            w = W[wi]
            desc.append(w)
            if w is None:
                far.append([0] * 8)
                continue
            sq, its, typ, sc = w["seq"], w["its"], w["type"], w["stream"]
            tail = LEN[sq] % 32
            orow = CU[sq] + 32 * w["tile"]
            onr = min(32, CU[sq + 1] - orow)
            assert onr > 0 and tail > 0
            U = len(its) - 1
            a0, st = its[0], its[1] - its[0]
            assert all(its[i] == a0 + st * i for i in range(len(its))) and st <= 2 and a0 <= 1 and U >= 1
            if typ == 1:
                inc, prg0, prg1, need1, need2 = 1, 2, 4, 0, 2
            elif typ == 2:
                inc, prg0, prg1, need1, need2 = 2, 2, 4 + sc, sc, 4 + sc
            else:
                inc, prg0, prg1, need1, need2 = 2 * st, 2 * a0 + sc + 2, 2 * (a0 + 1) + sc + 2, max(QE if QE else 3, 2 * a0 + sc), 2 * (a0 + st) + sc
            w.update(U=U, a0=a0, st=st, inc=inc, prg0=prg0, prg1=prg1, need1=need1, need2=need2, n_it=n_it)
            hm = 0
            if typ != 3:
                nlast = 2 * n_it + 1
                pub = prg0
                w["pubs"] = []
                for b in range(U):
                    val = prg1 + inc * (b + 1)
                    want = pub < nlast - 5 and (typ == 2 or b % 2 == 1 or OPT.get("puball"))
                    if groups and pub < nlast - 1 <= val:
                        want = True
                    if typ == 2 or U - 1 - b <= 1:
                        hm |= 1 << (U - 1 - b)
                    if want and OPT.get("nodpub"):
                        hm |= 0x10001 << (U - 1 - b)
                        pub = val
                        w["pubs"].append(b)
            G, k, gi = w.get("G", 0), w.get("k", 0), w.get("gi", 0)
            rot = k * (4 // G) if G > 1 else 0
            ent = [orow * ROWB, nrec(onr),
                   U | typ << 8 | inc << 12 | (tail if w["hastail"] else 32) << 16 | G << 24 | rot << 28 | gi << 30,
                   prg0 | prg1 << 8 | need1 << 16 | need2 << 24,
                   w["reg"] | w["ql"] << 20 | (1 - sc) << 24 | a0 << 25 | st << 26 | int(typ != 3 and tail <= 16 and not OPT.get("noshort")) << 31]
            if G > 1:
                ent += [w["send"][j] | ((w["src"][j] - 4) << 24) for j in range(3)]
            if typ != 3:
                ent += [hm, prg1 - need2]
            ent += [0] * (8 - len(ent))
            far.append(ent)
    return near, far, desc


class R:
    pass


v = R()
v.kd0, v.kd1, v.vd0, v.vd1 = 1, 2, 3, 4
v.ka0r, v.ka1r = 5, 6
v.ka0, v.ka1 = 7, 8
v.rdya, v.rdy = 9, 10
v.lane = 11
v.nmc, v.l = 12, 13
v.ps = 14
v.t0, v.t1, v.t2, v.t3 = 15, 16, 17, 18
v.pf = 19
v.st = 20
v.prga, v.prg = 21, 22
v.fo = 23
v.pra = 0
v.Q = 24
v.O = 56
v.S = 120
v.B = 136
v.KF = 152
v.VF = 184
v.X = 216
v.E = 232
v.P = 240
v.var = 248
v.va = 252
NV = 256

s = R()
s.q, s.k, s.vv, s.cu, s.out = 4, 6, 8, 10, 12
s.near = 16
s.far = 24
s.kA, s.kB, s.vA, s.vB, s.sq, s.so = 32, 36, 40, 44, 48, 52
s.wave, s.hoff = 56, 57
s.n = 58
s.thr = 59
s.soff = 60
s.dslot = 61
s.U = 62
s.mu = 63
s.koff, s.voff = 64, 65
s.need, s.chk = 66, 67
s.t0, s.t1, s.t2, s.t3 = 68, 69, 70, 71
s.pc = 72
s.stp = 74
s.ws = 76
s.sti = 78
s.ret = 79
s.foff = 80
s.reg = 81
s.m1 = 82
s.lnd = 83
s.inc = 84
s.col = 85
s.astep = 88
s.sret = 89
s.guard = 90
s.iss = 91
s.d0, s.rdw = 92, 93
s.qea, s.qeb = 94, 95
s.stepb = 97
NS = 100

C_SCALE = (128 ** -0.5) * math.log2(math.e)
CL = "0x%x" % f2u(C_SCALE)
THRESH = 4096.0

out = []


def e(x):
    out.append("    " + x)


def lab(x):
    out.append(x + ":")


def vr(b, n):
    return "v[%d:%d]" % (b, b + n - 1)


def sr(b, n):
    return "s[%d:%d]" % (b, b + n - 1)


def emit(lst):
    for x in lst:
        if x is None:
            continue
        if x.endswith(":"):
            out.append(x)
        else:
            e(x)


def stamp_l(k=None, real=False):
    if not STAMPS or (LITE and k not in (7, 61)):
        return []
    if OPT.get("rt") and k is None and not real:
        return stamp_l(None, True) + stamp_l(None, "c")
    real = real is True
    r = ["%s s[%d:%d]" % ("s_memrealtime" if real else "s_memtime", s.stp, s.stp + 1), "s_waitcnt lgkmcnt(0)"]
    if k is None:
        r += ["s_mov_b32 s%d, m0" % (s.stp + 1), "s_mov_b32 m0, s%d" % s.sti, "s_nop 0",
              "v_writelane_b32 v%d, s%d, m0" % (v.st, s.stp),
              "s_add_u32 s%d, s%d, 1" % (s.sti, s.sti), "s_mov_b32 m0, s%d" % (s.stp + 1)]
    else:
        r += ["v_writelane_b32 v%d, s%d, %d" % (v.st, s.stp, k)]
    return r


def stamp(k=None, real=False):
    emit(stamp_l(k, real))


SPIN = OPT.get("spin")


def mark(name):
    if SPIN == name:
        e("s_memrealtime s[%d:%d]" % (s.stp, s.stp + 1))
        e("s_waitcnt lgkmcnt(0)")


def kread(t, dst, st=0):
    return "ds_read_b128 %s, v%d offset:%d" % (vr(dst + 4 * t, 4), v.ka1 if t % 2 else v.ka0,
                                               (t // 4) * 16384 + ((t // 2) % 2) * 256 + st * 1024)


def vread(i, st=0):
    t, bb, ss = i // 8, (i // 2) % 4, i % 2
    reg = v.VF + (t * 4 + bb) * 4 + ss * 2
    return "ds_read_b64_tr_b16 %s, v%d offset:%d" % (vr(reg, 2), v.va + bb, (4 * t + 2 * ss) * 4096 + st * 1024)


def ld(kv, col, half, so):
    srd = {("K", 0): s.kA, ("K", 1): s.kB, ("V", 0): s.vA, ("V", 1): s.vB}[(kv, col)]
    off = (2048 if kv == "V" else 0) + (1024 if col == 0 else 0)
    vo = {("K", 0): v.kd0, ("K", 1): v.kd1, ("V", 0): v.vd0, ("V", 1): v.vd1}[(kv, half)]
    return "buffer_load_dwordx4 v%d, %s, s%d offen %s%s lds" % (vo, sr(srd, 4), so, "offset:%d " % off if off else "", LDF_K)


STEP_ADV = ["s_add_u32 s%d, s%d, s%d" % (s.soff, s.soff, s.stepb),
            "s_add_u32 s%d, s%d, 0x8000" % (s.dslot, s.dslot),
            "s_and_b32 s%d, s%d, 0x1ffff" % (s.dslot, s.dslot)]


FLAG = ["s_mov_b32 m0, s%d" % s.rdw,
        "v_add_u32 v%d, 4, v%d" % (v.fo, v.fo),
        "global_load_lds_dword v%d, %s" % (v.fo, sr(s.pc, 2))]


def chunk(col, k_only=False, pace=0, flag=True):
    p = []
    if pace:
        p = ["s_sleep %d" % pace if pace < 16 else "s_nop %d" % (pace - 16)]
    r = []
    for half, m in ((0, "s_mov_b32 m0, s%d" % s.dslot), (1, "s_add_u32 m0, s%d, 0x4000" % s.dslot)):
        r += [m, "s_nop 0"]
        if not k_only:
            r += [ld("V", col, half, s.soff)] + p
        r += [ld("K", col, half, s.soff)] + p
    return r + (FLAG if flag else [])


def qk(t):
    return "v_mfma_f32_32x32x16_bf16 %s, %s, %s, %s" % (vr(v.S, 16), vr(v.KF + 4 * t, 4), vr(v.Q + 4 * t, 4), vr(v.S, 16))


def pv(i):
    t, bb = i // 4, i % 4
    return "v_mfma_f32_32x32x16_bf16 %s, %s, %s, %s" % (
        vr(v.O + 16 * bb, 16), vr(v.VF + (t * 4 + bb) * 4, 4), vr(v.P + 4 * t, 4), vr(v.O + 16 * bb, 16))


def F(r):
    return "v_fmamk_f32 v%d, v%d, %s, v%d" % (v.X + r, v.S + r, CL, v.nmc)


def ex(r):
    return "v_exp_f32 v%d, v%d" % (v.E + r % 8, v.X + r)


def add(r):
    if r == 0:
        return None
    if r == 1:
        return "v_add_f32 v%d, v%d, v%d" % (v.ps, v.E, v.E + 1)
    return "v_add_f32 v%d, v%d, v%d" % (v.ps, v.ps, v.E + r % 8)


def cvt(i):
    return "v_cvt_pk_bf16_f32 v%d, v%d, v%d" % (v.P + i, v.E + (2 * i) % 8, v.E + (2 * i + 1) % 8)


def soft_half_plain(h):
    r = [ex(8 * h + i) for i in range(8)]
    r += [x for x in (add(8 * h + i) for i in range(8)) if x]
    r += [cvt(4 * h + i) for i in range(4)]
    return r


CMP = "v_cmp_lt_f32 vcc, s%d, v%d" % (s.thr, v.ps)
LADD = "v_add_f32 v%d, v%d, v%d" % (v.l, v.l, v.ps)
PRGW = "ds_write_b32 v%d, v%d" % (v.prga, v.prg)
RDYR = "ds_read_b32 v%d, v%d" % (v.rdy, v.rdya)
PRGINC = "v_add_u32 v%d, s%d, v%d" % (v.prg, s.inc, v.prg)
NEEDINC = "s_add_u32 s%d, s%d, s%d" % (s.need, s.need, s.inc)
QK0 = "v_mfma_f32_32x32x16_bf16 %s, %s, %s, 0" % (vr(v.S, 16), vr(v.KF, 4), vr(v.Q, 4))
QK0M = "v_mfma_f32_32x32x16_bf16 %s, %s, %s, %s" % (vr(v.S, 16), vr(v.KF, 4), vr(v.Q, 4), vr(v.B, 16))
rets, srets = [], []


def newret():
    rets.append("L_ret%d" % len(rets))
    return len(rets) - 1


def kaddr():
    return ["v_add_u32 v%d, s%d, v%d" % (v.ka0, s.koff, v.ka0r),
            "v_add_u32 v%d, s%d, v%d" % (v.ka1, s.koff, v.ka1r)]


def vaddr():
    return ["v_add_u32 v%d, s%d, v%d" % (v.va + j, s.voff, v.var + j) for j in range(4)]


def adv(reg):
    return ["s_add_u32 s%d, s%d, s%d" % (reg, reg, s.astep), "s_and_b32 s%d, s%d, 0x1ffff" % (reg, reg)]


def spin(n="1"):
    r = ["s_sleep %s" % n]
    if not OPT.get("nosafe"):
        r += ["s_sub_u32 s%d, s%d, 1" % (s.guard, s.guard), "s_cbranch_scc1 L_end"]
    return r


def sync_call(target=None):
    k = len(srets)
    srets.append(target or "L_sr%d" % k)
    return ["s_mov_b32 s%d, %d" % (s.sret, k), "s_branch L_sync"] + ([] if target else ["L_sr%d:" % k])


_pl = [0]


ool = []


def poll_rdy():
    _pl[0] += 1
    a, b = "L_pa%d" % _pl[0], "L_pb%d" % _pl[0]
    ool.append([a + ":"] + spin() + [RDYR, "s_waitcnt lgkmcnt(0)", "s_branch %s" % b])
    return ["s_min_u32 s%d, s%d, s%d" % (s.t2, s.need, s.n), b + ":",
            "v_cmp_ge_u32 vcc, s%d, v%d" % (s.t2, v.rdy), "s_cbranch_vccnz %s" % a]


def body(kind):
    odd, hlp = kind != "even", kind == "hlp"
    st = 0 if odd else 1
    V = lambda i: vread(i, st)
    K = lambda t: kread(t, v.KF, st)
    W = lambda n: "s_waitcnt lgkmcnt(%d)" % n
    k = newret()
    q = [
        [NEEDINC, V(0), V(1), ex(8), add(7), cvt(3)],
        ["s_mov_b32 s%d, %d" % (s.ret, k), V(2), V(3), ex(9), ex(10)],
        [W(4), V(4), V(5), ex(11), add(8), add(9)],
        ["s_sub_u32 s%d, s%d, 1" % (s.U, s.U), V(6), V(7), ex(12), ex(13)],
        [None, V(8), V(9), ex(14), add(10), add(11)],
        [None, V(10), V(11), ex(15), add(12), add(13)],
        [W(4), V(12), V(13), add(14), add(15), CMP, cvt(4)],
        ["s_cbranch_vccnz L_resc", "L_ret%d:" % k, V(14), V(15), LADD, cvt(5), cvt(6), cvt(7)],
    ]
    p = [
        ["s_nop 0", K(0), K(1), K(2), F(0), F(1), F(2)],
        [None, K(3), ex(0), F(3), F(4), F(5)],
        [None, K(4), ex(1), F(6), F(7), F(8)],
        [W(5), K(5), ex(2), add(1), F(9), F(10)],
        [None, K(6), ex(3), add(2), cvt(0), F(11)],
        [None, K(7), ex(4), add(3), cvt(1), F(12)],
        [W(4), ex(5), ex(6), add(4), F(13)],
        [None, ex(7), add(5), add(6), cvt(2), F(14), F(15)],
    ]
    if odd:
        q[4][0], q[5][0] = adv(s.voff)
        p[4][0], p[5][0] = adv(s.koff)
        va, ka = vaddr(), kaddr()
        p[1].append(va[0])
        p[3].append(va[1])
        p[4].append(va[2])
        p[5].append(va[3])
        p[6].append(ka[0])
        p[7].append(ka[1])
    if not hlp:
        p[0][0] = "s_min_u32 s%d, s%d, s%d" % (s.chk, s.need, s.n)
        p[1][0] = "s_bitcmp1_b32 s%d, s%d" % (s.far + 5, s.U)
        p[2][0] = "s_cselect_b32 s%d, -1, s%d" % (s.chk, s.chk)
        p[2][2:2] = [RDYR]
        p[6][0] = W(3)
        if odd and (not OPT.get("nodpub")):
            q[2].append("v_add_u32 v%d, 8, v%d" % (v.fo, v.fo))
            q[3][1:1] = ["global_load_lds_dword v%d, %s" % (v.fo, sr(s.pc, 2))]
        p[7][3:3] = ["v_cmp_ge_u32 vcc, s%d, v%d" % (s.chk, v.rdy)]
    else:
        q[1].append(PRGINC)
        q[7][4:4] = [PRGW]
        sc = sync_call()
        q[3][1:1] = [sc[0]]
        p[0][0:1] = stamp_l() + sc[1:] + stamp_l()
    lab("L_%s_m" % kind)
    e(QK0)
    lab("L_%s_a" % kind)
    emit(q[0])
    for t in range(1, 8):
        e(qk(t))
        emit(q[t])
    for i in range(8):
        e(pv(i))
        emit(p[i])
    if not hlp:
        stamp()


def gen():
    K = NAME + "_kernel"
    near, far, _ = build_tables()
    PACE = int(OPT.get("pace", "0"))
    out.append(HEADER + "; @launch grid=(256,1,1) block=(512,1,1) lds=%d" % LDS_TOTAL)
    out.append('.amdgcn_target "amdgcn-amd-amdhsa--gfx950"')
    out.append(".text")
    out.append(".globl " + K)
    out.append(".p2align 12")
    out.append(".p2align 8")
    out.append(".type %s,@function" % K)
    lab(K)
    e("s_cmp_ge_u32 s2, 256")
    e("s_cbranch_scc1 L_end")
    if SPIN:
        e("s_memrealtime s[%d:%d]" % (s.ws, s.ws + 1))
        e("s_memrealtime s[%d:%d]" % (s.stp, s.stp + 1))
    e("s_load_dwordx8 s[4:11], s[0:1], 0")
    e("s_load_dwordx2 s[12:13], s[0:1], 32")
    if SPIN == "karg0":
        e("s_waitcnt lgkmcnt(0)")
        mark("karg0")
    e("s_getpc_b64 %s" % sr(s.pc, 2))
    lab("L_pc")
    if OPT.get("hmap", "2") == "4":
        e("s_lshr_b32 s%d, s2, 5" % s.t0)
        e("s_bfe_u32 s%d, s2, 0x10002" % s.t1)
        if OPT.get("swapg"):
            e("s_xor_b32 s%d, s%d, 1" % (s.t1, s.t1))
        e("s_lshl3_add_u32 s%d, s%d, s%d" % (s.t0, s.t1, s.t0))
    else:
        e("s_lshr_b32 s%d, s2, 4" % s.t0)
    e("s_lshl_b32 s%d, s%d, 5" % (s.t1, s.t0))
    e("s_add_u32 s%d, s%d, L_near-L_pc" % (s.t1, s.t1))
    e("s_load_dwordx8 %s, %s, s%d" % (sr(s.near, 8), sr(s.pc, 2), s.t1))
    e("v_mul_u32_u24 v%d, PFSTRIDE, v0" % v.t0)
    e("global_load_dword v%d, v%d, %s" % (v.pf, v.t0, sr(s.pc, 2)))
    e("s_branch L_start")
    out.append(".p2align 5")
    out.append(".type L_near,@object")
    lab("L_near")
    for ent in near:
        out.append("    .long " + ", ".join("0x%x" % x for x in ent))
    out.append(".size L_near, .-L_near")
    out.append(".type L_start,@function")
    lab("L_start")
    if SPIN == "lstart":
        e("s_memrealtime s[%d:%d]" % (s.stp, s.stp + 1))
    if STAMPS:
        e("v_mov_b32 v%d, 0" % v.st)
        e("s_mov_b32 s%d, 8" % s.sti)
        e("s_memrealtime s[%d:%d]" % (s.stp, s.stp + 1))
        e("s_memtime s[%d:%d]" % (s.ws, s.ws + 1))
    L, N, Fa = v.lane, s.near, s.far
    e("v_lshrrev_b32 v%d, 6, v0" % v.t0)
    e("v_and_b32 v%d, 63, v0" % L)
    e("v_readfirstlane_b32 s%d, v%d" % (s.wave, v.t0))
    if OPT.get("hmap", "2") == "4":
        e("s_and_b32 s%d, s2, 3" % s.t1)
        e("s_bfe_u32 s%d, s2, 0x20003" % s.t2)
        e("s_lshl2_add_u32 s%d, s%d, s%d" % (s.t1, s.t1, s.t2))
    else:
        e("s_and_b32 s%d, s2, 15" % s.t1)
    e("s_lshl_b32 s%d, s%d, 8" % (s.hoff, s.t1))
    e("s_lshl_b32 s%d, s%d, 3" % (s.t0, s.t0))
    e("s_add_u32 s%d, s%d, s%d" % (s.t0, s.t0, s.wave))
    e("s_lshl_b32 s%d, s%d, 5" % (s.t0, s.t0))
    e("s_add_u32 s%d, s%d, L_far-L_pc" % (s.foff, s.t0))
    e("s_cmp_lt_u32 s%d, 4" % s.wave)
    e("s_cbranch_scc1 L_mainpro")
    e("s_and_b32 s%d, s%d, 1" % (s.t0, s.wave))
    e("s_lshl_b32 s%d, s%d, 1" % (s.t0, s.t0))
    e("v_lshrrev_b32 v%d, 5, v%d" % (v.t0, L))
    e("v_add_u32 v%d, s%d, v%d" % (v.t0, s.t0, v.t0))
    e("v_and_b32 v%d, 3, v%d" % (v.t1, L))
    e("v_xor_b32 v%d, v%d, v%d" % (v.t1, v.t1, v.t0))
    e("v_and_b32 v%d, 12, v%d" % (v.t2, L))
    e("v_add_u32 v%d, v%d, v%d" % (v.t0, v.t0, v.t2))
    e("s_bfe_u32 s%d, s%d, 0x10001" % (s.t1, s.wave))
    e("s_lshl_b32 s%d, s%d, 16" % (s.t1, s.t1))
    e("v_lshlrev_b32 v%d, 12, v%d" % (v.t0, v.t0))
    e("v_lshl_add_u32 v%d, v%d, 4, v%d" % (v.t0, v.t1, v.t0))
    e("v_and_b32 v%d, 16, v%d" % (v.t2, L))
    e("v_lshl_add_u32 v%d, v%d, 2, v%d" % (v.t0, v.t2, v.t0))
    e("v_add_u32 v%d, s%d, v%d" % (v.kd0, s.t1, v.t0))
    e("v_add_u32 v%d, 0x80, v%d" % (v.kd1, v.kd0))
    e("s_and_b32 s%d, s%d, 3" % (s.t3, s.wave))
    e("s_lshl_b32 s%d, s%d, 12" % (s.dslot, s.t3))
    for b in (s.sq, s.kA, s.kB, s.vA, s.vB):
        e("s_mov_b32 s%d, 0x20000" % (b + 3))
    e("s_mov_b32 s%d, 0" % s.soff)
    e("s_add_u32 s%d, s%d, %d" % (s.d0, s.dslot, QBASE))
    e("s_waitcnt lgkmcnt(0)")
    if STAMPS:
        e("v_writelane_b32 v%d, s%d, 0" % (v.st, s.stp))
        e("v_writelane_b32 v%d, s%d, 1" % (v.st, s.ws))
        stamp(2)
        e("s_load_dwordx2 %s, s[0:1], %d" % (sr(s.ws, 2), 40 if OPT.get("dbg") else 48))
    mark("karg")

    def qtile(i):
        w = N + 5 + i // 2
        r = ["s_bitcmp1_b32 s%d, %d" % (w, 12 + 16 * (i % 2)),
             "s_cselect_b32 s%d, s%d, s%d" % (s.sq + 2, s.qeb, s.qea),
             "s_bfe_u32 s%d, s%d, 0x%x" % (s.t0, w, 0xc0000 + 16 * (i % 2)),
             "s_add_u32 m0, s%d, %d" % (s.d0, (i // 4) * 32768 + (i % 4) * 1024),
             "s_lshl_b32 s%d, s%d, 12" % (s.t0, s.t0),
             "buffer_load_dwordx4 v%d, %s, s%d offen %s lds" % (v.kd0, sr(s.sq, 4), s.t0, LDF_Q),
             "s_add_u32 m0, m0, 0x4000", "s_nop 0",
             "buffer_load_dwordx4 v%d, %s, s%d offen %s lds" % (v.kd1, sr(s.sq, 4), s.t0, LDF_Q)]
        return r
    e("s_add_u32 s%d, s%d, s%d" % (s.qea, N + 0, N + 1))
    e("s_add_u32 s%d, s%d, s%d" % (s.qeb, N + 2, N + 3))
    e("s_add_u32 s%d, s%d, s%d" % (s.sq, s.q, s.hoff))
    e("s_addc_u32 s%d, s%d, 0" % (s.sq + 1, s.q + 1))
    emit(qtile(0))
    e("s_add_u32 s%d, s%d, s%d" % (N + 0, N + 0, s.hoff))
    e("s_add_u32 s%d, s%d, s%d" % (s.kA, s.k, N + 0))
    e("s_addc_u32 s%d, s%d, 0" % (s.kA + 1, s.k + 1))
    e("s_sub_u32 s%d, s%d, 1024" % (s.kA, s.kA))
    e("s_subb_u32 s%d, s%d, 0" % (s.kA + 1, s.kA + 1))
    e("s_add_u32 s%d, s%d, 1024" % (s.kA + 2, N + 1))
    emit(chunk(0, True, flag=False))
    for i in (1, 2, 3):
        emit(qtile(i))
    e("s_add_u32 s%d, s%d, s%d" % (N + 2, N + 2, s.hoff))
    e("s_add_u32 s%d, s%d, s%d" % (s.kB, s.k, N + 2))
    e("s_addc_u32 s%d, s%d, 0" % (s.kB + 1, s.k + 1))
    e("s_mov_b32 s%d, s%d" % (s.kB + 2, N + 3))
    e("s_and_b32 s%d, s%d, 0xfffff000" % (s.stepb, N + 4))
    e("s_lshl_b32 s%d, s%d, 8" % (s.rdw, s.t3))
    e("s_add_u32 s%d, s%d, %d" % (s.rdw, s.rdw, RDYB))
    e("v_mov_b32 v%d, L_cnt-L_pc" % v.fo)
    for (srd, off, nr, d) in ((s.vA, N + 0, N + 1, 3072), (s.vB, N + 2, N + 3, 2048)):
        e("s_add_u32 s%d, s%d, %d" % (s.t0, s.stepb, d))
        e("s_add_u32 s%d, s%d, s%d" % (srd, s.vv, off))
        e("s_addc_u32 s%d, s%d, 0" % (srd + 1, s.vv + 1))
        e("s_sub_u32 s%d, s%d, s%d" % (srd, srd, s.t0))
        e("s_subb_u32 s%d, s%d, 0" % (srd + 1, srd + 1))
        e("s_add_u32 s%d, s%d, s%d" % (srd + 2, nr, s.t0))
    e("v_bfe_u32 v%d, v%d, 2, 2" % (v.t0, L))
    e("v_lshlrev_b32 v%d, 12, v%d" % (v.t0, v.t0))
    e("v_and_b32 v%d, 3, v%d" % (v.t1, L))
    e("v_lshl_add_u32 v%d, v%d, 4, v%d" % (v.t0, v.t1, v.t0))
    e("v_lshrrev_b32 v%d, 4, v%d" % (v.t1, L))
    e("v_lshl_add_u32 v%d, v%d, 6, v%d" % (v.t0, v.t1, v.t0))
    e("s_lshl_b32 s%d, s%d, 14" % (s.t3, s.t3))
    e("v_add_u32 v%d, s%d, v%d" % (v.vd0, s.t3, v.t0))
    e("v_add_u32 v%d, 0x10000, v%d" % (v.vd1, v.vd0))
    e("v_and_b32 v%d, 7, v%d" % (v.t0, L))
    e("v_mul_u32_u24 v%d, 0x104, v%d" % (v.t0, v.t0))
    e("v_add_u32 v%d, %d, v%d" % (v.pra, PRGB, v.t0))
    mark("iss")
    stamp(3)
    e("s_setprio %s" % OPT.get("hprio", "3"))
    e("s_branch L_common")
    lab("L_mainpro")
    for b in (s.sq, s.kA, s.kB, s.vA, s.vB):
        e("s_mov_b64 %s, s[0:1]" % sr(b, 2))
        e("s_mov_b32 s%d, 0" % (b + 2))
        e("s_mov_b32 s%d, 0x20000" % (b + 3))
    for r in (v.kd0, v.kd1, v.vd0, v.vd1, v.fo):
        e("v_mov_b32 v%d, 0" % r)
    if STAMPS:
        e("s_waitcnt lgkmcnt(0)")
        e("v_writelane_b32 v%d, s%d, 0" % (v.st, s.stp))
        e("v_writelane_b32 v%d, s%d, 1" % (v.st, s.ws))
        stamp(2)
        e("s_load_dwordx2 %s, s[0:1], %d" % (sr(s.ws, 2), 40 if OPT.get("dbg") else 48))
    lab("L_common")
    e("s_lshl_b32 s%d, s%d, 8" % (s.t0, s.wave))
    e("s_add_u32 s%d, s%d, %d" % (s.t0, s.t0, PRGB - 4096))
    e("v_lshl_add_u32 v%d, v%d, 2, s%d" % (v.prga, L, s.t0))
    e("v_mov_b32 v%d, 0" % v.l)
    e("ds_write_b32 v%d, v%d" % (v.prga, v.l))
    e("ds_write_b32 v%d, v%d offset:4096" % (v.prga, v.l))
    e("v_add_u32 v%d, 0x1000, v%d" % (v.prga, v.prga))
    e("s_waitcnt lgkmcnt(0)")
    e("s_load_dwordx8 %s, %s, s%d" % (sr(Fa, 8), sr(s.pc, 2), s.foff))
    e("s_barrier")
    e("s_cmp_lt_u32 s%d, 4" % s.wave)
    e("s_cbranch_scc1 L_common2")
    QH = qtile(4) + qtile(5)
    emit(FLAG + (QH if QE == 1 else []) + chunk(1, True) + STEP_ADV + (QH if QE == 2 else []) + chunk(0))
    lab("L_common2")
    e("v_bfe_u32 v%d, v%d, 4, 1" % (v.t0, L))
    e("v_lshlrev_b32 v%d, 13, v%d" % (v.t0, v.t0))
    e("v_bfe_u32 v%d, v%d, 1, 1" % (v.t1, L))
    e("v_lshl_add_u32 v%d, v%d, 12, v%d" % (v.t0, v.t1, v.t0))
    e("v_and_b32 v%d, 1, v%d" % (v.t1, L))
    e("v_lshl_add_u32 v%d, v%d, 9, v%d" % (v.t0, v.t1, v.t0))
    e("v_bfe_u32 v%d, v%d, 2, 2" % (v.t1, L))
    e("v_lshl_add_u32 v%d, v%d, 6, v%d" % (v.t0, v.t1, v.t0))
    e("v_lshrrev_b32 v%d, 5, v%d" % (v.t1, L))
    e("v_and_b32 v%d, 3, v%d" % (v.t2, L))
    e("v_xor_b32 v%d, v%d, v%d" % (v.t1, v.t1, v.t2))
    e("v_lshl_add_u32 v%d, v%d, 4, v%d" % (v.ka0r, v.t1, v.t0))
    e("v_xor_b32 v%d, 32, v%d" % (v.ka1r, v.ka0r))
    e("v_lshrrev_b32 v%d, 5, v%d" % (v.t0, L))
    e("v_lshlrev_b32 v%d, 12, v%d" % (v.t0, v.t0))
    e("v_bfe_u32 v%d, v%d, 2, 2" % (v.t1, L))
    e("v_lshl_add_u32 v%d, v%d, 6, v%d" % (v.t0, v.t1, v.t0))
    e("v_bfe_u32 v%d, v%d, 4, 1" % (v.t1, L))
    e("v_lshl_add_u32 v%d, v%d, 5, v%d" % (v.t0, v.t1, v.t0))
    e("v_lshl_add_u32 v%d, v%d, 3, v%d" % (v.t0, v.t2, v.t0))
    e("v_add_u32 v%d, 0x800, v%d" % (v.var, v.t0))
    e("s_mov_b32 s%d, 0x%x" % (s.thr, f2u(THRESH)))
    e("v_mul_u32_u24 v%d, 0x104, v%d" % (v.t1, v.t2))
    e("v_add_u32 v%d, %d, v%d" % (v.rdya, RDYB, v.t1))
    e("s_mov_b32 s%d, 0x8000" % s.guard)
    e("v_mov_b32 v%d, 0" % v.rdy)
    e("s_waitcnt lgkmcnt(0)")
    e("s_add_u32 s%d, s%d, s%d" % (s.t0, Fa + 0, s.hoff))
    e("s_add_u32 s%d, s%d, s%d" % (s.so, s.out, s.t0))
    e("s_addc_u32 s%d, s%d, 0" % (s.so + 1, s.out + 1))
    e("s_mov_b32 s%d, s%d" % (s.so + 2, Fa + 1))
    e("s_mov_b32 s%d, 0x20000" % (s.so + 3))
    e("s_and_b32 s%d, s%d, 0xff" % (s.n, N + 4))
    e("s_bfe_u32 s%d, s%d, 0x40008" % (s.t3, Fa + 2))
    e("s_cbranch_scc1 L_work")
    e("v_mov_b32 v%d, %d" % (v.prg, BIG))
    e(PRGW)
    e("s_cmp_lt_u32 s%d, 4" % s.wave)
    e("s_cbranch_scc1 L_fin")
    e("s_branch L_presig")
    lab("L_work")
    for r in range(0, 64, 2):
        e("v_pk_mov_b32 %s, 0, 0" % vr(v.O + r, 2))
    e("s_and_b32 s%d, s%d, 0xff" % (s.U, Fa + 2))
    e("s_bfe_u32 s%d, s%d, 0x4000c" % (s.inc, Fa + 2))
    e("s_and_b32 s%d, s%d, 0xfffff" % (s.reg, Fa + 4))
    e("s_bfe_u32 s%d, s%d, 0x80010" % (s.t0, Fa + 2))
    e("s_sub_u32 s%d, s%d, 1" % (s.t0, s.t0))
    e("v_lshrrev_b32 v%d, 5, v%d" % (v.t0, L))
    e("v_lshlrev_b32 v%d, 2, v%d" % (v.t0, v.t0))
    e("v_sub_u32 v%d, s%d, v%d" % (v.t0, s.t0, v.t0))
    e("v_mov_b32 v%d, 0xff800000" % v.t1)
    for r in range(16):
        cst = 8 * (r // 4) + r % 4
        e("v_subrev_u32 v%d, %d, v%d" % (v.B + r, cst, v.t0))
        e("v_ashrrev_i32 v%d, 31, v%d" % (v.B + r, v.B + r))
        e("v_and_b32 v%d, v%d, v%d" % (v.B + r, v.t1, v.B + r))
    e("s_bfe_u32 s%d, s%d, 0x20014" % (s.t0, Fa + 4))
    e("s_lshl_b32 s%d, s%d, 10" % (s.t0, s.t0))
    e("s_bfe_u32 s%d, s%d, 0x10016" % (s.t1, Fa + 4))
    e("s_lshl_b32 s%d, s%d, 15" % (s.t1, s.t1))
    e("s_add_u32 s%d, s%d, s%d" % (s.t0, s.t0, s.t1))
    e("s_add_u32 s%d, s%d, %d" % (s.koff, s.t0, QBASE))
    e("v_add_u32 v%d, s%d, v%d" % (v.t2, s.koff, v.ka0r))
    e("v_add_u32 v%d, s%d, v%d" % (v.t3, s.koff, v.ka1r))
    e("s_cmp_lg_u32 s%d, 1" % s.t3)
    e("s_cselect_b32 s%d, 1, 0" % s.m1)
    e("s_bfe_u32 s%d, s%d, 0x2001a" % (s.t0, Fa + 4))
    e("s_lshl_b32 s%d, s%d, 15" % (s.astep, s.t0))
    e("s_bfe_u32 s%d, s%d, 0x10019" % (s.t2, Fa + 4))
    e("s_bfe_u32 s%d, s%d, 0x10018" % (s.t0, Fa + 4))
    e("s_lshl_b32 s%d, s%d, 10" % (s.t0, s.t0))
    e("s_mul_i32 s%d, s%d, s%d" % (s.t1, s.t0, s.m1))
    e("s_sub_u32 s%d, s%d, s%d" % (s.t0, s.t0, s.t1))
    e("s_lshl_b32 s%d, s%d, 15" % (s.voff, s.t2))
    e("s_add_u32 s%d, s%d, s%d" % (s.koff, s.voff, s.t0))
    e("s_add_u32 s%d, s%d, 0x8000" % (s.voff, s.voff))
    e("v_add_u32 v%d, s%d, v%d" % (v.ka0r, s.t1, v.ka0r))
    e("v_add_u32 v%d, s%d, v%d" % (v.ka1r, s.t1, v.ka1r))
    e("s_bfe_u32 s%d, s%d, 0x2001c" % (s.t0, Fa + 2))
    for j in (3, 2, 1, 0):
        e("s_add_u32 s%d, s%d, %d" % (s.col, s.t0, j))
        e("s_and_b32 s%d, s%d, 3" % (s.col, s.col))
        e("s_lshl_b32 s%d, s%d, 8" % (s.col, s.col))
        e("s_add_u32 s%d, s%d, s%d" % (s.col, s.col, s.t1))
        e("v_add_u32 v%d, s%d, v%d" % (v.var + j, s.col, v.var))
    emit(vaddr() + kaddr())
    e("s_and_b32 s%d, s%d, 0xff" % (s.t0, Fa + 3))
    e("v_mov_b32 v%d, s%d" % (v.prg, s.t0))
    e("s_bfe_u32 s%d, s%d, 0x80010" % (s.need, Fa + 3))
    e("s_cmp_lt_u32 s%d, 4" % s.wave)
    e("s_cbranch_scc1 L_sig0")
    e(PRGW)
    lab("L_presig")
    emit((QH if QE == 0 else []) + chunk(1) + STEP_ADV)
    e("s_mov_b32 s%d, 4" % s.iss)
    stamp()
    e("s_cmp_eq_u32 s%d, 0" % s.t3)
    e("s_cbranch_scc1 L_hdone")
    emit(sync_call("L_head"))
    lab("L_sig0")
    e("s_bfe_u32 s%d, s%d, 0x80008" % (s.t0, Fa + 3))
    e("s_sub_u32 s%d, s%d, s%d" % (s.t0, s.t0, s.m1))
    e("s_lshl_b32 s%d, s%d, 2" % (s.t0, s.t0))
    e("s_add_u32 s%d, s%d, L_cnt-L_pc-4" % (s.t0, s.t0))
    e("v_mov_b32 v%d, s%d" % (v.fo, s.t0))
    e("s_lshl_b32 s%d, s%d, 8" % (s.t0, s.wave))
    e("s_add_u32 m0, s%d, %d" % (s.t0, PRGB))
    stamp()
    emit(poll_rdy())
    mark("sig0")
    stamp()
    lab("L_head")
    qr = [kread(t, v.Q).replace("v%d " % v.ka0, "v%d " % v.t2).replace("v%d " % v.ka1, "v%d " % v.t3) for t in range(8)]
    kr = [kread(t, v.KF) for t in range(8)]
    for t in range(7):
        emit([qr[t], kr[t]])
    e("s_add_u32 s%d, s%d, s%d" % (s.t0, s.koff, s.astep))
    e("s_mul_i32 s%d, s%d, s%d" % (s.koff, s.t0, s.m1))
    e("s_waitcnt lgkmcnt(12)")
    e(QK0)
    emit([qr[7], kr[7], PRGW])
    for t in range(1, 8):
        e("s_waitcnt lgkmcnt(%d)" % (15 - 2 * t + (1 if t >= 2 else 0)))
        e(qk(t))
        if t == 1:
            e(RDYR)
            emit(kaddr())
            emit(adv(s.koff))
        if t == 2:
            e("v_and_b32 v%d, 31, v%d" % (v.t2, L))
            e("v_lshlrev_b32 v%d, 12, v%d" % (v.t2, v.t2))
            e("v_sub_u32 v%d, s%d, v%d" % (v.t2, Fa + 1, v.t2))
            e("v_ashrrev_i32 v%d, 31, v%d" % (v.t2, v.t2))
            e("v_and_b32 v%d, 0xff800000, v%d" % (v.t2, v.t2))
        if t == 3:
            e("s_bfe_u32 s%d, s%d, 0x80008" % (s.t0, Fa + 3))
            e("v_mov_b32 v%d, s%d" % (v.prg, s.t0))
            e("s_lshl_b32 s%d, s%d, 1" % (s.t0, s.m1))
            e("s_add_u32 s%d, s%d, s%d" % (s.need, s.need, s.t0))
            e("s_max_u32 s%d, s%d, 1" % (s.need, s.need))
    e("s_cmp_lt_u32 s%d, 4" % s.wave)
    e("s_waitcnt lgkmcnt(0)")
    e("s_cbranch_scc0 L_head2")
    emit(poll_rdy())
    emit(kr)
    emit(kaddr())
    lab("L_head2")
    e("s_lshr_b32 s%d, s%d, 24" % (s.need, Fa + 3))
    e("s_nop 7")
    e("v_max3_f32 v%d, v%d, v%d, v%d" % (v.t0, v.S, v.S + 1, v.S + 2))
    e("v_max3_f32 v%d, v%d, v%d, v%d" % (v.t1, v.S + 3, v.S + 4, v.S + 5))
    for r in range(6, 14, 4):
        e("v_max3_f32 v%d, v%d, v%d, v%d" % (v.t0, v.t0, v.S + r, v.S + r + 1))
        e("v_max3_f32 v%d, v%d, v%d, v%d" % (v.t1, v.t1, v.S + r + 2, v.S + r + 3))
    e("v_max3_f32 v%d, v%d, v%d, v%d" % (v.t0, v.t0, v.S + 14, v.S + 15))
    e("v_max_f32 v%d, v%d, v%d" % (v.t0, v.t0, v.t1))
    e("v_mov_b32 v%d, v%d" % (v.t1, v.t0))
    e(RDYR)
    e("s_nop 0")
    e("v_permlane32_swap_b32 v%d, v%d" % (v.t0, v.t1))
    e("s_nop 1")
    e("v_max_f32 v%d, v%d, v%d" % (v.t0, v.t0, v.t1))
    e("v_fmamk_f32 v%d, v%d, 0x%x, v%d" % (v.nmc, v.t0, f2u(-C_SCALE), v.t2))
    for r in range(16):
        e(F(r))
    emit([ex(i) for i in range(8)] + [add(i) for i in range(1, 7)] + [cvt(0), cvt(1), cvt(2)])
    e("s_cmp_lt_u32 s%d, 4" % s.wave)
    e("s_waitcnt lgkmcnt(0)")
    e("s_cbranch_scc0 L_hlp_in")
    stamp()
    emit(poll_rdy())
    mark("loop")
    stamp()
    e("s_cmp_eq_u32 s%d, 1" % s.m1)
    e("s_cbranch_scc1 L_odd_m")
    out.append(".p2align 4")
    body("even")
    e("s_cbranch_vccnz L_hnd_even")
    body("odd")
    e("s_cbranch_vccz L_even_m")
    emit(poll_rdy())
    e("s_cmp_le_u32 s%d, 1" % s.U)
    e("s_cbranch_scc1 L_ho1")
    e("s_cmp_eq_u32 s%d, 0" % s.m1)
    e("s_cbranch_scc0 L_odd_m")
    e("s_branch L_even_m")
    lab("L_ho1")
    e("s_cmp_eq_u32 s%d, 0" % s.U)
    e("s_cbranch_scc1 L_tail0")
    e("s_cmp_eq_u32 s%d, 0" % s.m1)
    e(QK0M)
    e("s_cbranch_scc1 L_even_a")
    e("s_branch L_odd_a")
    lab("L_hnd_even")
    emit(poll_rdy())
    e("s_cmp_gt_u32 s%d, 1" % s.U)
    e("s_cbranch_scc1 L_odd_m")
    e("s_cmp_eq_u32 s%d, 0" % s.U)
    e("s_cbranch_scc1 L_tail")
    e(QK0M)
    e("s_branch L_odd_a")
    lab("L_hlp_in")
    e(PRGW)
    stamp()
    emit(sync_call())
    stamp()
    for t in range(8):
        e(kread(t, v.KF))
    emit(kaddr())
    e("s_waitcnt lgkmcnt(4)")
    e("s_branch L_hnd_hlp")
    body("hlp")
    lab("L_hnd_hlp")
    e("s_cmp_gt_u32 s%d, 1" % s.U)
    e("s_cbranch_scc1 L_hlp_m")
    e("s_cmp_eq_u32 s%d, 0" % s.U)
    e("s_cbranch_scc1 L_tail")
    e(QK0M)
    e("s_branch L_hlp_a")
    lab("L_tail0")
    e("s_cmp_eq_u32 s%d, 1" % s.m1)
    e("s_cbranch_scc1 L_tail")
    for j in range(4):
        e("v_add_u32 v%d, 0x400, v%d" % (v.va + j, v.va + j))
    tw, tr0, oo, rl = v.ka1, v.va, v.ka1r, v.X + 2

    def lsum():
        return ["v_mov_b32 v%d, v%d" % (v.t0, v.l), "s_nop 1",
                "v_permlane32_swap_b32 v%d, v%d" % (v.l, v.t0), "s_nop 1",
                "v_add_f32 v%d, v%d, v%d" % (v.l, v.l, v.t0)]

    def st_addr():
        r = ["v_and_b32 v%d, 31, v%d" % (v.t0, L),
             "v_lshrrev_b32 v%d, 5, v%d" % (v.t1, L),
             "v_lshlrev_b32 v%d, 3, v%d" % (v.t1, v.t1),
             "v_and_b32 v%d, 7, v%d" % (v.t2, L),
             "v_lshl_add_u32 v%d, v%d, 4, v%d" % (v.t1, v.t2, v.t1),
             "v_lshl_add_u32 v%d, v%d, 7, v%d" % (v.t0, v.t0, v.t1),
             "v_add_u32 v%d, s%d, v%d" % (tw, s.reg, v.t0)]
        r += ["v_xor_b32 v%d, %d, v%d" % (v.E + c, c * 16, tw) for c in range(8)]
        r += ["v_lshrrev_b32 v%d, 3, v%d" % (v.t0, L),
              "v_xor_b32 v%d, v%d, v%d" % (v.t1, v.t2, v.t0),
              "v_lshlrev_b32 v%d, 4, v%d" % (v.t1, v.t1),
              "v_lshl_add_u32 v%d, v%d, 7, v%d" % (v.t1, v.t0, v.t1),
              "v_add_u32 v%d, s%d, v%d" % (tr0, s.reg, v.t1),
              "v_lshlrev_b32 v%d, 12, v%d" % (v.t0, v.t0),
              "v_lshl_add_u32 v%d, v%d, 4, v%d" % (oo, v.t2, v.t0)]
        return r

    def pack_q(bb, norm=True, pk=True):
        r = []
        for g in range(4):
            c = 4 * bb + g
            o = v.O + 4 * c
            d = v.S + 2 * c
            if norm and not pk:
                r += ["v_mul_f32 v%d, v%d, v%d" % (o + i, o + i, rl) for i in range(4)]
            elif norm:
                r += ["v_pk_mul_f32 %s, %s, %s op_sel_hi:[1,0]" % (vr(o + i, 2), vr(o + i, 2), vr(rl, 2)) for i in (0, 2)]
            r += ["v_cvt_pk_bf16_f32 v%d, v%d, v%d" % (d, o, o + 1),
                  "v_cvt_pk_bf16_f32 v%d, v%d, v%d" % (d + 1, o + 2, o + 3),
                  "ds_write_b64 v%d, %s" % (v.E + c % 8, vr(d, 2))]
        return r

    def rd_half(hh):
        return ["ds_read_b128 %s, v%d offset:%d" % (vr(v.KF + 16 * hh + 4 * k, 4), tr0, k * 1024) for k in range(4)]

    def st_one(hh, k):
        return ["buffer_store_dwordx4 %s, v%d, %s, s%d offen offset:%d %s" % (
                    vr(v.KF + 16 * hh + 4 * k, 4), oo, sr(s.so, 4), s.col + k if k < 3 else s.t1, 128 * hh, STF)]

    sa = st_addr()
    cols = ["s_mov_b32 s%d, 0" % s.col, "s_mov_b32 s%d, 0x8000" % (s.col + 1),
            "s_mov_b32 s%d, 0x10000" % (s.col + 2), "s_mov_b32 s%d, 0x18000" % s.t1]
    RCP = "v_rcp_f32 v%d, v%d" % (rl, v.l)
    lab("L_tail")
    mark("tail")
    e("v_mov_b32 v%d, %d" % (v.prg, BIG))
    e("s_bitcmp1_b32 s%d, 31" % (Fa + 4))
    e("s_cbranch_scc1 L_tails")
    k = newret()
    vord = [0, 1, 8, 9, 2, 3, 10, 11, 4, 5, 12, 13, 6, 7, 14, 15]
    for i in vord[:12]:
        e(vread(i))
    emit([ex(8), add(7), cvt(3)] + [ex(i) for i in range(9, 16)])
    e("s_cmp_lt_u32 s%d, 4" % s.wave)
    e("s_cbranch_scc0 L_t1")
    e("s_waitcnt vmcnt(0)")
    lab("L_t1")
    for i in vord[12:]:
        e(vread(i))
    e(PRGW)
    emit([add(i) for i in range(8, 16)] + [CMP, cvt(4), "s_mov_b32 s%d, %d" % (s.ret, k), "s_cbranch_vccnz L_resc",
                                           "L_ret%d:" % k, cvt(5), cvt(6), cvt(7), LADD])
    e("s_cmp_lt_u32 s%d, 4" % s.wave)
    e("s_waitcnt lgkmcnt(0)")
    e("s_cbranch_scc0 L_htail")
    lab("L_tail2")
    p0 = pack_q(0, pk=False)
    emit([pv(0)] + lsum() + [RCP])
    emit([pv(4), cols[0]] + sa[0:7])
    emit([pv(1), cols[1]] + sa[7:15])
    emit([pv(5), cols[2]] + sa[15:])
    emit([pv(2), cols[3]] + p0[0:7])
    emit([pv(6)] + p0[7:14])
    emit([pv(3)] + p0[14:21])
    emit([pv(7)] + p0[21:])
    lab("L_tail3")
    stamp(5)
    emit(pack_q(1) + rd_half(0))
    p2 = pack_q(2)
    emit(p2[:10] + ["s_waitcnt lgkmcnt(5)"] + st_one(0, 0) + p2[10:] + ["s_waitcnt lgkmcnt(4)"] + st_one(0, 1))
    p3 = pack_q(3)
    emit(p3[:10] + st_one(0, 2) + p3[10:] + st_one(0, 3) + rd_half(1))
    stamp(4)
    for k in range(4):
        emit(["s_waitcnt lgkmcnt(%d)" % (3 - k)] + st_one(1, k))
    k = newret()
    ool.append(["L_tails:"] + [vread(i) for i in range(8)]
               + [add(7), "s_waitcnt vmcnt(0)", PRGW, CMP, cvt(3), "s_mov_b32 s%d, %d" % (s.ret, k), "s_cbranch_vccnz L_resc",
                  "L_ret%d:" % k, LADD] + lsum() + [RCP, "s_waitcnt lgkmcnt(1)",
                  pv(0), cols[0]] + sa[0:7] + [pv(1), cols[1]] + sa[7:15] + [pv(2), cols[2]] + sa[15:]
               + [pv(3), cols[3]] + pack_q(0) + ["s_branch L_tail3"])
    lab("L_fin")
    if SPIN:
        mark("st")
        e("s_waitcnt vmcnt(0)")
        mark("end")
        if SPIN == "glob":
            e("s_load_dwordx2 s[98:99], s[0:1], 40")
            e("s_not_b32 s%d, s%d" % (s.t0, s.ws))
            e("v_mov_b32 v%d, s%d" % (v.t1, s.t0))
            e("v_mov_b32 v%d, 0" % v.t0)
            e("s_waitcnt lgkmcnt(0)")
            e("s_cmp_lg_u32 s%d, 0" % s.wave)
            e("s_cbranch_scc1 L_g1")
            e("s_mov_b64 exec, 1")
            e("global_atomic_umax v%d, v%d, s[98:99]" % (v.t0, v.t1))
            e("s_mov_b64 exec, -1")
            lab("L_g1")
        e("s_sub_u32 s%d, s%d, s%d" % (s.t0, s.stp, s.ws))
        e("s_mul_i32 s%d, s%d, %s" % (s.t0, s.t0, OPT.get("amp", "2")))
        e("s_add_u32 s%d, s%d, 3000" % (s.t0, s.t0))
        lab("L_spin")
        e("s_sleep 2")
        e("s_memrealtime s[%d:%d]" % (s.stp, s.stp + 1))
        e("s_waitcnt lgkmcnt(0)")
        e("s_sub_u32 s%d, s%d, s%d" % (s.t1, s.stp, s.ws))
        e("s_cmp_lt_u32 s%d, s%d" % (s.t1, s.t0))
        e("s_cbranch_scc1 L_spin")
        if SPIN == "glob":
            e("global_load_dword v%d, v%d, s[98:99] sc0 sc1" % (v.t1, v.t0))
            e("s_waitcnt vmcnt(0)")
            e("v_readfirstlane_b32 s%d, v%d" % (s.t2, v.t1))
            e("s_not_b32 s%d, s%d" % (s.t2, s.t2))
            lab("L_spin2")
            e("s_sleep 2")
            e("s_memrealtime s[%d:%d]" % (s.stp, s.stp + 1))
            e("s_waitcnt lgkmcnt(0)")
            e("s_sub_u32 s%d, s%d, s%d" % (s.t1, s.stp, s.t2))
            e("s_cmp_lt_u32 s%d, 4000" % s.t1)
            e("s_cbranch_scc1 L_spin2")
    if STAMPS:
        stamp(6)
        e("s_waitcnt vmcnt(0)")
        stamp(7)
        stamp(61, True)
        e("s_getreg_b32 s%d, hwreg(HW_REG_XCC_ID)" % s.stp)
        e("v_writelane_b32 v%d, s%d, 62" % (v.st, s.stp))
        e("s_lshl_b32 s%d, s2, 3" % s.t0)
        e("s_add_u32 s%d, s%d, s%d" % (s.t0, s.t0, s.wave))
        e("s_lshl_b32 s%d, s%d, 8" % (s.t0, s.t0))
        e("v_lshlrev_b32 v%d, 2, v%d" % (v.t0, v.lane))
        e("v_add_u32 v%d, s%d, v%d" % (v.t0, s.t0, v.t0))
        if OPT.get("dbg"):
            e("v_readlane_b32 s%d, v%d, 0" % (s.t0, v.st))
            e("v_readlane_b32 s%d, v%d, 61" % (s.t1, v.st))
            e("v_readlane_b32 s%d, v%d, 1" % (s.t2, v.st))
            e("s_not_b32 s%d, s%d" % (s.t3, s.t0))
            e("v_cmp_ne_u32 vcc, 0, v%d" % v.st)
            e("v_subrev_u32 v%d, s%d, v%d" % (v.t1, s.t2, v.st))
            e("s_nop 1")
            e("v_cndmask_b32 v%d, 0, v%d, vcc" % (v.t1, v.t1))
            e("v_writelane_b32 v%d, s%d, 0" % (v.t1, s.t3))
            e("v_writelane_b32 v%d, s%d, 1" % (v.t1, s.t1))
            e("v_writelane_b32 v%d, s%d, 15" % (v.t1, s.t0))
            e("v_lshlrev_b32 v%d, 2, v%d" % (v.t0, v.lane))
            e("s_cmp_lt_u32 s%d, 4" % s.wave)
            e("s_cselect_b32 s%d, 0xffff, 0x80ff" % s.t0 if False else "s_mov_b32 s%d, 0x80ff" % s.t0)
            e("s_cselect_b32 exec_lo, 0xffff, s%d" % s.t0)
            e("s_mov_b32 exec_hi, 0")
            e("global_atomic_umax v%d, v%d, %s" % (v.t0, v.t1, sr(s.ws, 2)))
        else:
            e("global_store_dword v%d, v%d, %s" % (v.t0, v.st, sr(s.ws, 2)))
    lab("L_end")
    e("s_endpgm")
    for blk in ool:
        emit(blk)
    lab("L_sync")
    e("s_setprio %s" % OPT.get("sprio", "0"))
    e("s_min_u32 s%d, s%d, s%d" % (s.t2, s.need, s.n))
    e("s_cmp_eq_u32 s%d, 0x20000" % s.stepb)
    e("s_cselect_b32 s%d, %s, %s" % (s.t3, OPT.get("lookd", "4"), OPT.get("look", "2")))
    e("s_add_u32 s%d, s%d, s%d" % (s.t3, s.t2, s.t3))
    e("s_min_u32 s%d, s%d, s%d" % (s.t3, s.t3, s.n))
    lab("L_svc")
    e("ds_read_b32 v%d, v%d" % (v.t1, v.pra))
    e(RDYR)
    e("s_sub_i32 s%d, s%d, 5" % (s.t1, s.iss))
    e("s_cmp_gt_u32 s%d, s%d" % (s.iss, s.t3))
    e("s_waitcnt lgkmcnt(0)")
    e("s_cbranch_scc0 L_svc1")
    e("v_cmp_ge_u32 vcc, s%d, v%d" % (s.t2, v.rdy))
    e("s_cbranch_vccz L_svcx")
    e("s_cmp_gt_u32 s%d, s%d" % (s.iss, s.n))
    e("s_cbranch_scc1 L_svcs")
    lab("L_svc1")
    e("v_cmp_gt_i32 vcc, s%d, v%d" % (s.t1, v.t1))
    e("s_cbranch_vccnz L_svc2")
    e("s_add_u32 s%d, s%d, 1" % (s.iss, s.iss))
    if OPT.get("cap", "10"):
        e("s_waitcnt vmcnt(%s)" % OPT.get("cap", "10"))
    e("s_bitcmp0_b32 s%d, 0" % s.iss)
    e("s_cbranch_scc1 L_svcB")
    emit(chunk(0, pace=PACE))
    e("s_branch L_svc")
    lab("L_svcB")
    emit(chunk(1, pace=PACE) + STEP_ADV)
    e("s_branch L_svc")
    lab("L_svc2")
    e("v_cmp_ge_u32 vcc, s%d, v%d" % (s.t2, v.rdy))
    e("s_cbranch_vccz L_svcx")
    lab("L_svcs")
    emit(spin(OPT.get("slp", "2")))
    e("s_branch L_svc")
    lab("L_svcx")
    e("s_setprio %s" % OPT.get("hprio", "3"))
    SRET_AT = len(out)
    lab("L_htail")
    e("s_mov_b32 s%d, s%d" % (s.need, s.n))
    e("s_bitcmp0_b32 s%d, 24" % (Fa + 2))
    e("s_cbranch_scc1 L_htail2")
    emit(sync_call("L_tail2"))
    lab("L_htail2")
    for i in range(8):
        e(pv(i))
    lab("L_hdone")
    e("s_mov_b32 s%d, s%d" % (s.need, s.n))
    emit(sync_call())
    e("s_sub_u32 s%d, s%d, 1" % (s.t2, s.n))
    e("s_bfe_u32 s%d, s%d, 0x40018" % (s.n, Fa + 2))
    e("s_cbranch_scc0 L_fin")
    e("s_setprio %s" % OPT.get("eprio", "0"))
    e("s_branch L_pe1")
    lab("L_pe0")
    emit(spin(OPT.get("slp", "2")))
    lab("L_pe1")
    e("ds_read_b32 v%d, v%d" % (v.t1, v.pra))
    e("s_waitcnt lgkmcnt(0)")
    e("v_cmp_gt_u32 vcc, s%d, v%d" % (s.t2, v.t1))
    e("s_cbranch_vccnz L_pe0")
    stamp(5)
    l16, l8, xa, cnt = v.ka0, v.ka0r, v.var, v.var + 1
    emit(lsum())
    e("v_lshlrev_b32 v%d, 4, v%d" % (l16, L))
    e("v_lshlrev_b32 v%d, 3, v%d" % (l8, L))
    e("s_lshl_b32 s%d, s%d, 9" % (s.t0, s.wave))
    e("s_add_u32 s%d, s%d, %d" % (s.t0, s.t0, MLBASE - 2048))
    e("v_add_u32 v%d, s%d, v%d" % (xa, s.t0, l8))
    e("ds_write_b64 v%d, %s" % (xa, vr(v.nmc, 2)))
    e("s_cmp_eq_u32 s%d, 2" % s.n)
    e("s_cbranch_scc1 L_sd2")
    for j in (1, 2, 3):
        if j == 2:
            lab("L_sd2")
        e("s_and_b32 s%d, s%d, 0xffffff" % (s.t0, Fa + 4 + j))
        e("v_add_u32 v%d, s%d, v%d" % (xa, s.t0, l16))
        for k in range(4):
            e("ds_write_b128 v%d, %s offset:%d" % (xa, vr(v.O + 16 * j + 4 * k, 4), k * 1024))
    e("s_lshr_b32 s%d, s%d, 30" % (s.t0, Fa + 2))
    e("s_lshl_b32 s%d, s%d, 2" % (s.t0, s.t0))
    e("s_add_u32 s%d, s%d, %d" % (s.t0, s.t0, CNTB))
    e("v_mov_b32 v%d, s%d" % (cnt, s.t0))
    e("v_mov_b32 v%d, 1" % v.t3)
    e("s_mov_b64 exec, 1")
    e("ds_add_u32 v%d, v%d" % (cnt, v.t3))
    e("s_mov_b64 exec, -1")
    emit(st_addr())
    e("v_add_u32 v%d, s%d, v%d" % (xa, s.reg, l16))
    for j in range(3):
        e("s_lshr_b32 s%d, s%d, 24" % (s.t0, Fa + 5 + j))
        e("s_lshl_b32 s%d, s%d, 9" % (s.t0, s.t0))
        e("s_add_u32 s%d, s%d, %d" % (s.t0, s.t0, MLBASE))
        e("v_add_u32 v%d, s%d, v%d" % (v.P + j, s.t0, l8))
    e("s_branch L_poll1")
    lab("L_poll")
    emit(spin())
    lab("L_poll1")
    e("ds_read_b32 v%d, v%d" % (v.t3, cnt))
    e("s_waitcnt lgkmcnt(0)")
    e("v_cmp_ne_u32 vcc, s%d, v%d" % (s.n, v.t3))
    e("s_cbranch_vccnz L_poll")
    stamp(4)
    for j in range(3):
        e("ds_read_b64 %s, v%d" % (vr(v.X + 2 * j, 2), v.P + j))
    for k in range(12):
        e("ds_read_b128 %s, v%d offset:%d" % (vr(v.KF + 16 + 4 * k, 4), xa, k * 1024))
    RX = v.KF + 16
    f0, f1, f2, f3 = v.X + 8, v.X + 9, v.X + 10, v.X + 11
    e("s_bfe_u32 s%d, s%d, 0x2001c" % (s.col, Fa + 2))
    e("s_lshl_b32 s%d, s%d, 6" % (s.col, s.col))
    e("s_add_u32 s%d, s%d, 0x8000" % (s.col + 1, s.col))
    e("s_add_u32 s%d, s%d, 0x10000" % (s.col + 2, s.col))
    e("s_add_u32 s%d, s%d, 0x18000" % (s.t1, s.col))
    e("s_waitcnt lgkmcnt(12)")
    e("v_min3_f32 v%d, v%d, v%d, v%d" % (v.t3, v.nmc, v.X, v.X + 2))
    e("v_min_f32 v%d, v%d, v%d" % (v.t3, v.t3, v.X + 4))
    e("v_sub_f32 v%d, v%d, v%d" % (f0, v.t3, v.nmc))
    for j, f in enumerate((f1, f2, f3)):
        e("v_sub_f32 v%d, v%d, v%d" % (f, v.t3, v.X + 2 * j))
    for f in (f0, f1, f2, f3):
        e("v_exp_f32 v%d, v%d" % (f, f))
    e("v_mul_f32 v%d, v%d, v%d" % (v.l, v.l, f0))
    e("v_fmac_f32 v%d, v%d, v%d" % (v.l, v.X + 1, f1))
    e("s_cmp_eq_u32 s%d, 2" % s.n)
    e("s_cbranch_scc1 L_mg2")
    e("v_fmac_f32 v%d, v%d, v%d" % (v.l, v.X + 3, f2))
    e("v_fmac_f32 v%d, v%d, v%d" % (v.l, v.X + 5, f3))
    e("v_rcp_f32 v%d, v%d" % (v.t3, v.l))
    e("v_and_b32 v%d, 4, v%d" % (v.t0, L))
    e("v_lshl_add_u32 v%d, v%d, 28, v%d" % (oo, v.t0, oo))
    for f in (f0, f1, f2, f3):
        e("v_mul_f32 v%d, v%d, v%d" % (f, f, v.t3))
    for i in range(16):
        e("v_mul_f32 v%d, v%d, v%d" % (v.O + i, v.O + i, f0))
    for j, f in enumerate((f1, f2, f3)):
        e("s_waitcnt lgkmcnt(%d)" % (8 - 4 * j))
        for i in range(16):
            e("v_fmac_f32 v%d, v%d, v%d" % (v.O + i, RX + 16 * j + i, f))
    e("s_branch L_mg3")
    lab("L_mg2")
    e("v_rcp_f32 v%d, v%d" % (v.t3, v.l))
    e("s_nop 0")
    for f in (f0, f1):
        e("v_mul_f32 v%d, v%d, v%d" % (f, f, v.t3))
    for i in range(32):
        e("v_mul_f32 v%d, v%d, v%d" % (v.O + i, v.O + i, f0))
    e("s_waitcnt lgkmcnt(0)")
    for i in range(32):
        e("v_fmac_f32 v%d, v%d, v%d" % (v.O + i, RX + i, f1))
    emit(pack_q(1, False))
    lab("L_mg3")
    emit(pack_q(0, False) + rd_half(0))
    for k in range(4):
        emit(["s_waitcnt lgkmcnt(%d)" % (3 - k)] + st_one(0, k))
    e("s_branch L_fin")
    lab("L_resc")
    e("v_max3_f32 v%d, v%d, v%d, v%d" % (v.t0, v.X, v.X + 1, v.X + 2))
    for r in range(3, 15, 2):
        e("v_max3_f32 v%d, v%d, v%d, v%d" % (v.t0, v.t0, v.X + r, v.X + r + 1))
    e("v_max3_f32 v%d, v%d, v%d, 0" % (v.t0, v.t0, v.X + 15))
    e("v_mov_b32 v%d, v%d" % (v.t1, v.t0))
    e("s_nop 1")
    e("v_permlane32_swap_b32 v%d, v%d" % (v.t0, v.t1))
    e("s_nop 1")
    e("v_max_f32 v%d, v%d, v%d" % (v.t0, v.t0, v.t1))
    e("v_exp_f32 v%d, -v%d" % (v.t1, v.t0))
    e("v_sub_f32 v%d, v%d, v%d" % (v.nmc, v.nmc, v.t0))
    for r in range(16):
        e("v_sub_f32 v%d, v%d, v%d" % (v.X + r, v.X + r, v.t0))
    e("v_mul_f32 v%d, v%d, v%d" % (v.l, v.l, v.t1))
    for i in range(64):
        e("v_mul_f32 v%d, v%d, v%d" % (v.O + i, v.O + i, v.t1))
    emit(soft_half_plain(0))
    emit(soft_half_plain(1))
    for k, r in enumerate(rets[:-1]):
        e("s_cmp_eq_u32 s%d, %d" % (s.ret, k))
        e("s_cbranch_scc1 %s" % r)
    e("s_branch %s" % rets[-1])
    rl_ = []
    order = [2, 1, 0, 3, 4]
    assert len(srets) == len(order)
    for k in order[:-1]:
        rl_ += ["    s_cmp_eq_u32 s%d, %d" % (s.sret, k), "    s_cbranch_scc1 %s" % srets[k]]
    rl_ += ["    s_branch %s" % srets[order[-1]]]
    out[SRET_AT:SRET_AT] = rl_
    out.append(".p2align 6")
    out.append(".type L_far,@object")
    lab("L_far")
    for ent in far:
        out.append("    .long " + ", ".join("0x%x" % x for x in ent))
    lab("L_cnt")
    out.append("    .long " + ", ".join(str(i) for i in range(32)))
    out.append(".size L_far, .-L_far")
    lab("L_codeend")
    out.append("    .fill 512, 4, 0xbf800000")
    out.append('.section .rodata,"a"')
    out.append(".p2align 6")
    out.append(".amdhsa_kernel " + K)
    out.append("  .amdhsa_next_free_vgpr %d" % NV)
    out.append("  .amdhsa_next_free_sgpr %d" % NS)
    out.append("  .amdhsa_accum_offset %d" % NV)
    out.append("  .amdhsa_group_segment_fixed_size 0")
    out.append("  .amdhsa_kernarg_size 56")
    out.append("  .amdhsa_user_sgpr_count 2")
    out.append("  .amdhsa_user_sgpr_kernarg_segment_ptr 1")
    out.append("  .amdhsa_system_sgpr_workgroup_id_x 1")
    out.append(".end_amdhsa_kernel")
    txt = "\n".join(out) + "\n"
    return txt.replace("PFSTRIDE", OPT.get("pf", "28"))


if __name__ == "__main__":
    args = [a for a in sys.argv[1:] if a.endswith(".s")]
    path = args[0] if args else "cdna_kernels/%s.s" % NAME
    open(path, "w").write(gen())
    print("wrote", path)
```

```python
import sys, struct, math

NAME = "standalone__varlen_attn_packed__ragged"
CU = [0, 289, 520, 939, 1289, 1402, 1666, 1973, 2275]
LEN = [CU[i + 1] - CU[i] for i in range(8)]
T_TOT = 2275
ROWB = 4096
TENSOR_BYTES = T_TOT * ROWB

OPT = {}
for a in sys.argv[1:]:
    if a.startswith("--"):
        k, _, val = a[2:].partition("=")
        OPT[k] = val if val else "1"
STAMPS = "stamps" in OPT or "lite" in OPT
LITE = "lite" in OPT
LDF_Q = OPT.get("ldq", "none").replace("+", " ").replace("none", "")
LDF_K = OPT.get("ldk", "none").replace("+", " ").replace("none", "")
STF = OPT.get("st", "sc1").replace("+", " ").replace("none", "")
FLY = int(OPT.get("fly", "4"))

HEADER = """; Kernarg layout for this problem (56 bytes, ptrs only, base s[0:1]):
;   offset  24: d_in[3] cu  shape=(9,) dtype=int32 strides=(4,) contiguous=True
;   offset  32: d_out     shape=(2275, 16, 128) dtype=bfloat16 (2 bytes/elem)
"""


def f2u(x):
    return struct.unpack("<I", struct.pack("<f", x))[0]


def cdiv(a, b):
    return (a + b - 1) // b


LDS_TOTAL = 163840
QBASE = 98304
XTRA = 131072
MLBASE = XTRA + 16384
PRGB = XTRA + 7 * 4096 + 2048
RDYB = XTRA + 6 * 4096 + 3072
CNTB = XTRA + 6 * 4096 + 2048
BIG = 0x4000

ROLES = [
    ("dual", (1, 6, 2), (4, 0, 4)),
    (5, 0, 6),
    (3, 0, 5), (3, 5, 5),
    ("dual", (3, 10, 1), (5, 6, 3)),
    (1, 0, 6),
    (6, 0, 5), (6, 5, 5),
    (7, 0, 5), (7, 5, 5), (0, 0, 5), (0, 5, 5),
    (2, 0, 4), (2, 4, 4), (2, 8, 3), (2, 11, 3),
]
QE = int(OPT.get("qe", "1"))


def nrec(rows):
    return (rows - 1) * ROWB + 256 if rows > 0 else 0


def build_tables():
    near, far, desc = [], [], []
    for ri, role in enumerate(ROLES):
        W = [None] * 8
        groups = []
        if role[0] == "dual":
            (sa, ta, na), (sb, tb, nb) = role[1], role[2]
            rowA, lenA, rowB, lenB, step = CU[sa], LEN[sa], CU[sb], LEN[sb], 32
            n_it = max(cdiv(lenA, 32), cdiv(lenB, 32))
            tiles = [(sa, ta + i, 0) for i in range(na)] + [(sb, tb + i, 1) for i in range(nb)]
            nq = len(tiles)
            for i in range(4):
                sq, tl, st = tiles[i]
                W[i] = dict(seq=sq, tile=tl, ql=i, type=2, stream=st, its=list(range(cdiv(LEN[sq], 32))), hastail=1)
            for i in range(4, nq):
                sq, tl, st = tiles[i]
                nb_ = cdiv(LEN[sq], 32)
                W[i + 2] = dict(seq=sq, tile=tl, ql=i, type=3, stream=st, its=list(range(nb_)), hastail=1,
                                G=1, reg=XTRA + 4096 * i)
        else:
            sa, t0, nq = role
            rowA, lenA, rowB, lenB, step = CU[sa], LEN[sa], CU[sa] + 32, LEN[sa] - 32, 64
            nkv = cdiv(lenA, 32)
            n_it = cdiv(nkv, 2)
            tiles = [(sa, t0 + i, 0) for i in range(nq)]
            for i in range(min(nq, 4)):
                W[i] = dict(seq=sa, tile=t0 + i, ql=i, type=1, stream=0, its=list(range(nkv)), hastail=1)
            nh = 4 // (nq - 4) if nq > 4 else 0
            for i in range(4, nq):
                ws = [4 + (i - 4) * nh + k for k in range(nh)]
                for k, w in enumerate(ws):
                    blocks = [p for p in range(nkv) if p % nh == k]
                    W[w] = dict(seq=sa, tile=t0 + i, ql=i, type=3, stream=k % 2, its=[p // 2 for p in blocks],
                                hastail=int((nkv - 1) in blocks))
                groups.append(ws)
        qrows = [CU[sq] + 32 * tl for sq, tl, _ in tiles] + [0xfff] * (6 - nq)
        qrows = [r | (0x1000 if i < nq and tiles[i][2] else 0) for i, r in enumerate(qrows)]
        near.append([rowA * ROWB, nrec(lenA), rowB * ROWB, nrec(lenB), step * ROWB | (2 * n_it + 1),
                     qrows[0] | qrows[1] << 16, qrows[2] | qrows[3] << 16, qrows[4] | qrows[5] << 16])
        areas = [((n_it + 1) % 4) * 32768, ((n_it + 2) % 4) * 32768]
        recv = [areas[0], areas[0] + 12288, areas[1], areas[1] + 12288]
        for i in range(4):
            if W[i]:
                W[i]["reg"] = XTRA + 4096 * i
        for gi, g in enumerate(groups):
            G = len(g)
            for k, w in enumerate(g):
                W[w]["reg"] = recv[w - 4]
                W[w]["G"], W[w]["k"], W[w]["gi"] = G, k, gi
                if G == 4:
                    W[w]["send"] = [recv[g[(j + k) % 4] - 4] + (j - 1) * 4096 for j in (1, 2, 3)]
                    W[w]["src"] = [g[(k - j) % 4] for j in (1, 2, 3)]
                else:
                    o = g[1 - k]
                    W[w]["send"] = [0, recv[o - 4], recv[o - 4] + 4096]
                    W[w]["src"] = [o, o, o]
        for wi in range(8):
            w = W[wi]
            desc.append(w)
            if w is None:
                far.append([0] * 8)
                continue
            sq, its, typ, sc = w["seq"], w["its"], w["type"], w["stream"]
            tail = LEN[sq] % 32
            orow = CU[sq] + 32 * w["tile"]
            onr = min(32, CU[sq + 1] - orow)
            assert onr > 0 and tail > 0
            U = len(its) - 1
            a0, st = its[0], its[1] - its[0]
            assert all(its[i] == a0 + st * i for i in range(len(its))) and st <= 2 and a0 <= 1 and U >= 1
            if typ == 1:
                inc, prg0, prg1, need1, need2 = 1, 2, 4, 0, 2
            elif typ == 2:
                inc, prg0, prg1, need1, need2 = 2, 2, 4 + sc, sc, 4 + sc
            else:
                inc, prg0, prg1, need1, need2 = 2 * st, 2 * a0 + sc + 2, 2 * (a0 + 1) + sc + 2, max(QE if QE else 3, 2 * a0 + sc), 2 * (a0 + st) + sc
            w.update(U=U, a0=a0, st=st, inc=inc, prg0=prg0, prg1=prg1, need1=need1, need2=need2, n_it=n_it)
            hm = 0
            if typ != 3:
                nlast = 2 * n_it + 1
                pub = prg0
                w["pubs"] = []
                for b in range(U):
                    val = prg1 + inc * (b + 1)
                    want = pub < nlast - 5 and (typ == 2 or b % 2 == 1 or OPT.get("puball"))
                    if groups and pub < nlast - 1 <= val:
                        want = True
                    if typ == 2 or U - 1 - b <= 1:
                        hm |= 1 << (U - 1 - b)
                    if want and OPT.get("nodpub"):
                        hm |= 0x10001 << (U - 1 - b)
                        pub = val
                        w["pubs"].append(b)
            G, k, gi = w.get("G", 0), w.get("k", 0), w.get("gi", 0)
            rot = k * (4 // G) if G > 1 else 0
            ent = [orow * ROWB, nrec(onr),
                   U | typ << 8 | inc << 12 | (tail if w["hastail"] else 32) << 16 | G << 24 | rot << 28 | gi << 30,
                   prg0 | prg1 << 8 | need1 << 16 | need2 << 24,
                   w["reg"] | w["ql"] << 20 | (1 - sc) << 24 | a0 << 25 | st << 26 | int(typ != 3 and tail <= 16 and not OPT.get("noshort")) << 31]
            if G > 1:
                ent += [w["send"][j] | ((w["src"][j] - 4) << 24) for j in range(3)]
            if typ != 3:
                ent += [hm, prg1 - need2]
            ent += [0] * (8 - len(ent))
            far.append(ent)
    return near, far, desc


class R:
    pass


v = R()
v.kd0, v.kd1, v.vd0, v.vd1 = 1, 2, 3, 4
v.ka0r, v.ka1r = 5, 6
v.ka0, v.ka1 = 7, 8
v.rdya, v.rdy = 9, 10
v.lane = 11
v.nmc, v.l = 12, 13
v.ps = 14
v.t0, v.t1, v.t2, v.t3 = 15, 16, 17, 18
v.pf = 19
v.st = 20
v.prga, v.prg = 21, 22
v.fo = 23
v.pra = 0
v.Q = 24
v.O = 56
v.S = 120
v.B = 136
v.KF = 152
v.VF = 184
v.X = 216
v.E = 232
v.P = 240
v.var = 248
v.va = 252
NV = 256

s = R()
s.q, s.k, s.vv, s.cu, s.out = 4, 6, 8, 10, 12
s.near = 16
s.far = 24
s.kA, s.kB, s.vA, s.vB, s.sq, s.so = 32, 36, 40, 44, 48, 52
s.wave, s.hoff = 56, 57
s.n = 58
s.thr = 59
s.soff = 60
s.dslot = 61
s.U = 62
s.mu = 63
s.koff, s.voff = 64, 65
s.need, s.chk = 66, 67
s.t0, s.t1, s.t2, s.t3 = 68, 69, 70, 71
s.pc = 72
s.stp = 74
s.ws = 76
s.sti = 78
s.ret = 79
s.foff = 80
s.reg = 81
s.m1 = 82
s.lnd = 83
s.inc = 84
s.col = 85
s.astep = 88
s.sret = 89
s.guard = 90
s.iss = 91
s.d0, s.rdw = 92, 93
s.qea, s.qeb = 94, 95
s.stepb = 97
NS = 100

C_SCALE = (128 ** -0.5) * math.log2(math.e)
CL = "0x%x" % f2u(C_SCALE)
THRESH = 4096.0

out = []


def e(x):
    out.append("    " + x)


def lab(x):
    out.append(x + ":")


def vr(b, n):
    return "v[%d:%d]" % (b, b + n - 1)


def sr(b, n):
    return "s[%d:%d]" % (b, b + n - 1)


def emit(lst):
    for x in lst:
        if x is None:
            continue
        if x.endswith(":"):
            out.append(x)
        else:
            e(x)


def stamp_l(k=None, real=False):
    if not STAMPS or (LITE and k not in (7, 61)):
        return []
    if OPT.get("rt") and k is None and not real:
        return stamp_l(None, True) + stamp_l(None, "c")
    real = real is True
    r = ["%s s[%d:%d]" % ("s_memrealtime" if real else "s_memtime", s.stp, s.stp + 1), "s_waitcnt lgkmcnt(0)"]
    if k is None:
        r += ["s_mov_b32 s%d, m0" % (s.stp + 1), "s_mov_b32 m0, s%d" % s.sti, "s_nop 0",
              "v_writelane_b32 v%d, s%d, m0" % (v.st, s.stp),
              "s_add_u32 s%d, s%d, 1" % (s.sti, s.sti), "s_mov_b32 m0, s%d" % (s.stp + 1)]
    else:
        r += ["v_writelane_b32 v%d, s%d, %d" % (v.st, s.stp, k)]
    return r


def stamp(k=None, real=False):
    emit(stamp_l(k, real))


SPIN = OPT.get("spin")


def mark(name):
    if SPIN == name:
        e("s_memrealtime s[%d:%d]" % (s.stp, s.stp + 1))
        e("s_waitcnt lgkmcnt(0)")


def kread(t, dst, st=0):
    return "ds_read_b128 %s, v%d offset:%d" % (vr(dst + 4 * t, 4), v.ka1 if t % 2 else v.ka0,
                                               (t // 4) * 16384 + ((t // 2) % 2) * 256 + st * 1024)


def vread(i, st=0):
    t, bb, ss = i // 8, (i // 2) % 4, i % 2
    reg = v.VF + (t * 4 + bb) * 4 + ss * 2
    return "ds_read_b64_tr_b16 %s, v%d offset:%d" % (vr(reg, 2), v.va + bb, (4 * t + 2 * ss) * 4096 + st * 1024)


def ld(kv, col, half, so):
    srd = {("K", 0): s.kA, ("K", 1): s.kB, ("V", 0): s.vA, ("V", 1): s.vB}[(kv, col)]
    off = (2048 if kv == "V" else 0) + (1024 if col == 0 else 0)
    vo = {("K", 0): v.kd0, ("K", 1): v.kd1, ("V", 0): v.vd0, ("V", 1): v.vd1}[(kv, half)]
    return "buffer_load_dwordx4 v%d, %s, s%d offen %s%s lds" % (vo, sr(srd, 4), so, "offset:%d " % off if off else "", LDF_K)


STEP_ADV = ["s_add_u32 s%d, s%d, s%d" % (s.soff, s.soff, s.stepb),
            "s_add_u32 s%d, s%d, 0x8000" % (s.dslot, s.dslot),
            "s_and_b32 s%d, s%d, 0x1ffff" % (s.dslot, s.dslot)]


FLAG = ["s_mov_b32 m0, s%d" % s.rdw,
        "v_add_u32 v%d, 4, v%d" % (v.fo, v.fo),
        "global_load_lds_dword v%d, %s" % (v.fo, sr(s.pc, 2))]


def chunk(col, k_only=False, pace=0, flag=True):
    p = []
    if pace:
        p = ["s_sleep %d" % pace if pace < 16 else "s_nop %d" % (pace - 16)]
    r = []
    for half, m in ((0, "s_mov_b32 m0, s%d" % s.dslot), (1, "s_add_u32 m0, s%d, 0x4000" % s.dslot)):
        r += [m, "s_nop 0"]
        if not k_only:
            r += [ld("V", col, half, s.soff)] + p
        r += [ld("K", col, half, s.soff)] + p
    return r + (FLAG if flag else [])


def qk(t):
    return "v_mfma_f32_32x32x16_bf16 %s, %s, %s, %s" % (vr(v.S, 16), vr(v.KF + 4 * t, 4), vr(v.Q + 4 * t, 4), vr(v.S, 16))


def pv(i):
    t, bb = i // 4, i % 4
    return "v_mfma_f32_32x32x16_bf16 %s, %s, %s, %s" % (
        vr(v.O + 16 * bb, 16), vr(v.VF + (t * 4 + bb) * 4, 4), vr(v.P + 4 * t, 4), vr(v.O + 16 * bb, 16))


def F(r):
    return "v_fmamk_f32 v%d, v%d, %s, v%d" % (v.X + r, v.S + r, CL, v.nmc)


def ex(r):
    return "v_exp_f32 v%d, v%d" % (v.E + r % 8, v.X + r)


def add(r):
    if r == 0:
        return None
    if r == 1:
        return "v_add_f32 v%d, v%d, v%d" % (v.ps, v.E, v.E + 1)
    return "v_add_f32 v%d, v%d, v%d" % (v.ps, v.ps, v.E + r % 8)


def cvt(i):
    return "v_cvt_pk_bf16_f32 v%d, v%d, v%d" % (v.P + i, v.E + (2 * i) % 8, v.E + (2 * i + 1) % 8)


def soft_half_plain(h):
    r = [ex(8 * h + i) for i in range(8)]
    r += [x for x in (add(8 * h + i) for i in range(8)) if x]
    r += [cvt(4 * h + i) for i in range(4)]
    return r


CMP = "v_cmp_lt_f32 vcc, s%d, v%d" % (s.thr, v.ps)
LADD = "v_add_f32 v%d, v%d, v%d" % (v.l, v.l, v.ps)
PRGW = "ds_write_b32 v%d, v%d" % (v.prga, v.prg)
RDYR = "ds_read_b32 v%d, v%d" % (v.rdy, v.rdya)
PRGINC = "v_add_u32 v%d, s%d, v%d" % (v.prg, s.inc, v.prg)
NEEDINC = "s_add_u32 s%d, s%d, s%d" % (s.need, s.need, s.inc)
QK0 = "v_mfma_f32_32x32x16_bf16 %s, %s, %s, 0" % (vr(v.S, 16), vr(v.KF, 4), vr(v.Q, 4))
QK0M = "v_mfma_f32_32x32x16_bf16 %s, %s, %s, %s" % (vr(v.S, 16), vr(v.KF, 4), vr(v.Q, 4), vr(v.B, 16))
rets, srets = [], []


def newret():
    rets.append("L_ret%d" % len(rets))
    return len(rets) - 1


def kaddr():
    return ["v_add_u32 v%d, s%d, v%d" % (v.ka0, s.koff, v.ka0r),
            "v_add_u32 v%d, s%d, v%d" % (v.ka1, s.koff, v.ka1r)]


def vaddr():
    return ["v_add_u32 v%d, s%d, v%d" % (v.va + j, s.voff, v.var + j) for j in range(4)]


def adv(reg):
    return ["s_add_u32 s%d, s%d, s%d" % (reg, reg, s.astep), "s_and_b32 s%d, s%d, 0x1ffff" % (reg, reg)]


def spin(n="1"):
    r = ["s_sleep %s" % n]
    if not OPT.get("nosafe"):
        r += ["s_sub_u32 s%d, s%d, 1" % (s.guard, s.guard), "s_cbranch_scc1 L_end"]
    return r


def sync_call(target=None):
    k = len(srets)
    srets.append(target or "L_sr%d" % k)
    return ["s_mov_b32 s%d, %d" % (s.sret, k), "s_branch L_sync"] + ([] if target else ["L_sr%d:" % k])


_pl = [0]


ool = []


def poll_rdy():
    _pl[0] += 1
    a, b = "L_pa%d" % _pl[0], "L_pb%d" % _pl[0]
    ool.append([a + ":"] + spin() + [RDYR, "s_waitcnt lgkmcnt(0)", "s_branch %s" % b])
    return ["s_min_u32 s%d, s%d, s%d" % (s.t2, s.need, s.n), b + ":",
            "v_cmp_ge_u32 vcc, s%d, v%d" % (s.t2, v.rdy), "s_cbranch_vccnz %s" % a]


def body(kind):
    odd, hlp = kind != "even", kind == "hlp"
    st = 0 if odd else 1
    V = lambda i: vread(i, st)
    K = lambda t: kread(t, v.KF, st)
    W = lambda n: "s_waitcnt lgkmcnt(%d)" % n
    k = newret()
    q = [
        [NEEDINC, V(0), V(1), ex(8), add(7), cvt(3)],
        ["s_mov_b32 s%d, %d" % (s.ret, k), V(2), V(3), ex(9), ex(10)],
        [W(4), V(4), V(5), ex(11), add(8), add(9)],
        ["s_sub_u32 s%d, s%d, 1" % (s.U, s.U), V(6), V(7), ex(12), ex(13)],
        [None, V(8), V(9), ex(14), add(10), add(11)],
        [None, V(10), V(11), ex(15), add(12), add(13)],
        [W(4), V(12), V(13), add(14), add(15), CMP, cvt(4)],
        ["s_cbranch_vccnz L_resc", "L_ret%d:" % k, V(14), V(15), LADD, cvt(5), cvt(6), cvt(7)],
    ]
    p = [
        ["s_nop 0", K(0), K(1), K(2), F(0), F(1), F(2)],
        [None, K(3), ex(0), F(3), F(4), F(5)],
        [None, K(4), ex(1), F(6), F(7), F(8)],
        [W(5), K(5), ex(2), add(1), F(9), F(10)],
        [None, K(6), ex(3), add(2), cvt(0), F(11)],
        [None, K(7), ex(4), add(3), cvt(1), F(12)],
        [W(4), ex(5), ex(6), add(4), F(13)],
        [None, ex(7), add(5), add(6), cvt(2), F(14), F(15)],
    ]
    if odd:
        q[4][0], q[5][0] = adv(s.voff)
        p[4][0], p[5][0] = adv(s.koff)
        va, ka = vaddr(), kaddr()
        p[1].append(va[0])
        p[3].append(va[1])
        p[4].append(va[2])
        p[5].append(va[3])
        p[6].append(ka[0])
        p[7].append(ka[1])
    if not hlp:
        p[0][0] = "s_min_u32 s%d, s%d, s%d" % (s.chk, s.need, s.n)
        p[1][0] = "s_bitcmp1_b32 s%d, s%d" % (s.far + 5, s.U)
        p[2][0] = "s_cselect_b32 s%d, -1, s%d" % (s.chk, s.chk)
        p[2][2:2] = [RDYR]
        p[6][0] = W(3)
        if odd and (not OPT.get("nodpub")):
            q[2].append("v_add_u32 v%d, 8, v%d" % (v.fo, v.fo))
            q[3][1:1] = ["global_load_lds_dword v%d, %s" % (v.fo, sr(s.pc, 2))]
        p[7][3:3] = ["v_cmp_ge_u32 vcc, s%d, v%d" % (s.chk, v.rdy)]
    else:
        q[1].append(PRGINC)
        q[7][4:4] = [PRGW]
        sc = sync_call()
        q[3][1:1] = [sc[0]]
        p[0][0:1] = stamp_l() + sc[1:] + stamp_l()
    lab("L_%s_m" % kind)
    e(QK0)
    lab("L_%s_a" % kind)
    emit(q[0])
    for t in range(1, 8):
        e(qk(t))
        emit(q[t])
    for i in range(8):
        e(pv(i))
        emit(p[i])
    if not hlp:
        stamp()


def gen():
    K = NAME + "_kernel"
    near, far, _ = build_tables()
    PACE = int(OPT.get("pace", "0"))
    out.append(HEADER + "; @launch grid=(256,1,1) block=(512,1,1) lds=%d" % LDS_TOTAL)
    out.append('.amdgcn_target "amdgcn-amd-amdhsa--gfx950"')
    out.append(".text")
    out.append(".globl " + K)
    out.append(".p2align 12")
    out.append(".p2align 8")
    out.append(".type %s,@function" % K)
    lab(K)
    L, N, Fa = v.lane, s.near, s.far
    if SPIN:
        e("s_memrealtime s[%d:%d]" % (s.ws, s.ws + 1))
        e("s_memrealtime s[%d:%d]" % (s.stp, s.stp + 1))
    if STAMPS:
        e("s_memrealtime s[%d:%d]" % (s.stp, s.stp + 1))
        e("s_memtime s[%d:%d]" % (s.ws, s.ws + 1))
    e("s_load_dwordx8 s[4:11], s[0:1], 0")
    e("s_getpc_b64 %s" % sr(s.pc, 2))
    lab("L_pc")
    e("s_lshr_b32 s%d, s2, 4" % s.foff)
    e("s_lshl_b32 s%d, s%d, 5" % (s.t1, s.foff))
    e("s_load_dwordx8 %s, %s, s%d offset:L_near-L_pc" % (sr(s.near, 8), sr(s.pc, 2), s.t1))
    e("v_mul_u32_u24 v%d, PFSTRIDE, v0" % v.t0)
    e("v_readfirstlane_b32 s%d, v0" % s.wave)
    e("global_load_dword v%d, v%d, %s" % (v.pf, v.t0, sr(s.pc, 2)))
    e("s_cmp_ge_u32 s%d, 16" % s.foff)
    e("s_cbranch_scc1 L_end")
    e("s_bitcmp0_b32 s%d, 8" % s.wave)
    e("s_cbranch_scc1 L_mainpro")
    e("v_bfe_u32 v%d, v0, 5, 2" % v.t0)
    e("v_and_b32 v%d, 3, v0" % v.t1)
    e("v_xor_b32 v%d, v%d, v%d" % (v.t1, v.t1, v.t0))
    e("v_and_or_b32 v%d, v0, 12, v%d" % (v.t0, v.t0))
    e("v_lshlrev_b32 v%d, 12, v%d" % (v.t0, v.t0))
    e("v_lshl_add_u32 v%d, v%d, 4, v%d" % (v.t0, v.t1, v.t0))
    e("v_and_b32 v%d, 16, v0" % v.t1)
    e("v_lshl_add_u32 v%d, v%d, 2, v%d" % (v.t0, v.t1, v.t0))
    e("v_bfe_u32 v%d, v0, 7, 1" % v.t1)
    e("v_lshl_add_u32 v%d, v%d, 16, v%d" % (v.kd0, v.t1, v.t0))
    e("v_add_u32 v%d, 0x80, v%d" % (v.kd1, v.kd0))
    e("s_and_b32 s%d, s2, 15" % s.t1)
    e("s_lshl_b32 s%d, s%d, 8" % (s.hoff, s.t1))
    e("s_lshl_b32 s%d, s%d, 6" % (s.dslot, s.wave))
    e("s_and_b32 s%d, s%d, 0x3000" % (s.dslot, s.dslot))
    e("s_mov_b32 s%d, 0x20000" % (s.sq + 3))
    e("s_mov_b32 s%d, s%d" % (s.kA + 3, s.sq + 3))
    e("s_mov_b32 s%d, 0" % s.soff)
    e("s_add_u32 s%d, s%d, %d" % (s.d0, s.dslot, QBASE))
    e("s_waitcnt lgkmcnt(0)")
    mark("karg")

    def qtile(i):
        w = N + 5 + i // 2
        r = ["s_bitcmp1_b32 s%d, %d" % (w, 12 + 16 * (i % 2)),
             "s_cselect_b32 s%d, s%d, s%d" % (s.sq + 2, s.qeb, s.qea),
             "s_bfe_u32 s%d, s%d, 0x%x" % (s.t0, w, 0xc0000 + 16 * (i % 2)),
             "s_add_u32 m0, s%d, %d" % (s.d0, (i // 4) * 32768 + (i % 4) * 1024),
             "s_lshl_b32 s%d, s%d, 12" % (s.t0, s.t0),
             "buffer_load_dwordx4 v%d, %s, s%d offen %s lds" % (v.kd0, sr(s.sq, 4), s.t0, LDF_Q),
             "s_add_u32 m0, m0, 0x4000", "s_nop 0",
             "buffer_load_dwordx4 v%d, %s, s%d offen %s lds" % (v.kd1, sr(s.sq, 4), s.t0, LDF_Q)]
        return r
    e("s_add_u32 s%d, s%d, s%d" % (s.qea, N + 0, N + 1))
    e("s_add_u32 s%d, s%d, s%d" % (s.qeb, N + 2, N + 3))
    e("s_add_u32 s%d, s%d, s%d" % (s.sq, s.q, s.hoff))
    e("s_addc_u32 s%d, s%d, 0" % (s.sq + 1, s.q + 1))
    emit(qtile(0))
    e("s_add_u32 s%d, s%d, s%d" % (N + 0, N + 0, s.hoff))
    e("s_add_u32 s%d, s%d, s%d" % (s.kA, s.k, N + 0))
    e("s_addc_u32 s%d, s%d, 0" % (s.kA + 1, s.k + 1))
    e("s_sub_u32 s%d, s%d, 1024" % (s.kA, s.kA))
    e("s_subb_u32 s%d, s%d, 0" % (s.kA + 1, s.kA + 1))
    e("s_add_u32 s%d, s%d, 1024" % (s.kA + 2, N + 1))
    emit(chunk(0, True, flag=False))
    for i in (1, 2, 3):
        emit(qtile(i))
    mark("iss")
    for b in (s.kB, s.vA, s.vB):
        e("s_mov_b32 s%d, s%d" % (b + 3, s.sq + 3))
    e("s_add_u32 s%d, s%d, s%d" % (N + 2, N + 2, s.hoff))
    e("s_add_u32 s%d, s%d, s%d" % (s.kB, s.k, N + 2))
    e("s_addc_u32 s%d, s%d, 0" % (s.kB + 1, s.k + 1))
    e("s_mov_b32 s%d, s%d" % (s.kB + 2, N + 3))
    e("s_and_b32 s%d, s%d, 0xfffff000" % (s.stepb, N + 4))
    e("s_lshr_b32 s%d, s%d, 4" % (s.rdw, s.dslot))
    e("s_add_u32 s%d, s%d, %d" % (s.rdw, s.rdw, RDYB))
    e("v_mov_b32 v%d, L_cnt-L_pc" % v.fo)
    for (srd, off, nr, d) in ((s.vA, N + 0, N + 1, 3072), (s.vB, N + 2, N + 3, 2048)):
        e("s_add_u32 s%d, s%d, %d" % (s.t0, s.stepb, d))
        e("s_add_u32 s%d, s%d, s%d" % (srd, s.vv, off))
        e("s_addc_u32 s%d, s%d, 0" % (srd + 1, s.vv + 1))
        e("s_sub_u32 s%d, s%d, s%d" % (srd, srd, s.t0))
        e("s_subb_u32 s%d, s%d, 0" % (srd + 1, srd + 1))
        e("s_add_u32 s%d, s%d, s%d" % (srd + 2, nr, s.t0))
    e("v_bfe_u32 v%d, v0, 2, 2" % v.t0)
    e("v_lshlrev_b32 v%d, 12, v%d" % (v.t0, v.t0))
    e("v_and_b32 v%d, 3, v0" % v.t1)
    e("v_lshl_add_u32 v%d, v%d, 4, v%d" % (v.t0, v.t1, v.t0))
    e("v_and_b32 v%d, 48, v0" % v.t1)
    e("v_lshl_add_u32 v%d, v%d, 2, v%d" % (v.t0, v.t1, v.t0))
    e("v_bfe_u32 v%d, v0, 6, 2" % v.t1)
    e("v_lshl_add_u32 v%d, v%d, 14, v%d" % (v.vd0, v.t1, v.t0))
    e("v_add_u32 v%d, 0x10000, v%d" % (v.vd1, v.vd0))
    e("s_setprio %s" % OPT.get("hprio", "3"))
    e("s_branch L_common")
    lab("L_mainpro")
    for b in (s.sq, s.kA, s.kB, s.vA, s.vB):
        e("s_mov_b64 %s, s[0:1]" % sr(b, 2))
        e("s_mov_b32 s%d, 0" % (b + 2))
        e("s_mov_b32 s%d, 0x20000" % (b + 3))
    for r in (v.kd0, v.kd1, v.vd0, v.vd1, v.fo):
        e("v_mov_b32 v%d, 0" % r)
    e("s_and_b32 s%d, s2, 15" % s.t1)
    e("s_lshl_b32 s%d, s%d, 8" % (s.hoff, s.t1))
    lab("L_common")
    e("s_lshr_b32 s%d, s%d, 6" % (s.wave, s.wave))
    e("v_and_b32 v%d, 63, v0" % L)
    e("s_lshl3_add_u32 s%d, s%d, s%d" % (s.foff, s.foff, s.wave))
    e("s_lshl_b32 s%d, s%d, 5" % (s.foff, s.foff))
    e("v_and_b32 v%d, 7, v0" % v.t0)
    e("v_mul_u32_u24 v%d, 0x104, v%d" % (v.t0, v.t0))
    e("v_add_u32 v%d, %d, v%d" % (v.pra, PRGB, v.t0))
    e("s_lshl_b32 s%d, s%d, 8" % (s.t0, s.wave))
    e("s_add_u32 s%d, s%d, %d" % (s.t0, s.t0, PRGB - 4096))
    e("v_lshl_add_u32 v%d, v%d, 2, s%d" % (v.prga, L, s.t0))
    e("v_mov_b32 v%d, 0" % v.l)
    e("ds_write_b32 v%d, v%d" % (v.prga, v.l))
    e("ds_write_b32 v%d, v%d offset:4096" % (v.prga, v.l))
    e("v_add_u32 v%d, 0x1000, v%d" % (v.prga, v.prga))
    e("s_waitcnt lgkmcnt(0)")
    if STAMPS:
        e("v_mov_b32 v%d, 0" % v.st)
        e("s_mov_b32 s%d, 8" % s.sti)
        e("v_writelane_b32 v%d, s%d, 0" % (v.st, s.stp))
        e("v_writelane_b32 v%d, s%d, 1" % (v.st, s.ws))
        stamp(3)
        e("s_load_dwordx2 %s, s[0:1], 48" % sr(s.ws, 2))
    e("s_load_dwordx8 %s, %s, s%d offset:L_far-L_pc" % (sr(Fa, 8), sr(s.pc, 2), s.foff))
    e("s_load_dwordx2 s[12:13], s[0:1], 32")
    e("s_barrier")
    e("s_cmp_lt_u32 s%d, 4" % s.wave)
    e("s_cbranch_scc1 L_common2")
    QH = qtile(4) + qtile(5)
    emit(FLAG + (QH if QE == 1 else []) + chunk(1, True) + STEP_ADV + (QH if QE == 2 else []) + chunk(0))
    lab("L_common2")
    e("v_bfe_u32 v%d, v%d, 4, 1" % (v.t0, L))
    e("v_lshlrev_b32 v%d, 13, v%d" % (v.t0, v.t0))
    e("v_bfe_u32 v%d, v%d, 1, 1" % (v.t1, L))
    e("v_lshl_add_u32 v%d, v%d, 12, v%d" % (v.t0, v.t1, v.t0))
    e("v_and_b32 v%d, 1, v%d" % (v.t1, L))
    e("v_lshl_add_u32 v%d, v%d, 9, v%d" % (v.t0, v.t1, v.t0))
    e("v_bfe_u32 v%d, v%d, 2, 2" % (v.t1, L))
    e("v_lshl_add_u32 v%d, v%d, 6, v%d" % (v.t0, v.t1, v.t0))
    e("v_lshrrev_b32 v%d, 5, v%d" % (v.t1, L))
    e("v_and_b32 v%d, 3, v%d" % (v.t2, L))
    e("v_xor_b32 v%d, v%d, v%d" % (v.t1, v.t1, v.t2))
    e("v_lshl_add_u32 v%d, v%d, 4, v%d" % (v.ka0r, v.t1, v.t0))
    e("v_xor_b32 v%d, 32, v%d" % (v.ka1r, v.ka0r))
    e("v_lshrrev_b32 v%d, 5, v%d" % (v.t0, L))
    e("v_lshlrev_b32 v%d, 12, v%d" % (v.t0, v.t0))
    e("v_bfe_u32 v%d, v%d, 2, 2" % (v.t1, L))
    e("v_lshl_add_u32 v%d, v%d, 6, v%d" % (v.t0, v.t1, v.t0))
    e("v_bfe_u32 v%d, v%d, 4, 1" % (v.t1, L))
    e("v_lshl_add_u32 v%d, v%d, 5, v%d" % (v.t0, v.t1, v.t0))
    e("v_lshl_add_u32 v%d, v%d, 3, v%d" % (v.t0, v.t2, v.t0))
    e("v_add_u32 v%d, 0x800, v%d" % (v.var, v.t0))
    e("s_mov_b32 s%d, 0x%x" % (s.thr, f2u(THRESH)))
    e("v_mul_u32_u24 v%d, 0x104, v%d" % (v.t1, v.t2))
    e("v_add_u32 v%d, %d, v%d" % (v.rdya, RDYB, v.t1))
    e("s_mov_b32 s%d, 0x8000" % s.guard)
    e("v_mov_b32 v%d, 0" % v.rdy)
    e("s_waitcnt lgkmcnt(0)")
    e("s_add_u32 s%d, s%d, s%d" % (s.t0, Fa + 0, s.hoff))
    e("s_add_u32 s%d, s%d, s%d" % (s.so, s.out, s.t0))
    e("s_addc_u32 s%d, s%d, 0" % (s.so + 1, s.out + 1))
    e("s_mov_b32 s%d, s%d" % (s.so + 2, Fa + 1))
    e("s_mov_b32 s%d, 0x20000" % (s.so + 3))
    e("s_and_b32 s%d, s%d, 0xff" % (s.n, N + 4))
    e("s_bfe_u32 s%d, s%d, 0x40008" % (s.t3, Fa + 2))
    e("s_cbranch_scc1 L_work")
    e("v_mov_b32 v%d, %d" % (v.prg, BIG))
    e(PRGW)
    e("s_cmp_lt_u32 s%d, 4" % s.wave)
    e("s_cbranch_scc1 L_fin")
    e("s_branch L_presig")
    lab("L_work")
    for r in range(0, 64, 2):
        e("v_pk_mov_b32 %s, 0, 0" % vr(v.O + r, 2))
    e("s_and_b32 s%d, s%d, 0xff" % (s.U, Fa + 2))
    e("s_bfe_u32 s%d, s%d, 0x4000c" % (s.inc, Fa + 2))
    e("s_and_b32 s%d, s%d, 0xfffff" % (s.reg, Fa + 4))
    e("s_bfe_u32 s%d, s%d, 0x80010" % (s.t0, Fa + 2))
    e("s_sub_u32 s%d, s%d, 1" % (s.t0, s.t0))
    e("v_lshrrev_b32 v%d, 5, v%d" % (v.t0, L))
    e("v_lshlrev_b32 v%d, 2, v%d" % (v.t0, v.t0))
    e("v_sub_u32 v%d, s%d, v%d" % (v.t0, s.t0, v.t0))
    e("v_mov_b32 v%d, 0xff800000" % v.t1)
    for r in range(16):
        cst = 8 * (r // 4) + r % 4
        e("v_subrev_u32 v%d, %d, v%d" % (v.B + r, cst, v.t0))
        e("v_ashrrev_i32 v%d, 31, v%d" % (v.B + r, v.B + r))
        e("v_and_b32 v%d, v%d, v%d" % (v.B + r, v.t1, v.B + r))
    e("s_bfe_u32 s%d, s%d, 0x20014" % (s.t0, Fa + 4))
    e("s_lshl_b32 s%d, s%d, 10" % (s.t0, s.t0))
    e("s_bfe_u32 s%d, s%d, 0x10016" % (s.t1, Fa + 4))
    e("s_lshl_b32 s%d, s%d, 15" % (s.t1, s.t1))
    e("s_add_u32 s%d, s%d, s%d" % (s.t0, s.t0, s.t1))
    e("s_add_u32 s%d, s%d, %d" % (s.koff, s.t0, QBASE))
    e("v_add_u32 v%d, s%d, v%d" % (v.t2, s.koff, v.ka0r))
    e("v_add_u32 v%d, s%d, v%d" % (v.t3, s.koff, v.ka1r))
    e("s_cmp_lg_u32 s%d, 1" % s.t3)
    e("s_cselect_b32 s%d, 1, 0" % s.m1)
    e("s_bfe_u32 s%d, s%d, 0x2001a" % (s.t0, Fa + 4))
    e("s_lshl_b32 s%d, s%d, 15" % (s.astep, s.t0))
    e("s_bfe_u32 s%d, s%d, 0x10019" % (s.t2, Fa + 4))
    e("s_bfe_u32 s%d, s%d, 0x10018" % (s.t0, Fa + 4))
    e("s_lshl_b32 s%d, s%d, 10" % (s.t0, s.t0))
    e("s_mul_i32 s%d, s%d, s%d" % (s.t1, s.t0, s.m1))
    e("s_sub_u32 s%d, s%d, s%d" % (s.t0, s.t0, s.t1))
    e("s_lshl_b32 s%d, s%d, 15" % (s.voff, s.t2))
    e("s_add_u32 s%d, s%d, s%d" % (s.koff, s.voff, s.t0))
    e("s_add_u32 s%d, s%d, 0x8000" % (s.voff, s.voff))
    e("v_add_u32 v%d, s%d, v%d" % (v.ka0r, s.t1, v.ka0r))
    e("v_add_u32 v%d, s%d, v%d" % (v.ka1r, s.t1, v.ka1r))
    e("s_bfe_u32 s%d, s%d, 0x2001c" % (s.t0, Fa + 2))
    for j in (3, 2, 1, 0):
        e("s_add_u32 s%d, s%d, %d" % (s.col, s.t0, j))
        e("s_and_b32 s%d, s%d, 3" % (s.col, s.col))
        e("s_lshl_b32 s%d, s%d, 8" % (s.col, s.col))
        e("s_add_u32 s%d, s%d, s%d" % (s.col, s.col, s.t1))
        e("v_add_u32 v%d, s%d, v%d" % (v.var + j, s.col, v.var))
    emit(vaddr() + kaddr())
    e("s_and_b32 s%d, s%d, 0xff" % (s.t0, Fa + 3))
    e("v_mov_b32 v%d, s%d" % (v.prg, s.t0))
    e("s_bfe_u32 s%d, s%d, 0x80010" % (s.need, Fa + 3))
    e("s_cmp_lt_u32 s%d, 4" % s.wave)
    e("s_cbranch_scc1 L_sig0")
    e(PRGW)
    lab("L_presig")
    emit((QH if QE == 0 else []) + chunk(1) + STEP_ADV)
    e("s_mov_b32 s%d, 4" % s.iss)
    stamp()
    e("s_cmp_eq_u32 s%d, 0" % s.t3)
    e("s_cbranch_scc1 L_hdone")
    emit(sync_call("L_head"))
    lab("L_sig0")
    e("s_bfe_u32 s%d, s%d, 0x80008" % (s.t0, Fa + 3))
    e("s_sub_u32 s%d, s%d, s%d" % (s.t0, s.t0, s.m1))
    e("s_lshl_b32 s%d, s%d, 2" % (s.t0, s.t0))
    e("s_add_u32 s%d, s%d, L_cnt-L_pc-4" % (s.t0, s.t0))
    e("v_mov_b32 v%d, s%d" % (v.fo, s.t0))
    e("s_lshl_b32 s%d, s%d, 8" % (s.t0, s.wave))
    e("s_add_u32 m0, s%d, %d" % (s.t0, PRGB))
    stamp()
    emit(poll_rdy())
    mark("sig0")
    stamp()
    lab("L_head")
    qr = [kread(t, v.Q).replace("v%d " % v.ka0, "v%d " % v.t2).replace("v%d " % v.ka1, "v%d " % v.t3) for t in range(8)]
    kr = [kread(t, v.KF) for t in range(8)]
    for t in range(7):
        emit([qr[t], kr[t]])
    e("s_add_u32 s%d, s%d, s%d" % (s.t0, s.koff, s.astep))
    e("s_mul_i32 s%d, s%d, s%d" % (s.koff, s.t0, s.m1))
    e("s_waitcnt lgkmcnt(12)")
    e(QK0)
    emit([qr[7], kr[7], PRGW])
    for t in range(1, 8):
        e("s_waitcnt lgkmcnt(%d)" % (15 - 2 * t + (1 if t >= 2 else 0)))
        e(qk(t))
        if t == 1:
            e(RDYR)
            emit(kaddr())
            emit(adv(s.koff))
        if t == 2:
            e("v_and_b32 v%d, 31, v%d" % (v.t2, L))
            e("v_lshlrev_b32 v%d, 12, v%d" % (v.t2, v.t2))
            e("v_sub_u32 v%d, s%d, v%d" % (v.t2, Fa + 1, v.t2))
            e("v_ashrrev_i32 v%d, 31, v%d" % (v.t2, v.t2))
            e("v_and_b32 v%d, 0xff800000, v%d" % (v.t2, v.t2))
        if t == 3:
            e("s_bfe_u32 s%d, s%d, 0x80008" % (s.t0, Fa + 3))
            e("v_mov_b32 v%d, s%d" % (v.prg, s.t0))
            e("s_lshl_b32 s%d, s%d, 1" % (s.t0, s.m1))
            e("s_add_u32 s%d, s%d, s%d" % (s.need, s.need, s.t0))
            e("s_max_u32 s%d, s%d, 1" % (s.need, s.need))
    e("s_cmp_lt_u32 s%d, 4" % s.wave)
    e("s_waitcnt lgkmcnt(0)")
    e("s_cbranch_scc0 L_head2")
    emit(poll_rdy())
    emit(kr)
    emit(kaddr())
    lab("L_head2")
    e("s_lshr_b32 s%d, s%d, 24" % (s.need, Fa + 3))
    e("s_nop 7")
    e("v_max3_f32 v%d, v%d, v%d, v%d" % (v.t0, v.S, v.S + 1, v.S + 2))
    e("v_max3_f32 v%d, v%d, v%d, v%d" % (v.t1, v.S + 3, v.S + 4, v.S + 5))
    for r in range(6, 14, 4):
        e("v_max3_f32 v%d, v%d, v%d, v%d" % (v.t0, v.t0, v.S + r, v.S + r + 1))
        e("v_max3_f32 v%d, v%d, v%d, v%d" % (v.t1, v.t1, v.S + r + 2, v.S + r + 3))
    e("v_max3_f32 v%d, v%d, v%d, v%d" % (v.t0, v.t0, v.S + 14, v.S + 15))
    e("v_max_f32 v%d, v%d, v%d" % (v.t0, v.t0, v.t1))
    e("v_mov_b32 v%d, v%d" % (v.t1, v.t0))
    e(RDYR)
    e("s_nop 0")
    e("v_permlane32_swap_b32 v%d, v%d" % (v.t0, v.t1))
    e("s_nop 1")
    e("v_max_f32 v%d, v%d, v%d" % (v.t0, v.t0, v.t1))
    e("v_fmamk_f32 v%d, v%d, 0x%x, v%d" % (v.nmc, v.t0, f2u(-C_SCALE), v.t2))
    for r in range(16):
        e(F(r))
    emit([ex(i) for i in range(8)] + [add(i) for i in range(1, 7)] + [cvt(0), cvt(1), cvt(2)])
    e("s_cmp_lt_u32 s%d, 4" % s.wave)
    e("s_waitcnt lgkmcnt(0)")
    e("s_cbranch_scc0 L_hlp_in")
    stamp()
    emit(poll_rdy())
    mark("loop")
    stamp()
    e("s_cmp_eq_u32 s%d, 1" % s.m1)
    e("s_cbranch_scc1 L_odd_m")
    out.append(".p2align 4")
    body("even")
    e("s_cbranch_vccnz L_hnd_even")
    body("odd")
    e("s_cbranch_vccz L_even_m")
    emit(poll_rdy())
    e("s_cmp_le_u32 s%d, 1" % s.U)
    e("s_cbranch_scc1 L_ho1")
    e("s_cmp_eq_u32 s%d, 0" % s.m1)
    e("s_cbranch_scc0 L_odd_m")
    e("s_branch L_even_m")
    lab("L_ho1")
    e("s_cmp_eq_u32 s%d, 0" % s.U)
    e("s_cbranch_scc1 L_tail0")
    e("s_cmp_eq_u32 s%d, 0" % s.m1)
    e(QK0M)
    e("s_cbranch_scc1 L_even_a")
    e("s_branch L_odd_a")
    lab("L_hnd_even")
    emit(poll_rdy())
    e("s_cmp_gt_u32 s%d, 1" % s.U)
    e("s_cbranch_scc1 L_odd_m")
    e("s_cmp_eq_u32 s%d, 0" % s.U)
    e("s_cbranch_scc1 L_tail")
    e(QK0M)
    e("s_branch L_odd_a")
    lab("L_hlp_in")
    e(PRGW)
    stamp()
    emit(sync_call())
    stamp()
    for t in range(8):
        e(kread(t, v.KF))
    emit(kaddr())
    e("s_waitcnt lgkmcnt(4)")
    e("s_branch L_hnd_hlp")
    body("hlp")
    lab("L_hnd_hlp")
    e("s_cmp_gt_u32 s%d, 1" % s.U)
    e("s_cbranch_scc1 L_hlp_m")
    e("s_cmp_eq_u32 s%d, 0" % s.U)
    e("s_cbranch_scc1 L_tail")
    e(QK0M)
    e("s_branch L_hlp_a")
    lab("L_tail0")
    e("s_cmp_eq_u32 s%d, 1" % s.m1)
    e("s_cbranch_scc1 L_tail")
    for j in range(4):
        e("v_add_u32 v%d, 0x400, v%d" % (v.va + j, v.va + j))
    tw, tr0, oo, rl = v.ka1, v.va, v.ka1r, v.X + 2

    def lsum():
        return ["v_mov_b32 v%d, v%d" % (v.t0, v.l), "s_nop 1",
                "v_permlane32_swap_b32 v%d, v%d" % (v.l, v.t0), "s_nop 1",
                "v_add_f32 v%d, v%d, v%d" % (v.l, v.l, v.t0)]

    def st_addr():
        r = ["v_and_b32 v%d, 31, v%d" % (v.t0, L),
             "v_lshrrev_b32 v%d, 5, v%d" % (v.t1, L),
             "v_lshlrev_b32 v%d, 3, v%d" % (v.t1, v.t1),
             "v_and_b32 v%d, 7, v%d" % (v.t2, L),
             "v_lshl_add_u32 v%d, v%d, 4, v%d" % (v.t1, v.t2, v.t1),
             "v_lshl_add_u32 v%d, v%d, 7, v%d" % (v.t0, v.t0, v.t1),
             "v_add_u32 v%d, s%d, v%d" % (tw, s.reg, v.t0)]
        r += ["v_xor_b32 v%d, %d, v%d" % (v.E + c, c * 16, tw) for c in range(8)]
        r += ["v_lshrrev_b32 v%d, 3, v%d" % (v.t0, L),
              "v_xor_b32 v%d, v%d, v%d" % (v.t1, v.t2, v.t0),
              "v_lshlrev_b32 v%d, 4, v%d" % (v.t1, v.t1),
              "v_lshl_add_u32 v%d, v%d, 7, v%d" % (v.t1, v.t0, v.t1),
              "v_add_u32 v%d, s%d, v%d" % (tr0, s.reg, v.t1),
              "v_lshlrev_b32 v%d, 12, v%d" % (v.t0, v.t0),
              "v_lshl_add_u32 v%d, v%d, 4, v%d" % (oo, v.t2, v.t0)]
        return r

    def pack_q(bb, norm=True, pk=True):
        r = []
        for g in range(4):
            c = 4 * bb + g
            o = v.O + 4 * c
            d = v.S + 2 * c
            if norm and not pk:
                r += ["v_mul_f32 v%d, v%d, v%d" % (o + i, o + i, rl) for i in range(4)]
            elif norm:
                r += ["v_pk_mul_f32 %s, %s, %s op_sel_hi:[1,0]" % (vr(o + i, 2), vr(o + i, 2), vr(rl, 2)) for i in (0, 2)]
            r += ["v_cvt_pk_bf16_f32 v%d, v%d, v%d" % (d, o, o + 1),
                  "v_cvt_pk_bf16_f32 v%d, v%d, v%d" % (d + 1, o + 2, o + 3),
                  "ds_write_b64 v%d, %s" % (v.E + c % 8, vr(d, 2))]
        return r

    def rd_half(hh):
        return ["ds_read_b128 %s, v%d offset:%d" % (vr(v.KF + 16 * hh + 4 * k, 4), tr0, k * 1024) for k in range(4)]

    def st_one(hh, k):
        return ["buffer_store_dwordx4 %s, v%d, %s, s%d offen offset:%d %s" % (
                    vr(v.KF + 16 * hh + 4 * k, 4), oo, sr(s.so, 4), s.col + k if k < 3 else s.t1, 128 * hh, STF)]

    sa = st_addr()
    cols = ["s_mov_b32 s%d, 0" % s.col, "s_mov_b32 s%d, 0x8000" % (s.col + 1),
            "s_mov_b32 s%d, 0x10000" % (s.col + 2), "s_mov_b32 s%d, 0x18000" % s.t1]
    RCP = "v_rcp_f32 v%d, v%d" % (rl, v.l)
    lab("L_tail")
    mark("tail")
    e("v_mov_b32 v%d, %d" % (v.prg, BIG))
    e("s_bitcmp1_b32 s%d, 31" % (Fa + 4))
    e("s_cbranch_scc1 L_tails")
    k = newret()
    vord = [0, 1, 8, 9, 2, 3, 10, 11, 4, 5, 12, 13, 6, 7, 14, 15]
    for i in vord[:12]:
        e(vread(i))
    emit([ex(8), add(7), cvt(3)] + [ex(i) for i in range(9, 16)])
    e("s_cmp_lt_u32 s%d, 4" % s.wave)
    e("s_cbranch_scc0 L_t1")
    e("s_waitcnt vmcnt(0)")
    lab("L_t1")
    for i in vord[12:]:
        e(vread(i))
    e(PRGW)
    emit([add(i) for i in range(8, 16)] + [CMP, cvt(4), "s_mov_b32 s%d, %d" % (s.ret, k), "s_cbranch_vccnz L_resc",
                                           "L_ret%d:" % k, cvt(5), cvt(6), cvt(7), LADD])
    e("s_cmp_lt_u32 s%d, 4" % s.wave)
    e("s_waitcnt lgkmcnt(0)")
    e("s_cbranch_scc0 L_htail")
    lab("L_tail2")
    p0 = pack_q(0, pk=False)
    emit([pv(0)] + lsum() + [RCP])
    emit([pv(4), cols[0]] + sa[0:7])
    emit([pv(1), cols[1]] + sa[7:15])
    emit([pv(5), cols[2]] + sa[15:])
    emit([pv(2), cols[3]] + p0[0:7])
    emit([pv(6)] + p0[7:14])
    emit([pv(3)] + p0[14:21])
    emit([pv(7)] + p0[21:])
    lab("L_tail3")
    stamp(5)
    emit(pack_q(1) + rd_half(0))
    p2 = pack_q(2)
    emit(p2[:10] + ["s_waitcnt lgkmcnt(5)"] + st_one(0, 0) + p2[10:] + ["s_waitcnt lgkmcnt(4)"] + st_one(0, 1))
    p3 = pack_q(3)
    emit(p3[:10] + st_one(0, 2) + p3[10:] + st_one(0, 3) + rd_half(1))
    stamp(4)
    for k in range(4):
        emit(["s_waitcnt lgkmcnt(%d)" % (3 - k)] + st_one(1, k))
    k = newret()
    ool.append(["L_tails:"] + [vread(i) for i in range(8)]
               + [add(7), "s_waitcnt vmcnt(0)", PRGW, CMP, cvt(3), "s_mov_b32 s%d, %d" % (s.ret, k), "s_cbranch_vccnz L_resc",
                  "L_ret%d:" % k, LADD] + lsum() + [RCP, "s_waitcnt lgkmcnt(1)",
                  pv(0), cols[0]] + sa[0:7] + [pv(1), cols[1]] + sa[7:15] + [pv(2), cols[2]] + sa[15:]
               + [pv(3), cols[3]] + pack_q(0) + ["s_branch L_tail3"])
    lab("L_fin")
    if SPIN:
        mark("st")
        e("s_waitcnt vmcnt(0)")
        mark("end")
        if SPIN == "glob":
            e("s_load_dwordx2 s[98:99], s[0:1], 40")
            e("s_not_b32 s%d, s%d" % (s.t0, s.ws))
            e("v_mov_b32 v%d, s%d" % (v.t1, s.t0))
            e("v_mov_b32 v%d, 0" % v.t0)
            e("s_waitcnt lgkmcnt(0)")
            e("s_cmp_lg_u32 s%d, 0" % s.wave)
            e("s_cbranch_scc1 L_g1")
            e("s_mov_b64 exec, 1")
            e("global_atomic_umax v%d, v%d, s[98:99]" % (v.t0, v.t1))
            e("s_mov_b64 exec, -1")
            lab("L_g1")
        e("s_sub_u32 s%d, s%d, s%d" % (s.t0, s.stp, s.ws))
        e("s_mul_i32 s%d, s%d, %s" % (s.t0, s.t0, OPT.get("amp", "2")))
        e("s_add_u32 s%d, s%d, 3000" % (s.t0, s.t0))
        lab("L_spin")
        e("s_sleep 2")
        e("s_memrealtime s[%d:%d]" % (s.stp, s.stp + 1))
        e("s_waitcnt lgkmcnt(0)")
        e("s_sub_u32 s%d, s%d, s%d" % (s.t1, s.stp, s.ws))
        e("s_cmp_lt_u32 s%d, s%d" % (s.t1, s.t0))
        e("s_cbranch_scc1 L_spin")
        if SPIN == "glob":
            e("global_load_dword v%d, v%d, s[98:99] sc0 sc1" % (v.t1, v.t0))
            e("s_waitcnt vmcnt(0)")
            e("v_readfirstlane_b32 s%d, v%d" % (s.t2, v.t1))
            e("s_not_b32 s%d, s%d" % (s.t2, s.t2))
            lab("L_spin2")
            e("s_sleep 2")
            e("s_memrealtime s[%d:%d]" % (s.stp, s.stp + 1))
            e("s_waitcnt lgkmcnt(0)")
            e("s_sub_u32 s%d, s%d, s%d" % (s.t1, s.stp, s.t2))
            e("s_cmp_lt_u32 s%d, 4000" % s.t1)
            e("s_cbranch_scc1 L_spin2")
    if STAMPS:
        stamp(6)
        e("s_waitcnt vmcnt(0)")
        stamp(7)
        stamp(61, True)
        e("s_getreg_b32 s%d, hwreg(HW_REG_XCC_ID)" % s.stp)
        e("v_writelane_b32 v%d, s%d, 62" % (v.st, s.stp))
        e("s_lshl_b32 s%d, s2, 3" % s.t0)
        e("s_add_u32 s%d, s%d, s%d" % (s.t0, s.t0, s.wave))
        e("s_lshl_b32 s%d, s%d, 8" % (s.t0, s.t0))
        e("v_lshlrev_b32 v%d, 2, v%d" % (v.t0, v.lane))
        e("v_add_u32 v%d, s%d, v%d" % (v.t0, s.t0, v.t0))
        if OPT.get("dbg"):
            e("v_readlane_b32 s%d, v%d, 0" % (s.t0, v.st))
            e("v_readlane_b32 s%d, v%d, 61" % (s.t1, v.st))
            e("v_readlane_b32 s%d, v%d, 1" % (s.t2, v.st))
            e("s_not_b32 s%d, s%d" % (s.t3, s.t0))
            e("v_cmp_ne_u32 vcc, 0, v%d" % v.st)
            e("v_subrev_u32 v%d, s%d, v%d" % (v.t1, s.t2, v.st))
            e("s_nop 1")
            e("v_cndmask_b32 v%d, 0, v%d, vcc" % (v.t1, v.t1))
            e("v_writelane_b32 v%d, s%d, 0" % (v.t1, s.t3))
            e("v_writelane_b32 v%d, s%d, 1" % (v.t1, s.t1))
            e("v_writelane_b32 v%d, s%d, 15" % (v.t1, s.t0))
            e("v_lshlrev_b32 v%d, 2, v%d" % (v.t0, v.lane))
            e("s_cmp_lt_u32 s%d, 4" % s.wave)
            e("s_cselect_b32 s%d, 0xffff, 0x80ff" % s.t0 if False else "s_mov_b32 s%d, 0x80ff" % s.t0)
            e("s_cselect_b32 exec_lo, 0xffff, s%d" % s.t0)
            e("s_mov_b32 exec_hi, 0")
            e("global_atomic_umax v%d, v%d, %s" % (v.t0, v.t1, sr(s.ws, 2)))
        else:
            e("global_store_dword v%d, v%d, %s" % (v.t0, v.st, sr(s.ws, 2)))
    lab("L_end")
    e("s_endpgm")
    for blk in ool:
        emit(blk)
    lab("L_sync")
    e("s_setprio %s" % OPT.get("sprio", "0"))
    e("s_min_u32 s%d, s%d, s%d" % (s.t2, s.need, s.n))
    e("s_cmp_eq_u32 s%d, 0x20000" % s.stepb)
    e("s_cselect_b32 s%d, %s, %s" % (s.t3, OPT.get("lookd", "4"), OPT.get("look", "2")))
    e("s_add_u32 s%d, s%d, s%d" % (s.t3, s.t2, s.t3))
    e("s_min_u32 s%d, s%d, s%d" % (s.t3, s.t3, s.n))
    lab("L_svc")
    e("ds_read_b32 v%d, v%d" % (v.t1, v.pra))
    e(RDYR)
    e("s_sub_i32 s%d, s%d, 5" % (s.t1, s.iss))
    e("s_cmp_gt_u32 s%d, s%d" % (s.iss, s.t3))
    e("s_waitcnt lgkmcnt(0)")
    e("s_cbranch_scc0 L_svc1")
    e("v_cmp_ge_u32 vcc, s%d, v%d" % (s.t2, v.rdy))
    e("s_cbranch_vccz L_svcx")
    e("s_cmp_gt_u32 s%d, s%d" % (s.iss, s.n))
    e("s_cbranch_scc1 L_svcs")
    lab("L_svc1")
    e("v_cmp_gt_i32 vcc, s%d, v%d" % (s.t1, v.t1))
    e("s_cbranch_vccnz L_svc2")
    e("s_add_u32 s%d, s%d, 1" % (s.iss, s.iss))
    if OPT.get("cap", "10"):
        e("s_waitcnt vmcnt(%s)" % OPT.get("cap", "10"))
    e("s_bitcmp0_b32 s%d, 0" % s.iss)
    e("s_cbranch_scc1 L_svcB")
    emit(chunk(0, pace=PACE))
    e("s_branch L_svc")
    lab("L_svcB")
    emit(chunk(1, pace=PACE) + STEP_ADV)
    e("s_branch L_svc")
    lab("L_svc2")
    e("v_cmp_ge_u32 vcc, s%d, v%d" % (s.t2, v.rdy))
    e("s_cbranch_vccz L_svcx")
    lab("L_svcs")
    emit(spin(OPT.get("slp", "2")))
    e("s_branch L_svc")
    lab("L_svcx")
    e("s_setprio %s" % OPT.get("hprio", "3"))
    SRET_AT = len(out)
    lab("L_htail")
    e("s_mov_b32 s%d, s%d" % (s.need, s.n))
    e("s_bitcmp0_b32 s%d, 24" % (Fa + 2))
    e("s_cbranch_scc1 L_htail2")
    emit(sync_call("L_tail2"))
    lab("L_htail2")
    for i in range(8):
        e(pv(i))
    lab("L_hdone")
    e("s_mov_b32 s%d, s%d" % (s.need, s.n))
    emit(sync_call())
    e("s_sub_u32 s%d, s%d, 1" % (s.t2, s.n))
    e("s_bfe_u32 s%d, s%d, 0x40018" % (s.n, Fa + 2))
    e("s_cbranch_scc0 L_fin")
    e("s_setprio %s" % OPT.get("eprio", "0"))
    e("s_branch L_pe1")
    lab("L_pe0")
    emit(spin(OPT.get("slp", "2")))
    lab("L_pe1")
    e("ds_read_b32 v%d, v%d" % (v.t1, v.pra))
    e("s_waitcnt lgkmcnt(0)")
    e("v_cmp_gt_u32 vcc, s%d, v%d" % (s.t2, v.t1))
    e("s_cbranch_vccnz L_pe0")
    stamp(5)
    l16, l8, xa, cnt = v.ka0, v.ka0r, v.var, v.var + 1
    emit(lsum())
    e("v_lshlrev_b32 v%d, 4, v%d" % (l16, L))
    e("v_lshlrev_b32 v%d, 3, v%d" % (l8, L))
    e("s_lshl_b32 s%d, s%d, 9" % (s.t0, s.wave))
    e("s_add_u32 s%d, s%d, %d" % (s.t0, s.t0, MLBASE - 2048))
    e("v_add_u32 v%d, s%d, v%d" % (xa, s.t0, l8))
    e("ds_write_b64 v%d, %s" % (xa, vr(v.nmc, 2)))
    e("s_cmp_eq_u32 s%d, 2" % s.n)
    e("s_cbranch_scc1 L_sd2")
    for j in (1, 2, 3):
        if j == 2:
            lab("L_sd2")
        e("s_and_b32 s%d, s%d, 0xffffff" % (s.t0, Fa + 4 + j))
        e("v_add_u32 v%d, s%d, v%d" % (xa, s.t0, l16))
        for k in range(4):
            e("ds_write_b128 v%d, %s offset:%d" % (xa, vr(v.O + 16 * j + 4 * k, 4), k * 1024))
    e("s_lshr_b32 s%d, s%d, 30" % (s.t0, Fa + 2))
    e("s_lshl_b32 s%d, s%d, 2" % (s.t0, s.t0))
    e("s_add_u32 s%d, s%d, %d" % (s.t0, s.t0, CNTB))
    e("v_mov_b32 v%d, s%d" % (cnt, s.t0))
    e("v_mov_b32 v%d, 1" % v.t3)
    e("s_mov_b64 exec, 1")
    e("ds_add_u32 v%d, v%d" % (cnt, v.t3))
    e("s_mov_b64 exec, -1")
    emit(st_addr())
    e("v_add_u32 v%d, s%d, v%d" % (xa, s.reg, l16))
    for j in range(3):
        e("s_lshr_b32 s%d, s%d, 24" % (s.t0, Fa + 5 + j))
        e("s_lshl_b32 s%d, s%d, 9" % (s.t0, s.t0))
        e("s_add_u32 s%d, s%d, %d" % (s.t0, s.t0, MLBASE))
        e("v_add_u32 v%d, s%d, v%d" % (v.P + j, s.t0, l8))
    e("s_branch L_poll1")
    lab("L_poll")
    emit(spin())
    lab("L_poll1")
    e("ds_read_b32 v%d, v%d" % (v.t3, cnt))
    e("s_waitcnt lgkmcnt(0)")
    e("v_cmp_ne_u32 vcc, s%d, v%d" % (s.n, v.t3))
    e("s_cbranch_vccnz L_poll")
    stamp(4)
    for j in range(3):
        e("ds_read_b64 %s, v%d" % (vr(v.X + 2 * j, 2), v.P + j))
    for k in range(12):
        e("ds_read_b128 %s, v%d offset:%d" % (vr(v.KF + 16 + 4 * k, 4), xa, k * 1024))
    RX = v.KF + 16
    f0, f1, f2, f3 = v.X + 8, v.X + 9, v.X + 10, v.X + 11
    e("s_bfe_u32 s%d, s%d, 0x2001c" % (s.col, Fa + 2))
    e("s_lshl_b32 s%d, s%d, 6" % (s.col, s.col))
    e("s_add_u32 s%d, s%d, 0x8000" % (s.col + 1, s.col))
    e("s_add_u32 s%d, s%d, 0x10000" % (s.col + 2, s.col))
    e("s_add_u32 s%d, s%d, 0x18000" % (s.t1, s.col))
    e("s_waitcnt lgkmcnt(12)")
    e("v_min3_f32 v%d, v%d, v%d, v%d" % (v.t3, v.nmc, v.X, v.X + 2))
    e("v_min_f32 v%d, v%d, v%d" % (v.t3, v.t3, v.X + 4))
    e("v_sub_f32 v%d, v%d, v%d" % (f0, v.t3, v.nmc))
    for j, f in enumerate((f1, f2, f3)):
        e("v_sub_f32 v%d, v%d, v%d" % (f, v.t3, v.X + 2 * j))
    for f in (f0, f1, f2, f3):
        e("v_exp_f32 v%d, v%d" % (f, f))
    e("v_mul_f32 v%d, v%d, v%d" % (v.l, v.l, f0))
    e("v_fmac_f32 v%d, v%d, v%d" % (v.l, v.X + 1, f1))
    e("s_cmp_eq_u32 s%d, 2" % s.n)
    e("s_cbranch_scc1 L_mg2")
    e("v_fmac_f32 v%d, v%d, v%d" % (v.l, v.X + 3, f2))
    e("v_fmac_f32 v%d, v%d, v%d" % (v.l, v.X + 5, f3))
    e("v_rcp_f32 v%d, v%d" % (v.t3, v.l))
    e("v_and_b32 v%d, 4, v%d" % (v.t0, L))
    e("v_lshl_add_u32 v%d, v%d, 28, v%d" % (oo, v.t0, oo))
    for f in (f0, f1, f2, f3):
        e("v_mul_f32 v%d, v%d, v%d" % (f, f, v.t3))
    for i in range(16):
        e("v_mul_f32 v%d, v%d, v%d" % (v.O + i, v.O + i, f0))
    for j, f in enumerate((f1, f2, f3)):
        e("s_waitcnt lgkmcnt(%d)" % (8 - 4 * j))
        for i in range(16):
            e("v_fmac_f32 v%d, v%d, v%d" % (v.O + i, RX + 16 * j + i, f))
    e("s_branch L_mg3")
    lab("L_mg2")
    e("v_rcp_f32 v%d, v%d" % (v.t3, v.l))
    e("s_nop 0")
    for f in (f0, f1):
        e("v_mul_f32 v%d, v%d, v%d" % (f, f, v.t3))
    for i in range(32):
        e("v_mul_f32 v%d, v%d, v%d" % (v.O + i, v.O + i, f0))
    e("s_waitcnt lgkmcnt(0)")
    for i in range(32):
        e("v_fmac_f32 v%d, v%d, v%d" % (v.O + i, RX + i, f1))
    emit(pack_q(1, False))
    lab("L_mg3")
    emit(pack_q(0, False) + rd_half(0))
    for k in range(4):
        emit(["s_waitcnt lgkmcnt(%d)" % (3 - k)] + st_one(0, k))
    e("s_branch L_fin")
    lab("L_resc")
    e("v_max3_f32 v%d, v%d, v%d, v%d" % (v.t0, v.X, v.X + 1, v.X + 2))
    for r in range(3, 15, 2):
        e("v_max3_f32 v%d, v%d, v%d, v%d" % (v.t0, v.t0, v.X + r, v.X + r + 1))
    e("v_max3_f32 v%d, v%d, v%d, 0" % (v.t0, v.t0, v.X + 15))
    e("v_mov_b32 v%d, v%d" % (v.t1, v.t0))
    e("s_nop 1")
    e("v_permlane32_swap_b32 v%d, v%d" % (v.t0, v.t1))
    e("s_nop 1")
    e("v_max_f32 v%d, v%d, v%d" % (v.t0, v.t0, v.t1))
    e("v_exp_f32 v%d, -v%d" % (v.t1, v.t0))
    e("v_sub_f32 v%d, v%d, v%d" % (v.nmc, v.nmc, v.t0))
    for r in range(16):
        e("v_sub_f32 v%d, v%d, v%d" % (v.X + r, v.X + r, v.t0))
    e("v_mul_f32 v%d, v%d, v%d" % (v.l, v.l, v.t1))
    for i in range(64):
        e("v_mul_f32 v%d, v%d, v%d" % (v.O + i, v.O + i, v.t1))
    emit(soft_half_plain(0))
    emit(soft_half_plain(1))
    for k, r in enumerate(rets[:-1]):
        e("s_cmp_eq_u32 s%d, %d" % (s.ret, k))
        e("s_cbranch_scc1 %s" % r)
    e("s_branch %s" % rets[-1])
    rl_ = []
    order = [2, 1, 0, 3, 4]
    assert len(srets) == len(order)
    for k in order[:-1]:
        rl_ += ["    s_cmp_eq_u32 s%d, %d" % (s.sret, k), "    s_cbranch_scc1 %s" % srets[k]]
    rl_ += ["    s_branch %s" % srets[order[-1]]]
    out[SRET_AT:SRET_AT] = rl_
    out.append(".p2align 6")
    out.append(".type L_near,@object")
    lab("L_near")
    for ent in near:
        out.append("    .long " + ", ".join("0x%x" % x for x in ent))
    lab("L_far")
    for ent in far:
        out.append("    .long " + ", ".join("0x%x" % x for x in ent))
    lab("L_cnt")
    out.append("    .long " + ", ".join(str(i) for i in range(32)))
    out.append(".size L_near, .-L_near")
    lab("L_codeend")
    out.append("    .fill 512, 4, 0xbf800000")
    out.append('.section .rodata,"a"')
    out.append(".p2align 6")
    out.append(".amdhsa_kernel " + K)
    out.append("  .amdhsa_next_free_vgpr %d" % NV)
    out.append("  .amdhsa_next_free_sgpr %d" % NS)
    out.append("  .amdhsa_accum_offset %d" % NV)
    out.append("  .amdhsa_group_segment_fixed_size 0")
    out.append("  .amdhsa_kernarg_size 56")
    out.append("  .amdhsa_user_sgpr_count 2")
    out.append("  .amdhsa_user_sgpr_kernarg_segment_ptr 1")
    out.append("  .amdhsa_system_sgpr_workgroup_id_x 1")
    out.append(".end_amdhsa_kernel")
    txt = "\n".join(out) + "\n"
    txt = txt.replace("PFSTRIDE", OPT.get("pf", "32"))
    import subprocess, tempfile, os
    tmp = tempfile.mkdtemp()
    open(tmp + "/a.s", "w").write(txt.replace("offset:L_near-L_pc", "offset:0x100").replace("offset:L_far-L_pc", "offset:0x100"))
    subprocess.run(["clang", "-x", "assembler", "-target", "amdgcn-amd-amdhsa", "-mcpu=gfx950", "-c", tmp + "/a.s", "-o", tmp + "/a.o"], check=True)
    sy = {}
    for ln in subprocess.run(["llvm-objdump", "-t", tmp + "/a.o"], capture_output=True, text=True).stdout.splitlines():
        p = ln.split()
        if len(p) >= 5 and p[-1].startswith("L_"):
            sy[p[-1]] = int(p[0], 16)
    assert sy["L_codeend"] - sy["L_pc"] <= 512 * int(OPT.get("pf", "32")) + 128 or STAMPS or SPIN, hex(sy["L_codeend"])
    assert sy["L_codeend"] + 2048 - sy["L_pc"] >= 512 * int(OPT.get("pf", "32"))
    for t in ("L_near", "L_far"):
        txt = txt.replace("offset:%s-L_pc" % t, "offset:0x%x" % (sy[t] - sy["L_pc"]))
        txt = txt.replace(t + ":\n", t + ":\n.if (%s-L_pc) != 0x%x\n.error \"table offset\"\n.endif\n" % (t, sy[t] - sy["L_pc"])) if False else txt
    return txt


if __name__ == "__main__":
    args = [a for a in sys.argv[1:] if a.endswith(".s")]
    path = args[0] if args else "cdna_kernels/%s.s" % NAME
    open(path, "w").write(gen())
    print("wrote", path)
```

```python
import sys, struct, math

NAME = "standalone__varlen_attn_packed__ragged"
CU = [0, 289, 520, 939, 1289, 1402, 1666, 1973, 2275]
LEN = [CU[i + 1] - CU[i] for i in range(8)]
T_TOT = 2275
ROWB = 4096
TENSOR_BYTES = T_TOT * ROWB

OPT = {}
for a in sys.argv[1:]:
    if a.startswith("--"):
        k, _, val = a[2:].partition("=")
        OPT[k] = val if val else "1"
STAMPS = "stamps" in OPT or "lite" in OPT
LITE = "lite" in OPT
LDF_Q = OPT.get("ldq", "none").replace("+", " ").replace("none", "")
LDF_K = OPT.get("ldk", "none").replace("+", " ").replace("none", "")
STF = OPT.get("st", "sc1").replace("+", " ").replace("none", "")
FLY = int(OPT.get("fly", "4"))

HEADER = """; Kernarg layout for this problem (56 bytes, ptrs only, base s[0:1]):
;   offset  24: d_in[3] cu  shape=(9,) dtype=int32 strides=(4,) contiguous=True
;   offset  32: d_out     shape=(2275, 16, 128) dtype=bfloat16 (2 bytes/elem)
"""


def f2u(x):
    return struct.unpack("<I", struct.pack("<f", x))[0]


def cdiv(a, b):
    return (a + b - 1) // b


LDS_TOTAL = 163840
QBASE = 98304
XTRA = 131072
MLBASE = XTRA + 16384
PRGB = XTRA + 7 * 4096 + 2048
RDYB = XTRA + 6 * 4096 + 3072
CNTB = XTRA + 6 * 4096 + 2048
BIG = 0x4000

ROLES = [
    ("dual", (1, 6, 2), (4, 0, 4)),
    (5, 0, 6),
    (3, 0, 5), (3, 5, 5),
    ("dual", (3, 10, 1), (5, 6, 3)),
    (1, 0, 6),
    (6, 0, 5), (6, 5, 5),
    (7, 0, 5), (7, 5, 5), (0, 0, 5), (0, 5, 5),
    (2, 0, 4), (2, 4, 4), (2, 8, 3), (2, 11, 3),
]
QL = int(OPT.get("ql", "4"))
QLC = int(OPT.get("qlc", "3"))
QE = int(OPT.get("qe", "0"))


def nrec(rows):
    return (rows - 1) * ROWB + 256 if rows > 0 else 0


def build_tables():
    near, far, desc = [], [], []
    for ri, role in enumerate(ROLES):
        W = [None] * 8
        groups = []
        if role[0] == "dual":
            (sa, ta, na), (sb, tb, nb) = role[1], role[2]
            rowA, lenA, rowB, lenB, step = CU[sa], LEN[sa], CU[sb], LEN[sb], 32
            n_it = max(cdiv(lenA, 32), cdiv(lenB, 32))
            tiles = [(sa, ta + i, 0) for i in range(na)] + [(sb, tb + i, 1) for i in range(nb)]
            nq = len(tiles)
            for i in range(4):
                sq, tl, st = tiles[i]
                W[i] = dict(seq=sq, tile=tl, ql=i, type=2, stream=st, its=list(range(cdiv(LEN[sq], 32))), hastail=1)
            for i in range(4, nq):
                sq, tl, st = tiles[i]
                nb_ = cdiv(LEN[sq], 32)
                W[i + 2] = dict(seq=sq, tile=tl, ql=i, type=3, stream=st, its=list(range(nb_)), hastail=1,
                                G=1, reg=XTRA + 4096 * i)
        else:
            sa, t0, nq = role
            rowA, lenA, rowB, lenB, step = CU[sa], LEN[sa], CU[sa] + 32, LEN[sa] - 32, 64
            nkv = cdiv(lenA, 32)
            n_it = cdiv(nkv, 2)
            tiles = [(sa, t0 + i, 0) for i in range(nq)]
            for i in range(min(nq, 4)):
                W[i] = dict(seq=sa, tile=t0 + i, ql=i, type=1, stream=0, its=list(range(nkv)), hastail=1)
            nh = 4 // (nq - 4) if nq > 4 else 0
            for i in range(4, nq):
                ws = [4, 5, 6, 7] if nh == 4 else [4 + (i - 4), 6 + (i - 4)]
                for k, w in enumerate(ws):
                    blocks = [p for p in range(nkv) if p % nh == k]
                    W[w] = dict(seq=sa, tile=t0 + i, ql=i, type=3, stream=k % 2, its=[p // 2 for p in blocks],
                                hastail=int((nkv - 1) in blocks))
                groups.append(ws)
        qrows = [CU[sq] + 32 * tl for sq, tl, _ in tiles] + [0xfff] * (6 - nq)
        qrows = [r | (0x1000 if i < nq and tiles[i][2] else 0) for i, r in enumerate(qrows)]
        near.append([rowA * ROWB, nrec(lenA), rowB * ROWB, nrec(lenB), step * ROWB | (2 * n_it + 1),
                     qrows[0] | qrows[1] << 16, qrows[2] | qrows[3] << 16, qrows[4] | qrows[5] << 16])
        areas = [((n_it + 1) % 4) * 32768, ((n_it + 2) % 4) * 32768]
        recv = [areas[0], areas[0] + 12288, areas[1], areas[1] + 12288]
        for i in range(4):
            if W[i]:
                W[i]["reg"] = XTRA + 4096 * i
        for gi, g in enumerate(groups):
            G = len(g)
            for k, w in enumerate(g):
                W[w]["reg"] = recv[w - 4]
                W[w]["G"], W[w]["k"], W[w]["gi"] = G, k, gi
                if G == 4:
                    W[w]["send"] = [recv[g[(j + k) % 4] - 4] + (j - 1) * 4096 for j in (1, 2, 3)]
                    W[w]["src"] = [g[(k - j) % 4] for j in (1, 2, 3)]
                else:
                    o = g[1 - k]
                    W[w]["send"] = [0, recv[o - 4], recv[o - 4] + 4096]
                    W[w]["src"] = [o, o, o]
        for wi in range(8):
            w = W[wi]
            desc.append(w)
            if w is None:
                far.append([0] * 8)
                continue
            sq, its, typ, sc = w["seq"], w["its"], w["type"], w["stream"]
            tail = LEN[sq] % 32
            orow = CU[sq] + 32 * w["tile"]
            onr = min(32, CU[sq + 1] - orow)
            assert onr > 0 and tail > 0
            U = len(its) - 1
            a0, st = its[0], its[1] - its[0]
            assert all(its[i] == a0 + st * i for i in range(len(its))) and st <= 2 and a0 <= 1 and U >= 1
            if typ == 1:
                inc, prg0, prg1, need1, need2 = 1, 2, 4, 0, 2
            elif typ == 2:
                inc, prg0, prg1, need1, need2 = 2, 2, 4 + sc, sc, 4 + sc
            else:
                inc, prg0, prg1, need1, need2 = 2 * st, 2 * a0 + sc + 2, 2 * (a0 + 1) + sc + 2, max(QE if QE else 3, 2 * a0 + sc), 2 * (a0 + st) + sc
            needk = max(need1 + 2 * (typ == 2), 1)
            if typ != 3 and wi >= QL:
                need1 = max(need1, QLC)
            w.update(needk=needk)
            w.update(U=U, a0=a0, st=st, inc=inc, prg0=prg0, prg1=prg1, need1=need1, need2=need2, n_it=n_it)
            hm = 0
            if typ != 3:
                nlast = 2 * n_it + 1
                pub = prg0
                w["pubs"] = []
                for b in range(U):
                    val = prg1 + inc * (b + 1)
                    want = pub < nlast - 5 and (typ == 2 or b % 2 == 1 or OPT.get("puball"))
                    if groups and pub < nlast - 1 <= val:
                        want = True
                    if typ == 2 or U - 1 - b <= 1:
                        hm |= 1 << (U - 1 - b)
                    if want and OPT.get("nodpub"):
                        hm |= 0x10001 << (U - 1 - b)
                        pub = val
                        w["pubs"].append(b)
            G, k, gi = w.get("G", 0), w.get("k", 0), w.get("gi", 0)
            rot = k * (4 // G) if G > 1 else 0
            ent = [orow * ROWB, nrec(onr),
                   U | typ << 8 | inc << 12 | (tail if w["hastail"] else 32) << 16 | G << 24 | rot << 28 | gi << 30,
                   prg0 | prg1 << 8 | need1 << 16 | need2 << 24,
                   w["reg"] | w["ql"] << 20 | (1 - sc) << 24 | a0 << 25 | st << 26 | int(typ != 3 and tail <= 16 and not OPT.get("noshort")) << 31]
            if G > 1:
                ent += [w["send"][j] | ((w["src"][j] - 4) << 24) for j in range(3)]
            if typ != 3:
                ent += [hm, needk]
            ent += [0] * (8 - len(ent))
            far.append(ent)
    return near, far, desc


class R:
    pass


v = R()
v.kd0, v.kd1, v.vd0, v.vd1 = 1, 2, 3, 4
v.ka0r, v.ka1r = 5, 6
v.ka0, v.ka1 = 7, 8
v.rdya, v.rdy = 9, 10
v.lane = 11
v.nmc, v.l = 12, 13
v.ps = 14
v.t0, v.t1, v.t2, v.t3 = 15, 16, 17, 18
v.pf = 19
v.st = 20
v.prga, v.prg = 21, 22
v.fo = 23
v.pra = 0
v.Q = 24
v.O = 56
v.S = 120
v.B = 136
v.KF = 152
v.VF = 184
v.X = 216
v.E = 232
v.P = 240
v.var = 248
v.va = 252
NV = 256

s = R()
s.q, s.k, s.vv, s.cu, s.out = 4, 6, 8, 10, 12
s.near = 16
s.far = 24
s.kA, s.kB, s.vA, s.vB, s.sq, s.so = 32, 36, 40, 44, 48, 52
s.wave, s.hoff = 56, 57
s.n = 58
s.thr = 59
s.soff = 60
s.dslot = 61
s.U = 62
s.mu = 63
s.koff, s.voff = 64, 65
s.need, s.chk = 66, 67
s.t0, s.t1, s.t2, s.t3 = 68, 69, 70, 71
s.pc = 72
s.stp = 74
s.ws = 76
s.sti = 78
s.ret = 79
s.foff = 80
s.reg = 81
s.m1 = 82
s.lnd = 83
s.inc = 84
s.col = 85
s.astep = 88
s.sret = 89
s.guard = 90
s.iss = 91
s.d0, s.rdw = 92, 93
s.qea, s.qeb = 94, 95
s.stepb = 97
NS = 100

C_SCALE = (128 ** -0.5) * math.log2(math.e)
CL = "0x%x" % f2u(C_SCALE)
THRESH = 4096.0

out = []


def e(x):
    out.append("    " + x)


def lab(x):
    out.append(x + ":")


def vr(b, n):
    return "v[%d:%d]" % (b, b + n - 1)


def sr(b, n):
    return "s[%d:%d]" % (b, b + n - 1)


def emit(lst):
    for x in lst:
        if x is None:
            continue
        if x.endswith(":"):
            out.append(x)
        else:
            e(x)


def stamp_l(k=None, real=False):
    if not STAMPS or (LITE and k not in (7, 61)):
        return []
    if OPT.get("rt") and k is None and not real:
        return stamp_l(None, True) + stamp_l(None, "c")
    real = real is True
    r = ["%s s[%d:%d]" % ("s_memrealtime" if real else "s_memtime", s.stp, s.stp + 1), "s_waitcnt lgkmcnt(0)"]
    if k is None:
        r += ["s_mov_b32 s%d, m0" % (s.stp + 1), "s_mov_b32 m0, s%d" % s.sti, "s_nop 0",
              "v_writelane_b32 v%d, s%d, m0" % (v.st, s.stp),
              "s_add_u32 s%d, s%d, 1" % (s.sti, s.sti), "s_mov_b32 m0, s%d" % (s.stp + 1)]
    else:
        r += ["v_writelane_b32 v%d, s%d, %d" % (v.st, s.stp, k)]
    return r


def stamp(k=None, real=False):
    emit(stamp_l(k, real))


SPIN = OPT.get("spin")


def mark(name):
    if SPIN == name:
        e("s_memrealtime s[%d:%d]" % (s.stp, s.stp + 1))
        e("s_waitcnt lgkmcnt(0)")


def kread(t, dst, st=0):
    return "ds_read_b128 %s, v%d offset:%d" % (vr(dst + 4 * t, 4), v.ka1 if t % 2 else v.ka0,
                                               (t // 4) * 16384 + ((t // 2) % 2) * 256 + st * 1024)


def vread(i, st=0):
    t, bb, ss = i // 8, (i // 2) % 4, i % 2
    reg = v.VF + (t * 4 + bb) * 4 + ss * 2
    return "ds_read_b64_tr_b16 %s, v%d offset:%d" % (vr(reg, 2), v.va + bb, (4 * t + 2 * ss) * 4096 + st * 1024)


def ld(kv, col, half, so):
    srd = {("K", 0): s.kA, ("K", 1): s.kB, ("V", 0): s.vA, ("V", 1): s.vB}[(kv, col)]
    off = (2048 if kv == "V" else 0) + (1024 if col == 0 else 0)
    vo = {("K", 0): v.kd0, ("K", 1): v.kd1, ("V", 0): v.vd0, ("V", 1): v.vd1}[(kv, half)]
    return "buffer_load_dwordx4 v%d, %s, s%d offen %s%s lds" % (vo, sr(srd, 4), so, "offset:%d " % off if off else "", LDF_K)


STEP_ADV = ["s_add_u32 s%d, s%d, s%d" % (s.soff, s.soff, s.stepb),
            "s_add_u32 s%d, s%d, 0x8000" % (s.dslot, s.dslot),
            "s_and_b32 s%d, s%d, 0x1ffff" % (s.dslot, s.dslot)]


FLAG = ["s_mov_b32 m0, s%d" % s.rdw,
        "v_add_u32 v%d, 4, v%d" % (v.fo, v.fo),
        "global_load_lds_dword v%d, %s" % (v.fo, sr(s.pc, 2))]


def chunk(col, k_only=False, pace=0, flag=True):
    p = []
    if pace:
        p = ["s_sleep %d" % pace if pace < 16 else "s_nop %d" % (pace - 16)]
    r = []
    for half, m in ((0, "s_mov_b32 m0, s%d" % s.dslot), (1, "s_add_u32 m0, s%d, 0x4000" % s.dslot)):
        r += [m, "s_nop 0"]
        if not k_only:
            r += [ld("V", col, half, s.soff)] + p
        r += [ld("K", col, half, s.soff)] + p
    return r + (FLAG if flag else [])


def qk(t):
    return "v_mfma_f32_32x32x16_bf16 %s, %s, %s, %s" % (vr(v.S, 16), vr(v.KF + 4 * t, 4), vr(v.Q + 4 * t, 4), vr(v.S, 16))


def pv(i):
    t, bb = i // 4, i % 4
    return "v_mfma_f32_32x32x16_bf16 %s, %s, %s, %s" % (
        vr(v.O + 16 * bb, 16), vr(v.VF + (t * 4 + bb) * 4, 4), vr(v.P + 4 * t, 4), vr(v.O + 16 * bb, 16))


def F(r):
    return "v_fmamk_f32 v%d, v%d, %s, v%d" % (v.X + r, v.S + r, CL, v.nmc)


def ex(r):
    return "v_exp_f32 v%d, v%d" % (v.E + r % 8, v.X + r)


def add(r):
    if r == 0:
        return None
    if r == 1:
        return "v_add_f32 v%d, v%d, v%d" % (v.ps, v.E, v.E + 1)
    return "v_add_f32 v%d, v%d, v%d" % (v.ps, v.ps, v.E + r % 8)


def cvt(i):
    return "v_cvt_pk_bf16_f32 v%d, v%d, v%d" % (v.P + i, v.E + (2 * i) % 8, v.E + (2 * i + 1) % 8)


def soft_half_plain(h):
    r = [ex(8 * h + i) for i in range(8)]
    r += [x for x in (add(8 * h + i) for i in range(8)) if x]
    r += [cvt(4 * h + i) for i in range(4)]
    return r


CMP = "v_cmp_lt_f32 vcc, s%d, v%d" % (s.thr, v.ps)
LADD = "v_add_f32 v%d, v%d, v%d" % (v.l, v.l, v.ps)
PRGW = "ds_write_b32 v%d, v%d" % (v.prga, v.prg)
RDYR = "ds_read_b32 v%d, v%d" % (v.rdy, v.rdya)
PRGINC = "v_add_u32 v%d, s%d, v%d" % (v.prg, s.inc, v.prg)
NEEDINC = "s_add_u32 s%d, s%d, s%d" % (s.need, s.need, s.inc)
QK0 = "v_mfma_f32_32x32x16_bf16 %s, %s, %s, 0" % (vr(v.S, 16), vr(v.KF, 4), vr(v.Q, 4))
QK0M = "v_mfma_f32_32x32x16_bf16 %s, %s, %s, %s" % (vr(v.S, 16), vr(v.KF, 4), vr(v.Q, 4), vr(v.B, 16))
rets, srets = [], []


def newret():
    rets.append("L_ret%d" % len(rets))
    return len(rets) - 1


def kaddr():
    return ["v_add_u32 v%d, s%d, v%d" % (v.ka0, s.koff, v.ka0r),
            "v_add_u32 v%d, s%d, v%d" % (v.ka1, s.koff, v.ka1r)]


def vaddr():
    return ["v_add_u32 v%d, s%d, v%d" % (v.va + j, s.voff, v.var + j) for j in range(4)]


def adv(reg):
    return ["s_add_u32 s%d, s%d, s%d" % (reg, reg, s.astep), "s_and_b32 s%d, s%d, 0x1ffff" % (reg, reg)]


def spin(n="1"):
    r = ["s_sleep %s" % n]
    if not OPT.get("nosafe"):
        r += ["s_sub_u32 s%d, s%d, 1" % (s.guard, s.guard), "s_cbranch_scc1 L_end"]
    return r


def sync_call(target=None):
    k = len(srets)
    srets.append(target or "L_sr%d" % k)
    return ["s_mov_b32 s%d, %d" % (s.sret, k), "s_branch L_sync"] + ([] if target else ["L_sr%d:" % k])


_pl = [0]


ool = []


def poll_rdy():
    _pl[0] += 1
    a, b = "L_pa%d" % _pl[0], "L_pb%d" % _pl[0]
    ool.append([a + ":"] + spin() + [RDYR, "s_waitcnt lgkmcnt(0)", "s_branch %s" % b])
    return ["s_min_u32 s%d, s%d, s%d" % (s.t2, s.need, s.n), b + ":",
            "v_cmp_ge_u32 vcc, s%d, v%d" % (s.t2, v.rdy), "s_cbranch_vccnz %s" % a]


def body(kind):
    odd, hlp = kind != "even", kind == "hlp"
    st = 0 if odd else 1
    V = lambda i: vread(i, st)
    K = lambda t: kread(t, v.KF, st)
    W = lambda n: "s_waitcnt lgkmcnt(%d)" % n
    k = newret()
    q = [
        [NEEDINC, V(0), V(1), ex(8), add(7), cvt(3)],
        ["s_mov_b32 s%d, %d" % (s.ret, k), V(2), V(3), ex(9), ex(10)],
        [W(4), V(4), V(5), ex(11), add(8), add(9)],
        ["s_sub_u32 s%d, s%d, 1" % (s.U, s.U), V(6), V(7), ex(12), ex(13)],
        [None, V(8), V(9), ex(14), add(10), add(11)],
        [None, V(10), V(11), ex(15), add(12), add(13)],
        [W(4), V(12), V(13), add(14), add(15), CMP, cvt(4)],
        ["s_cbranch_vccnz L_resc", "L_ret%d:" % k, V(14), V(15), LADD, cvt(5), cvt(6), cvt(7)],
    ]
    p = [
        ["s_nop 0", K(0), K(1), K(2), F(0), F(1), F(2)],
        [None, K(3), ex(0), F(3), F(4), F(5)],
        [None, K(4), ex(1), F(6), F(7), F(8)],
        [W(5), K(5), ex(2), add(1), F(9), F(10)],
        [None, K(6), ex(3), add(2), cvt(0), F(11)],
        [None, K(7), ex(4), add(3), cvt(1), F(12)],
        [W(4), ex(5), ex(6), add(4), F(13)],
        [None, ex(7), add(5), add(6), cvt(2), F(14), F(15)],
    ]
    if odd:
        q[4][0], q[5][0] = adv(s.voff)
        p[4][0], p[5][0] = adv(s.koff)
        va, ka = vaddr(), kaddr()
        p[1].append(va[0])
        p[3].append(va[1])
        p[4].append(va[2])
        p[5].append(va[3])
        p[6].append(ka[0])
        p[7].append(ka[1])
    if not hlp:
        p[0][0] = "s_min_u32 s%d, s%d, s%d" % (s.chk, s.need, s.n)
        p[1][0] = "s_bitcmp1_b32 s%d, s%d" % (s.far + 5, s.U)
        p[2][0] = "s_cselect_b32 s%d, -1, s%d" % (s.chk, s.chk)
        p[2][2:2] = [RDYR]
        p[6][0] = W(3)
        if odd and (not OPT.get("nodpub")):
            q[2].append("v_add_u32 v%d, 8, v%d" % (v.fo, v.fo))
            q[3][1:1] = ["global_load_lds_dword v%d, %s" % (v.fo, sr(s.pc, 2))]
        p[7][3:3] = ["v_cmp_ge_u32 vcc, s%d, v%d" % (s.chk, v.rdy)]
    else:
        q[1].append(PRGINC)
        q[7][4:4] = [PRGW]
        sc = sync_call()
        q[3][1:1] = [sc[0]]
        p[0][0:1] = stamp_l() + sc[1:] + stamp_l()
    lab("L_%s_m" % kind)
    e(QK0)
    lab("L_%s_a" % kind)
    emit(q[0])
    for t in range(1, 8):
        e(qk(t))
        emit(q[t])
    for i in range(8):
        e(pv(i))
        emit(p[i])
    if not hlp:
        stamp()


def gen():
    K = NAME + "_kernel"
    near, far, _ = build_tables()
    PACE = int(OPT.get("pace", "0"))
    out.append(HEADER + "; @launch grid=(256,1,1) block=(512,1,1) lds=%d" % LDS_TOTAL)
    out.append('.amdgcn_target "amdgcn-amd-amdhsa--gfx950"')
    out.append(".text")
    out.append(".globl " + K)
    out.append(".p2align 12")
    out.append(".p2align 8")
    out.append(".type %s,@function" % K)
    lab(K)
    L, N, Fa = v.lane, s.near, s.far
    if SPIN:
        e("s_memrealtime s[%d:%d]" % (s.ws, s.ws + 1))
        e("s_memrealtime s[%d:%d]" % (s.stp, s.stp + 1))
    if STAMPS:
        e("s_memrealtime s[%d:%d]" % (s.stp, s.stp + 1))
        e("s_memtime s[%d:%d]" % (s.ws, s.ws + 1))
    e("s_load_dwordx8 s[4:11], s[0:1], 0")
    e("s_getpc_b64 %s" % sr(s.pc, 2))
    lab("L_pc")
    e("s_lshr_b32 s%d, s2, 4" % s.foff)
    e("s_lshl_b32 s%d, s%d, 5" % (s.t1, s.foff))
    e("s_load_dwordx8 %s, %s, s%d offset:L_near-L_pc" % (sr(s.near, 8), sr(s.pc, 2), s.t1))
    e("v_mul_u32_u24 v%d, PFSTRIDE, v0" % v.t0)
    e("v_readfirstlane_b32 s%d, v0" % s.wave)
    e("global_load_dword v%d, v%d, %s" % (v.pf, v.t0, sr(s.pc, 2)))
    e("s_cmp_ge_u32 s%d, 16" % s.foff)
    e("s_cbranch_scc1 L_end")
    e("s_bitcmp0_b32 s%d, 8" % s.wave)
    e("s_cbranch_scc1 L_mainpro")
    e("v_bfe_u32 v%d, v0, 5, 2" % v.t0)
    e("v_and_b32 v%d, 3, v0" % v.t1)
    e("v_xor_b32 v%d, v%d, v%d" % (v.t1, v.t1, v.t0))
    e("v_and_or_b32 v%d, v0, 12, v%d" % (v.t0, v.t0))
    e("v_lshlrev_b32 v%d, 12, v%d" % (v.t0, v.t0))
    e("v_lshl_add_u32 v%d, v%d, 4, v%d" % (v.t0, v.t1, v.t0))
    e("v_and_b32 v%d, 16, v0" % v.t1)
    e("v_lshl_add_u32 v%d, v%d, 2, v%d" % (v.t0, v.t1, v.t0))
    e("v_bfe_u32 v%d, v0, 7, 1" % v.t1)
    e("v_lshl_add_u32 v%d, v%d, 16, v%d" % (v.kd0, v.t1, v.t0))
    e("v_add_u32 v%d, 0x80, v%d" % (v.kd1, v.kd0))
    e("s_and_b32 s%d, s2, 15" % s.t1)
    e("s_lshl_b32 s%d, s%d, 8" % (s.hoff, s.t1))
    e("s_lshl_b32 s%d, s%d, 6" % (s.dslot, s.wave))
    e("s_and_b32 s%d, s%d, 0x3000" % (s.dslot, s.dslot))
    e("s_mov_b32 s%d, 0x20000" % (s.sq + 3))
    e("s_mov_b32 s%d, s%d" % (s.kA + 3, s.sq + 3))
    e("s_mov_b32 s%d, 0" % s.soff)
    if OPT.get("thr"):
        e("s_lshr_b32 vcc_lo, %s, s%d" % (OPT["thr"], s.foff))
        e("s_and_b32 vcc_lo, vcc_lo, 1")
        e("s_mov_b32 vcc_hi, 0")
    e("s_add_u32 s%d, s%d, %d" % (s.d0, s.dslot, QBASE))
    e("s_waitcnt lgkmcnt(0)")
    mark("karg")
    THR = OPT.get("thr")
    _th = [0]

    def throttle():
        if not THR:
            return []
        _th[0] += 1
        return ["s_cbranch_vccz L_th%d" % _th[0], "s_waitcnt vmcnt(%s)" % OPT.get("thn", "4"), "L_th%d:" % _th[0]]

    def qtile(i):
        w = N + 5 + i // 2
        r = ["s_bitcmp1_b32 s%d, %d" % (w, 12 + 16 * (i % 2)),
             "s_cselect_b32 s%d, s%d, s%d" % (s.sq + 2, s.qeb, s.qea),
             "s_bfe_u32 s%d, s%d, 0x%x" % (s.t0, w, 0xc0000 + 16 * (i % 2)),
             "s_add_u32 m0, s%d, %d" % (s.d0, (i // 4) * 32768 + (i % 4) * 1024),
             "s_lshl_b32 s%d, s%d, 12" % (s.t0, s.t0),
             "buffer_load_dwordx4 v%d, %s, s%d offen %s lds" % (v.kd0, sr(s.sq, 4), s.t0, LDF_Q),
             "s_add_u32 m0, m0, 0x4000", "s_nop 0",
             "buffer_load_dwordx4 v%d, %s, s%d offen %s lds" % (v.kd1, sr(s.sq, 4), s.t0, LDF_Q)]
        return r
    e("s_add_u32 s%d, s%d, s%d" % (s.qea, N + 0, N + 1))
    e("s_add_u32 s%d, s%d, s%d" % (s.qeb, N + 2, N + 3))
    e("s_add_u32 s%d, s%d, s%d" % (s.sq, s.q, s.hoff))
    e("s_addc_u32 s%d, s%d, 0" % (s.sq + 1, s.q + 1))
    emit(qtile(0))
    e("s_add_u32 s%d, s%d, s%d" % (N + 0, N + 0, s.hoff))
    e("s_add_u32 s%d, s%d, s%d" % (s.kA, s.k, N + 0))
    e("s_addc_u32 s%d, s%d, 0" % (s.kA + 1, s.k + 1))
    e("s_sub_u32 s%d, s%d, 1024" % (s.kA, s.kA))
    e("s_subb_u32 s%d, s%d, 0" % (s.kA + 1, s.kA + 1))
    e("s_add_u32 s%d, s%d, 1024" % (s.kA + 2, N + 1))
    emit(chunk(0, True, flag=False))
    for i in range(1, QL):
        emit((throttle() if i > 1 else []) + qtile(i))
    QLATE = sum((qtile(i) for i in range(QL, 4)), [])
    mark("iss")
    for b in (s.kB, s.vA, s.vB):
        e("s_mov_b32 s%d, s%d" % (b + 3, s.sq + 3))
    e("s_add_u32 s%d, s%d, s%d" % (N + 2, N + 2, s.hoff))
    e("s_add_u32 s%d, s%d, s%d" % (s.kB, s.k, N + 2))
    e("s_addc_u32 s%d, s%d, 0" % (s.kB + 1, s.k + 1))
    e("s_mov_b32 s%d, s%d" % (s.kB + 2, N + 3))
    e("s_and_b32 s%d, s%d, 0xfffff000" % (s.stepb, N + 4))
    e("s_lshr_b32 s%d, s%d, 4" % (s.rdw, s.dslot))
    e("s_add_u32 s%d, s%d, %d" % (s.rdw, s.rdw, RDYB))
    e("v_mov_b32 v%d, L_cnt-L_pc" % v.fo)
    for (srd, off, nr, d) in ((s.vA, N + 0, N + 1, 3072), (s.vB, N + 2, N + 3, 2048)):
        e("s_add_u32 s%d, s%d, %d" % (s.t0, s.stepb, d))
        e("s_add_u32 s%d, s%d, s%d" % (srd, s.vv, off))
        e("s_addc_u32 s%d, s%d, 0" % (srd + 1, s.vv + 1))
        e("s_sub_u32 s%d, s%d, s%d" % (srd, srd, s.t0))
        e("s_subb_u32 s%d, s%d, 0" % (srd + 1, srd + 1))
        e("s_add_u32 s%d, s%d, s%d" % (srd + 2, nr, s.t0))
    e("v_bfe_u32 v%d, v0, 2, 2" % v.t0)
    e("v_lshlrev_b32 v%d, 12, v%d" % (v.t0, v.t0))
    e("v_and_b32 v%d, 3, v0" % v.t1)
    e("v_lshl_add_u32 v%d, v%d, 4, v%d" % (v.t0, v.t1, v.t0))
    e("v_and_b32 v%d, 48, v0" % v.t1)
    e("v_lshl_add_u32 v%d, v%d, 2, v%d" % (v.t0, v.t1, v.t0))
    e("v_bfe_u32 v%d, v0, 6, 2" % v.t1)
    e("v_lshl_add_u32 v%d, v%d, 14, v%d" % (v.vd0, v.t1, v.t0))
    e("v_add_u32 v%d, 0x10000, v%d" % (v.vd1, v.vd0))
    e("s_setprio %s" % OPT.get("hprio", "3"))
    e("s_branch L_common")
    lab("L_mainpro")
    for b in (s.sq, s.kA, s.kB, s.vA, s.vB):
        e("s_mov_b64 %s, s[0:1]" % sr(b, 2))
        e("s_mov_b32 s%d, 0" % (b + 2))
        e("s_mov_b32 s%d, 0x20000" % (b + 3))
    for r in (v.kd0, v.kd1, v.vd0, v.vd1, v.fo):
        e("v_mov_b32 v%d, 0" % r)
    e("s_and_b32 s%d, s2, 15" % s.t1)
    e("s_lshl_b32 s%d, s%d, 8" % (s.hoff, s.t1))
    lab("L_common")
    e("s_lshr_b32 s%d, s%d, 6" % (s.wave, s.wave))
    e("v_and_b32 v%d, 63, v0" % L)
    e("s_lshl3_add_u32 s%d, s%d, s%d" % (s.foff, s.foff, s.wave))
    e("s_lshl_b32 s%d, s%d, 5" % (s.foff, s.foff))
    e("v_and_b32 v%d, 7, v0" % v.t0)
    e("v_mul_u32_u24 v%d, 0x104, v%d" % (v.t0, v.t0))
    e("v_add_u32 v%d, %d, v%d" % (v.pra, PRGB, v.t0))
    e("s_lshl_b32 s%d, s%d, 8" % (s.t0, s.wave))
    e("s_add_u32 s%d, s%d, %d" % (s.t0, s.t0, PRGB - 4096))
    e("v_lshl_add_u32 v%d, v%d, 2, s%d" % (v.prga, L, s.t0))
    e("v_mov_b32 v%d, 0" % v.l)
    e("ds_write_b32 v%d, v%d" % (v.prga, v.l))
    e("ds_write_b32 v%d, v%d offset:4096" % (v.prga, v.l))
    e("v_add_u32 v%d, 0x1000, v%d" % (v.prga, v.prga))
    e("s_waitcnt lgkmcnt(0)")
    if STAMPS:
        e("v_mov_b32 v%d, 0" % v.st)
        e("s_mov_b32 s%d, 8" % s.sti)
        e("v_writelane_b32 v%d, s%d, 0" % (v.st, s.stp))
        e("v_writelane_b32 v%d, s%d, 1" % (v.st, s.ws))
        stamp(3)
        e("s_load_dwordx2 %s, s[0:1], 48" % sr(s.ws, 2))
    e("s_load_dwordx8 %s, %s, s%d offset:L_far-L_pc" % (sr(Fa, 8), sr(s.pc, 2), s.foff))
    e("s_load_dwordx2 s[12:13], s[0:1], 32")
    e("s_barrier")
    e("s_cmp_lt_u32 s%d, 4" % s.wave)
    e("s_cbranch_scc1 L_common2")
    QH = qtile(4) + qtile(5)
    emit(FLAG + throttle() + (QH if QE == 1 else []) + chunk(1, True) + STEP_ADV + throttle() + (QLATE if QLC == 2 else [])
         + (QH if QE == 2 else []) + chunk(0) + throttle() + (QLATE if QLC == 3 else []))
    lab("L_common2")
    e("v_bfe_u32 v%d, v%d, 4, 1" % (v.t0, L))
    e("v_lshlrev_b32 v%d, 13, v%d" % (v.t0, v.t0))
    e("v_bfe_u32 v%d, v%d, 1, 1" % (v.t1, L))
    e("v_lshl_add_u32 v%d, v%d, 12, v%d" % (v.t0, v.t1, v.t0))
    e("v_and_b32 v%d, 1, v%d" % (v.t1, L))
    e("v_lshl_add_u32 v%d, v%d, 9, v%d" % (v.t0, v.t1, v.t0))
    e("v_bfe_u32 v%d, v%d, 2, 2" % (v.t1, L))
    e("v_lshl_add_u32 v%d, v%d, 6, v%d" % (v.t0, v.t1, v.t0))
    e("v_lshrrev_b32 v%d, 5, v%d" % (v.t1, L))
    e("v_and_b32 v%d, 3, v%d" % (v.t2, L))
    e("v_xor_b32 v%d, v%d, v%d" % (v.t1, v.t1, v.t2))
    e("v_lshl_add_u32 v%d, v%d, 4, v%d" % (v.ka0r, v.t1, v.t0))
    e("v_xor_b32 v%d, 32, v%d" % (v.ka1r, v.ka0r))
    e("v_lshrrev_b32 v%d, 5, v%d" % (v.t0, L))
    e("v_lshlrev_b32 v%d, 12, v%d" % (v.t0, v.t0))
    e("v_bfe_u32 v%d, v%d, 2, 2" % (v.t1, L))
    e("v_lshl_add_u32 v%d, v%d, 6, v%d" % (v.t0, v.t1, v.t0))
    e("v_bfe_u32 v%d, v%d, 4, 1" % (v.t1, L))
    e("v_lshl_add_u32 v%d, v%d, 5, v%d" % (v.t0, v.t1, v.t0))
    e("v_lshl_add_u32 v%d, v%d, 3, v%d" % (v.t0, v.t2, v.t0))
    e("v_add_u32 v%d, 0x800, v%d" % (v.var, v.t0))
    e("s_mov_b32 s%d, 0x%x" % (s.thr, f2u(THRESH)))
    e("v_mul_u32_u24 v%d, 0x104, v%d" % (v.t1, v.t2))
    e("v_add_u32 v%d, %d, v%d" % (v.rdya, RDYB, v.t1))
    e("s_mov_b32 s%d, 0x8000" % s.guard)
    e("v_mov_b32 v%d, 0" % v.rdy)
    e("s_waitcnt lgkmcnt(0)")
    e("s_add_u32 s%d, s%d, s%d" % (s.t0, Fa + 0, s.hoff))
    e("s_add_u32 s%d, s%d, s%d" % (s.so, s.out, s.t0))
    e("s_addc_u32 s%d, s%d, 0" % (s.so + 1, s.out + 1))
    e("s_mov_b32 s%d, s%d" % (s.so + 2, Fa + 1))
    e("s_mov_b32 s%d, 0x20000" % (s.so + 3))
    e("s_and_b32 s%d, s%d, 0xff" % (s.n, N + 4))
    e("s_bfe_u32 s%d, s%d, 0x40008" % (s.t3, Fa + 2))
    e("s_cbranch_scc1 L_work")
    e("v_mov_b32 v%d, %d" % (v.prg, BIG))
    e(PRGW)
    e("s_cmp_lt_u32 s%d, 4" % s.wave)
    e("s_cbranch_scc1 L_fin")
    e("s_branch L_presig")
    lab("L_work")
    for r in range(0, 64, 2):
        e("v_pk_mov_b32 %s, 0, 0" % vr(v.O + r, 2))
    e("s_and_b32 s%d, s%d, 0xff" % (s.U, Fa + 2))
    e("s_bfe_u32 s%d, s%d, 0x4000c" % (s.inc, Fa + 2))
    e("s_and_b32 s%d, s%d, 0xfffff" % (s.reg, Fa + 4))
    e("s_bfe_u32 s%d, s%d, 0x80010" % (s.t0, Fa + 2))
    e("s_sub_u32 s%d, s%d, 1" % (s.t0, s.t0))
    e("v_lshrrev_b32 v%d, 5, v%d" % (v.t0, L))
    e("v_lshlrev_b32 v%d, 2, v%d" % (v.t0, v.t0))
    e("v_sub_u32 v%d, s%d, v%d" % (v.t0, s.t0, v.t0))
    e("v_mov_b32 v%d, 0xff800000" % v.t1)
    for r in range(16):
        cst = 8 * (r // 4) + r % 4
        e("v_subrev_u32 v%d, %d, v%d" % (v.B + r, cst, v.t0))
        e("v_ashrrev_i32 v%d, 31, v%d" % (v.B + r, v.B + r))
        e("v_and_b32 v%d, v%d, v%d" % (v.B + r, v.t1, v.B + r))
    e("s_bfe_u32 s%d, s%d, 0x20014" % (s.t0, Fa + 4))
    e("s_lshl_b32 s%d, s%d, 10" % (s.t0, s.t0))
    e("s_bfe_u32 s%d, s%d, 0x10016" % (s.t1, Fa + 4))
    e("s_lshl_b32 s%d, s%d, 15" % (s.t1, s.t1))
    e("s_add_u32 s%d, s%d, s%d" % (s.t0, s.t0, s.t1))
    e("s_add_u32 s%d, s%d, %d" % (s.koff, s.t0, QBASE))
    e("v_add_u32 v%d, s%d, v%d" % (v.t2, s.koff, v.ka0r))
    e("v_add_u32 v%d, s%d, v%d" % (v.t3, s.koff, v.ka1r))
    e("s_cmp_lg_u32 s%d, 1" % s.t3)
    e("s_cselect_b32 s%d, 1, 0" % s.m1)
    e("s_bfe_u32 s%d, s%d, 0x2001a" % (s.t0, Fa + 4))
    e("s_lshl_b32 s%d, s%d, 15" % (s.astep, s.t0))
    e("s_bfe_u32 s%d, s%d, 0x10019" % (s.t2, Fa + 4))
    e("s_bfe_u32 s%d, s%d, 0x10018" % (s.t0, Fa + 4))
    e("s_lshl_b32 s%d, s%d, 10" % (s.t0, s.t0))
    e("s_mul_i32 s%d, s%d, s%d" % (s.t1, s.t0, s.m1))
    e("s_sub_u32 s%d, s%d, s%d" % (s.t0, s.t0, s.t1))
    e("s_lshl_b32 s%d, s%d, 15" % (s.voff, s.t2))
    e("s_add_u32 s%d, s%d, s%d" % (s.koff, s.voff, s.t0))
    e("s_add_u32 s%d, s%d, 0x8000" % (s.voff, s.voff))
    e("v_add_u32 v%d, s%d, v%d" % (v.ka0r, s.t1, v.ka0r))
    e("v_add_u32 v%d, s%d, v%d" % (v.ka1r, s.t1, v.ka1r))
    e("s_bfe_u32 s%d, s%d, 0x2001c" % (s.t0, Fa + 2))
    for j in (3, 2, 1, 0):
        e("s_add_u32 s%d, s%d, %d" % (s.col, s.t0, j))
        e("s_and_b32 s%d, s%d, 3" % (s.col, s.col))
        e("s_lshl_b32 s%d, s%d, 8" % (s.col, s.col))
        e("s_add_u32 s%d, s%d, s%d" % (s.col, s.col, s.t1))
        e("v_add_u32 v%d, s%d, v%d" % (v.var + j, s.col, v.var))
    emit(vaddr() + kaddr())
    e("s_and_b32 s%d, s%d, 0xff" % (s.t0, Fa + 3))
    e("v_mov_b32 v%d, s%d" % (v.prg, s.t0))
    e("s_bfe_u32 s%d, s%d, 0x80010" % (s.need, Fa + 3))
    e("s_cmp_lt_u32 s%d, 4" % s.wave)
    e("s_cbranch_scc1 L_sig0")
    e(PRGW)
    lab("L_presig")
    emit((QH if QE == 0 else []) + chunk(1) + STEP_ADV)
    e("s_mov_b32 s%d, 4" % s.iss)
    stamp()
    e("s_cmp_eq_u32 s%d, 0" % s.t3)
    e("s_cbranch_scc1 L_hdone")
    emit(sync_call("L_head"))
    lab("L_sig0")
    e("s_bfe_u32 s%d, s%d, 0x80008" % (s.t0, Fa + 3))
    e("s_sub_u32 s%d, s%d, s%d" % (s.t0, s.t0, s.m1))
    e("s_lshl_b32 s%d, s%d, 2" % (s.t0, s.t0))
    e("s_add_u32 s%d, s%d, L_cnt-L_pc-4" % (s.t0, s.t0))
    e("v_mov_b32 v%d, s%d" % (v.fo, s.t0))
    e("s_lshl_b32 s%d, s%d, 8" % (s.t0, s.wave))
    e("s_add_u32 m0, s%d, %d" % (s.t0, PRGB))
    stamp()
    emit(poll_rdy())
    mark("sig0")
    stamp()
    lab("L_head")
    qr = [kread(t, v.Q).replace("v%d " % v.ka0, "v%d " % v.t2).replace("v%d " % v.ka1, "v%d " % v.t3) for t in range(8)]
    kr = [kread(t, v.KF) for t in range(8)]
    for t in range(7):
        emit([qr[t], kr[t]])
    e("s_add_u32 s%d, s%d, s%d" % (s.t0, s.koff, s.astep))
    e("s_mul_i32 s%d, s%d, s%d" % (s.koff, s.t0, s.m1))
    e("s_waitcnt lgkmcnt(12)")
    e(QK0)
    emit([qr[7], kr[7], PRGW])
    for t in range(1, 8):
        e("s_waitcnt lgkmcnt(%d)" % (15 - 2 * t + (1 if t >= 2 else 0)))
        e(qk(t))
        if t == 1:
            e(RDYR)
            emit(kaddr())
            emit(adv(s.koff))
        if t == 2:
            e("v_and_b32 v%d, 31, v%d" % (v.t2, L))
            e("v_lshlrev_b32 v%d, 12, v%d" % (v.t2, v.t2))
            e("v_sub_u32 v%d, s%d, v%d" % (v.t2, Fa + 1, v.t2))
            e("v_ashrrev_i32 v%d, 31, v%d" % (v.t2, v.t2))
            e("v_and_b32 v%d, 0xff800000, v%d" % (v.t2, v.t2))
        if t == 3:
            e("s_bfe_u32 s%d, s%d, 0x80008" % (s.t0, Fa + 3))
            e("v_mov_b32 v%d, s%d" % (v.prg, s.t0))
            e("s_mov_b32 s%d, s%d" % (s.need, Fa + 6))
    e("s_cmp_lt_u32 s%d, 4" % s.wave)
    e("s_waitcnt lgkmcnt(0)")
    e("s_cbranch_scc0 L_head2")
    emit(poll_rdy())
    emit(kr)
    emit(kaddr())
    lab("L_head2")
    e("s_lshr_b32 s%d, s%d, 24" % (s.need, Fa + 3))
    e("s_nop 7")
    e("v_max3_f32 v%d, v%d, v%d, v%d" % (v.t0, v.S, v.S + 1, v.S + 2))
    e("v_max3_f32 v%d, v%d, v%d, v%d" % (v.t1, v.S + 3, v.S + 4, v.S + 5))
    for r in range(6, 14, 4):
        e("v_max3_f32 v%d, v%d, v%d, v%d" % (v.t0, v.t0, v.S + r, v.S + r + 1))
        e("v_max3_f32 v%d, v%d, v%d, v%d" % (v.t1, v.t1, v.S + r + 2, v.S + r + 3))
    e("v_max3_f32 v%d, v%d, v%d, v%d" % (v.t0, v.t0, v.S + 14, v.S + 15))
    e("v_max_f32 v%d, v%d, v%d" % (v.t0, v.t0, v.t1))
    e("v_mov_b32 v%d, v%d" % (v.t1, v.t0))
    e(RDYR)
    e("s_nop 0")
    e("v_permlane32_swap_b32 v%d, v%d" % (v.t0, v.t1))
    e("s_nop 1")
    e("v_max_f32 v%d, v%d, v%d" % (v.t0, v.t0, v.t1))
    e("v_fmamk_f32 v%d, v%d, 0x%x, v%d" % (v.nmc, v.t0, f2u(-C_SCALE), v.t2))
    for r in range(16):
        e(F(r))
    emit([ex(i) for i in range(8)] + [add(i) for i in range(1, 7)] + [cvt(0), cvt(1), cvt(2)])
    e("s_cmp_lt_u32 s%d, 4" % s.wave)
    e("s_waitcnt lgkmcnt(0)")
    e("s_cbranch_scc0 L_hlp_in")
    stamp()
    emit(poll_rdy())
    mark("loop")
    stamp()
    e("s_cmp_eq_u32 s%d, 1" % s.m1)
    e("s_cbranch_scc1 L_odd_m")
    out.append(".p2align 4")
    body("even")
    e("s_cbranch_vccnz L_hnd_even")
    body("odd")
    e("s_cbranch_vccz L_even_m")
    emit(poll_rdy())
    e("s_cmp_le_u32 s%d, 1" % s.U)
    e("s_cbranch_scc1 L_ho1")
    e("s_cmp_eq_u32 s%d, 0" % s.m1)
    e("s_cbranch_scc0 L_odd_m")
    e("s_branch L_even_m")
    lab("L_ho1")
    e("s_cmp_eq_u32 s%d, 0" % s.U)
    e("s_cbranch_scc1 L_tail0")
    e("s_cmp_eq_u32 s%d, 0" % s.m1)
    e(QK0M)
    e("s_cbranch_scc1 L_even_a")
    e("s_branch L_odd_a")
    lab("L_hnd_even")
    emit(poll_rdy())
    e("s_cmp_gt_u32 s%d, 1" % s.U)
    e("s_cbranch_scc1 L_odd_m")
    e("s_cmp_eq_u32 s%d, 0" % s.U)
    e("s_cbranch_scc1 L_tail")
    e(QK0M)
    e("s_branch L_odd_a")
    lab("L_hlp_in")
    e(PRGW)
    stamp()
    emit(sync_call())
    stamp()
    for t in range(8):
        e(kread(t, v.KF))
    emit(kaddr())
    e("s_waitcnt lgkmcnt(4)")
    e("s_branch L_hnd_hlp")
    body("hlp")
    lab("L_hnd_hlp")
    e("s_cmp_gt_u32 s%d, 1" % s.U)
    e("s_cbranch_scc1 L_hlp_m")
    e("s_cmp_eq_u32 s%d, 0" % s.U)
    e("s_cbranch_scc1 L_tail")
    e(QK0M)
    e("s_branch L_hlp_a")
    lab("L_tail0")
    e("s_cmp_eq_u32 s%d, 1" % s.m1)
    e("s_cbranch_scc1 L_tail")
    for j in range(4):
        e("v_add_u32 v%d, 0x400, v%d" % (v.va + j, v.va + j))
    tw, tr0, oo, rl = v.ka1, v.va, v.ka1r, v.X + 2

    def lsum():
        return ["v_mov_b32 v%d, v%d" % (v.t0, v.l), "s_nop 1",
                "v_permlane32_swap_b32 v%d, v%d" % (v.l, v.t0), "s_nop 1",
                "v_add_f32 v%d, v%d, v%d" % (v.l, v.l, v.t0)]

    def st_addr():
        r = ["v_and_b32 v%d, 31, v%d" % (v.t0, L),
             "v_lshrrev_b32 v%d, 5, v%d" % (v.t1, L),
             "v_lshlrev_b32 v%d, 3, v%d" % (v.t1, v.t1),
             "v_and_b32 v%d, 7, v%d" % (v.t2, L),
             "v_lshl_add_u32 v%d, v%d, 4, v%d" % (v.t1, v.t2, v.t1),
             "v_lshl_add_u32 v%d, v%d, 7, v%d" % (v.t0, v.t0, v.t1),
             "v_add_u32 v%d, s%d, v%d" % (tw, s.reg, v.t0)]
        r += ["v_xor_b32 v%d, %d, v%d" % (v.E + c, c * 16, tw) for c in range(8)]
        r += ["v_lshrrev_b32 v%d, 3, v%d" % (v.t0, L),
              "v_xor_b32 v%d, v%d, v%d" % (v.t1, v.t2, v.t0),
              "v_lshlrev_b32 v%d, 4, v%d" % (v.t1, v.t1),
              "v_lshl_add_u32 v%d, v%d, 7, v%d" % (v.t1, v.t0, v.t1),
              "v_add_u32 v%d, s%d, v%d" % (tr0, s.reg, v.t1),
              "v_lshlrev_b32 v%d, 12, v%d" % (v.t0, v.t0),
              "v_lshl_add_u32 v%d, v%d, 4, v%d" % (oo, v.t2, v.t0)]
        return r

    def pack_q(bb, norm=True, pk=True):
        r = []
        for g in range(4):
            c = 4 * bb + g
            o = v.O + 4 * c
            d = v.S + 2 * c
            if norm and not pk:
                r += ["v_mul_f32 v%d, v%d, v%d" % (o + i, o + i, rl) for i in range(4)]
            elif norm:
                r += ["v_pk_mul_f32 %s, %s, %s op_sel_hi:[1,0]" % (vr(o + i, 2), vr(o + i, 2), vr(rl, 2)) for i in (0, 2)]
            r += ["v_cvt_pk_bf16_f32 v%d, v%d, v%d" % (d, o, o + 1),
                  "v_cvt_pk_bf16_f32 v%d, v%d, v%d" % (d + 1, o + 2, o + 3),
                  "ds_write_b64 v%d, %s" % (v.E + c % 8, vr(d, 2))]
        return r

    def rd_half(hh):
        return ["ds_read_b128 %s, v%d offset:%d" % (vr(v.KF + 16 * hh + 4 * k, 4), tr0, k * 1024) for k in range(4)]

    def st_one(hh, k):
        return ["buffer_store_dwordx4 %s, v%d, %s, s%d offen offset:%d %s" % (
                    vr(v.KF + 16 * hh + 4 * k, 4), oo, sr(s.so, 4), s.col + k if k < 3 else s.t1, 128 * hh, STF)]

    sa = st_addr()
    cols = ["s_mov_b32 s%d, 0" % s.col, "s_mov_b32 s%d, 0x8000" % (s.col + 1),
            "s_mov_b32 s%d, 0x10000" % (s.col + 2), "s_mov_b32 s%d, 0x18000" % s.t1]
    RCP = "v_rcp_f32 v%d, v%d" % (rl, v.l)
    lab("L_tail")
    mark("tail")
    e("v_mov_b32 v%d, %d" % (v.prg, BIG))
    e("s_bitcmp1_b32 s%d, 31" % (Fa + 4))
    e("s_cbranch_scc1 L_tails")
    k = newret()
    vord = [0, 1, 8, 9, 2, 3, 10, 11, 4, 5, 12, 13, 6, 7, 14, 15]
    for i in vord[:12]:
        e(vread(i))
    emit([ex(8), add(7), cvt(3)] + [ex(i) for i in range(9, 16)])
    e("s_cmp_lt_u32 s%d, 4" % s.wave)
    e("s_cbranch_scc0 L_t1")
    e("s_waitcnt vmcnt(0)")
    lab("L_t1")
    for i in vord[12:]:
        e(vread(i))
    e(PRGW)
    emit([add(i) for i in range(8, 16)] + [CMP, cvt(4), "s_mov_b32 s%d, %d" % (s.ret, k), "s_cbranch_vccnz L_resc",
                                           "L_ret%d:" % k, cvt(5), cvt(6), cvt(7), LADD])
    e("s_cmp_lt_u32 s%d, 4" % s.wave)
    e("s_waitcnt lgkmcnt(0)")
    e("s_cbranch_scc0 L_htail")
    lab("L_tail2")
    p0 = pack_q(0, pk=False)
    emit([pv(0)] + lsum() + [RCP])
    emit([pv(4), cols[0]] + sa[0:7])
    emit([pv(1), cols[1]] + sa[7:15])
    emit([pv(5), cols[2]] + sa[15:])
    emit([pv(2), cols[3]] + p0[0:7])
    emit([pv(6)] + p0[7:14])
    emit([pv(3)] + p0[14:21])
    emit([pv(7)] + p0[21:])
    lab("L_tail3")
    stamp(5)
    if OPT.get("stadj"):
        emit(pack_q(1) + rd_half(0) + pack_q(2) + pack_q(3) + rd_half(1))
        for k in range(4):
            emit(["s_waitcnt lgkmcnt(%d)" % (3 - k)] + st_one(0, k) + st_one(1, k))
    else:
        emit(pack_q(1) + rd_half(0))
        p2 = pack_q(2)
        emit(p2[:10] + ["s_waitcnt lgkmcnt(5)"] + st_one(0, 0) + p2[10:] + ["s_waitcnt lgkmcnt(4)"] + st_one(0, 1))
        p3 = pack_q(3)
        emit(p3[:10] + st_one(0, 2) + p3[10:] + st_one(0, 3) + rd_half(1))
        stamp(4)
        for k in range(4):
            emit(["s_waitcnt lgkmcnt(%d)" % (3 - k)] + st_one(1, k))
    k = newret()
    ool.append(["L_tails:"] + [vread(i) for i in range(8)]
               + [add(7), "s_waitcnt vmcnt(0)", PRGW, CMP, cvt(3), "s_mov_b32 s%d, %d" % (s.ret, k), "s_cbranch_vccnz L_resc",
                  "L_ret%d:" % k, LADD] + lsum() + [RCP, "s_waitcnt lgkmcnt(1)",
                  pv(0), cols[0]] + sa[0:7] + [pv(1), cols[1]] + sa[7:15] + [pv(2), cols[2]] + sa[15:]
               + [pv(3), cols[3]] + pack_q(0) + ["s_branch L_tail3"])
    lab("L_fin")
    if SPIN:
        mark("st")
        e("s_waitcnt vmcnt(0)")
        mark("end")
        if SPIN == "glob":
            e("s_load_dwordx2 s[98:99], s[0:1], 40")
            e("s_not_b32 s%d, s%d" % (s.t0, s.ws))
            e("v_mov_b32 v%d, s%d" % (v.t1, s.t0))
            e("v_mov_b32 v%d, 0" % v.t0)
            e("s_waitcnt lgkmcnt(0)")
            e("s_cmp_lg_u32 s%d, 0" % s.wave)
            e("s_cbranch_scc1 L_g1")
            e("s_mov_b64 exec, 1")
            e("global_atomic_umax v%d, v%d, s[98:99]" % (v.t0, v.t1))
            e("s_mov_b64 exec, -1")
            lab("L_g1")
        e("s_sub_u32 s%d, s%d, s%d" % (s.t0, s.stp, s.ws))
        e("s_mul_i32 s%d, s%d, %s" % (s.t0, s.t0, OPT.get("amp", "2")))
        e("s_add_u32 s%d, s%d, 3000" % (s.t0, s.t0))
        lab("L_spin")
        e("s_sleep 2")
        e("s_memrealtime s[%d:%d]" % (s.stp, s.stp + 1))
        e("s_waitcnt lgkmcnt(0)")
        e("s_sub_u32 s%d, s%d, s%d" % (s.t1, s.stp, s.ws))
        e("s_cmp_lt_u32 s%d, s%d" % (s.t1, s.t0))
        e("s_cbranch_scc1 L_spin")
        if SPIN == "glob":
            e("global_load_dword v%d, v%d, s[98:99] sc0 sc1" % (v.t1, v.t0))
            e("s_waitcnt vmcnt(0)")
            e("v_readfirstlane_b32 s%d, v%d" % (s.t2, v.t1))
            e("s_not_b32 s%d, s%d" % (s.t2, s.t2))
            lab("L_spin2")
            e("s_sleep 2")
            e("s_memrealtime s[%d:%d]" % (s.stp, s.stp + 1))
            e("s_waitcnt lgkmcnt(0)")
            e("s_sub_u32 s%d, s%d, s%d" % (s.t1, s.stp, s.t2))
            e("s_cmp_lt_u32 s%d, 4000" % s.t1)
            e("s_cbranch_scc1 L_spin2")
    if STAMPS:
        stamp(6)
        e("s_waitcnt vmcnt(0)")
        stamp(7)
        stamp(61, True)
        e("s_getreg_b32 s%d, hwreg(HW_REG_XCC_ID)" % s.stp)
        e("v_writelane_b32 v%d, s%d, 62" % (v.st, s.stp))
        e("s_lshl_b32 s%d, s2, 3" % s.t0)
        e("s_add_u32 s%d, s%d, s%d" % (s.t0, s.t0, s.wave))
        e("s_lshl_b32 s%d, s%d, 8" % (s.t0, s.t0))
        e("v_lshlrev_b32 v%d, 2, v%d" % (v.t0, v.lane))
        e("v_add_u32 v%d, s%d, v%d" % (v.t0, s.t0, v.t0))
        if OPT.get("dbg"):
            e("v_readlane_b32 s%d, v%d, 0" % (s.t0, v.st))
            e("v_readlane_b32 s%d, v%d, 61" % (s.t1, v.st))
            e("v_readlane_b32 s%d, v%d, 1" % (s.t2, v.st))
            e("s_not_b32 s%d, s%d" % (s.t3, s.t0))
            e("v_cmp_ne_u32 vcc, 0, v%d" % v.st)
            e("v_subrev_u32 v%d, s%d, v%d" % (v.t1, s.t2, v.st))
            e("s_nop 1")
            e("v_cndmask_b32 v%d, 0, v%d, vcc" % (v.t1, v.t1))
            e("v_writelane_b32 v%d, s%d, 0" % (v.t1, s.t3))
            e("v_writelane_b32 v%d, s%d, 1" % (v.t1, s.t1))
            e("v_writelane_b32 v%d, s%d, 15" % (v.t1, s.t0))
            e("v_lshlrev_b32 v%d, 2, v%d" % (v.t0, v.lane))
            e("s_cmp_lt_u32 s%d, 4" % s.wave)
            e("s_cselect_b32 s%d, 0xffff, 0x80ff" % s.t0 if False else "s_mov_b32 s%d, 0x80ff" % s.t0)
            e("s_cselect_b32 exec_lo, 0xffff, s%d" % s.t0)
            e("s_mov_b32 exec_hi, 0")
            e("global_atomic_umax v%d, v%d, %s" % (v.t0, v.t1, sr(s.ws, 2)))
        else:
            e("global_store_dword v%d, v%d, %s" % (v.t0, v.st, sr(s.ws, 2)))
    lab("L_end")
    e("s_endpgm")
    for blk in ool:
        emit(blk)
    lab("L_sync")
    e("s_setprio %s" % OPT.get("sprio", "0"))
    e("s_min_u32 s%d, s%d, s%d" % (s.t2, s.need, s.n))
    e("s_cmp_eq_u32 s%d, 0x20000" % s.stepb)
    e("s_cselect_b32 s%d, %s, %s" % (s.t3, OPT.get("lookd", "4"), OPT.get("look", "2")))
    e("s_add_u32 s%d, s%d, s%d" % (s.t3, s.t2, s.t3))
    e("s_min_u32 s%d, s%d, s%d" % (s.t3, s.t3, s.n))
    lab("L_svc")
    e("ds_read_b32 v%d, v%d" % (v.t1, v.pra))
    e(RDYR)
    e("s_sub_i32 s%d, s%d, 5" % (s.t1, s.iss))
    e("s_cmp_gt_u32 s%d, s%d" % (s.iss, s.t3))
    e("s_waitcnt lgkmcnt(0)")
    e("s_cbranch_scc0 L_svc1")
    e("v_cmp_ge_u32 vcc, s%d, v%d" % (s.t2, v.rdy))
    e("s_cbranch_vccz L_svcx")
    e("s_cmp_gt_u32 s%d, s%d" % (s.iss, s.n))
    e("s_cbranch_scc1 L_svcs")
    lab("L_svc1")
    e("v_cmp_gt_i32 vcc, s%d, v%d" % (s.t1, v.t1))
    e("s_cbranch_vccnz L_svc2")
    e("s_add_u32 s%d, s%d, 1" % (s.iss, s.iss))
    if OPT.get("cap", "10"):
        e("s_waitcnt vmcnt(%s)" % OPT.get("cap", "10"))
    e("s_bitcmp0_b32 s%d, 0" % s.iss)
    e("s_cbranch_scc1 L_svcB")
    emit(chunk(0, pace=PACE))
    e("s_branch L_svc")
    lab("L_svcB")
    emit(chunk(1, pace=PACE) + STEP_ADV)
    e("s_branch L_svc")
    lab("L_svc2")
    e("v_cmp_ge_u32 vcc, s%d, v%d" % (s.t2, v.rdy))
    e("s_cbranch_vccz L_svcx")
    lab("L_svcs")
    emit(spin(OPT.get("slp", "2")))
    e("s_branch L_svc")
    lab("L_svcx")
    e("s_setprio %s" % OPT.get("hprio", "3"))
    SRET_AT = len(out)
    lab("L_htail")
    e("s_mov_b32 s%d, s%d" % (s.need, s.n))
    e("s_bitcmp0_b32 s%d, 24" % (Fa + 2))
    e("s_cbranch_scc1 L_htail2")
    emit(sync_call("L_tail2"))
    lab("L_htail2")
    for i in range(8):
        e(pv(i))
    lab("L_hdone")
    e("s_mov_b32 s%d, s%d" % (s.need, s.n))
    emit(sync_call())
    e("s_sub_u32 s%d, s%d, 1" % (s.t2, s.n))
    e("s_bfe_u32 s%d, s%d, 0x40018" % (s.n, Fa + 2))
    e("s_cbranch_scc0 L_fin")
    e("s_setprio %s" % OPT.get("eprio", "0"))
    e("s_branch L_pe1")
    lab("L_pe0")
    emit(spin(OPT.get("slp", "2")))
    lab("L_pe1")
    e("ds_read_b32 v%d, v%d" % (v.t1, v.pra))
    e("s_waitcnt lgkmcnt(0)")
    e("v_cmp_gt_u32 vcc, s%d, v%d" % (s.t2, v.t1))
    e("s_cbranch_vccnz L_pe0")
    stamp(5)
    l16, l8, xa, cnt = v.ka0, v.ka0r, v.var, v.var + 1
    emit(lsum())
    e("v_lshlrev_b32 v%d, 4, v%d" % (l16, L))
    e("v_lshlrev_b32 v%d, 3, v%d" % (l8, L))
    e("s_lshl_b32 s%d, s%d, 9" % (s.t0, s.wave))
    e("s_add_u32 s%d, s%d, %d" % (s.t0, s.t0, MLBASE - 2048))
    e("v_add_u32 v%d, s%d, v%d" % (xa, s.t0, l8))
    e("ds_write_b64 v%d, %s" % (xa, vr(v.nmc, 2)))
    e("s_cmp_eq_u32 s%d, 2" % s.n)
    e("s_cbranch_scc1 L_sd2")
    for j in (1, 2, 3):
        if j == 2:
            lab("L_sd2")
        e("s_and_b32 s%d, s%d, 0xffffff" % (s.t0, Fa + 4 + j))
        e("v_add_u32 v%d, s%d, v%d" % (xa, s.t0, l16))
        for k in range(4):
            e("ds_write_b128 v%d, %s offset:%d" % (xa, vr(v.O + 16 * j + 4 * k, 4), k * 1024))
    e("s_lshr_b32 s%d, s%d, 30" % (s.t0, Fa + 2))
    e("s_lshl_b32 s%d, s%d, 2" % (s.t0, s.t0))
    e("s_add_u32 s%d, s%d, %d" % (s.t0, s.t0, CNTB))
    e("v_mov_b32 v%d, s%d" % (cnt, s.t0))
    e("v_mov_b32 v%d, 1" % v.t3)
    e("s_mov_b64 exec, 1")
    e("ds_add_u32 v%d, v%d" % (cnt, v.t3))
    e("s_mov_b64 exec, -1")
    emit(st_addr())
    e("v_add_u32 v%d, s%d, v%d" % (xa, s.reg, l16))
    for j in range(3):
        e("s_lshr_b32 s%d, s%d, 24" % (s.t0, Fa + 5 + j))
        e("s_lshl_b32 s%d, s%d, 9" % (s.t0, s.t0))
        e("s_add_u32 s%d, s%d, %d" % (s.t0, s.t0, MLBASE))
        e("v_add_u32 v%d, s%d, v%d" % (v.P + j, s.t0, l8))
    e("s_branch L_poll1")
    lab("L_poll")
    emit(spin())
    lab("L_poll1")
    e("ds_read_b32 v%d, v%d" % (v.t3, cnt))
    e("s_waitcnt lgkmcnt(0)")
    e("v_cmp_ne_u32 vcc, s%d, v%d" % (s.n, v.t3))
    e("s_cbranch_vccnz L_poll")
    stamp(4)
    for j in range(3):
        e("ds_read_b64 %s, v%d" % (vr(v.X + 2 * j, 2), v.P + j))
    for k in range(12):
        e("ds_read_b128 %s, v%d offset:%d" % (vr(v.KF + 16 + 4 * k, 4), xa, k * 1024))
    RX = v.KF + 16
    f0, f1, f2, f3 = v.X + 8, v.X + 9, v.X + 10, v.X + 11
    e("s_bfe_u32 s%d, s%d, 0x2001c" % (s.col, Fa + 2))
    e("s_lshl_b32 s%d, s%d, 6" % (s.col, s.col))
    e("s_add_u32 s%d, s%d, 0x8000" % (s.col + 1, s.col))
    e("s_add_u32 s%d, s%d, 0x10000" % (s.col + 2, s.col))
    e("s_add_u32 s%d, s%d, 0x18000" % (s.t1, s.col))
    e("s_waitcnt lgkmcnt(12)")
    e("v_min3_f32 v%d, v%d, v%d, v%d" % (v.t3, v.nmc, v.X, v.X + 2))
    e("v_min_f32 v%d, v%d, v%d" % (v.t3, v.t3, v.X + 4))
    e("v_sub_f32 v%d, v%d, v%d" % (f0, v.t3, v.nmc))
    for j, f in enumerate((f1, f2, f3)):
        e("v_sub_f32 v%d, v%d, v%d" % (f, v.t3, v.X + 2 * j))
    for f in (f0, f1, f2, f3):
        e("v_exp_f32 v%d, v%d" % (f, f))
    e("v_mul_f32 v%d, v%d, v%d" % (v.l, v.l, f0))
    e("v_fmac_f32 v%d, v%d, v%d" % (v.l, v.X + 1, f1))
    e("s_cmp_eq_u32 s%d, 2" % s.n)
    e("s_cbranch_scc1 L_mg2")
    e("v_fmac_f32 v%d, v%d, v%d" % (v.l, v.X + 3, f2))
    e("v_fmac_f32 v%d, v%d, v%d" % (v.l, v.X + 5, f3))
    e("v_rcp_f32 v%d, v%d" % (v.t3, v.l))
    e("v_and_b32 v%d, 4, v%d" % (v.t0, L))
    e("v_lshl_add_u32 v%d, v%d, 28, v%d" % (oo, v.t0, oo))
    for f in (f0, f1, f2, f3):
        e("v_mul_f32 v%d, v%d, v%d" % (f, f, v.t3))
    for i in range(16):
        e("v_mul_f32 v%d, v%d, v%d" % (v.O + i, v.O + i, f0))
    for j, f in enumerate((f1, f2, f3)):
        e("s_waitcnt lgkmcnt(%d)" % (8 - 4 * j))
        for i in range(16):
            e("v_fmac_f32 v%d, v%d, v%d" % (v.O + i, RX + 16 * j + i, f))
    e("s_branch L_mg3")
    lab("L_mg2")
    e("v_rcp_f32 v%d, v%d" % (v.t3, v.l))
    e("s_nop 0")
    for f in (f0, f1):
        e("v_mul_f32 v%d, v%d, v%d" % (f, f, v.t3))
    for i in range(32):
        e("v_mul_f32 v%d, v%d, v%d" % (v.O + i, v.O + i, f0))
    e("s_waitcnt lgkmcnt(0)")
    for i in range(32):
        e("v_fmac_f32 v%d, v%d, v%d" % (v.O + i, RX + i, f1))
    emit(pack_q(1, False))
    lab("L_mg3")
    emit(pack_q(0, False) + rd_half(0))
    for k in range(4):
        emit(["s_waitcnt lgkmcnt(%d)" % (3 - k)] + st_one(0, k))
    e("s_branch L_fin")
    lab("L_resc")
    e("v_max3_f32 v%d, v%d, v%d, v%d" % (v.t0, v.X, v.X + 1, v.X + 2))
    for r in range(3, 15, 2):
        e("v_max3_f32 v%d, v%d, v%d, v%d" % (v.t0, v.t0, v.X + r, v.X + r + 1))
    e("v_max3_f32 v%d, v%d, v%d, 0" % (v.t0, v.t0, v.X + 15))
    e("v_mov_b32 v%d, v%d" % (v.t1, v.t0))
    e("s_nop 1")
    e("v_permlane32_swap_b32 v%d, v%d" % (v.t0, v.t1))
    e("s_nop 1")
    e("v_max_f32 v%d, v%d, v%d" % (v.t0, v.t0, v.t1))
    e("v_exp_f32 v%d, -v%d" % (v.t1, v.t0))
    e("v_sub_f32 v%d, v%d, v%d" % (v.nmc, v.nmc, v.t0))
    for r in range(16):
        e("v_sub_f32 v%d, v%d, v%d" % (v.X + r, v.X + r, v.t0))
    e("v_mul_f32 v%d, v%d, v%d" % (v.l, v.l, v.t1))
    for i in range(64):
        e("v_mul_f32 v%d, v%d, v%d" % (v.O + i, v.O + i, v.t1))
    emit(soft_half_plain(0))
    emit(soft_half_plain(1))
    for k, r in enumerate(rets[:-1]):
        e("s_cmp_eq_u32 s%d, %d" % (s.ret, k))
        e("s_cbranch_scc1 %s" % r)
    e("s_branch %s" % rets[-1])
    rl_ = []
    order = [2, 1, 0, 3, 4]
    assert len(srets) == len(order)
    for k in order[:-1]:
        rl_ += ["    s_cmp_eq_u32 s%d, %d" % (s.sret, k), "    s_cbranch_scc1 %s" % srets[k]]
    rl_ += ["    s_branch %s" % srets[order[-1]]]
    out[SRET_AT:SRET_AT] = rl_
    out.append(".p2align 6")
    out.append(".type L_near,@object")
    lab("L_near")
    for ent in near:
        out.append("    .long " + ", ".join("0x%x" % x for x in ent))
    lab("L_far")
    for ent in far:
        out.append("    .long " + ", ".join("0x%x" % x for x in ent))
    lab("L_cnt")
    out.append("    .long " + ", ".join(str(i) for i in range(32)))
    out.append(".size L_near, .-L_near")
    lab("L_codeend")
    out.append("    .fill 512, 4, 0xbf800000")
    out.append('.section .rodata,"a"')
    out.append(".p2align 6")
    out.append(".amdhsa_kernel " + K)
    out.append("  .amdhsa_next_free_vgpr %d" % NV)
    out.append("  .amdhsa_next_free_sgpr %d" % NS)
    out.append("  .amdhsa_accum_offset %d" % NV)
    out.append("  .amdhsa_group_segment_fixed_size 0")
    out.append("  .amdhsa_kernarg_size 56")
    out.append("  .amdhsa_user_sgpr_count 2")
    out.append("  .amdhsa_user_sgpr_kernarg_segment_ptr 1")
    out.append("  .amdhsa_system_sgpr_workgroup_id_x 1")
    out.append(".end_amdhsa_kernel")
    txt = "\n".join(out) + "\n"
    txt = txt.replace("PFSTRIDE", OPT.get("pf", "32"))
    import subprocess, tempfile, os
    tmp = tempfile.mkdtemp()
    open(tmp + "/a.s", "w").write(txt.replace("offset:L_near-L_pc", "offset:0x100").replace("offset:L_far-L_pc", "offset:0x100"))
    subprocess.run(["clang", "-x", "assembler", "-target", "amdgcn-amd-amdhsa", "-mcpu=gfx950", "-c", tmp + "/a.s", "-o", tmp + "/a.o"], check=True)
    sy = {}
    for ln in subprocess.run(["llvm-objdump", "-t", tmp + "/a.o"], capture_output=True, text=True).stdout.splitlines():
        p = ln.split()
        if len(p) >= 5 and p[-1].startswith("L_"):
            sy[p[-1]] = int(p[0], 16)
    assert sy["L_codeend"] - sy["L_pc"] <= 512 * int(OPT.get("pf", "32")) + 128 or STAMPS or SPIN, hex(sy["L_codeend"])
    assert sy["L_codeend"] + 2048 - sy["L_pc"] >= 512 * int(OPT.get("pf", "32"))
    for t in ("L_near", "L_far"):
        txt = txt.replace("offset:%s-L_pc" % t, "offset:0x%x" % (sy[t] - sy["L_pc"]))
        txt = txt.replace(t + ":\n", t + ":\n.if (%s-L_pc) != 0x%x\n.error \"table offset\"\n.endif\n" % (t, sy[t] - sy["L_pc"])) if False else txt
    return txt


if __name__ == "__main__":
    args = [a for a in sys.argv[1:] if a.endswith(".s")]
    path = args[0] if args else "cdna_kernels/%s.s" % NAME
    open(path, "w").write(gen())
    print("wrote", path)
```

```python
import sys, struct, math

NAME = "standalone__varlen_attn_packed__ragged"
CU = [0, 289, 520, 939, 1289, 1402, 1666, 1973, 2275]
LEN = [CU[i + 1] - CU[i] for i in range(8)]
T_TOT = 2275
ROWB = 4096
TENSOR_BYTES = T_TOT * ROWB

OPT = {}
for a in sys.argv[1:]:
    if a.startswith("--"):
        k, _, val = a[2:].partition("=")
        OPT[k] = val if val else "1"
STAMPS = "stamps" in OPT or "lite" in OPT
LITE = "lite" in OPT
LDF_Q = OPT.get("ldq", "none").replace("+", " ").replace("none", "")
LDF_K = OPT.get("ldk", "none").replace("+", " ").replace("none", "")
STF = OPT.get("st", "sc1").replace("+", " ").replace("none", "")
FLY = int(OPT.get("fly", "4"))

HEADER = """; Kernarg layout for this problem (56 bytes, ptrs only, base s[0:1]):
;   offset   0: d_in[0] q  shape=(2275, 16, 128) dtype=bfloat16 strides=(4096, 256, 2) contiguous=True
;   offset   8: d_in[1] k  shape=(2275, 16, 128) dtype=bfloat16 strides=(4096, 256, 2) contiguous=True
;   offset  16: d_in[2] v  shape=(2275, 16, 128) dtype=bfloat16 strides=(4096, 256, 2) contiguous=True
;   offset  24: d_in[3] cu  shape=(9,) dtype=int32 strides=(4,) contiguous=True
;   offset  32: d_out     shape=(2275, 16, 128) dtype=bfloat16 (2 bytes/elem)
"""


def f2u(x):
    return struct.unpack("<I", struct.pack("<f", x))[0]


def cdiv(a, b):
    return (a + b - 1) // b


LDS_TOTAL = 163840
QBASE = 98304
XTRA = 131072
MLBASE = XTRA + 16384
PRGB = XTRA + 7 * 4096 + 2048
RDYB = XTRA + 6 * 4096 + 3072
CNTB = XTRA + 6 * 4096 + 2048
BIG = 0x4000

ROLES = [
    ("dual", (1, 6, 2), (4, 0, 4)),
    (5, 0, 6),
    (3, 0, 5), (3, 5, 5),
    ("dual", (3, 10, 1), (5, 6, 3)),
    (1, 0, 6),
    (6, 0, 5), (6, 5, 5),
    (7, 0, 5), (7, 5, 5), (0, 0, 5), (0, 5, 5),
    (2, 0, 4), (2, 4, 4), (2, 8, 3), (2, 11, 3),
]
QL = int(OPT.get("ql", "4"))
QLC = int(OPT.get("qlc", "3"))
QE = int(OPT.get("qe", "0"))


def nrec(rows):
    return (rows - 1) * ROWB + 256 if rows > 0 else 0


def build_tables():
    near, far, desc = [], [], []
    for ri, role in enumerate(ROLES):
        W = [None] * 8
        groups = []
        if role[0] == "dual":
            (sa, ta, na), (sb, tb, nb) = role[1], role[2]
            rowA, lenA, rowB, lenB, step = CU[sa], LEN[sa], CU[sb], LEN[sb], 32
            n_it = max(cdiv(lenA, 32), cdiv(lenB, 32))
            tiles = [(sa, ta + i, 0) for i in range(na)] + [(sb, tb + i, 1) for i in range(nb)]
            nq = len(tiles)
            for i in range(4):
                sq, tl, st = tiles[i]
                W[i] = dict(seq=sq, tile=tl, ql=i, type=2, stream=st, its=list(range(cdiv(LEN[sq], 32))), hastail=1)
            for i in range(4, nq):
                sq, tl, st = tiles[i]
                nb_ = cdiv(LEN[sq], 32)
                W[i + 2] = dict(seq=sq, tile=tl, ql=i, type=3, stream=st, its=list(range(nb_)), hastail=1,
                                G=1, reg=XTRA + 4096 * i)
        else:
            sa, t0, nq = role
            rowA, lenA, rowB, lenB, step = CU[sa], LEN[sa], CU[sa] + 32, LEN[sa] - 32, 64
            nkv = cdiv(lenA, 32)
            n_it = cdiv(nkv, 2)
            tiles = [(sa, t0 + i, 0) for i in range(nq)]
            for i in range(min(nq, 4)):
                W[i] = dict(seq=sa, tile=t0 + i, ql=i, type=1, stream=0, its=list(range(nkv)), hastail=1)
            nh = 4 // (nq - 4) if nq > 4 else 0
            for i in range(4, nq):
                ws = [4, 5, 6, 7] if nh == 4 else [4 + (i - 4), 6 + (i - 4)]
                for k, w in enumerate(ws):
                    blocks = [p for p in range(nkv) if p % nh == k]
                    W[w] = dict(seq=sa, tile=t0 + i, ql=i, type=3, stream=k % 2, its=[p // 2 for p in blocks],
                                hastail=int((nkv - 1) in blocks))
                groups.append(ws)
        qrows = [CU[sq] + 32 * tl for sq, tl, _ in tiles] + [0xfff] * (6 - nq)
        qrows = [r | (0x1000 if i < nq and tiles[i][2] else 0) for i, r in enumerate(qrows)]
        maskA = sum(1 << i for i, w in enumerate(W) if w and (w["type"] == 1 or w["stream"] == 0 or i < 4 and role[0] != "dual"))
        lastB = 2 * cdiv(lenB, step) + 1
        near.append([rowA * ROWB, nrec(lenA) | maskA, rowB * ROWB, nrec(lenB) | lastB, step * ROWB | (2 * n_it + 1),
                     qrows[0] | qrows[1] << 16, qrows[2] | qrows[3] << 16, qrows[4] | qrows[5] << 16])
        areas = [((n_it + 1) % 4) * 32768, ((n_it + 2) % 4) * 32768]
        recv = [areas[0], areas[0] + 12288, areas[1], areas[1] + 12288]
        for i in range(4):
            if W[i]:
                W[i]["reg"] = XTRA + 4096 * i
        for gi, g in enumerate(groups):
            G = len(g)
            for k, w in enumerate(g):
                W[w]["reg"] = recv[w - 4]
                W[w]["G"], W[w]["k"], W[w]["gi"] = G, k, gi
                if G == 4:
                    W[w]["send"] = [recv[g[(j + k) % 4] - 4] + (j - 1) * 4096 for j in (1, 2, 3)]
                    W[w]["src"] = [g[(k - j) % 4] for j in (1, 2, 3)]
                else:
                    o = g[1 - k]
                    W[w]["send"] = [0, recv[o - 4], recv[o - 4] + 4096]
                    W[w]["src"] = [o, o, o]
        for wi in range(8):
            w = W[wi]
            desc.append(w)
            if w is None:
                far.append([0] * 8)
                continue
            sq, its, typ, sc = w["seq"], w["its"], w["type"], w["stream"]
            tail = LEN[sq] % 32
            orow = CU[sq] + 32 * w["tile"]
            onr = min(32, CU[sq + 1] - orow)
            assert onr > 0 and tail > 0
            U = len(its) - 1
            a0, st = its[0], its[1] - its[0]
            assert all(its[i] == a0 + st * i for i in range(len(its))) and st <= 2 and a0 <= 1 and U >= 1
            if typ == 1:
                inc, prg0, prg1, need1, need2 = 1, 2, 4, 0, 2
            elif typ == 2:
                inc, prg0, prg1, need1, need2 = 2, 2, 4 + sc, sc, 4 + sc
            else:
                inc, prg0, prg1, need1, need2 = 2 * st, 2 * a0 + sc + 2, 2 * (a0 + 1) + sc + 2, max(QE if QE else 3, 2 * a0 + sc), 2 * (a0 + st) + sc
            needk = max(need1 + 2 * (typ == 2), 1)
            if typ != 3 and wi >= QL:
                need1 = max(need1, QLC)
            w.update(needk=needk)
            w.update(U=U, a0=a0, st=st, inc=inc, prg0=prg0, prg1=prg1, need1=need1, need2=need2, n_it=n_it)
            hm = 0
            if typ != 3:
                nlast = 2 * n_it + 1
                pub = prg0
                w["pubs"] = []
                for b in range(U):
                    val = prg1 + inc * (b + 1)
                    want = pub < nlast - 5 and (typ == 2 or b % 2 == 1 or OPT.get("puball"))
                    if groups and pub < nlast - 1 <= val:
                        want = True
                    if typ == 2 or U - 1 - b <= 1:
                        hm |= 1 << (U - 1 - b)
                    if want and OPT.get("nodpub"):
                        hm |= 0x10001 << (U - 1 - b)
                        pub = val
                        w["pubs"].append(b)
            G, k, gi = w.get("G", 0), w.get("k", 0), w.get("gi", 0)
            rot = k * (4 // G) if G > 1 else 0
            ent = [orow * ROWB, nrec(onr),
                   U | typ << 8 | inc << 12 | (tail if w["hastail"] else 32) << 16 | G << 24 | rot << 28 | gi << 30,
                   prg0 | prg1 << 8 | need1 << 16 | need2 << 24,
                   w["reg"] | w["ql"] << 20 | (1 - sc) << 24 | a0 << 25 | st << 26 | int(typ != 3 and tail <= 16 and not OPT.get("noshort")) << 31]
            if G > 1:
                ent += [w["send"][j] | ((w["src"][j] - 4) << 24) for j in range(3)]
            if typ != 3:
                ent += [hm, needk]
            ent += [0] * (8 - len(ent))
            far.append(ent)
    return near, far, desc


class R:
    pass


v = R()
v.kd0, v.kd1, v.vd0, v.vd1 = 1, 2, 3, 4
v.ka0r, v.ka1r = 5, 6
v.ka0, v.ka1 = 7, 8
v.rdya, v.rdy = 9, 10
v.lane = 11
v.nmc, v.l = 12, 13
v.ps = 14
v.t0, v.t1, v.t2, v.t3 = 15, 16, 17, 18
v.pf = 19
v.st = 20
v.prga, v.prg = 21, 22
v.fo = 23
v.pra = 0
v.Q = 24
v.O = 56
v.S = 120
v.B = 136
v.KF = 152
v.VF = 184
v.X = 216
v.E = 232
v.P = 240
v.var = 248
v.va = 252
NV = 256

s = R()
s.q, s.k, s.vv, s.cu, s.out = 4, 6, 8, 10, 12
s.near = 16
s.far = 24
s.kA, s.kB, s.vA, s.vB, s.sq, s.so = 32, 36, 40, 44, 48, 52
s.wave, s.hoff = 56, 57
s.n = 58
s.thr = 59
s.soff = 60
s.dslot = 61
s.U = 62
s.mu = 63
s.koff, s.voff = 64, 65
s.need, s.chk = 66, 67
s.t0, s.t1, s.t2, s.t3 = 68, 69, 70, 71
s.pc = 72
s.stp = 74
s.ws = 76
s.sti = 78
s.ret = 79
s.foff = 80
s.reg = 81
s.m1 = 82
s.lnd = 83
s.inc = 84
s.col = 85
s.astep = 88
s.sret = 89
s.guard = 90
s.iss = 91
s.d0, s.rdw = 92, 93
s.qea, s.qeb = 94, 95
s.stepb = 97
NS = 100

C_SCALE = (128 ** -0.5) * math.log2(math.e)
CL = "0x%x" % f2u(C_SCALE)
THRESH = 4096.0

out = []


def e(x):
    out.append("    " + x)


def lab(x):
    out.append(x + ":")


def vr(b, n):
    return "v[%d:%d]" % (b, b + n - 1)


def sr(b, n):
    return "s[%d:%d]" % (b, b + n - 1)


def emit(lst):
    for x in lst:
        if x is None:
            continue
        if x.endswith(":"):
            out.append(x)
        else:
            e(x)


def stamp_l(k=None, real=False):
    if not STAMPS or (LITE and k not in (7, 61)):
        return []
    if OPT.get("rt") and k is None and not real:
        return stamp_l(None, True) + stamp_l(None, "c")
    real = real is True
    r = ["%s s[%d:%d]" % ("s_memrealtime" if real else "s_memtime", s.stp, s.stp + 1), "s_waitcnt lgkmcnt(0)"]
    if k is None:
        r += ["s_mov_b32 s%d, m0" % (s.stp + 1), "s_mov_b32 m0, s%d" % s.sti, "s_nop 0",
              "v_writelane_b32 v%d, s%d, m0" % (v.st, s.stp),
              "s_add_u32 s%d, s%d, 1" % (s.sti, s.sti), "s_mov_b32 m0, s%d" % (s.stp + 1)]
    else:
        r += ["v_writelane_b32 v%d, s%d, %d" % (v.st, s.stp, k)]
    return r


def stamp(k=None, real=False):
    emit(stamp_l(k, real))


SPIN = OPT.get("spin")


def mark(name):
    if SPIN == name:
        e("s_memrealtime s[%d:%d]" % (s.stp, s.stp + 1))
        e("s_waitcnt lgkmcnt(0)")


def kread(t, dst, st=0):
    return "ds_read_b128 %s, v%d offset:%d" % (vr(dst + 4 * t, 4), v.ka1 if t % 2 else v.ka0,
                                               (t // 4) * 16384 + ((t // 2) % 2) * 256 + st * 1024)


def vread(i, st=0, one=False):
    t, bb, ss = i // 8, (i // 2) % 4, i % 2
    reg = v.VF + (t * 4 + bb) * 4 + ss * 2
    if one:
        return "ds_read_b64_tr_b16 %s, v%d offset:%d" % (vr(reg, 2), v.va, (4 * t + 2 * ss) * 4096 + st * 1024 + bb * 256)
    return "ds_read_b64_tr_b16 %s, v%d offset:%d" % (vr(reg, 2), v.va + bb, (4 * t + 2 * ss) * 4096 + st * 1024)


def ld(kv, col, half, so):
    srd = {("K", 0): s.kA, ("K", 1): s.kB, ("V", 0): s.vA, ("V", 1): s.vB}[(kv, col)]
    off = (2048 if kv == "V" else 0) + (1024 if col == 0 else 0)
    vo = {("K", 0): v.kd0, ("K", 1): v.kd1, ("V", 0): v.vd0, ("V", 1): v.vd1}[(kv, half)]
    return "buffer_load_dwordx4 v%d, %s, s%d offen %s%s lds" % (vo, sr(srd, 4), so, "offset:%d " % off if off else "", LDF_K)


STEP_ADV = ["s_add_u32 s%d, s%d, s%d" % (s.soff, s.soff, s.stepb),
            "s_add_u32 s%d, s%d, 0x8000" % (s.dslot, s.dslot),
            "s_and_b32 s%d, s%d, 0x1ffff" % (s.dslot, s.dslot)]


FLAG = ["s_mov_b32 m0, s%d" % s.rdw,
        "v_add_u32 v%d, 4, v%d" % (v.fo, v.fo),
        "global_load_lds_dword v%d, %s" % (v.fo, sr(s.pc, 2))]


def chunk(col, k_only=False, pace=0, flag=True):
    p = []
    if pace:
        p = ["s_sleep %d" % pace if pace < 16 else "s_nop %d" % (pace - 16)]
    r = []
    for half, m in ((0, "s_mov_b32 m0, s%d" % s.dslot), (1, "s_add_u32 m0, s%d, 0x4000" % s.dslot)):
        r += [m, "s_nop 0"]
        if not k_only:
            r += [ld("V", col, half, s.soff)] + p
        r += [ld("K", col, half, s.soff)] + p
    return r + (FLAG if flag else [])


def qk(t):
    return "v_mfma_f32_32x32x16_bf16 %s, %s, %s, %s" % (vr(v.S, 16), vr(v.KF + 4 * t, 4), vr(v.Q + 4 * t, 4), vr(v.S, 16))


def pv(i):
    t, bb = i // 4, i % 4
    return "v_mfma_f32_32x32x16_bf16 %s, %s, %s, %s" % (
        vr(v.O + 16 * bb, 16), vr(v.VF + (t * 4 + bb) * 4, 4), vr(v.P + 4 * t, 4), vr(v.O + 16 * bb, 16))


def F(r):
    return "v_fmamk_f32 v%d, v%d, %s, v%d" % (v.X + r, v.S + r, CL, v.nmc)


def ex(r):
    return "v_exp_f32 v%d, v%d" % (v.E + r % 8, v.X + r)


def add(r):
    if r == 0:
        return None
    if r == 1:
        return "v_add_f32 v%d, v%d, v%d" % (v.ps, v.E, v.E + 1)
    return "v_add_f32 v%d, v%d, v%d" % (v.ps, v.ps, v.E + r % 8)


def cvt(i):
    return "v_cvt_pk_bf16_f32 v%d, v%d, v%d" % (v.P + i, v.E + (2 * i) % 8, v.E + (2 * i + 1) % 8)


def soft_half_plain(h):
    r = [ex(8 * h + i) for i in range(8)]
    r += [x for x in (add(8 * h + i) for i in range(8)) if x]
    r += [cvt(4 * h + i) for i in range(4)]
    return r


CMP = "v_cmp_lt_f32 vcc, s%d, v%d" % (s.thr, v.ps)
LADD = "v_add_f32 v%d, v%d, v%d" % (v.l, v.l, v.ps)
PRGW = "ds_write_b32 v%d, v%d" % (v.prga, v.prg)
RDYR = "ds_read_b32 v%d, v%d" % (v.rdy, v.rdya)
PRGINC = "v_add_u32 v%d, s%d, v%d" % (v.prg, s.inc, v.prg)
NEEDINC = "s_add_u32 s%d, s%d, s%d" % (s.need, s.need, s.inc)
QK0 = "v_mfma_f32_32x32x16_bf16 %s, %s, %s, 0" % (vr(v.S, 16), vr(v.KF, 4), vr(v.Q, 4))
QK0M = "v_mfma_f32_32x32x16_bf16 %s, %s, %s, %s" % (vr(v.S, 16), vr(v.KF, 4), vr(v.Q, 4), vr(v.B, 16))
rets, srets = [], []


def newret():
    rets.append("L_ret%d" % len(rets))
    return len(rets) - 1


def kaddr():
    return ["v_add_u32 v%d, s%d, v%d" % (v.ka0, s.koff, v.ka0r),
            "v_add_u32 v%d, s%d, v%d" % (v.ka1, s.koff, v.ka1r)]


def vaddr():
    return ["v_add_u32 v%d, s%d, v%d" % (v.va + j, s.voff, v.var + j) for j in range(4)]


def adv(reg):
    return ["s_add_u32 s%d, s%d, s%d" % (reg, reg, s.astep), "s_and_b32 s%d, s%d, 0x1ffff" % (reg, reg)]


def spin(n="1"):
    r = ["s_sleep %s" % n]
    if not OPT.get("nosafe"):
        r += ["s_sub_u32 s%d, s%d, 1" % (s.guard, s.guard), "s_cbranch_scc1 L_end"]
    return r


def sync_call(target=None):
    k = len(srets)
    srets.append(target or "L_sr%d" % k)
    return ["s_mov_b32 s%d, %d" % (s.sret, k), "s_branch L_sync"] + ([] if target else ["L_sr%d:" % k])


_pl = [0]


ool = []


def poll_rdy():
    _pl[0] += 1
    a, b = "L_pa%d" % _pl[0], "L_pb%d" % _pl[0]
    ool.append([a + ":"] + spin() + [RDYR, "s_waitcnt lgkmcnt(0)", "s_branch %s" % b])
    return ["s_min_u32 s%d, s%d, s%d" % (s.t2, s.need, s.n), b + ":",
            "v_cmp_ge_u32 vcc, s%d, v%d" % (s.t2, v.rdy), "s_cbranch_vccnz %s" % a]


def body(kind):
    odd, hlp = kind != "even", kind == "hlp"
    st = 0 if odd else 1
    V = lambda i: vread(i, st, not hlp)
    K = lambda t: kread(t, v.KF, st)
    W = lambda n: "s_waitcnt lgkmcnt(%d)" % n
    k = newret()
    q = [
        [NEEDINC, V(0), V(1), ex(8), add(7), cvt(3)],
        ["s_mov_b32 s%d, %d" % (s.ret, k), V(2), V(3), ex(9), ex(10)],
        [W(4), V(4), V(5), ex(11), add(8), add(9)],
        ["s_sub_u32 s%d, s%d, 1" % (s.U, s.U), V(6), V(7), ex(12), ex(13)],
        [None, V(8), V(9), ex(14), add(10), add(11)],
        [None, V(10), V(11), ex(15), add(12), add(13)],
        [W(4), V(12), V(13), add(14), add(15), CMP, cvt(4)],
        ["s_cbranch_vccnz L_resc", "L_ret%d:" % k, V(14), V(15), LADD, cvt(5), cvt(6), cvt(7)],
    ]
    p = [
        ["s_nop 0", K(0), K(1), K(2), F(0), F(1), F(2)],
        [None, K(3), ex(0), F(3), F(4), F(5)],
        [None, K(4), ex(1), F(6), F(7), F(8)],
        [W(5), K(5), ex(2), add(1), F(9), F(10)],
        [None, K(6), ex(3), add(2), cvt(0), F(11)],
        [None, K(7), ex(4), add(3), cvt(1), F(12)],
        [W(4), ex(5), ex(6), add(4), F(13)],
        [None, ex(7), add(5), add(6), cvt(2), F(14), F(15)],
    ]
    if odd:
        q[4][0], q[5][0] = adv(s.voff)
        p[4][0], p[5][0] = adv(s.koff)
        va, ka = vaddr(), kaddr()
        p[1].append(va[0])
        if hlp:
            p[3].append(va[1])
            p[4].append(va[2])
            p[5].append(va[3])
        p[6].append(ka[0])
        p[7].append(ka[1])
    if not hlp:
        p[0][0] = "s_min_u32 s%d, s%d, s%d" % (s.chk, s.need, s.n)
        p[1][0] = "s_bitcmp1_b32 s%d, s%d" % (s.far + 5, s.U)
        p[2][0] = "s_cselect_b32 s%d, -1, s%d" % (s.chk, s.chk)
        p[2][2:2] = [RDYR]
        p[6][0] = W(3)
        if odd and (not OPT.get("nodpub")):
            q[2].append("v_add_u32 v%d, 8, v%d" % (v.fo, v.fo))
            q[3][1:1] = ["global_load_lds_dword v%d, %s" % (v.fo, sr(s.pc, 2))]
        p[7][3:3] = ["v_cmp_ge_u32 vcc, s%d, v%d" % (s.chk, v.rdy)]
    else:
        q[1].append(PRGINC)
        q[7][4:4] = [PRGW]
        sc = sync_call()
        q[3][1:1] = [sc[0]]
        p[0][0:1] = stamp_l() + sc[1:] + stamp_l()
    lab("L_%s_m" % kind)
    e(QK0)
    lab("L_%s_a" % kind)
    emit(q[0])
    for t in range(1, 8):
        e(qk(t))
        emit(q[t])
    for i in range(8):
        e(pv(i))
        emit(p[i])
    if not hlp:
        stamp()


def gen():
    K = NAME + "_kernel"
    near, far, _ = build_tables()
    PACE = int(OPT.get("pace", "0"))
    out.append(HEADER + "; @launch grid=(256,1,1) block=(512,1,1) lds=%d" % LDS_TOTAL)
    out.append('.amdgcn_target "amdgcn-amd-amdhsa--gfx950"')
    out.append(".text")
    out.append(".globl " + K)
    out.append(".p2align 12")
    out.append(".p2align 8")
    out.append(".type %s,@function" % K)
    lab(K)
    L, N, Fa = v.lane, s.near, s.far
    if SPIN:
        e("s_memrealtime s[%d:%d]" % (s.ws, s.ws + 1))
        e("s_memrealtime s[%d:%d]" % (s.stp, s.stp + 1))
    if STAMPS:
        e("s_memrealtime s[%d:%d]" % (s.stp, s.stp + 1))
        e("s_memtime s[%d:%d]" % (s.ws, s.ws + 1))
    e("s_load_dwordx8 s[4:11], s[0:1], 0")
    e("s_getpc_b64 %s" % sr(s.pc, 2))
    lab("L_pc")
    e("s_lshr_b32 s%d, s2, 4" % s.foff)
    e("s_lshl_b32 s%d, s%d, 5" % (s.t1, s.foff))
    e("s_load_dwordx8 %s, %s, s%d offset:L_near-L_pc" % (sr(s.near, 8), sr(s.pc, 2), s.t1))
    e("v_mul_u32_u24 v%d, PFSTRIDE, v0" % v.t0)
    e("v_readfirstlane_b32 s%d, v0" % s.wave)
    e("global_load_dword v%d, v%d, %s" % (v.pf, v.t0, sr(s.pc, 2)))
    e("s_cmp_ge_u32 s%d, 16" % s.foff)
    e("s_cbranch_scc1 L_end")
    e("s_bitcmp0_b32 s%d, 8" % s.wave)
    e("s_cbranch_scc1 L_mainpro")
    e("v_bfe_u32 v%d, v0, 5, 2" % v.t0)
    e("v_and_b32 v%d, 3, v0" % v.t1)
    e("v_xor_b32 v%d, v%d, v%d" % (v.t1, v.t1, v.t0))
    e("v_and_or_b32 v%d, v0, 12, v%d" % (v.t0, v.t0))
    e("v_lshlrev_b32 v%d, 12, v%d" % (v.t0, v.t0))
    e("v_lshl_add_u32 v%d, v%d, 4, v%d" % (v.t0, v.t1, v.t0))
    e("v_and_b32 v%d, 16, v0" % v.t1)
    e("v_lshl_add_u32 v%d, v%d, 2, v%d" % (v.t0, v.t1, v.t0))
    e("v_bfe_u32 v%d, v0, 7, 1" % v.t1)
    e("v_lshl_add_u32 v%d, v%d, 16, v%d" % (v.kd0, v.t1, v.t0))
    e("v_add_u32 v%d, 0x80, v%d" % (v.kd1, v.kd0))
    e("s_and_b32 s%d, s2, 15" % s.t1)
    e("s_lshl_b32 s%d, s%d, 8" % (s.hoff, s.t1))
    e("s_lshl_b32 s%d, s%d, 6" % (s.dslot, s.wave))
    e("s_and_b32 s%d, s%d, 0x3000" % (s.dslot, s.dslot))
    e("s_mov_b32 s%d, 0x20000" % (s.sq + 3))
    e("s_mov_b32 s%d, s%d" % (s.kA + 3, s.sq + 3))
    e("s_mov_b32 s%d, 0" % s.soff)
    if OPT.get("thr", "0xdddd") != "0":
        e("s_lshr_b32 vcc_lo, %s, s%d" % (OPT.get("thr", "0xdddd"), s.t1))
        if OPT.get("thrr"):
            e("s_lshr_b32 s%d, %s, s%d" % (s.t0, OPT["thrr"], s.foff))
            e("s_and_b32 vcc_lo, vcc_lo, s%d" % s.t0)
        if OPT.get("thro"):
            e("s_lshr_b32 s%d, %s, s%d" % (s.t0, OPT["thro"], s.foff))
            e("s_or_b32 vcc_lo, vcc_lo, s%d" % s.t0)
        e("s_and_b32 vcc_lo, vcc_lo, 1")
        e("s_mov_b32 vcc_hi, 0")
    e("s_add_u32 s%d, s%d, %d" % (s.d0, s.dslot, QBASE))
    e("s_waitcnt lgkmcnt(0)")
    mark("karg")
    THR = OPT.get("thr", "0xdddd")
    _th = [0]

    def throttle():
        if THR == "0":
            return []
        _th[0] += 1
        return ["s_cbranch_vccz L_th%d" % _th[0], "s_waitcnt vmcnt(%s)" % OPT.get("thn", "8"), "L_th%d:" % _th[0]]

    def qtile(i):
        w = N + 5 + i // 2
        r = ["s_bitcmp1_b32 s%d, %d" % (w, 12 + 16 * (i % 2)),
             "s_cselect_b32 s%d, s%d, s%d" % (s.sq + 2, s.qeb, s.qea),
             "s_bfe_u32 s%d, s%d, 0x%x" % (s.t0, w, 0xc0000 + 16 * (i % 2)),
             "s_add_u32 m0, s%d, %d" % (s.d0, (i // 4) * 32768 + (i % 4) * 1024),
             "s_lshl_b32 s%d, s%d, 12" % (s.t0, s.t0),
             "buffer_load_dwordx4 v%d, %s, s%d offen %s lds" % (v.kd0, sr(s.sq, 4), s.t0, LDF_Q),
             "s_add_u32 m0, m0, 0x4000", "s_nop 0",
             "buffer_load_dwordx4 v%d, %s, s%d offen %s lds" % (v.kd1, sr(s.sq, 4), s.t0, LDF_Q)]
        return r
    e("s_add_u32 s%d, s%d, s%d" % (s.qea, N + 0, N + 1))
    e("s_add_u32 s%d, s%d, s%d" % (s.qeb, N + 2, N + 3))
    e("s_add_u32 s%d, s%d, s%d" % (s.sq, s.q, s.hoff))
    e("s_addc_u32 s%d, s%d, 0" % (s.sq + 1, s.q + 1))
    emit(qtile(0))
    e("s_add_u32 s%d, s%d, s%d" % (N + 0, N + 0, s.hoff))
    e("s_add_u32 s%d, s%d, s%d" % (s.kA, s.k, N + 0))
    e("s_addc_u32 s%d, s%d, 0" % (s.kA + 1, s.k + 1))
    e("s_sub_u32 s%d, s%d, 1024" % (s.kA, s.kA))
    e("s_subb_u32 s%d, s%d, 0" % (s.kA + 1, s.kA + 1))
    e("s_add_u32 s%d, s%d, 1024" % (s.kA + 2, N + 1))
    emit(chunk(0, True, flag=False))
    for i in range(1, QL):
        emit((throttle() if i > 1 else []) + qtile(i))
    QLATE = sum((qtile(i) for i in range(QL, 4)), [])
    mark("iss")
    for b in (s.kB, s.vA, s.vB):
        e("s_mov_b32 s%d, s%d" % (b + 3, s.sq + 3))
    e("s_add_u32 s%d, s%d, s%d" % (N + 2, N + 2, s.hoff))
    e("s_add_u32 s%d, s%d, s%d" % (s.kB, s.k, N + 2))
    e("s_addc_u32 s%d, s%d, 0" % (s.kB + 1, s.k + 1))
    e("s_mov_b32 s%d, s%d" % (s.kB + 2, N + 3))
    e("s_and_b32 s%d, s%d, 0xfffff000" % (s.stepb, N + 4))
    e("s_lshr_b32 s%d, s%d, 4" % (s.rdw, s.dslot))
    e("s_add_u32 s%d, s%d, %d" % (s.rdw, s.rdw, RDYB))
    e("v_mov_b32 v%d, L_cnt-L_pc" % v.fo)
    for (srd, off, nr, d) in ((s.vA, N + 0, N + 1, 3072), (s.vB, N + 2, N + 3, 2048)):
        e("s_add_u32 s%d, s%d, %d" % (s.t0, s.stepb, d))
        e("s_add_u32 s%d, s%d, s%d" % (srd, s.vv, off))
        e("s_addc_u32 s%d, s%d, 0" % (srd + 1, s.vv + 1))
        e("s_sub_u32 s%d, s%d, s%d" % (srd, srd, s.t0))
        e("s_subb_u32 s%d, s%d, 0" % (srd + 1, srd + 1))
        e("s_add_u32 s%d, s%d, s%d" % (srd + 2, nr, s.t0))
    e("v_bfe_u32 v%d, v0, 2, 2" % v.t0)
    e("v_lshlrev_b32 v%d, 12, v%d" % (v.t0, v.t0))
    e("v_and_b32 v%d, 3, v0" % v.t1)
    e("v_lshl_add_u32 v%d, v%d, 4, v%d" % (v.t0, v.t1, v.t0))
    e("v_and_b32 v%d, 48, v0" % v.t1)
    e("v_lshl_add_u32 v%d, v%d, 2, v%d" % (v.t0, v.t1, v.t0))
    e("v_bfe_u32 v%d, v0, 6, 2" % v.t1)
    e("v_lshl_add_u32 v%d, v%d, 14, v%d" % (v.vd0, v.t1, v.t0))
    e("v_add_u32 v%d, 0x10000, v%d" % (v.vd1, v.vd0))
    e("s_setprio %s" % OPT.get("hprio", "3"))
    e("s_branch L_common")
    lab("L_mainpro")
    for b in (s.sq, s.kA, s.kB, s.vA, s.vB):
        e("s_mov_b64 %s, s[0:1]" % sr(b, 2))
        e("s_mov_b32 s%d, 0" % (b + 2))
        e("s_mov_b32 s%d, 0x20000" % (b + 3))
    for r in (v.kd0, v.kd1, v.vd0, v.vd1, v.fo):
        e("v_mov_b32 v%d, 0" % r)
    e("s_and_b32 s%d, s2, 15" % s.t1)
    e("s_lshl_b32 s%d, s%d, 8" % (s.hoff, s.t1))
    lab("L_common")
    e("s_lshr_b32 s%d, s%d, 6" % (s.wave, s.wave))
    e("v_and_b32 v%d, 63, v0" % L)
    e("s_lshl3_add_u32 s%d, s%d, s%d" % (s.foff, s.foff, s.wave))
    e("s_lshl_b32 s%d, s%d, 5" % (s.foff, s.foff))
    e("v_and_b32 v%d, 7, v0" % v.t0)
    e("v_mul_u32_u24 v%d, 0x104, v%d" % (v.t0, v.t0))
    e("v_add_u32 v%d, %d, v%d" % (v.pra, PRGB, v.t0))
    e("s_lshl_b32 s%d, s%d, 8" % (s.t0, s.wave))
    e("s_add_u32 s%d, s%d, %d" % (s.t0, s.t0, PRGB - 4096))
    e("v_lshl_add_u32 v%d, v%d, 2, s%d" % (v.prga, L, s.t0))
    e("v_mov_b32 v%d, 0" % v.l)
    e("ds_write_b32 v%d, v%d" % (v.prga, v.l))
    e("ds_write_b32 v%d, v%d offset:4096" % (v.prga, v.l))
    e("v_add_u32 v%d, 0x1000, v%d" % (v.prga, v.prga))
    e("s_waitcnt lgkmcnt(0)")
    if STAMPS:
        e("v_mov_b32 v%d, 0" % v.st)
        e("s_mov_b32 s%d, 8" % s.sti)
        e("v_writelane_b32 v%d, s%d, 0" % (v.st, s.stp))
        e("v_writelane_b32 v%d, s%d, 1" % (v.st, s.ws))
        stamp(3)
        e("s_load_dwordx2 %s, s[0:1], 48" % sr(s.ws, 2))
    e("s_load_dwordx8 %s, %s, s%d offset:L_far-L_pc" % (sr(Fa, 8), sr(s.pc, 2), s.foff))
    e("s_load_dwordx2 s[12:13], s[0:1], 32")
    e("s_barrier")
    e("s_cmp_lt_u32 s%d, 4" % s.wave)
    e("s_cbranch_scc1 L_common2")
    QH = qtile(4) + qtile(5)
    emit(FLAG + throttle() + (QH if QE == 1 else []) + chunk(1, True) + STEP_ADV + throttle() + (QLATE if QLC == 2 else [])
         + (QH if QE == 2 else []) + chunk(0) + throttle() + (QLATE if QLC == 3 else []))
    lab("L_common2")
    e("v_bfe_u32 v%d, v%d, 4, 1" % (v.t0, L))
    e("v_lshlrev_b32 v%d, 13, v%d" % (v.t0, v.t0))
    e("v_bfe_u32 v%d, v%d, 1, 1" % (v.t1, L))
    e("v_lshl_add_u32 v%d, v%d, 12, v%d" % (v.t0, v.t1, v.t0))
    e("v_and_b32 v%d, 1, v%d" % (v.t1, L))
    e("v_lshl_add_u32 v%d, v%d, 9, v%d" % (v.t0, v.t1, v.t0))
    e("v_bfe_u32 v%d, v%d, 2, 2" % (v.t1, L))
    e("v_lshl_add_u32 v%d, v%d, 6, v%d" % (v.t0, v.t1, v.t0))
    e("v_lshrrev_b32 v%d, 5, v%d" % (v.t1, L))
    e("v_and_b32 v%d, 3, v%d" % (v.t2, L))
    e("v_xor_b32 v%d, v%d, v%d" % (v.t1, v.t1, v.t2))
    e("v_lshl_add_u32 v%d, v%d, 4, v%d" % (v.ka0r, v.t1, v.t0))
    e("v_xor_b32 v%d, 32, v%d" % (v.ka1r, v.ka0r))
    e("v_lshrrev_b32 v%d, 5, v%d" % (v.t0, L))
    e("v_lshlrev_b32 v%d, 12, v%d" % (v.t0, v.t0))
    e("v_bfe_u32 v%d, v%d, 2, 2" % (v.t1, L))
    e("v_lshl_add_u32 v%d, v%d, 6, v%d" % (v.t0, v.t1, v.t0))
    e("v_bfe_u32 v%d, v%d, 4, 1" % (v.t1, L))
    e("v_lshl_add_u32 v%d, v%d, 5, v%d" % (v.t0, v.t1, v.t0))
    e("v_lshl_add_u32 v%d, v%d, 3, v%d" % (v.t0, v.t2, v.t0))
    e("v_add_u32 v%d, 0x800, v%d" % (v.var, v.t0))
    e("s_mov_b32 s%d, 0x%x" % (s.thr, f2u(THRESH)))
    e("v_mul_u32_u24 v%d, 0x104, v%d" % (v.t1, v.t2))
    e("v_add_u32 v%d, %d, v%d" % (v.rdya, RDYB, v.t1))
    e("s_mov_b32 s%d, 0x8000" % s.guard)
    e("v_mov_b32 v%d, 0" % v.rdy)
    e("s_waitcnt lgkmcnt(0)")
    e("s_add_u32 s%d, s%d, s%d" % (s.t0, Fa + 0, s.hoff))
    e("s_add_u32 s%d, s%d, s%d" % (s.so, s.out, s.t0))
    e("s_addc_u32 s%d, s%d, 0" % (s.so + 1, s.out + 1))
    e("s_mov_b32 s%d, s%d" % (s.so + 2, Fa + 1))
    e("s_mov_b32 s%d, 0x20000" % (s.so + 3))
    e("s_and_b32 s%d, s%d, 0xff" % (s.n, N + 4))
    e("s_bfe_u32 s%d, s%d, 0x40008" % (s.t3, Fa + 2))
    e("s_cbranch_scc1 L_work")
    e("v_mov_b32 v%d, %d" % (v.prg, BIG))
    e(PRGW)
    e("s_cmp_lt_u32 s%d, 4" % s.wave)
    e("s_cbranch_scc1 L_fin")
    e("s_branch L_presig")
    lab("L_work")
    for r in range(0, 64, 2):
        e("v_pk_mov_b32 %s, 0, 0" % vr(v.O + r, 2))
    e("s_and_b32 s%d, s%d, 0xff" % (s.U, Fa + 2))
    e("s_bfe_u32 s%d, s%d, 0x4000c" % (s.inc, Fa + 2))
    e("s_and_b32 s%d, s%d, 0xfffff" % (s.reg, Fa + 4))
    e("s_bfe_u32 s%d, s%d, 0x80010" % (s.t0, Fa + 2))
    e("s_sub_u32 s%d, s%d, 1" % (s.t0, s.t0))
    e("v_lshrrev_b32 v%d, 5, v%d" % (v.t0, L))
    e("v_lshlrev_b32 v%d, 2, v%d" % (v.t0, v.t0))
    e("v_sub_u32 v%d, s%d, v%d" % (v.t0, s.t0, v.t0))
    e("v_mov_b32 v%d, 0xff800000" % v.t1)
    for r in range(16):
        cst = 8 * (r // 4) + r % 4
        e("v_subrev_u32 v%d, %d, v%d" % (v.B + r, cst, v.t0))
        e("v_ashrrev_i32 v%d, 31, v%d" % (v.B + r, v.B + r))
        e("v_and_b32 v%d, v%d, v%d" % (v.B + r, v.t1, v.B + r))
    e("s_bfe_u32 s%d, s%d, 0x20014" % (s.t0, Fa + 4))
    e("s_lshl_b32 s%d, s%d, 10" % (s.t0, s.t0))
    e("s_bfe_u32 s%d, s%d, 0x10016" % (s.t1, Fa + 4))
    e("s_lshl_b32 s%d, s%d, 15" % (s.t1, s.t1))
    e("s_add_u32 s%d, s%d, s%d" % (s.t0, s.t0, s.t1))
    e("s_add_u32 s%d, s%d, %d" % (s.koff, s.t0, QBASE))
    e("v_add_u32 v%d, s%d, v%d" % (v.t2, s.koff, v.ka0r))
    e("v_add_u32 v%d, s%d, v%d" % (v.t3, s.koff, v.ka1r))
    e("s_cmp_lg_u32 s%d, 1" % s.t3)
    e("s_cselect_b32 s%d, 1, 0" % s.m1)
    e("s_bfe_u32 s%d, s%d, 0x2001a" % (s.t0, Fa + 4))
    e("s_lshl_b32 s%d, s%d, 15" % (s.astep, s.t0))
    e("s_bfe_u32 s%d, s%d, 0x10019" % (s.t2, Fa + 4))
    e("s_bfe_u32 s%d, s%d, 0x10018" % (s.t0, Fa + 4))
    e("s_lshl_b32 s%d, s%d, 10" % (s.t0, s.t0))
    e("s_mul_i32 s%d, s%d, s%d" % (s.t1, s.t0, s.m1))
    e("s_sub_u32 s%d, s%d, s%d" % (s.t0, s.t0, s.t1))
    e("s_lshl_b32 s%d, s%d, 15" % (s.voff, s.t2))
    e("s_add_u32 s%d, s%d, s%d" % (s.koff, s.voff, s.t0))
    e("s_add_u32 s%d, s%d, 0x8000" % (s.voff, s.voff))
    e("v_add_u32 v%d, s%d, v%d" % (v.ka0r, s.t1, v.ka0r))
    e("v_add_u32 v%d, s%d, v%d" % (v.ka1r, s.t1, v.ka1r))
    e("s_bfe_u32 s%d, s%d, 0x2001c" % (s.t0, Fa + 2))
    for j in (3, 2, 1, 0):
        e("s_add_u32 s%d, s%d, %d" % (s.col, s.t0, j))
        e("s_and_b32 s%d, s%d, 3" % (s.col, s.col))
        e("s_lshl_b32 s%d, s%d, 8" % (s.col, s.col))
        e("s_add_u32 s%d, s%d, s%d" % (s.col, s.col, s.t1))
        e("v_add_u32 v%d, s%d, v%d" % (v.var + j, s.col, v.var))
    emit(vaddr() + kaddr())
    e("s_and_b32 s%d, s%d, 0xff" % (s.t0, Fa + 3))
    e("v_mov_b32 v%d, s%d" % (v.prg, s.t0))
    e("s_bfe_u32 s%d, s%d, 0x80010" % (s.need, Fa + 3))
    e("s_cmp_lt_u32 s%d, 4" % s.wave)
    e("s_cbranch_scc1 L_sig0")
    e(PRGW)
    lab("L_presig")
    emit((QH if QE == 0 else []) + chunk(1) + STEP_ADV)
    e("s_mov_b32 s%d, 4" % s.iss)
    stamp()
    e("s_cmp_eq_u32 s%d, 0" % s.t3)
    e("s_cbranch_scc1 L_hdone")
    emit(sync_call("L_head"))
    lab("L_sig0")
    e("s_bfe_u32 s%d, s%d, 0x80008" % (s.t0, Fa + 3))
    e("s_sub_u32 s%d, s%d, s%d" % (s.t0, s.t0, s.m1))
    e("s_lshl_b32 s%d, s%d, 2" % (s.t0, s.t0))
    e("s_add_u32 s%d, s%d, L_cnt-L_pc-4" % (s.t0, s.t0))
    e("v_mov_b32 v%d, s%d" % (v.fo, s.t0))
    e("s_lshl_b32 s%d, s%d, 8" % (s.t0, s.wave))
    e("s_add_u32 m0, s%d, %d" % (s.t0, PRGB))
    stamp()
    emit(poll_rdy())
    mark("sig0")
    stamp()
    lab("L_head")
    qr = [kread(t, v.Q).replace("v%d " % v.ka0, "v%d " % v.t2).replace("v%d " % v.ka1, "v%d " % v.t3) for t in range(8)]
    kr = [kread(t, v.KF) for t in range(8)]
    for t in range(7):
        emit([qr[t], kr[t]])
    e("s_add_u32 s%d, s%d, s%d" % (s.t0, s.koff, s.astep))
    e("s_mul_i32 s%d, s%d, s%d" % (s.koff, s.t0, s.m1))
    e("s_waitcnt lgkmcnt(12)")
    e(QK0)
    emit([qr[7], kr[7], PRGW])
    for t in range(1, 8):
        e("s_waitcnt lgkmcnt(%d)" % (15 - 2 * t + (1 if t >= 2 else 0)))
        e(qk(t))
        if t == 1:
            e(RDYR)
            emit(kaddr())
            emit(adv(s.koff))
        if t == 2:
            e("v_and_b32 v%d, 31, v%d" % (v.t2, L))
            e("v_lshlrev_b32 v%d, 12, v%d" % (v.t2, v.t2))
            e("v_sub_u32 v%d, s%d, v%d" % (v.t2, Fa + 1, v.t2))
            e("v_ashrrev_i32 v%d, 31, v%d" % (v.t2, v.t2))
            e("v_and_b32 v%d, 0xff800000, v%d" % (v.t2, v.t2))
        if t == 3:
            e("s_bfe_u32 s%d, s%d, 0x80008" % (s.t0, Fa + 3))
            e("v_mov_b32 v%d, s%d" % (v.prg, s.t0))
            e("s_mov_b32 s%d, s%d" % (s.need, Fa + 6))
    e("s_cmp_lt_u32 s%d, 4" % s.wave)
    e("s_waitcnt lgkmcnt(0)")
    e("s_cbranch_scc0 L_head2")
    emit(poll_rdy())
    emit(kr)
    emit(kaddr())
    lab("L_head2")
    e("s_lshr_b32 s%d, s%d, 24" % (s.need, Fa + 3))
    e("s_nop 7")
    e("v_max3_f32 v%d, v%d, v%d, v%d" % (v.t0, v.S, v.S + 1, v.S + 2))
    e("v_max3_f32 v%d, v%d, v%d, v%d" % (v.t1, v.S + 3, v.S + 4, v.S + 5))
    for r in range(6, 14, 4):
        e("v_max3_f32 v%d, v%d, v%d, v%d" % (v.t0, v.t0, v.S + r, v.S + r + 1))
        e("v_max3_f32 v%d, v%d, v%d, v%d" % (v.t1, v.t1, v.S + r + 2, v.S + r + 3))
    e("v_max3_f32 v%d, v%d, v%d, v%d" % (v.t0, v.t0, v.S + 14, v.S + 15))
    e("v_max_f32 v%d, v%d, v%d" % (v.t0, v.t0, v.t1))
    e("v_mov_b32 v%d, v%d" % (v.t1, v.t0))
    e(RDYR)
    e("s_nop 0")
    e("v_permlane32_swap_b32 v%d, v%d" % (v.t0, v.t1))
    e("s_nop 1")
    e("v_max_f32 v%d, v%d, v%d" % (v.t0, v.t0, v.t1))
    e("v_fmamk_f32 v%d, v%d, 0x%x, v%d" % (v.nmc, v.t0, f2u(-C_SCALE), v.t2))
    for r in range(16):
        e(F(r))
    emit([ex(i) for i in range(8)] + [add(i) for i in range(1, 7)] + [cvt(0), cvt(1), cvt(2)])
    e("s_cmp_lt_u32 s%d, 4" % s.wave)
    e("s_waitcnt lgkmcnt(0)")
    e("s_cbranch_scc0 L_hlp_in")
    stamp()
    emit(poll_rdy())
    mark("loop")
    stamp()
    e("s_cmp_eq_u32 s%d, 1" % s.m1)
    e("s_cbranch_scc1 L_odd_m")
    out.append(".p2align 4")
    body("even")
    e("s_cbranch_vccnz L_hnd_even")
    body("odd")
    e("s_cbranch_vccz L_even_m")
    emit(poll_rdy())
    e("s_cmp_le_u32 s%d, 1" % s.U)
    e("s_cbranch_scc1 L_ho1")
    e("s_cmp_eq_u32 s%d, 0" % s.m1)
    e("s_cbranch_scc0 L_odd_m")
    e("s_branch L_even_m")
    lab("L_ho1")
    e("s_cmp_eq_u32 s%d, 0" % s.U)
    e("s_cbranch_scc1 L_tail0")
    e("s_cmp_eq_u32 s%d, 0" % s.m1)
    e(QK0M)
    e("s_cbranch_scc1 L_even_a")
    e("s_branch L_odd_a")
    lab("L_hnd_even")
    emit(poll_rdy())
    e("s_cmp_gt_u32 s%d, 1" % s.U)
    e("s_cbranch_scc1 L_odd_m")
    e("s_cmp_eq_u32 s%d, 0" % s.U)
    e("s_cbranch_scc1 L_tailm")
    e(QK0M)
    e("s_branch L_odd_a")
    lab("L_hlp_in")
    e(PRGW)
    stamp()
    emit(sync_call())
    stamp()
    for t in range(8):
        e(kread(t, v.KF))
    emit(kaddr())
    e("s_waitcnt lgkmcnt(4)")
    e("s_branch L_hnd_hlp")
    body("hlp")
    lab("L_hnd_hlp")
    e("s_cmp_gt_u32 s%d, 1" % s.U)
    e("s_cbranch_scc1 L_hlp_m")
    e("s_cmp_eq_u32 s%d, 0" % s.U)
    e("s_cbranch_scc1 L_tail")
    e(QK0M)
    e("s_branch L_hlp_a")
    lab("L_tail0")
    e("s_cmp_eq_u32 s%d, 1" % s.m1)
    e("s_cbranch_scc1 L_tailm")
    e("v_add_u32 v%d, 0x400, v%d" % (v.va, v.va))
    lab("L_tailm")
    e("s_bitcmp1_b32 s%d, 31" % (Fa + 4))
    e("s_cbranch_scc1 L_tails")
    for j in range(1, 4):
        e("v_add_u32 v%d, %d, v%d" % (v.va + j, 256 * j, v.va))
    tw, tr0, oo, rl = v.ka1, v.va, v.ka1r, v.X + 2

    def lsum():
        return ["v_mov_b32 v%d, v%d" % (v.t0, v.l), "s_nop 1",
                "v_permlane32_swap_b32 v%d, v%d" % (v.l, v.t0), "s_nop 1",
                "v_add_f32 v%d, v%d, v%d" % (v.l, v.l, v.t0)]

    def st_addr():
        r = ["v_and_b32 v%d, 31, v%d" % (v.t0, L),
             "v_lshrrev_b32 v%d, 5, v%d" % (v.t1, L),
             "v_lshlrev_b32 v%d, 3, v%d" % (v.t1, v.t1),
             "v_and_b32 v%d, 7, v%d" % (v.t2, L),
             "v_lshl_add_u32 v%d, v%d, 4, v%d" % (v.t1, v.t2, v.t1),
             "v_lshl_add_u32 v%d, v%d, 7, v%d" % (v.t0, v.t0, v.t1),
             "v_add_u32 v%d, s%d, v%d" % (tw, s.reg, v.t0)]
        r += ["v_xor_b32 v%d, %d, v%d" % (v.E + c, c * 16, tw) for c in range(8)]
        r += ["v_lshrrev_b32 v%d, 3, v%d" % (v.t0, L),
              "v_xor_b32 v%d, v%d, v%d" % (v.t1, v.t2, v.t0),
              "v_lshlrev_b32 v%d, 4, v%d" % (v.t1, v.t1),
              "v_lshl_add_u32 v%d, v%d, 7, v%d" % (v.t1, v.t0, v.t1),
              "v_add_u32 v%d, s%d, v%d" % (tr0, s.reg, v.t1),
              "v_lshlrev_b32 v%d, 12, v%d" % (v.t0, v.t0),
              "v_lshl_add_u32 v%d, v%d, 4, v%d" % (oo, v.t2, v.t0)]
        return r

    def pack_q(bb, norm=True, pk=True):
        r = []
        for g in range(4):
            c = 4 * bb + g
            o = v.O + 4 * c
            d = v.S + 2 * c
            if norm and not pk:
                r += ["v_mul_f32 v%d, v%d, v%d" % (o + i, o + i, rl) for i in range(4)]
            elif norm:
                r += ["v_pk_mul_f32 %s, %s, %s op_sel_hi:[1,0]" % (vr(o + i, 2), vr(o + i, 2), vr(rl, 2)) for i in (0, 2)]
            r += ["v_cvt_pk_bf16_f32 v%d, v%d, v%d" % (d, o, o + 1),
                  "v_cvt_pk_bf16_f32 v%d, v%d, v%d" % (d + 1, o + 2, o + 3),
                  "ds_write_b64 v%d, %s" % (v.E + c % 8, vr(d, 2))]
        return r

    def rd_half(hh):
        return ["ds_read_b128 %s, v%d offset:%d" % (vr(v.KF + 16 * hh + 4 * k, 4), tr0, k * 1024) for k in range(4)]

    def st_one(hh, k):
        return ["buffer_store_dwordx4 %s, v%d, %s, s%d offen offset:%d %s" % (
                    vr(v.KF + 16 * hh + 4 * k, 4), oo, sr(s.so, 4), s.col + k if k < 3 else s.t1, 128 * hh,
                    STF if hh == 0 else OPT.get("st2", OPT.get("st", "sc1")).replace("+", " ").replace("none", ""))]

    sa = st_addr()
    cols = ["s_mov_b32 s%d, 0" % s.col, "s_mov_b32 s%d, 0x8000" % (s.col + 1),
            "s_mov_b32 s%d, 0x10000" % (s.col + 2), "s_mov_b32 s%d, 0x18000" % s.t1]
    RCP = "v_rcp_f32 v%d, v%d" % (rl, v.l)
    lab("L_tail")
    mark("tail")
    e("v_mov_b32 v%d, %d" % (v.prg, BIG))
    k = newret()
    vord = [0, 1, 8, 9, 2, 3, 10, 11, 4, 5, 12, 13, 6, 7, 14, 15]
    for i in vord[:12]:
        e(vread(i))
    emit([ex(8), add(7), cvt(3)] + [ex(i) for i in range(9, 16)])
    e("s_cmp_lt_u32 s%d, 4" % s.wave)
    e("s_cbranch_scc0 L_t1")
    e("s_waitcnt vmcnt(0)")
    lab("L_t1")
    for i in vord[12:]:
        e(vread(i))
    e(PRGW)
    emit([add(i) for i in range(8, 16)] + [CMP, cvt(4), "s_mov_b32 s%d, %d" % (s.ret, k), "s_cbranch_vccnz L_resc",
                                           "L_ret%d:" % k, cvt(5), cvt(6), cvt(7), LADD])
    e("s_cmp_lt_u32 s%d, 4" % s.wave)
    e("s_waitcnt lgkmcnt(0)")
    e("s_cbranch_scc0 L_htail")
    lab("L_tail2")
    p0 = pack_q(0, pk=False)
    emit([pv(0)] + lsum() + [RCP])
    emit([pv(4), cols[0]] + sa[0:7])
    emit([pv(1), cols[1]] + sa[7:15])
    emit([pv(5), cols[2]] + sa[15:])
    emit([pv(2), cols[3]] + p0[0:7])
    emit([pv(6)] + p0[7:14])
    emit([pv(3)] + p0[14:21])
    emit([pv(7)] + p0[21:])
    lab("L_tail3")
    stamp(5)
    if OPT.get("stadj"):
        emit(pack_q(1) + rd_half(0) + pack_q(2) + pack_q(3) + rd_half(1))
        for k in range(4):
            emit(["s_waitcnt lgkmcnt(%d)" % (3 - k)] + st_one(0, k) + st_one(1, k))
    else:
        emit(pack_q(1) + rd_half(0))
        p2 = pack_q(2)
        emit(p2[:10] + ["s_waitcnt lgkmcnt(5)"] + st_one(0, 0) + p2[10:] + ["s_waitcnt lgkmcnt(4)"] + st_one(0, 1))
        p3 = pack_q(3)
        emit(p3[:10] + st_one(0, 2) + p3[10:] + st_one(0, 3) + rd_half(1))
        stamp(4)
        for k in range(4):
            emit(["s_waitcnt lgkmcnt(%d)" % (3 - k)] + st_one(1, k))
    k = newret()
    ool.append(["L_tails:"] + [vread(i, 0, True) for i in range(8)]
               + ["v_mov_b32 v%d, %d" % (v.prg, BIG), add(7), "s_waitcnt vmcnt(0)", PRGW, CMP, cvt(3), "s_mov_b32 s%d, %d" % (s.ret, k), "s_cbranch_vccnz L_resc",
                  "L_ret%d:" % k, LADD] + lsum() + [RCP, "s_waitcnt lgkmcnt(1)",
                  pv(0), cols[0]] + sa[0:7] + [pv(1), cols[1]] + sa[7:15] + [pv(2), cols[2]] + sa[15:]
               + [pv(3), cols[3]] + pack_q(0) + ["s_branch L_tail3"])
    lab("L_fin")
    if SPIN:
        mark("st")
        e("s_waitcnt vmcnt(0)")
        mark("end")
        if SPIN == "glob":
            e("s_load_dwordx2 s[98:99], s[0:1], 40")
            e("s_not_b32 s%d, s%d" % (s.t0, s.ws))
            e("v_mov_b32 v%d, s%d" % (v.t1, s.t0))
            e("v_mov_b32 v%d, 0" % v.t0)
            e("s_waitcnt lgkmcnt(0)")
            e("s_cmp_lg_u32 s%d, 0" % s.wave)
            e("s_cbranch_scc1 L_g1")
            e("s_mov_b64 exec, 1")
            e("global_atomic_umax v%d, v%d, s[98:99]" % (v.t0, v.t1))
            e("s_mov_b64 exec, -1")
            lab("L_g1")
        e("s_sub_u32 s%d, s%d, s%d" % (s.t0, s.stp, s.ws))
        e("s_mul_i32 s%d, s%d, %s" % (s.t0, s.t0, OPT.get("amp", "2")))
        e("s_add_u32 s%d, s%d, 3000" % (s.t0, s.t0))
        lab("L_spin")
        e("s_sleep 2")
        e("s_memrealtime s[%d:%d]" % (s.stp, s.stp + 1))
        e("s_waitcnt lgkmcnt(0)")
        e("s_sub_u32 s%d, s%d, s%d" % (s.t1, s.stp, s.ws))
        e("s_cmp_lt_u32 s%d, s%d" % (s.t1, s.t0))
        e("s_cbranch_scc1 L_spin")
        if SPIN == "glob":
            e("global_load_dword v%d, v%d, s[98:99] sc0 sc1" % (v.t1, v.t0))
            e("s_waitcnt vmcnt(0)")
            e("v_readfirstlane_b32 s%d, v%d" % (s.t2, v.t1))
            e("s_not_b32 s%d, s%d" % (s.t2, s.t2))
            lab("L_spin2")
            e("s_sleep 2")
            e("s_memrealtime s[%d:%d]" % (s.stp, s.stp + 1))
            e("s_waitcnt lgkmcnt(0)")
            e("s_sub_u32 s%d, s%d, s%d" % (s.t1, s.stp, s.t2))
            e("s_cmp_lt_u32 s%d, 4000" % s.t1)
            e("s_cbranch_scc1 L_spin2")
    if STAMPS:
        stamp(6)
        e("s_waitcnt vmcnt(0)")
        stamp(7)
        stamp(61, True)
        e("s_getreg_b32 s%d, hwreg(HW_REG_XCC_ID)" % s.stp)
        e("v_writelane_b32 v%d, s%d, 62" % (v.st, s.stp))
        e("s_lshl_b32 s%d, s2, 3" % s.t0)
        e("s_add_u32 s%d, s%d, s%d" % (s.t0, s.t0, s.wave))
        e("s_lshl_b32 s%d, s%d, 8" % (s.t0, s.t0))
        e("v_lshlrev_b32 v%d, 2, v%d" % (v.t0, v.lane))
        e("v_add_u32 v%d, s%d, v%d" % (v.t0, s.t0, v.t0))
        if OPT.get("dbg"):
            e("v_readlane_b32 s%d, v%d, 0" % (s.t0, v.st))
            e("v_readlane_b32 s%d, v%d, 61" % (s.t1, v.st))
            e("v_readlane_b32 s%d, v%d, 1" % (s.t2, v.st))
            e("s_not_b32 s%d, s%d" % (s.t3, s.t0))
            e("v_cmp_ne_u32 vcc, 0, v%d" % v.st)
            e("v_subrev_u32 v%d, s%d, v%d" % (v.t1, s.t2, v.st))
            e("s_nop 1")
            e("v_cndmask_b32 v%d, 0, v%d, vcc" % (v.t1, v.t1))
            e("v_writelane_b32 v%d, s%d, 0" % (v.t1, s.t3))
            e("v_writelane_b32 v%d, s%d, 1" % (v.t1, s.t1))
            e("v_writelane_b32 v%d, s%d, 15" % (v.t1, s.t0))
            e("v_lshlrev_b32 v%d, 2, v%d" % (v.t0, v.lane))
            e("s_cmp_lt_u32 s%d, 4" % s.wave)
            e("s_cselect_b32 s%d, 0xffff, 0x80ff" % s.t0 if False else "s_mov_b32 s%d, 0x80ff" % s.t0)
            e("s_cselect_b32 exec_lo, 0xffff, s%d" % s.t0)
            e("s_mov_b32 exec_hi, 0")
            e("global_atomic_umax v%d, v%d, %s" % (v.t0, v.t1, sr(s.ws, 2)))
        else:
            e("global_store_dword v%d, v%d, %s" % (v.t0, v.st, sr(s.ws, 2)))
    lab("L_end")
    e("s_endpgm")
    for blk in ool:
        emit(blk)
    lab("L_sync")
    e("s_setprio %s" % OPT.get("sprio", "0"))
    e("s_min_u32 s%d, s%d, s%d" % (s.t2, s.need, s.n))
    e("s_cmp_eq_u32 s%d, 0x20000" % s.stepb)
    e("s_cselect_b32 s%d, %s, %s" % (s.t3, OPT.get("lookd", "6"), OPT.get("look", "2")))
    e("s_add_u32 s%d, s%d, s%d" % (s.t3, s.t2, s.t3))
    e("s_min_u32 s%d, s%d, s%d" % (s.t3, s.t3, s.n))
    lab("L_svc")
    e("ds_read_b32 v%d, v%d" % (v.t1, v.pra))
    e(RDYR)
    e("s_sub_i32 s%d, s%d, 5" % (s.t1, s.iss))
    e("s_cmp_gt_u32 s%d, s%d" % (s.iss, s.t3))
    e("s_waitcnt lgkmcnt(0)")
    e("s_cbranch_scc0 L_svc1")
    e("v_cmp_ge_u32 vcc, s%d, v%d" % (s.t2, v.rdy))
    e("s_cbranch_vccz L_svcx")
    e("s_cmp_gt_u32 s%d, s%d" % (s.iss, s.n))
    e("s_cbranch_scc1 L_svcs")
    lab("L_svc1")
    e("v_cmp_gt_i32 vcc, s%d, v%d" % (s.t1, v.t1))
    e("s_bitcmp1_b32 s%d, 0" % s.iss)
    e("s_cbranch_scc1 L_svcB")
    e("s_cmp_lt_u32 s%d, 8" % s.iss)
    e("s_cselect_b32 s%d, -1, s%d" % (s.t1, N + 1))
    e("s_and_b32 s%d, s%d, vcc_lo" % (s.t1, s.t1))
    e("s_and_b32 s%d, s%d, 0xff" % (s.t1, s.t1))
    e("s_cbranch_scc1 L_svc2")
    e("s_add_u32 s%d, s%d, 1" % (s.iss, s.iss))
    e("s_waitcnt vmcnt(%s)" % OPT.get("cap", "10"))
    emit(chunk(0))
    e("s_branch L_svc")
    lab("L_svcB")
    e("s_and_b32 s%d, s%d, 0xff" % (s.t1, N + 3))
    e("s_cmp_gt_u32 s%d, s%d" % (s.iss, s.t1))
    e("s_cbranch_scc1 L_svcF")
    e("s_cbranch_vccnz L_svc2")
    e("s_waitcnt vmcnt(%s)" % OPT.get("cap", "10"))
    emit(chunk(1, flag=False))
    lab("L_svcF")
    e("s_add_u32 s%d, s%d, 1" % (s.iss, s.iss))
    emit(FLAG + STEP_ADV)
    e("s_branch L_svc")
    lab("L_svc2")
    e("v_cmp_ge_u32 vcc, s%d, v%d" % (s.t2, v.rdy))
    e("s_cbranch_vccz L_svcx")
    lab("L_svcs")
    emit(spin(OPT.get("slp", "2")))
    e("s_branch L_svc")
    lab("L_svcx")
    e("s_setprio %s" % OPT.get("hprio", "3"))
    SRET_AT = len(out)
    lab("L_htail")
    e("s_mov_b32 s%d, s%d" % (s.need, s.n))
    e("s_bitcmp0_b32 s%d, 24" % (Fa + 2))
    e("s_cbranch_scc1 L_htail2")
    emit(sync_call("L_tail2"))
    lab("L_htail2")
    for i in range(8):
        e(pv(i))
    lab("L_hdone")
    e("s_mov_b32 s%d, s%d" % (s.need, s.n))
    emit(sync_call())
    e("s_sub_u32 s%d, s%d, 1" % (s.t2, s.n))
    e("s_bfe_u32 s%d, s%d, 0x40018" % (s.n, Fa + 2))
    e("s_cbranch_scc0 L_fin")
    e("s_setprio %s" % OPT.get("eprio", "0"))
    e("s_branch L_pe1")
    lab("L_pe0")
    emit(spin(OPT.get("slp", "2")))
    lab("L_pe1")
    e("ds_read_b32 v%d, v%d" % (v.t1, v.pra))
    e("s_waitcnt lgkmcnt(0)")
    e("v_cmp_gt_u32 vcc, s%d, v%d" % (s.t2, v.t1))
    e("s_cbranch_vccnz L_pe0")
    stamp(5)
    l16, l8, xa, cnt = v.ka0, v.ka0r, v.var, v.var + 1
    emit(lsum())
    e("v_lshlrev_b32 v%d, 4, v%d" % (l16, L))
    e("v_lshlrev_b32 v%d, 3, v%d" % (l8, L))
    e("s_lshl_b32 s%d, s%d, 9" % (s.t0, s.wave))
    e("s_add_u32 s%d, s%d, %d" % (s.t0, s.t0, MLBASE - 2048))
    e("v_add_u32 v%d, s%d, v%d" % (xa, s.t0, l8))
    e("ds_write_b64 v%d, %s" % (xa, vr(v.nmc, 2)))
    e("s_cmp_eq_u32 s%d, 2" % s.n)
    e("s_cbranch_scc1 L_sd2")
    for j in (1, 2, 3):
        if j == 2:
            lab("L_sd2")
        e("s_and_b32 s%d, s%d, 0xffffff" % (s.t0, Fa + 4 + j))
        e("v_add_u32 v%d, s%d, v%d" % (xa, s.t0, l16))
        for k in range(4):
            e("ds_write_b128 v%d, %s offset:%d" % (xa, vr(v.O + 16 * j + 4 * k, 4), k * 1024))
    e("s_lshr_b32 s%d, s%d, 30" % (s.t0, Fa + 2))
    e("s_lshl_b32 s%d, s%d, 2" % (s.t0, s.t0))
    e("s_add_u32 s%d, s%d, %d" % (s.t0, s.t0, CNTB))
    e("v_mov_b32 v%d, s%d" % (cnt, s.t0))
    e("v_mov_b32 v%d, 1" % v.t3)
    e("s_mov_b64 exec, 1")
    e("ds_add_u32 v%d, v%d" % (cnt, v.t3))
    e("s_mov_b64 exec, -1")
    emit(st_addr())
    e("v_add_u32 v%d, s%d, v%d" % (xa, s.reg, l16))
    for j in range(3):
        e("s_lshr_b32 s%d, s%d, 24" % (s.t0, Fa + 5 + j))
        e("s_lshl_b32 s%d, s%d, 9" % (s.t0, s.t0))
        e("s_add_u32 s%d, s%d, %d" % (s.t0, s.t0, MLBASE))
        e("v_add_u32 v%d, s%d, v%d" % (v.P + j, s.t0, l8))
    e("s_branch L_poll1")
    lab("L_poll")
    emit(spin())
    lab("L_poll1")
    e("ds_read_b32 v%d, v%d" % (v.t3, cnt))
    e("s_waitcnt lgkmcnt(0)")
    e("v_cmp_ne_u32 vcc, s%d, v%d" % (s.n, v.t3))
    e("s_cbranch_vccnz L_poll")
    stamp(4)
    for j in range(3):
        e("ds_read_b64 %s, v%d" % (vr(v.X + 2 * j, 2), v.P + j))
    for k in range(12):
        e("ds_read_b128 %s, v%d offset:%d" % (vr(v.KF + 16 + 4 * k, 4), xa, k * 1024))
    RX = v.KF + 16
    f0, f1, f2, f3 = v.X + 8, v.X + 9, v.X + 10, v.X + 11
    e("s_bfe_u32 s%d, s%d, 0x2001c" % (s.col, Fa + 2))
    e("s_lshl_b32 s%d, s%d, 6" % (s.col, s.col))
    e("s_add_u32 s%d, s%d, 0x8000" % (s.col + 1, s.col))
    e("s_add_u32 s%d, s%d, 0x10000" % (s.col + 2, s.col))
    e("s_add_u32 s%d, s%d, 0x18000" % (s.t1, s.col))
    e("s_waitcnt lgkmcnt(12)")
    e("v_min3_f32 v%d, v%d, v%d, v%d" % (v.t3, v.nmc, v.X, v.X + 2))
    e("v_min_f32 v%d, v%d, v%d" % (v.t3, v.t3, v.X + 4))
    e("v_sub_f32 v%d, v%d, v%d" % (f0, v.t3, v.nmc))
    for j, f in enumerate((f1, f2, f3)):
        e("v_sub_f32 v%d, v%d, v%d" % (f, v.t3, v.X + 2 * j))
    for f in (f0, f1, f2, f3):
        e("v_exp_f32 v%d, v%d" % (f, f))
    e("v_mul_f32 v%d, v%d, v%d" % (v.l, v.l, f0))
    e("v_fmac_f32 v%d, v%d, v%d" % (v.l, v.X + 1, f1))
    e("s_cmp_eq_u32 s%d, 2" % s.n)
    e("s_cbranch_scc1 L_mg2")
    e("v_fmac_f32 v%d, v%d, v%d" % (v.l, v.X + 3, f2))
    e("v_fmac_f32 v%d, v%d, v%d" % (v.l, v.X + 5, f3))
    e("v_rcp_f32 v%d, v%d" % (v.t3, v.l))
    e("v_and_b32 v%d, 4, v%d" % (v.t0, L))
    e("v_lshl_add_u32 v%d, v%d, 28, v%d" % (oo, v.t0, oo))
    for f in (f0, f1, f2, f3):
        e("v_mul_f32 v%d, v%d, v%d" % (f, f, v.t3))
    for i in range(16):
        e("v_mul_f32 v%d, v%d, v%d" % (v.O + i, v.O + i, f0))
    for j, f in enumerate((f1, f2, f3)):
        e("s_waitcnt lgkmcnt(%d)" % (8 - 4 * j))
        for i in range(16):
            e("v_fmac_f32 v%d, v%d, v%d" % (v.O + i, RX + 16 * j + i, f))
    e("s_branch L_mg3")
    lab("L_mg2")
    e("v_rcp_f32 v%d, v%d" % (v.t3, v.l))
    e("s_nop 0")
    for f in (f0, f1):
        e("v_mul_f32 v%d, v%d, v%d" % (f, f, v.t3))
    for i in range(32):
        e("v_mul_f32 v%d, v%d, v%d" % (v.O + i, v.O + i, f0))
    e("s_waitcnt lgkmcnt(0)")
    for i in range(32):
        e("v_fmac_f32 v%d, v%d, v%d" % (v.O + i, RX + i, f1))
    emit(pack_q(1, False))
    lab("L_mg3")
    emit(pack_q(0, False) + rd_half(0))
    for k in range(4):
        emit(["s_waitcnt lgkmcnt(%d)" % (3 - k)] + st_one(0, k))
    e("s_branch L_fin")
    lab("L_resc")
    e("v_max3_f32 v%d, v%d, v%d, v%d" % (v.t0, v.X, v.X + 1, v.X + 2))
    for r in range(3, 15, 2):
        e("v_max3_f32 v%d, v%d, v%d, v%d" % (v.t0, v.t0, v.X + r, v.X + r + 1))
    e("v_max3_f32 v%d, v%d, v%d, 0" % (v.t0, v.t0, v.X + 15))
    e("v_mov_b32 v%d, v%d" % (v.t1, v.t0))
    e("s_nop 1")
    e("v_permlane32_swap_b32 v%d, v%d" % (v.t0, v.t1))
    e("s_nop 1")
    e("v_max_f32 v%d, v%d, v%d" % (v.t0, v.t0, v.t1))
    e("v_exp_f32 v%d, -v%d" % (v.t1, v.t0))
    e("v_sub_f32 v%d, v%d, v%d" % (v.nmc, v.nmc, v.t0))
    for r in range(16):
        e("v_sub_f32 v%d, v%d, v%d" % (v.X + r, v.X + r, v.t0))
    e("v_mul_f32 v%d, v%d, v%d" % (v.l, v.l, v.t1))
    for i in range(64):
        e("v_mul_f32 v%d, v%d, v%d" % (v.O + i, v.O + i, v.t1))
    emit(soft_half_plain(0))
    emit(soft_half_plain(1))
    for k, r in enumerate(rets[:-1]):
        e("s_cmp_eq_u32 s%d, %d" % (s.ret, k))
        e("s_cbranch_scc1 %s" % r)
    e("s_branch %s" % rets[-1])
    rl_ = []
    order = [2, 1, 0, 3, 4]
    assert len(srets) == len(order)
    for k in order[:-1]:
        rl_ += ["    s_cmp_eq_u32 s%d, %d" % (s.sret, k), "    s_cbranch_scc1 %s" % srets[k]]
    rl_ += ["    s_branch %s" % srets[order[-1]]]
    out[SRET_AT:SRET_AT] = rl_
    out.append(".p2align 6")
    out.append(".type L_near,@object")
    lab("L_near")
    for ent in near:
        out.append("    .long " + ", ".join("0x%x" % x for x in ent))
    lab("L_far")
    for ent in far:
        out.append("    .long " + ", ".join("0x%x" % x for x in ent))
    lab("L_cnt")
    out.append("    .long " + ", ".join(str(i) for i in range(32)))
    out.append(".size L_near, .-L_near")
    lab("L_codeend")
    out.append("    .fill 512, 4, 0xbf800000")
    out.append('.section .rodata,"a"')
    out.append(".p2align 6")
    out.append(".amdhsa_kernel " + K)
    out.append("  .amdhsa_next_free_vgpr %d" % NV)
    out.append("  .amdhsa_next_free_sgpr %d" % NS)
    out.append("  .amdhsa_accum_offset %d" % NV)
    out.append("  .amdhsa_group_segment_fixed_size 0")
    out.append("  .amdhsa_kernarg_size 56")
    out.append("  .amdhsa_user_sgpr_count 2")
    out.append("  .amdhsa_user_sgpr_kernarg_segment_ptr 1")
    out.append("  .amdhsa_system_sgpr_workgroup_id_x 1")
    out.append(".end_amdhsa_kernel")
    txt = "\n".join(out) + "\n"
    txt = txt.replace("PFSTRIDE", OPT.get("pf", "32"))
    import subprocess, tempfile, os
    tmp = tempfile.mkdtemp()
    open(tmp + "/a.s", "w").write(txt.replace("offset:L_near-L_pc", "offset:0x100").replace("offset:L_far-L_pc", "offset:0x100"))
    subprocess.run(["clang", "-x", "assembler", "-target", "amdgcn-amd-amdhsa", "-mcpu=gfx950", "-c", tmp + "/a.s", "-o", tmp + "/a.o"], check=True)
    sy = {}
    for ln in subprocess.run(["llvm-objdump", "-t", tmp + "/a.o"], capture_output=True, text=True).stdout.splitlines():
        p = ln.split()
        if len(p) >= 5 and p[-1].startswith("L_"):
            sy[p[-1]] = int(p[0], 16)
    assert sy["L_codeend"] - sy["L_pc"] <= 512 * int(OPT.get("pf", "32")) + 128 or STAMPS or SPIN, hex(sy["L_codeend"])
    assert sy["L_codeend"] + 2048 - sy["L_pc"] >= 512 * int(OPT.get("pf", "32"))
    for t in ("L_near", "L_far"):
        txt = txt.replace("offset:%s-L_pc" % t, "offset:0x%x" % (sy[t] - sy["L_pc"]))
        txt = txt.replace(t + ":\n", t + ":\n.if (%s-L_pc) != 0x%x\n.error \"table offset\"\n.endif\n" % (t, sy[t] - sy["L_pc"])) if False else txt
    return txt


if __name__ == "__main__":
    args = [a for a in sys.argv[1:] if a.endswith(".s")]
    path = args[0] if args else "cdna_kernels/%s.s" % NAME
    open(path, "w").write(gen())
    print("wrote", path)
```

```python
import sys, struct, math

NAME = "standalone__varlen_attn_packed__ragged"
CU = [0, 289, 520, 939, 1289, 1402, 1666, 1973, 2275]
LEN = [CU[i + 1] - CU[i] for i in range(8)]
T_TOT = 2275
ROWB = 4096
TENSOR_BYTES = T_TOT * ROWB

OPT = {}
for a in sys.argv[1:]:
    if a.startswith("--"):
        k, _, val = a[2:].partition("=")
        OPT[k] = val if val else "1"
STAMPS = "stamps" in OPT or "lite" in OPT
LITE = "lite" in OPT
LDF_Q = OPT.get("ldq", "none").replace("+", " ").replace("none", "")
LDF_K = OPT.get("ldk", "none").replace("+", " ").replace("none", "")
STF = OPT.get("st", "sc1").replace("+", " ").replace("none", "")
FLY = int(OPT.get("fly", "4"))

HEADER = """; Kernarg layout for this problem (56 bytes, ptrs only, base s[0:1]):
;   offset   0: d_in[0] q  shape=(2275, 16, 128) dtype=bfloat16 strides=(4096, 256, 2) contiguous=True
;   offset   8: d_in[1] k  shape=(2275, 16, 128) dtype=bfloat16 strides=(4096, 256, 2) contiguous=True
;   offset  16: d_in[2] v  shape=(2275, 16, 128) dtype=bfloat16 strides=(4096, 256, 2) contiguous=True
;   offset  24: d_in[3] cu  shape=(9,) dtype=int32 strides=(4,) contiguous=True
;   offset  32: d_out     shape=(2275, 16, 128) dtype=bfloat16 (2 bytes/elem)
"""


def f2u(x):
    return struct.unpack("<I", struct.pack("<f", x))[0]


def cdiv(a, b):
    return (a + b - 1) // b


LDS_TOTAL = 163840
QBASE = 98304
XTRA = 131072
MLBASE = XTRA + 16384
PRGB = XTRA + 7 * 4096 + 2048
RDYB = XTRA + 6 * 4096 + 3072
CNTB = XTRA + 6 * 4096 + 2048
BIG = 0x4000

ROLES = [
    ("dual", (1, 6, 2), (4, 0, 4)),
    (5, 0, 6),
    (3, 0, 5), (3, 5, 5),
    ("dual", (3, 10, 1), (5, 6, 3)),
    (1, 0, 6),
    (6, 0, 5), (6, 5, 5),
    (7, 0, 5), (7, 5, 5), (0, 0, 5), (0, 5, 5),
    (2, 0, 4), (2, 4, 4), (2, 8, 3), (2, 11, 3),
]
QL = int(OPT.get("ql", "4"))
QLC = int(OPT.get("qlc", "3"))
QE = int(OPT.get("qe", "0"))


def nrec(rows):
    return (rows - 1) * ROWB + 256 if rows > 0 else 0


def build_tables():
    near, far, desc = [], [], []
    for ri, role in enumerate(ROLES):
        W = [None] * 8
        groups = []
        if role[0] == "dual":
            (sa, ta, na), (sb, tb, nb) = role[1], role[2]
            rowA, lenA, rowB, lenB, step = CU[sa], LEN[sa], CU[sb], LEN[sb], 32
            n_it = max(cdiv(lenA, 32), cdiv(lenB, 32))
            tiles = [(sa, ta + i, 0) for i in range(na)] + [(sb, tb + i, 1) for i in range(nb)]
            nq = len(tiles)
            for i in range(4):
                sq, tl, st = tiles[i]
                W[i] = dict(seq=sq, tile=tl, ql=i, type=2, stream=st, its=list(range(cdiv(LEN[sq], 32))), hastail=1)
            for i in range(4, nq):
                sq, tl, st = tiles[i]
                nb_ = cdiv(LEN[sq], 32)
                W[i + 2] = dict(seq=sq, tile=tl, ql=i, type=3, stream=st, its=list(range(nb_)), hastail=1,
                                G=1, reg=XTRA + 4096 * i)
        else:
            sa, t0, nq = role
            rowA, lenA, rowB, lenB, step = CU[sa], LEN[sa], CU[sa] + 32, LEN[sa] - 32, 64
            nkv = cdiv(lenA, 32)
            n_it = cdiv(nkv, 2)
            tiles = [(sa, t0 + i, 0) for i in range(nq)]
            for i in range(min(nq, 4)):
                W[i] = dict(seq=sa, tile=t0 + i, ql=i, type=1, stream=0, its=list(range(nkv)), hastail=1)
            nh = 4 // (nq - 4) if nq > 4 else 0
            for i in range(4, nq):
                ws = [4, 5, 6, 7] if nh == 4 else [4 + (i - 4), 6 + (i - 4)]
                for k, w in enumerate(ws):
                    blocks = [p for p in range(nkv) if p % nh == k]
                    W[w] = dict(seq=sa, tile=t0 + i, ql=i, type=3, stream=k % 2, its=[p // 2 for p in blocks],
                                hastail=int((nkv - 1) in blocks))
                groups.append(ws)
        qrows = [CU[sq] + 32 * tl for sq, tl, _ in tiles] + [0xfff] * (6 - nq)
        qrows = [r | (0x1000 if i < nq and tiles[i][2] else 0) for i, r in enumerate(qrows)]
        maskA = sum(1 << i for i, w in enumerate(W) if w and (w["type"] == 1 or w["stream"] == 0 or i < 4 and role[0] != "dual"))
        lastB = 2 * cdiv(lenB, step) + 1
        near.append([rowA * ROWB, nrec(lenA) | maskA, rowB * ROWB, nrec(lenB) | lastB, step * ROWB | (2 * n_it + 1),
                     qrows[0] | qrows[1] << 16, qrows[2] | qrows[3] << 16, qrows[4] | qrows[5] << 16])
        areas = [((n_it + 1) % 4) * 32768, ((n_it + 2) % 4) * 32768]
        recv = [areas[0], areas[0] + 12288, areas[1], areas[1] + 12288]
        for i in range(4):
            if W[i]:
                W[i]["reg"] = XTRA + 4096 * i
        for gi, g in enumerate(groups):
            G = len(g)
            for k, w in enumerate(g):
                W[w]["reg"] = recv[w - 4]
                W[w]["G"], W[w]["k"], W[w]["gi"] = G, k, gi
                if G == 4:
                    W[w]["send"] = [recv[g[(j + k) % 4] - 4] + (j - 1) * 4096 for j in (1, 2, 3)]
                    W[w]["src"] = [g[(k - j) % 4] for j in (1, 2, 3)]
                else:
                    o = g[1 - k]
                    W[w]["send"] = [0, recv[o - 4], recv[o - 4] + 4096]
                    W[w]["src"] = [o, o, o]
        for wi in range(8):
            w = W[wi]
            desc.append(w)
            if w is None:
                far.append([0] * 8)
                continue
            sq, its, typ, sc = w["seq"], w["its"], w["type"], w["stream"]
            tail = LEN[sq] % 32
            orow = CU[sq] + 32 * w["tile"]
            onr = min(32, CU[sq + 1] - orow)
            assert onr > 0 and tail > 0
            U = len(its) - 1
            a0, st = its[0], its[1] - its[0]
            assert all(its[i] == a0 + st * i for i in range(len(its))) and st <= 2 and a0 <= 1 and U >= 1
            if typ == 1:
                inc, prg0, prg1, need1, need2 = 1, 2, 4, 0, 2
            elif typ == 2:
                inc, prg0, prg1, need1, need2 = 2, 2, 4 + sc, sc, 4 + sc
            else:
                inc, prg0, prg1, need1, need2 = 2 * st, 2 * a0 + sc + 2, 2 * (a0 + 1) + sc + 2, max(QE if QE else 3, 2 * a0 + sc), 2 * (a0 + st) + sc
            needk = max(need1 + 2 * (typ == 2), 1)
            if typ != 3 and wi >= QL:
                need1 = max(need1, QLC)
            w.update(needk=needk)
            w.update(U=U, a0=a0, st=st, inc=inc, prg0=prg0, prg1=prg1, need1=need1, need2=need2, n_it=n_it)
            hm = 0
            if typ != 3:
                nlast = 2 * n_it + 1
                pub = prg0
                w["pubs"] = []
                for b in range(U):
                    val = prg1 + inc * (b + 1)
                    want = pub < nlast - 5 and (typ == 2 or b % 2 == 1 or OPT.get("puball"))
                    if groups and pub < nlast - 1 <= val:
                        want = True
                    if typ == 2 or U - 1 - b <= 1:
                        hm |= 1 << (U - 1 - b)
                    if want and OPT.get("nodpub"):
                        hm |= 0x10001 << (U - 1 - b)
                        pub = val
                        w["pubs"].append(b)
            G, k, gi = w.get("G", 0), w.get("k", 0), w.get("gi", 0)
            rot = k * (4 // G) if G > 1 else 0
            ent = [orow * ROWB, nrec(onr),
                   U | typ << 8 | inc << 12 | (tail if w["hastail"] else 32) << 16 | G << 24 | rot << 28 | gi << 30,
                   prg0 | prg1 << 8 | need1 << 16 | need2 << 24,
                   w["reg"] | w["ql"] << 20 | (1 - sc) << 24 | a0 << 25 | st << 26 | int(typ != 3 and tail <= 16 and not OPT.get("noshort")) << 31]
            if G > 1:
                ent += [w["send"][j] | ((w["src"][j] - 4) << 24) for j in range(3)]
            if typ != 3:
                ent += [hm, needk]
            ent += [0] * (8 - len(ent))
            far.append(ent)
    return near, far, desc


class R:
    pass


v = R()
v.kd0, v.kd1, v.vd0, v.vd1 = 1, 2, 3, 4
v.ka0r, v.ka1r = 5, 6
v.ka0, v.ka1 = 7, 8
v.rdya, v.rdy = 9, 10
v.lane = 11
v.nmc, v.l = 12, 13
v.ps = 14
v.t0, v.t1, v.t2, v.t3 = 15, 16, 17, 18
v.pf = 19
v.st = 20
v.prga, v.prg = 21, 22
v.fo = 23
v.pra = 0
v.Q = 24
v.O = 56
v.S = 120
v.B = 136
v.KF = 152
v.VF = 184
v.X = 216
v.E = 232
v.P = 240
v.var = 248
v.va = 252
NV = 256

s = R()
s.q, s.k, s.vv, s.cu, s.out = 4, 6, 8, 10, 12
s.near = 16
s.far = 24
s.kA, s.kB, s.vA, s.vB, s.sq, s.so = 32, 36, 40, 44, 48, 52
s.wave, s.hoff = 56, 57
s.n = 58
s.thr = 59
s.soff = 60
s.dslot = 61
s.U = 62
s.mu = 63
s.koff, s.voff = 64, 65
s.need, s.chk = 66, 67
s.t0, s.t1, s.t2, s.t3 = 68, 69, 70, 71
s.pc = 72
s.stp = 74
s.ws = 76
s.sti = 78
s.ret = 79
s.foff = 80
s.reg = 81
s.m1 = 82
s.lnd = 83
s.inc = 84
s.col = 85
s.astep = 88
s.sret = 89
s.guard = 90
s.iss = 91
s.d0, s.rdw = 92, 93
s.qea, s.qeb = 94, 95
s.stepb = 97
NS = 100

C_SCALE = (128 ** -0.5) * math.log2(math.e)
CL = "0x%x" % f2u(C_SCALE)
THRESH = 4096.0

out = []


def e(x):
    out.append("    " + x)


def lab(x):
    out.append(x + ":")


def vr(b, n):
    return "v[%d:%d]" % (b, b + n - 1)


def sr(b, n):
    return "s[%d:%d]" % (b, b + n - 1)


def emit(lst):
    for x in lst:
        if x is None:
            continue
        if x.endswith(":"):
            out.append(x)
        else:
            e(x)


def stamp_l(k=None, real=False):
    if not STAMPS or (LITE and k not in (7, 61)):
        return []
    if OPT.get("rt") and k is None and not real:
        return stamp_l(None, True) + stamp_l(None, "c")
    real = real is True
    r = ["%s s[%d:%d]" % ("s_memrealtime" if real else "s_memtime", s.stp, s.stp + 1), "s_waitcnt lgkmcnt(0)"]
    if k is None:
        r += ["s_mov_b32 s%d, m0" % (s.stp + 1), "s_mov_b32 m0, s%d" % s.sti, "s_nop 0",
              "v_writelane_b32 v%d, s%d, m0" % (v.st, s.stp),
              "s_add_u32 s%d, s%d, 1" % (s.sti, s.sti), "s_mov_b32 m0, s%d" % (s.stp + 1)]
    else:
        r += ["v_writelane_b32 v%d, s%d, %d" % (v.st, s.stp, k)]
    return r


def stamp(k=None, real=False):
    emit(stamp_l(k, real))


SPIN = OPT.get("spin")


def mark(name):
    if SPIN == name:
        e("s_memrealtime s[%d:%d]" % (s.stp, s.stp + 1))
        e("s_waitcnt lgkmcnt(0)")


def kread(t, dst, st=0):
    return "ds_read_b128 %s, v%d offset:%d" % (vr(dst + 4 * t, 4), v.ka1 if t % 2 else v.ka0,
                                               (t // 4) * 16384 + ((t // 2) % 2) * 256 + st * 1024)


def vread(i, st=0, one=False):
    t, bb, ss = i // 8, (i // 2) % 4, i % 2
    reg = v.VF + (t * 4 + bb) * 4 + ss * 2
    if one:
        return "ds_read_b64_tr_b16 %s, v%d offset:%d" % (vr(reg, 2), v.va, (4 * t + 2 * ss) * 4096 + st * 1024 + bb * 256)
    return "ds_read_b64_tr_b16 %s, v%d offset:%d" % (vr(reg, 2), v.va + bb, (4 * t + 2 * ss) * 4096 + st * 1024)


def ld(kv, col, half, so):
    srd = {("K", 0): s.kA, ("K", 1): s.kB, ("V", 0): s.vA, ("V", 1): s.vB}[(kv, col)]
    off = (2048 if kv == "V" else 0) + (1024 if col == 0 else 0)
    vo = {("K", 0): v.kd0, ("K", 1): v.kd1, ("V", 0): v.vd0, ("V", 1): v.vd1}[(kv, half)]
    return "buffer_load_dwordx4 v%d, %s, s%d offen %s%s lds" % (vo, sr(srd, 4), so, "offset:%d " % off if off else "", LDF_K)


STEP_ADV = ["s_add_u32 s%d, s%d, s%d" % (s.soff, s.soff, s.stepb),
            "s_add_u32 s%d, s%d, 0x8000" % (s.dslot, s.dslot),
            "s_and_b32 s%d, s%d, 0x1ffff" % (s.dslot, s.dslot)]


FLAG = ["s_mov_b32 m0, s%d" % s.rdw,
        "v_add_u32 v%d, 4, v%d" % (v.fo, v.fo),
        "global_load_lds_dword v%d, %s" % (v.fo, sr(s.pc, 2))]


def chunk(col, k_only=False, pace=0, flag=True):
    p = []
    if pace:
        p = ["s_sleep %d" % pace if pace < 16 else "s_nop %d" % (pace - 16)]
    r = []
    for half, m in ((0, "s_mov_b32 m0, s%d" % s.dslot), (1, "s_add_u32 m0, s%d, 0x4000" % s.dslot)):
        r += [m, "s_nop 0"]
        if not k_only:
            r += [ld("V", col, half, s.soff)] + p
        r += [ld("K", col, half, s.soff)] + p
    return r + (FLAG if flag else [])


def qk(t):
    return "v_mfma_f32_32x32x16_bf16 %s, %s, %s, %s" % (vr(v.S, 16), vr(v.KF + 4 * t, 4), vr(v.Q + 4 * t, 4), vr(v.S, 16))


def pv(i):
    t, bb = i // 4, i % 4
    return "v_mfma_f32_32x32x16_bf16 %s, %s, %s, %s" % (
        vr(v.O + 16 * bb, 16), vr(v.VF + (t * 4 + bb) * 4, 4), vr(v.P + 4 * t, 4), vr(v.O + 16 * bb, 16))


def F(r):
    return "v_fmamk_f32 v%d, v%d, %s, v%d" % (v.X + r, v.S + r, CL, v.nmc)


def ex(r):
    return "v_exp_f32 v%d, v%d" % (v.E + r % 8, v.X + r)


def add(r):
    if r == 0:
        return None
    if r == 1:
        return "v_add_f32 v%d, v%d, v%d" % (v.ps, v.E, v.E + 1)
    return "v_add_f32 v%d, v%d, v%d" % (v.ps, v.ps, v.E + r % 8)


def cvt(i):
    return "v_cvt_pk_bf16_f32 v%d, v%d, v%d" % (v.P + i, v.E + (2 * i) % 8, v.E + (2 * i + 1) % 8)


def soft_half_plain(h):
    r = [ex(8 * h + i) for i in range(8)]
    r += [x for x in (add(8 * h + i) for i in range(8)) if x]
    r += [cvt(4 * h + i) for i in range(4)]
    return r


CMP = "v_cmp_lt_f32 vcc, s%d, v%d" % (s.thr, v.ps)
LADD = "v_add_f32 v%d, v%d, v%d" % (v.l, v.l, v.ps)
PRGW = "ds_write_b32 v%d, v%d" % (v.prga, v.prg)
RDYR = "ds_read_b32 v%d, v%d" % (v.rdy, v.rdya)
PRGINC = "v_add_u32 v%d, s%d, v%d" % (v.prg, s.inc, v.prg)
NEEDINC = "s_add_u32 s%d, s%d, s%d" % (s.need, s.need, s.inc)
QK0 = "v_mfma_f32_32x32x16_bf16 %s, %s, %s, 0" % (vr(v.S, 16), vr(v.KF, 4), vr(v.Q, 4))
QK0M = "v_mfma_f32_32x32x16_bf16 %s, %s, %s, %s" % (vr(v.S, 16), vr(v.KF, 4), vr(v.Q, 4), vr(v.B, 16))
rets, srets = [], []


def newret():
    rets.append("L_ret%d" % len(rets))
    return len(rets) - 1


def kaddr():
    return ["v_add_u32 v%d, s%d, v%d" % (v.ka0, s.koff, v.ka0r),
            "v_add_u32 v%d, s%d, v%d" % (v.ka1, s.koff, v.ka1r)]


def vaddr():
    return ["v_add_u32 v%d, s%d, v%d" % (v.va + j, s.voff, v.var + j) for j in range(4)]


def adv(reg):
    return ["s_add_u32 s%d, s%d, s%d" % (reg, reg, s.astep), "s_and_b32 s%d, s%d, 0x1ffff" % (reg, reg)]


def spin(n="1"):
    r = ["s_sleep %s" % n]
    if not OPT.get("nosafe"):
        r += ["s_sub_u32 s%d, s%d, 1" % (s.guard, s.guard), "s_cbranch_scc1 L_end"]
    return r


def sync_call(target=None):
    k = len(srets)
    srets.append(target or "L_sr%d" % k)
    return ["s_mov_b32 s%d, %d" % (s.sret, k), "s_branch L_sync"] + ([] if target else ["L_sr%d:" % k])


_pl = [0]


ool = []


def poll_rdy():
    _pl[0] += 1
    a, b = "L_pa%d" % _pl[0], "L_pb%d" % _pl[0]
    ool.append([a + ":"] + spin() + [RDYR, "s_waitcnt lgkmcnt(0)", "s_branch %s" % b])
    return ["s_min_u32 s%d, s%d, s%d" % (s.t2, s.need, s.n), b + ":",
            "v_cmp_ge_u32 vcc, s%d, v%d" % (s.t2, v.rdy), "s_cbranch_vccnz %s" % a]


def body(kind):
    odd, hlp = kind != "even", kind == "hlp"
    st = 0 if odd else 1
    V = lambda i: vread(i, st, not hlp)
    K = lambda t: kread(t, v.KF, st)
    W = lambda n: "s_waitcnt lgkmcnt(%d)" % n
    k = newret()
    q = [
        [NEEDINC, V(0), V(1), ex(8), add(7), cvt(3)],
        ["s_mov_b32 s%d, %d" % (s.ret, k), V(2), V(3), ex(9), ex(10)],
        [W(4), V(4), V(5), ex(11), add(8), add(9)],
        ["s_sub_u32 s%d, s%d, 1" % (s.U, s.U), V(6), V(7), ex(12), ex(13)],
        [None, V(8), V(9), ex(14), add(10), add(11)],
        [None, V(10), V(11), ex(15), add(12), add(13)],
        [W(4), V(12), V(13), add(14), add(15), CMP, cvt(4)],
        ["s_cbranch_vccnz L_resc", "L_ret%d:" % k, V(14), V(15), LADD, cvt(5), cvt(6), cvt(7)],
    ]
    p = [
        ["s_nop 0", K(0), K(1), K(2), F(0), F(1), F(2)],
        [None, K(3), ex(0), F(3), F(4), F(5)],
        [None, K(4), ex(1), F(6), F(7), F(8)],
        [W(5), K(5), ex(2), add(1), F(9), F(10)],
        [None, K(6), ex(3), add(2), cvt(0), F(11)],
        [None, K(7), ex(4), add(3), cvt(1), F(12)],
        [W(4), ex(5), ex(6), add(4), F(13)],
        [None, ex(7), add(5), add(6), cvt(2), F(14), F(15)],
    ]
    if odd:
        q[4][0], q[5][0] = adv(s.voff)
        p[4][0], p[5][0] = adv(s.koff)
        va, ka = vaddr(), kaddr()
        p[1].append(va[0])
        if hlp:
            p[3].append(va[1])
            p[4].append(va[2])
            p[5].append(va[3])
        p[6].append(ka[0])
        p[7].append(ka[1])
    if not hlp:
        p[0][0] = "s_min_u32 s%d, s%d, s%d" % (s.chk, s.need, s.n)
        p[1][0] = "s_bitcmp1_b32 s%d, s%d" % (s.far + 5, s.U)
        p[2][0] = "s_cselect_b32 s%d, -1, s%d" % (s.chk, s.chk)
        p[2][2:2] = [RDYR]
        p[6][0] = W(3)
        if odd and (not OPT.get("nodpub")):
            q[2].append("v_add_u32 v%d, 8, v%d" % (v.fo, v.fo))
            q[3][1:1] = ["global_load_lds_dword v%d, %s" % (v.fo, sr(s.pc, 2))]
        p[7][3:3] = ["v_cmp_ge_u32 vcc, s%d, v%d" % (s.chk, v.rdy)]
    else:
        q[1].append(PRGINC)
        q[7][4:4] = [PRGW]
        sc = sync_call()
        q[3][1:1] = [sc[0]]
        p[0][0:1] = stamp_l() + sc[1:] + stamp_l()
    lab("L_%s_m" % kind)
    e(QK0)
    lab("L_%s_a" % kind)
    emit(q[0])
    for t in range(1, 8):
        e(qk(t))
        emit(q[t])
    for i in range(8):
        e(pv(i))
        emit(p[i])
    if not hlp:
        stamp()


def gen():
    K = NAME + "_kernel"
    near, far, _ = build_tables()
    PACE = int(OPT.get("pace", "0"))
    out.append(HEADER + "; @launch grid=(256,1,1) block=(512,1,1) lds=%d" % LDS_TOTAL)
    out.append('.amdgcn_target "amdgcn-amd-amdhsa--gfx950"')
    out.append(".text")
    out.append(".globl " + K)
    out.append(".p2align 12")
    out.append(".p2align 8")
    out.append(".type %s,@function" % K)
    lab(K)
    L, N, Fa = v.lane, s.near, s.far
    if SPIN:
        e("s_memrealtime s[%d:%d]" % (s.ws, s.ws + 1))
        e("s_memrealtime s[%d:%d]" % (s.stp, s.stp + 1))
    if STAMPS:
        e("s_memrealtime s[%d:%d]" % (s.stp, s.stp + 1))
        e("s_memtime s[%d:%d]" % (s.ws, s.ws + 1))
    e("s_load_dwordx8 s[4:11], s[0:1], 0")
    e("s_getpc_b64 %s" % sr(s.pc, 2))
    lab("L_pc")
    e("s_lshr_b32 s%d, s2, 4" % s.foff)
    e("s_lshl_b32 s%d, s%d, 5" % (s.t1, s.foff))
    e("s_load_dwordx8 %s, %s, s%d offset:L_near-L_pc" % (sr(s.near, 8), sr(s.pc, 2), s.t1))
    e("v_mul_u32_u24 v%d, PFSTRIDE, v0" % v.t0)
    e("v_readfirstlane_b32 s%d, v0" % s.wave)
    e("global_load_dword v%d, v%d, %s" % (v.pf, v.t0, sr(s.pc, 2)))
    e("s_cmp_ge_u32 s%d, 16" % s.foff)
    e("s_cbranch_scc1 L_end")
    e("s_bitcmp0_b32 s%d, 8" % s.wave)
    e("s_cbranch_scc1 L_mainpro")
    e("v_bfe_u32 v%d, v0, 5, 2" % v.t0)
    e("v_and_b32 v%d, 3, v0" % v.t1)
    e("v_xor_b32 v%d, v%d, v%d" % (v.t1, v.t1, v.t0))
    e("v_and_or_b32 v%d, v0, 12, v%d" % (v.t0, v.t0))
    e("v_lshlrev_b32 v%d, 12, v%d" % (v.t0, v.t0))
    e("v_lshl_add_u32 v%d, v%d, 4, v%d" % (v.t0, v.t1, v.t0))
    e("v_and_b32 v%d, 16, v0" % v.t1)
    e("v_lshl_add_u32 v%d, v%d, 2, v%d" % (v.t0, v.t1, v.t0))
    e("v_bfe_u32 v%d, v0, 7, 1" % v.t1)
    e("v_lshl_add_u32 v%d, v%d, 16, v%d" % (v.kd0, v.t1, v.t0))
    e("v_add_u32 v%d, 0x80, v%d" % (v.kd1, v.kd0))
    e("s_and_b32 s%d, s2, 15" % s.t1)
    e("s_lshl_b32 s%d, s%d, 8" % (s.hoff, s.t1))
    e("s_lshl_b32 s%d, s%d, 6" % (s.dslot, s.wave))
    e("s_and_b32 s%d, s%d, 0x3000" % (s.dslot, s.dslot))
    e("s_mov_b32 s%d, 0x20000" % (s.sq + 3))
    e("s_mov_b32 s%d, s%d" % (s.kA + 3, s.sq + 3))
    e("s_mov_b32 s%d, 0" % s.soff)
    if OPT.get("thr", "0") != "0":
        e("s_lshr_b32 vcc_lo, %s, s%d" % (OPT.get("thr", "0"), s.t1))
        if OPT.get("thrr"):
            e("s_lshr_b32 s%d, %s, s%d" % (s.t0, OPT["thrr"], s.foff))
            e("s_and_b32 vcc_lo, vcc_lo, s%d" % s.t0)
        if OPT.get("thro"):
            e("s_lshr_b32 s%d, %s, s%d" % (s.t0, OPT["thro"], s.foff))
            e("s_or_b32 vcc_lo, vcc_lo, s%d" % s.t0)
        e("s_and_b32 vcc_lo, vcc_lo, 1")
        e("s_mov_b32 vcc_hi, 0")
    e("s_add_u32 s%d, s%d, %d" % (s.d0, s.dslot, QBASE))
    e("s_waitcnt lgkmcnt(0)")
    mark("karg")
    THR = OPT.get("thr", "0")
    _th = [0]

    def throttle():
        if THR == "0":
            return []
        _th[0] += 1
        return ["s_cbranch_vccz L_th%d" % _th[0], "s_waitcnt vmcnt(%s)" % OPT.get("thn", "8"), "L_th%d:" % _th[0]]

    def qtile(i):
        w = N + 5 + i // 2
        r = ["s_bitcmp1_b32 s%d, %d" % (w, 12 + 16 * (i % 2)),
             "s_cselect_b32 s%d, s%d, s%d" % (s.sq + 2, s.qeb, s.qea),
             "s_bfe_u32 s%d, s%d, 0x%x" % (s.t0, w, 0xc0000 + 16 * (i % 2)),
             "s_add_u32 m0, s%d, %d" % (s.d0, (i // 4) * 32768 + (i % 4) * 1024),
             "s_lshl_b32 s%d, s%d, 12" % (s.t0, s.t0),
             "buffer_load_dwordx4 v%d, %s, s%d offen %s lds" % (v.kd0, sr(s.sq, 4), s.t0, LDF_Q),
             "s_add_u32 m0, m0, 0x4000", "s_nop 0",
             "buffer_load_dwordx4 v%d, %s, s%d offen %s lds" % (v.kd1, sr(s.sq, 4), s.t0, LDF_Q)]
        return r
    e("s_add_u32 s%d, s%d, s%d" % (s.qea, N + 0, N + 1))
    e("s_add_u32 s%d, s%d, s%d" % (s.qeb, N + 2, N + 3))
    e("s_add_u32 s%d, s%d, s%d" % (s.sq, s.q, s.hoff))
    e("s_addc_u32 s%d, s%d, 0" % (s.sq + 1, s.q + 1))
    emit(qtile(0))
    e("s_add_u32 s%d, s%d, s%d" % (N + 0, N + 0, s.hoff))
    e("s_add_u32 s%d, s%d, s%d" % (s.kA, s.k, N + 0))
    e("s_addc_u32 s%d, s%d, 0" % (s.kA + 1, s.k + 1))
    e("s_sub_u32 s%d, s%d, 1024" % (s.kA, s.kA))
    e("s_subb_u32 s%d, s%d, 0" % (s.kA + 1, s.kA + 1))
    e("s_add_u32 s%d, s%d, 1024" % (s.kA + 2, N + 1))
    emit(chunk(0, True, flag=False))
    for i in range(1, QL):
        emit((throttle() if i > 1 else []) + qtile(i))
    QLATE = sum((qtile(i) for i in range(QL, 4)), [])
    mark("iss")
    for b in (s.kB, s.vA, s.vB):
        e("s_mov_b32 s%d, s%d" % (b + 3, s.sq + 3))
    e("s_add_u32 s%d, s%d, s%d" % (N + 2, N + 2, s.hoff))
    e("s_add_u32 s%d, s%d, s%d" % (s.kB, s.k, N + 2))
    e("s_addc_u32 s%d, s%d, 0" % (s.kB + 1, s.k + 1))
    e("s_mov_b32 s%d, s%d" % (s.kB + 2, N + 3))
    e("s_and_b32 s%d, s%d, 0xfffff000" % (s.stepb, N + 4))
    e("s_lshr_b32 s%d, s%d, 4" % (s.rdw, s.dslot))
    e("s_add_u32 s%d, s%d, %d" % (s.rdw, s.rdw, RDYB))
    e("v_mov_b32 v%d, L_cnt-L_pc" % v.fo)
    for (srd, off, nr, d) in ((s.vA, N + 0, N + 1, 3072), (s.vB, N + 2, N + 3, 2048)):
        e("s_add_u32 s%d, s%d, %d" % (s.t0, s.stepb, d))
        e("s_add_u32 s%d, s%d, s%d" % (srd, s.vv, off))
        e("s_addc_u32 s%d, s%d, 0" % (srd + 1, s.vv + 1))
        e("s_sub_u32 s%d, s%d, s%d" % (srd, srd, s.t0))
        e("s_subb_u32 s%d, s%d, 0" % (srd + 1, srd + 1))
        e("s_add_u32 s%d, s%d, s%d" % (srd + 2, nr, s.t0))
    e("v_bfe_u32 v%d, v0, 2, 2" % v.t0)
    e("v_lshlrev_b32 v%d, 12, v%d" % (v.t0, v.t0))
    e("v_and_b32 v%d, 3, v0" % v.t1)
    e("v_lshl_add_u32 v%d, v%d, 4, v%d" % (v.t0, v.t1, v.t0))
    e("v_and_b32 v%d, 48, v0" % v.t1)
    e("v_lshl_add_u32 v%d, v%d, 2, v%d" % (v.t0, v.t1, v.t0))
    e("v_bfe_u32 v%d, v0, 6, 2" % v.t1)
    e("v_lshl_add_u32 v%d, v%d, 14, v%d" % (v.vd0, v.t1, v.t0))
    e("v_add_u32 v%d, 0x10000, v%d" % (v.vd1, v.vd0))
    e("s_setprio %s" % OPT.get("hprio", "3"))
    e("s_branch L_common")
    lab("L_mainpro")
    for b in (s.sq, s.kA, s.kB, s.vA, s.vB):
        e("s_mov_b64 %s, s[0:1]" % sr(b, 2))
        e("s_mov_b32 s%d, 0" % (b + 2))
        e("s_mov_b32 s%d, 0x20000" % (b + 3))
    for r in (v.kd0, v.kd1, v.vd0, v.vd1, v.fo):
        e("v_mov_b32 v%d, 0" % r)
    e("s_and_b32 s%d, s2, 15" % s.t1)
    e("s_lshl_b32 s%d, s%d, 8" % (s.hoff, s.t1))
    lab("L_common")
    e("s_lshr_b32 s%d, s%d, 6" % (s.wave, s.wave))
    e("v_and_b32 v%d, 63, v0" % L)
    e("s_lshl3_add_u32 s%d, s%d, s%d" % (s.foff, s.foff, s.wave))
    e("s_lshl_b32 s%d, s%d, 5" % (s.foff, s.foff))
    e("v_and_b32 v%d, 7, v0" % v.t0)
    e("v_mul_u32_u24 v%d, 0x104, v%d" % (v.t0, v.t0))
    e("v_add_u32 v%d, %d, v%d" % (v.pra, PRGB, v.t0))
    e("s_lshl_b32 s%d, s%d, 8" % (s.t0, s.wave))
    e("s_add_u32 s%d, s%d, %d" % (s.t0, s.t0, PRGB - 4096))
    e("v_lshl_add_u32 v%d, v%d, 2, s%d" % (v.prga, L, s.t0))
    e("v_mov_b32 v%d, 0" % v.l)
    e("ds_write_b32 v%d, v%d" % (v.prga, v.l))
    e("ds_write_b32 v%d, v%d offset:4096" % (v.prga, v.l))
    e("v_add_u32 v%d, 0x1000, v%d" % (v.prga, v.prga))
    e("s_waitcnt lgkmcnt(0)")
    if STAMPS:
        e("v_mov_b32 v%d, 0" % v.st)
        e("s_mov_b32 s%d, 8" % s.sti)
        e("v_writelane_b32 v%d, s%d, 0" % (v.st, s.stp))
        e("v_writelane_b32 v%d, s%d, 1" % (v.st, s.ws))
        stamp(3)
        e("s_load_dwordx2 %s, s[0:1], 48" % sr(s.ws, 2))
    e("s_load_dwordx8 %s, %s, s%d offset:L_far-L_pc" % (sr(Fa, 8), sr(s.pc, 2), s.foff))
    e("s_load_dwordx2 s[12:13], s[0:1], 32")
    e("s_barrier")
    e("s_cmp_lt_u32 s%d, 4" % s.wave)
    e("s_cbranch_scc1 L_common2")
    QH = qtile(4) + qtile(5)
    emit(FLAG + throttle() + (QH if QE == 1 else []) + chunk(1, True) + STEP_ADV + throttle() + (QLATE if QLC == 2 else [])
         + (QH if QE == 2 else []) + chunk(0) + throttle() + (QLATE if QLC == 3 else []))
    lab("L_common2")
    e("v_bfe_u32 v%d, v%d, 4, 1" % (v.t0, L))
    e("v_lshlrev_b32 v%d, 13, v%d" % (v.t0, v.t0))
    e("v_bfe_u32 v%d, v%d, 1, 1" % (v.t1, L))
    e("v_lshl_add_u32 v%d, v%d, 12, v%d" % (v.t0, v.t1, v.t0))
    e("v_and_b32 v%d, 1, v%d" % (v.t1, L))
    e("v_lshl_add_u32 v%d, v%d, 9, v%d" % (v.t0, v.t1, v.t0))
    e("v_bfe_u32 v%d, v%d, 2, 2" % (v.t1, L))
    e("v_lshl_add_u32 v%d, v%d, 6, v%d" % (v.t0, v.t1, v.t0))
    e("v_lshrrev_b32 v%d, 5, v%d" % (v.t1, L))
    e("v_and_b32 v%d, 3, v%d" % (v.t2, L))
    e("v_xor_b32 v%d, v%d, v%d" % (v.t1, v.t1, v.t2))
    e("v_lshl_add_u32 v%d, v%d, 4, v%d" % (v.ka0r, v.t1, v.t0))
    e("v_xor_b32 v%d, 32, v%d" % (v.ka1r, v.ka0r))
    e("v_lshrrev_b32 v%d, 5, v%d" % (v.t0, L))
    e("v_lshlrev_b32 v%d, 12, v%d" % (v.t0, v.t0))
    e("v_bfe_u32 v%d, v%d, 2, 2" % (v.t1, L))
    e("v_lshl_add_u32 v%d, v%d, 6, v%d" % (v.t0, v.t1, v.t0))
    e("v_bfe_u32 v%d, v%d, 4, 1" % (v.t1, L))
    e("v_lshl_add_u32 v%d, v%d, 5, v%d" % (v.t0, v.t1, v.t0))
    e("v_lshl_add_u32 v%d, v%d, 3, v%d" % (v.t0, v.t2, v.t0))
    e("v_add_u32 v%d, 0x800, v%d" % (v.var, v.t0))
    e("s_mov_b32 s%d, 0x%x" % (s.thr, f2u(THRESH)))
    e("v_mul_u32_u24 v%d, 0x104, v%d" % (v.t1, v.t2))
    e("v_add_u32 v%d, %d, v%d" % (v.rdya, RDYB, v.t1))
    e("s_mov_b32 s%d, 0x8000" % s.guard)
    e("v_mov_b32 v%d, 0" % v.rdy)
    e("s_waitcnt lgkmcnt(0)")
    e("s_add_u32 s%d, s%d, s%d" % (s.t0, Fa + 0, s.hoff))
    e("s_add_u32 s%d, s%d, s%d" % (s.so, s.out, s.t0))
    e("s_addc_u32 s%d, s%d, 0" % (s.so + 1, s.out + 1))
    e("s_mov_b32 s%d, s%d" % (s.so + 2, Fa + 1))
    e("s_mov_b32 s%d, 0x20000" % (s.so + 3))
    e("s_and_b32 s%d, s%d, 0xff" % (s.n, N + 4))
    e("s_bfe_u32 s%d, s%d, 0x40008" % (s.t3, Fa + 2))
    e("s_cbranch_scc1 L_work")
    e("v_mov_b32 v%d, %d" % (v.prg, BIG))
    e(PRGW)
    e("s_cmp_lt_u32 s%d, 4" % s.wave)
    e("s_cbranch_scc1 L_fin")
    e("s_branch L_presig")
    lab("L_work")
    for r in range(0, 64, 2):
        e("v_pk_mov_b32 %s, 0, 0" % vr(v.O + r, 2))
    e("s_and_b32 s%d, s%d, 0xff" % (s.U, Fa + 2))
    e("s_bfe_u32 s%d, s%d, 0x4000c" % (s.inc, Fa + 2))
    e("s_and_b32 s%d, s%d, 0xfffff" % (s.reg, Fa + 4))
    e("s_bfe_u32 s%d, s%d, 0x80010" % (s.t0, Fa + 2))
    e("s_sub_u32 s%d, s%d, 1" % (s.t0, s.t0))
    e("v_lshrrev_b32 v%d, 5, v%d" % (v.t0, L))
    e("v_lshlrev_b32 v%d, 2, v%d" % (v.t0, v.t0))
    e("v_sub_u32 v%d, s%d, v%d" % (v.t0, s.t0, v.t0))
    e("v_mov_b32 v%d, 0xff800000" % v.t1)
    for r in range(16):
        cst = 8 * (r // 4) + r % 4
        e("v_subrev_u32 v%d, %d, v%d" % (v.B + r, cst, v.t0))
        e("v_ashrrev_i32 v%d, 31, v%d" % (v.B + r, v.B + r))
        e("v_and_b32 v%d, v%d, v%d" % (v.B + r, v.t1, v.B + r))
    e("s_bfe_u32 s%d, s%d, 0x20014" % (s.t0, Fa + 4))
    e("s_lshl_b32 s%d, s%d, 10" % (s.t0, s.t0))
    e("s_bfe_u32 s%d, s%d, 0x10016" % (s.t1, Fa + 4))
    e("s_lshl_b32 s%d, s%d, 15" % (s.t1, s.t1))
    e("s_add_u32 s%d, s%d, s%d" % (s.t0, s.t0, s.t1))
    e("s_add_u32 s%d, s%d, %d" % (s.koff, s.t0, QBASE))
    e("v_add_u32 v%d, s%d, v%d" % (v.t2, s.koff, v.ka0r))
    e("v_add_u32 v%d, s%d, v%d" % (v.t3, s.koff, v.ka1r))
    e("s_cmp_lg_u32 s%d, 1" % s.t3)
    e("s_cselect_b32 s%d, 1, 0" % s.m1)
    e("s_bfe_u32 s%d, s%d, 0x2001a" % (s.t0, Fa + 4))
    e("s_lshl_b32 s%d, s%d, 15" % (s.astep, s.t0))
    e("s_bfe_u32 s%d, s%d, 0x10019" % (s.t2, Fa + 4))
    e("s_bfe_u32 s%d, s%d, 0x10018" % (s.t0, Fa + 4))
    e("s_lshl_b32 s%d, s%d, 10" % (s.t0, s.t0))
    e("s_mul_i32 s%d, s%d, s%d" % (s.t1, s.t0, s.m1))
    e("s_sub_u32 s%d, s%d, s%d" % (s.t0, s.t0, s.t1))
    e("s_lshl_b32 s%d, s%d, 15" % (s.voff, s.t2))
    e("s_add_u32 s%d, s%d, s%d" % (s.koff, s.voff, s.t0))
    e("s_add_u32 s%d, s%d, 0x8000" % (s.voff, s.voff))
    e("v_add_u32 v%d, s%d, v%d" % (v.ka0r, s.t1, v.ka0r))
    e("v_add_u32 v%d, s%d, v%d" % (v.ka1r, s.t1, v.ka1r))
    e("s_bfe_u32 s%d, s%d, 0x2001c" % (s.t0, Fa + 2))
    for j in (3, 2, 1, 0):
        e("s_add_u32 s%d, s%d, %d" % (s.col, s.t0, j))
        e("s_and_b32 s%d, s%d, 3" % (s.col, s.col))
        e("s_lshl_b32 s%d, s%d, 8" % (s.col, s.col))
        e("s_add_u32 s%d, s%d, s%d" % (s.col, s.col, s.t1))
        e("v_add_u32 v%d, s%d, v%d" % (v.var + j, s.col, v.var))
    emit(vaddr() + kaddr())
    e("s_and_b32 s%d, s%d, 0xff" % (s.t0, Fa + 3))
    e("v_mov_b32 v%d, s%d" % (v.prg, s.t0))
    e("s_bfe_u32 s%d, s%d, 0x80010" % (s.need, Fa + 3))
    e("s_cmp_lt_u32 s%d, 4" % s.wave)
    e("s_cbranch_scc1 L_sig0")
    e(PRGW)
    lab("L_presig")
    emit((QH if QE == 0 else []) + chunk(1) + STEP_ADV)
    e("s_mov_b32 s%d, 4" % s.iss)
    stamp()
    e("s_cmp_eq_u32 s%d, 0" % s.t3)
    e("s_cbranch_scc1 L_hdone")
    emit(sync_call("L_head"))
    lab("L_sig0")
    e("s_bfe_u32 s%d, s%d, 0x80008" % (s.t0, Fa + 3))
    e("s_sub_u32 s%d, s%d, s%d" % (s.t0, s.t0, s.m1))
    e("s_lshl_b32 s%d, s%d, 2" % (s.t0, s.t0))
    e("s_add_u32 s%d, s%d, L_cnt-L_pc-4" % (s.t0, s.t0))
    e("v_mov_b32 v%d, s%d" % (v.fo, s.t0))
    e("s_lshl_b32 s%d, s%d, 8" % (s.t0, s.wave))
    e("s_add_u32 m0, s%d, %d" % (s.t0, PRGB))
    stamp()
    emit(poll_rdy())
    mark("sig0")
    stamp()
    lab("L_head")
    qr = [kread(t, v.Q).replace("v%d " % v.ka0, "v%d " % v.t2).replace("v%d " % v.ka1, "v%d " % v.t3) for t in range(8)]
    kr = [kread(t, v.KF) for t in range(8)]
    for t in range(7):
        emit([qr[t], kr[t]])
    e("s_add_u32 s%d, s%d, s%d" % (s.t0, s.koff, s.astep))
    e("s_mul_i32 s%d, s%d, s%d" % (s.koff, s.t0, s.m1))
    e("s_waitcnt lgkmcnt(12)")
    e(QK0)
    emit([qr[7], kr[7], PRGW])
    for t in range(1, 8):
        e("s_waitcnt lgkmcnt(%d)" % (15 - 2 * t + (1 if t >= 2 else 0)))
        e(qk(t))
        if t == 1:
            e(RDYR)
            emit(kaddr())
            emit(adv(s.koff))
        if t == 2:
            e("v_and_b32 v%d, 31, v%d" % (v.t2, L))
            e("v_lshlrev_b32 v%d, 12, v%d" % (v.t2, v.t2))
            e("v_sub_u32 v%d, s%d, v%d" % (v.t2, Fa + 1, v.t2))
            e("v_ashrrev_i32 v%d, 31, v%d" % (v.t2, v.t2))
            e("v_and_b32 v%d, 0xff800000, v%d" % (v.t2, v.t2))
        if t == 3:
            e("s_bfe_u32 s%d, s%d, 0x80008" % (s.t0, Fa + 3))
            e("v_mov_b32 v%d, s%d" % (v.prg, s.t0))
            e("s_mov_b32 s%d, s%d" % (s.need, Fa + 6))
    e("s_cmp_lt_u32 s%d, 4" % s.wave)
    e("s_waitcnt lgkmcnt(0)")
    e("s_cbranch_scc0 L_head2")
    emit(poll_rdy())
    emit(kr)
    emit(kaddr())
    lab("L_head2")
    e("s_lshr_b32 s%d, s%d, 24" % (s.need, Fa + 3))
    e("s_nop 7")
    e("v_max3_f32 v%d, v%d, v%d, v%d" % (v.t0, v.S, v.S + 1, v.S + 2))
    e("v_max3_f32 v%d, v%d, v%d, v%d" % (v.t1, v.S + 3, v.S + 4, v.S + 5))
    for r in range(6, 14, 4):
        e("v_max3_f32 v%d, v%d, v%d, v%d" % (v.t0, v.t0, v.S + r, v.S + r + 1))
        e("v_max3_f32 v%d, v%d, v%d, v%d" % (v.t1, v.t1, v.S + r + 2, v.S + r + 3))
    e("v_max3_f32 v%d, v%d, v%d, v%d" % (v.t0, v.t0, v.S + 14, v.S + 15))
    e("v_max_f32 v%d, v%d, v%d" % (v.t0, v.t0, v.t1))
    e("v_mov_b32 v%d, v%d" % (v.t1, v.t0))
    e(RDYR)
    e("s_nop 0")
    e("v_permlane32_swap_b32 v%d, v%d" % (v.t0, v.t1))
    e("s_nop 1")
    e("v_max_f32 v%d, v%d, v%d" % (v.t0, v.t0, v.t1))
    e("v_fmamk_f32 v%d, v%d, 0x%x, v%d" % (v.nmc, v.t0, f2u(-C_SCALE), v.t2))
    for r in range(16):
        e(F(r))
    emit([ex(i) for i in range(8)] + [add(i) for i in range(1, 7)] + [cvt(0), cvt(1), cvt(2)])
    e("s_cmp_lt_u32 s%d, 4" % s.wave)
    e("s_waitcnt lgkmcnt(0)")
    e("s_cbranch_scc0 L_hlp_in")
    stamp()
    emit(poll_rdy())
    mark("loop")
    stamp()
    e("s_cmp_eq_u32 s%d, 1" % s.m1)
    e("s_cbranch_scc1 L_odd_m")
    out.append(".p2align 4")
    body("even")
    e("s_cbranch_vccnz L_hnd_even")
    body("odd")
    e("s_cbranch_vccz L_even_m")
    emit(poll_rdy())
    e("s_cmp_le_u32 s%d, 1" % s.U)
    e("s_cbranch_scc1 L_ho1")
    e("s_cmp_eq_u32 s%d, 0" % s.m1)
    e("s_cbranch_scc0 L_odd_m")
    e("s_branch L_even_m")
    lab("L_ho1")
    e("s_cmp_eq_u32 s%d, 0" % s.U)
    e("s_cbranch_scc1 L_tail0")
    e("s_cmp_eq_u32 s%d, 0" % s.m1)
    e(QK0M)
    e("s_cbranch_scc1 L_even_a")
    e("s_branch L_odd_a")
    lab("L_hnd_even")
    emit(poll_rdy())
    e("s_cmp_gt_u32 s%d, 1" % s.U)
    e("s_cbranch_scc1 L_odd_m")
    e("s_cmp_eq_u32 s%d, 0" % s.U)
    e("s_cbranch_scc1 L_tailm")
    e(QK0M)
    e("s_branch L_odd_a")
    lab("L_hlp_in")
    e(PRGW)
    stamp()
    emit(sync_call())
    stamp()
    for t in range(8):
        e(kread(t, v.KF))
    emit(kaddr())
    e("s_waitcnt lgkmcnt(4)")
    e("s_branch L_hnd_hlp")
    body("hlp")
    lab("L_hnd_hlp")
    e("s_cmp_gt_u32 s%d, 1" % s.U)
    e("s_cbranch_scc1 L_hlp_m")
    e("s_cmp_eq_u32 s%d, 0" % s.U)
    e("s_cbranch_scc1 L_tail")
    e(QK0M)
    e("s_branch L_hlp_a")
    lab("L_tail0")
    e("s_cmp_eq_u32 s%d, 1" % s.m1)
    e("s_cbranch_scc1 L_tailm")
    e("v_add_u32 v%d, 0x400, v%d" % (v.va, v.va))
    lab("L_tailm")
    e("s_bitcmp1_b32 s%d, 31" % (Fa + 4))
    e("s_cbranch_scc1 L_tails")
    for j in range(1, 4):
        e("v_add_u32 v%d, %d, v%d" % (v.va + j, 256 * j, v.va))
    tw, tr0, oo, rl = v.ka1, v.va, v.ka1r, v.X + 2

    def lsum():
        return ["v_mov_b32 v%d, v%d" % (v.t0, v.l), "s_nop 1",
                "v_permlane32_swap_b32 v%d, v%d" % (v.l, v.t0), "s_nop 1",
                "v_add_f32 v%d, v%d, v%d" % (v.l, v.l, v.t0)]

    def st_addr():
        r = ["v_and_b32 v%d, 31, v%d" % (v.t0, L),
             "v_lshrrev_b32 v%d, 5, v%d" % (v.t1, L),
             "v_lshlrev_b32 v%d, 3, v%d" % (v.t1, v.t1),
             "v_and_b32 v%d, 7, v%d" % (v.t2, L),
             "v_lshl_add_u32 v%d, v%d, 4, v%d" % (v.t1, v.t2, v.t1),
             "v_lshl_add_u32 v%d, v%d, 7, v%d" % (v.t0, v.t0, v.t1),
             "v_add_u32 v%d, s%d, v%d" % (tw, s.reg, v.t0)]
        r += ["v_xor_b32 v%d, %d, v%d" % (v.E + c, c * 16, tw) for c in range(8)]
        r += ["v_lshrrev_b32 v%d, 3, v%d" % (v.t0, L),
              "v_xor_b32 v%d, v%d, v%d" % (v.t1, v.t2, v.t0),
              "v_lshlrev_b32 v%d, 4, v%d" % (v.t1, v.t1),
              "v_lshl_add_u32 v%d, v%d, 7, v%d" % (v.t1, v.t0, v.t1),
              "v_add_u32 v%d, s%d, v%d" % (tr0, s.reg, v.t1),
              "v_lshlrev_b32 v%d, 12, v%d" % (v.t0, v.t0),
              "v_lshl_add_u32 v%d, v%d, 4, v%d" % (oo, v.t2, v.t0)]
        return r

    def pack_q(bb, norm=True, pk=True):
        r = []
        for g in range(4):
            c = 4 * bb + g
            o = v.O + 4 * c
            d = v.S + 2 * c
            if norm and not pk:
                r += ["v_mul_f32 v%d, v%d, v%d" % (o + i, o + i, rl) for i in range(4)]
            elif norm:
                r += ["v_pk_mul_f32 %s, %s, %s op_sel_hi:[1,0]" % (vr(o + i, 2), vr(o + i, 2), vr(rl, 2)) for i in (0, 2)]
            r += ["v_cvt_pk_bf16_f32 v%d, v%d, v%d" % (d, o, o + 1),
                  "v_cvt_pk_bf16_f32 v%d, v%d, v%d" % (d + 1, o + 2, o + 3),
                  "ds_write_b64 v%d, %s" % (v.E + c % 8, vr(d, 2))]
        return r

    def rd_half(hh):
        return ["ds_read_b128 %s, v%d offset:%d" % (vr(v.KF + 16 * hh + 4 * k, 4), tr0, k * 1024) for k in range(4)]

    def st_one(hh, k):
        return ["buffer_store_dwordx4 %s, v%d, %s, s%d offen offset:%d %s" % (
                    vr(v.KF + 16 * hh + 4 * k, 4), oo, sr(s.so, 4), s.col + k if k < 3 else s.t1, 128 * hh,
                    STF if hh == 0 else OPT.get("st2", OPT.get("st", "sc1")).replace("+", " ").replace("none", ""))]

    sa = st_addr()
    cols = ["s_mov_b32 s%d, 0" % s.col, "s_mov_b32 s%d, 0x8000" % (s.col + 1),
            "s_mov_b32 s%d, 0x10000" % (s.col + 2), "s_mov_b32 s%d, 0x18000" % s.t1]
    RCP = "v_rcp_f32 v%d, v%d" % (rl, v.l)
    lab("L_tail")
    mark("tail")
    e("v_mov_b32 v%d, %d" % (v.prg, BIG))
    k = newret()
    vord = [0, 1, 8, 9, 2, 3, 10, 11, 4, 5, 12, 13, 6, 7, 14, 15]
    for i in vord[:12]:
        e(vread(i))
    emit([ex(8), add(7), cvt(3)] + [ex(i) for i in range(9, 16)])
    e("s_cmp_lt_u32 s%d, 4" % s.wave)
    e("s_cbranch_scc0 L_t1")
    e("s_waitcnt vmcnt(0)")
    lab("L_t1")
    for i in vord[12:]:
        e(vread(i))
    e(PRGW)
    emit([add(i) for i in range(8, 16)] + [CMP, cvt(4), "s_mov_b32 s%d, %d" % (s.ret, k), "s_cbranch_vccnz L_resc",
                                           "L_ret%d:" % k, cvt(5), cvt(6), cvt(7), LADD])
    e("s_cmp_lt_u32 s%d, 4" % s.wave)
    e("s_waitcnt lgkmcnt(0)")
    e("s_cbranch_scc0 L_htail")
    lab("L_tail2")
    p0 = pack_q(0, pk=False)
    emit([pv(0)] + lsum() + [RCP])
    emit([pv(4), cols[0]] + sa[0:7])
    emit([pv(1), cols[1]] + sa[7:15])
    emit([pv(5), cols[2]] + sa[15:])
    emit([pv(2), cols[3]] + p0[0:7])
    emit([pv(6)] + p0[7:14])
    emit([pv(3)] + p0[14:21])
    emit([pv(7)] + p0[21:])
    lab("L_tail3")
    stamp(5)
    if OPT.get("stadj"):
        emit(pack_q(1) + rd_half(0) + pack_q(2) + pack_q(3) + rd_half(1))
        for k in range(4):
            emit(["s_waitcnt lgkmcnt(%d)" % (3 - k)] + st_one(0, k) + st_one(1, k))
    else:
        emit(pack_q(1) + rd_half(0))
        p2 = pack_q(2)
        emit(p2[:10] + ["s_waitcnt lgkmcnt(5)"] + st_one(0, 0) + p2[10:] + ["s_waitcnt lgkmcnt(4)"] + st_one(0, 1))
        p3 = pack_q(3)
        emit(p3[:10] + st_one(0, 2) + p3[10:] + st_one(0, 3) + rd_half(1))
        stamp(4)
        for k in range(4):
            emit(["s_waitcnt lgkmcnt(%d)" % (3 - k)] + st_one(1, k))
    k = newret()
    ool.append(["L_tails:"] + [vread(i, 0, True) for i in range(8)]
               + ["v_mov_b32 v%d, %d" % (v.prg, BIG), add(7), "s_waitcnt vmcnt(0)", PRGW, CMP, cvt(3), "s_mov_b32 s%d, %d" % (s.ret, k), "s_cbranch_vccnz L_resc",
                  "L_ret%d:" % k, LADD] + lsum() + [RCP, "s_waitcnt lgkmcnt(1)",
                  pv(0), cols[0]] + sa[0:7] + [pv(1), cols[1]] + sa[7:15] + [pv(2), cols[2]] + sa[15:]
               + [pv(3), cols[3]] + pack_q(0) + ["s_branch L_tail3"])
    lab("L_fin")
    if SPIN:
        mark("st")
        e("s_waitcnt vmcnt(0)")
        mark("end")
        if SPIN == "glob":
            e("s_load_dwordx2 s[98:99], s[0:1], 40")
            e("s_not_b32 s%d, s%d" % (s.t0, s.ws))
            e("v_mov_b32 v%d, s%d" % (v.t1, s.t0))
            e("v_mov_b32 v%d, 0" % v.t0)
            e("s_waitcnt lgkmcnt(0)")
            e("s_cmp_lg_u32 s%d, 0" % s.wave)
            e("s_cbranch_scc1 L_g1")
            e("s_mov_b64 exec, 1")
            e("global_atomic_umax v%d, v%d, s[98:99]" % (v.t0, v.t1))
            e("s_mov_b64 exec, -1")
            lab("L_g1")
        e("s_sub_u32 s%d, s%d, s%d" % (s.t0, s.stp, s.ws))
        e("s_mul_i32 s%d, s%d, %s" % (s.t0, s.t0, OPT.get("amp", "2")))
        if OPT.get("rmask"):
            e("s_and_b32 s%d, s2, 15" % s.t1 if OPT.get("hsel") else "s_lshr_b32 s%d, s2, 4" % s.t1)
            e("s_lshr_b32 s%d, %s, s%d" % (s.t1, OPT["rmask"], s.t1))
            e("s_and_b32 s%d, s%d, 1" % (s.t1, s.t1))
            e("s_mul_i32 s%d, s%d, s%d" % (s.t0, s.t0, s.t1))
        e("s_add_u32 s%d, s%d, 3000" % (s.t0, s.t0))
        lab("L_spin")
        e("s_sleep 2")
        e("s_memrealtime s[%d:%d]" % (s.stp, s.stp + 1))
        e("s_waitcnt lgkmcnt(0)")
        e("s_sub_u32 s%d, s%d, s%d" % (s.t1, s.stp, s.ws))
        e("s_cmp_lt_u32 s%d, s%d" % (s.t1, s.t0))
        e("s_cbranch_scc1 L_spin")
        if SPIN == "glob":
            e("global_load_dword v%d, v%d, s[98:99] sc0 sc1" % (v.t1, v.t0))
            e("s_waitcnt vmcnt(0)")
            e("v_readfirstlane_b32 s%d, v%d" % (s.t2, v.t1))
            e("s_not_b32 s%d, s%d" % (s.t2, s.t2))
            lab("L_spin2")
            e("s_sleep 2")
            e("s_memrealtime s[%d:%d]" % (s.stp, s.stp + 1))
            e("s_waitcnt lgkmcnt(0)")
            e("s_sub_u32 s%d, s%d, s%d" % (s.t1, s.stp, s.t2))
            e("s_cmp_lt_u32 s%d, 4000" % s.t1)
            e("s_cbranch_scc1 L_spin2")
    if STAMPS:
        stamp(6)
        e("s_waitcnt vmcnt(0)")
        stamp(7)
        stamp(61, True)
        e("s_getreg_b32 s%d, hwreg(HW_REG_XCC_ID)" % s.stp)
        e("v_writelane_b32 v%d, s%d, 62" % (v.st, s.stp))
        e("s_lshl_b32 s%d, s2, 3" % s.t0)
        e("s_add_u32 s%d, s%d, s%d" % (s.t0, s.t0, s.wave))
        e("s_lshl_b32 s%d, s%d, 8" % (s.t0, s.t0))
        e("v_lshlrev_b32 v%d, 2, v%d" % (v.t0, v.lane))
        e("v_add_u32 v%d, s%d, v%d" % (v.t0, s.t0, v.t0))
        if OPT.get("dbg"):
            e("v_readlane_b32 s%d, v%d, 0" % (s.t0, v.st))
            e("v_readlane_b32 s%d, v%d, 61" % (s.t1, v.st))
            e("v_readlane_b32 s%d, v%d, 1" % (s.t2, v.st))
            e("s_not_b32 s%d, s%d" % (s.t3, s.t0))
            e("v_cmp_ne_u32 vcc, 0, v%d" % v.st)
            e("v_subrev_u32 v%d, s%d, v%d" % (v.t1, s.t2, v.st))
            e("s_nop 1")
            e("v_cndmask_b32 v%d, 0, v%d, vcc" % (v.t1, v.t1))
            e("v_writelane_b32 v%d, s%d, 0" % (v.t1, s.t3))
            e("v_writelane_b32 v%d, s%d, 1" % (v.t1, s.t1))
            e("v_writelane_b32 v%d, s%d, 15" % (v.t1, s.t0))
            e("v_lshlrev_b32 v%d, 2, v%d" % (v.t0, v.lane))
            e("s_cmp_lt_u32 s%d, 4" % s.wave)
            e("s_cselect_b32 s%d, 0xffff, 0x80ff" % s.t0 if False else "s_mov_b32 s%d, 0x80ff" % s.t0)
            e("s_cselect_b32 exec_lo, 0xffff, s%d" % s.t0)
            e("s_mov_b32 exec_hi, 0")
            e("global_atomic_umax v%d, v%d, %s" % (v.t0, v.t1, sr(s.ws, 2)))
        else:
            e("global_store_dword v%d, v%d, %s" % (v.t0, v.st, sr(s.ws, 2)))
    lab("L_end")
    e("s_endpgm")
    for blk in ool:
        emit(blk)
    lab("L_sync")
    e("s_setprio %s" % OPT.get("sprio", "0"))
    e("s_min_u32 s%d, s%d, s%d" % (s.t2, s.need, s.n))
    e("s_cmp_eq_u32 s%d, 0x20000" % s.stepb)
    e("s_cselect_b32 s%d, %s, %s" % (s.t3, OPT.get("lookd", "6"), OPT.get("look", "2")))
    e("s_add_u32 s%d, s%d, s%d" % (s.t3, s.t2, s.t3))
    e("s_min_u32 s%d, s%d, s%d" % (s.t3, s.t3, s.n))
    lab("L_svc")
    e("ds_read_b32 v%d, v%d" % (v.t1, v.pra))
    e(RDYR)
    e("s_sub_i32 s%d, s%d, 5" % (s.t1, s.iss))
    e("s_cmp_gt_u32 s%d, s%d" % (s.iss, s.t3))
    e("s_waitcnt lgkmcnt(0)")
    e("s_cbranch_scc0 L_svc1")
    e("v_cmp_ge_u32 vcc, s%d, v%d" % (s.t2, v.rdy))
    e("s_cbranch_vccz L_svcx")
    e("s_cmp_gt_u32 s%d, s%d" % (s.iss, s.n))
    e("s_cbranch_scc1 L_svcs")
    lab("L_svc1")
    e("v_cmp_gt_i32 vcc, s%d, v%d" % (s.t1, v.t1))
    e("s_bitcmp1_b32 s%d, 0" % s.iss)
    e("s_cbranch_scc1 L_svcB")
    e("s_cmp_lt_u32 s%d, 8" % s.iss)
    e("s_cselect_b32 s%d, -1, s%d" % (s.t1, N + 1))
    e("s_and_b32 s%d, s%d, vcc_lo" % (s.t1, s.t1))
    e("s_and_b32 s%d, s%d, 0xff" % (s.t1, s.t1))
    e("s_cbranch_scc1 L_svc2")
    e("s_add_u32 s%d, s%d, 1" % (s.iss, s.iss))
    e("s_waitcnt vmcnt(%s)" % OPT.get("cap", "10"))
    emit(chunk(0))
    e("s_branch L_svc")
    lab("L_svcB")
    e("s_and_b32 s%d, s%d, 0xff" % (s.t1, N + 3))
    e("s_cmp_gt_u32 s%d, s%d" % (s.iss, s.t1))
    e("s_cbranch_scc1 L_svcF")
    e("s_cbranch_vccnz L_svc2")
    e("s_waitcnt vmcnt(%s)" % OPT.get("cap", "10"))
    emit(chunk(1, flag=False))
    lab("L_svcF")
    e("s_add_u32 s%d, s%d, 1" % (s.iss, s.iss))
    emit(FLAG + STEP_ADV)
    e("s_branch L_svc")
    lab("L_svc2")
    e("v_cmp_ge_u32 vcc, s%d, v%d" % (s.t2, v.rdy))
    e("s_cbranch_vccz L_svcx")
    lab("L_svcs")
    emit(spin(OPT.get("slp", "2")))
    e("s_branch L_svc")
    lab("L_svcx")
    e("s_setprio %s" % OPT.get("hprio", "3"))
    SRET_AT = len(out)
    lab("L_htail")
    e("s_mov_b32 s%d, s%d" % (s.need, s.n))
    e("s_bitcmp0_b32 s%d, 24" % (Fa + 2))
    e("s_cbranch_scc1 L_htail2")
    emit(sync_call("L_tail2"))
    lab("L_htail2")
    for i in range(8):
        e(pv(i))
    lab("L_hdone")
    e("s_mov_b32 s%d, s%d" % (s.need, s.n))
    emit(sync_call())
    e("s_sub_u32 s%d, s%d, 1" % (s.t2, s.n))
    e("s_bfe_u32 s%d, s%d, 0x40018" % (s.n, Fa + 2))
    e("s_cbranch_scc0 L_fin")
    e("s_setprio %s" % OPT.get("eprio", "0"))
    e("s_branch L_pe1")
    lab("L_pe0")
    emit(spin(OPT.get("slp", "2")))
    lab("L_pe1")
    e("ds_read_b32 v%d, v%d" % (v.t1, v.pra))
    e("s_waitcnt lgkmcnt(0)")
    e("v_cmp_gt_u32 vcc, s%d, v%d" % (s.t2, v.t1))
    e("s_cbranch_vccnz L_pe0")
    stamp(5)
    l16, l8, xa, cnt = v.ka0, v.ka0r, v.var, v.var + 1
    emit(lsum())
    e("v_lshlrev_b32 v%d, 4, v%d" % (l16, L))
    e("v_lshlrev_b32 v%d, 3, v%d" % (l8, L))
    e("s_lshl_b32 s%d, s%d, 9" % (s.t0, s.wave))
    e("s_add_u32 s%d, s%d, %d" % (s.t0, s.t0, MLBASE - 2048))
    e("v_add_u32 v%d, s%d, v%d" % (xa, s.t0, l8))
    e("ds_write_b64 v%d, %s" % (xa, vr(v.nmc, 2)))
    e("s_cmp_eq_u32 s%d, 2" % s.n)
    e("s_cbranch_scc1 L_sd2")
    for j in (1, 2, 3):
        if j == 2:
            lab("L_sd2")
        e("s_and_b32 s%d, s%d, 0xffffff" % (s.t0, Fa + 4 + j))
        e("v_add_u32 v%d, s%d, v%d" % (xa, s.t0, l16))
        for k in range(4):
            e("ds_write_b128 v%d, %s offset:%d" % (xa, vr(v.O + 16 * j + 4 * k, 4), k * 1024))
    e("s_lshr_b32 s%d, s%d, 30" % (s.t0, Fa + 2))
    e("s_lshl_b32 s%d, s%d, 2" % (s.t0, s.t0))
    e("s_add_u32 s%d, s%d, %d" % (s.t0, s.t0, CNTB))
    e("v_mov_b32 v%d, s%d" % (cnt, s.t0))
    e("v_mov_b32 v%d, 1" % v.t3)
    e("s_mov_b64 exec, 1")
    e("ds_add_u32 v%d, v%d" % (cnt, v.t3))
    e("s_mov_b64 exec, -1")
    emit(st_addr())
    e("v_add_u32 v%d, s%d, v%d" % (xa, s.reg, l16))
    for j in range(3):
        e("s_lshr_b32 s%d, s%d, 24" % (s.t0, Fa + 5 + j))
        e("s_lshl_b32 s%d, s%d, 9" % (s.t0, s.t0))
        e("s_add_u32 s%d, s%d, %d" % (s.t0, s.t0, MLBASE))
        e("v_add_u32 v%d, s%d, v%d" % (v.P + j, s.t0, l8))
    e("s_branch L_poll1")
    lab("L_poll")
    emit(spin())
    lab("L_poll1")
    e("ds_read_b32 v%d, v%d" % (v.t3, cnt))
    e("s_waitcnt lgkmcnt(0)")
    e("v_cmp_ne_u32 vcc, s%d, v%d" % (s.n, v.t3))
    e("s_cbranch_vccnz L_poll")
    stamp(4)
    for j in range(3):
        e("ds_read_b64 %s, v%d" % (vr(v.X + 2 * j, 2), v.P + j))
    for k in range(12):
        e("ds_read_b128 %s, v%d offset:%d" % (vr(v.KF + 16 + 4 * k, 4), xa, k * 1024))
    RX = v.KF + 16
    f0, f1, f2, f3 = v.X + 8, v.X + 9, v.X + 10, v.X + 11
    e("s_bfe_u32 s%d, s%d, 0x2001c" % (s.col, Fa + 2))
    e("s_lshl_b32 s%d, s%d, 6" % (s.col, s.col))
    e("s_add_u32 s%d, s%d, 0x8000" % (s.col + 1, s.col))
    e("s_add_u32 s%d, s%d, 0x10000" % (s.col + 2, s.col))
    e("s_add_u32 s%d, s%d, 0x18000" % (s.t1, s.col))
    e("s_waitcnt lgkmcnt(12)")
    e("v_min3_f32 v%d, v%d, v%d, v%d" % (v.t3, v.nmc, v.X, v.X + 2))
    e("v_min_f32 v%d, v%d, v%d" % (v.t3, v.t3, v.X + 4))
    e("v_sub_f32 v%d, v%d, v%d" % (f0, v.t3, v.nmc))
    for j, f in enumerate((f1, f2, f3)):
        e("v_sub_f32 v%d, v%d, v%d" % (f, v.t3, v.X + 2 * j))
    for f in (f0, f1, f2, f3):
        e("v_exp_f32 v%d, v%d" % (f, f))
    e("v_mul_f32 v%d, v%d, v%d" % (v.l, v.l, f0))
    e("v_fmac_f32 v%d, v%d, v%d" % (v.l, v.X + 1, f1))
    e("s_cmp_eq_u32 s%d, 2" % s.n)
    e("s_cbranch_scc1 L_mg2")
    e("v_fmac_f32 v%d, v%d, v%d" % (v.l, v.X + 3, f2))
    e("v_fmac_f32 v%d, v%d, v%d" % (v.l, v.X + 5, f3))
    e("v_rcp_f32 v%d, v%d" % (v.t3, v.l))
    e("v_and_b32 v%d, 4, v%d" % (v.t0, L))
    e("v_lshl_add_u32 v%d, v%d, 28, v%d" % (oo, v.t0, oo))
    for f in (f0, f1, f2, f3):
        e("v_mul_f32 v%d, v%d, v%d" % (f, f, v.t3))
    for i in range(16):
        e("v_mul_f32 v%d, v%d, v%d" % (v.O + i, v.O + i, f0))
    for j, f in enumerate((f1, f2, f3)):
        e("s_waitcnt lgkmcnt(%d)" % (8 - 4 * j))
        for i in range(16):
            e("v_fmac_f32 v%d, v%d, v%d" % (v.O + i, RX + 16 * j + i, f))
    e("s_branch L_mg3")
    lab("L_mg2")
    e("v_rcp_f32 v%d, v%d" % (v.t3, v.l))
    e("s_nop 0")
    for f in (f0, f1):
        e("v_mul_f32 v%d, v%d, v%d" % (f, f, v.t3))
    for i in range(32):
        e("v_mul_f32 v%d, v%d, v%d" % (v.O + i, v.O + i, f0))
    e("s_waitcnt lgkmcnt(0)")
    for i in range(32):
        e("v_fmac_f32 v%d, v%d, v%d" % (v.O + i, RX + i, f1))
    emit(pack_q(1, False))
    lab("L_mg3")
    emit(pack_q(0, False) + rd_half(0))
    for k in range(4):
        emit(["s_waitcnt lgkmcnt(%d)" % (3 - k)] + st_one(0, k))
    e("s_branch L_fin")
    lab("L_resc")
    e("v_max3_f32 v%d, v%d, v%d, v%d" % (v.t0, v.X, v.X + 1, v.X + 2))
    for r in range(3, 15, 2):
        e("v_max3_f32 v%d, v%d, v%d, v%d" % (v.t0, v.t0, v.X + r, v.X + r + 1))
    e("v_max3_f32 v%d, v%d, v%d, 0" % (v.t0, v.t0, v.X + 15))
    e("v_mov_b32 v%d, v%d" % (v.t1, v.t0))
    e("s_nop 1")
    e("v_permlane32_swap_b32 v%d, v%d" % (v.t0, v.t1))
    e("s_nop 1")
    e("v_max_f32 v%d, v%d, v%d" % (v.t0, v.t0, v.t1))
    e("v_exp_f32 v%d, -v%d" % (v.t1, v.t0))
    e("v_sub_f32 v%d, v%d, v%d" % (v.nmc, v.nmc, v.t0))
    for r in range(16):
        e("v_sub_f32 v%d, v%d, v%d" % (v.X + r, v.X + r, v.t0))
    e("v_mul_f32 v%d, v%d, v%d" % (v.l, v.l, v.t1))
    for i in range(64):
        e("v_mul_f32 v%d, v%d, v%d" % (v.O + i, v.O + i, v.t1))
    emit(soft_half_plain(0))
    emit(soft_half_plain(1))
    for k, r in enumerate(rets[:-1]):
        e("s_cmp_eq_u32 s%d, %d" % (s.ret, k))
        e("s_cbranch_scc1 %s" % r)
    e("s_branch %s" % rets[-1])
    rl_ = []
    order = [2, 1, 0, 3, 4]
    assert len(srets) == len(order)
    for k in order[:-1]:
        rl_ += ["    s_cmp_eq_u32 s%d, %d" % (s.sret, k), "    s_cbranch_scc1 %s" % srets[k]]
    rl_ += ["    s_branch %s" % srets[order[-1]]]
    out[SRET_AT:SRET_AT] = rl_
    out.append(".p2align 6")
    out.append(".type L_near,@object")
    lab("L_near")
    for ent in near:
        out.append("    .long " + ", ".join("0x%x" % x for x in ent))
    lab("L_far")
    for ent in far:
        out.append("    .long " + ", ".join("0x%x" % x for x in ent))
    lab("L_cnt")
    out.append("    .long " + ", ".join(str(i) for i in range(32)))
    out.append(".size L_near, .-L_near")
    lab("L_codeend")
    out.append("    .fill 512, 4, 0xbf800000")
    out.append('.section .rodata,"a"')
    out.append(".p2align 6")
    out.append(".amdhsa_kernel " + K)
    out.append("  .amdhsa_next_free_vgpr %d" % NV)
    out.append("  .amdhsa_next_free_sgpr %d" % NS)
    out.append("  .amdhsa_accum_offset %d" % NV)
    out.append("  .amdhsa_group_segment_fixed_size 0")
    out.append("  .amdhsa_kernarg_size 56")
    out.append("  .amdhsa_user_sgpr_count 2")
    out.append("  .amdhsa_user_sgpr_kernarg_segment_ptr 1")
    out.append("  .amdhsa_system_sgpr_workgroup_id_x 1")
    out.append(".end_amdhsa_kernel")
    txt = "\n".join(out) + "\n"
    txt = txt.replace("PFSTRIDE", OPT.get("pf", "32"))
    import subprocess, tempfile, os
    tmp = tempfile.mkdtemp()
    open(tmp + "/a.s", "w").write(txt.replace("offset:L_near-L_pc", "offset:0x100").replace("offset:L_far-L_pc", "offset:0x100"))
    subprocess.run(["clang", "-x", "assembler", "-target", "amdgcn-amd-amdhsa", "-mcpu=gfx950", "-c", tmp + "/a.s", "-o", tmp + "/a.o"], check=True)
    sy = {}
    for ln in subprocess.run(["llvm-objdump", "-t", tmp + "/a.o"], capture_output=True, text=True).stdout.splitlines():
        p = ln.split()
        if len(p) >= 5 and p[-1].startswith("L_"):
            sy[p[-1]] = int(p[0], 16)
    assert sy["L_codeend"] - sy["L_pc"] <= 512 * int(OPT.get("pf", "32")) + 128 or STAMPS or SPIN, hex(sy["L_codeend"])
    assert sy["L_codeend"] + 2048 - sy["L_pc"] >= 512 * int(OPT.get("pf", "32"))
    for t in ("L_near", "L_far"):
        txt = txt.replace("offset:%s-L_pc" % t, "offset:0x%x" % (sy[t] - sy["L_pc"]))
        txt = txt.replace(t + ":\n", t + ":\n.if (%s-L_pc) != 0x%x\n.error \"table offset\"\n.endif\n" % (t, sy[t] - sy["L_pc"])) if False else txt
    return txt


if __name__ == "__main__":
    args = [a for a in sys.argv[1:] if a.endswith(".s")]
    path = args[0] if args else "cdna_kernels/%s.s" % NAME
    open(path, "w").write(gen())
    print("wrote", path)
```

```python
import sys, struct, math

NAME = "standalone__varlen_attn_packed__ragged"
CU = [0, 289, 520, 939, 1289, 1402, 1666, 1973, 2275]
LEN = [CU[i + 1] - CU[i] for i in range(8)]
T_TOT = 2275
ROWB = 4096
TENSOR_BYTES = T_TOT * ROWB

OPT = {}
for a in sys.argv[1:]:
    if a.startswith("--"):
        k, _, val = a[2:].partition("=")
        OPT[k] = val if val else "1"
STAMPS = "stamps" in OPT or "lite" in OPT
LITE = "lite" in OPT
LDF_Q = OPT.get("ldq", "none").replace("+", " ").replace("none", "")
LDF_K = OPT.get("ldk", "none").replace("+", " ").replace("none", "")
STF = OPT.get("st", "sc1").replace("+", " ").replace("none", "")
FLY = int(OPT.get("fly", "4"))

HEADER = """; Kernarg layout for this problem (56 bytes, ptrs only, base s[0:1]):
;   offset   0: d_in[0] q  shape=(2275, 16, 128) dtype=bfloat16 strides=(4096, 256, 2) contiguous=True
;   offset   8: d_in[1] k  shape=(2275, 16, 128) dtype=bfloat16 strides=(4096, 256, 2) contiguous=True
;   offset  16: d_in[2] v  shape=(2275, 16, 128) dtype=bfloat16 strides=(4096, 256, 2) contiguous=True
;   offset  24: d_in[3] cu  shape=(9,) dtype=int32 strides=(4,) contiguous=True
;   offset  32: d_out     shape=(2275, 16, 128) dtype=bfloat16 (2 bytes/elem)
"""


def f2u(x):
    return struct.unpack("<I", struct.pack("<f", x))[0]


def cdiv(a, b):
    return (a + b - 1) // b


LDS_TOTAL = 163840
QBASE = 98304
XTRA = 131072
MLBASE = XTRA + 16384
PRGB = XTRA + 7 * 4096 + 2048
RDYB = XTRA + 6 * 4096 + 3072
CNTB = XTRA + 6 * 4096 + 2048
BIG = 0x4000

ROLES = [
    ("dual", (1, 6, 2), (4, 0, 4)),
    (5, 0, 6),
    (3, 0, 5), (3, 5, 5),
    ("dual", (3, 10, 1), (5, 6, 3)),
    (1, 0, 6),
    (6, 0, 5), (6, 5, 5),
    (7, 0, 5), (7, 5, 5), (0, 0, 5), (0, 5, 5),
    (2, 0, 4), (2, 4, 4), (2, 8, 3), (2, 11, 3),
]
QL = int(OPT.get("ql", "4"))
QLC = int(OPT.get("qlc", "3"))
QE = int(OPT.get("qe", "0"))


def nrec(rows):
    return (rows - 1) * ROWB + 256 if rows > 0 else 0


def build_tables():
    near, far, desc = [], [], []
    for ri, role in enumerate(ROLES):
        W = [None] * 8
        groups = []
        if role[0] == "dual":
            (sa, ta, na), (sb, tb, nb) = role[1], role[2]
            rowA, lenA, rowB, lenB, step = CU[sa], LEN[sa], CU[sb], LEN[sb], 32
            n_it = max(cdiv(lenA, 32), cdiv(lenB, 32))
            tiles = [(sa, ta + i, 0) for i in range(na)] + [(sb, tb + i, 1) for i in range(nb)]
            nq = len(tiles)
            for i in range(4):
                sq, tl, st = tiles[i]
                W[i] = dict(seq=sq, tile=tl, ql=i, type=2, stream=st, its=list(range(cdiv(LEN[sq], 32))), hastail=1)
            for i in range(4, nq):
                sq, tl, st = tiles[i]
                nb_ = cdiv(LEN[sq], 32)
                W[i + 2] = dict(seq=sq, tile=tl, ql=i, type=3, stream=st, its=list(range(nb_)), hastail=1,
                                G=1, reg=XTRA + 4096 * i)
        else:
            sa, t0, nq = role
            rowA, lenA, rowB, lenB, step = CU[sa], LEN[sa], CU[sa] + 32, LEN[sa] - 32, 64
            nkv = cdiv(lenA, 32)
            n_it = cdiv(nkv, 2)
            tiles = [(sa, t0 + i, 0) for i in range(nq)]
            for i in range(min(nq, 4)):
                W[i] = dict(seq=sa, tile=t0 + i, ql=i, type=1, stream=0, its=list(range(nkv)), hastail=1)
            nh = 4 // (nq - 4) if nq > 4 else 0
            for i in range(4, nq):
                ws = [4, 5, 6, 7] if nh == 4 else [4 + (i - 4), 6 + (i - 4)]
                for k, w in enumerate(ws):
                    blocks = [p for p in range(nkv) if p % nh == k]
                    W[w] = dict(seq=sa, tile=t0 + i, ql=i, type=3, stream=k % 2, its=[p // 2 for p in blocks],
                                hastail=int((nkv - 1) in blocks))
                groups.append(ws)
        qrows = [CU[sq] + 32 * tl for sq, tl, _ in tiles] + [0xfff] * (6 - nq)
        qrows = [r | (0x1000 if i < nq and tiles[i][2] else 0) for i, r in enumerate(qrows)]
        maskA = sum(1 << i for i, w in enumerate(W) if w and (w["type"] == 1 or w["stream"] == 0 or i < 4 and role[0] != "dual"))
        lastB = 2 * cdiv(lenB, step) + 1
        near.append([rowA * ROWB, nrec(lenA) | maskA, rowB * ROWB, nrec(lenB) | lastB, step * ROWB | (2 * n_it + 1),
                     qrows[0] | qrows[1] << 16, qrows[2] | qrows[3] << 16, qrows[4] | qrows[5] << 16])
        areas = [((n_it + 1) % 4) * 32768, ((n_it + 2) % 4) * 32768]
        recv = [areas[0], areas[0] + 12288, areas[1], areas[1] + 12288]
        for i in range(4):
            if W[i]:
                W[i]["reg"] = XTRA + 4096 * i
        for gi, g in enumerate(groups):
            G = len(g)
            for k, w in enumerate(g):
                W[w]["reg"] = recv[w - 4]
                W[w]["G"], W[w]["k"], W[w]["gi"] = G, k, gi
                if G == 4:
                    W[w]["send"] = [recv[g[(j + k) % 4] - 4] + (j - 1) * 4096 for j in (1, 2, 3)]
                    W[w]["src"] = [g[(k - j) % 4] for j in (1, 2, 3)]
                else:
                    o = g[1 - k]
                    W[w]["send"] = [0, recv[o - 4], recv[o - 4] + 4096]
                    W[w]["src"] = [o, o, o]
        for wi in range(8):
            w = W[wi]
            desc.append(w)
            if w is None:
                far.append([0] * 8)
                continue
            sq, its, typ, sc = w["seq"], w["its"], w["type"], w["stream"]
            tail = LEN[sq] % 32
            orow = CU[sq] + 32 * w["tile"]
            onr = min(32, CU[sq + 1] - orow)
            assert onr > 0 and tail > 0
            U = len(its) - 1
            a0, st = its[0], its[1] - its[0]
            assert all(its[i] == a0 + st * i for i in range(len(its))) and st <= 2 and a0 <= 1 and U >= 1
            if typ == 1:
                inc, prg0, prg1, need1, need2 = 1, 2, 4, 0, 2
            elif typ == 2:
                inc, prg0, prg1, need1, need2 = 2, 2, 4 + sc, sc, 4 + sc
            else:
                inc, prg0, prg1, need1, need2 = 2 * st, 2 * a0 + sc + 2, 2 * (a0 + 1) + sc + 2, max(QE if QE else 3, 2 * a0 + sc), 2 * (a0 + st) + sc
            needk = max(need1 + 2 * (typ == 2), 1)
            if typ != 3 and wi >= QL:
                need1 = max(need1, QLC)
            w.update(needk=needk)
            w.update(U=U, a0=a0, st=st, inc=inc, prg0=prg0, prg1=prg1, need1=need1, need2=need2, n_it=n_it)
            hm = 0
            if typ != 3:
                nlast = 2 * n_it + 1
                pub = prg0
                w["pubs"] = []
                for b in range(U):
                    val = prg1 + inc * (b + 1)
                    want = pub < nlast - 5 and (typ == 2 or b % 2 == 1 or OPT.get("puball"))
                    if groups and pub < nlast - 1 <= val:
                        want = True
                    if typ == 2 or U - 1 - b <= 1:
                        hm |= 1 << (U - 1 - b)
                    if want and OPT.get("nodpub"):
                        hm |= 0x10001 << (U - 1 - b)
                        pub = val
                        w["pubs"].append(b)
            G, k, gi = w.get("G", 0), w.get("k", 0), w.get("gi", 0)
            rot = k * (4 // G) if G > 1 else 0
            ent = [orow * ROWB, nrec(onr),
                   U | typ << 8 | inc << 12 | (tail if w["hastail"] else 32) << 16 | G << 24 | rot << 28 | gi << 30,
                   prg0 | prg1 << 8 | need1 << 16 | need2 << 24,
                   w["reg"] | w["ql"] << 20 | (1 - sc) << 24 | a0 << 25 | st << 26 | int(typ != 3 and tail <= 16 and not OPT.get("noshort")) << 31]
            if G > 1:
                ent += [w["send"][j] | ((w["src"][j] - 4) << 24) for j in range(3)]
            if typ != 3:
                ent += [hm, needk]
            ent += [0] * (8 - len(ent))
            far.append(ent)
    return near, far, desc


class R:
    pass


v = R()
v.kd0, v.kd1, v.vd0, v.vd1 = 1, 2, 3, 4
v.ka0r, v.ka1r = 5, 6
v.ka0, v.ka1 = 7, 8
v.rdya, v.rdy = 9, 10
v.lane = 11
v.nmc, v.l = 12, 13
v.ps = 14
v.t0, v.t1, v.t2, v.t3 = 15, 16, 17, 18
v.pf = 19
v.st = 20
v.prga, v.prg = 21, 22
v.fo = 23
v.pra = 0
v.Q = 24
v.O = 56
v.S = 120
v.B = 136
v.KF = 152
v.VF = 184
v.X = 216
v.E = 232
v.P = 240
v.var = 248
v.va = 252
NV = 256

s = R()
s.q, s.k, s.vv, s.cu, s.out = 4, 6, 8, 10, 12
s.near = 16
s.far = 24
s.kA, s.kB, s.vA, s.vB, s.sq, s.so = 32, 36, 40, 44, 48, 52
s.wave, s.hoff = 56, 57
s.n = 58
s.thr = 59
s.soff = 60
s.dslot = 61
s.U = 62
s.mu = 63
s.koff, s.voff = 64, 65
s.need, s.chk = 66, 67
s.t0, s.t1, s.t2, s.t3 = 68, 69, 70, 71
s.pc = 72
s.stp = 74
s.ws = 76
s.sti = 78
s.ret = 79
s.foff = 80
s.reg = 81
s.m1 = 82
s.lnd = 83
s.inc = 84
s.col = 85
s.astep = 88
s.sret = 89
s.guard = 90
s.iss = 91
s.d0, s.rdw = 92, 93
s.qea, s.qeb = 94, 95
s.stepb = 97
NS = 100

C_SCALE = (128 ** -0.5) * math.log2(math.e)
CL = "0x%x" % f2u(C_SCALE)
THRESH = 4096.0

out = []


def e(x):
    out.append("    " + x)


def lab(x):
    out.append(x + ":")


def vr(b, n):
    return "v[%d:%d]" % (b, b + n - 1)


def sr(b, n):
    return "s[%d:%d]" % (b, b + n - 1)


def emit(lst):
    for x in lst:
        if x is None:
            continue
        if x.endswith(":"):
            out.append(x)
        else:
            e(x)


def stamp_l(k=None, real=False):
    if not STAMPS or (LITE and k not in (7, 61)):
        return []
    if OPT.get("rt") and k is None and not real:
        return stamp_l(None, True) + stamp_l(None, "c")
    real = real is True
    r = ["%s s[%d:%d]" % ("s_memrealtime" if real else "s_memtime", s.stp, s.stp + 1), "s_waitcnt lgkmcnt(0)"]
    if k is None:
        r += ["s_mov_b32 s%d, m0" % (s.stp + 1), "s_mov_b32 m0, s%d" % s.sti, "s_nop 0",
              "v_writelane_b32 v%d, s%d, m0" % (v.st, s.stp),
              "s_add_u32 s%d, s%d, 1" % (s.sti, s.sti), "s_mov_b32 m0, s%d" % (s.stp + 1)]
    else:
        r += ["v_writelane_b32 v%d, s%d, %d" % (v.st, s.stp, k)]
    return r


def stamp(k=None, real=False):
    emit(stamp_l(k, real))


SPIN = OPT.get("spin")


def mark(name):
    if SPIN == name:
        e("s_memrealtime s[%d:%d]" % (s.stp, s.stp + 1))
        e("s_waitcnt lgkmcnt(0)")


def kread(t, dst, st=0):
    return "ds_read_b128 %s, v%d offset:%d" % (vr(dst + 4 * t, 4), v.ka1 if t % 2 else v.ka0,
                                               (t // 4) * 16384 + ((t // 2) % 2) * 256 + st * 1024)


def vread(i, st=0, one=False):
    t, bb, ss = i // 8, (i // 2) % 4, i % 2
    reg = v.VF + (t * 4 + bb) * 4 + ss * 2
    if one:
        return "ds_read_b64_tr_b16 %s, v%d offset:%d" % (vr(reg, 2), v.va, (4 * t + 2 * ss) * 4096 + st * 1024 + bb * 256)
    return "ds_read_b64_tr_b16 %s, v%d offset:%d" % (vr(reg, 2), v.va + bb, (4 * t + 2 * ss) * 4096 + st * 1024)


def ld(kv, col, half, so):
    srd = {("K", 0): s.kA, ("K", 1): s.kB, ("V", 0): s.vA, ("V", 1): s.vB}[(kv, col)]
    off = (2048 if kv == "V" else 0) + (1024 if col == 0 else 0)
    vo = {("K", 0): v.kd0, ("K", 1): v.kd1, ("V", 0): v.vd0, ("V", 1): v.vd1}[(kv, half)]
    return "buffer_load_dwordx4 v%d, %s, s%d offen %s%s lds" % (vo, sr(srd, 4), so, "offset:%d " % off if off else "", LDF_K)


STEP_ADV = ["s_add_u32 s%d, s%d, s%d" % (s.soff, s.soff, s.stepb),
            "s_add_u32 s%d, s%d, 0x8000" % (s.dslot, s.dslot),
            "s_and_b32 s%d, s%d, 0x1ffff" % (s.dslot, s.dslot)]


FLAG = ["s_mov_b32 m0, s%d" % s.rdw,
        "v_add_u32 v%d, 4, v%d" % (v.fo, v.fo),
        "global_load_lds_dword v%d, %s" % (v.fo, sr(s.pc, 2))]


def chunk(col, k_only=False, pace=0, flag=True):
    p = []
    if pace:
        p = ["s_sleep %d" % pace if pace < 16 else "s_nop %d" % (pace - 16)]
    r = []
    for half, m in ((0, "s_mov_b32 m0, s%d" % s.dslot), (1, "s_add_u32 m0, s%d, 0x4000" % s.dslot)):
        r += [m, "s_nop 0"]
        if not k_only:
            r += [ld("V", col, half, s.soff)] + p
        r += [ld("K", col, half, s.soff)] + p
    return r + (FLAG if flag else [])


def qk(t):
    return "v_mfma_f32_32x32x16_bf16 %s, %s, %s, %s" % (vr(v.S, 16), vr(v.KF + 4 * t, 4), vr(v.Q + 4 * t, 4), vr(v.S, 16))


def pv(i):
    t, bb = i // 4, i % 4
    return "v_mfma_f32_32x32x16_bf16 %s, %s, %s, %s" % (
        vr(v.O + 16 * bb, 16), vr(v.VF + (t * 4 + bb) * 4, 4), vr(v.P + 4 * t, 4), vr(v.O + 16 * bb, 16))


def F(r):
    return "v_fmamk_f32 v%d, v%d, %s, v%d" % (v.X + r, v.S + r, CL, v.nmc)


def ex(r):
    return "v_exp_f32 v%d, v%d" % (v.E + r % 8, v.X + r)


def add(r):
    if r == 0:
        return None
    if r == 1:
        return "v_add_f32 v%d, v%d, v%d" % (v.ps, v.E, v.E + 1)
    return "v_add_f32 v%d, v%d, v%d" % (v.ps, v.ps, v.E + r % 8)


def cvt(i):
    return "v_cvt_pk_bf16_f32 v%d, v%d, v%d" % (v.P + i, v.E + (2 * i) % 8, v.E + (2 * i + 1) % 8)


def soft_half_plain(h):
    r = [ex(8 * h + i) for i in range(8)]
    r += [x for x in (add(8 * h + i) for i in range(8)) if x]
    r += [cvt(4 * h + i) for i in range(4)]
    return r


CMP = "v_cmp_lt_f32 vcc, s%d, v%d" % (s.thr, v.ps)
LADD = "v_add_f32 v%d, v%d, v%d" % (v.l, v.l, v.ps)
PRGW = "ds_write_b32 v%d, v%d" % (v.prga, v.prg)
RDYR = "ds_read_b32 v%d, v%d" % (v.rdy, v.rdya)
PRGINC = "v_add_u32 v%d, s%d, v%d" % (v.prg, s.inc, v.prg)
NEEDINC = "s_add_u32 s%d, s%d, s%d" % (s.need, s.need, s.inc)
QK0 = "v_mfma_f32_32x32x16_bf16 %s, %s, %s, 0" % (vr(v.S, 16), vr(v.KF, 4), vr(v.Q, 4))
QK0M = "v_mfma_f32_32x32x16_bf16 %s, %s, %s, %s" % (vr(v.S, 16), vr(v.KF, 4), vr(v.Q, 4), vr(v.B, 16))
rets, srets = [], []


def newret():
    rets.append("L_ret%d" % len(rets))
    return len(rets) - 1


def kaddr():
    return ["v_add_u32 v%d, s%d, v%d" % (v.ka0, s.koff, v.ka0r),
            "v_add_u32 v%d, s%d, v%d" % (v.ka1, s.koff, v.ka1r)]


def vaddr():
    return ["v_add_u32 v%d, s%d, v%d" % (v.va + j, s.voff, v.var + j) for j in range(4)]


def adv(reg):
    return ["s_add_u32 s%d, s%d, s%d" % (reg, reg, s.astep), "s_and_b32 s%d, s%d, 0x1ffff" % (reg, reg)]


_sc = [0]


def svc_cap():
    r = ["s_waitcnt vmcnt(%s)" % OPT.get("cap", "10")]
    if OPT.get("cap0"):
        _sc[0] += 1
        r += ["s_and_b32 s%d, s%d, %s" % (s.t1, s.hoff, OPT.get("capm", "0x300")), "s_cbranch_scc1 L_sc%d" % _sc[0],
              "s_waitcnt vmcnt(%s)" % OPT["cap0"], "L_sc%d:" % _sc[0]]
    return r


def headmap():
    cm = OPT.get("cmap")
    if not cm:
        return ["s_and_b32 s%d, s2, 15" % s.t1, "s_lshl_b32 s%d, s%d, 8" % (s.hoff, s.t1)]
    tab = 0
    cls = [int(c) for c in cm]
    for i in range(16):
        x, hs = i & 7, i >> 3
        tab |= (cls[x >> 1] + 4 * (x & 1) + 8 * hs) << (4 * i)
    return ["s_lshl_b32 s%d, s2, 2" % s.t1,
            "s_lshr_b32 s%d, 0x%x, s%d" % (s.t1, tab & 0xffffffff, s.t1),
            "s_and_b32 s%d, s%d, 7" % (s.t1, s.t1),
            "s_and_b32 s%d, s2, 8" % s.hoff,
            "s_or_b32 s%d, s%d, s%d" % (s.t1, s.t1, s.hoff),
            "s_lshl_b32 s%d, s%d, 8" % (s.hoff, s.t1)]


def spin(n="1"):
    r = ["s_sleep %s" % n]
    if not OPT.get("nosafe"):
        r += ["s_sub_u32 s%d, s%d, 1" % (s.guard, s.guard), "s_cbranch_scc1 L_end"]
    return r


def sync_call(target=None):
    k = len(srets)
    srets.append(target or "L_sr%d" % k)
    return ["s_mov_b32 s%d, %d" % (s.sret, k), "s_branch L_sync"] + ([] if target else ["L_sr%d:" % k])


_pl = [0]


ool = []


def poll_rdy():
    _pl[0] += 1
    a, b = "L_pa%d" % _pl[0], "L_pb%d" % _pl[0]
    ool.append([a + ":"] + spin() + [RDYR, "s_waitcnt lgkmcnt(0)", "s_branch %s" % b])
    return ["s_min_u32 s%d, s%d, s%d" % (s.t2, s.need, s.n), b + ":",
            "v_cmp_ge_u32 vcc, s%d, v%d" % (s.t2, v.rdy), "s_cbranch_vccnz %s" % a]


def body(kind):
    odd, hlp = kind != "even", kind == "hlp"
    st = 0 if odd else 1
    V = lambda i: vread(i, st, not hlp)
    K = lambda t: kread(t, v.KF, st)
    W = lambda n: "s_waitcnt lgkmcnt(%d)" % n
    k = newret()
    q = [
        [NEEDINC, V(0), V(1), ex(8), add(7), cvt(3)],
        ["s_mov_b32 s%d, %d" % (s.ret, k), V(2), V(3), ex(9), ex(10)],
        [W(4), V(4), V(5), ex(11), add(8), add(9)],
        ["s_sub_u32 s%d, s%d, 1" % (s.U, s.U), V(6), V(7), ex(12), ex(13)],
        [None, V(8), V(9), ex(14), add(10), add(11)],
        [None, V(10), V(11), ex(15), add(12), add(13)],
        [W(4), V(12), V(13), add(14), add(15), CMP, cvt(4)],
        ["s_cbranch_vccnz L_resc", "L_ret%d:" % k, V(14), V(15), LADD, cvt(5), cvt(6), cvt(7)],
    ]
    p = [
        ["s_nop 0", K(0), K(1), K(2), F(0), F(1), F(2)],
        [None, K(3), ex(0), F(3), F(4), F(5)],
        [None, K(4), ex(1), F(6), F(7), F(8)],
        [W(5), K(5), ex(2), add(1), F(9), F(10)],
        [None, K(6), ex(3), add(2), cvt(0), F(11)],
        [None, K(7), ex(4), add(3), cvt(1), F(12)],
        [W(4), ex(5), ex(6), add(4), F(13)],
        [None, ex(7), add(5), add(6), cvt(2), F(14), F(15)],
    ]
    if odd:
        q[4][0], q[5][0] = adv(s.voff)
        p[4][0], p[5][0] = adv(s.koff)
        va, ka = vaddr(), kaddr()
        p[1].append(va[0])
        if hlp:
            p[3].append(va[1])
            p[4].append(va[2])
            p[5].append(va[3])
        p[6].append(ka[0])
        p[7].append(ka[1])
    if not hlp:
        p[0][0] = "s_min_u32 s%d, s%d, s%d" % (s.chk, s.need, s.n)
        p[1][0] = "s_bitcmp1_b32 s%d, s%d" % (s.far + 5, s.U)
        p[2][0] = "s_cselect_b32 s%d, -1, s%d" % (s.chk, s.chk)
        p[2][2:2] = [RDYR]
        p[6][0] = W(3)
        if odd and (not OPT.get("nodpub")):
            q[2].append("v_add_u32 v%d, 8, v%d" % (v.fo, v.fo))
            q[3][1:1] = ["global_load_lds_dword v%d, %s" % (v.fo, sr(s.pc, 2))]
        p[7][3:3] = ["v_cmp_ge_u32 vcc, s%d, v%d" % (s.chk, v.rdy)]
    else:
        q[1].append(PRGINC)
        q[7][4:4] = [PRGW]
        sc = sync_call()
        q[3][1:1] = [sc[0]]
        p[0][0:1] = stamp_l() + sc[1:] + stamp_l()
    lab("L_%s_m" % kind)
    e(QK0)
    lab("L_%s_a" % kind)
    emit(q[0])
    for t in range(1, 8):
        e(qk(t))
        emit(q[t])
    for i in range(8):
        e(pv(i))
        emit(p[i])
    if not hlp:
        stamp()


def gen():
    K = NAME + "_kernel"
    near, far, _ = build_tables()
    PACE = int(OPT.get("pace", "0"))
    out.append(HEADER + "; @launch grid=(256,1,1) block=(512,1,1) lds=%d" % LDS_TOTAL)
    out.append('.amdgcn_target "amdgcn-amd-amdhsa--gfx950"')
    out.append(".text")
    out.append(".globl " + K)
    out.append(".p2align 12")
    out.append(".p2align 8")
    out.append(".type %s,@function" % K)
    lab(K)
    L, N, Fa = v.lane, s.near, s.far
    if SPIN:
        e("s_memrealtime s[%d:%d]" % (s.ws, s.ws + 1))
        e("s_memrealtime s[%d:%d]" % (s.stp, s.stp + 1))
    if STAMPS:
        e("s_memrealtime s[%d:%d]" % (s.stp, s.stp + 1))
        e("s_memtime s[%d:%d]" % (s.ws, s.ws + 1))
    e("s_load_dwordx8 s[4:11], s[0:1], 0")
    e("s_getpc_b64 %s" % sr(s.pc, 2))
    lab("L_pc")
    e("s_lshr_b32 s%d, s2, 4" % s.foff)
    e("s_lshl_b32 s%d, s%d, 5" % (s.t1, s.foff))
    e("s_load_dwordx8 %s, %s, s%d offset:L_near-L_pc" % (sr(s.near, 8), sr(s.pc, 2), s.t1))
    e("v_mul_u32_u24 v%d, PFSTRIDE, v0" % v.t0)
    e("v_readfirstlane_b32 s%d, v0" % s.wave)
    e("global_load_dword v%d, v%d, %s" % (v.pf, v.t0, sr(s.pc, 2)))
    e("s_cmp_ge_u32 s%d, 16" % s.foff)
    e("s_cbranch_scc1 L_end")
    e("s_bitcmp0_b32 s%d, 8" % s.wave)
    e("s_cbranch_scc1 L_mainpro")
    e("v_bfe_u32 v%d, v0, 5, 2" % v.t0)
    e("v_and_b32 v%d, 3, v0" % v.t1)
    e("v_xor_b32 v%d, v%d, v%d" % (v.t1, v.t1, v.t0))
    e("v_and_or_b32 v%d, v0, 12, v%d" % (v.t0, v.t0))
    e("v_lshlrev_b32 v%d, 12, v%d" % (v.t0, v.t0))
    e("v_lshl_add_u32 v%d, v%d, 4, v%d" % (v.t0, v.t1, v.t0))
    e("v_and_b32 v%d, 16, v0" % v.t1)
    e("v_lshl_add_u32 v%d, v%d, 2, v%d" % (v.t0, v.t1, v.t0))
    e("v_bfe_u32 v%d, v0, 7, 1" % v.t1)
    e("v_lshl_add_u32 v%d, v%d, 16, v%d" % (v.kd0, v.t1, v.t0))
    e("v_add_u32 v%d, 0x80, v%d" % (v.kd1, v.kd0))
    emit(headmap())
    e("s_lshl_b32 s%d, s%d, 6" % (s.dslot, s.wave))
    e("s_and_b32 s%d, s%d, 0x3000" % (s.dslot, s.dslot))
    e("s_mov_b32 s%d, 0x20000" % (s.sq + 3))
    e("s_mov_b32 s%d, s%d" % (s.kA + 3, s.sq + 3))
    e("s_mov_b32 s%d, 0" % s.soff)
    if OPT.get("thr", "0") != "0":
        e("s_lshr_b32 vcc_lo, %s, s%d" % (OPT.get("thr", "0"), s.t1))
        if OPT.get("thrr"):
            e("s_lshr_b32 s%d, %s, s%d" % (s.t0, OPT["thrr"], s.foff))
            e("s_and_b32 vcc_lo, vcc_lo, s%d" % s.t0)
        if OPT.get("thro"):
            e("s_lshr_b32 s%d, %s, s%d" % (s.t0, OPT["thro"], s.foff))
            e("s_or_b32 vcc_lo, vcc_lo, s%d" % s.t0)
        e("s_and_b32 vcc_lo, vcc_lo, 1")
        e("s_mov_b32 vcc_hi, 0")
    e("s_add_u32 s%d, s%d, %d" % (s.d0, s.dslot, QBASE))
    e("s_waitcnt lgkmcnt(0)")
    mark("karg")
    THR = OPT.get("thr", "0")
    _th = [0]

    def throttle():
        if THR == "0":
            return []
        _th[0] += 1
        return ["s_cbranch_vccz L_th%d" % _th[0], "s_waitcnt vmcnt(%s)" % OPT.get("thn", "8"), "L_th%d:" % _th[0]]

    def qtile(i):
        w = N + 5 + i // 2
        r = ["s_bitcmp1_b32 s%d, %d" % (w, 12 + 16 * (i % 2)),
             "s_cselect_b32 s%d, s%d, s%d" % (s.sq + 2, s.qeb, s.qea),
             "s_bfe_u32 s%d, s%d, 0x%x" % (s.t0, w, 0xc0000 + 16 * (i % 2)),
             "s_add_u32 m0, s%d, %d" % (s.d0, (i // 4) * 32768 + (i % 4) * 1024),
             "s_lshl_b32 s%d, s%d, 12" % (s.t0, s.t0),
             "buffer_load_dwordx4 v%d, %s, s%d offen %s lds" % (v.kd0, sr(s.sq, 4), s.t0, LDF_Q),
             "s_add_u32 m0, m0, 0x4000", "s_nop 0",
             "buffer_load_dwordx4 v%d, %s, s%d offen %s lds" % (v.kd1, sr(s.sq, 4), s.t0, LDF_Q)]
        return r
    e("s_add_u32 s%d, s%d, s%d" % (s.qea, N + 0, N + 1))
    e("s_add_u32 s%d, s%d, s%d" % (s.qeb, N + 2, N + 3))
    e("s_add_u32 s%d, s%d, s%d" % (s.sq, s.q, s.hoff))
    e("s_addc_u32 s%d, s%d, 0" % (s.sq + 1, s.q + 1))
    emit(qtile(0))
    e("s_add_u32 s%d, s%d, s%d" % (N + 0, N + 0, s.hoff))
    e("s_add_u32 s%d, s%d, s%d" % (s.kA, s.k, N + 0))
    e("s_addc_u32 s%d, s%d, 0" % (s.kA + 1, s.k + 1))
    e("s_sub_u32 s%d, s%d, 1024" % (s.kA, s.kA))
    e("s_subb_u32 s%d, s%d, 0" % (s.kA + 1, s.kA + 1))
    e("s_add_u32 s%d, s%d, 1024" % (s.kA + 2, N + 1))
    emit(chunk(0, True, flag=False))
    for i in range(1, QL):
        emit((throttle() if i > 1 else []) + qtile(i))
    QLATE = sum((qtile(i) for i in range(QL, 4)), [])
    mark("iss")
    for b in (s.kB, s.vA, s.vB):
        e("s_mov_b32 s%d, s%d" % (b + 3, s.sq + 3))
    e("s_add_u32 s%d, s%d, s%d" % (N + 2, N + 2, s.hoff))
    e("s_add_u32 s%d, s%d, s%d" % (s.kB, s.k, N + 2))
    e("s_addc_u32 s%d, s%d, 0" % (s.kB + 1, s.k + 1))
    e("s_mov_b32 s%d, s%d" % (s.kB + 2, N + 3))
    e("s_and_b32 s%d, s%d, 0xfffff000" % (s.stepb, N + 4))
    e("s_lshr_b32 s%d, s%d, 4" % (s.rdw, s.dslot))
    e("s_add_u32 s%d, s%d, %d" % (s.rdw, s.rdw, RDYB))
    e("v_mov_b32 v%d, L_cnt-L_pc" % v.fo)
    for (srd, off, nr, d) in ((s.vA, N + 0, N + 1, 3072), (s.vB, N + 2, N + 3, 2048)):
        e("s_add_u32 s%d, s%d, %d" % (s.t0, s.stepb, d))
        e("s_add_u32 s%d, s%d, s%d" % (srd, s.vv, off))
        e("s_addc_u32 s%d, s%d, 0" % (srd + 1, s.vv + 1))
        e("s_sub_u32 s%d, s%d, s%d" % (srd, srd, s.t0))
        e("s_subb_u32 s%d, s%d, 0" % (srd + 1, srd + 1))
        e("s_add_u32 s%d, s%d, s%d" % (srd + 2, nr, s.t0))
    e("v_bfe_u32 v%d, v0, 2, 2" % v.t0)
    e("v_lshlrev_b32 v%d, 12, v%d" % (v.t0, v.t0))
    e("v_and_b32 v%d, 3, v0" % v.t1)
    e("v_lshl_add_u32 v%d, v%d, 4, v%d" % (v.t0, v.t1, v.t0))
    e("v_and_b32 v%d, 48, v0" % v.t1)
    e("v_lshl_add_u32 v%d, v%d, 2, v%d" % (v.t0, v.t1, v.t0))
    e("v_bfe_u32 v%d, v0, 6, 2" % v.t1)
    e("v_lshl_add_u32 v%d, v%d, 14, v%d" % (v.vd0, v.t1, v.t0))
    e("v_add_u32 v%d, 0x10000, v%d" % (v.vd1, v.vd0))
    e("s_setprio %s" % OPT.get("hprio", "3"))
    e("s_branch L_common")
    lab("L_mainpro")
    for b in (s.sq, s.kA, s.kB, s.vA, s.vB):
        e("s_mov_b64 %s, s[0:1]" % sr(b, 2))
        e("s_mov_b32 s%d, 0" % (b + 2))
        e("s_mov_b32 s%d, 0x20000" % (b + 3))
    for r in (v.kd0, v.kd1, v.vd0, v.vd1, v.fo):
        e("v_mov_b32 v%d, 0" % r)
    emit(headmap())
    lab("L_common")
    e("s_lshr_b32 s%d, s%d, 6" % (s.wave, s.wave))
    e("v_and_b32 v%d, 63, v0" % L)
    e("s_lshl3_add_u32 s%d, s%d, s%d" % (s.foff, s.foff, s.wave))
    e("s_lshl_b32 s%d, s%d, 5" % (s.foff, s.foff))
    e("v_and_b32 v%d, 7, v0" % v.t0)
    e("v_mul_u32_u24 v%d, 0x104, v%d" % (v.t0, v.t0))
    e("v_add_u32 v%d, %d, v%d" % (v.pra, PRGB, v.t0))
    e("s_lshl_b32 s%d, s%d, 8" % (s.t0, s.wave))
    e("s_add_u32 s%d, s%d, %d" % (s.t0, s.t0, PRGB - 4096))
    e("v_lshl_add_u32 v%d, v%d, 2, s%d" % (v.prga, L, s.t0))
    e("v_mov_b32 v%d, 0" % v.l)
    e("ds_write_b32 v%d, v%d" % (v.prga, v.l))
    e("ds_write_b32 v%d, v%d offset:4096" % (v.prga, v.l))
    e("v_add_u32 v%d, 0x1000, v%d" % (v.prga, v.prga))
    e("s_waitcnt lgkmcnt(0)")
    if STAMPS:
        e("v_mov_b32 v%d, 0" % v.st)
        e("s_mov_b32 s%d, 8" % s.sti)
        e("v_writelane_b32 v%d, s%d, 0" % (v.st, s.stp))
        e("v_writelane_b32 v%d, s%d, 1" % (v.st, s.ws))
        stamp(3)
        e("s_load_dwordx2 %s, s[0:1], 48" % sr(s.ws, 2))
    e("s_load_dwordx8 %s, %s, s%d offset:L_far-L_pc" % (sr(Fa, 8), sr(s.pc, 2), s.foff))
    e("s_load_dwordx2 s[12:13], s[0:1], 32")
    e("s_barrier")
    e("s_cmp_lt_u32 s%d, 4" % s.wave)
    e("s_cbranch_scc1 L_common2")
    QH = qtile(4) + qtile(5)
    emit(FLAG + throttle() + (QH if QE == 1 else []) + chunk(1, True) + STEP_ADV + throttle() + (QLATE if QLC == 2 else [])
         + (QH if QE == 2 else []) + chunk(0) + throttle() + (QLATE if QLC == 3 else []))
    lab("L_common2")
    e("v_bfe_u32 v%d, v%d, 4, 1" % (v.t0, L))
    e("v_lshlrev_b32 v%d, 13, v%d" % (v.t0, v.t0))
    e("v_bfe_u32 v%d, v%d, 1, 1" % (v.t1, L))
    e("v_lshl_add_u32 v%d, v%d, 12, v%d" % (v.t0, v.t1, v.t0))
    e("v_and_b32 v%d, 1, v%d" % (v.t1, L))
    e("v_lshl_add_u32 v%d, v%d, 9, v%d" % (v.t0, v.t1, v.t0))
    e("v_bfe_u32 v%d, v%d, 2, 2" % (v.t1, L))
    e("v_lshl_add_u32 v%d, v%d, 6, v%d" % (v.t0, v.t1, v.t0))
    e("v_lshrrev_b32 v%d, 5, v%d" % (v.t1, L))
    e("v_and_b32 v%d, 3, v%d" % (v.t2, L))
    e("v_xor_b32 v%d, v%d, v%d" % (v.t1, v.t1, v.t2))
    e("v_lshl_add_u32 v%d, v%d, 4, v%d" % (v.ka0r, v.t1, v.t0))
    e("v_xor_b32 v%d, 32, v%d" % (v.ka1r, v.ka0r))
    e("v_lshrrev_b32 v%d, 5, v%d" % (v.t0, L))
    e("v_lshlrev_b32 v%d, 12, v%d" % (v.t0, v.t0))
    e("v_bfe_u32 v%d, v%d, 2, 2" % (v.t1, L))
    e("v_lshl_add_u32 v%d, v%d, 6, v%d" % (v.t0, v.t1, v.t0))
    e("v_bfe_u32 v%d, v%d, 4, 1" % (v.t1, L))
    e("v_lshl_add_u32 v%d, v%d, 5, v%d" % (v.t0, v.t1, v.t0))
    e("v_lshl_add_u32 v%d, v%d, 3, v%d" % (v.t0, v.t2, v.t0))
    e("v_add_u32 v%d, 0x800, v%d" % (v.var, v.t0))
    e("s_mov_b32 s%d, 0x%x" % (s.thr, f2u(THRESH)))
    e("v_mul_u32_u24 v%d, 0x104, v%d" % (v.t1, v.t2))
    e("v_add_u32 v%d, %d, v%d" % (v.rdya, RDYB, v.t1))
    e("s_mov_b32 s%d, 0x8000" % s.guard)
    e("v_mov_b32 v%d, 0" % v.rdy)
    e("s_waitcnt lgkmcnt(0)")
    e("s_add_u32 s%d, s%d, s%d" % (s.t0, Fa + 0, s.hoff))
    e("s_add_u32 s%d, s%d, s%d" % (s.so, s.out, s.t0))
    e("s_addc_u32 s%d, s%d, 0" % (s.so + 1, s.out + 1))
    e("s_mov_b32 s%d, s%d" % (s.so + 2, Fa + 1))
    e("s_mov_b32 s%d, 0x20000" % (s.so + 3))
    e("s_and_b32 s%d, s%d, 0xff" % (s.n, N + 4))
    e("s_bfe_u32 s%d, s%d, 0x40008" % (s.t3, Fa + 2))
    e("s_cbranch_scc1 L_work")
    e("v_mov_b32 v%d, %d" % (v.prg, BIG))
    e(PRGW)
    e("s_cmp_lt_u32 s%d, 4" % s.wave)
    e("s_cbranch_scc1 L_fin")
    e("s_branch L_presig")
    lab("L_work")
    for r in range(0, 64, 2):
        e("v_pk_mov_b32 %s, 0, 0" % vr(v.O + r, 2))
    e("s_and_b32 s%d, s%d, 0xff" % (s.U, Fa + 2))
    e("s_bfe_u32 s%d, s%d, 0x4000c" % (s.inc, Fa + 2))
    e("s_and_b32 s%d, s%d, 0xfffff" % (s.reg, Fa + 4))
    e("s_bfe_u32 s%d, s%d, 0x80010" % (s.t0, Fa + 2))
    e("s_sub_u32 s%d, s%d, 1" % (s.t0, s.t0))
    e("v_lshrrev_b32 v%d, 5, v%d" % (v.t0, L))
    e("v_lshlrev_b32 v%d, 2, v%d" % (v.t0, v.t0))
    e("v_sub_u32 v%d, s%d, v%d" % (v.t0, s.t0, v.t0))
    e("v_mov_b32 v%d, 0xff800000" % v.t1)
    for r in range(16):
        cst = 8 * (r // 4) + r % 4
        e("v_subrev_u32 v%d, %d, v%d" % (v.B + r, cst, v.t0))
        e("v_ashrrev_i32 v%d, 31, v%d" % (v.B + r, v.B + r))
        e("v_and_b32 v%d, v%d, v%d" % (v.B + r, v.t1, v.B + r))
    e("s_bfe_u32 s%d, s%d, 0x20014" % (s.t0, Fa + 4))
    e("s_lshl_b32 s%d, s%d, 10" % (s.t0, s.t0))
    e("s_bfe_u32 s%d, s%d, 0x10016" % (s.t1, Fa + 4))
    e("s_lshl_b32 s%d, s%d, 15" % (s.t1, s.t1))
    e("s_add_u32 s%d, s%d, s%d" % (s.t0, s.t0, s.t1))
    e("s_add_u32 s%d, s%d, %d" % (s.koff, s.t0, QBASE))
    e("v_add_u32 v%d, s%d, v%d" % (v.t2, s.koff, v.ka0r))
    e("v_add_u32 v%d, s%d, v%d" % (v.t3, s.koff, v.ka1r))
    e("s_cmp_lg_u32 s%d, 1" % s.t3)
    e("s_cselect_b32 s%d, 1, 0" % s.m1)
    e("s_bfe_u32 s%d, s%d, 0x2001a" % (s.t0, Fa + 4))
    e("s_lshl_b32 s%d, s%d, 15" % (s.astep, s.t0))
    e("s_bfe_u32 s%d, s%d, 0x10019" % (s.t2, Fa + 4))
    e("s_bfe_u32 s%d, s%d, 0x10018" % (s.t0, Fa + 4))
    e("s_lshl_b32 s%d, s%d, 10" % (s.t0, s.t0))
    e("s_mul_i32 s%d, s%d, s%d" % (s.t1, s.t0, s.m1))
    e("s_sub_u32 s%d, s%d, s%d" % (s.t0, s.t0, s.t1))
    e("s_lshl_b32 s%d, s%d, 15" % (s.voff, s.t2))
    e("s_add_u32 s%d, s%d, s%d" % (s.koff, s.voff, s.t0))
    e("s_add_u32 s%d, s%d, 0x8000" % (s.voff, s.voff))
    e("v_add_u32 v%d, s%d, v%d" % (v.ka0r, s.t1, v.ka0r))
    e("v_add_u32 v%d, s%d, v%d" % (v.ka1r, s.t1, v.ka1r))
    e("s_bfe_u32 s%d, s%d, 0x2001c" % (s.t0, Fa + 2))
    for j in (3, 2, 1, 0):
        e("s_add_u32 s%d, s%d, %d" % (s.col, s.t0, j))
        e("s_and_b32 s%d, s%d, 3" % (s.col, s.col))
        e("s_lshl_b32 s%d, s%d, 8" % (s.col, s.col))
        e("s_add_u32 s%d, s%d, s%d" % (s.col, s.col, s.t1))
        e("v_add_u32 v%d, s%d, v%d" % (v.var + j, s.col, v.var))
    emit(vaddr() + kaddr())
    e("s_and_b32 s%d, s%d, 0xff" % (s.t0, Fa + 3))
    e("v_mov_b32 v%d, s%d" % (v.prg, s.t0))
    e("s_bfe_u32 s%d, s%d, 0x80010" % (s.need, Fa + 3))
    e("s_cmp_lt_u32 s%d, 4" % s.wave)
    e("s_cbranch_scc1 L_sig0")
    e(PRGW)
    lab("L_presig")
    emit((QH if QE == 0 else []) + chunk(1) + STEP_ADV)
    e("s_mov_b32 s%d, 4" % s.iss)
    stamp()
    e("s_cmp_eq_u32 s%d, 0" % s.t3)
    e("s_cbranch_scc1 L_hdone")
    emit(sync_call("L_head"))
    lab("L_sig0")
    e("s_bfe_u32 s%d, s%d, 0x80008" % (s.t0, Fa + 3))
    e("s_sub_u32 s%d, s%d, s%d" % (s.t0, s.t0, s.m1))
    e("s_lshl_b32 s%d, s%d, 2" % (s.t0, s.t0))
    e("s_add_u32 s%d, s%d, L_cnt-L_pc-4" % (s.t0, s.t0))
    e("v_mov_b32 v%d, s%d" % (v.fo, s.t0))
    e("s_lshl_b32 s%d, s%d, 8" % (s.t0, s.wave))
    e("s_add_u32 m0, s%d, %d" % (s.t0, PRGB))
    stamp()
    emit(poll_rdy())
    mark("sig0")
    stamp()
    lab("L_head")
    qr = [kread(t, v.Q).replace("v%d " % v.ka0, "v%d " % v.t2).replace("v%d " % v.ka1, "v%d " % v.t3) for t in range(8)]
    kr = [kread(t, v.KF) for t in range(8)]
    for t in range(7):
        emit([qr[t], kr[t]])
    e("s_add_u32 s%d, s%d, s%d" % (s.t0, s.koff, s.astep))
    e("s_mul_i32 s%d, s%d, s%d" % (s.koff, s.t0, s.m1))
    e("s_waitcnt lgkmcnt(12)")
    e(QK0)
    emit([qr[7], kr[7], PRGW])
    for t in range(1, 8):
        e("s_waitcnt lgkmcnt(%d)" % (15 - 2 * t + (1 if t >= 2 else 0)))
        e(qk(t))
        if t == 1:
            e(RDYR)
            emit(kaddr())
            emit(adv(s.koff))
        if t == 2:
            e("v_and_b32 v%d, 31, v%d" % (v.t2, L))
            e("v_lshlrev_b32 v%d, 12, v%d" % (v.t2, v.t2))
            e("v_sub_u32 v%d, s%d, v%d" % (v.t2, Fa + 1, v.t2))
            e("v_ashrrev_i32 v%d, 31, v%d" % (v.t2, v.t2))
            e("v_and_b32 v%d, 0xff800000, v%d" % (v.t2, v.t2))
        if t == 3:
            e("s_bfe_u32 s%d, s%d, 0x80008" % (s.t0, Fa + 3))
            e("v_mov_b32 v%d, s%d" % (v.prg, s.t0))
            e("s_mov_b32 s%d, s%d" % (s.need, Fa + 6))
    e("s_cmp_lt_u32 s%d, 4" % s.wave)
    e("s_waitcnt lgkmcnt(0)")
    e("s_cbranch_scc0 L_head2")
    emit(poll_rdy())
    emit(kr)
    emit(kaddr())
    lab("L_head2")
    e("s_lshr_b32 s%d, s%d, 24" % (s.need, Fa + 3))
    e("s_nop 7")
    e("v_max3_f32 v%d, v%d, v%d, v%d" % (v.t0, v.S, v.S + 1, v.S + 2))
    e("v_max3_f32 v%d, v%d, v%d, v%d" % (v.t1, v.S + 3, v.S + 4, v.S + 5))
    for r in range(6, 14, 4):
        e("v_max3_f32 v%d, v%d, v%d, v%d" % (v.t0, v.t0, v.S + r, v.S + r + 1))
        e("v_max3_f32 v%d, v%d, v%d, v%d" % (v.t1, v.t1, v.S + r + 2, v.S + r + 3))
    e("v_max3_f32 v%d, v%d, v%d, v%d" % (v.t0, v.t0, v.S + 14, v.S + 15))
    e("v_max_f32 v%d, v%d, v%d" % (v.t0, v.t0, v.t1))
    e("v_mov_b32 v%d, v%d" % (v.t1, v.t0))
    e(RDYR)
    e("s_nop 0")
    e("v_permlane32_swap_b32 v%d, v%d" % (v.t0, v.t1))
    e("s_nop 1")
    e("v_max_f32 v%d, v%d, v%d" % (v.t0, v.t0, v.t1))
    e("v_fmamk_f32 v%d, v%d, 0x%x, v%d" % (v.nmc, v.t0, f2u(-C_SCALE), v.t2))
    for r in range(16):
        e(F(r))
    emit([ex(i) for i in range(8)] + [add(i) for i in range(1, 7)] + [cvt(0), cvt(1), cvt(2)])
    e("s_cmp_lt_u32 s%d, 4" % s.wave)
    e("s_waitcnt lgkmcnt(0)")
    e("s_cbranch_scc0 L_hlp_in")
    stamp()
    emit(poll_rdy())
    mark("loop")
    stamp()
    e("s_cmp_eq_u32 s%d, 1" % s.m1)
    e("s_cbranch_scc1 L_odd_m")
    out.append(".p2align 4")
    body("even")
    e("s_cbranch_vccnz L_hnd_even")
    body("odd")
    e("s_cbranch_vccz L_even_m")
    emit(poll_rdy())
    e("s_cmp_le_u32 s%d, 1" % s.U)
    e("s_cbranch_scc1 L_ho1")
    e("s_cmp_eq_u32 s%d, 0" % s.m1)
    e("s_cbranch_scc0 L_odd_m")
    e("s_branch L_even_m")
    lab("L_ho1")
    e("s_cmp_eq_u32 s%d, 0" % s.U)
    e("s_cbranch_scc1 L_tail0")
    e("s_cmp_eq_u32 s%d, 0" % s.m1)
    e(QK0M)
    e("s_cbranch_scc1 L_even_a")
    e("s_branch L_odd_a")
    lab("L_hnd_even")
    emit(poll_rdy())
    e("s_cmp_gt_u32 s%d, 1" % s.U)
    e("s_cbranch_scc1 L_odd_m")
    e("s_cmp_eq_u32 s%d, 0" % s.U)
    e("s_cbranch_scc1 L_tailm")
    e(QK0M)
    e("s_branch L_odd_a")
    lab("L_hlp_in")
    e(PRGW)
    stamp()
    emit(sync_call())
    stamp()
    for t in range(8):
        e(kread(t, v.KF))
    emit(kaddr())
    e("s_waitcnt lgkmcnt(4)")
    e("s_branch L_hnd_hlp")
    body("hlp")
    lab("L_hnd_hlp")
    e("s_cmp_gt_u32 s%d, 1" % s.U)
    e("s_cbranch_scc1 L_hlp_m")
    e("s_cmp_eq_u32 s%d, 0" % s.U)
    e("s_cbranch_scc1 L_tail")
    e(QK0M)
    e("s_branch L_hlp_a")
    lab("L_tail0")
    e("s_cmp_eq_u32 s%d, 1" % s.m1)
    e("s_cbranch_scc1 L_tailm")
    e("v_add_u32 v%d, 0x400, v%d" % (v.va, v.va))
    lab("L_tailm")
    e("s_bitcmp1_b32 s%d, 31" % (Fa + 4))
    e("s_cbranch_scc1 L_tails")
    for j in range(1, 4):
        e("v_add_u32 v%d, %d, v%d" % (v.va + j, 256 * j, v.va))
    tw, tr0, oo, rl = v.ka1, v.va, v.ka1r, v.X + 2

    def lsum():
        return ["v_mov_b32 v%d, v%d" % (v.t0, v.l), "s_nop 1",
                "v_permlane32_swap_b32 v%d, v%d" % (v.l, v.t0), "s_nop 1",
                "v_add_f32 v%d, v%d, v%d" % (v.l, v.l, v.t0)]

    def st_addr():
        r = ["v_and_b32 v%d, 31, v%d" % (v.t0, L),
             "v_lshrrev_b32 v%d, 5, v%d" % (v.t1, L),
             "v_lshlrev_b32 v%d, 3, v%d" % (v.t1, v.t1),
             "v_and_b32 v%d, 7, v%d" % (v.t2, L),
             "v_lshl_add_u32 v%d, v%d, 4, v%d" % (v.t1, v.t2, v.t1),
             "v_lshl_add_u32 v%d, v%d, 7, v%d" % (v.t0, v.t0, v.t1),
             "v_add_u32 v%d, s%d, v%d" % (tw, s.reg, v.t0)]
        r += ["v_xor_b32 v%d, %d, v%d" % (v.E + c, c * 16, tw) for c in range(8)]
        r += ["v_lshrrev_b32 v%d, 3, v%d" % (v.t0, L),
              "v_xor_b32 v%d, v%d, v%d" % (v.t1, v.t2, v.t0),
              "v_lshlrev_b32 v%d, 4, v%d" % (v.t1, v.t1),
              "v_lshl_add_u32 v%d, v%d, 7, v%d" % (v.t1, v.t0, v.t1),
              "v_add_u32 v%d, s%d, v%d" % (tr0, s.reg, v.t1),
              "v_lshlrev_b32 v%d, 12, v%d" % (v.t0, v.t0),
              "v_lshl_add_u32 v%d, v%d, 4, v%d" % (oo, v.t2, v.t0)]
        return r

    def pack_q(bb, norm=True, pk=True):
        r = []
        for g in range(4):
            c = 4 * bb + g
            o = v.O + 4 * c
            d = v.S + 2 * c
            if norm and not pk:
                r += ["v_mul_f32 v%d, v%d, v%d" % (o + i, o + i, rl) for i in range(4)]
            elif norm:
                r += ["v_pk_mul_f32 %s, %s, %s op_sel_hi:[1,0]" % (vr(o + i, 2), vr(o + i, 2), vr(rl, 2)) for i in (0, 2)]
            r += ["v_cvt_pk_bf16_f32 v%d, v%d, v%d" % (d, o, o + 1),
                  "v_cvt_pk_bf16_f32 v%d, v%d, v%d" % (d + 1, o + 2, o + 3),
                  "ds_write_b64 v%d, %s" % (v.E + c % 8, vr(d, 2))]
        return r

    def rd_half(hh):
        return ["ds_read_b128 %s, v%d offset:%d" % (vr(v.KF + 16 * hh + 4 * k, 4), tr0, k * 1024) for k in range(4)]

    def st_one(hh, k):
        return ["buffer_store_dwordx4 %s, v%d, %s, s%d offen offset:%d %s" % (
                    vr(v.KF + 16 * hh + 4 * k, 4), oo, sr(s.so, 4), s.col + k if k < 3 else s.t1, 128 * hh,
                    STF if hh == 0 else OPT.get("st2", OPT.get("st", "sc1")).replace("+", " ").replace("none", ""))]

    sa = st_addr()
    cols = ["s_mov_b32 s%d, 0" % s.col, "s_mov_b32 s%d, 0x8000" % (s.col + 1),
            "s_mov_b32 s%d, 0x10000" % (s.col + 2), "s_mov_b32 s%d, 0x18000" % s.t1]
    RCP = "v_rcp_f32 v%d, v%d" % (rl, v.l)
    lab("L_tail")
    mark("tail")
    e("v_mov_b32 v%d, %d" % (v.prg, BIG))
    k = newret()
    vord = [0, 1, 8, 9, 2, 3, 10, 11, 4, 5, 12, 13, 6, 7, 14, 15]
    for i in vord[:12]:
        e(vread(i))
    emit([ex(8), add(7), cvt(3)] + [ex(i) for i in range(9, 16)])
    e("s_cmp_lt_u32 s%d, 4" % s.wave)
    e("s_cbranch_scc0 L_t1")
    e("s_waitcnt vmcnt(0)")
    lab("L_t1")
    for i in vord[12:]:
        e(vread(i))
    e(PRGW)
    emit([add(i) for i in range(8, 16)] + [CMP, cvt(4), "s_mov_b32 s%d, %d" % (s.ret, k), "s_cbranch_vccnz L_resc",
                                           "L_ret%d:" % k, cvt(5), cvt(6), cvt(7), LADD])
    e("s_cmp_lt_u32 s%d, 4" % s.wave)
    e("s_waitcnt lgkmcnt(0)")
    e("s_cbranch_scc0 L_htail")
    lab("L_tail2")
    p0 = pack_q(0, pk=False)
    emit([pv(0)] + lsum() + [RCP])
    emit([pv(4), cols[0]] + sa[0:7])
    emit([pv(1), cols[1]] + sa[7:15])
    emit([pv(5), cols[2]] + sa[15:])
    emit([pv(2), cols[3]] + p0[0:7])
    emit([pv(6)] + p0[7:14])
    emit([pv(3)] + p0[14:21])
    emit([pv(7)] + p0[21:])
    lab("L_tail3")
    stamp(5)
    if OPT.get("stadj"):
        emit(pack_q(1) + rd_half(0) + pack_q(2) + pack_q(3) + rd_half(1))
        for k in range(4):
            emit(["s_waitcnt lgkmcnt(%d)" % (3 - k)] + st_one(0, k) + st_one(1, k))
    else:
        emit(pack_q(1) + rd_half(0))
        p2 = pack_q(2)
        emit(p2[:10] + ["s_waitcnt lgkmcnt(5)"] + st_one(0, 0) + p2[10:] + ["s_waitcnt lgkmcnt(4)"] + st_one(0, 1))
        p3 = pack_q(3)
        emit(p3[:10] + st_one(0, 2) + p3[10:] + st_one(0, 3) + rd_half(1))
        stamp(4)
        for k in range(4):
            emit(["s_waitcnt lgkmcnt(%d)" % (3 - k)] + st_one(1, k))
    k = newret()
    ool.append(["L_tails:"] + [vread(i, 0, True) for i in range(8)]
               + ["v_mov_b32 v%d, %d" % (v.prg, BIG), add(7), "s_waitcnt vmcnt(0)", PRGW, CMP, cvt(3), "s_mov_b32 s%d, %d" % (s.ret, k), "s_cbranch_vccnz L_resc",
                  "L_ret%d:" % k, LADD] + lsum() + [RCP, "s_waitcnt lgkmcnt(1)",
                  pv(0), cols[0]] + sa[0:7] + [pv(1), cols[1]] + sa[7:15] + [pv(2), cols[2]] + sa[15:]
               + [pv(3), cols[3]] + pack_q(0) + ["s_branch L_tail3"])
    lab("L_fin")
    if SPIN:
        mark("st")
        e("s_waitcnt vmcnt(0)")
        mark("end")
        if SPIN == "glob":
            e("s_load_dwordx2 s[98:99], s[0:1], 40")
            e("s_not_b32 s%d, s%d" % (s.t0, s.ws))
            e("v_mov_b32 v%d, s%d" % (v.t1, s.t0))
            e("v_mov_b32 v%d, 0" % v.t0)
            e("s_waitcnt lgkmcnt(0)")
            e("s_cmp_lg_u32 s%d, 0" % s.wave)
            e("s_cbranch_scc1 L_g1")
            e("s_mov_b64 exec, 1")
            e("global_atomic_umax v%d, v%d, s[98:99]" % (v.t0, v.t1))
            e("s_mov_b64 exec, -1")
            lab("L_g1")
        e("s_sub_u32 s%d, s%d, s%d" % (s.t0, s.stp, s.ws))
        e("s_mul_i32 s%d, s%d, %s" % (s.t0, s.t0, OPT.get("amp", "2")))
        if OPT.get("rmask"):
            e("s_and_b32 s%d, s2, 15" % s.t1 if OPT.get("hsel") else "s_lshr_b32 s%d, s2, 4" % s.t1)
            e("s_lshr_b32 s%d, %s, s%d" % (s.t1, OPT["rmask"], s.t1))
            e("s_and_b32 s%d, s%d, 1" % (s.t1, s.t1))
            e("s_mul_i32 s%d, s%d, s%d" % (s.t0, s.t0, s.t1))
        e("s_add_u32 s%d, s%d, 3000" % (s.t0, s.t0))
        lab("L_spin")
        e("s_sleep 2")
        e("s_memrealtime s[%d:%d]" % (s.stp, s.stp + 1))
        e("s_waitcnt lgkmcnt(0)")
        e("s_sub_u32 s%d, s%d, s%d" % (s.t1, s.stp, s.ws))
        e("s_cmp_lt_u32 s%d, s%d" % (s.t1, s.t0))
        e("s_cbranch_scc1 L_spin")
        if SPIN == "glob":
            e("global_load_dword v%d, v%d, s[98:99] sc0 sc1" % (v.t1, v.t0))
            e("s_waitcnt vmcnt(0)")
            e("v_readfirstlane_b32 s%d, v%d" % (s.t2, v.t1))
            e("s_not_b32 s%d, s%d" % (s.t2, s.t2))
            lab("L_spin2")
            e("s_sleep 2")
            e("s_memrealtime s[%d:%d]" % (s.stp, s.stp + 1))
            e("s_waitcnt lgkmcnt(0)")
            e("s_sub_u32 s%d, s%d, s%d" % (s.t1, s.stp, s.t2))
            e("s_cmp_lt_u32 s%d, 4000" % s.t1)
            e("s_cbranch_scc1 L_spin2")
    if STAMPS:
        stamp(6)
        e("s_waitcnt vmcnt(0)")
        stamp(7)
        stamp(61, True)
        e("s_getreg_b32 s%d, hwreg(HW_REG_XCC_ID)" % s.stp)
        e("v_writelane_b32 v%d, s%d, 62" % (v.st, s.stp))
        e("s_lshl_b32 s%d, s2, 3" % s.t0)
        e("s_add_u32 s%d, s%d, s%d" % (s.t0, s.t0, s.wave))
        e("s_lshl_b32 s%d, s%d, 8" % (s.t0, s.t0))
        e("v_lshlrev_b32 v%d, 2, v%d" % (v.t0, v.lane))
        e("v_add_u32 v%d, s%d, v%d" % (v.t0, s.t0, v.t0))
        if OPT.get("dbg"):
            e("v_readlane_b32 s%d, v%d, 0" % (s.t0, v.st))
            e("v_readlane_b32 s%d, v%d, 61" % (s.t1, v.st))
            e("v_readlane_b32 s%d, v%d, 1" % (s.t2, v.st))
            e("s_not_b32 s%d, s%d" % (s.t3, s.t0))
            e("v_cmp_ne_u32 vcc, 0, v%d" % v.st)
            e("v_subrev_u32 v%d, s%d, v%d" % (v.t1, s.t2, v.st))
            e("s_nop 1")
            e("v_cndmask_b32 v%d, 0, v%d, vcc" % (v.t1, v.t1))
            e("v_writelane_b32 v%d, s%d, 0" % (v.t1, s.t3))
            e("v_writelane_b32 v%d, s%d, 1" % (v.t1, s.t1))
            e("v_writelane_b32 v%d, s%d, 15" % (v.t1, s.t0))
            e("v_lshlrev_b32 v%d, 2, v%d" % (v.t0, v.lane))
            e("s_cmp_lt_u32 s%d, 4" % s.wave)
            e("s_cselect_b32 s%d, 0xffff, 0x80ff" % s.t0 if False else "s_mov_b32 s%d, 0x80ff" % s.t0)
            e("s_cselect_b32 exec_lo, 0xffff, s%d" % s.t0)
            e("s_mov_b32 exec_hi, 0")
            e("global_atomic_umax v%d, v%d, %s" % (v.t0, v.t1, sr(s.ws, 2)))
        else:
            e("global_store_dword v%d, v%d, %s" % (v.t0, v.st, sr(s.ws, 2)))
    lab("L_end")
    e("s_endpgm")
    for blk in ool:
        emit(blk)
    lab("L_sync")
    e("s_setprio %s" % OPT.get("sprio", "0"))
    e("s_min_u32 s%d, s%d, s%d" % (s.t2, s.need, s.n))
    e("s_cmp_eq_u32 s%d, 0x20000" % s.stepb)
    e("s_cselect_b32 s%d, %s, %s" % (s.t3, OPT.get("lookd", "6"), OPT.get("look", "2")))
    e("s_add_u32 s%d, s%d, s%d" % (s.t3, s.t2, s.t3))
    e("s_min_u32 s%d, s%d, s%d" % (s.t3, s.t3, s.n))
    lab("L_svc")
    e("ds_read_b32 v%d, v%d" % (v.t1, v.pra))
    e(RDYR)
    e("s_sub_i32 s%d, s%d, 5" % (s.t1, s.iss))
    e("s_cmp_gt_u32 s%d, s%d" % (s.iss, s.t3))
    e("s_waitcnt lgkmcnt(0)")
    e("s_cbranch_scc0 L_svc1")
    e("v_cmp_ge_u32 vcc, s%d, v%d" % (s.t2, v.rdy))
    e("s_cbranch_vccz L_svcx")
    e("s_cmp_gt_u32 s%d, s%d" % (s.iss, s.n))
    e("s_cbranch_scc1 L_svcs")
    lab("L_svc1")
    e("v_cmp_gt_i32 vcc, s%d, v%d" % (s.t1, v.t1))
    e("s_bitcmp1_b32 s%d, 0" % s.iss)
    e("s_cbranch_scc1 L_svcB")
    e("s_cmp_lt_u32 s%d, 8" % s.iss)
    e("s_cselect_b32 s%d, -1, s%d" % (s.t1, N + 1))
    e("s_and_b32 s%d, s%d, vcc_lo" % (s.t1, s.t1))
    e("s_and_b32 s%d, s%d, 0xff" % (s.t1, s.t1))
    e("s_cbranch_scc1 L_svc2")
    e("s_add_u32 s%d, s%d, 1" % (s.iss, s.iss))
    emit(svc_cap())
    emit(chunk(0))
    e("s_branch L_svc")
    lab("L_svcB")
    e("s_and_b32 s%d, s%d, 0xff" % (s.t1, N + 3))
    e("s_cmp_gt_u32 s%d, s%d" % (s.iss, s.t1))
    e("s_cbranch_scc1 L_svcF")
    e("s_cbranch_vccnz L_svc2")
    emit(svc_cap())
    emit(chunk(1, flag=False))
    lab("L_svcF")
    e("s_add_u32 s%d, s%d, 1" % (s.iss, s.iss))
    emit(FLAG + STEP_ADV)
    e("s_branch L_svc")
    lab("L_svc2")
    e("v_cmp_ge_u32 vcc, s%d, v%d" % (s.t2, v.rdy))
    e("s_cbranch_vccz L_svcx")
    lab("L_svcs")
    emit(spin(OPT.get("slp", "2")))
    e("s_branch L_svc")
    lab("L_svcx")
    e("s_setprio %s" % OPT.get("hprio", "3"))
    SRET_AT = len(out)
    lab("L_htail")
    e("s_mov_b32 s%d, s%d" % (s.need, s.n))
    e("s_bitcmp0_b32 s%d, 24" % (Fa + 2))
    e("s_cbranch_scc1 L_htail2")
    emit(sync_call("L_tail2"))
    lab("L_htail2")
    for i in range(8):
        e(pv(i))
    lab("L_hdone")
    e("s_mov_b32 s%d, s%d" % (s.need, s.n))
    emit(sync_call())
    e("s_sub_u32 s%d, s%d, 1" % (s.t2, s.n))
    e("s_bfe_u32 s%d, s%d, 0x40018" % (s.n, Fa + 2))
    e("s_cbranch_scc0 L_fin")
    e("s_setprio %s" % OPT.get("eprio", "0"))
    e("s_branch L_pe1")
    lab("L_pe0")
    emit(spin(OPT.get("slp", "2")))
    lab("L_pe1")
    e("ds_read_b32 v%d, v%d" % (v.t1, v.pra))
    e("s_waitcnt lgkmcnt(0)")
    e("v_cmp_gt_u32 vcc, s%d, v%d" % (s.t2, v.t1))
    e("s_cbranch_vccnz L_pe0")
    stamp(5)
    l16, l8, xa, cnt = v.ka0, v.ka0r, v.var, v.var + 1
    emit(lsum())
    e("v_lshlrev_b32 v%d, 4, v%d" % (l16, L))
    e("v_lshlrev_b32 v%d, 3, v%d" % (l8, L))
    e("s_lshl_b32 s%d, s%d, 9" % (s.t0, s.wave))
    e("s_add_u32 s%d, s%d, %d" % (s.t0, s.t0, MLBASE - 2048))
    e("v_add_u32 v%d, s%d, v%d" % (xa, s.t0, l8))
    e("ds_write_b64 v%d, %s" % (xa, vr(v.nmc, 2)))
    e("s_cmp_eq_u32 s%d, 2" % s.n)
    e("s_cbranch_scc1 L_sd2")
    for j in (1, 2, 3):
        if j == 2:
            lab("L_sd2")
        e("s_and_b32 s%d, s%d, 0xffffff" % (s.t0, Fa + 4 + j))
        e("v_add_u32 v%d, s%d, v%d" % (xa, s.t0, l16))
        for k in range(4):
            e("ds_write_b128 v%d, %s offset:%d" % (xa, vr(v.O + 16 * j + 4 * k, 4), k * 1024))
    e("s_lshr_b32 s%d, s%d, 30" % (s.t0, Fa + 2))
    e("s_lshl_b32 s%d, s%d, 2" % (s.t0, s.t0))
    e("s_add_u32 s%d, s%d, %d" % (s.t0, s.t0, CNTB))
    e("v_mov_b32 v%d, s%d" % (cnt, s.t0))
    e("v_mov_b32 v%d, 1" % v.t3)
    e("s_mov_b64 exec, 1")
    e("ds_add_u32 v%d, v%d" % (cnt, v.t3))
    e("s_mov_b64 exec, -1")
    emit(st_addr())
    e("v_add_u32 v%d, s%d, v%d" % (xa, s.reg, l16))
    for j in range(3):
        e("s_lshr_b32 s%d, s%d, 24" % (s.t0, Fa + 5 + j))
        e("s_lshl_b32 s%d, s%d, 9" % (s.t0, s.t0))
        e("s_add_u32 s%d, s%d, %d" % (s.t0, s.t0, MLBASE))
        e("v_add_u32 v%d, s%d, v%d" % (v.P + j, s.t0, l8))
    e("s_branch L_poll1")
    lab("L_poll")
    emit(spin())
    lab("L_poll1")
    e("ds_read_b32 v%d, v%d" % (v.t3, cnt))
    e("s_waitcnt lgkmcnt(0)")
    e("v_cmp_ne_u32 vcc, s%d, v%d" % (s.n, v.t3))
    e("s_cbranch_vccnz L_poll")
    stamp(4)
    for j in range(3):
        e("ds_read_b64 %s, v%d" % (vr(v.X + 2 * j, 2), v.P + j))
    for k in range(12):
        e("ds_read_b128 %s, v%d offset:%d" % (vr(v.KF + 16 + 4 * k, 4), xa, k * 1024))
    RX = v.KF + 16
    f0, f1, f2, f3 = v.X + 8, v.X + 9, v.X + 10, v.X + 11
    e("s_bfe_u32 s%d, s%d, 0x2001c" % (s.col, Fa + 2))
    e("s_lshl_b32 s%d, s%d, 6" % (s.col, s.col))
    e("s_add_u32 s%d, s%d, 0x8000" % (s.col + 1, s.col))
    e("s_add_u32 s%d, s%d, 0x10000" % (s.col + 2, s.col))
    e("s_add_u32 s%d, s%d, 0x18000" % (s.t1, s.col))
    e("s_waitcnt lgkmcnt(12)")
    e("v_min3_f32 v%d, v%d, v%d, v%d" % (v.t3, v.nmc, v.X, v.X + 2))
    e("v_min_f32 v%d, v%d, v%d" % (v.t3, v.t3, v.X + 4))
    e("v_sub_f32 v%d, v%d, v%d" % (f0, v.t3, v.nmc))
    for j, f in enumerate((f1, f2, f3)):
        e("v_sub_f32 v%d, v%d, v%d" % (f, v.t3, v.X + 2 * j))
    for f in (f0, f1, f2, f3):
        e("v_exp_f32 v%d, v%d" % (f, f))
    e("v_mul_f32 v%d, v%d, v%d" % (v.l, v.l, f0))
    e("v_fmac_f32 v%d, v%d, v%d" % (v.l, v.X + 1, f1))
    e("s_cmp_eq_u32 s%d, 2" % s.n)
    e("s_cbranch_scc1 L_mg2")
    e("v_fmac_f32 v%d, v%d, v%d" % (v.l, v.X + 3, f2))
    e("v_fmac_f32 v%d, v%d, v%d" % (v.l, v.X + 5, f3))
    e("v_rcp_f32 v%d, v%d" % (v.t3, v.l))
    e("v_and_b32 v%d, 4, v%d" % (v.t0, L))
    e("v_lshl_add_u32 v%d, v%d, 28, v%d" % (oo, v.t0, oo))
    for f in (f0, f1, f2, f3):
        e("v_mul_f32 v%d, v%d, v%d" % (f, f, v.t3))
    for i in range(16):
        e("v_mul_f32 v%d, v%d, v%d" % (v.O + i, v.O + i, f0))
    for j, f in enumerate((f1, f2, f3)):
        e("s_waitcnt lgkmcnt(%d)" % (8 - 4 * j))
        for i in range(16):
            e("v_fmac_f32 v%d, v%d, v%d" % (v.O + i, RX + 16 * j + i, f))
    e("s_branch L_mg3")
    lab("L_mg2")
    e("v_rcp_f32 v%d, v%d" % (v.t3, v.l))
    e("s_nop 0")
    for f in (f0, f1):
        e("v_mul_f32 v%d, v%d, v%d" % (f, f, v.t3))
    for i in range(32):
        e("v_mul_f32 v%d, v%d, v%d" % (v.O + i, v.O + i, f0))
    e("s_waitcnt lgkmcnt(0)")
    for i in range(32):
        e("v_fmac_f32 v%d, v%d, v%d" % (v.O + i, RX + i, f1))
    emit(pack_q(1, False))
    lab("L_mg3")
    emit(pack_q(0, False) + rd_half(0))
    for k in range(4):
        emit(["s_waitcnt lgkmcnt(%d)" % (3 - k)] + st_one(0, k))
    e("s_branch L_fin")
    lab("L_resc")
    e("v_max3_f32 v%d, v%d, v%d, v%d" % (v.t0, v.X, v.X + 1, v.X + 2))
    for r in range(3, 15, 2):
        e("v_max3_f32 v%d, v%d, v%d, v%d" % (v.t0, v.t0, v.X + r, v.X + r + 1))
    e("v_max3_f32 v%d, v%d, v%d, 0" % (v.t0, v.t0, v.X + 15))
    e("v_mov_b32 v%d, v%d" % (v.t1, v.t0))
    e("s_nop 1")
    e("v_permlane32_swap_b32 v%d, v%d" % (v.t0, v.t1))
    e("s_nop 1")
    e("v_max_f32 v%d, v%d, v%d" % (v.t0, v.t0, v.t1))
    e("v_exp_f32 v%d, -v%d" % (v.t1, v.t0))
    e("v_sub_f32 v%d, v%d, v%d" % (v.nmc, v.nmc, v.t0))
    for r in range(16):
        e("v_sub_f32 v%d, v%d, v%d" % (v.X + r, v.X + r, v.t0))
    e("v_mul_f32 v%d, v%d, v%d" % (v.l, v.l, v.t1))
    for i in range(64):
        e("v_mul_f32 v%d, v%d, v%d" % (v.O + i, v.O + i, v.t1))
    emit(soft_half_plain(0))
    emit(soft_half_plain(1))
    for k, r in enumerate(rets[:-1]):
        e("s_cmp_eq_u32 s%d, %d" % (s.ret, k))
        e("s_cbranch_scc1 %s" % r)
    e("s_branch %s" % rets[-1])
    rl_ = []
    order = [2, 1, 0, 3, 4]
    assert len(srets) == len(order)
    for k in order[:-1]:
        rl_ += ["    s_cmp_eq_u32 s%d, %d" % (s.sret, k), "    s_cbranch_scc1 %s" % srets[k]]
    rl_ += ["    s_branch %s" % srets[order[-1]]]
    out[SRET_AT:SRET_AT] = rl_
    out.append(".p2align 6")
    out.append(".type L_near,@object")
    lab("L_near")
    for ent in near:
        out.append("    .long " + ", ".join("0x%x" % x for x in ent))
    lab("L_far")
    for ent in far:
        out.append("    .long " + ", ".join("0x%x" % x for x in ent))
    lab("L_cnt")
    out.append("    .long " + ", ".join(str(i) for i in range(32)))
    out.append(".size L_near, .-L_near")
    lab("L_codeend")
    out.append("    .fill 512, 4, 0xbf800000")
    out.append('.section .rodata,"a"')
    out.append(".p2align 6")
    out.append(".amdhsa_kernel " + K)
    out.append("  .amdhsa_next_free_vgpr %d" % NV)
    out.append("  .amdhsa_next_free_sgpr %d" % NS)
    out.append("  .amdhsa_accum_offset %d" % NV)
    out.append("  .amdhsa_group_segment_fixed_size 0")
    out.append("  .amdhsa_kernarg_size 56")
    out.append("  .amdhsa_user_sgpr_count 2")
    out.append("  .amdhsa_user_sgpr_kernarg_segment_ptr 1")
    out.append("  .amdhsa_system_sgpr_workgroup_id_x 1")
    out.append(".end_amdhsa_kernel")
    txt = "\n".join(out) + "\n"
    txt = txt.replace("PFSTRIDE", OPT.get("pf", "32"))
    import subprocess, tempfile, os
    tmp = tempfile.mkdtemp()
    open(tmp + "/a.s", "w").write(txt.replace("offset:L_near-L_pc", "offset:0x100").replace("offset:L_far-L_pc", "offset:0x100"))
    subprocess.run(["clang", "-x", "assembler", "-target", "amdgcn-amd-amdhsa", "-mcpu=gfx950", "-c", tmp + "/a.s", "-o", tmp + "/a.o"], check=True)
    sy = {}
    for ln in subprocess.run(["llvm-objdump", "-t", tmp + "/a.o"], capture_output=True, text=True).stdout.splitlines():
        p = ln.split()
        if len(p) >= 5 and p[-1].startswith("L_"):
            sy[p[-1]] = int(p[0], 16)
    assert sy["L_codeend"] - sy["L_pc"] <= 512 * int(OPT.get("pf", "32")) + 128 or STAMPS or SPIN, hex(sy["L_codeend"])
    assert sy["L_codeend"] + 2048 - sy["L_pc"] >= 512 * int(OPT.get("pf", "32"))
    for t in ("L_near", "L_far"):
        txt = txt.replace("offset:%s-L_pc" % t, "offset:0x%x" % (sy[t] - sy["L_pc"]))
        txt = txt.replace(t + ":\n", t + ":\n.if (%s-L_pc) != 0x%x\n.error \"table offset\"\n.endif\n" % (t, sy[t] - sy["L_pc"])) if False else txt
    return txt


if __name__ == "__main__":
    args = [a for a in sys.argv[1:] if a.endswith(".s")]
    path = args[0] if args else "cdna_kernels/%s.s" % NAME
    open(path, "w").write(gen())
    print("wrote", path)
```

```python
import sys, struct, math

NAME = "standalone__varlen_attn_packed__ragged"
CU = [0, 289, 520, 939, 1289, 1402, 1666, 1973, 2275]
LEN = [CU[i + 1] - CU[i] for i in range(8)]
T_TOT = 2275
ROWB = 4096
TENSOR_BYTES = T_TOT * ROWB

OPT = {}
for a in sys.argv[1:]:
    if a.startswith("--"):
        k, _, val = a[2:].partition("=")
        OPT[k] = val if val else "1"
STAMPS = "stamps" in OPT or "lite" in OPT
LITE = "lite" in OPT
LDF_Q = OPT.get("ldq", "none").replace("+", " ").replace("none", "")
LDF_K = OPT.get("ldk", "none").replace("+", " ").replace("none", "")
STF = OPT.get("st", "sc1").replace("+", " ").replace("none", "")
FLY = int(OPT.get("fly", "4"))

HEADER = """; Kernarg layout for this problem (56 bytes, ptrs only, base s[0:1]):
;   offset   0: d_in[0] q  shape=(2275, 16, 128) dtype=bfloat16 strides=(4096, 256, 2) contiguous=True
;   offset   8: d_in[1] k  shape=(2275, 16, 128) dtype=bfloat16 strides=(4096, 256, 2) contiguous=True
;   offset  16: d_in[2] v  shape=(2275, 16, 128) dtype=bfloat16 strides=(4096, 256, 2) contiguous=True
;   offset  24: d_in[3] cu  shape=(9,) dtype=int32 strides=(4,) contiguous=True
;   offset  32: d_out     shape=(2275, 16, 128) dtype=bfloat16 (2 bytes/elem)
"""


def f2u(x):
    return struct.unpack("<I", struct.pack("<f", x))[0]


def cdiv(a, b):
    return (a + b - 1) // b


LDS_TOTAL = 163840
QBASE = 98304
XTRA = 131072
MLBASE = XTRA + 16384
PRGB = XTRA + 7 * 4096 + 2048
RDYB = XTRA + 6 * 4096 + 3072
CNTB = XTRA + 6 * 4096 + 2048
BIG = 0x4000

ROLES = [
    ("dual", (1, 6, 2), (4, 0, 4)),
    (5, 0, 6),
    (3, 0, 5), (3, 5, 5),
    ("dual", (3, 10, 1), (5, 6, 3)),
    (1, 0, 6),
    (6, 0, 5), (6, 5, 5),
    (7, 0, 5), (7, 5, 5), (0, 0, 5), (0, 5, 5),
    (2, 0, 4), (2, 4, 4), (2, 8, 3), (2, 11, 3),
]
QL = int(OPT.get("ql", "4"))
QLC = int(OPT.get("qlc", "3"))
QE = int(OPT.get("qe", "0"))


def nrec(rows):
    return (rows - 1) * ROWB + 256 if rows > 0 else 0


def build_tables():
    near, far, desc = [], [], []
    for ri, role in enumerate(ROLES):
        W = [None] * 8
        groups = []
        if role[0] == "dual":
            (sa, ta, na), (sb, tb, nb) = role[1], role[2]
            rowA, lenA, rowB, lenB, step = CU[sa], LEN[sa], CU[sb], LEN[sb], 32
            n_it = max(cdiv(lenA, 32), cdiv(lenB, 32))
            tiles = [(sa, ta + i, 0) for i in range(na)] + [(sb, tb + i, 1) for i in range(nb)]
            nq = len(tiles)
            for i in range(4):
                sq, tl, st = tiles[i]
                W[i] = dict(seq=sq, tile=tl, ql=i, type=2, stream=st, its=list(range(cdiv(LEN[sq], 32))), hastail=1)
            for i in range(4, nq):
                sq, tl, st = tiles[i]
                nb_ = cdiv(LEN[sq], 32)
                W[i + 2] = dict(seq=sq, tile=tl, ql=i, type=3, stream=st, its=list(range(nb_)), hastail=1,
                                G=1, reg=XTRA + 4096 * i)
        else:
            sa, t0, nq = role
            rowA, lenA, rowB, lenB, step = CU[sa], LEN[sa], CU[sa] + 32, LEN[sa] - 32, 64
            nkv = cdiv(lenA, 32)
            n_it = cdiv(nkv, 2)
            tiles = [(sa, t0 + i, 0) for i in range(nq)]
            for i in range(min(nq, 4)):
                W[i] = dict(seq=sa, tile=t0 + i, ql=i, type=1, stream=0, its=list(range(nkv)), hastail=1)
            nh = 4 // (nq - 4) if nq > 4 else 0
            for i in range(4, nq):
                ws = [4, 5, 6, 7] if nh == 4 else [4 + (i - 4), 6 + (i - 4)]
                for k, w in enumerate(ws):
                    blocks = [p for p in range(nkv) if p % nh == k]
                    W[w] = dict(seq=sa, tile=t0 + i, ql=i, type=3, stream=k % 2, its=[p // 2 for p in blocks],
                                hastail=int((nkv - 1) in blocks))
                groups.append(ws)
        qrows = [CU[sq] + 32 * tl for sq, tl, _ in tiles] + [0xfff] * (6 - nq)
        qrows = [r | (0x1000 if i < nq and tiles[i][2] else 0) for i, r in enumerate(qrows)]
        maskA = sum(1 << i for i, w in enumerate(W) if w and (w["type"] == 1 or w["stream"] == 0 or i < 4 and role[0] != "dual"))
        lastB = 2 * cdiv(lenB, step) + 1
        near.append([rowA * ROWB, nrec(lenA) | maskA, rowB * ROWB, nrec(lenB) | lastB, step * ROWB | (2 * n_it + 1),
                     qrows[0] | qrows[1] << 16, qrows[2] | qrows[3] << 16, qrows[4] | qrows[5] << 16])
        areas = [((n_it + 1) % 4) * 32768, ((n_it + 2) % 4) * 32768]
        recv = [areas[0], areas[0] + 12288, areas[1], areas[1] + 12288]
        for i in range(4):
            if W[i]:
                W[i]["reg"] = XTRA + 4096 * i
        for gi, g in enumerate(groups):
            G = len(g)
            for k, w in enumerate(g):
                W[w]["reg"] = recv[w - 4]
                W[w]["G"], W[w]["k"], W[w]["gi"] = G, k, gi
                if G == 4:
                    W[w]["send"] = [recv[g[(j + k) % 4] - 4] + (j - 1) * 4096 for j in (1, 2, 3)]
                    W[w]["src"] = [g[(k - j) % 4] for j in (1, 2, 3)]
                else:
                    o = g[1 - k]
                    W[w]["send"] = [0, recv[o - 4], recv[o - 4] + 4096]
                    W[w]["src"] = [o, o, o]
        for wi in range(8):
            w = W[wi]
            desc.append(w)
            if w is None:
                far.append([0] * 8)
                continue
            sq, its, typ, sc = w["seq"], w["its"], w["type"], w["stream"]
            tail = LEN[sq] % 32
            orow = CU[sq] + 32 * w["tile"]
            onr = min(32, CU[sq + 1] - orow)
            assert onr > 0 and tail > 0
            U = len(its) - 1
            a0, st = its[0], its[1] - its[0]
            assert all(its[i] == a0 + st * i for i in range(len(its))) and st <= 2 and a0 <= 1 and U >= 1
            if typ == 1:
                inc, prg0, prg1, need1, need2 = 1, 2, 4, 0, 2
            elif typ == 2:
                inc, prg0, prg1, need1, need2 = 2, 2, 4 + sc, sc, 4 + sc
            else:
                inc, prg0, prg1, need1, need2 = 2 * st, 2 * a0 + sc + 2, 2 * (a0 + 1) + sc + 2, max(QE if QE else 3, 2 * a0 + sc), 2 * (a0 + st) + sc
            needk = max(need1 + 2 * (typ == 2), 1)
            if typ != 3 and wi >= QL:
                need1 = max(need1, QLC)
            w.update(needk=needk)
            w.update(U=U, a0=a0, st=st, inc=inc, prg0=prg0, prg1=prg1, need1=need1, need2=need2, n_it=n_it)
            hm = 0
            if typ != 3:
                nlast = 2 * n_it + 1
                pub = prg0
                w["pubs"] = []
                for b in range(U):
                    val = prg1 + inc * (b + 1)
                    want = pub < nlast - 5 and (typ == 2 or b % 2 == 1 or OPT.get("puball"))
                    if groups and pub < nlast - 1 <= val:
                        want = True
                    if typ == 2 or U - 1 - b <= 1:
                        hm |= 1 << (U - 1 - b)
                    if want and OPT.get("nodpub"):
                        hm |= 0x10001 << (U - 1 - b)
                        pub = val
                        w["pubs"].append(b)
            G, k, gi = w.get("G", 0), w.get("k", 0), w.get("gi", 0)
            rot = k * (4 // G) if G > 1 else 0
            ent = [orow * ROWB, nrec(onr),
                   U | typ << 8 | inc << 12 | (tail if w["hastail"] else 32) << 16 | G << 24 | rot << 28 | gi << 30,
                   prg0 | prg1 << 8 | need1 << 16 | need2 << 24,
                   w["reg"] | w["ql"] << 20 | (1 - sc) << 24 | a0 << 25 | st << 26 | int(typ != 3 and tail <= 16 and not OPT.get("noshort")) << 31]
            if G > 1:
                ent += [w["send"][j] | ((w["src"][j] - 4) << 24) for j in range(3)]
            if typ != 3:
                ent += [hm, needk]
            ent += [0] * (8 - len(ent))
            far.append(ent)
    return near, far, desc


class R:
    pass


v = R()
v.kd0, v.kd1, v.vd0, v.vd1 = 1, 2, 3, 4
v.ka0r, v.ka1r = 5, 6
v.ka0, v.ka1 = 7, 8
v.rdya, v.rdy = 9, 10
v.lane = 11
v.nmc, v.l = 12, 13
v.ps = 14
v.t0, v.t1, v.t2, v.t3 = 15, 16, 17, 18
v.pf = 19
v.st = 20
v.prga, v.prg = 21, 22
v.fo = 23
v.pra = 0
v.Q = 24
v.O = 56
v.S = 120
v.B = 136
v.KF = 152
v.VF = 184
v.X = 216
v.E = 232
v.P = 240
v.var = 248
v.va = 252
NV = 256

s = R()
s.q, s.k, s.vv, s.cu, s.out = 4, 6, 8, 10, 12
s.near = 16
s.far = 24
s.kA, s.kB, s.vA, s.vB, s.sq, s.so = 32, 36, 40, 44, 48, 52
s.wave, s.hoff = 56, 57
s.n = 58
s.thr = 59
s.soff = 60
s.dslot = 61
s.U = 62
s.mu = 63
s.koff, s.voff = 64, 65
s.need, s.chk = 66, 67
s.t0, s.t1, s.t2, s.t3 = 68, 69, 70, 71
s.pc = 72
s.stp = 74
s.ws = 76
s.sti = 78
s.ret = 79
s.foff = 80
s.reg = 81
s.m1 = 82
s.lnd = 83
s.inc = 84
s.col = 85
s.astep = 88
s.sret = 89
s.guard = 90
s.iss = 91
s.d0, s.rdw = 92, 93
s.qea, s.qeb = 94, 95
s.stepb = 97
NS = 100

C_SCALE = (128 ** -0.5) * math.log2(math.e)
CL = "0x%x" % f2u(C_SCALE)
THRESH = 4096.0

out = []


def e(x):
    out.append("    " + x)


def lab(x):
    out.append(x + ":")


def vr(b, n):
    return "v[%d:%d]" % (b, b + n - 1)


def sr(b, n):
    return "s[%d:%d]" % (b, b + n - 1)


def emit(lst):
    for x in lst:
        if x is None:
            continue
        if x.endswith(":"):
            out.append(x)
        else:
            e(x)


def stamp_l(k=None, real=False):
    if not STAMPS or (LITE and k not in (7, 61)):
        return []
    if OPT.get("rt") and k is None and not real:
        return stamp_l(None, True) + stamp_l(None, "c")
    real = real is True
    r = ["%s s[%d:%d]" % ("s_memrealtime" if real else "s_memtime", s.stp, s.stp + 1), "s_waitcnt lgkmcnt(0)"]
    if k is None:
        r += ["s_mov_b32 s%d, m0" % (s.stp + 1), "s_mov_b32 m0, s%d" % s.sti, "s_nop 0",
              "v_writelane_b32 v%d, s%d, m0" % (v.st, s.stp),
              "s_add_u32 s%d, s%d, 1" % (s.sti, s.sti), "s_mov_b32 m0, s%d" % (s.stp + 1)]
    else:
        r += ["v_writelane_b32 v%d, s%d, %d" % (v.st, s.stp, k)]
    return r


def stamp(k=None, real=False):
    emit(stamp_l(k, real))


SPIN = OPT.get("spin")


def mark(name):
    if SPIN == name:
        e("s_memrealtime s[%d:%d]" % (s.stp, s.stp + 1))
        e("s_waitcnt lgkmcnt(0)")


def kread(t, dst, st=0):
    return "ds_read_b128 %s, v%d offset:%d" % (vr(dst + 4 * t, 4), v.ka1 if t % 2 else v.ka0,
                                               (t // 4) * 16384 + ((t // 2) % 2) * 256 + st * 1024)


def vread(i, st=0, one=False):
    t, bb, ss = i // 8, (i // 2) % 4, i % 2
    reg = v.VF + (t * 4 + bb) * 4 + ss * 2
    if one:
        return "ds_read_b64_tr_b16 %s, v%d offset:%d" % (vr(reg, 2), v.va, (4 * t + 2 * ss) * 4096 + st * 1024 + bb * 256)
    return "ds_read_b64_tr_b16 %s, v%d offset:%d" % (vr(reg, 2), v.va + bb, (4 * t + 2 * ss) * 4096 + st * 1024)


def ld(kv, col, half, so):
    srd = {("K", 0): s.kA, ("K", 1): s.kB, ("V", 0): s.vA, ("V", 1): s.vB}[(kv, col)]
    off = (2048 if kv == "V" else 0) + (1024 if col == 0 else 0)
    vo = {("K", 0): v.kd0, ("K", 1): v.kd1, ("V", 0): v.vd0, ("V", 1): v.vd1}[(kv, half)]
    return "buffer_load_dwordx4 v%d, %s, s%d offen %s%s lds" % (vo, sr(srd, 4), so, "offset:%d " % off if off else "", LDF_K)


STEP_ADV = ["s_add_u32 s%d, s%d, s%d" % (s.soff, s.soff, s.stepb),
            "s_add_u32 s%d, s%d, 0x8000" % (s.dslot, s.dslot),
            "s_and_b32 s%d, s%d, 0x1ffff" % (s.dslot, s.dslot)]


FLAG = ["s_mov_b32 m0, s%d" % s.rdw,
        "v_add_u32 v%d, 4, v%d" % (v.fo, v.fo),
        "global_load_lds_dword v%d, %s" % (v.fo, sr(s.pc, 2))]


def chunk(col, k_only=False, pace=0, flag=True):
    p = []
    if pace:
        p = ["s_sleep %d" % pace if pace < 16 else "s_nop %d" % (pace - 16)]
    r = []
    for half, m in ((0, "s_mov_b32 m0, s%d" % s.dslot), (1, "s_add_u32 m0, s%d, 0x4000" % s.dslot)):
        r += [m, "s_nop 0"]
        if not k_only:
            r += [ld("V", col, half, s.soff)] + p
        r += [ld("K", col, half, s.soff)] + p
    return r + (FLAG if flag else [])


def qk(t):
    return "v_mfma_f32_32x32x16_bf16 %s, %s, %s, %s" % (vr(v.S, 16), vr(v.KF + 4 * t, 4), vr(v.Q + 4 * t, 4), vr(v.S, 16))


def pv(i):
    t, bb = i // 4, i % 4
    return "v_mfma_f32_32x32x16_bf16 %s, %s, %s, %s" % (
        vr(v.O + 16 * bb, 16), vr(v.VF + (t * 4 + bb) * 4, 4), vr(v.P + 4 * t, 4), vr(v.O + 16 * bb, 16))


def F(r):
    return "v_fmamk_f32 v%d, v%d, %s, v%d" % (v.X + r, v.S + r, CL, v.nmc)


def ex(r):
    return "v_exp_f32 v%d, v%d" % (v.E + r % 8, v.X + r)


def add(r):
    if r == 0:
        return None
    if r == 1:
        return "v_add_f32 v%d, v%d, v%d" % (v.ps, v.E, v.E + 1)
    return "v_add_f32 v%d, v%d, v%d" % (v.ps, v.ps, v.E + r % 8)


def cvt(i):
    return "v_cvt_pk_bf16_f32 v%d, v%d, v%d" % (v.P + i, v.E + (2 * i) % 8, v.E + (2 * i + 1) % 8)


def soft_half_plain(h):
    r = [ex(8 * h + i) for i in range(8)]
    r += [x for x in (add(8 * h + i) for i in range(8)) if x]
    r += [cvt(4 * h + i) for i in range(4)]
    return r


CMP = "v_cmp_lt_f32 vcc, s%d, v%d" % (s.thr, v.ps)
LADD = "v_add_f32 v%d, v%d, v%d" % (v.l, v.l, v.ps)
PRGW = "ds_write_b32 v%d, v%d" % (v.prga, v.prg)
RDYR = "ds_read_b32 v%d, v%d" % (v.rdy, v.rdya)
PRGINC = "v_add_u32 v%d, s%d, v%d" % (v.prg, s.inc, v.prg)
NEEDINC = "s_add_u32 s%d, s%d, s%d" % (s.need, s.need, s.inc)
QK0 = "v_mfma_f32_32x32x16_bf16 %s, %s, %s, 0" % (vr(v.S, 16), vr(v.KF, 4), vr(v.Q, 4))
QK0M = "v_mfma_f32_32x32x16_bf16 %s, %s, %s, %s" % (vr(v.S, 16), vr(v.KF, 4), vr(v.Q, 4), vr(v.B, 16))
rets, srets = [], []


def newret():
    rets.append("L_ret%d" % len(rets))
    return len(rets) - 1


def kaddr():
    return ["v_add_u32 v%d, s%d, v%d" % (v.ka0, s.koff, v.ka0r),
            "v_add_u32 v%d, s%d, v%d" % (v.ka1, s.koff, v.ka1r)]


def vaddr():
    return ["v_add_u32 v%d, s%d, v%d" % (v.va + j, s.voff, v.var + j) for j in range(4)]


def adv(reg):
    return ["s_add_u32 s%d, s%d, s%d" % (reg, reg, s.astep), "s_and_b32 s%d, s%d, 0x1ffff" % (reg, reg)]


_sc = [0]


def svc_cap():
    r = ["s_waitcnt vmcnt(%s)" % OPT.get("cap", "10")]
    if OPT.get("cap0"):
        _sc[0] += 1
        r += ["s_and_b32 s%d, s%d, %s" % (s.t1, s.hoff, OPT.get("capm", "0x300")), "s_cbranch_scc1 L_sc%d" % _sc[0],
              "s_waitcnt vmcnt(%s)" % OPT["cap0"], "L_sc%d:" % _sc[0]]
    return r


def headmap():
    if OPT.get("gc"):
        tab = sum(int(OPT["gc"][2 * x + 1]) << (4 * x) for x in range(8))
        return ["s_lshl_b32 s%d, s2, 2" % s.t1,
                "s_lshr_b32 s%d, 0x%x, s%d" % (s.t1, tab, s.t1),
                "s_and_b32 s%d, s%d, 3" % (s.t1, s.t1),
                "s_bfe_u32 s%d, s2, 0x20003" % s.hoff,
                "s_lshl2_add_u32 s%d, s%d, s%d" % (s.t1, s.hoff, s.t1),
                "s_lshl_b32 s%d, s%d, 8" % (s.hoff, s.t1)]
    cm = OPT.get("cmap", "1302")
    if not cm:
        return ["s_and_b32 s%d, s2, 15" % s.t1, "s_lshl_b32 s%d, s%d, 8" % (s.hoff, s.t1)]
    tab = 0
    cls = [int(c) for c in cm]
    for i in range(16):
        x, hs = i & 7, i >> 3
        tab |= (cls[x >> 1] + 4 * (x & 1) + 8 * hs) << (4 * i)
    return ["s_lshl_b32 s%d, s2, 2" % s.t1,
            "s_lshr_b32 s%d, 0x%x, s%d" % (s.t1, tab & 0xffffffff, s.t1),
            "s_and_b32 s%d, s%d, 7" % (s.t1, s.t1),
            "s_and_b32 s%d, s2, 8" % s.hoff,
            "s_or_b32 s%d, s%d, s%d" % (s.t1, s.t1, s.hoff),
            "s_lshl_b32 s%d, s%d, 8" % (s.hoff, s.t1)]


def flag_init():
    return ["v_lshlrev_b32 v%d, 2, v0" % v.prga,
            "v_add_u32 v%d, %d, v%d" % (v.prga, PRGB - 4096, v.prga),
            "v_mov_b32 v%d, 0" % v.l,
            "ds_write_b32 v%d, v%d" % (v.prga, v.l),
            "ds_write_b32 v%d, v%d offset:4096" % (v.prga, v.l),
            "s_lshl_b32 s%d, s%d, 8" % (s.foff, s.foff),
            "s_lshr_b32 s%d, s%d, 1" % (s.t0, s.wave),
            "s_add_u32 s%d, s%d, s%d" % (s.foff, s.foff, s.t0)]


def far_load():
    r = []
    if STAMPS:
        r += ["v_mov_b32 v%d, 0" % v.st, "s_mov_b32 s%d, 8" % s.sti,
              "v_writelane_b32 v%d, s%d, 0" % (v.st, s.stp), "v_writelane_b32 v%d, s%d, 1" % (v.st, s.ws),
              "s_load_dwordx2 %s, s[0:1], 48" % sr(s.ws, 2)]
    return r + ["s_load_dwordx8 %s, %s, s%d offset:L_far-L_pc" % (sr(s.far, 8), sr(s.pc, 2), s.foff),
                "s_load_dwordx2 s[12:13], s[0:1], 32"]


def spin(n="1"):
    r = ["s_sleep %s" % n]
    if not OPT.get("nosafe"):
        r += ["s_sub_u32 s%d, s%d, 1" % (s.guard, s.guard), "s_cbranch_scc1 L_end"]
    return r


def sync_call(target=None):
    k = len(srets)
    srets.append(target or "L_sr%d" % k)
    return ["s_mov_b32 s%d, %d" % (s.sret, k), "s_branch L_sync"] + ([] if target else ["L_sr%d:" % k])


_pl = [0]


ool = []


def poll_rdy():
    _pl[0] += 1
    a, b = "L_pa%d" % _pl[0], "L_pb%d" % _pl[0]
    ool.append([a + ":"] + spin() + [RDYR, "s_waitcnt lgkmcnt(0)", "s_branch %s" % b])
    return ["s_min_u32 s%d, s%d, s%d" % (s.t2, s.need, s.n), b + ":",
            "v_cmp_ge_u32 vcc, s%d, v%d" % (s.t2, v.rdy), "s_cbranch_vccnz %s" % a]


def body(kind):
    odd, hlp = kind != "even", kind == "hlp"
    st = 0 if odd else 1
    V = lambda i: vread(i, st, not hlp)
    K = lambda t: kread(t, v.KF, st)
    W = lambda n: "s_waitcnt lgkmcnt(%d)" % n
    k = newret()
    q = [
        [NEEDINC, V(0), V(1), ex(8), add(7), cvt(3)],
        ["s_mov_b32 s%d, %d" % (s.ret, k), V(2), V(3), ex(9), ex(10)],
        [W(4), V(4), V(5), ex(11), add(8), add(9)],
        ["s_sub_u32 s%d, s%d, 1" % (s.U, s.U), V(6), V(7), ex(12), ex(13)],
        [None, V(8), V(9), ex(14), add(10), add(11)],
        [None, V(10), V(11), ex(15), add(12), add(13)],
        [W(4), V(12), V(13), add(14), add(15), CMP, cvt(4)],
        ["s_cbranch_vccnz L_resc", "L_ret%d:" % k, V(14), V(15), LADD, cvt(5), cvt(6), cvt(7)],
    ]
    p = [
        ["s_nop 0", K(0), K(1), K(2), F(0), F(1), F(2)],
        [None, K(3), ex(0), F(3), F(4), F(5)],
        [None, K(4), ex(1), F(6), F(7), F(8)],
        [W(5), K(5), ex(2), add(1), F(9), F(10)],
        [None, K(6), ex(3), add(2), cvt(0), F(11)],
        [None, K(7), ex(4), add(3), cvt(1), F(12)],
        [W(4), ex(5), ex(6), add(4), F(13)],
        [None, ex(7), add(5), add(6), cvt(2), F(14), F(15)],
    ]
    if odd:
        q[4][0], q[5][0] = adv(s.voff)
        p[4][0], p[5][0] = adv(s.koff)
        va, ka = vaddr(), kaddr()
        p[1].append(va[0])
        if hlp:
            p[3].append(va[1])
            p[4].append(va[2])
            p[5].append(va[3])
        p[6].append(ka[0])
        p[7].append(ka[1])
    if not hlp:
        p[0][0] = "s_min_u32 s%d, s%d, s%d" % (s.chk, s.need, s.n)
        p[1][0] = "s_bitcmp1_b32 s%d, s%d" % (s.far + 5, s.U)
        p[2][0] = "s_cselect_b32 s%d, -1, s%d" % (s.chk, s.chk)
        p[2][2:2] = [RDYR]
        p[6][0] = W(3)
        if odd and (not OPT.get("nodpub")):
            q[2].append("v_add_u32 v%d, 8, v%d" % (v.fo, v.fo))
            q[3][1:1] = ["global_load_lds_dword v%d, %s" % (v.fo, sr(s.pc, 2))]
        p[7][3:3] = ["v_cmp_ge_u32 vcc, s%d, v%d" % (s.chk, v.rdy)]
    else:
        q[1].append(PRGINC)
        q[7][4:4] = [PRGW]
        sc = sync_call()
        q[3][1:1] = [sc[0]]
        p[0][0:1] = stamp_l() + sc[1:] + stamp_l()
    lab("L_%s_m" % kind)
    e(QK0)
    lab("L_%s_a" % kind)
    emit(q[0])
    for t in range(1, 8):
        e(qk(t))
        emit(q[t])
    for i in range(8):
        e(pv(i))
        emit(p[i])
    if not hlp:
        stamp()


def gen():
    K = NAME + "_kernel"
    near, far, _ = build_tables()
    PACE = int(OPT.get("pace", "0"))
    out.append(HEADER + "; @launch grid=(256,1,1) block=(512,1,1) lds=%d" % LDS_TOTAL)
    out.append('.amdgcn_target "amdgcn-amd-amdhsa--gfx950"')
    out.append(".text")
    out.append(".globl " + K)
    out.append(".p2align 12")
    out.append(".p2align 8")
    out.append(".type %s,@function" % K)
    lab(K)
    L, N, Fa = v.lane, s.near, s.far
    if SPIN:
        e("s_memrealtime s[%d:%d]" % (s.ws, s.ws + 1))
        e("s_memrealtime s[%d:%d]" % (s.stp, s.stp + 1))
    if STAMPS:
        e("s_memrealtime s[%d:%d]" % (s.stp, s.stp + 1))
        e("s_memtime s[%d:%d]" % (s.ws, s.ws + 1))
    e("s_load_dwordx8 s[4:11], s[0:1], 0")
    e("s_getpc_b64 %s" % sr(s.pc, 2))
    lab("L_pc")
    if OPT.get("gc"):
        gm = sum((OPT["gc"][2 * x] == "L") << x for x in range(8)) * 0x01010101
        e("s_lshr_b32 s%d, s2, 5" % s.foff)
        e("s_bitcmp1_b32 0x%x, s2" % gm)
        e("s_cselect_b32 s%d, 8, 0" % s.t1)
        e("s_add_u32 s%d, s%d, s%d" % (s.foff, s.foff, s.t1))
    else:
        e("s_lshr_b32 s%d, s2, 4" % s.foff)
    e("s_lshl_b32 s%d, s%d, 5" % (s.t1, s.foff))
    e("s_load_dwordx8 %s, %s, s%d offset:L_near-L_pc" % (sr(s.near, 8), sr(s.pc, 2), s.t1))
    e("v_mul_u32_u24 v%d, PFSTRIDE, v0" % v.t0)
    e("v_readfirstlane_b32 s%d, v0" % s.wave)
    e("global_load_dword v%d, v%d, %s" % (v.pf, v.t0, sr(s.pc, 2)))
    e("s_cmp_ge_u32 s2, 256" if OPT.get("gc") else "s_cmp_ge_u32 s%d, 16" % s.foff)
    e("s_cbranch_scc1 L_end")
    e("s_bitcmp0_b32 s%d, 8" % s.wave)
    e("s_cbranch_scc1 L_mainpro")
    e("v_bfe_u32 v%d, v0, 5, 2" % v.t0)
    e("v_and_b32 v%d, 3, v0" % v.t1)
    e("v_xor_b32 v%d, v%d, v%d" % (v.t1, v.t1, v.t0))
    e("v_and_or_b32 v%d, v0, 12, v%d" % (v.t0, v.t0))
    e("v_lshlrev_b32 v%d, 12, v%d" % (v.t0, v.t0))
    e("v_lshl_add_u32 v%d, v%d, 4, v%d" % (v.t0, v.t1, v.t0))
    e("v_and_b32 v%d, 16, v0" % v.t1)
    e("v_lshl_add_u32 v%d, v%d, 2, v%d" % (v.t0, v.t1, v.t0))
    e("v_bfe_u32 v%d, v0, 7, 1" % v.t1)
    e("v_lshl_add_u32 v%d, v%d, 16, v%d" % (v.kd0, v.t1, v.t0))
    e("v_add_u32 v%d, 0x80, v%d" % (v.kd1, v.kd0))
    emit(headmap())
    e("s_lshl_b32 s%d, s%d, 6" % (s.dslot, s.wave))
    e("s_and_b32 s%d, s%d, 0x3000" % (s.dslot, s.dslot))
    e("s_mov_b32 s%d, 0x20000" % (s.sq + 3))
    e("s_mov_b32 s%d, s%d" % (s.kA + 3, s.sq + 3))
    e("s_mov_b32 s%d, 0" % s.soff)
    if OPT.get("thr", "0") != "0":
        e("s_lshr_b32 vcc_lo, %s, s%d" % (OPT.get("thr", "0"), s.t1))
        if OPT.get("thrr"):
            e("s_lshr_b32 s%d, %s, s%d" % (s.t0, OPT["thrr"], s.foff))
            e("s_and_b32 vcc_lo, vcc_lo, s%d" % s.t0)
        if OPT.get("thro"):
            e("s_lshr_b32 s%d, %s, s%d" % (s.t0, OPT["thro"], s.foff))
            e("s_or_b32 vcc_lo, vcc_lo, s%d" % s.t0)
        e("s_and_b32 vcc_lo, vcc_lo, 1")
        e("s_mov_b32 vcc_hi, 0")
    e("s_add_u32 s%d, s%d, %d" % (s.d0, s.dslot, QBASE))
    emit(flag_init())
    e("s_waitcnt lgkmcnt(0)")
    emit(far_load())
    mark("karg")
    THR = OPT.get("thr", "0")
    _th = [0]

    def throttle():
        if THR == "0":
            return []
        _th[0] += 1
        return ["s_cbranch_vccz L_th%d" % _th[0], "s_waitcnt vmcnt(%s)" % OPT.get("thn", "8"), "L_th%d:" % _th[0]]

    def qtile(i):
        w = N + 5 + i // 2
        r = ["s_bitcmp1_b32 s%d, %d" % (w, 12 + 16 * (i % 2)),
             "s_cselect_b32 s%d, s%d, s%d" % (s.sq + 2, s.qeb, s.qea),
             "s_bfe_u32 s%d, s%d, 0x%x" % (s.t0, w, 0xc0000 + 16 * (i % 2)),
             "s_add_u32 m0, s%d, %d" % (s.d0, (i // 4) * 32768 + (i % 4) * 1024),
             "s_lshl_b32 s%d, s%d, 12" % (s.t0, s.t0),
             "buffer_load_dwordx4 v%d, %s, s%d offen %s lds" % (v.kd0, sr(s.sq, 4), s.t0, LDF_Q),
             "s_add_u32 m0, m0, 0x4000", "s_nop 0",
             "buffer_load_dwordx4 v%d, %s, s%d offen %s lds" % (v.kd1, sr(s.sq, 4), s.t0, LDF_Q)]
        return r
    e("s_add_u32 s%d, s%d, s%d" % (s.qea, N + 0, N + 1))
    e("s_add_u32 s%d, s%d, s%d" % (s.qeb, N + 2, N + 3))
    e("s_add_u32 s%d, s%d, s%d" % (s.sq, s.q, s.hoff))
    e("s_addc_u32 s%d, s%d, 0" % (s.sq + 1, s.q + 1))
    emit(qtile(0))
    e("s_add_u32 s%d, s%d, s%d" % (N + 0, N + 0, s.hoff))
    e("s_add_u32 s%d, s%d, s%d" % (s.kA, s.k, N + 0))
    e("s_addc_u32 s%d, s%d, 0" % (s.kA + 1, s.k + 1))
    e("s_sub_u32 s%d, s%d, 1024" % (s.kA, s.kA))
    e("s_subb_u32 s%d, s%d, 0" % (s.kA + 1, s.kA + 1))
    e("s_add_u32 s%d, s%d, 1024" % (s.kA + 2, N + 1))
    emit(chunk(0, True, flag=False))
    for i in range(1, QL):
        emit((throttle() if i > 1 else []) + qtile(i))
    QLATE = sum((qtile(i) for i in range(QL, 4)), [])
    mark("iss")
    for b in (s.kB, s.vA, s.vB):
        e("s_mov_b32 s%d, s%d" % (b + 3, s.sq + 3))
    e("s_add_u32 s%d, s%d, s%d" % (N + 2, N + 2, s.hoff))
    e("s_add_u32 s%d, s%d, s%d" % (s.kB, s.k, N + 2))
    e("s_addc_u32 s%d, s%d, 0" % (s.kB + 1, s.k + 1))
    e("s_mov_b32 s%d, s%d" % (s.kB + 2, N + 3))
    e("s_and_b32 s%d, s%d, 0xfffff000" % (s.stepb, N + 4))
    e("s_lshr_b32 s%d, s%d, 4" % (s.rdw, s.dslot))
    e("s_add_u32 s%d, s%d, %d" % (s.rdw, s.rdw, RDYB))
    e("v_mov_b32 v%d, L_cnt-L_pc" % v.fo)
    for (srd, off, nr, d) in ((s.vA, N + 0, N + 1, 3072), (s.vB, N + 2, N + 3, 2048)):
        e("s_add_u32 s%d, s%d, %d" % (s.t0, s.stepb, d))
        e("s_add_u32 s%d, s%d, s%d" % (srd, s.vv, off))
        e("s_addc_u32 s%d, s%d, 0" % (srd + 1, s.vv + 1))
        e("s_sub_u32 s%d, s%d, s%d" % (srd, srd, s.t0))
        e("s_subb_u32 s%d, s%d, 0" % (srd + 1, srd + 1))
        e("s_add_u32 s%d, s%d, s%d" % (srd + 2, nr, s.t0))
    e("v_bfe_u32 v%d, v0, 2, 2" % v.t0)
    e("v_lshlrev_b32 v%d, 12, v%d" % (v.t0, v.t0))
    e("v_and_b32 v%d, 3, v0" % v.t1)
    e("v_lshl_add_u32 v%d, v%d, 4, v%d" % (v.t0, v.t1, v.t0))
    e("v_and_b32 v%d, 48, v0" % v.t1)
    e("v_lshl_add_u32 v%d, v%d, 2, v%d" % (v.t0, v.t1, v.t0))
    e("v_bfe_u32 v%d, v0, 6, 2" % v.t1)
    e("v_lshl_add_u32 v%d, v%d, 14, v%d" % (v.vd0, v.t1, v.t0))
    e("v_add_u32 v%d, 0x10000, v%d" % (v.vd1, v.vd0))
    e("s_setprio %s" % OPT.get("hprio", "3"))
    e("s_branch L_common")
    lab("L_mainpro")
    for b in (s.sq, s.kA, s.kB, s.vA, s.vB):
        e("s_mov_b64 %s, s[0:1]" % sr(b, 2))
        e("s_mov_b32 s%d, 0" % (b + 2))
        e("s_mov_b32 s%d, 0x20000" % (b + 3))
    for r in (v.kd0, v.kd1, v.vd0, v.vd1, v.fo):
        e("v_mov_b32 v%d, 0" % r)
    emit(headmap())
    emit(flag_init())
    e("s_waitcnt lgkmcnt(0)")
    emit(far_load())
    lab("L_common")
    e("s_lshr_b32 s%d, s%d, 6" % (s.wave, s.wave))
    e("v_and_b32 v%d, 63, v0" % L)
    e("v_and_b32 v%d, 7, v0" % v.t0)
    e("v_mul_u32_u24 v%d, 0x104, v%d" % (v.t0, v.t0))
    e("v_add_u32 v%d, %d, v%d" % (v.pra, PRGB, v.t0))
    e("v_add_u32 v%d, 0x1000, v%d" % (v.prga, v.prga))
    e("s_barrier")
    e("s_cmp_lt_u32 s%d, 4" % s.wave)
    e("s_cbranch_scc1 L_common2")
    QH = qtile(4) + qtile(5)
    C2 = (QLATE if QLC == 2 else []) + (QH if QE == 2 else []) + chunk(0) + (QLATE if QLC == 3 else [])
    emit(FLAG + (QH if QE == 1 else []) + chunk(1, True) + STEP_ADV + (C2 if OPT.get("c2early") else []))
    lab("L_common2")
    e("v_bfe_u32 v%d, v%d, 4, 1" % (v.t0, L))
    e("v_lshlrev_b32 v%d, 13, v%d" % (v.t0, v.t0))
    e("v_bfe_u32 v%d, v%d, 1, 1" % (v.t1, L))
    e("v_lshl_add_u32 v%d, v%d, 12, v%d" % (v.t0, v.t1, v.t0))
    e("v_and_b32 v%d, 1, v%d" % (v.t1, L))
    e("v_lshl_add_u32 v%d, v%d, 9, v%d" % (v.t0, v.t1, v.t0))
    e("v_bfe_u32 v%d, v%d, 2, 2" % (v.t1, L))
    e("v_lshl_add_u32 v%d, v%d, 6, v%d" % (v.t0, v.t1, v.t0))
    e("v_lshrrev_b32 v%d, 5, v%d" % (v.t1, L))
    e("v_and_b32 v%d, 3, v%d" % (v.t2, L))
    e("v_xor_b32 v%d, v%d, v%d" % (v.t1, v.t1, v.t2))
    e("v_lshl_add_u32 v%d, v%d, 4, v%d" % (v.ka0r, v.t1, v.t0))
    e("v_xor_b32 v%d, 32, v%d" % (v.ka1r, v.ka0r))
    e("v_lshrrev_b32 v%d, 5, v%d" % (v.t0, L))
    e("v_lshlrev_b32 v%d, 12, v%d" % (v.t0, v.t0))
    e("v_bfe_u32 v%d, v%d, 2, 2" % (v.t1, L))
    e("v_lshl_add_u32 v%d, v%d, 6, v%d" % (v.t0, v.t1, v.t0))
    e("v_bfe_u32 v%d, v%d, 4, 1" % (v.t1, L))
    e("v_lshl_add_u32 v%d, v%d, 5, v%d" % (v.t0, v.t1, v.t0))
    e("v_lshl_add_u32 v%d, v%d, 3, v%d" % (v.t0, v.t2, v.t0))
    e("v_add_u32 v%d, 0x800, v%d" % (v.var, v.t0))
    e("s_mov_b32 s%d, 0x%x" % (s.thr, f2u(THRESH)))
    e("v_mul_u32_u24 v%d, 0x104, v%d" % (v.t1, v.t2))
    e("v_add_u32 v%d, %d, v%d" % (v.rdya, RDYB, v.t1))
    e("s_mov_b32 s%d, 0x8000" % s.guard)
    e("v_mov_b32 v%d, 0" % v.rdy)
    e("s_waitcnt lgkmcnt(0)")
    e("s_add_u32 s%d, s%d, s%d" % (s.t0, Fa + 0, s.hoff))
    e("s_add_u32 s%d, s%d, s%d" % (s.so, s.out, s.t0))
    e("s_addc_u32 s%d, s%d, 0" % (s.so + 1, s.out + 1))
    e("s_mov_b32 s%d, s%d" % (s.so + 2, Fa + 1))
    e("s_mov_b32 s%d, 0x20000" % (s.so + 3))
    e("s_and_b32 s%d, s%d, 0xff" % (s.n, N + 4))
    e("s_bfe_u32 s%d, s%d, 0x40008" % (s.t3, Fa + 2))
    e("s_cbranch_scc1 L_work")
    e("v_mov_b32 v%d, %d" % (v.prg, BIG))
    e(PRGW)
    e("s_cmp_lt_u32 s%d, 4" % s.wave)
    e("s_cbranch_scc1 L_fin")
    e("s_branch L_presig")
    lab("L_work")
    for r in range(0, 64, 2):
        e("v_pk_mov_b32 %s, 0, 0" % vr(v.O + r, 2))
    e("s_and_b32 s%d, s%d, 0xff" % (s.U, Fa + 2))
    e("s_bfe_u32 s%d, s%d, 0x4000c" % (s.inc, Fa + 2))
    e("s_and_b32 s%d, s%d, 0xfffff" % (s.reg, Fa + 4))
    e("s_bfe_u32 s%d, s%d, 0x80010" % (s.t0, Fa + 2))
    e("s_sub_u32 s%d, s%d, 1" % (s.t0, s.t0))
    e("v_lshrrev_b32 v%d, 5, v%d" % (v.t0, L))
    e("v_lshlrev_b32 v%d, 2, v%d" % (v.t0, v.t0))
    e("v_sub_u32 v%d, s%d, v%d" % (v.t0, s.t0, v.t0))
    e("v_mov_b32 v%d, 0xff800000" % v.t1)
    for r in range(16):
        cst = 8 * (r // 4) + r % 4
        e("v_subrev_u32 v%d, %d, v%d" % (v.B + r, cst, v.t0))
        e("v_ashrrev_i32 v%d, 31, v%d" % (v.B + r, v.B + r))
        e("v_and_b32 v%d, v%d, v%d" % (v.B + r, v.t1, v.B + r))
    e("s_bfe_u32 s%d, s%d, 0x20014" % (s.t0, Fa + 4))
    e("s_lshl_b32 s%d, s%d, 10" % (s.t0, s.t0))
    e("s_bfe_u32 s%d, s%d, 0x10016" % (s.t1, Fa + 4))
    e("s_lshl_b32 s%d, s%d, 15" % (s.t1, s.t1))
    e("s_add_u32 s%d, s%d, s%d" % (s.t0, s.t0, s.t1))
    e("s_add_u32 s%d, s%d, %d" % (s.koff, s.t0, QBASE))
    e("v_add_u32 v%d, s%d, v%d" % (v.t2, s.koff, v.ka0r))
    e("v_add_u32 v%d, s%d, v%d" % (v.t3, s.koff, v.ka1r))
    e("s_cmp_lg_u32 s%d, 1" % s.t3)
    e("s_cselect_b32 s%d, 1, 0" % s.m1)
    e("s_bfe_u32 s%d, s%d, 0x2001a" % (s.t0, Fa + 4))
    e("s_lshl_b32 s%d, s%d, 15" % (s.astep, s.t0))
    e("s_bfe_u32 s%d, s%d, 0x10019" % (s.t2, Fa + 4))
    e("s_bfe_u32 s%d, s%d, 0x10018" % (s.t0, Fa + 4))
    e("s_lshl_b32 s%d, s%d, 10" % (s.t0, s.t0))
    e("s_mul_i32 s%d, s%d, s%d" % (s.t1, s.t0, s.m1))
    e("s_sub_u32 s%d, s%d, s%d" % (s.t0, s.t0, s.t1))
    e("s_lshl_b32 s%d, s%d, 15" % (s.voff, s.t2))
    e("s_add_u32 s%d, s%d, s%d" % (s.koff, s.voff, s.t0))
    e("s_add_u32 s%d, s%d, 0x8000" % (s.voff, s.voff))
    e("v_add_u32 v%d, s%d, v%d" % (v.ka0r, s.t1, v.ka0r))
    e("v_add_u32 v%d, s%d, v%d" % (v.ka1r, s.t1, v.ka1r))
    e("s_bfe_u32 s%d, s%d, 0x2001c" % (s.t0, Fa + 2))
    for j in (3, 2, 1, 0):
        e("s_add_u32 s%d, s%d, %d" % (s.col, s.t0, j))
        e("s_and_b32 s%d, s%d, 3" % (s.col, s.col))
        e("s_lshl_b32 s%d, s%d, 8" % (s.col, s.col))
        e("s_add_u32 s%d, s%d, s%d" % (s.col, s.col, s.t1))
        e("v_add_u32 v%d, s%d, v%d" % (v.var + j, s.col, v.var))
    emit(vaddr() + kaddr())
    e("s_and_b32 s%d, s%d, 0xff" % (s.t0, Fa + 3))
    e("v_mov_b32 v%d, s%d" % (v.prg, s.t0))
    e("s_bfe_u32 s%d, s%d, 0x80010" % (s.need, Fa + 3))
    e("s_cmp_lt_u32 s%d, 4" % s.wave)
    e("s_cbranch_scc1 L_sig0")
    e(PRGW)
    lab("L_presig")
    emit(([] if OPT.get("c2early") else C2) + (QH if QE == 0 else []) + chunk(1) + STEP_ADV)
    e("s_mov_b32 s%d, 4" % s.iss)
    stamp()
    e("s_cmp_eq_u32 s%d, 0" % s.t3)
    e("s_cbranch_scc1 L_hdone")
    emit(sync_call("L_head"))
    lab("L_sig0")
    e("s_bfe_u32 s%d, s%d, 0x80008" % (s.t0, Fa + 3))
    e("s_sub_u32 s%d, s%d, s%d" % (s.t0, s.t0, s.m1))
    e("s_lshl_b32 s%d, s%d, 2" % (s.t0, s.t0))
    e("s_add_u32 s%d, s%d, L_cnt-L_pc-4" % (s.t0, s.t0))
    e("v_mov_b32 v%d, s%d" % (v.fo, s.t0))
    e("s_lshl_b32 s%d, s%d, 8" % (s.t0, s.wave))
    e("s_add_u32 m0, s%d, %d" % (s.t0, PRGB))
    stamp()
    emit(poll_rdy())
    mark("sig0")
    stamp()
    lab("L_head")
    qr = [kread(t, v.Q).replace("v%d " % v.ka0, "v%d " % v.t2).replace("v%d " % v.ka1, "v%d " % v.t3) for t in range(8)]
    kr = [kread(t, v.KF) for t in range(8)]
    for t in range(7):
        emit([qr[t], kr[t]])
    e("s_add_u32 s%d, s%d, s%d" % (s.t0, s.koff, s.astep))
    e("s_mul_i32 s%d, s%d, s%d" % (s.koff, s.t0, s.m1))
    e("s_waitcnt lgkmcnt(12)")
    e(QK0)
    emit([qr[7], kr[7], PRGW])
    for t in range(1, 8):
        e("s_waitcnt lgkmcnt(%d)" % (15 - 2 * t + (1 if t >= 2 else 0)))
        e(qk(t))
        if t == 1:
            e(RDYR)
            emit(kaddr())
            emit(adv(s.koff))
        if t == 2:
            e("v_and_b32 v%d, 31, v%d" % (v.t2, L))
            e("v_lshlrev_b32 v%d, 12, v%d" % (v.t2, v.t2))
            e("v_sub_u32 v%d, s%d, v%d" % (v.t2, Fa + 1, v.t2))
            e("v_ashrrev_i32 v%d, 31, v%d" % (v.t2, v.t2))
            e("v_and_b32 v%d, 0xff800000, v%d" % (v.t2, v.t2))
        if t == 3:
            e("s_bfe_u32 s%d, s%d, 0x80008" % (s.t0, Fa + 3))
            e("v_mov_b32 v%d, s%d" % (v.prg, s.t0))
            e("s_mov_b32 s%d, s%d" % (s.need, Fa + 6))
    e("s_cmp_lt_u32 s%d, 4" % s.wave)
    e("s_waitcnt lgkmcnt(0)")
    e("s_cbranch_scc0 L_head2")
    emit(poll_rdy())
    emit(kr)
    emit(kaddr())
    lab("L_head2")
    if OPT.get("lowh"):
        e("s_setprio 0")
    e("s_lshr_b32 s%d, s%d, 24" % (s.need, Fa + 3))
    e("s_nop 7")
    e("v_max3_f32 v%d, v%d, v%d, v%d" % (v.t0, v.S, v.S + 1, v.S + 2))
    e("v_max3_f32 v%d, v%d, v%d, v%d" % (v.t1, v.S + 3, v.S + 4, v.S + 5))
    for r in range(6, 14, 4):
        e("v_max3_f32 v%d, v%d, v%d, v%d" % (v.t0, v.t0, v.S + r, v.S + r + 1))
        e("v_max3_f32 v%d, v%d, v%d, v%d" % (v.t1, v.t1, v.S + r + 2, v.S + r + 3))
    e("v_max3_f32 v%d, v%d, v%d, v%d" % (v.t0, v.t0, v.S + 14, v.S + 15))
    e("v_max_f32 v%d, v%d, v%d" % (v.t0, v.t0, v.t1))
    e("v_mov_b32 v%d, v%d" % (v.t1, v.t0))
    e(RDYR)
    e("s_nop 0")
    e("v_permlane32_swap_b32 v%d, v%d" % (v.t0, v.t1))
    e("s_nop 1")
    e("v_max_f32 v%d, v%d, v%d" % (v.t0, v.t0, v.t1))
    e("v_fmamk_f32 v%d, v%d, 0x%x, v%d" % (v.nmc, v.t0, f2u(-C_SCALE), v.t2))
    for r in range(16):
        e(F(r))
    emit([ex(i) for i in range(8)] + [add(i) for i in range(1, 7)] + [cvt(0), cvt(1), cvt(2)])
    e("s_cmp_lt_u32 s%d, 4" % s.wave)
    e("s_waitcnt lgkmcnt(0)")
    e("s_cbranch_scc0 L_hlp_in")
    stamp()
    emit(poll_rdy())
    mark("loop")
    stamp()
    e("s_cmp_eq_u32 s%d, 1" % s.m1)
    e("s_cbranch_scc1 L_odd_m")
    out.append(".p2align 4")
    body("even")
    e("s_cbranch_vccnz L_hnd_even")
    body("odd")
    e("s_cbranch_vccz L_even_m")
    emit(poll_rdy())
    e("s_cmp_le_u32 s%d, 1" % s.U)
    e("s_cbranch_scc1 L_ho1")
    e("s_cmp_eq_u32 s%d, 0" % s.m1)
    e("s_cbranch_scc0 L_odd_m")
    e("s_branch L_even_m")
    lab("L_ho1")
    e("s_cmp_eq_u32 s%d, 0" % s.U)
    e("s_cbranch_scc1 L_tail0")
    e("s_cmp_eq_u32 s%d, 0" % s.m1)
    e(QK0M)
    e("s_cbranch_scc1 L_even_a")
    e("s_branch L_odd_a")
    lab("L_hnd_even")
    emit(poll_rdy())
    e("s_cmp_gt_u32 s%d, 1" % s.U)
    e("s_cbranch_scc1 L_odd_m")
    e("s_cmp_eq_u32 s%d, 0" % s.U)
    e("s_cbranch_scc1 L_tailm")
    e(QK0M)
    e("s_branch L_odd_a")
    lab("L_hlp_in")
    e(PRGW)
    stamp()
    emit(sync_call())
    stamp()
    for t in range(8):
        e(kread(t, v.KF))
    emit(kaddr())
    e("s_waitcnt lgkmcnt(4)")
    e("s_branch L_hnd_hlp")
    body("hlp")
    lab("L_hnd_hlp")
    e("s_cmp_gt_u32 s%d, 1" % s.U)
    e("s_cbranch_scc1 L_hlp_m")
    e("s_cmp_eq_u32 s%d, 0" % s.U)
    e("s_cbranch_scc1 L_tail")
    e(QK0M)
    e("s_branch L_hlp_a")
    lab("L_tail0")
    e("s_cmp_eq_u32 s%d, 1" % s.m1)
    e("s_cbranch_scc1 L_tailm")
    e("v_add_u32 v%d, 0x400, v%d" % (v.va, v.va))
    lab("L_tailm")
    e("s_bitcmp1_b32 s%d, 31" % (Fa + 4))
    e("s_cbranch_scc1 L_tails")
    for j in range(1, 4):
        e("v_add_u32 v%d, %d, v%d" % (v.va + j, 256 * j, v.va))
    tw, tr0, oo, rl = v.ka1, v.va, v.ka1r, v.X + 2

    def lsum():
        return ["v_mov_b32 v%d, v%d" % (v.t0, v.l), "s_nop 1",
                "v_permlane32_swap_b32 v%d, v%d" % (v.l, v.t0), "s_nop 1",
                "v_add_f32 v%d, v%d, v%d" % (v.l, v.l, v.t0)]

    def st_addr():
        r = ["v_and_b32 v%d, 31, v%d" % (v.t0, L),
             "v_lshrrev_b32 v%d, 5, v%d" % (v.t1, L),
             "v_lshlrev_b32 v%d, 3, v%d" % (v.t1, v.t1),
             "v_and_b32 v%d, 7, v%d" % (v.t2, L),
             "v_lshl_add_u32 v%d, v%d, 4, v%d" % (v.t1, v.t2, v.t1),
             "v_lshl_add_u32 v%d, v%d, 7, v%d" % (v.t0, v.t0, v.t1),
             "v_add_u32 v%d, s%d, v%d" % (tw, s.reg, v.t0)]
        r += ["v_xor_b32 v%d, %d, v%d" % (v.E + c, c * 16, tw) for c in range(8)]
        r += ["v_lshrrev_b32 v%d, 3, v%d" % (v.t0, L),
              "v_xor_b32 v%d, v%d, v%d" % (v.t1, v.t2, v.t0),
              "v_lshlrev_b32 v%d, 4, v%d" % (v.t1, v.t1),
              "v_lshl_add_u32 v%d, v%d, 7, v%d" % (v.t1, v.t0, v.t1),
              "v_add_u32 v%d, s%d, v%d" % (tr0, s.reg, v.t1),
              "v_lshlrev_b32 v%d, 12, v%d" % (v.t0, v.t0),
              "v_lshl_add_u32 v%d, v%d, 4, v%d" % (oo, v.t2, v.t0)]
        return r

    def pack_q(bb, norm=True, pk=True):
        r = []
        for g in range(4):
            c = 4 * bb + g
            o = v.O + 4 * c
            d = v.S + 2 * c
            if norm and not pk:
                r += ["v_mul_f32 v%d, v%d, v%d" % (o + i, o + i, rl) for i in range(4)]
            elif norm:
                r += ["v_pk_mul_f32 %s, %s, %s op_sel_hi:[1,0]" % (vr(o + i, 2), vr(o + i, 2), vr(rl, 2)) for i in (0, 2)]
            r += ["v_cvt_pk_bf16_f32 v%d, v%d, v%d" % (d, o, o + 1),
                  "v_cvt_pk_bf16_f32 v%d, v%d, v%d" % (d + 1, o + 2, o + 3),
                  "ds_write_b64 v%d, %s" % (v.E + c % 8, vr(d, 2))]
        return r

    def rd_half(hh):
        return ["ds_read_b128 %s, v%d offset:%d" % (vr(v.KF + 16 * hh + 4 * k, 4), tr0, k * 1024) for k in range(4)]

    def st_one(hh, k):
        return ["buffer_store_dwordx4 %s, v%d, %s, s%d offen offset:%d %s" % (
                    vr(v.KF + 16 * hh + 4 * k, 4), oo, sr(s.so, 4), s.col + k if k < 3 else s.t1, 128 * hh,
                    STF if hh == 0 else OPT.get("st2", OPT.get("st", "sc1")).replace("+", " ").replace("none", ""))]

    sa = st_addr()
    cols = ["s_mov_b32 s%d, 0" % s.col, "s_mov_b32 s%d, 0x8000" % (s.col + 1),
            "s_mov_b32 s%d, 0x10000" % (s.col + 2), "s_mov_b32 s%d, 0x18000" % s.t1]
    RCP = "v_rcp_f32 v%d, v%d" % (rl, v.l)
    lab("L_tail")
    mark("tail")
    if not OPT.get("nolowt"):
        e("s_setprio 0")
    e("v_mov_b32 v%d, %d" % (v.prg, BIG))
    k = newret()
    vord = [0, 1, 8, 9, 2, 3, 10, 11, 4, 5, 12, 13, 6, 7, 14, 15]
    for i in vord[:12]:
        e(vread(i))
    emit([ex(8), add(7), cvt(3)] + [ex(i) for i in range(9, 16)])
    e("s_cmp_lt_u32 s%d, 4" % s.wave)
    e("s_cbranch_scc0 L_t1")
    e("s_waitcnt vmcnt(0)")
    lab("L_t1")
    for i in vord[12:]:
        e(vread(i))
    e(PRGW)
    emit([add(i) for i in range(8, 16)] + [CMP, cvt(4), "s_mov_b32 s%d, %d" % (s.ret, k), "s_cbranch_vccnz L_resc",
                                           "L_ret%d:" % k, cvt(5), cvt(6), cvt(7), LADD])
    e("s_cmp_lt_u32 s%d, 4" % s.wave)
    e("s_waitcnt lgkmcnt(0)")
    e("s_cbranch_scc0 L_htail")
    lab("L_tail2")
    p0 = pack_q(0, pk=False)
    emit([pv(0)] + lsum() + [RCP])
    emit([pv(4), cols[0]] + sa[0:7])
    emit([pv(1), cols[1]] + sa[7:15])
    emit([pv(5), cols[2]] + sa[15:])
    emit([pv(2), cols[3]] + p0[0:7])
    emit([pv(6)] + p0[7:14])
    emit([pv(3)] + p0[14:21])
    emit([pv(7)] + p0[21:])
    lab("L_tail3")
    stamp(5)
    if OPT.get("stadj"):
        emit(pack_q(1) + rd_half(0) + pack_q(2) + pack_q(3) + rd_half(1))
        for k in range(4):
            emit(["s_waitcnt lgkmcnt(%d)" % (3 - k)] + st_one(0, k) + st_one(1, k))
    else:
        emit(pack_q(1) + rd_half(0))
        p2 = pack_q(2)
        emit(p2[:10] + ["s_waitcnt lgkmcnt(5)"] + st_one(0, 0) + p2[10:] + ["s_waitcnt lgkmcnt(4)"] + st_one(0, 1))
        p3 = pack_q(3)
        emit(p3[:10] + st_one(0, 2) + p3[10:] + st_one(0, 3) + rd_half(1))
        stamp(4)
        for k in range(4):
            emit(["s_waitcnt lgkmcnt(%d)" % (3 - k)] + st_one(1, k))
    k = newret()
    ool.append(["L_tails:"] + [vread(i, 0, True) for i in range(8)]
               + ["v_mov_b32 v%d, %d" % (v.prg, BIG), add(7), "s_waitcnt vmcnt(0)", PRGW, CMP, cvt(3), "s_mov_b32 s%d, %d" % (s.ret, k), "s_cbranch_vccnz L_resc",
                  "L_ret%d:" % k, LADD] + lsum() + [RCP, "s_waitcnt lgkmcnt(1)",
                  pv(0), cols[0]] + sa[0:7] + [pv(1), cols[1]] + sa[7:15] + [pv(2), cols[2]] + sa[15:]
               + [pv(3), cols[3]] + pack_q(0) + ["s_branch L_tail3"])
    lab("L_fin")
    if SPIN:
        mark("st")
        e("s_waitcnt vmcnt(0)")
        mark("end")
        if SPIN == "glob":
            e("s_load_dwordx2 s[98:99], s[0:1], 40")
            e("s_not_b32 s%d, s%d" % (s.t0, s.ws))
            e("v_mov_b32 v%d, s%d" % (v.t1, s.t0))
            e("v_mov_b32 v%d, 0" % v.t0)
            e("s_waitcnt lgkmcnt(0)")
            e("s_cmp_lg_u32 s%d, 0" % s.wave)
            e("s_cbranch_scc1 L_g1")
            e("s_mov_b64 exec, 1")
            e("global_atomic_umax v%d, v%d, s[98:99]" % (v.t0, v.t1))
            e("s_mov_b64 exec, -1")
            lab("L_g1")
        e("s_sub_u32 s%d, s%d, s%d" % (s.t0, s.stp, s.ws))
        e("s_mul_i32 s%d, s%d, %s" % (s.t0, s.t0, OPT.get("amp", "2")))
        if OPT.get("rmask"):
            e("s_and_b32 s%d, s2, 15" % s.t1 if OPT.get("hsel") else "s_lshr_b32 s%d, s2, 4" % s.t1)
            e("s_lshr_b32 s%d, %s, s%d" % (s.t1, OPT["rmask"], s.t1))
            e("s_and_b32 s%d, s%d, 1" % (s.t1, s.t1))
            e("s_mul_i32 s%d, s%d, s%d" % (s.t0, s.t0, s.t1))
        e("s_add_u32 s%d, s%d, 3000" % (s.t0, s.t0))
        lab("L_spin")
        e("s_sleep 2")
        e("s_memrealtime s[%d:%d]" % (s.stp, s.stp + 1))
        e("s_waitcnt lgkmcnt(0)")
        e("s_sub_u32 s%d, s%d, s%d" % (s.t1, s.stp, s.ws))
        e("s_cmp_lt_u32 s%d, s%d" % (s.t1, s.t0))
        e("s_cbranch_scc1 L_spin")
        if SPIN == "glob":
            e("global_load_dword v%d, v%d, s[98:99] sc0 sc1" % (v.t1, v.t0))
            e("s_waitcnt vmcnt(0)")
            e("v_readfirstlane_b32 s%d, v%d" % (s.t2, v.t1))
            e("s_not_b32 s%d, s%d" % (s.t2, s.t2))
            lab("L_spin2")
            e("s_sleep 2")
            e("s_memrealtime s[%d:%d]" % (s.stp, s.stp + 1))
            e("s_waitcnt lgkmcnt(0)")
            e("s_sub_u32 s%d, s%d, s%d" % (s.t1, s.stp, s.t2))
            e("s_cmp_lt_u32 s%d, 4000" % s.t1)
            e("s_cbranch_scc1 L_spin2")
    if STAMPS:
        stamp(6)
        e("s_waitcnt vmcnt(0)")
        stamp(7)
        stamp(61, True)
        e("s_getreg_b32 s%d, hwreg(HW_REG_XCC_ID)" % s.stp)
        e("v_writelane_b32 v%d, s%d, 62" % (v.st, s.stp))
        e("s_lshl_b32 s%d, s2, 3" % s.t0)
        e("s_add_u32 s%d, s%d, s%d" % (s.t0, s.t0, s.wave))
        e("s_lshl_b32 s%d, s%d, 8" % (s.t0, s.t0))
        e("v_lshlrev_b32 v%d, 2, v%d" % (v.t0, v.lane))
        e("v_add_u32 v%d, s%d, v%d" % (v.t0, s.t0, v.t0))
        if OPT.get("dbg"):
            e("v_readlane_b32 s%d, v%d, 0" % (s.t0, v.st))
            e("v_readlane_b32 s%d, v%d, 61" % (s.t1, v.st))
            e("v_readlane_b32 s%d, v%d, 1" % (s.t2, v.st))
            e("s_not_b32 s%d, s%d" % (s.t3, s.t0))
            e("v_cmp_ne_u32 vcc, 0, v%d" % v.st)
            e("v_subrev_u32 v%d, s%d, v%d" % (v.t1, s.t2, v.st))
            e("s_nop 1")
            e("v_cndmask_b32 v%d, 0, v%d, vcc" % (v.t1, v.t1))
            e("v_writelane_b32 v%d, s%d, 0" % (v.t1, s.t3))
            e("v_writelane_b32 v%d, s%d, 1" % (v.t1, s.t1))
            e("v_writelane_b32 v%d, s%d, 15" % (v.t1, s.t0))
            e("v_lshlrev_b32 v%d, 2, v%d" % (v.t0, v.lane))
            e("s_cmp_lt_u32 s%d, 4" % s.wave)
            e("s_cselect_b32 s%d, 0xffff, 0x80ff" % s.t0 if False else "s_mov_b32 s%d, 0x80ff" % s.t0)
            e("s_cselect_b32 exec_lo, 0xffff, s%d" % s.t0)
            e("s_mov_b32 exec_hi, 0")
            e("global_atomic_umax v%d, v%d, %s" % (v.t0, v.t1, sr(s.ws, 2)))
        else:
            e("global_store_dword v%d, v%d, %s" % (v.t0, v.st, sr(s.ws, 2)))
    lab("L_end")
    e("s_endpgm")
    for blk in ool:
        emit(blk)
    lab("L_sync")
    e("s_setprio %s" % OPT.get("sprio", "0"))
    e("s_min_u32 s%d, s%d, s%d" % (s.t2, s.need, s.n))
    e("s_cmp_eq_u32 s%d, 0x20000" % s.stepb)
    e("s_cselect_b32 s%d, %s, %s" % (s.t3, OPT.get("lookd", "6"), OPT.get("look", "2")))
    e("s_add_u32 s%d, s%d, s%d" % (s.t3, s.t2, s.t3))
    e("s_min_u32 s%d, s%d, s%d" % (s.t3, s.t3, s.n))
    lab("L_svc")
    e("ds_read_b32 v%d, v%d" % (v.t1, v.pra))
    e(RDYR)
    e("s_sub_i32 s%d, s%d, 5" % (s.t1, s.iss))
    e("s_cmp_gt_u32 s%d, s%d" % (s.iss, s.t3))
    e("s_waitcnt lgkmcnt(0)")
    e("s_cbranch_scc0 L_svc1")
    e("v_cmp_ge_u32 vcc, s%d, v%d" % (s.t2, v.rdy))
    e("s_cbranch_vccz L_svcx")
    e("s_cmp_gt_u32 s%d, s%d" % (s.iss, s.n))
    e("s_cbranch_scc1 L_svcs")
    lab("L_svc1")
    e("v_cmp_gt_i32 vcc, s%d, v%d" % (s.t1, v.t1))
    e("s_bitcmp1_b32 s%d, 0" % s.iss)
    e("s_cbranch_scc1 L_svcB")
    e("s_cmp_lt_u32 s%d, 8" % s.iss)
    e("s_cselect_b32 s%d, -1, s%d" % (s.t1, N + 1))
    e("s_and_b32 s%d, s%d, vcc_lo" % (s.t1, s.t1))
    e("s_and_b32 s%d, s%d, 0xff" % (s.t1, s.t1))
    e("s_cbranch_scc1 L_svc2")
    e("s_add_u32 s%d, s%d, 1" % (s.iss, s.iss))
    emit(svc_cap())
    emit(chunk(0))
    e("s_branch L_svc")
    lab("L_svcB")
    e("s_and_b32 s%d, s%d, 0xff" % (s.t1, N + 3))
    e("s_cmp_gt_u32 s%d, s%d" % (s.iss, s.t1))
    e("s_cbranch_scc1 L_svcF")
    e("s_cbranch_vccnz L_svc2")
    emit(svc_cap())
    emit(chunk(1, flag=False))
    lab("L_svcF")
    e("s_add_u32 s%d, s%d, 1" % (s.iss, s.iss))
    emit(FLAG + STEP_ADV)
    e("s_branch L_svc")
    lab("L_svc2")
    e("v_cmp_ge_u32 vcc, s%d, v%d" % (s.t2, v.rdy))
    e("s_cbranch_vccz L_svcx")
    lab("L_svcs")
    emit(spin(OPT.get("slp", "2")))
    e("s_branch L_svc")
    lab("L_svcx")
    e("s_setprio %s" % OPT.get("hprio", "3"))
    SRET_AT = len(out)
    lab("L_htail")
    e("s_mov_b32 s%d, s%d" % (s.need, s.n))
    e("s_bitcmp0_b32 s%d, 24" % (Fa + 2))
    e("s_cbranch_scc1 L_htail2")
    emit(sync_call("L_tail2"))
    lab("L_htail2")
    for i in range(8):
        e(pv(i))
    lab("L_hdone")
    e("s_mov_b32 s%d, s%d" % (s.need, s.n))
    emit(sync_call())
    e("s_sub_u32 s%d, s%d, 1" % (s.t2, s.n))
    e("s_bfe_u32 s%d, s%d, 0x40018" % (s.n, Fa + 2))
    e("s_cbranch_scc0 L_fin")
    e("s_setprio %s" % OPT.get("eprio", "0"))
    e("s_branch L_pe1")
    lab("L_pe0")
    emit(spin(OPT.get("slp", "2")))
    lab("L_pe1")
    e("ds_read_b32 v%d, v%d" % (v.t1, v.pra))
    e("s_waitcnt lgkmcnt(0)")
    e("v_cmp_gt_u32 vcc, s%d, v%d" % (s.t2, v.t1))
    e("s_cbranch_vccnz L_pe0")
    stamp(5)
    l16, l8, xa, cnt = v.ka0, v.ka0r, v.var, v.var + 1
    emit(lsum())
    e("v_lshlrev_b32 v%d, 4, v%d" % (l16, L))
    e("v_lshlrev_b32 v%d, 3, v%d" % (l8, L))
    e("s_lshl_b32 s%d, s%d, 9" % (s.t0, s.wave))
    e("s_add_u32 s%d, s%d, %d" % (s.t0, s.t0, MLBASE - 2048))
    e("v_add_u32 v%d, s%d, v%d" % (xa, s.t0, l8))
    e("ds_write_b64 v%d, %s" % (xa, vr(v.nmc, 2)))
    e("s_cmp_eq_u32 s%d, 2" % s.n)
    e("s_cbranch_scc1 L_sd2")
    for j in (1, 2, 3):
        if j == 2:
            lab("L_sd2")
        e("s_and_b32 s%d, s%d, 0xffffff" % (s.t0, Fa + 4 + j))
        e("v_add_u32 v%d, s%d, v%d" % (xa, s.t0, l16))
        for k in range(4):
            e("ds_write_b128 v%d, %s offset:%d" % (xa, vr(v.O + 16 * j + 4 * k, 4), k * 1024))
    e("s_lshr_b32 s%d, s%d, 30" % (s.t0, Fa + 2))
    e("s_lshl_b32 s%d, s%d, 2" % (s.t0, s.t0))
    e("s_add_u32 s%d, s%d, %d" % (s.t0, s.t0, CNTB))
    e("v_mov_b32 v%d, s%d" % (cnt, s.t0))
    e("v_mov_b32 v%d, 1" % v.t3)
    e("s_mov_b64 exec, 1")
    e("ds_add_u32 v%d, v%d" % (cnt, v.t3))
    e("s_mov_b64 exec, -1")
    emit(st_addr())
    e("v_add_u32 v%d, s%d, v%d" % (xa, s.reg, l16))
    for j in range(3):
        e("s_lshr_b32 s%d, s%d, 24" % (s.t0, Fa + 5 + j))
        e("s_lshl_b32 s%d, s%d, 9" % (s.t0, s.t0))
        e("s_add_u32 s%d, s%d, %d" % (s.t0, s.t0, MLBASE))
        e("v_add_u32 v%d, s%d, v%d" % (v.P + j, s.t0, l8))
    e("s_branch L_poll1")
    lab("L_poll")
    emit(spin())
    lab("L_poll1")
    e("ds_read_b32 v%d, v%d" % (v.t3, cnt))
    e("s_waitcnt lgkmcnt(0)")
    e("v_cmp_ne_u32 vcc, s%d, v%d" % (s.n, v.t3))
    e("s_cbranch_vccnz L_poll")
    stamp(4)
    for j in range(3):
        e("ds_read_b64 %s, v%d" % (vr(v.X + 2 * j, 2), v.P + j))
    for k in range(12):
        e("ds_read_b128 %s, v%d offset:%d" % (vr(v.KF + 16 + 4 * k, 4), xa, k * 1024))
    RX = v.KF + 16
    f0, f1, f2, f3 = v.X + 8, v.X + 9, v.X + 10, v.X + 11
    e("s_bfe_u32 s%d, s%d, 0x2001c" % (s.col, Fa + 2))
    e("s_lshl_b32 s%d, s%d, 6" % (s.col, s.col))
    e("s_add_u32 s%d, s%d, 0x8000" % (s.col + 1, s.col))
    e("s_add_u32 s%d, s%d, 0x10000" % (s.col + 2, s.col))
    e("s_add_u32 s%d, s%d, 0x18000" % (s.t1, s.col))
    e("s_waitcnt lgkmcnt(12)")
    e("v_min3_f32 v%d, v%d, v%d, v%d" % (v.t3, v.nmc, v.X, v.X + 2))
    e("v_min_f32 v%d, v%d, v%d" % (v.t3, v.t3, v.X + 4))
    e("v_sub_f32 v%d, v%d, v%d" % (f0, v.t3, v.nmc))
    for j, f in enumerate((f1, f2, f3)):
        e("v_sub_f32 v%d, v%d, v%d" % (f, v.t3, v.X + 2 * j))
    for f in (f0, f1, f2, f3):
        e("v_exp_f32 v%d, v%d" % (f, f))
    e("v_mul_f32 v%d, v%d, v%d" % (v.l, v.l, f0))
    e("v_fmac_f32 v%d, v%d, v%d" % (v.l, v.X + 1, f1))
    e("s_cmp_eq_u32 s%d, 2" % s.n)
    e("s_cbranch_scc1 L_mg2")
    e("v_fmac_f32 v%d, v%d, v%d" % (v.l, v.X + 3, f2))
    e("v_fmac_f32 v%d, v%d, v%d" % (v.l, v.X + 5, f3))
    e("v_rcp_f32 v%d, v%d" % (v.t3, v.l))
    e("v_and_b32 v%d, 4, v%d" % (v.t0, L))
    e("v_lshl_add_u32 v%d, v%d, 28, v%d" % (oo, v.t0, oo))
    for f in (f0, f1, f2, f3):
        e("v_mul_f32 v%d, v%d, v%d" % (f, f, v.t3))
    for i in range(16):
        e("v_mul_f32 v%d, v%d, v%d" % (v.O + i, v.O + i, f0))
    for j, f in enumerate((f1, f2, f3)):
        e("s_waitcnt lgkmcnt(%d)" % (8 - 4 * j))
        for i in range(16):
            e("v_fmac_f32 v%d, v%d, v%d" % (v.O + i, RX + 16 * j + i, f))
    e("s_branch L_mg3")
    lab("L_mg2")
    e("v_rcp_f32 v%d, v%d" % (v.t3, v.l))
    e("s_nop 0")
    for f in (f0, f1):
        e("v_mul_f32 v%d, v%d, v%d" % (f, f, v.t3))
    for i in range(32):
        e("v_mul_f32 v%d, v%d, v%d" % (v.O + i, v.O + i, f0))
    e("s_waitcnt lgkmcnt(0)")
    for i in range(32):
        e("v_fmac_f32 v%d, v%d, v%d" % (v.O + i, RX + i, f1))
    emit(pack_q(1, False))
    lab("L_mg3")
    emit(pack_q(0, False) + rd_half(0))
    for k in range(4):
        emit(["s_waitcnt lgkmcnt(%d)" % (3 - k)] + st_one(0, k))
    e("s_branch L_fin")
    lab("L_resc")
    e("v_max3_f32 v%d, v%d, v%d, v%d" % (v.t0, v.X, v.X + 1, v.X + 2))
    for r in range(3, 15, 2):
        e("v_max3_f32 v%d, v%d, v%d, v%d" % (v.t0, v.t0, v.X + r, v.X + r + 1))
    e("v_max3_f32 v%d, v%d, v%d, 0" % (v.t0, v.t0, v.X + 15))
    e("v_mov_b32 v%d, v%d" % (v.t1, v.t0))
    e("s_nop 1")
    e("v_permlane32_swap_b32 v%d, v%d" % (v.t0, v.t1))
    e("s_nop 1")
    e("v_max_f32 v%d, v%d, v%d" % (v.t0, v.t0, v.t1))
    e("v_exp_f32 v%d, -v%d" % (v.t1, v.t0))
    e("v_sub_f32 v%d, v%d, v%d" % (v.nmc, v.nmc, v.t0))
    for r in range(16):
        e("v_sub_f32 v%d, v%d, v%d" % (v.X + r, v.X + r, v.t0))
    e("v_mul_f32 v%d, v%d, v%d" % (v.l, v.l, v.t1))
    for i in range(64):
        e("v_mul_f32 v%d, v%d, v%d" % (v.O + i, v.O + i, v.t1))
    emit(soft_half_plain(0))
    emit(soft_half_plain(1))
    for k, r in enumerate(rets[:-1]):
        e("s_cmp_eq_u32 s%d, %d" % (s.ret, k))
        e("s_cbranch_scc1 %s" % r)
    e("s_branch %s" % rets[-1])
    rl_ = []
    order = [2, 1, 0, 3, 4]
    assert len(srets) == len(order)
    for k in order[:-1]:
        rl_ += ["    s_cmp_eq_u32 s%d, %d" % (s.sret, k), "    s_cbranch_scc1 %s" % srets[k]]
    rl_ += ["    s_branch %s" % srets[order[-1]]]
    out[SRET_AT:SRET_AT] = rl_
    out.append(".p2align 6")
    out.append(".type L_near,@object")
    lab("L_near")
    for ent in near:
        out.append("    .long " + ", ".join("0x%x" % x for x in ent))
    lab("L_far")
    for ent in far:
        out.append("    .long " + ", ".join("0x%x" % x for x in ent))
    lab("L_cnt")
    out.append("    .long " + ", ".join(str(i) for i in range(32)))
    out.append(".size L_near, .-L_near")
    lab("L_codeend")
    out.append("    .fill 512, 4, 0xbf800000")
    out.append('.section .rodata,"a"')
    out.append(".p2align 6")
    out.append(".amdhsa_kernel " + K)
    out.append("  .amdhsa_next_free_vgpr %d" % NV)
    out.append("  .amdhsa_next_free_sgpr %d" % NS)
    out.append("  .amdhsa_accum_offset %d" % NV)
    out.append("  .amdhsa_group_segment_fixed_size 0")
    out.append("  .amdhsa_kernarg_size 56")
    out.append("  .amdhsa_user_sgpr_count 2")
    out.append("  .amdhsa_user_sgpr_kernarg_segment_ptr 1")
    out.append("  .amdhsa_system_sgpr_workgroup_id_x 1")
    out.append(".end_amdhsa_kernel")
    txt = "\n".join(out) + "\n"
    txt = txt.replace("PFSTRIDE", OPT.get("pf", "32"))
    import subprocess, tempfile, os
    tmp = tempfile.mkdtemp()
    open(tmp + "/a.s", "w").write(txt.replace("offset:L_near-L_pc", "offset:0x100").replace("offset:L_far-L_pc", "offset:0x100"))
    subprocess.run(["clang", "-x", "assembler", "-target", "amdgcn-amd-amdhsa", "-mcpu=gfx950", "-c", tmp + "/a.s", "-o", tmp + "/a.o"], check=True)
    sy = {}
    for ln in subprocess.run(["llvm-objdump", "-t", tmp + "/a.o"], capture_output=True, text=True).stdout.splitlines():
        p = ln.split()
        if len(p) >= 5 and p[-1].startswith("L_"):
            sy[p[-1]] = int(p[0], 16)
    assert sy["L_codeend"] - sy["L_pc"] <= 512 * int(OPT.get("pf", "32")) + 128 or STAMPS or SPIN, hex(sy["L_codeend"])
    assert sy["L_codeend"] + 2048 - sy["L_pc"] >= 512 * int(OPT.get("pf", "32"))
    for t in ("L_near", "L_far"):
        txt = txt.replace("offset:%s-L_pc" % t, "offset:0x%x" % (sy[t] - sy["L_pc"]))
        txt = txt.replace(t + ":\n", t + ":\n.if (%s-L_pc) != 0x%x\n.error \"table offset\"\n.endif\n" % (t, sy[t] - sy["L_pc"])) if False else txt
    return txt


if __name__ == "__main__":
    args = [a for a in sys.argv[1:] if a.endswith(".s")]
    path = args[0] if args else "cdna_kernels/%s.s" % NAME
    open(path, "w").write(gen())
    print("wrote", path)
```

```python
import sys, struct, math

NAME = "standalone__varlen_attn_packed__ragged"
CU = [0, 289, 520, 939, 1289, 1402, 1666, 1973, 2275]
LEN = [CU[i + 1] - CU[i] for i in range(8)]
T_TOT = 2275
ROWB = 4096
TENSOR_BYTES = T_TOT * ROWB

OPT = {}
for a in sys.argv[1:]:
    if a.startswith("--"):
        k, _, val = a[2:].partition("=")
        OPT[k] = val if val else "1"
STAMPS = "stamps" in OPT or "lite" in OPT
LITE = "lite" in OPT
LDF_Q = OPT.get("ldq", "none").replace("+", " ").replace("none", "")
LDF_K = OPT.get("ldk", "none").replace("+", " ").replace("none", "")
STF = OPT.get("st", "sc1").replace("+", " ").replace("none", "")
FLY = int(OPT.get("fly", "4"))

HEADER = """; Kernarg layout for this problem (56 bytes, ptrs only, base s[0:1]):
;   offset   0: d_in[0] q  shape=(2275, 16, 128) dtype=bfloat16 strides=(4096, 256, 2) contiguous=True
;   offset   8: d_in[1] k  shape=(2275, 16, 128) dtype=bfloat16 strides=(4096, 256, 2) contiguous=True
;   offset  16: d_in[2] v  shape=(2275, 16, 128) dtype=bfloat16 strides=(4096, 256, 2) contiguous=True
;   offset  24: d_in[3] cu  shape=(9,) dtype=int32 strides=(4,) contiguous=True
;   offset  32: d_out     shape=(2275, 16, 128) dtype=bfloat16 (2 bytes/elem)
"""


def f2u(x):
    return struct.unpack("<I", struct.pack("<f", x))[0]


def cdiv(a, b):
    return (a + b - 1) // b


LDS_TOTAL = 163840
QBASE = 98304
XTRA = 131072
MLBASE = XTRA + 16384
PRGB = XTRA + 7 * 4096 + 2048
RDYB = XTRA + 6 * 4096 + 3072
CNTB = XTRA + 6 * 4096 + 2048
BIG = 0x4000

ROLES = [
    ("dual", (1, 6, 2), (4, 0, 4)),
    (5, 0, 6),
    (3, 0, 5), (3, 5, 5),
    ("dual", (3, 10, 1), (5, 6, 3)),
    (1, 0, 6),
    (6, 0, 5), (6, 5, 5),
    (7, 0, 5), (7, 5, 5), (0, 0, 5), (0, 5, 5),
    (2, 0, 4), (2, 4, 4), (2, 8, 3), (2, 11, 3),
]
QL = int(OPT.get("ql", "4"))
QLC = int(OPT.get("qlc", "3"))
QE = int(OPT.get("qe", "0"))


def nrec(rows):
    return (rows - 1) * ROWB + 256 if rows > 0 else 0


def build_tables():
    near, far, desc = [], [], []
    for ri, role in enumerate(ROLES):
        W = [None] * 8
        groups = []
        if role[0] == "dual":
            (sa, ta, na), (sb, tb, nb) = role[1], role[2]
            rowA, lenA, rowB, lenB, step = CU[sa], LEN[sa], CU[sb], LEN[sb], 32
            n_it = max(cdiv(lenA, 32), cdiv(lenB, 32))
            tiles = [(sa, ta + i, 0) for i in range(na)] + [(sb, tb + i, 1) for i in range(nb)]
            nq = len(tiles)
            for i in range(4):
                sq, tl, st = tiles[i]
                W[i] = dict(seq=sq, tile=tl, ql=i, type=2, stream=st, its=list(range(cdiv(LEN[sq], 32))), hastail=1)
            for i in range(4, nq):
                sq, tl, st = tiles[i]
                nb_ = cdiv(LEN[sq], 32)
                W[i + 2] = dict(seq=sq, tile=tl, ql=i, type=3, stream=st, its=list(range(nb_)), hastail=1,
                                G=1, reg=XTRA + 4096 * i)
        else:
            sa, t0, nq = role
            rowA, lenA, rowB, lenB, step = CU[sa], LEN[sa], CU[sa] + 32, LEN[sa] - 32, 64
            nkv = cdiv(lenA, 32)
            n_it = cdiv(nkv, 2)
            tiles = [(sa, t0 + i, 0) for i in range(nq)]
            for i in range(min(nq, 4)):
                W[i] = dict(seq=sa, tile=t0 + i, ql=i, type=1, stream=0, its=list(range(nkv)), hastail=1)
            nh = 4 // (nq - 4) if nq > 4 else 0
            for i in range(4, nq):
                ws = [4, 5, 6, 7] if nh == 4 else [4 + (i - 4), 6 + (i - 4)]
                for k, w in enumerate(ws):
                    blocks = [p for p in range(nkv) if p % nh == k]
                    W[w] = dict(seq=sa, tile=t0 + i, ql=i, type=3, stream=k % 2, its=[p // 2 for p in blocks],
                                hastail=int((nkv - 1) in blocks))
                groups.append(ws)
        qrows = [CU[sq] + 32 * tl for sq, tl, _ in tiles] + [0xfff] * (6 - nq)
        qrows = [r | (0x1000 if i < nq and tiles[i][2] else 0) for i, r in enumerate(qrows)]
        maskA = sum(1 << i for i, w in enumerate(W) if w and (w["type"] == 1 or w["stream"] == 0 or i < 4 and role[0] != "dual"))
        lastB = 2 * cdiv(lenB, step) + 1
        near.append([rowA * ROWB, nrec(lenA) | maskA, rowB * ROWB, nrec(lenB) | lastB, step * ROWB | (2 * n_it + 1),
                     qrows[0] | qrows[1] << 16, qrows[2] | qrows[3] << 16, qrows[4] | qrows[5] << 16])
        areas = [((n_it + 1) % 4) * 32768, ((n_it + 2) % 4) * 32768]
        recv = [areas[0], areas[0] + 12288, areas[1], areas[1] + 12288]
        for i in range(4):
            if W[i]:
                W[i]["reg"] = XTRA + 4096 * i
        for gi, g in enumerate(groups):
            G = len(g)
            for k, w in enumerate(g):
                W[w]["reg"] = recv[w - 4]
                W[w]["G"], W[w]["k"], W[w]["gi"] = G, k, gi
                if G == 4:
                    W[w]["send"] = [recv[g[(j + k) % 4] - 4] + (j - 1) * 4096 for j in (1, 2, 3)]
                    W[w]["src"] = [g[(k - j) % 4] for j in (1, 2, 3)]
                else:
                    o = g[1 - k]
                    W[w]["send"] = [0, recv[o - 4], recv[o - 4] + 4096]
                    W[w]["src"] = [o, o, o]
        for wi in range(8):
            w = W[wi]
            desc.append(w)
            if w is None:
                far.append([0] * 8)
                continue
            sq, its, typ, sc = w["seq"], w["its"], w["type"], w["stream"]
            tail = LEN[sq] % 32
            orow = CU[sq] + 32 * w["tile"]
            onr = min(32, CU[sq + 1] - orow)
            assert onr > 0 and tail > 0
            U = len(its) - 1
            a0, st = its[0], its[1] - its[0]
            assert all(its[i] == a0 + st * i for i in range(len(its))) and st <= 2 and a0 <= 1 and U >= 1
            if typ == 1:
                inc, prg0, prg1, need1, need2 = 1, 2, 4, 0, 2
            elif typ == 2:
                inc, prg0, prg1, need1, need2 = 2, 2, 4 + sc, sc, 4 + sc
            else:
                inc, prg0, prg1, need1, need2 = 2 * st, 2 * a0 + sc + 2, 2 * (a0 + 1) + sc + 2, max(QE if QE else 3, 2 * a0 + sc), 2 * (a0 + st) + sc
            needk = max(need1 + 2 * (typ == 2), 1)
            if typ != 3 and wi >= QL:
                need1 = max(need1, QLC)
            w.update(needk=needk)
            w.update(U=U, a0=a0, st=st, inc=inc, prg0=prg0, prg1=prg1, need1=need1, need2=need2, n_it=n_it)
            hm = 0
            if typ != 3:
                nlast = 2 * n_it + 1
                pub = prg0
                w["pubs"] = []
                for b in range(U):
                    val = prg1 + inc * (b + 1)
                    want = pub < nlast - 5 and (typ == 2 or b % 2 == 1 or OPT.get("puball"))
                    if groups and pub < nlast - 1 <= val:
                        want = True
                    if typ == 2 or U - 1 - b <= 1:
                        hm |= 1 << (U - 1 - b)
                    if want and OPT.get("nodpub"):
                        hm |= 0x10001 << (U - 1 - b)
                        pub = val
                        w["pubs"].append(b)
            G, k, gi = w.get("G", 0), w.get("k", 0), w.get("gi", 0)
            rot = k * (4 // G) if G > 1 else 0
            ent = [orow * ROWB, nrec(onr),
                   U | typ << 8 | inc << 12 | (tail if w["hastail"] else 32) << 16 | G << 24 | rot << 28 | gi << 30,
                   prg0 | prg1 << 8 | need1 << 16 | need2 << 24,
                   w["reg"] | w["ql"] << 20 | (1 - sc) << 24 | a0 << 25 | st << 26 | int(typ != 3 and tail <= 16 and not OPT.get("noshort")) << 31]
            if G > 1:
                ent += [w["send"][j] | ((w["src"][j] - 4) << 24) for j in range(3)]
            if typ != 3:
                ent += [hm, needk]
            ent += [0] * (8 - len(ent))
            far.append(ent)
    return near, far, desc


class R:
    pass


v = R()
v.kd0, v.kd1, v.vd0, v.vd1 = 1, 2, 3, 4
v.ka0r, v.ka1r = 5, 6
v.ka0, v.ka1 = 7, 8
v.rdya, v.rdy = 9, 10
v.lane = 11
v.nmc, v.l = 12, 13
v.ps = 14
v.t0, v.t1, v.t2, v.t3 = 15, 16, 17, 18
v.pf = 19
v.st = 20
v.prga, v.prg = 21, 22
v.fo = 23
v.pra = 0
v.Q = 24
v.O = 56
v.S = 120
v.B = 136
v.KF = 152
v.VF = 184
v.X = 216
v.E = 232
v.P = 240
v.var = 248
v.va = 252
NV = 256

s = R()
s.q, s.k, s.vv, s.cu, s.out = 4, 6, 8, 10, 12
s.near = 16
s.far = 24
s.kA, s.kB, s.vA, s.vB, s.sq, s.so = 32, 36, 40, 44, 48, 52
s.wave, s.hoff = 56, 57
s.n = 58
s.thr = 59
s.soff = 60
s.dslot = 61
s.U = 62
s.mu = 63
s.koff, s.voff = 64, 65
s.need, s.chk = 66, 67
s.t0, s.t1, s.t2, s.t3 = 68, 69, 70, 71
s.pc = 72
s.stp = 74
s.ws = 76
s.sti = 78
s.ret = 79
s.foff = 80
s.reg = 81
s.m1 = 82
s.lnd = 83
s.inc = 84
s.col = 85
s.astep = 88
s.sret = 89
s.guard = 90
s.iss = 91
s.d0, s.rdw = 92, 93
s.qea, s.qeb = 94, 95
s.stepb = 97
NS = 100

C_SCALE = (128 ** -0.5) * math.log2(math.e)
CL = "0x%x" % f2u(C_SCALE)
THRESH = 4096.0

out = []


def e(x):
    out.append("    " + x)


def lab(x):
    out.append(x + ":")


def vr(b, n):
    return "v[%d:%d]" % (b, b + n - 1)


def sr(b, n):
    return "s[%d:%d]" % (b, b + n - 1)


def emit(lst):
    for x in lst:
        if x is None:
            continue
        if x.endswith(":"):
            out.append(x)
        else:
            e(x)


def stamp_l(k=None, real=False):
    if not STAMPS or (LITE and k not in (7, 61)):
        return []
    if OPT.get("rt") and k is None and not real:
        return stamp_l(None, True) + stamp_l(None, "c")
    real = real is True
    r = ["%s s[%d:%d]" % ("s_memrealtime" if real else "s_memtime", s.stp, s.stp + 1), "s_waitcnt lgkmcnt(0)"]
    if k is None:
        r += ["s_mov_b32 s%d, m0" % (s.stp + 1), "s_mov_b32 m0, s%d" % s.sti, "s_nop 0",
              "v_writelane_b32 v%d, s%d, m0" % (v.st, s.stp),
              "s_add_u32 s%d, s%d, 1" % (s.sti, s.sti), "s_mov_b32 m0, s%d" % (s.stp + 1)]
    else:
        r += ["v_writelane_b32 v%d, s%d, %d" % (v.st, s.stp, k)]
    return r


def stamp(k=None, real=False):
    emit(stamp_l(k, real))


SPIN = OPT.get("spin")


def mark(name):
    if SPIN == name:
        e("s_memrealtime s[%d:%d]" % (s.stp, s.stp + 1))
        e("s_waitcnt lgkmcnt(0)")


def kread(t, dst, st=0):
    return "ds_read_b128 %s, v%d offset:%d" % (vr(dst + 4 * t, 4), v.ka1 if t % 2 else v.ka0,
                                               (t // 4) * 16384 + ((t // 2) % 2) * 256 + st * 1024)


def vread(i, st=0, one=False):
    t, bb, ss = i // 8, (i // 2) % 4, i % 2
    reg = v.VF + (t * 4 + bb) * 4 + ss * 2
    if one:
        return "ds_read_b64_tr_b16 %s, v%d offset:%d" % (vr(reg, 2), v.va, (4 * t + 2 * ss) * 4096 + st * 1024 + bb * 256)
    return "ds_read_b64_tr_b16 %s, v%d offset:%d" % (vr(reg, 2), v.va + bb, (4 * t + 2 * ss) * 4096 + st * 1024)


def ld(kv, col, half, so):
    srd = {("K", 0): s.kA, ("K", 1): s.kB, ("V", 0): s.vA, ("V", 1): s.vB}[(kv, col)]
    off = (2048 if kv == "V" else 0) + (1024 if col == 0 else 0)
    vo = {("K", 0): v.kd0, ("K", 1): v.kd1, ("V", 0): v.vd0, ("V", 1): v.vd1}[(kv, half)]
    return "buffer_load_dwordx4 v%d, %s, s%d offen %s%s lds" % (vo, sr(srd, 4), so, "offset:%d " % off if off else "", LDF_K)


STEP_ADV = ["s_add_u32 s%d, s%d, s%d" % (s.soff, s.soff, s.stepb),
            "s_add_u32 s%d, s%d, 0x8000" % (s.dslot, s.dslot),
            "s_and_b32 s%d, s%d, 0x1ffff" % (s.dslot, s.dslot)]


FLAG = ["s_mov_b32 m0, s%d" % s.rdw,
        "v_add_u32 v%d, 4, v%d" % (v.fo, v.fo),
        "global_load_lds_dword v%d, %s" % (v.fo, sr(s.pc, 2))]


def chunk(col, k_only=False, pace=0, flag=True):
    p = []
    if pace:
        p = ["s_sleep %d" % pace if pace < 16 else "s_nop %d" % (pace - 16)]
    r = []
    for half, m in ((0, "s_mov_b32 m0, s%d" % s.dslot), (1, "s_add_u32 m0, s%d, 0x4000" % s.dslot)):
        r += [m, "s_nop 0"]
        if not k_only:
            r += [ld("V", col, half, s.soff)] + p
        r += [ld("K", col, half, s.soff)] + p
    return r + (FLAG if flag else [])


def qk(t):
    return "v_mfma_f32_32x32x16_bf16 %s, %s, %s, %s" % (vr(v.S, 16), vr(v.KF + 4 * t, 4), vr(v.Q + 4 * t, 4), vr(v.S, 16))


def pv(i):
    t, bb = i // 4, i % 4
    return "v_mfma_f32_32x32x16_bf16 %s, %s, %s, %s" % (
        vr(v.O + 16 * bb, 16), vr(v.VF + (t * 4 + bb) * 4, 4), vr(v.P + 4 * t, 4), vr(v.O + 16 * bb, 16))


def F(r):
    return "v_fmamk_f32 v%d, v%d, %s, v%d" % (v.X + r, v.S + r, CL, v.nmc)


def ex(r):
    return "v_exp_f32 v%d, v%d" % (v.E + r % 8, v.X + r)


def add(r):
    if r == 0:
        return None
    if r == 1:
        return "v_add_f32 v%d, v%d, v%d" % (v.ps, v.E, v.E + 1)
    return "v_add_f32 v%d, v%d, v%d" % (v.ps, v.ps, v.E + r % 8)


def cvt(i):
    return "v_cvt_pk_bf16_f32 v%d, v%d, v%d" % (v.P + i, v.E + (2 * i) % 8, v.E + (2 * i + 1) % 8)


def soft_half_plain(h):
    r = [ex(8 * h + i) for i in range(8)]
    r += [x for x in (add(8 * h + i) for i in range(8)) if x]
    r += [cvt(4 * h + i) for i in range(4)]
    return r


CMP = "v_cmp_lt_f32 vcc, s%d, v%d" % (s.thr, v.ps)
LADD = "v_add_f32 v%d, v%d, v%d" % (v.l, v.l, v.ps)
PRGW = "ds_write_b32 v%d, v%d" % (v.prga, v.prg)
RDYR = "ds_read_b32 v%d, v%d" % (v.rdy, v.rdya)
PRGINC = "v_add_u32 v%d, s%d, v%d" % (v.prg, s.inc, v.prg)
NEEDINC = "s_add_u32 s%d, s%d, s%d" % (s.need, s.need, s.inc)
QK0 = "v_mfma_f32_32x32x16_bf16 %s, %s, %s, 0" % (vr(v.S, 16), vr(v.KF, 4), vr(v.Q, 4))
QK0M = "v_mfma_f32_32x32x16_bf16 %s, %s, %s, %s" % (vr(v.S, 16), vr(v.KF, 4), vr(v.Q, 4), vr(v.B, 16))
rets, srets = [], []


def newret():
    rets.append("L_ret%d" % len(rets))
    return len(rets) - 1


def kaddr():
    return ["v_add_u32 v%d, s%d, v%d" % (v.ka0, s.koff, v.ka0r),
            "v_add_u32 v%d, s%d, v%d" % (v.ka1, s.koff, v.ka1r)]


def vaddr():
    return ["v_add_u32 v%d, s%d, v%d" % (v.va + j, s.voff, v.var + j) for j in range(4)]


def adv(reg):
    return ["s_add_u32 s%d, s%d, s%d" % (reg, reg, s.astep), "s_and_b32 s%d, s%d, 0x1ffff" % (reg, reg)]


_sc = [0]


def svc_cap():
    r = ["s_waitcnt vmcnt(%s)" % OPT.get("cap", "10")]
    if OPT.get("cap0"):
        _sc[0] += 1
        r += ["s_and_b32 s%d, s%d, %s" % (s.t1, s.hoff, OPT.get("capm", "0x300")), "s_cbranch_scc1 L_sc%d" % _sc[0],
              "s_waitcnt vmcnt(%s)" % OPT["cap0"], "L_sc%d:" % _sc[0]]
    return r


def headmap():
    if OPT.get("gc"):
        tab = sum(int(OPT["gc"][2 * x + 1]) << (4 * x) for x in range(8))
        return ["s_lshl_b32 s%d, s2, 2" % s.t1,
                "s_lshr_b32 s%d, 0x%x, s%d" % (s.t1, tab, s.t1),
                "s_and_b32 s%d, s%d, 3" % (s.t1, s.t1),
                "s_bfe_u32 s%d, s2, 0x20003" % s.hoff,
                "s_lshl2_add_u32 s%d, s%d, s%d" % (s.t1, s.hoff, s.t1),
                "s_lshl_b32 s%d, s%d, 8" % (s.hoff, s.t1)]
    cm = OPT.get("cmap", "1302")
    if not cm:
        return ["s_and_b32 s%d, s2, 15" % s.t1, "s_lshl_b32 s%d, s%d, 8" % (s.hoff, s.t1)]
    tab = 0
    cls = [int(c) for c in cm]
    for i in range(16):
        x, hs = i & 7, i >> 3
        tab |= (cls[x >> 1] + 4 * (x & 1) + 8 * hs) << (4 * i)
    return ["s_lshl_b32 s%d, s2, 2" % s.t1,
            "s_lshr_b32 s%d, 0x%x, s%d" % (s.t1, tab & 0xffffffff, s.t1),
            "s_and_b32 s%d, s%d, 7" % (s.t1, s.t1),
            "s_and_b32 s%d, s2, 8" % s.hoff,
            "s_or_b32 s%d, s%d, s%d" % (s.t1, s.t1, s.hoff),
            "s_lshl_b32 s%d, s%d, 8" % (s.hoff, s.t1)]


def flag_init():
    return ["v_lshlrev_b32 v%d, 2, v0" % v.prga,
            "v_add_u32 v%d, %d, v%d" % (v.prga, PRGB - 4096, v.prga),
            "v_mov_b32 v%d, 0" % v.l,
            "ds_write_b32 v%d, v%d" % (v.prga, v.l),
            "ds_write_b32 v%d, v%d offset:4096" % (v.prga, v.l),
            "s_lshl_b32 s%d, s%d, 8" % (s.foff, s.foff),
            "s_lshr_b32 s%d, s%d, 1" % (s.t0, s.wave),
            "s_add_u32 s%d, s%d, s%d" % (s.foff, s.foff, s.t0)]


def far_load():
    r = []
    if STAMPS:
        r += ["v_mov_b32 v%d, 0" % v.st, "s_mov_b32 s%d, 8" % s.sti,
              "v_writelane_b32 v%d, s%d, 0" % (v.st, s.stp), "v_writelane_b32 v%d, s%d, 1" % (v.st, s.ws),
              "s_load_dwordx2 %s, s[0:1], 48" % sr(s.ws, 2)]
    return r + ["s_load_dwordx8 %s, %s, s%d offset:L_far-L_pc" % (sr(s.far, 8), sr(s.pc, 2), s.foff),
                "s_load_dwordx2 s[12:13], s[0:1], 32"]


def spin(n="1"):
    r = ["s_sleep %s" % n]
    if not OPT.get("nosafe"):
        r += ["s_sub_u32 s%d, s%d, 1" % (s.guard, s.guard), "s_cbranch_scc1 L_end"]
    return r


def sync_call(target=None):
    k = len(srets)
    srets.append(target or "L_sr%d" % k)
    return ["s_mov_b32 s%d, %d" % (s.sret, k), "s_branch L_sync"] + ([] if target else ["L_sr%d:" % k])


_pl = [0]


ool = []


def poll_rdy():
    _pl[0] += 1
    a, b = "L_pa%d" % _pl[0], "L_pb%d" % _pl[0]
    ool.append([a + ":"] + spin() + [RDYR, "s_waitcnt lgkmcnt(0)", "s_branch %s" % b])
    return ["s_min_u32 s%d, s%d, s%d" % (s.t2, s.need, s.n), b + ":",
            "v_cmp_ge_u32 vcc, s%d, v%d" % (s.t2, v.rdy), "s_cbranch_vccnz %s" % a]


def body(kind):
    odd, hlp = kind != "even", kind == "hlp"
    st = 0 if odd else 1
    V = lambda i: vread(i, st, not hlp)
    K = lambda t: kread(t, v.KF, st)
    W = lambda n: "s_waitcnt lgkmcnt(%d)" % n
    k = newret()
    q = [
        [NEEDINC, V(0), V(1), ex(8), add(7), cvt(3)],
        ["s_mov_b32 s%d, %d" % (s.ret, k), V(2), V(3), ex(9), ex(10)],
        [W(4), V(4), V(5), ex(11), add(8), add(9)],
        ["s_sub_u32 s%d, s%d, 1" % (s.U, s.U), V(6), V(7), ex(12), ex(13)],
        [None, V(8), V(9), ex(14), add(10), add(11)],
        [None, V(10), V(11), ex(15), add(12), add(13)],
        [W(4), V(12), V(13), add(14), add(15), CMP, cvt(4)],
        ["s_cbranch_vccnz L_resc", "L_ret%d:" % k, V(14), V(15), LADD, cvt(5), cvt(6), cvt(7)],
    ]
    p = [
        ["s_nop 0", K(0), K(1), K(2), F(0), F(1), F(2)],
        [None, K(3), ex(0), F(3), F(4), F(5)],
        [None, K(4), ex(1), F(6), F(7), F(8)],
        [W(5), K(5), ex(2), add(1), F(9), F(10)],
        [None, K(6), ex(3), add(2), cvt(0), F(11)],
        [None, K(7), ex(4), add(3), cvt(1), F(12)],
        [W(4), ex(5), ex(6), add(4), F(13)],
        [None, ex(7), add(5), add(6), cvt(2), F(14), F(15)],
    ]
    if odd:
        q[4][0], q[5][0] = adv(s.voff)
        p[4][0], p[5][0] = adv(s.koff)
        va, ka = vaddr(), kaddr()
        p[1].append(va[0])
        if hlp:
            p[3].append(va[1])
            p[4].append(va[2])
            p[5].append(va[3])
        p[6].append(ka[0])
        p[7].append(ka[1])
    if not hlp:
        p[0][0] = "s_min_u32 s%d, s%d, s%d" % (s.chk, s.need, s.n)
        p[1][0] = "s_bitcmp1_b32 s%d, s%d" % (s.far + 5, s.U)
        p[2][0] = "s_cselect_b32 s%d, -1, s%d" % (s.chk, s.chk)
        p[2][2:2] = [RDYR]
        p[6][0] = W(3)
        if odd and (not OPT.get("nodpub")):
            q[2].append("v_add_u32 v%d, 8, v%d" % (v.fo, v.fo))
            q[3][1:1] = ["global_load_lds_dword v%d, %s" % (v.fo, sr(s.pc, 2))]
        p[7][3:3] = ["v_cmp_ge_u32 vcc, s%d, v%d" % (s.chk, v.rdy)]
    else:
        q[1].append(PRGINC)
        q[7][4:4] = [PRGW]
        sc = sync_call()
        q[3][1:1] = [sc[0]]
        p[0][0:1] = stamp_l() + sc[1:] + stamp_l()
    lab("L_%s_m" % kind)
    e(QK0)
    lab("L_%s_a" % kind)
    emit(q[0])
    for t in range(1, 8):
        e(qk(t))
        emit(q[t])
    for i in range(8):
        e(pv(i))
        emit(p[i])
    if not hlp:
        stamp()


def gen():
    K = NAME + "_kernel"
    near, far, _ = build_tables()
    PACE = int(OPT.get("pace", "0"))
    out.append(HEADER + "; @launch grid=(256,1,1) block=(512,1,1) lds=%d" % LDS_TOTAL)
    out.append('.amdgcn_target "amdgcn-amd-amdhsa--gfx950"')
    out.append(".text")
    out.append(".globl " + K)
    out.append(".p2align 12")
    out.append(".p2align 8")
    out.append(".type %s,@function" % K)
    lab(K)
    L, N, Fa = v.lane, s.near, s.far
    if SPIN:
        e("s_memrealtime s[%d:%d]" % (s.ws, s.ws + 1))
        e("s_memrealtime s[%d:%d]" % (s.stp, s.stp + 1))
    if STAMPS:
        e("s_memrealtime s[%d:%d]" % (s.stp, s.stp + 1))
        e("s_memtime s[%d:%d]" % (s.ws, s.ws + 1))
    e("s_load_dwordx8 s[4:11], s[0:1], 0")
    e("s_getpc_b64 %s" % sr(s.pc, 2))
    lab("L_pc")
    if OPT.get("gc"):
        gm = sum((OPT["gc"][2 * x] == "L") << x for x in range(8)) * 0x01010101
        e("s_lshr_b32 s%d, s2, 5" % s.foff)
        e("s_bitcmp1_b32 0x%x, s2" % gm)
        e("s_cselect_b32 s%d, 8, 0" % s.t1)
        e("s_add_u32 s%d, s%d, s%d" % (s.foff, s.foff, s.t1))
    else:
        e("s_lshr_b32 s%d, s2, 4" % s.foff)
    e("s_lshl_b32 s%d, s%d, 5" % (s.t1, s.foff))
    e("s_load_dwordx8 %s, %s, s%d offset:L_near-L_pc" % (sr(s.near, 8), sr(s.pc, 2), s.t1))
    e("v_mul_u32_u24 v%d, PFSTRIDE, v0" % v.t0)
    e("v_readfirstlane_b32 s%d, v0" % s.wave)
    e("global_load_dword v%d, v%d, %s" % (v.pf, v.t0, sr(s.pc, 2)))
    e("s_cmp_ge_u32 s2, 256" if OPT.get("gc") else "s_cmp_ge_u32 s%d, 16" % s.foff)
    e("s_cbranch_scc1 L_end")
    e("s_bitcmp0_b32 s%d, 8" % s.wave)
    e("s_cbranch_scc1 L_mainpro")
    e("v_bfe_u32 v%d, v0, 5, 2" % v.t0)
    e("v_and_b32 v%d, 3, v0" % v.t1)
    e("v_xor_b32 v%d, v%d, v%d" % (v.t1, v.t1, v.t0))
    e("v_and_or_b32 v%d, v0, 12, v%d" % (v.t0, v.t0))
    e("v_lshlrev_b32 v%d, 12, v%d" % (v.t0, v.t0))
    e("v_lshl_add_u32 v%d, v%d, 4, v%d" % (v.t0, v.t1, v.t0))
    e("v_and_b32 v%d, 16, v0" % v.t1)
    e("v_lshl_add_u32 v%d, v%d, 2, v%d" % (v.t0, v.t1, v.t0))
    e("v_bfe_u32 v%d, v0, 7, 1" % v.t1)
    e("v_lshl_add_u32 v%d, v%d, 16, v%d" % (v.kd0, v.t1, v.t0))
    e("v_add_u32 v%d, 0x80, v%d" % (v.kd1, v.kd0))
    emit(headmap())
    e("s_lshl_b32 s%d, s%d, 6" % (s.dslot, s.wave))
    e("s_and_b32 s%d, s%d, 0x3000" % (s.dslot, s.dslot))
    e("s_mov_b32 s%d, 0x20000" % (s.sq + 3))
    e("s_mov_b32 s%d, s%d" % (s.kA + 3, s.sq + 3))
    e("s_mov_b32 s%d, 0" % s.soff)
    if OPT.get("thr", "0") != "0":
        e("s_lshr_b32 vcc_lo, %s, s%d" % (OPT.get("thr", "0"), s.t1))
        if OPT.get("thrr"):
            e("s_lshr_b32 s%d, %s, s%d" % (s.t0, OPT["thrr"], s.foff))
            e("s_and_b32 vcc_lo, vcc_lo, s%d" % s.t0)
        if OPT.get("thro"):
            e("s_lshr_b32 s%d, %s, s%d" % (s.t0, OPT["thro"], s.foff))
            e("s_or_b32 vcc_lo, vcc_lo, s%d" % s.t0)
        e("s_and_b32 vcc_lo, vcc_lo, 1")
        e("s_mov_b32 vcc_hi, 0")
    e("s_add_u32 s%d, s%d, %d" % (s.d0, s.dslot, QBASE))
    emit(flag_init())
    e("s_waitcnt lgkmcnt(0)")
    emit(far_load())
    mark("karg")
    THR = OPT.get("thr", "0")
    _th = [0]

    def throttle():
        if THR == "0":
            return []
        _th[0] += 1
        return ["s_cbranch_vccz L_th%d" % _th[0], "s_waitcnt vmcnt(%s)" % OPT.get("thn", "8"), "L_th%d:" % _th[0]]

    def qtile(i):
        w = N + 5 + i // 2
        r = ["s_bitcmp1_b32 s%d, %d" % (w, 12 + 16 * (i % 2)),
             "s_cselect_b32 s%d, s%d, s%d" % (s.sq + 2, s.qeb, s.qea),
             "s_bfe_u32 s%d, s%d, 0x%x" % (s.t0, w, 0xc0000 + 16 * (i % 2)),
             "s_add_u32 m0, s%d, %d" % (s.d0, (i // 4) * 32768 + (i % 4) * 1024),
             "s_lshl_b32 s%d, s%d, 12" % (s.t0, s.t0),
             "buffer_load_dwordx4 v%d, %s, s%d offen %s lds" % (v.kd0, sr(s.sq, 4), s.t0, LDF_Q),
             "s_add_u32 m0, m0, 0x4000", "s_nop 0",
             "buffer_load_dwordx4 v%d, %s, s%d offen %s lds" % (v.kd1, sr(s.sq, 4), s.t0, LDF_Q)]
        return r
    e("s_add_u32 s%d, s%d, s%d" % (s.qea, N + 0, N + 1))
    e("s_add_u32 s%d, s%d, s%d" % (s.qeb, N + 2, N + 3))
    e("s_add_u32 s%d, s%d, s%d" % (s.sq, s.q, s.hoff))
    e("s_addc_u32 s%d, s%d, 0" % (s.sq + 1, s.q + 1))
    emit(qtile(0))
    e("s_add_u32 s%d, s%d, s%d" % (N + 0, N + 0, s.hoff))
    e("s_add_u32 s%d, s%d, s%d" % (s.kA, s.k, N + 0))
    e("s_addc_u32 s%d, s%d, 0" % (s.kA + 1, s.k + 1))
    e("s_sub_u32 s%d, s%d, 1024" % (s.kA, s.kA))
    e("s_subb_u32 s%d, s%d, 0" % (s.kA + 1, s.kA + 1))
    e("s_add_u32 s%d, s%d, 1024" % (s.kA + 2, N + 1))
    emit(chunk(0, True, flag=False))
    for i in range(1, QL):
        emit((throttle() if i > 1 else []) + qtile(i))
    QLATE = sum((qtile(i) for i in range(QL, 4)), [])
    mark("iss")
    for b in (s.kB, s.vA, s.vB):
        e("s_mov_b32 s%d, s%d" % (b + 3, s.sq + 3))
    e("s_add_u32 s%d, s%d, s%d" % (N + 2, N + 2, s.hoff))
    e("s_add_u32 s%d, s%d, s%d" % (s.kB, s.k, N + 2))
    e("s_addc_u32 s%d, s%d, 0" % (s.kB + 1, s.k + 1))
    e("s_mov_b32 s%d, s%d" % (s.kB + 2, N + 3))
    e("s_and_b32 s%d, s%d, 0xfffff000" % (s.stepb, N + 4))
    e("s_lshr_b32 s%d, s%d, 4" % (s.rdw, s.dslot))
    e("s_add_u32 s%d, s%d, %d" % (s.rdw, s.rdw, RDYB))
    e("v_mov_b32 v%d, L_cnt-L_pc" % v.fo)
    for (srd, off, nr, d) in ((s.vA, N + 0, N + 1, 3072), (s.vB, N + 2, N + 3, 2048)):
        e("s_add_u32 s%d, s%d, %d" % (s.t0, s.stepb, d))
        e("s_add_u32 s%d, s%d, s%d" % (srd, s.vv, off))
        e("s_addc_u32 s%d, s%d, 0" % (srd + 1, s.vv + 1))
        e("s_sub_u32 s%d, s%d, s%d" % (srd, srd, s.t0))
        e("s_subb_u32 s%d, s%d, 0" % (srd + 1, srd + 1))
        e("s_add_u32 s%d, s%d, s%d" % (srd + 2, nr, s.t0))
    e("v_bfe_u32 v%d, v0, 2, 2" % v.t0)
    e("v_lshlrev_b32 v%d, 12, v%d" % (v.t0, v.t0))
    e("v_and_b32 v%d, 3, v0" % v.t1)
    e("v_lshl_add_u32 v%d, v%d, 4, v%d" % (v.t0, v.t1, v.t0))
    e("v_and_b32 v%d, 48, v0" % v.t1)
    e("v_lshl_add_u32 v%d, v%d, 2, v%d" % (v.t0, v.t1, v.t0))
    e("v_bfe_u32 v%d, v0, 6, 2" % v.t1)
    e("v_lshl_add_u32 v%d, v%d, 14, v%d" % (v.vd0, v.t1, v.t0))
    e("v_add_u32 v%d, 0x10000, v%d" % (v.vd1, v.vd0))
    e("s_setprio %s" % OPT.get("hprio", "3"))
    e("s_branch L_common")
    lab("L_mainpro")
    for b in (s.sq, s.kA, s.kB, s.vA, s.vB):
        e("s_mov_b64 %s, s[0:1]" % sr(b, 2))
        e("s_mov_b32 s%d, 0" % (b + 2))
        e("s_mov_b32 s%d, 0x20000" % (b + 3))
    for r in (v.kd0, v.kd1, v.vd0, v.vd1, v.fo):
        e("v_mov_b32 v%d, 0" % r)
    emit(headmap())
    emit(flag_init())
    e("s_waitcnt lgkmcnt(0)")
    emit(far_load())
    lab("L_common")
    e("s_lshr_b32 s%d, s%d, 6" % (s.wave, s.wave))
    e("v_and_b32 v%d, 63, v0" % L)
    e("v_and_b32 v%d, 7, v0" % v.t0)
    e("v_mul_u32_u24 v%d, 0x104, v%d" % (v.t0, v.t0))
    e("v_add_u32 v%d, %d, v%d" % (v.pra, PRGB, v.t0))
    e("v_add_u32 v%d, 0x1000, v%d" % (v.prga, v.prga))
    e("s_barrier")
    e("s_cmp_lt_u32 s%d, 4" % s.wave)
    e("s_cbranch_scc1 L_common2")
    QH = qtile(4) + qtile(5)
    C2 = (QLATE if QLC == 2 else []) + (QH if QE == 2 else []) + chunk(0) + (QLATE if QLC == 3 else [])
    emit(FLAG + (QH if QE == 1 else []) + chunk(1, True) + STEP_ADV + (C2 if OPT.get("c2early") else []))
    lab("L_common2")
    mark("bar")
    e("v_bfe_u32 v%d, v%d, 4, 1" % (v.t0, L))
    e("v_lshlrev_b32 v%d, 13, v%d" % (v.t0, v.t0))
    e("v_bfe_u32 v%d, v%d, 1, 1" % (v.t1, L))
    e("v_lshl_add_u32 v%d, v%d, 12, v%d" % (v.t0, v.t1, v.t0))
    e("v_and_b32 v%d, 1, v%d" % (v.t1, L))
    e("v_lshl_add_u32 v%d, v%d, 9, v%d" % (v.t0, v.t1, v.t0))
    e("v_bfe_u32 v%d, v%d, 2, 2" % (v.t1, L))
    e("v_lshl_add_u32 v%d, v%d, 6, v%d" % (v.t0, v.t1, v.t0))
    e("v_lshrrev_b32 v%d, 5, v%d" % (v.t1, L))
    e("v_and_b32 v%d, 3, v%d" % (v.t2, L))
    e("v_xor_b32 v%d, v%d, v%d" % (v.t1, v.t1, v.t2))
    e("v_lshl_add_u32 v%d, v%d, 4, v%d" % (v.ka0r, v.t1, v.t0))
    e("v_xor_b32 v%d, 32, v%d" % (v.ka1r, v.ka0r))
    e("v_lshrrev_b32 v%d, 5, v%d" % (v.t0, L))
    e("v_lshlrev_b32 v%d, 12, v%d" % (v.t0, v.t0))
    e("v_bfe_u32 v%d, v%d, 2, 2" % (v.t1, L))
    e("v_lshl_add_u32 v%d, v%d, 6, v%d" % (v.t0, v.t1, v.t0))
    e("v_bfe_u32 v%d, v%d, 4, 1" % (v.t1, L))
    e("v_lshl_add_u32 v%d, v%d, 5, v%d" % (v.t0, v.t1, v.t0))
    e("v_lshl_add_u32 v%d, v%d, 3, v%d" % (v.t0, v.t2, v.t0))
    e("v_add_u32 v%d, 0x800, v%d" % (v.var, v.t0))
    e("s_mov_b32 s%d, 0x%x" % (s.thr, f2u(THRESH)))
    e("v_mul_u32_u24 v%d, 0x104, v%d" % (v.t1, v.t2))
    e("v_add_u32 v%d, %d, v%d" % (v.rdya, RDYB, v.t1))
    e("s_mov_b32 s%d, 0x8000" % s.guard)
    e("v_mov_b32 v%d, 0" % v.rdy)
    e("s_waitcnt lgkmcnt(0)")
    e("s_add_u32 s%d, s%d, s%d" % (s.t0, Fa + 0, s.hoff))
    e("s_add_u32 s%d, s%d, s%d" % (s.so, s.out, s.t0))
    e("s_addc_u32 s%d, s%d, 0" % (s.so + 1, s.out + 1))
    e("s_mov_b32 s%d, s%d" % (s.so + 2, Fa + 1))
    e("s_mov_b32 s%d, 0x20000" % (s.so + 3))
    e("s_and_b32 s%d, s%d, 0xff" % (s.n, N + 4))
    e("s_bfe_u32 s%d, s%d, 0x40008" % (s.t3, Fa + 2))
    e("s_cbranch_scc1 L_work")
    e("v_mov_b32 v%d, %d" % (v.prg, BIG))
    e(PRGW)
    e("s_cmp_lt_u32 s%d, 4" % s.wave)
    e("s_cbranch_scc1 L_fin")
    e("s_branch L_presig")
    lab("L_work")
    mark("work")
    for r in range(0, 64, 2):
        e("v_pk_mov_b32 %s, 0, 0" % vr(v.O + r, 2))
    e("s_and_b32 s%d, s%d, 0xff" % (s.U, Fa + 2))
    e("s_bfe_u32 s%d, s%d, 0x4000c" % (s.inc, Fa + 2))
    e("s_and_b32 s%d, s%d, 0xfffff" % (s.reg, Fa + 4))
    e("s_bfe_u32 s%d, s%d, 0x80010" % (s.t0, Fa + 2))
    e("s_sub_u32 s%d, s%d, 1" % (s.t0, s.t0))
    e("v_lshrrev_b32 v%d, 5, v%d" % (v.t0, L))
    e("v_lshlrev_b32 v%d, 2, v%d" % (v.t0, v.t0))
    e("v_sub_u32 v%d, s%d, v%d" % (v.t0, s.t0, v.t0))
    e("v_mov_b32 v%d, 0xff800000" % v.t1)
    for r in range(16):
        cst = 8 * (r // 4) + r % 4
        e("v_subrev_u32 v%d, %d, v%d" % (v.B + r, cst, v.t0))
        e("v_ashrrev_i32 v%d, 31, v%d" % (v.B + r, v.B + r))
        e("v_and_b32 v%d, v%d, v%d" % (v.B + r, v.t1, v.B + r))
    e("s_bfe_u32 s%d, s%d, 0x20014" % (s.t0, Fa + 4))
    e("s_lshl_b32 s%d, s%d, 10" % (s.t0, s.t0))
    e("s_bfe_u32 s%d, s%d, 0x10016" % (s.t1, Fa + 4))
    e("s_lshl_b32 s%d, s%d, 15" % (s.t1, s.t1))
    e("s_add_u32 s%d, s%d, s%d" % (s.t0, s.t0, s.t1))
    e("s_add_u32 s%d, s%d, %d" % (s.koff, s.t0, QBASE))
    e("v_add_u32 v%d, s%d, v%d" % (v.t2, s.koff, v.ka0r))
    e("v_add_u32 v%d, s%d, v%d" % (v.t3, s.koff, v.ka1r))
    e("s_cmp_lg_u32 s%d, 1" % s.t3)
    e("s_cselect_b32 s%d, 1, 0" % s.m1)
    e("s_bfe_u32 s%d, s%d, 0x2001a" % (s.t0, Fa + 4))
    e("s_lshl_b32 s%d, s%d, 15" % (s.astep, s.t0))
    e("s_bfe_u32 s%d, s%d, 0x10019" % (s.t2, Fa + 4))
    e("s_bfe_u32 s%d, s%d, 0x10018" % (s.t0, Fa + 4))
    e("s_lshl_b32 s%d, s%d, 10" % (s.t0, s.t0))
    e("s_mul_i32 s%d, s%d, s%d" % (s.t1, s.t0, s.m1))
    e("s_sub_u32 s%d, s%d, s%d" % (s.t0, s.t0, s.t1))
    e("s_lshl_b32 s%d, s%d, 15" % (s.voff, s.t2))
    e("s_add_u32 s%d, s%d, s%d" % (s.koff, s.voff, s.t0))
    e("s_add_u32 s%d, s%d, 0x8000" % (s.voff, s.voff))
    e("v_add_u32 v%d, s%d, v%d" % (v.ka0r, s.t1, v.ka0r))
    e("v_add_u32 v%d, s%d, v%d" % (v.ka1r, s.t1, v.ka1r))
    e("s_bfe_u32 s%d, s%d, 0x2001c" % (s.t0, Fa + 2))
    for j in (3, 2, 1, 0):
        e("s_add_u32 s%d, s%d, %d" % (s.col, s.t0, j))
        e("s_and_b32 s%d, s%d, 3" % (s.col, s.col))
        e("s_lshl_b32 s%d, s%d, 8" % (s.col, s.col))
        e("s_add_u32 s%d, s%d, s%d" % (s.col, s.col, s.t1))
        e("v_add_u32 v%d, s%d, v%d" % (v.var + j, s.col, v.var))
    emit(vaddr() + kaddr())
    e("s_and_b32 s%d, s%d, 0xff" % (s.t0, Fa + 3))
    e("v_mov_b32 v%d, s%d" % (v.prg, s.t0))
    e("s_bfe_u32 s%d, s%d, 0x80010" % (s.need, Fa + 3))
    e("s_cmp_lt_u32 s%d, 4" % s.wave)
    e("s_cbranch_scc1 L_sig0")
    e(PRGW)
    lab("L_presig")
    mark("presig")
    emit(([] if OPT.get("c2early") else C2) + (QH if QE == 0 else []) + chunk(1) + STEP_ADV)
    e("s_mov_b32 s%d, 4" % s.iss)
    mark("c3")
    stamp()
    e("s_cmp_eq_u32 s%d, 0" % s.t3)
    e("s_cbranch_scc1 L_hdone")
    emit(sync_call("L_head"))
    lab("L_sig0")
    e("s_bfe_u32 s%d, s%d, 0x80008" % (s.t0, Fa + 3))
    e("s_sub_u32 s%d, s%d, s%d" % (s.t0, s.t0, s.m1))
    e("s_lshl_b32 s%d, s%d, 2" % (s.t0, s.t0))
    e("s_add_u32 s%d, s%d, L_cnt-L_pc-4" % (s.t0, s.t0))
    e("v_mov_b32 v%d, s%d" % (v.fo, s.t0))
    e("s_lshl_b32 s%d, s%d, 8" % (s.t0, s.wave))
    e("s_add_u32 m0, s%d, %d" % (s.t0, PRGB))
    stamp()
    emit(poll_rdy())
    mark("sig0")
    stamp()
    lab("L_head")
    qr = [kread(t, v.Q).replace("v%d " % v.ka0, "v%d " % v.t2).replace("v%d " % v.ka1, "v%d " % v.t3) for t in range(8)]
    kr = [kread(t, v.KF) for t in range(8)]
    for t in range(7):
        emit([qr[t], kr[t]])
    e("s_add_u32 s%d, s%d, s%d" % (s.t0, s.koff, s.astep))
    e("s_mul_i32 s%d, s%d, s%d" % (s.koff, s.t0, s.m1))
    e("s_waitcnt lgkmcnt(12)")
    e(QK0)
    emit([qr[7], kr[7], PRGW])
    for t in range(1, 8):
        e("s_waitcnt lgkmcnt(%d)" % (15 - 2 * t + (1 if t >= 2 else 0)))
        e(qk(t))
        if t == 1:
            e(RDYR)
            emit(kaddr())
            emit(adv(s.koff))
        if t == 2:
            e("v_and_b32 v%d, 31, v%d" % (v.t2, L))
            e("v_lshlrev_b32 v%d, 12, v%d" % (v.t2, v.t2))
            e("v_sub_u32 v%d, s%d, v%d" % (v.t2, Fa + 1, v.t2))
            e("v_ashrrev_i32 v%d, 31, v%d" % (v.t2, v.t2))
            e("v_and_b32 v%d, 0xff800000, v%d" % (v.t2, v.t2))
        if t == 3:
            e("s_bfe_u32 s%d, s%d, 0x80008" % (s.t0, Fa + 3))
            e("v_mov_b32 v%d, s%d" % (v.prg, s.t0))
            e("s_mov_b32 s%d, s%d" % (s.need, Fa + 6))
    e("s_cmp_lt_u32 s%d, 4" % s.wave)
    e("s_waitcnt lgkmcnt(0)")
    e("s_cbranch_scc0 L_head2")
    emit(poll_rdy())
    emit(kr)
    emit(kaddr())
    lab("L_head2")
    if OPT.get("lowh"):
        e("s_setprio 0")
    e("s_lshr_b32 s%d, s%d, 24" % (s.need, Fa + 3))
    e("s_nop 7")
    e("v_max3_f32 v%d, v%d, v%d, v%d" % (v.t0, v.S, v.S + 1, v.S + 2))
    e("v_max3_f32 v%d, v%d, v%d, v%d" % (v.t1, v.S + 3, v.S + 4, v.S + 5))
    for r in range(6, 14, 4):
        e("v_max3_f32 v%d, v%d, v%d, v%d" % (v.t0, v.t0, v.S + r, v.S + r + 1))
        e("v_max3_f32 v%d, v%d, v%d, v%d" % (v.t1, v.t1, v.S + r + 2, v.S + r + 3))
    e("v_max3_f32 v%d, v%d, v%d, v%d" % (v.t0, v.t0, v.S + 14, v.S + 15))
    e("v_max_f32 v%d, v%d, v%d" % (v.t0, v.t0, v.t1))
    e("v_mov_b32 v%d, v%d" % (v.t1, v.t0))
    e(RDYR)
    e("s_nop 0")
    e("v_permlane32_swap_b32 v%d, v%d" % (v.t0, v.t1))
    e("s_nop 1")
    e("v_max_f32 v%d, v%d, v%d" % (v.t0, v.t0, v.t1))
    e("v_fmamk_f32 v%d, v%d, 0x%x, v%d" % (v.nmc, v.t0, f2u(-C_SCALE), v.t2))
    for r in range(16):
        e(F(r))
    emit([ex(i) for i in range(8)] + [add(i) for i in range(1, 7)] + [cvt(0), cvt(1), cvt(2)])
    e("s_cmp_lt_u32 s%d, 4" % s.wave)
    e("s_waitcnt lgkmcnt(0)")
    e("s_cbranch_scc0 L_hlp_in")
    stamp()
    emit(poll_rdy())
    mark("loop")
    stamp()
    e("s_cmp_eq_u32 s%d, 1" % s.m1)
    e("s_cbranch_scc1 L_odd_m")
    out.append(".p2align 4")
    body("even")
    e("s_cbranch_vccnz L_hnd_even")
    body("odd")
    e("s_cbranch_vccz L_even_m")
    emit(poll_rdy())
    e("s_cmp_le_u32 s%d, 1" % s.U)
    e("s_cbranch_scc1 L_ho1")
    e("s_cmp_eq_u32 s%d, 0" % s.m1)
    e("s_cbranch_scc0 L_odd_m")
    e("s_branch L_even_m")
    lab("L_ho1")
    e("s_cmp_eq_u32 s%d, 0" % s.U)
    e("s_cbranch_scc1 L_tail0")
    e("s_cmp_eq_u32 s%d, 0" % s.m1)
    e(QK0M)
    e("s_cbranch_scc1 L_even_a")
    e("s_branch L_odd_a")
    lab("L_hnd_even")
    emit(poll_rdy())
    e("s_cmp_gt_u32 s%d, 1" % s.U)
    e("s_cbranch_scc1 L_odd_m")
    e("s_cmp_eq_u32 s%d, 0" % s.U)
    e("s_cbranch_scc1 L_tailm")
    e(QK0M)
    e("s_branch L_odd_a")
    lab("L_hlp_in")
    mark("hlpin")
    e(PRGW)
    stamp()
    emit(sync_call())
    stamp()
    for t in range(8):
        e(kread(t, v.KF))
    emit(kaddr())
    e("s_waitcnt lgkmcnt(4)")
    e("s_branch L_hnd_hlp")
    body("hlp")
    lab("L_hnd_hlp")
    e("s_cmp_gt_u32 s%d, 1" % s.U)
    e("s_cbranch_scc1 L_hlp_m")
    e("s_cmp_eq_u32 s%d, 0" % s.U)
    e("s_cbranch_scc1 L_tail")
    e(QK0M)
    e("s_branch L_hlp_a")
    lab("L_tail0")
    e("s_cmp_eq_u32 s%d, 1" % s.m1)
    e("s_cbranch_scc1 L_tailm")
    e("v_add_u32 v%d, 0x400, v%d" % (v.va, v.va))
    lab("L_tailm")
    e("s_bitcmp1_b32 s%d, 31" % (Fa + 4))
    e("s_cbranch_scc1 L_tails")
    for j in range(1, 4):
        e("v_add_u32 v%d, %d, v%d" % (v.va + j, 256 * j, v.va))
    tw, tr0, oo, rl = v.ka1, v.va, v.ka1r, v.X + 2

    def lsum():
        return ["v_mov_b32 v%d, v%d" % (v.t0, v.l), "s_nop 1",
                "v_permlane32_swap_b32 v%d, v%d" % (v.l, v.t0), "s_nop 1",
                "v_add_f32 v%d, v%d, v%d" % (v.l, v.l, v.t0)]

    def st_addr():
        r = ["v_and_b32 v%d, 31, v%d" % (v.t0, L),
             "v_lshrrev_b32 v%d, 5, v%d" % (v.t1, L),
             "v_lshlrev_b32 v%d, 3, v%d" % (v.t1, v.t1),
             "v_and_b32 v%d, 7, v%d" % (v.t2, L),
             "v_lshl_add_u32 v%d, v%d, 4, v%d" % (v.t1, v.t2, v.t1),
             "v_lshl_add_u32 v%d, v%d, 7, v%d" % (v.t0, v.t0, v.t1),
             "v_add_u32 v%d, s%d, v%d" % (tw, s.reg, v.t0)]
        r += ["v_xor_b32 v%d, %d, v%d" % (v.E + c, c * 16, tw) for c in range(8)]
        r += ["v_lshrrev_b32 v%d, 3, v%d" % (v.t0, L),
              "v_xor_b32 v%d, v%d, v%d" % (v.t1, v.t2, v.t0),
              "v_lshlrev_b32 v%d, 4, v%d" % (v.t1, v.t1),
              "v_lshl_add_u32 v%d, v%d, 7, v%d" % (v.t1, v.t0, v.t1),
              "v_add_u32 v%d, s%d, v%d" % (tr0, s.reg, v.t1),
              "v_lshlrev_b32 v%d, 12, v%d" % (v.t0, v.t0),
              "v_lshl_add_u32 v%d, v%d, 4, v%d" % (oo, v.t2, v.t0)]
        return r

    def pack_q(bb, norm=True, pk=True):
        r = []
        for g in range(4):
            c = 4 * bb + g
            o = v.O + 4 * c
            d = v.S + 2 * c
            if norm and not pk:
                r += ["v_mul_f32 v%d, v%d, v%d" % (o + i, o + i, rl) for i in range(4)]
            elif norm:
                r += ["v_pk_mul_f32 %s, %s, %s op_sel_hi:[1,0]" % (vr(o + i, 2), vr(o + i, 2), vr(rl, 2)) for i in (0, 2)]
            r += ["v_cvt_pk_bf16_f32 v%d, v%d, v%d" % (d, o, o + 1),
                  "v_cvt_pk_bf16_f32 v%d, v%d, v%d" % (d + 1, o + 2, o + 3),
                  "ds_write_b64 v%d, %s" % (v.E + c % 8, vr(d, 2))]
        return r

    def rd_half(hh):
        return ["ds_read_b128 %s, v%d offset:%d" % (vr(v.KF + 16 * hh + 4 * k, 4), tr0, k * 1024) for k in range(4)]

    def st_one(hh, k):
        return ["buffer_store_dwordx4 %s, v%d, %s, s%d offen offset:%d %s" % (
                    vr(v.KF + 16 * hh + 4 * k, 4), oo, sr(s.so, 4), s.col + k if k < 3 else s.t1, 128 * hh,
                    STF if hh == 0 else OPT.get("st2", OPT.get("st", "sc1")).replace("+", " ").replace("none", ""))]

    sa = st_addr()
    cols = ["s_mov_b32 s%d, 0" % s.col, "s_mov_b32 s%d, 0x8000" % (s.col + 1),
            "s_mov_b32 s%d, 0x10000" % (s.col + 2), "s_mov_b32 s%d, 0x18000" % s.t1]
    RCP = "v_rcp_f32 v%d, v%d" % (rl, v.l)
    lab("L_tail")
    mark("tail")
    if not OPT.get("nolowt"):
        e("s_setprio 0")
    e("v_mov_b32 v%d, %d" % (v.prg, BIG))
    k = newret()
    vord = [0, 1, 8, 9, 2, 3, 10, 11, 4, 5, 12, 13, 6, 7, 14, 15]
    for i in vord[:12]:
        e(vread(i))
    emit([ex(8), add(7), cvt(3)] + [ex(i) for i in range(9, 16)])
    e("s_cmp_lt_u32 s%d, 4" % s.wave)
    e("s_cbranch_scc0 L_t1")
    e("s_waitcnt vmcnt(0)")
    lab("L_t1")
    for i in vord[12:]:
        e(vread(i))
    e(PRGW)
    emit([add(i) for i in range(8, 16)] + [CMP, cvt(4), "s_mov_b32 s%d, %d" % (s.ret, k), "s_cbranch_vccnz L_resc",
                                           "L_ret%d:" % k, cvt(5), cvt(6), cvt(7), LADD])
    e("s_cmp_lt_u32 s%d, 4" % s.wave)
    e("s_waitcnt lgkmcnt(0)")
    e("s_cbranch_scc0 L_htail")
    lab("L_tail2")
    p0 = pack_q(0, pk=False)
    emit([pv(0)] + lsum() + [RCP])
    emit([pv(4), cols[0]] + sa[0:7])
    emit([pv(1), cols[1]] + sa[7:15])
    emit([pv(5), cols[2]] + sa[15:])
    emit([pv(2), cols[3]] + p0[0:7])
    emit([pv(6)] + p0[7:14])
    emit([pv(3)] + p0[14:21])
    emit([pv(7)] + p0[21:])
    lab("L_tail3")
    stamp(5)
    if OPT.get("stadj"):
        emit(pack_q(1) + rd_half(0) + pack_q(2) + pack_q(3) + rd_half(1))
        for k in range(4):
            emit(["s_waitcnt lgkmcnt(%d)" % (3 - k)] + st_one(0, k) + st_one(1, k))
    else:
        emit(pack_q(1) + rd_half(0))
        p2 = pack_q(2)
        emit(p2[:10] + ["s_waitcnt lgkmcnt(5)"] + st_one(0, 0) + p2[10:] + ["s_waitcnt lgkmcnt(4)"] + st_one(0, 1))
        p3 = pack_q(3)
        emit(p3[:10] + st_one(0, 2) + p3[10:] + st_one(0, 3) + rd_half(1))
        stamp(4)
        for k in range(4):
            emit(["s_waitcnt lgkmcnt(%d)" % (3 - k)] + st_one(1, k))
    k = newret()
    ool.append(["L_tails:"] + [vread(i, 0, True) for i in range(8)]
               + ["v_mov_b32 v%d, %d" % (v.prg, BIG), add(7), "s_waitcnt vmcnt(0)", PRGW, CMP, cvt(3), "s_mov_b32 s%d, %d" % (s.ret, k), "s_cbranch_vccnz L_resc",
                  "L_ret%d:" % k, LADD] + lsum() + [RCP, "s_waitcnt lgkmcnt(1)",
                  pv(0), cols[0]] + sa[0:7] + [pv(1), cols[1]] + sa[7:15] + [pv(2), cols[2]] + sa[15:]
               + [pv(3), cols[3]] + pack_q(0) + ["s_branch L_tail3"])
    lab("L_fin")
    if SPIN:
        mark("st")
        e("s_waitcnt vmcnt(0)")
        mark("end")
        if SPIN == "glob":
            e("s_load_dwordx2 s[98:99], s[0:1], 40")
            e("s_not_b32 s%d, s%d" % (s.t0, s.ws))
            e("v_mov_b32 v%d, s%d" % (v.t1, s.t0))
            e("v_mov_b32 v%d, 0" % v.t0)
            e("s_waitcnt lgkmcnt(0)")
            e("s_cmp_lg_u32 s%d, 0" % s.wave)
            e("s_cbranch_scc1 L_g1")
            e("s_mov_b64 exec, 1")
            e("global_atomic_umax v%d, v%d, s[98:99]" % (v.t0, v.t1))
            e("s_mov_b64 exec, -1")
            lab("L_g1")
        e("s_sub_u32 s%d, s%d, s%d" % (s.t0, s.stp, s.ws))
        e("s_mul_i32 s%d, s%d, %s" % (s.t0, s.t0, OPT.get("amp", "2")))
        if OPT.get("rmask"):
            e("s_and_b32 s%d, s2, 15" % s.t1 if OPT.get("hsel") else "s_lshr_b32 s%d, s2, 4" % s.t1)
            e("s_lshr_b32 s%d, %s, s%d" % (s.t1, OPT["rmask"], s.t1))
            e("s_and_b32 s%d, s%d, 1" % (s.t1, s.t1))
            e("s_mul_i32 s%d, s%d, s%d" % (s.t0, s.t0, s.t1))
        e("s_add_u32 s%d, s%d, 3000" % (s.t0, s.t0))
        lab("L_spin")
        e("s_sleep 2")
        e("s_memrealtime s[%d:%d]" % (s.stp, s.stp + 1))
        e("s_waitcnt lgkmcnt(0)")
        e("s_sub_u32 s%d, s%d, s%d" % (s.t1, s.stp, s.ws))
        e("s_cmp_lt_u32 s%d, s%d" % (s.t1, s.t0))
        e("s_cbranch_scc1 L_spin")
        if SPIN == "glob":
            e("global_load_dword v%d, v%d, s[98:99] sc0 sc1" % (v.t1, v.t0))
            e("s_waitcnt vmcnt(0)")
            e("v_readfirstlane_b32 s%d, v%d" % (s.t2, v.t1))
            e("s_not_b32 s%d, s%d" % (s.t2, s.t2))
            lab("L_spin2")
            e("s_sleep 2")
            e("s_memrealtime s[%d:%d]" % (s.stp, s.stp + 1))
            e("s_waitcnt lgkmcnt(0)")
            e("s_sub_u32 s%d, s%d, s%d" % (s.t1, s.stp, s.t2))
            e("s_cmp_lt_u32 s%d, 4000" % s.t1)
            e("s_cbranch_scc1 L_spin2")
    if STAMPS:
        stamp(6)
        e("s_waitcnt vmcnt(0)")
        stamp(7)
        stamp(61, True)
        e("s_getreg_b32 s%d, hwreg(HW_REG_XCC_ID)" % s.stp)
        e("v_writelane_b32 v%d, s%d, 62" % (v.st, s.stp))
        e("s_lshl_b32 s%d, s2, 3" % s.t0)
        e("s_add_u32 s%d, s%d, s%d" % (s.t0, s.t0, s.wave))
        e("s_lshl_b32 s%d, s%d, 8" % (s.t0, s.t0))
        e("v_lshlrev_b32 v%d, 2, v%d" % (v.t0, v.lane))
        e("v_add_u32 v%d, s%d, v%d" % (v.t0, s.t0, v.t0))
        if OPT.get("dbg"):
            e("v_readlane_b32 s%d, v%d, 0" % (s.t0, v.st))
            e("v_readlane_b32 s%d, v%d, 61" % (s.t1, v.st))
            e("v_readlane_b32 s%d, v%d, 1" % (s.t2, v.st))
            e("s_not_b32 s%d, s%d" % (s.t3, s.t0))
            e("v_cmp_ne_u32 vcc, 0, v%d" % v.st)
            e("v_subrev_u32 v%d, s%d, v%d" % (v.t1, s.t2, v.st))
            e("s_nop 1")
            e("v_cndmask_b32 v%d, 0, v%d, vcc" % (v.t1, v.t1))
            e("v_writelane_b32 v%d, s%d, 0" % (v.t1, s.t3))
            e("v_writelane_b32 v%d, s%d, 1" % (v.t1, s.t1))
            e("v_writelane_b32 v%d, s%d, 15" % (v.t1, s.t0))
            e("v_lshlrev_b32 v%d, 2, v%d" % (v.t0, v.lane))
            e("s_cmp_lt_u32 s%d, 4" % s.wave)
            e("s_cselect_b32 s%d, 0xffff, 0x80ff" % s.t0 if False else "s_mov_b32 s%d, 0x80ff" % s.t0)
            e("s_cselect_b32 exec_lo, 0xffff, s%d" % s.t0)
            e("s_mov_b32 exec_hi, 0")
            e("global_atomic_umax v%d, v%d, %s" % (v.t0, v.t1, sr(s.ws, 2)))
        else:
            e("global_store_dword v%d, v%d, %s" % (v.t0, v.st, sr(s.ws, 2)))
    lab("L_end")
    e("s_endpgm")
    for blk in ool:
        emit(blk)
    lab("L_sync")
    e("s_setprio %s" % OPT.get("sprio", "0"))
    e("s_min_u32 s%d, s%d, s%d" % (s.t2, s.need, s.n))
    e("s_cmp_eq_u32 s%d, 0x20000" % s.stepb)
    e("s_cselect_b32 s%d, %s, %s" % (s.t3, OPT.get("lookd", "6"), OPT.get("look", "2")))
    e("s_add_u32 s%d, s%d, s%d" % (s.t3, s.t2, s.t3))
    e("s_min_u32 s%d, s%d, s%d" % (s.t3, s.t3, s.n))
    lab("L_svc")
    e("ds_read_b32 v%d, v%d" % (v.t1, v.pra))
    e(RDYR)
    e("s_sub_i32 s%d, s%d, 5" % (s.t1, s.iss))
    e("s_cmp_gt_u32 s%d, s%d" % (s.iss, s.t3))
    e("s_waitcnt lgkmcnt(0)")
    e("s_cbranch_scc0 L_svc1")
    e("v_cmp_ge_u32 vcc, s%d, v%d" % (s.t2, v.rdy))
    e("s_cbranch_vccz L_svcx")
    e("s_cmp_gt_u32 s%d, s%d" % (s.iss, s.n))
    e("s_cbranch_scc1 L_svcs")
    lab("L_svc1")
    e("v_cmp_gt_i32 vcc, s%d, v%d" % (s.t1, v.t1))
    e("s_bitcmp1_b32 s%d, 0" % s.iss)
    e("s_cbranch_scc1 L_svcB")
    e("s_cmp_lt_u32 s%d, 8" % s.iss)
    e("s_cselect_b32 s%d, -1, s%d" % (s.t1, N + 1))
    e("s_and_b32 s%d, s%d, vcc_lo" % (s.t1, s.t1))
    e("s_and_b32 s%d, s%d, 0xff" % (s.t1, s.t1))
    e("s_cbranch_scc1 L_svc2")
    e("s_add_u32 s%d, s%d, 1" % (s.iss, s.iss))
    emit(svc_cap())
    emit(chunk(0))
    e("s_branch L_svc")
    lab("L_svcB")
    e("s_and_b32 s%d, s%d, 0xff" % (s.t1, N + 3))
    e("s_cmp_gt_u32 s%d, s%d" % (s.iss, s.t1))
    e("s_cbranch_scc1 L_svcF")
    e("s_cbranch_vccnz L_svc2")
    emit(svc_cap())
    emit(chunk(1, flag=False))
    lab("L_svcF")
    e("s_add_u32 s%d, s%d, 1" % (s.iss, s.iss))
    emit(FLAG + STEP_ADV)
    e("s_branch L_svc")
    lab("L_svc2")
    e("v_cmp_ge_u32 vcc, s%d, v%d" % (s.t2, v.rdy))
    e("s_cbranch_vccz L_svcx")
    lab("L_svcs")
    emit(spin(OPT.get("slp", "2")))
    e("s_branch L_svc")
    lab("L_svcx")
    e("s_setprio %s" % OPT.get("hprio", "3"))
    SRET_AT = len(out)
    lab("L_htail")
    e("s_mov_b32 s%d, s%d" % (s.need, s.n))
    e("s_bitcmp0_b32 s%d, 24" % (Fa + 2))
    e("s_cbranch_scc1 L_htail2")
    emit(sync_call("L_tail2"))
    lab("L_htail2")
    for i in range(8):
        e(pv(i))
    lab("L_hdone")
    e("s_mov_b32 s%d, s%d" % (s.need, s.n))
    emit(sync_call())
    e("s_sub_u32 s%d, s%d, 1" % (s.t2, s.n))
    e("s_bfe_u32 s%d, s%d, 0x40018" % (s.n, Fa + 2))
    e("s_cbranch_scc0 L_fin")
    e("s_setprio %s" % OPT.get("eprio", "0"))
    e("s_branch L_pe1")
    lab("L_pe0")
    emit(spin(OPT.get("slp", "2")))
    lab("L_pe1")
    e("ds_read_b32 v%d, v%d" % (v.t1, v.pra))
    e("s_waitcnt lgkmcnt(0)")
    e("v_cmp_gt_u32 vcc, s%d, v%d" % (s.t2, v.t1))
    e("s_cbranch_vccnz L_pe0")
    stamp(5)
    l16, l8, xa, cnt = v.ka0, v.ka0r, v.var, v.var + 1
    emit(lsum())
    e("v_lshlrev_b32 v%d, 4, v%d" % (l16, L))
    e("v_lshlrev_b32 v%d, 3, v%d" % (l8, L))
    e("s_lshl_b32 s%d, s%d, 9" % (s.t0, s.wave))
    e("s_add_u32 s%d, s%d, %d" % (s.t0, s.t0, MLBASE - 2048))
    e("v_add_u32 v%d, s%d, v%d" % (xa, s.t0, l8))
    e("ds_write_b64 v%d, %s" % (xa, vr(v.nmc, 2)))
    e("s_cmp_eq_u32 s%d, 2" % s.n)
    e("s_cbranch_scc1 L_sd2")
    for j in (1, 2, 3):
        if j == 2:
            lab("L_sd2")
        e("s_and_b32 s%d, s%d, 0xffffff" % (s.t0, Fa + 4 + j))
        e("v_add_u32 v%d, s%d, v%d" % (xa, s.t0, l16))
        for k in range(4):
            e("ds_write_b128 v%d, %s offset:%d" % (xa, vr(v.O + 16 * j + 4 * k, 4), k * 1024))
    e("s_lshr_b32 s%d, s%d, 30" % (s.t0, Fa + 2))
    e("s_lshl_b32 s%d, s%d, 2" % (s.t0, s.t0))
    e("s_add_u32 s%d, s%d, %d" % (s.t0, s.t0, CNTB))
    e("v_mov_b32 v%d, s%d" % (cnt, s.t0))
    e("v_mov_b32 v%d, 1" % v.t3)
    e("s_mov_b64 exec, 1")
    e("ds_add_u32 v%d, v%d" % (cnt, v.t3))
    e("s_mov_b64 exec, -1")
    emit(st_addr())
    e("v_add_u32 v%d, s%d, v%d" % (xa, s.reg, l16))
    for j in range(3):
        e("s_lshr_b32 s%d, s%d, 24" % (s.t0, Fa + 5 + j))
        e("s_lshl_b32 s%d, s%d, 9" % (s.t0, s.t0))
        e("s_add_u32 s%d, s%d, %d" % (s.t0, s.t0, MLBASE))
        e("v_add_u32 v%d, s%d, v%d" % (v.P + j, s.t0, l8))
    e("s_branch L_poll1")
    lab("L_poll")
    emit(spin())
    lab("L_poll1")
    e("ds_read_b32 v%d, v%d" % (v.t3, cnt))
    e("s_waitcnt lgkmcnt(0)")
    e("v_cmp_ne_u32 vcc, s%d, v%d" % (s.n, v.t3))
    e("s_cbranch_vccnz L_poll")
    stamp(4)
    for j in range(3):
        e("ds_read_b64 %s, v%d" % (vr(v.X + 2 * j, 2), v.P + j))
    for k in range(12):
        e("ds_read_b128 %s, v%d offset:%d" % (vr(v.KF + 16 + 4 * k, 4), xa, k * 1024))
    RX = v.KF + 16
    f0, f1, f2, f3 = v.X + 8, v.X + 9, v.X + 10, v.X + 11
    e("s_bfe_u32 s%d, s%d, 0x2001c" % (s.col, Fa + 2))
    e("s_lshl_b32 s%d, s%d, 6" % (s.col, s.col))
    e("s_add_u32 s%d, s%d, 0x8000" % (s.col + 1, s.col))
    e("s_add_u32 s%d, s%d, 0x10000" % (s.col + 2, s.col))
    e("s_add_u32 s%d, s%d, 0x18000" % (s.t1, s.col))
    e("s_waitcnt lgkmcnt(12)")
    e("v_min3_f32 v%d, v%d, v%d, v%d" % (v.t3, v.nmc, v.X, v.X + 2))
    e("v_min_f32 v%d, v%d, v%d" % (v.t3, v.t3, v.X + 4))
    e("v_sub_f32 v%d, v%d, v%d" % (f0, v.t3, v.nmc))
    for j, f in enumerate((f1, f2, f3)):
        e("v_sub_f32 v%d, v%d, v%d" % (f, v.t3, v.X + 2 * j))
    for f in (f0, f1, f2, f3):
        e("v_exp_f32 v%d, v%d" % (f, f))
    e("v_mul_f32 v%d, v%d, v%d" % (v.l, v.l, f0))
    e("v_fmac_f32 v%d, v%d, v%d" % (v.l, v.X + 1, f1))
    e("s_cmp_eq_u32 s%d, 2" % s.n)
    e("s_cbranch_scc1 L_mg2")
    e("v_fmac_f32 v%d, v%d, v%d" % (v.l, v.X + 3, f2))
    e("v_fmac_f32 v%d, v%d, v%d" % (v.l, v.X + 5, f3))
    e("v_rcp_f32 v%d, v%d" % (v.t3, v.l))
    e("v_and_b32 v%d, 4, v%d" % (v.t0, L))
    e("v_lshl_add_u32 v%d, v%d, 28, v%d" % (oo, v.t0, oo))
    for f in (f0, f1, f2, f3):
        e("v_mul_f32 v%d, v%d, v%d" % (f, f, v.t3))
    for i in range(16):
        e("v_mul_f32 v%d, v%d, v%d" % (v.O + i, v.O + i, f0))
    for j, f in enumerate((f1, f2, f3)):
        e("s_waitcnt lgkmcnt(%d)" % (8 - 4 * j))
        for i in range(16):
            e("v_fmac_f32 v%d, v%d, v%d" % (v.O + i, RX + 16 * j + i, f))
    e("s_branch L_mg3")
    lab("L_mg2")
    e("v_rcp_f32 v%d, v%d" % (v.t3, v.l))
    e("s_nop 0")
    for f in (f0, f1):
        e("v_mul_f32 v%d, v%d, v%d" % (f, f, v.t3))
    for i in range(32):
        e("v_mul_f32 v%d, v%d, v%d" % (v.O + i, v.O + i, f0))
    e("s_waitcnt lgkmcnt(0)")
    for i in range(32):
        e("v_fmac_f32 v%d, v%d, v%d" % (v.O + i, RX + i, f1))
    emit(pack_q(1, False))
    lab("L_mg3")
    emit(pack_q(0, False) + rd_half(0))
    for k in range(4):
        emit(["s_waitcnt lgkmcnt(%d)" % (3 - k)] + st_one(0, k))
    e("s_branch L_fin")
    lab("L_resc")
    e("v_max3_f32 v%d, v%d, v%d, v%d" % (v.t0, v.X, v.X + 1, v.X + 2))
    for r in range(3, 15, 2):
        e("v_max3_f32 v%d, v%d, v%d, v%d" % (v.t0, v.t0, v.X + r, v.X + r + 1))
    e("v_max3_f32 v%d, v%d, v%d, 0" % (v.t0, v.t0, v.X + 15))
    e("v_mov_b32 v%d, v%d" % (v.t1, v.t0))
    e("s_nop 1")
    e("v_permlane32_swap_b32 v%d, v%d" % (v.t0, v.t1))
    e("s_nop 1")
    e("v_max_f32 v%d, v%d, v%d" % (v.t0, v.t0, v.t1))
    e("v_exp_f32 v%d, -v%d" % (v.t1, v.t0))
    e("v_sub_f32 v%d, v%d, v%d" % (v.nmc, v.nmc, v.t0))
    for r in range(16):
        e("v_sub_f32 v%d, v%d, v%d" % (v.X + r, v.X + r, v.t0))
    e("v_mul_f32 v%d, v%d, v%d" % (v.l, v.l, v.t1))
    for i in range(64):
        e("v_mul_f32 v%d, v%d, v%d" % (v.O + i, v.O + i, v.t1))
    emit(soft_half_plain(0))
    emit(soft_half_plain(1))
    for k, r in enumerate(rets[:-1]):
        e("s_cmp_eq_u32 s%d, %d" % (s.ret, k))
        e("s_cbranch_scc1 %s" % r)
    e("s_branch %s" % rets[-1])
    rl_ = []
    order = [2, 1, 0, 3, 4]
    assert len(srets) == len(order)
    for k in order[:-1]:
        rl_ += ["    s_cmp_eq_u32 s%d, %d" % (s.sret, k), "    s_cbranch_scc1 %s" % srets[k]]
    rl_ += ["    s_branch %s" % srets[order[-1]]]
    out[SRET_AT:SRET_AT] = rl_
    out.append(".p2align 6")
    out.append(".type L_near,@object")
    lab("L_near")
    for ent in near:
        out.append("    .long " + ", ".join("0x%x" % x for x in ent))
    lab("L_far")
    for ent in far:
        out.append("    .long " + ", ".join("0x%x" % x for x in ent))
    lab("L_cnt")
    out.append("    .long " + ", ".join(str(i) for i in range(32)))
    out.append(".size L_near, .-L_near")
    lab("L_codeend")
    out.append("    .fill 512, 4, 0xbf800000")
    out.append('.section .rodata,"a"')
    out.append(".p2align 6")
    out.append(".amdhsa_kernel " + K)
    out.append("  .amdhsa_next_free_vgpr %d" % NV)
    out.append("  .amdhsa_next_free_sgpr %d" % NS)
    out.append("  .amdhsa_accum_offset %d" % NV)
    out.append("  .amdhsa_group_segment_fixed_size 0")
    out.append("  .amdhsa_kernarg_size 56")
    out.append("  .amdhsa_user_sgpr_count 2")
    out.append("  .amdhsa_user_sgpr_kernarg_segment_ptr 1")
    out.append("  .amdhsa_system_sgpr_workgroup_id_x 1")
    out.append(".end_amdhsa_kernel")
    txt = "\n".join(out) + "\n"
    txt = txt.replace("PFSTRIDE", OPT.get("pf", "32"))
    import subprocess, tempfile, os
    tmp = tempfile.mkdtemp()
    open(tmp + "/a.s", "w").write(txt.replace("offset:L_near-L_pc", "offset:0x100").replace("offset:L_far-L_pc", "offset:0x100"))
    subprocess.run(["clang", "-x", "assembler", "-target", "amdgcn-amd-amdhsa", "-mcpu=gfx950", "-c", tmp + "/a.s", "-o", tmp + "/a.o"], check=True)
    sy = {}
    for ln in subprocess.run(["llvm-objdump", "-t", tmp + "/a.o"], capture_output=True, text=True).stdout.splitlines():
        p = ln.split()
        if len(p) >= 5 and p[-1].startswith("L_"):
            sy[p[-1]] = int(p[0], 16)
    assert sy["L_codeend"] - sy["L_pc"] <= 512 * int(OPT.get("pf", "32")) + 128 or STAMPS or SPIN, hex(sy["L_codeend"])
    assert sy["L_codeend"] + 2048 - sy["L_pc"] >= 512 * int(OPT.get("pf", "32"))
    for t in ("L_near", "L_far"):
        txt = txt.replace("offset:%s-L_pc" % t, "offset:0x%x" % (sy[t] - sy["L_pc"]))
        txt = txt.replace(t + ":\n", t + ":\n.if (%s-L_pc) != 0x%x\n.error \"table offset\"\n.endif\n" % (t, sy[t] - sy["L_pc"])) if False else txt
    return txt


if __name__ == "__main__":
    args = [a for a in sys.argv[1:] if a.endswith(".s")]
    path = args[0] if args else "cdna_kernels/%s.s" % NAME
    open(path, "w").write(gen())
    print("wrote", path)
```

```python
import sys, struct, math

NAME = "standalone__varlen_attn_packed__ragged"
CU = [0, 289, 520, 939, 1289, 1402, 1666, 1973, 2275]
LEN = [CU[i + 1] - CU[i] for i in range(8)]
T_TOT = 2275
ROWB = 4096
TENSOR_BYTES = T_TOT * ROWB

OPT = {}
for a in sys.argv[1:]:
    if a.startswith("--"):
        k, _, val = a[2:].partition("=")
        OPT[k] = val if val else "1"
STAMPS = "stamps" in OPT or "lite" in OPT
LITE = "lite" in OPT
LDF_Q = OPT.get("ldq", "none").replace("+", " ").replace("none", "")
LDF_K = OPT.get("ldk", "none").replace("+", " ").replace("none", "")
STF = OPT.get("st", "sc1").replace("+", " ").replace("none", "")
FLY = int(OPT.get("fly", "4"))

HEADER = """; Kernarg layout for this problem (56 bytes, ptrs only, base s[0:1]):
;   offset   0: d_in[0] q  shape=(2275, 16, 128) dtype=bfloat16 strides=(4096, 256, 2) contiguous=True
;   offset   8: d_in[1] k  shape=(2275, 16, 128) dtype=bfloat16 strides=(4096, 256, 2) contiguous=True
;   offset  16: d_in[2] v  shape=(2275, 16, 128) dtype=bfloat16 strides=(4096, 256, 2) contiguous=True
;   offset  24: d_in[3] cu  shape=(9,) dtype=int32 strides=(4,) contiguous=True
;   offset  32: d_out     shape=(2275, 16, 128) dtype=bfloat16 (2 bytes/elem)
"""


def f2u(x):
    return struct.unpack("<I", struct.pack("<f", x))[0]


def cdiv(a, b):
    return (a + b - 1) // b


LDS_TOTAL = 163840
QBASE = 98304
XTRA = 131072
MLBASE = XTRA + 16384
PRGB = XTRA + 7 * 4096 + 2048
RDYB = XTRA + 6 * 4096 + 3072
CNTB = XTRA + 6 * 4096 + 2048
BIG = 0x4000

ROLES = [
    ("dual", (1, 6, 2), (4, 0, 4)),
    (5, 0, 6),
    (3, 0, 5), (3, 5, 5),
    ("dual", (3, 10, 1), (5, 6, 3)),
    (1, 0, 6),
    (6, 0, 5), (6, 5, 5),
    (7, 0, 5), (7, 5, 5), (0, 0, 5), (0, 5, 5),
    (2, 0, 4), (2, 4, 4), (2, 8, 3), (2, 11, 3),
]
QL = int(OPT.get("ql", "4"))
QLC = int(OPT.get("qlc", "3"))
QE = int(OPT.get("qe", "0"))


def nrec(rows):
    return (rows - 1) * ROWB + 256 if rows > 0 else 0


def build_tables():
    near, far, desc = [], [], []
    for ri, role in enumerate(ROLES):
        W = [None] * 8
        groups = []
        if role[0] == "dual":
            (sa, ta, na), (sb, tb, nb) = role[1], role[2]
            rowA, lenA, rowB, lenB, step = CU[sa], LEN[sa], CU[sb], LEN[sb], 32
            n_it = max(cdiv(lenA, 32), cdiv(lenB, 32))
            tiles = [(sa, ta + i, 0) for i in range(na)] + [(sb, tb + i, 1) for i in range(nb)]
            nq = len(tiles)
            for i in range(4):
                sq, tl, st = tiles[i]
                W[i] = dict(seq=sq, tile=tl, ql=i, type=2, stream=st, its=list(range(cdiv(LEN[sq], 32))), hastail=1)
            for i in range(4, nq):
                sq, tl, st = tiles[i]
                nb_ = cdiv(LEN[sq], 32)
                W[i + 2] = dict(seq=sq, tile=tl, ql=i, type=3, stream=st, its=list(range(nb_)), hastail=1,
                                G=1, reg=XTRA + 4096 * i)
        else:
            sa, t0, nq = role
            rowA, lenA, rowB, lenB, step = CU[sa], LEN[sa], CU[sa] + 32, LEN[sa] - 32, 64
            nkv = cdiv(lenA, 32)
            n_it = cdiv(nkv, 2)
            tiles = [(sa, t0 + i, 0) for i in range(nq)]
            for i in range(min(nq, 4)):
                W[i] = dict(seq=sa, tile=t0 + i, ql=i, type=1, stream=0, its=list(range(nkv)), hastail=1)
            nh = 4 // (nq - 4) if nq > 4 else 0
            for i in range(4, nq):
                ws = [4, 5, 6, 7] if nh == 4 else [4 + (i - 4), 6 + (i - 4)]
                for k, w in enumerate(ws):
                    blocks = [p for p in range(nkv) if p % nh == k]
                    W[w] = dict(seq=sa, tile=t0 + i, ql=i, type=3, stream=k % 2, its=[p // 2 for p in blocks],
                                hastail=int((nkv - 1) in blocks))
                groups.append(ws)
        qrows = [CU[sq] + 32 * tl for sq, tl, _ in tiles] + [0xfff] * (6 - nq)
        qrows = [r | (0x1000 if i < nq and tiles[i][2] else 0) for i, r in enumerate(qrows)]
        maskA = sum(1 << i for i, w in enumerate(W) if w and (w["type"] == 1 or w["stream"] == 0 or i < 4 and role[0] != "dual"))
        lastB = 2 * cdiv(lenB, step) + 1
        near.append([rowA * ROWB, nrec(lenA) | maskA, rowB * ROWB, nrec(lenB) | lastB, step * ROWB | (2 * n_it + 1),
                     qrows[0] | qrows[1] << 16, qrows[2] | qrows[3] << 16, qrows[4] | qrows[5] << 16])
        areas = [((n_it + 1) % 4) * 32768, ((n_it + 2) % 4) * 32768]
        recv = [areas[0], areas[0] + 12288, areas[1], areas[1] + 12288]
        for i in range(4):
            if W[i]:
                W[i]["reg"] = XTRA + 4096 * i
        for gi, g in enumerate(groups):
            G = len(g)
            for k, w in enumerate(g):
                W[w]["reg"] = recv[w - 4]
                W[w]["G"], W[w]["k"], W[w]["gi"] = G, k, gi
                if G == 4:
                    W[w]["send"] = [recv[g[(j + k) % 4] - 4] + (j - 1) * 4096 for j in (1, 2, 3)]
                    W[w]["src"] = [g[(k - j) % 4] for j in (1, 2, 3)]
                else:
                    o = g[1 - k]
                    W[w]["send"] = [0, recv[o - 4], recv[o - 4] + 4096]
                    W[w]["src"] = [o, o, o]
        for wi in range(8):
            w = W[wi]
            desc.append(w)
            if w is None:
                far.append([0] * 8)
                continue
            sq, its, typ, sc = w["seq"], w["its"], w["type"], w["stream"]
            tail = LEN[sq] % 32
            orow = CU[sq] + 32 * w["tile"]
            onr = min(32, CU[sq + 1] - orow)
            assert onr > 0 and tail > 0
            U = len(its) - 1
            a0, st = its[0], its[1] - its[0]
            assert all(its[i] == a0 + st * i for i in range(len(its))) and st <= 2 and a0 <= 1 and U >= 1
            if typ == 1:
                inc, prg0, prg1, need1, need2 = 1, 2, 4, 0, 2
            elif typ == 2:
                inc, prg0, prg1, need1, need2 = 2, 2, 4 + sc, sc, 4 + sc
            else:
                inc, prg0, prg1, need1, need2 = 2 * st, 2 * a0 + sc + 2, 2 * (a0 + 1) + sc + 2, max(QE if QE else 3, 2 * a0 + sc), 2 * (a0 + st) + sc
            needk = max(need1 + 2 * (typ == 2), 1)
            if typ != 3 and wi >= QL:
                need1 = max(need1, QLC)
            w.update(needk=needk)
            w.update(U=U, a0=a0, st=st, inc=inc, prg0=prg0, prg1=prg1, need1=need1, need2=need2, n_it=n_it)
            hm = 0
            if typ != 3:
                nlast = 2 * n_it + 1
                pub = prg0
                w["pubs"] = []
                for b in range(U):
                    val = prg1 + inc * (b + 1)
                    want = pub < nlast - 5 and (typ == 2 or b % 2 == 1 or OPT.get("puball"))
                    if groups and pub < nlast - 1 <= val:
                        want = True
                    if typ == 2 or U - 1 - b <= 1:
                        hm |= 1 << (U - 1 - b)
                    if want and OPT.get("nodpub"):
                        hm |= 0x10001 << (U - 1 - b)
                        pub = val
                        w["pubs"].append(b)
            G, k, gi = w.get("G", 0), w.get("k", 0), w.get("gi", 0)
            rot = k * (4 // G) if G > 1 else 0
            ent = [orow * ROWB, nrec(onr),
                   U | typ << 8 | inc << 12 | (tail if w["hastail"] else 32) << 16 | G << 24 | rot << 28 | gi << 30,
                   prg0 | prg1 << 8 | need1 << 16 | need2 << 24,
                   w["reg"] | w["ql"] << 20 | (1 - sc) << 24 | a0 << 25 | st << 26 | int(typ != 3 and tail <= 16 and not OPT.get("noshort")) << 31]
            if G > 1:
                ent += [w["send"][j] | ((w["src"][j] - 4) << 24) for j in range(3)]
            if typ != 3:
                ent += [hm, needk]
            ent += [0] * (8 - len(ent))
            far.append(ent)
    return near, far, desc


class R:
    pass


v = R()
v.kd0, v.kd1, v.vd0, v.vd1 = 1, 2, 3, 4
v.ka0r, v.ka1r = 5, 6
v.ka0, v.ka1 = 7, 8
v.rdya, v.rdy = 9, 10
v.lane = 11
v.nmc, v.l = 12, 13
v.ps = 14
v.t0, v.t1, v.t2, v.t3 = 15, 16, 17, 18
v.pf = 19
v.st = 20
v.prga, v.prg = 21, 22
v.fo = 23
v.pra = 0
v.Q = 24
v.O = 56
v.S = 120
v.B = 136
v.KF = 152
v.VF = 184
v.X = 216
v.E = 232
v.P = 240
v.var = 248
v.va = 252
NV = 256

s = R()
s.q, s.k, s.vv, s.cu, s.out = 4, 6, 8, 10, 12
s.near = 16
s.far = 24
s.kA, s.kB, s.vA, s.vB, s.sq, s.so = 32, 36, 40, 44, 48, 52
s.wave, s.hoff = 56, 57
s.n = 58
s.thr = 59
s.soff = 60
s.dslot = 61
s.U = 62
s.mu = 63
s.koff, s.voff = 64, 65
s.need, s.chk = 66, 67
s.t0, s.t1, s.t2, s.t3 = 68, 69, 70, 71
s.pc = 72
s.stp = 74
s.ws = 76
s.sti = 78
s.ret = 79
s.foff = 80
s.reg = 81
s.m1 = 82
s.lnd = 83
s.inc = 84
s.col = 85
s.astep = 88
s.sret = 89
s.guard = 90
s.iss = 91
s.d0, s.rdw = 92, 93
s.qea, s.qeb = 94, 95
s.stepb = 97
NS = 100

C_SCALE = (128 ** -0.5) * math.log2(math.e)
CL = "0x%x" % f2u(C_SCALE)
THRESH = 4096.0

out = []


def e(x):
    out.append("    " + x)


def lab(x):
    out.append(x + ":")


def vr(b, n):
    return "v[%d:%d]" % (b, b + n - 1)


def sr(b, n):
    return "s[%d:%d]" % (b, b + n - 1)


def emit(lst):
    for x in lst:
        if x is None:
            continue
        if x.endswith(":"):
            out.append(x)
        else:
            e(x)


def stamp_l(k=None, real=False):
    if not STAMPS or (LITE and k not in (7, 61)):
        return []
    if OPT.get("rt") and k is None and not real:
        return stamp_l(None, True) + stamp_l(None, "c")
    real = real is True
    r = ["%s s[%d:%d]" % ("s_memrealtime" if real else "s_memtime", s.stp, s.stp + 1), "s_waitcnt lgkmcnt(0)"]
    if k is None:
        r += ["s_mov_b32 s%d, m0" % (s.stp + 1), "s_mov_b32 m0, s%d" % s.sti, "s_nop 0",
              "v_writelane_b32 v%d, s%d, m0" % (v.st, s.stp),
              "s_add_u32 s%d, s%d, 1" % (s.sti, s.sti), "s_mov_b32 m0, s%d" % (s.stp + 1)]
    else:
        r += ["v_writelane_b32 v%d, s%d, %d" % (v.st, s.stp, k)]
    return r


def stamp(k=None, real=False):
    emit(stamp_l(k, real))


SPIN = OPT.get("spin")


def mark(name):
    if SPIN == name:
        e("s_memrealtime s[%d:%d]" % (s.stp, s.stp + 1))
        e("s_waitcnt lgkmcnt(0)")


def kread(t, dst, st=0):
    return "ds_read_b128 %s, v%d offset:%d" % (vr(dst + 4 * t, 4), v.ka1 if t % 2 else v.ka0,
                                               (t // 4) * 16384 + ((t // 2) % 2) * 256 + st * 1024)


def vread(i, st=0, one=False):
    t, bb, ss = i // 8, (i // 2) % 4, i % 2
    reg = v.VF + (t * 4 + bb) * 4 + ss * 2
    if one:
        return "ds_read_b64_tr_b16 %s, v%d offset:%d" % (vr(reg, 2), v.va, (4 * t + 2 * ss) * 4096 + st * 1024 + bb * 256)
    return "ds_read_b64_tr_b16 %s, v%d offset:%d" % (vr(reg, 2), v.va + bb, (4 * t + 2 * ss) * 4096 + st * 1024)


def ld(kv, col, half, so):
    srd = {("K", 0): s.kA, ("K", 1): s.kB, ("V", 0): s.vA, ("V", 1): s.vB}[(kv, col)]
    off = (2048 if kv == "V" else 0) + (1024 if col == 0 else 0)
    vo = {("K", 0): v.kd0, ("K", 1): v.kd1, ("V", 0): v.vd0, ("V", 1): v.vd1}[(kv, half)]
    return "buffer_load_dwordx4 v%d, %s, s%d offen %s%s lds" % (vo, sr(srd, 4), so, "offset:%d " % off if off else "", LDF_K)


STEP_ADV = ["s_add_u32 s%d, s%d, s%d" % (s.soff, s.soff, s.stepb),
            "s_add_u32 s%d, s%d, 0x8000" % (s.dslot, s.dslot),
            "s_and_b32 s%d, s%d, 0x1ffff" % (s.dslot, s.dslot)]


FLAG = ["s_mov_b32 m0, s%d" % s.rdw,
        "v_add_u32 v%d, 4, v%d" % (v.fo, v.fo),
        "global_load_lds_dword v%d, %s" % (v.fo, sr(s.pc, 2))]


def chunk(col, k_only=False, pace=0, flag=True):
    p = []
    if pace:
        p = ["s_sleep %d" % pace if pace < 16 else "s_nop %d" % (pace - 16)]
    r = []
    for half, m in ((0, "s_mov_b32 m0, s%d" % s.dslot), (1, "s_add_u32 m0, s%d, 0x4000" % s.dslot)):
        r += [m, "s_nop 0"]
        if not k_only:
            r += [ld("V", col, half, s.soff)] + p
        r += [ld("K", col, half, s.soff)] + p
    return r + (FLAG if flag else [])


def qk(t):
    return "v_mfma_f32_32x32x16_bf16 %s, %s, %s, %s" % (vr(v.S, 16), vr(v.KF + 4 * t, 4), vr(v.Q + 4 * t, 4), vr(v.S, 16))


def pv(i):
    t, bb = i // 4, i % 4
    return "v_mfma_f32_32x32x16_bf16 %s, %s, %s, %s" % (
        vr(v.O + 16 * bb, 16), vr(v.VF + (t * 4 + bb) * 4, 4), vr(v.P + 4 * t, 4), vr(v.O + 16 * bb, 16))


def F(r):
    return "v_fmamk_f32 v%d, v%d, %s, v%d" % (v.X + r, v.S + r, CL, v.nmc)


def ex(r):
    return "v_exp_f32 v%d, v%d" % (v.E + r % 8, v.X + r)


def add(r):
    if r == 0:
        return None
    if r == 1:
        return "v_add_f32 v%d, v%d, v%d" % (v.ps, v.E, v.E + 1)
    return "v_add_f32 v%d, v%d, v%d" % (v.ps, v.ps, v.E + r % 8)


def cvt(i):
    return "v_cvt_pk_bf16_f32 v%d, v%d, v%d" % (v.P + i, v.E + (2 * i) % 8, v.E + (2 * i + 1) % 8)


def soft_half_plain(h):
    r = [ex(8 * h + i) for i in range(8)]
    r += [x for x in (add(8 * h + i) for i in range(8)) if x]
    r += [cvt(4 * h + i) for i in range(4)]
    return r


CMP = "v_cmp_lt_f32 vcc, s%d, v%d" % (s.thr, v.ps)
LADD = "v_add_f32 v%d, v%d, v%d" % (v.l, v.l, v.ps)
PRGW = "ds_write_b32 v%d, v%d" % (v.prga, v.prg)
RDYR = "ds_read_b32 v%d, v%d" % (v.rdy, v.rdya)
PRGINC = "v_add_u32 v%d, s%d, v%d" % (v.prg, s.inc, v.prg)
NEEDINC = "s_add_u32 s%d, s%d, s%d" % (s.need, s.need, s.inc)
QK0 = "v_mfma_f32_32x32x16_bf16 %s, %s, %s, 0" % (vr(v.S, 16), vr(v.KF, 4), vr(v.Q, 4))
QK0M = "v_mfma_f32_32x32x16_bf16 %s, %s, %s, %s" % (vr(v.S, 16), vr(v.KF, 4), vr(v.Q, 4), vr(v.B, 16))
rets, srets = [], []


def newret():
    rets.append("L_ret%d" % len(rets))
    return len(rets) - 1


def kaddr():
    return ["v_add_u32 v%d, s%d, v%d" % (v.ka0, s.koff, v.ka0r),
            "v_add_u32 v%d, s%d, v%d" % (v.ka1, s.koff, v.ka1r)]


def vaddr():
    return ["v_add_u32 v%d, s%d, v%d" % (v.va + j, s.voff, v.var + j) for j in range(4)]


def adv(reg):
    return ["s_add_u32 s%d, s%d, s%d" % (reg, reg, s.astep), "s_and_b32 s%d, s%d, 0x1ffff" % (reg, reg)]


_sc = [0]


def svc_cap():
    r = ["s_waitcnt vmcnt(%s)" % OPT.get("cap", "10")]
    if OPT.get("cap0"):
        _sc[0] += 1
        r += ["s_and_b32 s%d, s%d, %s" % (s.t1, s.hoff, OPT.get("capm", "0x300")), "s_cbranch_scc1 L_sc%d" % _sc[0],
              "s_waitcnt vmcnt(%s)" % OPT["cap0"], "L_sc%d:" % _sc[0]]
    return r


def headmap():
    if OPT.get("gc"):
        tab = sum(int(OPT["gc"][2 * x + 1]) << (4 * x) for x in range(8))
        return ["s_lshl_b32 s%d, s2, 2" % s.t1,
                "s_lshr_b32 s%d, 0x%x, s%d" % (s.t1, tab, s.t1),
                "s_and_b32 s%d, s%d, 3" % (s.t1, s.t1),
                "s_bfe_u32 s%d, s2, 0x20003" % s.hoff,
                "s_lshl2_add_u32 s%d, s%d, s%d" % (s.t1, s.hoff, s.t1),
                "s_lshl_b32 s%d, s%d, 8" % (s.hoff, s.t1)]
    cm = OPT.get("cmap", "1302")
    if not cm:
        return ["s_and_b32 s%d, s2, 15" % s.t1, "s_lshl_b32 s%d, s%d, 8" % (s.hoff, s.t1)]
    tab = 0
    cls = [int(c) for c in cm]
    for i in range(16):
        x, hs = i & 7, i >> 3
        tab |= (cls[x >> 1] + 4 * (x & 1) + 8 * hs) << (4 * i)
    return ["s_lshl_b32 s%d, s2, 2" % s.t1,
            "s_lshr_b32 s%d, 0x%x, s%d" % (s.t1, tab & 0xffffffff, s.t1),
            "s_and_b32 s%d, s%d, 7" % (s.t1, s.t1),
            "s_and_b32 s%d, s2, 8" % s.hoff,
            "s_or_b32 s%d, s%d, s%d" % (s.t1, s.t1, s.hoff),
            "s_lshl_b32 s%d, s%d, 8" % (s.hoff, s.t1)]


def flag_init():
    return ["v_lshlrev_b32 v%d, 2, v0" % v.prga,
            "v_add_u32 v%d, %d, v%d" % (v.prga, PRGB - 4096, v.prga),
            "v_mov_b32 v%d, 0" % v.l,
            "ds_write_b32 v%d, v%d" % (v.prga, v.l),
            "ds_write_b32 v%d, v%d offset:4096" % (v.prga, v.l),
            "s_lshl_b32 s%d, s%d, 8" % (s.foff, s.foff),
            "s_lshr_b32 s%d, s%d, 1" % (s.t0, s.wave),
            "s_add_u32 s%d, s%d, s%d" % (s.foff, s.foff, s.t0)]


def far_load():
    r = []
    if STAMPS:
        r += ["v_mov_b32 v%d, 0" % v.st, "s_mov_b32 s%d, 8" % s.sti,
              "v_writelane_b32 v%d, s%d, 0" % (v.st, s.stp), "v_writelane_b32 v%d, s%d, 1" % (v.st, s.ws),
              "s_load_dwordx2 %s, s[0:1], 48" % sr(s.ws, 2)]
    return r + ["s_load_dwordx8 %s, %s, s%d offset:L_far-L_pc" % (sr(s.far, 8), sr(s.pc, 2), s.foff),
                "s_load_dwordx2 s[12:13], s[0:1], 32"]


def spin(n="1"):
    r = ["s_sleep %s" % n]
    if not OPT.get("nosafe"):
        r += ["s_sub_u32 s%d, s%d, 1" % (s.guard, s.guard), "s_cbranch_scc1 L_end"]
    return r


def sync_call(target=None):
    k = len(srets)
    srets.append(target or "L_sr%d" % k)
    return ["s_mov_b32 s%d, %d" % (s.sret, k), "s_branch L_sync"] + ([] if target else ["L_sr%d:" % k])


_pl = [0]


ool = []


def poll_rdy():
    _pl[0] += 1
    a, b = "L_pa%d" % _pl[0], "L_pb%d" % _pl[0]
    ool.append([a + ":"] + spin() + [RDYR, "s_waitcnt lgkmcnt(0)", "s_branch %s" % b])
    return ["s_min_u32 s%d, s%d, s%d" % (s.t2, s.need, s.n), b + ":",
            "v_cmp_ge_u32 vcc, s%d, v%d" % (s.t2, v.rdy), "s_cbranch_vccnz %s" % a]


def body(kind):
    odd, hlp = kind != "even", kind == "hlp"
    st = 0 if odd else 1
    V = lambda i: vread(i, st, not hlp)
    K = lambda t: kread(t, v.KF, st)
    W = lambda n: "s_waitcnt lgkmcnt(%d)" % n
    k = newret()
    q = [
        [NEEDINC, V(0), V(1), ex(8), add(7), cvt(3)],
        ["s_mov_b32 s%d, %d" % (s.ret, k), V(2), V(3), ex(9), ex(10)],
        [W(4), V(4), V(5), ex(11), add(8), add(9)],
        ["s_sub_u32 s%d, s%d, 1" % (s.U, s.U), V(6), V(7), ex(12), ex(13)],
        [None, V(8), V(9), ex(14), add(10), add(11)],
        [None, V(10), V(11), ex(15), add(12), add(13)],
        [W(4), V(12), V(13), add(14), add(15), CMP, cvt(4)],
        ["s_cbranch_vccnz L_resc", "L_ret%d:" % k, V(14), V(15), LADD, cvt(5), cvt(6), cvt(7)],
    ]
    p = [
        ["s_nop 0", K(0), K(1), K(2), F(0), F(1), F(2)],
        [None, K(3), ex(0), F(3), F(4), F(5)],
        [None, K(4), ex(1), F(6), F(7), F(8)],
        [W(5), K(5), ex(2), add(1), F(9), F(10)],
        [None, K(6), ex(3), add(2), cvt(0), F(11)],
        [None, K(7), ex(4), add(3), cvt(1), F(12)],
        [W(4), ex(5), ex(6), add(4), F(13)],
        [None, ex(7), add(5), add(6), cvt(2), F(14), F(15)],
    ]
    if odd:
        q[4][0], q[5][0] = adv(s.voff)
        p[4][0], p[5][0] = adv(s.koff)
        va, ka = vaddr(), kaddr()
        p[1].append(va[0])
        if hlp:
            p[3].append(va[1])
            p[4].append(va[2])
            p[5].append(va[3])
        p[6].append(ka[0])
        p[7].append(ka[1])
    if not hlp:
        p[0][0] = "s_min_u32 s%d, s%d, s%d" % (s.chk, s.need, s.n)
        p[1][0] = "s_bitcmp1_b32 s%d, s%d" % (s.far + 5, s.U)
        p[2][0] = "s_cselect_b32 s%d, -1, s%d" % (s.chk, s.chk)
        p[2][2:2] = [RDYR]
        p[6][0] = W(3)
        if odd and (not OPT.get("nodpub")):
            q[2].append("v_add_u32 v%d, 8, v%d" % (v.fo, v.fo))
            q[3][1:1] = ["global_load_lds_dword v%d, %s" % (v.fo, sr(s.pc, 2))]
        p[7][3:3] = ["v_cmp_ge_u32 vcc, s%d, v%d" % (s.chk, v.rdy)]
    else:
        q[1].append(PRGINC)
        q[7][4:4] = [PRGW]
        sc = sync_call()
        q[3][1:1] = [sc[0]]
        p[0][0:1] = stamp_l() + sc[1:] + stamp_l()
    lab("L_%s_m" % kind)
    e(QK0)
    lab("L_%s_a" % kind)
    emit(q[0])
    for t in range(1, 8):
        e(qk(t))
        emit(q[t])
    for i in range(8):
        e(pv(i))
        emit(p[i])
    if not hlp:
        stamp()


def gen():
    K = NAME + "_kernel"
    near, far, _ = build_tables()
    PACE = int(OPT.get("pace", "0"))
    out.append(HEADER + "; @launch grid=(256,1,1) block=(512,1,1) lds=%d" % LDS_TOTAL)
    out.append('.amdgcn_target "amdgcn-amd-amdhsa--gfx950"')
    out.append(".text")
    out.append(".globl " + K)
    out.append(".p2align 12")
    out.append(".p2align 8")
    out.append(".type %s,@function" % K)
    lab(K)
    L, N, Fa = v.lane, s.near, s.far
    if SPIN:
        e("s_memrealtime s[%d:%d]" % (s.ws, s.ws + 1))
        e("s_memrealtime s[%d:%d]" % (s.stp, s.stp + 1))
    if STAMPS:
        e("s_memrealtime s[%d:%d]" % (s.stp, s.stp + 1))
        e("s_memtime s[%d:%d]" % (s.ws, s.ws + 1))
    e("s_load_dwordx8 s[4:11], s[0:1], 0")
    e("s_getpc_b64 %s" % sr(s.pc, 2))
    lab("L_pc")
    if OPT.get("gc"):
        gm = sum((OPT["gc"][2 * x] == "L") << x for x in range(8)) * 0x01010101
        e("s_lshr_b32 s%d, s2, 5" % s.foff)
        e("s_bitcmp1_b32 0x%x, s2" % gm)
        e("s_cselect_b32 s%d, 8, 0" % s.t1)
        e("s_add_u32 s%d, s%d, s%d" % (s.foff, s.foff, s.t1))
    else:
        e("s_lshr_b32 s%d, s2, 4" % s.foff)
    e("s_lshl_b32 s%d, s%d, 5" % (s.t1, s.foff))
    e("s_load_dwordx8 %s, %s, s%d offset:L_near-L_pc" % (sr(s.near, 8), sr(s.pc, 2), s.t1))
    e("v_mul_u32_u24 v%d, PFSTRIDE, v0" % v.t0)
    e("v_readfirstlane_b32 s%d, v0" % s.wave)
    e("global_load_dword v%d, v%d, %s" % (v.pf, v.t0, sr(s.pc, 2)))
    e("s_cmp_ge_u32 s2, 256" if OPT.get("gc") else "s_cmp_ge_u32 s%d, 16" % s.foff)
    e("s_cbranch_scc1 L_end")
    e("s_bitcmp0_b32 s%d, 8" % s.wave)
    e("s_cbranch_scc1 L_mainpro")
    e("v_bfe_u32 v%d, v0, 5, 2" % v.t0)
    e("v_and_b32 v%d, 3, v0" % v.t1)
    e("v_xor_b32 v%d, v%d, v%d" % (v.t1, v.t1, v.t0))
    e("v_and_or_b32 v%d, v0, 12, v%d" % (v.t0, v.t0))
    e("v_lshlrev_b32 v%d, 12, v%d" % (v.t0, v.t0))
    e("v_lshl_add_u32 v%d, v%d, 4, v%d" % (v.t0, v.t1, v.t0))
    e("v_and_b32 v%d, 16, v0" % v.t1)
    e("v_lshl_add_u32 v%d, v%d, 2, v%d" % (v.t0, v.t1, v.t0))
    e("v_bfe_u32 v%d, v0, 7, 1" % v.t1)
    e("v_lshl_add_u32 v%d, v%d, 16, v%d" % (v.kd0, v.t1, v.t0))
    e("v_add_u32 v%d, 0x80, v%d" % (v.kd1, v.kd0))
    emit(headmap())
    e("s_lshl_b32 s%d, s%d, 6" % (s.dslot, s.wave))
    e("s_and_b32 s%d, s%d, 0x3000" % (s.dslot, s.dslot))
    e("s_mov_b32 s%d, 0x20000" % (s.sq + 3))
    e("s_mov_b32 s%d, s%d" % (s.kA + 3, s.sq + 3))
    e("s_mov_b32 s%d, 0" % s.soff)
    if OPT.get("thr", "0") != "0":
        e("s_lshr_b32 vcc_lo, %s, s%d" % (OPT.get("thr", "0"), s.t1))
        if OPT.get("thrr"):
            e("s_lshr_b32 s%d, %s, s%d" % (s.t0, OPT["thrr"], s.foff))
            e("s_and_b32 vcc_lo, vcc_lo, s%d" % s.t0)
        if OPT.get("thro"):
            e("s_lshr_b32 s%d, %s, s%d" % (s.t0, OPT["thro"], s.foff))
            e("s_or_b32 vcc_lo, vcc_lo, s%d" % s.t0)
        e("s_and_b32 vcc_lo, vcc_lo, 1")
        e("s_mov_b32 vcc_hi, 0")
    e("s_add_u32 s%d, s%d, %d" % (s.d0, s.dslot, QBASE))
    emit(flag_init())
    e("s_waitcnt lgkmcnt(0)")
    emit(far_load())
    mark("karg")
    THR = OPT.get("thr", "0")
    _th = [0]

    def throttle():
        if THR == "0":
            return []
        _th[0] += 1
        return ["s_cbranch_vccz L_th%d" % _th[0], "s_waitcnt vmcnt(%s)" % OPT.get("thn", "8"), "L_th%d:" % _th[0]]

    def qtile(i):
        w = N + 5 + i // 2
        r = ["s_bitcmp1_b32 s%d, %d" % (w, 12 + 16 * (i % 2)),
             "s_cselect_b32 s%d, s%d, s%d" % (s.sq + 2, s.qeb, s.qea),
             "s_bfe_u32 s%d, s%d, 0x%x" % (s.t0, w, 0xc0000 + 16 * (i % 2)),
             "s_add_u32 m0, s%d, %d" % (s.d0, (i // 4) * 32768 + (i % 4) * 1024),
             "s_lshl_b32 s%d, s%d, 12" % (s.t0, s.t0),
             "buffer_load_dwordx4 v%d, %s, s%d offen %s lds" % (v.kd0, sr(s.sq, 4), s.t0, LDF_Q),
             "s_add_u32 m0, m0, 0x4000", "s_nop 0",
             "buffer_load_dwordx4 v%d, %s, s%d offen %s lds" % (v.kd1, sr(s.sq, 4), s.t0, LDF_Q)]
        return r
    e("s_add_u32 s%d, s%d, s%d" % (s.qea, N + 0, N + 1))
    e("s_add_u32 s%d, s%d, s%d" % (s.qeb, N + 2, N + 3))
    e("s_add_u32 s%d, s%d, s%d" % (s.sq, s.q, s.hoff))
    e("s_addc_u32 s%d, s%d, 0" % (s.sq + 1, s.q + 1))
    emit(qtile(0))
    e("s_add_u32 s%d, s%d, s%d" % (N + 0, N + 0, s.hoff))
    e("s_add_u32 s%d, s%d, s%d" % (s.kA, s.k, N + 0))
    e("s_addc_u32 s%d, s%d, 0" % (s.kA + 1, s.k + 1))
    e("s_sub_u32 s%d, s%d, 1024" % (s.kA, s.kA))
    e("s_subb_u32 s%d, s%d, 0" % (s.kA + 1, s.kA + 1))
    e("s_add_u32 s%d, s%d, 1024" % (s.kA + 2, N + 1))
    emit(chunk(0, True, flag=False))
    for i in range(1, QL):
        emit((throttle() if i > 1 else []) + qtile(i))
    QLATE = sum((qtile(i) for i in range(QL, 4)), [])
    mark("iss")
    for b in (s.kB, s.vA, s.vB):
        e("s_mov_b32 s%d, s%d" % (b + 3, s.sq + 3))
    e("s_add_u32 s%d, s%d, s%d" % (N + 2, N + 2, s.hoff))
    e("s_add_u32 s%d, s%d, s%d" % (s.kB, s.k, N + 2))
    e("s_addc_u32 s%d, s%d, 0" % (s.kB + 1, s.k + 1))
    e("s_mov_b32 s%d, s%d" % (s.kB + 2, N + 3))
    e("s_and_b32 s%d, s%d, 0xfffff000" % (s.stepb, N + 4))
    e("s_lshr_b32 s%d, s%d, 4" % (s.rdw, s.dslot))
    e("s_add_u32 s%d, s%d, %d" % (s.rdw, s.rdw, RDYB))
    e("v_mov_b32 v%d, L_cnt-L_pc" % v.fo)
    for (srd, off, nr, d) in ((s.vA, N + 0, N + 1, 3072), (s.vB, N + 2, N + 3, 2048)):
        e("s_add_u32 s%d, s%d, %d" % (s.t0, s.stepb, d))
        e("s_add_u32 s%d, s%d, s%d" % (srd, s.vv, off))
        e("s_addc_u32 s%d, s%d, 0" % (srd + 1, s.vv + 1))
        e("s_sub_u32 s%d, s%d, s%d" % (srd, srd, s.t0))
        e("s_subb_u32 s%d, s%d, 0" % (srd + 1, srd + 1))
        e("s_add_u32 s%d, s%d, s%d" % (srd + 2, nr, s.t0))
    e("v_bfe_u32 v%d, v0, 2, 2" % v.t0)
    e("v_lshlrev_b32 v%d, 12, v%d" % (v.t0, v.t0))
    e("v_and_b32 v%d, 3, v0" % v.t1)
    e("v_lshl_add_u32 v%d, v%d, 4, v%d" % (v.t0, v.t1, v.t0))
    e("v_and_b32 v%d, 48, v0" % v.t1)
    e("v_lshl_add_u32 v%d, v%d, 2, v%d" % (v.t0, v.t1, v.t0))
    e("v_bfe_u32 v%d, v0, 6, 2" % v.t1)
    e("v_lshl_add_u32 v%d, v%d, 14, v%d" % (v.vd0, v.t1, v.t0))
    e("v_add_u32 v%d, 0x10000, v%d" % (v.vd1, v.vd0))
    e("s_setprio %s" % OPT.get("hprio", "3"))
    e("s_branch L_common")
    lab("L_mainpro")
    for b in (s.sq, s.kA, s.kB, s.vA, s.vB):
        e("s_mov_b64 %s, s[0:1]" % sr(b, 2))
        e("s_mov_b32 s%d, 0" % (b + 2))
        e("s_mov_b32 s%d, 0x20000" % (b + 3))
    for r in (v.kd0, v.kd1, v.vd0, v.vd1, v.fo):
        e("v_mov_b32 v%d, 0" % r)
    emit(headmap())
    emit(flag_init())
    e("s_waitcnt lgkmcnt(0)")
    emit(far_load())
    lab("L_common")
    e("s_lshr_b32 s%d, s%d, 6" % (s.wave, s.wave))
    e("v_and_b32 v%d, 63, v0" % L)
    e("v_and_b32 v%d, 7, v0" % v.t0)
    e("v_mul_u32_u24 v%d, 0x104, v%d" % (v.t0, v.t0))
    e("v_add_u32 v%d, %d, v%d" % (v.pra, PRGB, v.t0))
    e("v_add_u32 v%d, 0x1000, v%d" % (v.prga, v.prga))
    mark("prebar")
    e("s_barrier")
    if SPIN == "postbar":
        e("s_memrealtime s[%d:%d]" % (s.stp, s.stp + 1))
    e("s_cmp_lt_u32 s%d, 4" % s.wave)
    e("s_cbranch_scc1 L_common2")
    QH = qtile(4) + qtile(5)
    C2 = (QLATE if QLC == 2 else []) + (QH if QE == 2 else []) + chunk(0) + (QLATE if QLC == 3 else [])
    emit(FLAG + (QH if QE == 1 else []) + chunk(1, True) + STEP_ADV + (C2 if OPT.get("c2early") else []))
    lab("L_common2")
    mark("bar")
    e("v_bfe_u32 v%d, v%d, 4, 1" % (v.t0, L))
    e("v_lshlrev_b32 v%d, 13, v%d" % (v.t0, v.t0))
    e("v_bfe_u32 v%d, v%d, 1, 1" % (v.t1, L))
    e("v_lshl_add_u32 v%d, v%d, 12, v%d" % (v.t0, v.t1, v.t0))
    e("v_and_b32 v%d, 1, v%d" % (v.t1, L))
    e("v_lshl_add_u32 v%d, v%d, 9, v%d" % (v.t0, v.t1, v.t0))
    e("v_bfe_u32 v%d, v%d, 2, 2" % (v.t1, L))
    e("v_lshl_add_u32 v%d, v%d, 6, v%d" % (v.t0, v.t1, v.t0))
    e("v_lshrrev_b32 v%d, 5, v%d" % (v.t1, L))
    e("v_and_b32 v%d, 3, v%d" % (v.t2, L))
    e("v_xor_b32 v%d, v%d, v%d" % (v.t1, v.t1, v.t2))
    e("v_lshl_add_u32 v%d, v%d, 4, v%d" % (v.ka0r, v.t1, v.t0))
    e("v_xor_b32 v%d, 32, v%d" % (v.ka1r, v.ka0r))
    e("v_lshrrev_b32 v%d, 5, v%d" % (v.t0, L))
    e("v_lshlrev_b32 v%d, 12, v%d" % (v.t0, v.t0))
    e("v_bfe_u32 v%d, v%d, 2, 2" % (v.t1, L))
    e("v_lshl_add_u32 v%d, v%d, 6, v%d" % (v.t0, v.t1, v.t0))
    e("v_bfe_u32 v%d, v%d, 4, 1" % (v.t1, L))
    e("v_lshl_add_u32 v%d, v%d, 5, v%d" % (v.t0, v.t1, v.t0))
    e("v_lshl_add_u32 v%d, v%d, 3, v%d" % (v.t0, v.t2, v.t0))
    e("v_add_u32 v%d, 0x800, v%d" % (v.var, v.t0))
    e("s_mov_b32 s%d, 0x%x" % (s.thr, f2u(THRESH)))
    e("v_mul_u32_u24 v%d, 0x104, v%d" % (v.t1, v.t2))
    e("v_add_u32 v%d, %d, v%d" % (v.rdya, RDYB, v.t1))
    e("s_mov_b32 s%d, 0x8000" % s.guard)
    e("v_mov_b32 v%d, 0" % v.rdy)
    e("s_waitcnt lgkmcnt(0)")
    e("s_add_u32 s%d, s%d, s%d" % (s.t0, Fa + 0, s.hoff))
    e("s_add_u32 s%d, s%d, s%d" % (s.so, s.out, s.t0))
    e("s_addc_u32 s%d, s%d, 0" % (s.so + 1, s.out + 1))
    e("s_mov_b32 s%d, s%d" % (s.so + 2, Fa + 1))
    e("s_mov_b32 s%d, 0x20000" % (s.so + 3))
    e("s_and_b32 s%d, s%d, 0xff" % (s.n, N + 4))
    e("s_bfe_u32 s%d, s%d, 0x40008" % (s.t3, Fa + 2))
    e("s_cbranch_scc1 L_work")
    e("v_mov_b32 v%d, %d" % (v.prg, BIG))
    e(PRGW)
    e("s_cmp_lt_u32 s%d, 4" % s.wave)
    e("s_cbranch_scc1 L_fin")
    e("s_branch L_presig")
    lab("L_work")
    mark("work")
    for r in range(0, 64, 2):
        e("v_pk_mov_b32 %s, 0, 0" % vr(v.O + r, 2))
    e("s_and_b32 s%d, s%d, 0xff" % (s.U, Fa + 2))
    e("s_bfe_u32 s%d, s%d, 0x4000c" % (s.inc, Fa + 2))
    e("s_and_b32 s%d, s%d, 0xfffff" % (s.reg, Fa + 4))
    e("s_bfe_u32 s%d, s%d, 0x80010" % (s.t0, Fa + 2))
    e("s_sub_u32 s%d, s%d, 1" % (s.t0, s.t0))
    e("v_lshrrev_b32 v%d, 5, v%d" % (v.t0, L))
    e("v_lshlrev_b32 v%d, 2, v%d" % (v.t0, v.t0))
    e("v_sub_u32 v%d, s%d, v%d" % (v.t0, s.t0, v.t0))
    e("v_mov_b32 v%d, 0xff800000" % v.t1)
    for r in range(16):
        cst = 8 * (r // 4) + r % 4
        e("v_subrev_u32 v%d, %d, v%d" % (v.B + r, cst, v.t0))
        e("v_ashrrev_i32 v%d, 31, v%d" % (v.B + r, v.B + r))
        e("v_and_b32 v%d, v%d, v%d" % (v.B + r, v.t1, v.B + r))
    e("s_bfe_u32 s%d, s%d, 0x20014" % (s.t0, Fa + 4))
    e("s_lshl_b32 s%d, s%d, 10" % (s.t0, s.t0))
    e("s_bfe_u32 s%d, s%d, 0x10016" % (s.t1, Fa + 4))
    e("s_lshl_b32 s%d, s%d, 15" % (s.t1, s.t1))
    e("s_add_u32 s%d, s%d, s%d" % (s.t0, s.t0, s.t1))
    e("s_add_u32 s%d, s%d, %d" % (s.koff, s.t0, QBASE))
    e("v_add_u32 v%d, s%d, v%d" % (v.t2, s.koff, v.ka0r))
    e("v_add_u32 v%d, s%d, v%d" % (v.t3, s.koff, v.ka1r))
    e("s_cmp_lg_u32 s%d, 1" % s.t3)
    e("s_cselect_b32 s%d, 1, 0" % s.m1)
    e("s_bfe_u32 s%d, s%d, 0x2001a" % (s.t0, Fa + 4))
    e("s_lshl_b32 s%d, s%d, 15" % (s.astep, s.t0))
    e("s_bfe_u32 s%d, s%d, 0x10019" % (s.t2, Fa + 4))
    e("s_bfe_u32 s%d, s%d, 0x10018" % (s.t0, Fa + 4))
    e("s_lshl_b32 s%d, s%d, 10" % (s.t0, s.t0))
    e("s_mul_i32 s%d, s%d, s%d" % (s.t1, s.t0, s.m1))
    e("s_sub_u32 s%d, s%d, s%d" % (s.t0, s.t0, s.t1))
    e("s_lshl_b32 s%d, s%d, 15" % (s.voff, s.t2))
    e("s_add_u32 s%d, s%d, s%d" % (s.koff, s.voff, s.t0))
    e("s_add_u32 s%d, s%d, 0x8000" % (s.voff, s.voff))
    e("v_add_u32 v%d, s%d, v%d" % (v.ka0r, s.t1, v.ka0r))
    e("v_add_u32 v%d, s%d, v%d" % (v.ka1r, s.t1, v.ka1r))
    e("s_bfe_u32 s%d, s%d, 0x2001c" % (s.t0, Fa + 2))
    for j in (3, 2, 1, 0):
        e("s_add_u32 s%d, s%d, %d" % (s.col, s.t0, j))
        e("s_and_b32 s%d, s%d, 3" % (s.col, s.col))
        e("s_lshl_b32 s%d, s%d, 8" % (s.col, s.col))
        e("s_add_u32 s%d, s%d, s%d" % (s.col, s.col, s.t1))
        e("v_add_u32 v%d, s%d, v%d" % (v.var + j, s.col, v.var))
    emit(vaddr() + kaddr())
    e("s_and_b32 s%d, s%d, 0xff" % (s.t0, Fa + 3))
    e("v_mov_b32 v%d, s%d" % (v.prg, s.t0))
    e("s_bfe_u32 s%d, s%d, 0x80010" % (s.need, Fa + 3))
    e("s_cmp_lt_u32 s%d, 4" % s.wave)
    e("s_cbranch_scc1 L_sig0")
    e(PRGW)
    lab("L_presig")
    mark("presig")
    emit(([] if OPT.get("c2early") else C2) + (QH if QE == 0 else []) + chunk(1) + STEP_ADV)
    e("s_mov_b32 s%d, 4" % s.iss)
    mark("c3")
    stamp()
    e("s_cmp_eq_u32 s%d, 0" % s.t3)
    e("s_cbranch_scc1 L_hdone")
    emit(sync_call("L_head"))
    lab("L_sig0")
    mark("msetup")
    e("s_bfe_u32 s%d, s%d, 0x80008" % (s.t0, Fa + 3))
    e("s_sub_u32 s%d, s%d, s%d" % (s.t0, s.t0, s.m1))
    e("s_lshl_b32 s%d, s%d, 2" % (s.t0, s.t0))
    e("s_add_u32 s%d, s%d, L_cnt-L_pc-4" % (s.t0, s.t0))
    e("v_mov_b32 v%d, s%d" % (v.fo, s.t0))
    e("s_lshl_b32 s%d, s%d, 8" % (s.t0, s.wave))
    e("s_add_u32 m0, s%d, %d" % (s.t0, PRGB))
    stamp()
    emit(poll_rdy())
    mark("sig0")
    stamp()
    lab("L_head")
    qr = [kread(t, v.Q).replace("v%d " % v.ka0, "v%d " % v.t2).replace("v%d " % v.ka1, "v%d " % v.t3) for t in range(8)]
    kr = [kread(t, v.KF) for t in range(8)]
    for t in range(7):
        emit([qr[t], kr[t]])
    e("s_add_u32 s%d, s%d, s%d" % (s.t0, s.koff, s.astep))
    e("s_mul_i32 s%d, s%d, s%d" % (s.koff, s.t0, s.m1))
    e("s_waitcnt lgkmcnt(12)")
    e(QK0)
    emit([qr[7], kr[7], PRGW])
    for t in range(1, 8):
        e("s_waitcnt lgkmcnt(%d)" % (15 - 2 * t + (1 if t >= 2 else 0)))
        e(qk(t))
        if t == 1:
            e(RDYR)
            emit(kaddr())
            emit(adv(s.koff))
        if t == 2:
            e("v_and_b32 v%d, 31, v%d" % (v.t2, L))
            e("v_lshlrev_b32 v%d, 12, v%d" % (v.t2, v.t2))
            e("v_sub_u32 v%d, s%d, v%d" % (v.t2, Fa + 1, v.t2))
            e("v_ashrrev_i32 v%d, 31, v%d" % (v.t2, v.t2))
            e("v_and_b32 v%d, 0xff800000, v%d" % (v.t2, v.t2))
        if t == 3:
            e("s_bfe_u32 s%d, s%d, 0x80008" % (s.t0, Fa + 3))
            e("v_mov_b32 v%d, s%d" % (v.prg, s.t0))
            e("s_mov_b32 s%d, s%d" % (s.need, Fa + 6))
    e("s_cmp_lt_u32 s%d, 4" % s.wave)
    e("s_waitcnt lgkmcnt(0)")
    e("s_cbranch_scc0 L_head2")
    emit(poll_rdy())
    emit(kr)
    emit(kaddr())
    lab("L_head2")
    if OPT.get("lowh"):
        e("s_setprio 0")
    e("s_lshr_b32 s%d, s%d, 24" % (s.need, Fa + 3))
    e("s_nop 7")
    e("v_max3_f32 v%d, v%d, v%d, v%d" % (v.t0, v.S, v.S + 1, v.S + 2))
    e("v_max3_f32 v%d, v%d, v%d, v%d" % (v.t1, v.S + 3, v.S + 4, v.S + 5))
    for r in range(6, 14, 4):
        e("v_max3_f32 v%d, v%d, v%d, v%d" % (v.t0, v.t0, v.S + r, v.S + r + 1))
        e("v_max3_f32 v%d, v%d, v%d, v%d" % (v.t1, v.t1, v.S + r + 2, v.S + r + 3))
    e("v_max3_f32 v%d, v%d, v%d, v%d" % (v.t0, v.t0, v.S + 14, v.S + 15))
    e("v_max_f32 v%d, v%d, v%d" % (v.t0, v.t0, v.t1))
    e("v_mov_b32 v%d, v%d" % (v.t1, v.t0))
    e(RDYR)
    e("s_nop 0")
    e("v_permlane32_swap_b32 v%d, v%d" % (v.t0, v.t1))
    e("s_nop 1")
    e("v_max_f32 v%d, v%d, v%d" % (v.t0, v.t0, v.t1))
    e("v_fmamk_f32 v%d, v%d, 0x%x, v%d" % (v.nmc, v.t0, f2u(-C_SCALE), v.t2))
    for r in range(16):
        e(F(r))
    emit([ex(i) for i in range(8)] + [add(i) for i in range(1, 7)] + [cvt(0), cvt(1), cvt(2)])
    e("s_cmp_lt_u32 s%d, 4" % s.wave)
    e("s_waitcnt lgkmcnt(0)")
    e("s_cbranch_scc0 L_hlp_in")
    stamp()
    emit(poll_rdy())
    mark("loop")
    stamp()
    e("s_cmp_eq_u32 s%d, 1" % s.m1)
    e("s_cbranch_scc1 L_odd_m")
    out.append(".p2align 4")
    body("even")
    e("s_cbranch_vccnz L_hnd_even")
    body("odd")
    e("s_cbranch_vccz L_even_m")
    emit(poll_rdy())
    e("s_cmp_le_u32 s%d, 1" % s.U)
    e("s_cbranch_scc1 L_ho1")
    e("s_cmp_eq_u32 s%d, 0" % s.m1)
    e("s_cbranch_scc0 L_odd_m")
    e("s_branch L_even_m")
    lab("L_ho1")
    e("s_cmp_eq_u32 s%d, 0" % s.U)
    e("s_cbranch_scc1 L_tail0")
    e("s_cmp_eq_u32 s%d, 0" % s.m1)
    e(QK0M)
    e("s_cbranch_scc1 L_even_a")
    e("s_branch L_odd_a")
    lab("L_hnd_even")
    emit(poll_rdy())
    e("s_cmp_gt_u32 s%d, 1" % s.U)
    e("s_cbranch_scc1 L_odd_m")
    e("s_cmp_eq_u32 s%d, 0" % s.U)
    e("s_cbranch_scc1 L_tailm")
    e(QK0M)
    e("s_branch L_odd_a")
    lab("L_hlp_in")
    mark("hlpin")
    e(PRGW)
    stamp()
    emit(sync_call())
    stamp()
    for t in range(8):
        e(kread(t, v.KF))
    emit(kaddr())
    e("s_waitcnt lgkmcnt(4)")
    e("s_branch L_hnd_hlp")
    body("hlp")
    lab("L_hnd_hlp")
    e("s_cmp_gt_u32 s%d, 1" % s.U)
    e("s_cbranch_scc1 L_hlp_m")
    e("s_cmp_eq_u32 s%d, 0" % s.U)
    e("s_cbranch_scc1 L_tail")
    e(QK0M)
    e("s_branch L_hlp_a")
    lab("L_tail0")
    e("s_cmp_eq_u32 s%d, 1" % s.m1)
    e("s_cbranch_scc1 L_tailm")
    e("v_add_u32 v%d, 0x400, v%d" % (v.va, v.va))
    lab("L_tailm")
    e("s_bitcmp1_b32 s%d, 31" % (Fa + 4))
    e("s_cbranch_scc1 L_tails")
    for j in range(1, 4):
        e("v_add_u32 v%d, %d, v%d" % (v.va + j, 256 * j, v.va))
    tw, tr0, oo, rl = v.ka1, v.va, v.ka1r, v.X + 2

    def lsum():
        return ["v_mov_b32 v%d, v%d" % (v.t0, v.l), "s_nop 1",
                "v_permlane32_swap_b32 v%d, v%d" % (v.l, v.t0), "s_nop 1",
                "v_add_f32 v%d, v%d, v%d" % (v.l, v.l, v.t0)]

    def st_addr():
        r = ["v_and_b32 v%d, 31, v%d" % (v.t0, L),
             "v_lshrrev_b32 v%d, 5, v%d" % (v.t1, L),
             "v_lshlrev_b32 v%d, 3, v%d" % (v.t1, v.t1),
             "v_and_b32 v%d, 7, v%d" % (v.t2, L),
             "v_lshl_add_u32 v%d, v%d, 4, v%d" % (v.t1, v.t2, v.t1),
             "v_lshl_add_u32 v%d, v%d, 7, v%d" % (v.t0, v.t0, v.t1),
             "v_add_u32 v%d, s%d, v%d" % (tw, s.reg, v.t0)]
        r += ["v_xor_b32 v%d, %d, v%d" % (v.E + c, c * 16, tw) for c in range(8)]
        r += ["v_lshrrev_b32 v%d, 3, v%d" % (v.t0, L),
              "v_xor_b32 v%d, v%d, v%d" % (v.t1, v.t2, v.t0),
              "v_lshlrev_b32 v%d, 4, v%d" % (v.t1, v.t1),
              "v_lshl_add_u32 v%d, v%d, 7, v%d" % (v.t1, v.t0, v.t1),
              "v_add_u32 v%d, s%d, v%d" % (tr0, s.reg, v.t1),
              "v_lshlrev_b32 v%d, 12, v%d" % (v.t0, v.t0),
              "v_lshl_add_u32 v%d, v%d, 4, v%d" % (oo, v.t2, v.t0)]
        return r

    def pack_q(bb, norm=True, pk=True):
        r = []
        for g in range(4):
            c = 4 * bb + g
            o = v.O + 4 * c
            d = v.S + 2 * c
            if norm and not pk:
                r += ["v_mul_f32 v%d, v%d, v%d" % (o + i, o + i, rl) for i in range(4)]
            elif norm:
                r += ["v_pk_mul_f32 %s, %s, %s op_sel_hi:[1,0]" % (vr(o + i, 2), vr(o + i, 2), vr(rl, 2)) for i in (0, 2)]
            r += ["v_cvt_pk_bf16_f32 v%d, v%d, v%d" % (d, o, o + 1),
                  "v_cvt_pk_bf16_f32 v%d, v%d, v%d" % (d + 1, o + 2, o + 3),
                  "ds_write_b64 v%d, %s" % (v.E + c % 8, vr(d, 2))]
        return r

    def rd_half(hh):
        return ["ds_read_b128 %s, v%d offset:%d" % (vr(v.KF + 16 * hh + 4 * k, 4), tr0, k * 1024) for k in range(4)]

    def st_one(hh, k):
        return ["buffer_store_dwordx4 %s, v%d, %s, s%d offen offset:%d %s" % (
                    vr(v.KF + 16 * hh + 4 * k, 4), oo, sr(s.so, 4), s.col + k if k < 3 else s.t1, 128 * hh,
                    STF if hh == 0 else OPT.get("st2", OPT.get("st", "sc1")).replace("+", " ").replace("none", ""))]

    sa = st_addr()
    cols = ["s_mov_b32 s%d, 0" % s.col, "s_mov_b32 s%d, 0x8000" % (s.col + 1),
            "s_mov_b32 s%d, 0x10000" % (s.col + 2), "s_mov_b32 s%d, 0x18000" % s.t1]
    RCP = "v_rcp_f32 v%d, v%d" % (rl, v.l)
    lab("L_tail")
    mark("tail")
    if not OPT.get("nolowt"):
        e("s_setprio 0")
    e("v_mov_b32 v%d, %d" % (v.prg, BIG))
    k = newret()
    vord = [0, 1, 8, 9, 2, 3, 10, 11, 4, 5, 12, 13, 6, 7, 14, 15]
    for i in vord[:12]:
        e(vread(i))
    emit([ex(8), add(7), cvt(3)] + [ex(i) for i in range(9, 16)])
    e("s_cmp_lt_u32 s%d, 4" % s.wave)
    e("s_cbranch_scc0 L_t1")
    e("s_waitcnt vmcnt(0)")
    lab("L_t1")
    for i in vord[12:]:
        e(vread(i))
    e(PRGW)
    emit([add(i) for i in range(8, 16)] + [CMP, cvt(4), "s_mov_b32 s%d, %d" % (s.ret, k), "s_cbranch_vccnz L_resc",
                                           "L_ret%d:" % k, cvt(5), cvt(6), cvt(7), LADD])
    e("s_cmp_lt_u32 s%d, 4" % s.wave)
    e("s_waitcnt lgkmcnt(0)")
    e("s_cbranch_scc0 L_htail")
    lab("L_tail2")
    p0 = pack_q(0, pk=False)
    emit([pv(0)] + lsum() + [RCP])
    emit([pv(4), cols[0]] + sa[0:7])
    emit([pv(1), cols[1]] + sa[7:15])
    emit([pv(5), cols[2]] + sa[15:])
    emit([pv(2), cols[3]] + p0[0:7])
    emit([pv(6)] + p0[7:14])
    emit([pv(3)] + p0[14:21])
    emit([pv(7)] + p0[21:])
    lab("L_tail3")
    stamp(5)
    if OPT.get("stadj"):
        emit(pack_q(1) + rd_half(0) + pack_q(2) + pack_q(3) + rd_half(1))
        for k in range(4):
            emit(["s_waitcnt lgkmcnt(%d)" % (3 - k)] + st_one(0, k) + st_one(1, k))
    else:
        emit(pack_q(1) + rd_half(0))
        p2 = pack_q(2)
        emit(p2[:10] + ["s_waitcnt lgkmcnt(5)"] + st_one(0, 0) + p2[10:] + ["s_waitcnt lgkmcnt(4)"] + st_one(0, 1))
        p3 = pack_q(3)
        emit(p3[:10] + st_one(0, 2) + p3[10:] + st_one(0, 3) + rd_half(1))
        stamp(4)
        for k in range(4):
            emit(["s_waitcnt lgkmcnt(%d)" % (3 - k)] + st_one(1, k))
    k = newret()
    ool.append(["L_tails:"] + [vread(i, 0, True) for i in range(8)]
               + ["v_mov_b32 v%d, %d" % (v.prg, BIG), add(7), "s_waitcnt vmcnt(0)", PRGW, CMP, cvt(3), "s_mov_b32 s%d, %d" % (s.ret, k), "s_cbranch_vccnz L_resc",
                  "L_ret%d:" % k, LADD] + lsum() + [RCP, "s_waitcnt lgkmcnt(1)",
                  pv(0), cols[0]] + sa[0:7] + [pv(1), cols[1]] + sa[7:15] + [pv(2), cols[2]] + sa[15:]
               + [pv(3), cols[3]] + pack_q(0) + ["s_branch L_tail3"])
    lab("L_fin")
    if SPIN:
        mark("st")
        e("s_waitcnt vmcnt(0)")
        mark("end")
        if SPIN == "glob":
            e("s_load_dwordx2 s[98:99], s[0:1], 40")
            e("s_not_b32 s%d, s%d" % (s.t0, s.ws))
            e("v_mov_b32 v%d, s%d" % (v.t1, s.t0))
            e("v_mov_b32 v%d, 0" % v.t0)
            e("s_waitcnt lgkmcnt(0)")
            e("s_cmp_lg_u32 s%d, 0" % s.wave)
            e("s_cbranch_scc1 L_g1")
            e("s_mov_b64 exec, 1")
            e("global_atomic_umax v%d, v%d, s[98:99]" % (v.t0, v.t1))
            e("s_mov_b64 exec, -1")
            lab("L_g1")
        e("s_sub_u32 s%d, s%d, s%d" % (s.t0, s.stp, s.ws))
        e("s_mul_i32 s%d, s%d, %s" % (s.t0, s.t0, OPT.get("amp", "2")))
        if OPT.get("wsel"):
            e("s_lshr_b32 s%d, %s, s%d" % (s.t1, OPT["wsel"], s.wave))
            e("s_and_b32 s%d, s%d, 1" % (s.t1, s.t1))
            e("s_mul_i32 s%d, s%d, s%d" % (s.t0, s.t0, s.t1))
        if OPT.get("rmask"):
            e("s_and_b32 s%d, s2, 15" % s.t1 if OPT.get("hsel") else "s_lshr_b32 s%d, s2, 4" % s.t1)
            e("s_lshr_b32 s%d, %s, s%d" % (s.t1, OPT["rmask"], s.t1))
            e("s_and_b32 s%d, s%d, 1" % (s.t1, s.t1))
            e("s_mul_i32 s%d, s%d, s%d" % (s.t0, s.t0, s.t1))
        e("s_add_u32 s%d, s%d, 3000" % (s.t0, s.t0))
        lab("L_spin")
        e("s_sleep 2")
        e("s_memrealtime s[%d:%d]" % (s.stp, s.stp + 1))
        e("s_waitcnt lgkmcnt(0)")
        e("s_sub_u32 s%d, s%d, s%d" % (s.t1, s.stp, s.ws))
        e("s_cmp_lt_u32 s%d, s%d" % (s.t1, s.t0))
        e("s_cbranch_scc1 L_spin")
        if SPIN == "glob":
            e("global_load_dword v%d, v%d, s[98:99] sc0 sc1" % (v.t1, v.t0))
            e("s_waitcnt vmcnt(0)")
            e("v_readfirstlane_b32 s%d, v%d" % (s.t2, v.t1))
            e("s_not_b32 s%d, s%d" % (s.t2, s.t2))
            lab("L_spin2")
            e("s_sleep 2")
            e("s_memrealtime s[%d:%d]" % (s.stp, s.stp + 1))
            e("s_waitcnt lgkmcnt(0)")
            e("s_sub_u32 s%d, s%d, s%d" % (s.t1, s.stp, s.t2))
            e("s_cmp_lt_u32 s%d, 4000" % s.t1)
            e("s_cbranch_scc1 L_spin2")
    if STAMPS:
        stamp(6)
        e("s_waitcnt vmcnt(0)")
        stamp(7)
        stamp(61, True)
        e("s_getreg_b32 s%d, hwreg(HW_REG_XCC_ID)" % s.stp)
        e("v_writelane_b32 v%d, s%d, 62" % (v.st, s.stp))
        e("s_lshl_b32 s%d, s2, 3" % s.t0)
        e("s_add_u32 s%d, s%d, s%d" % (s.t0, s.t0, s.wave))
        e("s_lshl_b32 s%d, s%d, 8" % (s.t0, s.t0))
        e("v_lshlrev_b32 v%d, 2, v%d" % (v.t0, v.lane))
        e("v_add_u32 v%d, s%d, v%d" % (v.t0, s.t0, v.t0))
        if OPT.get("dbg"):
            e("v_readlane_b32 s%d, v%d, 0" % (s.t0, v.st))
            e("v_readlane_b32 s%d, v%d, 61" % (s.t1, v.st))
            e("v_readlane_b32 s%d, v%d, 1" % (s.t2, v.st))
            e("s_not_b32 s%d, s%d" % (s.t3, s.t0))
            e("v_cmp_ne_u32 vcc, 0, v%d" % v.st)
            e("v_subrev_u32 v%d, s%d, v%d" % (v.t1, s.t2, v.st))
            e("s_nop 1")
            e("v_cndmask_b32 v%d, 0, v%d, vcc" % (v.t1, v.t1))
            e("v_writelane_b32 v%d, s%d, 0" % (v.t1, s.t3))
            e("v_writelane_b32 v%d, s%d, 1" % (v.t1, s.t1))
            e("v_writelane_b32 v%d, s%d, 15" % (v.t1, s.t0))
            e("v_lshlrev_b32 v%d, 2, v%d" % (v.t0, v.lane))
            e("s_cmp_lt_u32 s%d, 4" % s.wave)
            e("s_cselect_b32 s%d, 0xffff, 0x80ff" % s.t0 if False else "s_mov_b32 s%d, 0x80ff" % s.t0)
            e("s_cselect_b32 exec_lo, 0xffff, s%d" % s.t0)
            e("s_mov_b32 exec_hi, 0")
            e("global_atomic_umax v%d, v%d, %s" % (v.t0, v.t1, sr(s.ws, 2)))
        else:
            e("global_store_dword v%d, v%d, %s" % (v.t0, v.st, sr(s.ws, 2)))
    lab("L_end")
    e("s_endpgm")
    for blk in ool:
        emit(blk)
    lab("L_sync")
    e("s_setprio %s" % OPT.get("sprio", "0"))
    e("s_min_u32 s%d, s%d, s%d" % (s.t2, s.need, s.n))
    e("s_cmp_eq_u32 s%d, 0x20000" % s.stepb)
    e("s_cselect_b32 s%d, %s, %s" % (s.t3, OPT.get("lookd", "6"), OPT.get("look", "2")))
    e("s_add_u32 s%d, s%d, s%d" % (s.t3, s.t2, s.t3))
    e("s_min_u32 s%d, s%d, s%d" % (s.t3, s.t3, s.n))
    lab("L_svc")
    e("ds_read_b32 v%d, v%d" % (v.t1, v.pra))
    e(RDYR)
    e("s_sub_i32 s%d, s%d, 5" % (s.t1, s.iss))
    e("s_cmp_gt_u32 s%d, s%d" % (s.iss, s.t3))
    e("s_waitcnt lgkmcnt(0)")
    e("s_cbranch_scc0 L_svc1")
    e("v_cmp_ge_u32 vcc, s%d, v%d" % (s.t2, v.rdy))
    e("s_cbranch_vccz L_svcx")
    e("s_cmp_gt_u32 s%d, s%d" % (s.iss, s.n))
    e("s_cbranch_scc1 L_svcs")
    lab("L_svc1")
    e("v_cmp_gt_i32 vcc, s%d, v%d" % (s.t1, v.t1))
    e("s_bitcmp1_b32 s%d, 0" % s.iss)
    e("s_cbranch_scc1 L_svcB")
    e("s_cmp_lt_u32 s%d, 8" % s.iss)
    e("s_cselect_b32 s%d, -1, s%d" % (s.t1, N + 1))
    e("s_and_b32 s%d, s%d, vcc_lo" % (s.t1, s.t1))
    e("s_and_b32 s%d, s%d, 0xff" % (s.t1, s.t1))
    e("s_cbranch_scc1 L_svc2")
    e("s_add_u32 s%d, s%d, 1" % (s.iss, s.iss))
    emit(svc_cap())
    emit(chunk(0))
    e("s_branch L_svc")
    lab("L_svcB")
    e("s_and_b32 s%d, s%d, 0xff" % (s.t1, N + 3))
    e("s_cmp_gt_u32 s%d, s%d" % (s.iss, s.t1))
    e("s_cbranch_scc1 L_svcF")
    e("s_cbranch_vccnz L_svc2")
    emit(svc_cap())
    emit(chunk(1, flag=False))
    lab("L_svcF")
    e("s_add_u32 s%d, s%d, 1" % (s.iss, s.iss))
    emit(FLAG + STEP_ADV)
    e("s_branch L_svc")
    lab("L_svc2")
    e("v_cmp_ge_u32 vcc, s%d, v%d" % (s.t2, v.rdy))
    e("s_cbranch_vccz L_svcx")
    lab("L_svcs")
    emit(spin(OPT.get("slp", "2")))
    e("s_branch L_svc")
    lab("L_svcx")
    e("s_setprio %s" % OPT.get("hprio", "3"))
    SRET_AT = len(out)
    lab("L_htail")
    e("s_mov_b32 s%d, s%d" % (s.need, s.n))
    e("s_bitcmp0_b32 s%d, 24" % (Fa + 2))
    e("s_cbranch_scc1 L_htail2")
    emit(sync_call("L_tail2"))
    lab("L_htail2")
    for i in range(8):
        e(pv(i))
    lab("L_hdone")
    e("s_mov_b32 s%d, s%d" % (s.need, s.n))
    emit(sync_call())
    e("s_sub_u32 s%d, s%d, 1" % (s.t2, s.n))
    e("s_bfe_u32 s%d, s%d, 0x40018" % (s.n, Fa + 2))
    e("s_cbranch_scc0 L_fin")
    e("s_setprio %s" % OPT.get("eprio", "0"))
    e("s_branch L_pe1")
    lab("L_pe0")
    emit(spin(OPT.get("slp", "2")))
    lab("L_pe1")
    e("ds_read_b32 v%d, v%d" % (v.t1, v.pra))
    e("s_waitcnt lgkmcnt(0)")
    e("v_cmp_gt_u32 vcc, s%d, v%d" % (s.t2, v.t1))
    e("s_cbranch_vccnz L_pe0")
    stamp(5)
    l16, l8, xa, cnt = v.ka0, v.ka0r, v.var, v.var + 1
    emit(lsum())
    e("v_lshlrev_b32 v%d, 4, v%d" % (l16, L))
    e("v_lshlrev_b32 v%d, 3, v%d" % (l8, L))
    e("s_lshl_b32 s%d, s%d, 9" % (s.t0, s.wave))
    e("s_add_u32 s%d, s%d, %d" % (s.t0, s.t0, MLBASE - 2048))
    e("v_add_u32 v%d, s%d, v%d" % (xa, s.t0, l8))
    e("ds_write_b64 v%d, %s" % (xa, vr(v.nmc, 2)))
    e("s_cmp_eq_u32 s%d, 2" % s.n)
    e("s_cbranch_scc1 L_sd2")
    for j in (1, 2, 3):
        if j == 2:
            lab("L_sd2")
        e("s_and_b32 s%d, s%d, 0xffffff" % (s.t0, Fa + 4 + j))
        e("v_add_u32 v%d, s%d, v%d" % (xa, s.t0, l16))
        for k in range(4):
            e("ds_write_b128 v%d, %s offset:%d" % (xa, vr(v.O + 16 * j + 4 * k, 4), k * 1024))
    e("s_lshr_b32 s%d, s%d, 30" % (s.t0, Fa + 2))
    e("s_lshl_b32 s%d, s%d, 2" % (s.t0, s.t0))
    e("s_add_u32 s%d, s%d, %d" % (s.t0, s.t0, CNTB))
    e("v_mov_b32 v%d, s%d" % (cnt, s.t0))
    e("v_mov_b32 v%d, 1" % v.t3)
    e("s_mov_b64 exec, 1")
    e("ds_add_u32 v%d, v%d" % (cnt, v.t3))
    e("s_mov_b64 exec, -1")
    emit(st_addr())
    e("v_add_u32 v%d, s%d, v%d" % (xa, s.reg, l16))
    for j in range(3):
        e("s_lshr_b32 s%d, s%d, 24" % (s.t0, Fa + 5 + j))
        e("s_lshl_b32 s%d, s%d, 9" % (s.t0, s.t0))
        e("s_add_u32 s%d, s%d, %d" % (s.t0, s.t0, MLBASE))
        e("v_add_u32 v%d, s%d, v%d" % (v.P + j, s.t0, l8))
    e("s_branch L_poll1")
    lab("L_poll")
    emit(spin())
    lab("L_poll1")
    e("ds_read_b32 v%d, v%d" % (v.t3, cnt))
    e("s_waitcnt lgkmcnt(0)")
    e("v_cmp_ne_u32 vcc, s%d, v%d" % (s.n, v.t3))
    e("s_cbranch_vccnz L_poll")
    stamp(4)
    for j in range(3):
        e("ds_read_b64 %s, v%d" % (vr(v.X + 2 * j, 2), v.P + j))
    for k in range(12):
        e("ds_read_b128 %s, v%d offset:%d" % (vr(v.KF + 16 + 4 * k, 4), xa, k * 1024))
    RX = v.KF + 16
    f0, f1, f2, f3 = v.X + 8, v.X + 9, v.X + 10, v.X + 11
    e("s_bfe_u32 s%d, s%d, 0x2001c" % (s.col, Fa + 2))
    e("s_lshl_b32 s%d, s%d, 6" % (s.col, s.col))
    e("s_add_u32 s%d, s%d, 0x8000" % (s.col + 1, s.col))
    e("s_add_u32 s%d, s%d, 0x10000" % (s.col + 2, s.col))
    e("s_add_u32 s%d, s%d, 0x18000" % (s.t1, s.col))
    e("s_waitcnt lgkmcnt(12)")
    e("v_min3_f32 v%d, v%d, v%d, v%d" % (v.t3, v.nmc, v.X, v.X + 2))
    e("v_min_f32 v%d, v%d, v%d" % (v.t3, v.t3, v.X + 4))
    e("v_sub_f32 v%d, v%d, v%d" % (f0, v.t3, v.nmc))
    for j, f in enumerate((f1, f2, f3)):
        e("v_sub_f32 v%d, v%d, v%d" % (f, v.t3, v.X + 2 * j))
    for f in (f0, f1, f2, f3):
        e("v_exp_f32 v%d, v%d" % (f, f))
    e("v_mul_f32 v%d, v%d, v%d" % (v.l, v.l, f0))
    e("v_fmac_f32 v%d, v%d, v%d" % (v.l, v.X + 1, f1))
    e("s_cmp_eq_u32 s%d, 2" % s.n)
    e("s_cbranch_scc1 L_mg2")
    e("v_fmac_f32 v%d, v%d, v%d" % (v.l, v.X + 3, f2))
    e("v_fmac_f32 v%d, v%d, v%d" % (v.l, v.X + 5, f3))
    e("v_rcp_f32 v%d, v%d" % (v.t3, v.l))
    e("v_and_b32 v%d, 4, v%d" % (v.t0, L))
    e("v_lshl_add_u32 v%d, v%d, 28, v%d" % (oo, v.t0, oo))
    for f in (f0, f1, f2, f3):
        e("v_mul_f32 v%d, v%d, v%d" % (f, f, v.t3))
    for i in range(16):
        e("v_mul_f32 v%d, v%d, v%d" % (v.O + i, v.O + i, f0))
    for j, f in enumerate((f1, f2, f3)):
        e("s_waitcnt lgkmcnt(%d)" % (8 - 4 * j))
        for i in range(16):
            e("v_fmac_f32 v%d, v%d, v%d" % (v.O + i, RX + 16 * j + i, f))
    e("s_branch L_mg3")
    lab("L_mg2")
    e("v_rcp_f32 v%d, v%d" % (v.t3, v.l))
    e("s_nop 0")
    for f in (f0, f1):
        e("v_mul_f32 v%d, v%d, v%d" % (f, f, v.t3))
    for i in range(32):
        e("v_mul_f32 v%d, v%d, v%d" % (v.O + i, v.O + i, f0))
    e("s_waitcnt lgkmcnt(0)")
    for i in range(32):
        e("v_fmac_f32 v%d, v%d, v%d" % (v.O + i, RX + i, f1))
    emit(pack_q(1, False))
    lab("L_mg3")
    emit(pack_q(0, False) + rd_half(0))
    for k in range(4):
        emit(["s_waitcnt lgkmcnt(%d)" % (3 - k)] + st_one(0, k))
    e("s_branch L_fin")
    lab("L_resc")
    e("v_max3_f32 v%d, v%d, v%d, v%d" % (v.t0, v.X, v.X + 1, v.X + 2))
    for r in range(3, 15, 2):
        e("v_max3_f32 v%d, v%d, v%d, v%d" % (v.t0, v.t0, v.X + r, v.X + r + 1))
    e("v_max3_f32 v%d, v%d, v%d, 0" % (v.t0, v.t0, v.X + 15))
    e("v_mov_b32 v%d, v%d" % (v.t1, v.t0))
    e("s_nop 1")
    e("v_permlane32_swap_b32 v%d, v%d" % (v.t0, v.t1))
    e("s_nop 1")
    e("v_max_f32 v%d, v%d, v%d" % (v.t0, v.t0, v.t1))
    e("v_exp_f32 v%d, -v%d" % (v.t1, v.t0))
    e("v_sub_f32 v%d, v%d, v%d" % (v.nmc, v.nmc, v.t0))
    for r in range(16):
        e("v_sub_f32 v%d, v%d, v%d" % (v.X + r, v.X + r, v.t0))
    e("v_mul_f32 v%d, v%d, v%d" % (v.l, v.l, v.t1))
    for i in range(64):
        e("v_mul_f32 v%d, v%d, v%d" % (v.O + i, v.O + i, v.t1))
    emit(soft_half_plain(0))
    emit(soft_half_plain(1))
    for k, r in enumerate(rets[:-1]):
        e("s_cmp_eq_u32 s%d, %d" % (s.ret, k))
        e("s_cbranch_scc1 %s" % r)
    e("s_branch %s" % rets[-1])
    rl_ = []
    order = [2, 1, 0, 3, 4]
    assert len(srets) == len(order)
    for k in order[:-1]:
        rl_ += ["    s_cmp_eq_u32 s%d, %d" % (s.sret, k), "    s_cbranch_scc1 %s" % srets[k]]
    rl_ += ["    s_branch %s" % srets[order[-1]]]
    out[SRET_AT:SRET_AT] = rl_
    out.append(".p2align 6")
    out.append(".type L_near,@object")
    lab("L_near")
    for ent in near:
        out.append("    .long " + ", ".join("0x%x" % x for x in ent))
    lab("L_far")
    for ent in far:
        out.append("    .long " + ", ".join("0x%x" % x for x in ent))
    lab("L_cnt")
    out.append("    .long " + ", ".join(str(i) for i in range(32)))
    out.append(".size L_near, .-L_near")
    lab("L_codeend")
    out.append("    .fill 512, 4, 0xbf800000")
    out.append('.section .rodata,"a"')
    out.append(".p2align 6")
    out.append(".amdhsa_kernel " + K)
    out.append("  .amdhsa_next_free_vgpr %d" % NV)
    out.append("  .amdhsa_next_free_sgpr %d" % NS)
    out.append("  .amdhsa_accum_offset %d" % NV)
    out.append("  .amdhsa_group_segment_fixed_size 0")
    out.append("  .amdhsa_kernarg_size 56")
    out.append("  .amdhsa_user_sgpr_count 2")
    out.append("  .amdhsa_user_sgpr_kernarg_segment_ptr 1")
    out.append("  .amdhsa_system_sgpr_workgroup_id_x 1")
    out.append(".end_amdhsa_kernel")
    txt = "\n".join(out) + "\n"
    txt = txt.replace("PFSTRIDE", OPT.get("pf", "32"))
    import subprocess, tempfile, os
    tmp = tempfile.mkdtemp()
    open(tmp + "/a.s", "w").write(txt.replace("offset:L_near-L_pc", "offset:0x100").replace("offset:L_far-L_pc", "offset:0x100"))
    subprocess.run(["clang", "-x", "assembler", "-target", "amdgcn-amd-amdhsa", "-mcpu=gfx950", "-c", tmp + "/a.s", "-o", tmp + "/a.o"], check=True)
    sy = {}
    for ln in subprocess.run(["llvm-objdump", "-t", tmp + "/a.o"], capture_output=True, text=True).stdout.splitlines():
        p = ln.split()
        if len(p) >= 5 and p[-1].startswith("L_"):
            sy[p[-1]] = int(p[0], 16)
    assert sy["L_codeend"] - sy["L_pc"] <= 512 * int(OPT.get("pf", "32")) + 128 or STAMPS or SPIN, hex(sy["L_codeend"])
    assert sy["L_codeend"] + 2048 - sy["L_pc"] >= 512 * int(OPT.get("pf", "32"))
    for t in ("L_near", "L_far"):
        txt = txt.replace("offset:%s-L_pc" % t, "offset:0x%x" % (sy[t] - sy["L_pc"]))
        txt = txt.replace(t + ":\n", t + ":\n.if (%s-L_pc) != 0x%x\n.error \"table offset\"\n.endif\n" % (t, sy[t] - sy["L_pc"])) if False else txt
    return txt


if __name__ == "__main__":
    args = [a for a in sys.argv[1:] if a.endswith(".s")]
    path = args[0] if args else "cdna_kernels/%s.s" % NAME
    open(path, "w").write(gen())
    print("wrote", path)
```

```python
import sys, struct, math

NAME = "standalone__varlen_attn_packed__ragged"
CU = [0, 289, 520, 939, 1289, 1402, 1666, 1973, 2275]
LEN = [CU[i + 1] - CU[i] for i in range(8)]
T_TOT = 2275
ROWB = 4096
TENSOR_BYTES = T_TOT * ROWB

OPT = {}
for a in sys.argv[1:]:
    if a.startswith("--"):
        k, _, val = a[2:].partition("=")
        OPT[k] = val if val else "1"
STAMPS = "stamps" in OPT or "lite" in OPT
LITE = "lite" in OPT
LDF_Q = OPT.get("ldq", "none").replace("+", " ").replace("none", "")
LDF_K = OPT.get("ldk", "none").replace("+", " ").replace("none", "")
STF = OPT.get("st", "sc1").replace("+", " ").replace("none", "")
FLY = int(OPT.get("fly", "4"))

HEADER = """; Kernarg layout for this problem (56 bytes, ptrs only, base s[0:1]):
;   offset   0: d_in[0] q  shape=(2275, 16, 128) dtype=bfloat16 strides=(4096, 256, 2) contiguous=True
;   offset   8: d_in[1] k  shape=(2275, 16, 128) dtype=bfloat16 strides=(4096, 256, 2) contiguous=True
;   offset  16: d_in[2] v  shape=(2275, 16, 128) dtype=bfloat16 strides=(4096, 256, 2) contiguous=True
;   offset  24: d_in[3] cu  shape=(9,) dtype=int32 strides=(4,) contiguous=True
;   offset  32: d_out     shape=(2275, 16, 128) dtype=bfloat16 (2 bytes/elem)
"""


def f2u(x):
    return struct.unpack("<I", struct.pack("<f", x))[0]


def cdiv(a, b):
    return (a + b - 1) // b


LDS_TOTAL = 163840
QBASE = 98304
XTRA = 131072
MLBASE = XTRA + 16384
PRGB = XTRA + 7 * 4096 + 2048
RDYB = XTRA + 6 * 4096 + 3072
CNTB = XTRA + 6 * 4096 + 2048
BIG = 0x4000

ROLES = [
    ("dual", (1, 6, 2), (4, 0, 4)),
    (5, 0, 6),
    (3, 0, 5), (3, 5, 5),
    ("dual", (3, 10, 1), (5, 6, 3)),
    (1, 0, 6),
    (6, 0, 5), (6, 5, 5),
    (7, 0, 5), (7, 5, 5), (0, 0, 5), (0, 5, 5),
    (2, 0, 4), (2, 4, 4), (2, 8, 3), (2, 11, 3),
]
QL = int(OPT.get("ql", "4"))
QLC = int(OPT.get("qlc", "3"))
QE = int(OPT.get("qe", "0"))


def nrec(rows):
    return (rows - 1) * ROWB + 256 if rows > 0 else 0


def build_tables():
    near, far, desc = [], [], []
    for ri, role in enumerate(ROLES):
        W = [None] * 8
        groups = []
        if role[0] == "dual":
            (sa, ta, na), (sb, tb, nb) = role[1], role[2]
            rowA, lenA, rowB, lenB, step = CU[sa], LEN[sa], CU[sb], LEN[sb], 32
            n_it = max(cdiv(lenA, 32), cdiv(lenB, 32))
            tiles = [(sa, ta + i, 0) for i in range(na)] + [(sb, tb + i, 1) for i in range(nb)]
            nq = len(tiles)
            for i in range(4):
                sq, tl, st = tiles[i]
                W[i] = dict(seq=sq, tile=tl, ql=i, type=2, stream=st, its=list(range(cdiv(LEN[sq], 32))), hastail=1)
            for i in range(4, nq):
                sq, tl, st = tiles[i]
                nb_ = cdiv(LEN[sq], 32)
                W[i + 2] = dict(seq=sq, tile=tl, ql=i, type=3, stream=st, its=list(range(nb_)), hastail=1,
                                G=1, reg=XTRA + 4096 * i)
        else:
            sa, t0, nq = role
            rowA, lenA, rowB, lenB, step = CU[sa], LEN[sa], CU[sa] + 32, LEN[sa] - 32, 64
            nkv = cdiv(lenA, 32)
            n_it = cdiv(nkv, 2)
            tiles = [(sa, t0 + i, 0) for i in range(nq)]
            for i in range(min(nq, 4)):
                W[i] = dict(seq=sa, tile=t0 + i, ql=i, type=1, stream=0, its=list(range(nkv)), hastail=1)
            nh = 4 // (nq - 4) if nq > 4 else 0
            for i in range(4, nq):
                ws = [4, 5, 6, 7] if nh == 4 else [4 + (i - 4), 6 + (i - 4)]
                for k, w in enumerate(ws):
                    blocks = [p for p in range(nkv) if p % nh == k]
                    W[w] = dict(seq=sa, tile=t0 + i, ql=i, type=3, stream=k % 2, its=[p // 2 for p in blocks],
                                hastail=int((nkv - 1) in blocks))
                groups.append(ws)
        qrows = [CU[sq] + 32 * tl for sq, tl, _ in tiles] + [0xfff] * (6 - nq)
        qrows = [r | (0x1000 if i < nq and tiles[i][2] else 0) for i, r in enumerate(qrows)]
        maskA = sum(1 << i for i, w in enumerate(W) if w and (w["type"] == 1 or w["stream"] == 0 or i < 4 and role[0] != "dual"))
        lastB = 2 * cdiv(lenB, step) + 1
        near.append([rowA * ROWB, nrec(lenA) | maskA, rowB * ROWB, nrec(lenB) | lastB, step * ROWB | (2 * n_it + 1),
                     qrows[0] | qrows[1] << 16, qrows[2] | qrows[3] << 16, qrows[4] | qrows[5] << 16])
        areas = [((n_it + 1) % 4) * 32768, ((n_it + 2) % 4) * 32768]
        recv = [areas[0], areas[0] + 12288, areas[1], areas[1] + 12288]
        for i in range(4):
            if W[i]:
                W[i]["reg"] = XTRA + 4096 * i
        for gi, g in enumerate(groups):
            G = len(g)
            for k, w in enumerate(g):
                W[w]["reg"] = recv[w - 4]
                W[w]["G"], W[w]["k"], W[w]["gi"] = G, k, gi
                if G == 4:
                    W[w]["send"] = [recv[g[(j + k) % 4] - 4] + (j - 1) * 4096 for j in (1, 2, 3)]
                    W[w]["src"] = [g[(k - j) % 4] for j in (1, 2, 3)]
                else:
                    o = g[1 - k]
                    W[w]["send"] = [0, recv[o - 4], recv[o - 4] + 4096]
                    W[w]["src"] = [o, o, o]
        for wi in range(8):
            w = W[wi]
            desc.append(w)
            if w is None:
                far.append([0] * 8)
                continue
            sq, its, typ, sc = w["seq"], w["its"], w["type"], w["stream"]
            tail = LEN[sq] % 32
            orow = CU[sq] + 32 * w["tile"]
            onr = min(32, CU[sq + 1] - orow)
            assert onr > 0 and tail > 0
            U = len(its) - 1
            a0, st = its[0], its[1] - its[0]
            assert all(its[i] == a0 + st * i for i in range(len(its))) and st <= 2 and a0 <= 1 and U >= 1
            if typ == 1:
                inc, prg0, prg1, need1, need2 = 1, 2, 4, 0, 2
            elif typ == 2:
                inc, prg0, prg1, need1, need2 = 2, 2, 4 + sc, sc, 4 + sc
            else:
                inc, prg0, prg1, need1, need2 = 2 * st, 2 * a0 + sc + 2, 2 * (a0 + 1) + sc + 2, max(QE if QE else 3, 2 * a0 + sc), 2 * (a0 + st) + sc
            needk = max(need1 + 2 * (typ == 2), 1)
            if typ != 3 and wi >= QL:
                need1 = max(need1, QLC)
            w.update(needk=needk)
            w.update(U=U, a0=a0, st=st, inc=inc, prg0=prg0, prg1=prg1, need1=need1, need2=need2, n_it=n_it)
            hm = 0
            if typ != 3:
                nlast = 2 * n_it + 1
                pub = prg0
                w["pubs"] = []
                for b in range(U):
                    val = prg1 + inc * (b + 1)
                    want = pub < nlast - 5 and (typ == 2 or b % 2 == 1 or OPT.get("puball"))
                    if groups and pub < nlast - 1 <= val:
                        want = True
                    if typ == 2 or U - 1 - b <= 1:
                        hm |= 1 << (U - 1 - b)
                    if want and OPT.get("nodpub"):
                        hm |= 0x10001 << (U - 1 - b)
                        pub = val
                        w["pubs"].append(b)
            G, k, gi = w.get("G", 0), w.get("k", 0), w.get("gi", 0)
            rot = k * (4 // G) if G > 1 else 0
            ent = [orow * ROWB, nrec(onr),
                   U | typ << 8 | inc << 12 | (tail if w["hastail"] else 32) << 16 | G << 24 | rot << 28 | gi << 30,
                   prg0 | prg1 << 8 | need1 << 16 | need2 << 24,
                   w["reg"] | w["ql"] << 20 | (1 - sc) << 24 | a0 << 25 | st << 26 | int(typ != 3 and tail <= 16 and not OPT.get("noshort")) << 31]
            if G > 1:
                ent += [w["send"][j] | ((w["src"][j] - 4) << 24) for j in range(3)]
            if typ != 3:
                ent += [hm, needk]
            ent += [0] * (8 - len(ent))
            far.append(ent)
    return near, far, desc


class R:
    pass


v = R()
v.kd0, v.kd1, v.vd0, v.vd1 = 1, 2, 3, 4
v.ka0r, v.ka1r = 5, 6
v.ka0, v.ka1 = 7, 8
v.rdya, v.rdy = 9, 10
v.lane = 11
v.nmc, v.l = 12, 13
v.ps = 14
v.t0, v.t1, v.t2, v.t3 = 15, 16, 17, 18
v.pf = 19
v.st = 20
v.prga, v.prg = 21, 22
v.fo = 23
v.pra = 0
v.Q = 24
v.O = 56
v.S = 120
v.B = 136
v.KF = 152
v.VF = 184
v.X = 216
v.E = 232
v.P = 240
v.var = 248
v.va = 252
NV = 256

s = R()
s.q, s.k, s.vv, s.cu, s.out = 4, 6, 8, 10, 12
s.near = 16
s.far = 24
s.kA, s.kB, s.vA, s.vB, s.sq, s.so = 32, 36, 40, 44, 48, 52
s.wave, s.hoff = 56, 57
s.n = 58
s.thr = 59
s.soff = 60
s.dslot = 61
s.U = 62
s.mu = 63
s.koff, s.voff = 64, 65
s.need, s.chk = 66, 67
s.t0, s.t1, s.t2, s.t3 = 68, 69, 70, 71
s.pc = 72
s.stp = 74
s.ws = 76
s.sti = 78
s.ret = 79
s.foff = 80
s.reg = 81
s.m1 = 82
s.lnd = 83
s.inc = 84
s.col = 85
s.astep = 88
s.sret = 89
s.guard = 90
s.iss = 91
s.d0, s.rdw = 92, 93
s.qea, s.qeb = 94, 95
s.stepb = 97
NS = 100

C_SCALE = (128 ** -0.5) * math.log2(math.e)
CL = "0x%x" % f2u(C_SCALE)
THRESH = 4096.0

out = []


def e(x):
    out.append("    " + x)


def lab(x):
    out.append(x + ":")


def vr(b, n):
    return "v[%d:%d]" % (b, b + n - 1)


def sr(b, n):
    return "s[%d:%d]" % (b, b + n - 1)


def emit(lst):
    for x in lst:
        if x is None:
            continue
        if x.endswith(":"):
            out.append(x)
        else:
            e(x)


def stamp_l(k=None, real=False):
    if not STAMPS or (LITE and k not in (7, 61)):
        return []
    if OPT.get("rt") and k is None and not real:
        return stamp_l(None, True) + stamp_l(None, "c")
    real = real is True
    r = ["%s s[%d:%d]" % ("s_memrealtime" if real else "s_memtime", s.stp, s.stp + 1), "s_waitcnt lgkmcnt(0)"]
    if k is None:
        r += ["s_mov_b32 s%d, m0" % (s.stp + 1), "s_mov_b32 m0, s%d" % s.sti, "s_nop 0",
              "v_writelane_b32 v%d, s%d, m0" % (v.st, s.stp),
              "s_add_u32 s%d, s%d, 1" % (s.sti, s.sti), "s_mov_b32 m0, s%d" % (s.stp + 1)]
    else:
        r += ["v_writelane_b32 v%d, s%d, %d" % (v.st, s.stp, k)]
    return r


def stamp(k=None, real=False):
    emit(stamp_l(k, real))


SPIN = OPT.get("spin")


def mark(name):
    if SPIN == name:
        e("s_memrealtime s[%d:%d]" % (s.stp, s.stp + 1))
        e("s_waitcnt lgkmcnt(0)")


def kread(t, dst, st=0):
    return "ds_read_b128 %s, v%d offset:%d" % (vr(dst + 4 * t, 4), v.ka1 if t % 2 else v.ka0,
                                               (t // 4) * 16384 + ((t // 2) % 2) * 256 + st * 1024)


def vread(i, st=0, one=False):
    t, bb, ss = i // 8, (i // 2) % 4, i % 2
    reg = v.VF + (t * 4 + bb) * 4 + ss * 2
    if one:
        return "ds_read_b64_tr_b16 %s, v%d offset:%d" % (vr(reg, 2), v.va, (4 * t + 2 * ss) * 4096 + st * 1024 + bb * 256)
    return "ds_read_b64_tr_b16 %s, v%d offset:%d" % (vr(reg, 2), v.va + bb, (4 * t + 2 * ss) * 4096 + st * 1024)


def ld(kv, col, half, so):
    srd = {("K", 0): s.kA, ("K", 1): s.kB, ("V", 0): s.vA, ("V", 1): s.vB}[(kv, col)]
    off = (2048 if kv == "V" else 0) + (1024 if col == 0 else 0)
    vo = {("K", 0): v.kd0, ("K", 1): v.kd1, ("V", 0): v.vd0, ("V", 1): v.vd1}[(kv, half)]
    return "buffer_load_dwordx4 v%d, %s, s%d offen %s%s lds" % (vo, sr(srd, 4), so, "offset:%d " % off if off else "", LDF_K)


STEP_ADV = ["s_add_u32 s%d, s%d, s%d" % (s.soff, s.soff, s.stepb),
            "s_add_u32 s%d, s%d, 0x8000" % (s.dslot, s.dslot),
            "s_and_b32 s%d, s%d, 0x1ffff" % (s.dslot, s.dslot)]


FLAG = ["s_mov_b32 m0, s%d" % s.rdw,
        "v_add_u32 v%d, 4, v%d" % (v.fo, v.fo),
        "global_load_lds_dword v%d, %s" % (v.fo, sr(s.pc, 2))]


def chunk(col, k_only=False, pace=0, flag=True):
    p = []
    if pace:
        p = ["s_sleep %d" % pace if pace < 16 else "s_nop %d" % (pace - 16)]
    r = []
    for half, m in ((0, "s_mov_b32 m0, s%d" % s.dslot), (1, "s_add_u32 m0, s%d, 0x4000" % s.dslot)):
        r += [m, "s_nop 0"]
        if not k_only:
            r += [ld("V", col, half, s.soff)] + p
        r += [ld("K", col, half, s.soff)] + p
    return r + (FLAG if flag else [])


def qk(t):
    return "v_mfma_f32_32x32x16_bf16 %s, %s, %s, %s" % (vr(v.S, 16), vr(v.KF + 4 * t, 4), vr(v.Q + 4 * t, 4), vr(v.S, 16))


def pv(i):
    t, bb = i // 4, i % 4
    return "v_mfma_f32_32x32x16_bf16 %s, %s, %s, %s" % (
        vr(v.O + 16 * bb, 16), vr(v.VF + (t * 4 + bb) * 4, 4), vr(v.P + 4 * t, 4), vr(v.O + 16 * bb, 16))


def F(r):
    return "v_fmamk_f32 v%d, v%d, %s, v%d" % (v.X + r, v.S + r, CL, v.nmc)


def ex(r):
    return "v_exp_f32 v%d, v%d" % (v.E + r % 8, v.X + r)


def add(r):
    if r == 0:
        return None
    if r == 1:
        return "v_add_f32 v%d, v%d, v%d" % (v.ps, v.E, v.E + 1)
    return "v_add_f32 v%d, v%d, v%d" % (v.ps, v.ps, v.E + r % 8)


def cvt(i):
    return "v_cvt_pk_bf16_f32 v%d, v%d, v%d" % (v.P + i, v.E + (2 * i) % 8, v.E + (2 * i + 1) % 8)


def soft_half_plain(h):
    r = [ex(8 * h + i) for i in range(8)]
    r += [x for x in (add(8 * h + i) for i in range(8)) if x]
    r += [cvt(4 * h + i) for i in range(4)]
    return r


CMP = "v_cmp_lt_f32 vcc, s%d, v%d" % (s.thr, v.ps)
LADD = "v_add_f32 v%d, v%d, v%d" % (v.l, v.l, v.ps)
PRGW = "ds_write_b32 v%d, v%d" % (v.prga, v.prg)
RDYR = "ds_read_b32 v%d, v%d" % (v.rdy, v.rdya)
PRGINC = "v_add_u32 v%d, s%d, v%d" % (v.prg, s.inc, v.prg)
NEEDINC = "s_add_u32 s%d, s%d, s%d" % (s.need, s.need, s.inc)
QK0 = "v_mfma_f32_32x32x16_bf16 %s, %s, %s, 0" % (vr(v.S, 16), vr(v.KF, 4), vr(v.Q, 4))
QK0M = "v_mfma_f32_32x32x16_bf16 %s, %s, %s, %s" % (vr(v.S, 16), vr(v.KF, 4), vr(v.Q, 4), vr(v.B, 16))
rets, srets = [], []


def newret():
    rets.append("L_ret%d" % len(rets))
    return len(rets) - 1


def kaddr():
    return ["v_add_u32 v%d, s%d, v%d" % (v.ka0, s.koff, v.ka0r),
            "v_add_u32 v%d, s%d, v%d" % (v.ka1, s.koff, v.ka1r)]


def vaddr():
    return ["v_add_u32 v%d, s%d, v%d" % (v.va + j, s.voff, v.var + j) for j in range(4)]


def adv(reg):
    return ["s_add_u32 s%d, s%d, s%d" % (reg, reg, s.astep), "s_and_b32 s%d, s%d, 0x1ffff" % (reg, reg)]


_sc = [0]


def svc_cap():
    r = ["s_waitcnt vmcnt(%s)" % OPT.get("cap", "10")]
    if OPT.get("cap0"):
        _sc[0] += 1
        r += ["s_and_b32 s%d, s%d, %s" % (s.t1, s.hoff, OPT.get("capm", "0x300")), "s_cbranch_scc1 L_sc%d" % _sc[0],
              "s_waitcnt vmcnt(%s)" % OPT["cap0"], "L_sc%d:" % _sc[0]]
    return r


def headmap():
    if OPT.get("gc"):
        tab = sum(int(OPT["gc"][2 * x + 1]) << (4 * x) for x in range(8))
        return ["s_lshl_b32 s%d, s2, 2" % s.t1,
                "s_lshr_b32 s%d, 0x%x, s%d" % (s.t1, tab, s.t1),
                "s_and_b32 s%d, s%d, 3" % (s.t1, s.t1),
                "s_bfe_u32 s%d, s2, 0x20003" % s.hoff,
                "s_lshl2_add_u32 s%d, s%d, s%d" % (s.t1, s.hoff, s.t1),
                "s_lshl_b32 s%d, s%d, 8" % (s.hoff, s.t1)]
    cm = OPT.get("cmap", "1302")
    if not cm:
        return ["s_and_b32 s%d, s2, 15" % s.t1, "s_lshl_b32 s%d, s%d, 8" % (s.hoff, s.t1)]
    tab = 0
    cls = [int(c) for c in cm]
    for i in range(16):
        x, hs = i & 7, i >> 3
        tab |= (cls[x >> 1] + 4 * (x & 1) + 8 * hs) << (4 * i)
    return ["s_lshl_b32 s%d, s2, 2" % s.t1,
            "s_lshr_b32 s%d, 0x%x, s%d" % (s.t1, tab & 0xffffffff, s.t1),
            "s_and_b32 s%d, s%d, 7" % (s.t1, s.t1),
            "s_and_b32 s%d, s2, 8" % s.hoff,
            "s_or_b32 s%d, s%d, s%d" % (s.t1, s.t1, s.hoff),
            "s_lshl_b32 s%d, s%d, 8" % (s.hoff, s.t1)]


def flag_init():
    return ["v_lshlrev_b32 v%d, 2, v0" % v.prga,
            "v_add_u32 v%d, %d, v%d" % (v.prga, PRGB - 4096, v.prga),
            "v_mov_b32 v%d, 0" % v.l,
            "ds_write_b32 v%d, v%d" % (v.prga, v.l),
            "ds_write_b32 v%d, v%d offset:4096" % (v.prga, v.l),
            "s_lshl_b32 s%d, s%d, 8" % (s.foff, s.foff),
            "s_lshr_b32 s%d, s%d, 1" % (s.t0, s.wave),
            "s_add_u32 s%d, s%d, s%d" % (s.foff, s.foff, s.t0)]


def far_load():
    r = []
    if STAMPS:
        r += ["v_mov_b32 v%d, 0" % v.st, "s_mov_b32 s%d, 8" % s.sti,
              "v_writelane_b32 v%d, s%d, 0" % (v.st, s.stp), "v_writelane_b32 v%d, s%d, 1" % (v.st, s.ws),
              "s_load_dwordx2 %s, s[0:1], 48" % sr(s.ws, 2)]
    return r + ["s_load_dwordx8 %s, %s, s%d offset:L_far-L_pc" % (sr(s.far, 8), sr(s.pc, 2), s.foff),
                "s_load_dwordx2 s[12:13], s[0:1], 32"]


def spin(n="1"):
    r = ["s_sleep %s" % n]
    if not OPT.get("nosafe"):
        r += ["s_sub_u32 s%d, s%d, 1" % (s.guard, s.guard), "s_cbranch_scc1 L_end"]
    return r


def sync_call(target=None):
    k = len(srets)
    srets.append(target or "L_sr%d" % k)
    return ["s_mov_b32 s%d, %d" % (s.sret, k), "s_branch L_sync"] + ([] if target else ["L_sr%d:" % k])


_pl = [0]


ool = []


def poll_rdy():
    _pl[0] += 1
    a, b = "L_pa%d" % _pl[0], "L_pb%d" % _pl[0]
    ool.append([a + ":"] + spin() + [RDYR, "s_waitcnt lgkmcnt(0)", "s_branch %s" % b])
    return ["s_min_u32 s%d, s%d, s%d" % (s.t2, s.need, s.n), b + ":",
            "v_cmp_ge_u32 vcc, s%d, v%d" % (s.t2, v.rdy), "s_cbranch_vccnz %s" % a]


def body(kind):
    odd, hlp = kind != "even", kind == "hlp"
    st = 0 if odd else 1
    V = lambda i: vread(i, st, not hlp)
    K = lambda t: kread(t, v.KF, st)
    W = lambda n: "s_waitcnt lgkmcnt(%d)" % n
    k = newret()
    q = [
        [NEEDINC, V(0), V(1), ex(8), add(7), cvt(3)],
        ["s_mov_b32 s%d, %d" % (s.ret, k), V(2), V(3), ex(9), ex(10)],
        [W(4), V(4), V(5), ex(11), add(8), add(9)],
        ["s_sub_u32 s%d, s%d, 1" % (s.U, s.U), V(6), V(7), ex(12), ex(13)],
        [None, V(8), V(9), ex(14), add(10), add(11)],
        [None, V(10), V(11), ex(15), add(12), add(13)],
        [W(4), V(12), V(13), add(14), add(15), CMP, cvt(4)],
        ["s_cbranch_vccnz L_resc", "L_ret%d:" % k, V(14), V(15), LADD, cvt(5), cvt(6), cvt(7)],
    ]
    p = [
        ["s_nop 0", K(0), K(1), K(2), F(0), F(1), F(2)],
        [None, K(3), ex(0), F(3), F(4), F(5)],
        [None, K(4), ex(1), F(6), F(7), F(8)],
        [W(5), K(5), ex(2), add(1), F(9), F(10)],
        [None, K(6), ex(3), add(2), cvt(0), F(11)],
        [None, K(7), ex(4), add(3), cvt(1), F(12)],
        [W(4), ex(5), ex(6), add(4), F(13)],
        [None, ex(7), add(5), add(6), cvt(2), F(14), F(15)],
    ]
    if odd:
        q[4][0], q[5][0] = adv(s.voff)
        p[4][0], p[5][0] = adv(s.koff)
        va, ka = vaddr(), kaddr()
        p[1].append(va[0])
        if hlp:
            p[3].append(va[1])
            p[4].append(va[2])
            p[5].append(va[3])
        p[6].append(ka[0])
        p[7].append(ka[1])
    if not hlp:
        p[0][0] = "s_min_u32 s%d, s%d, s%d" % (s.chk, s.need, s.n)
        p[1][0] = "s_bitcmp1_b32 s%d, s%d" % (s.far + 5, s.U)
        p[2][0] = "s_cselect_b32 s%d, -1, s%d" % (s.chk, s.chk)
        p[2][2:2] = [RDYR]
        p[6][0] = W(3)
        if odd and (not OPT.get("nodpub")):
            q[2].append("v_add_u32 v%d, 8, v%d" % (v.fo, v.fo))
            q[3][1:1] = ["global_load_lds_dword v%d, %s" % (v.fo, sr(s.pc, 2))]
        p[7][3:3] = ["v_cmp_ge_u32 vcc, s%d, v%d" % (s.chk, v.rdy)]
    else:
        q[1].append(PRGINC)
        q[7][4:4] = [PRGW]
        sc = sync_call()
        q[3][1:1] = [sc[0]]
        p[0][0:1] = stamp_l() + sc[1:] + stamp_l()
    lab("L_%s_m" % kind)
    e(QK0)
    lab("L_%s_a" % kind)
    emit(q[0])
    for t in range(1, 8):
        e(qk(t))
        emit(q[t])
    for i in range(8):
        e(pv(i))
        emit(p[i])
    if not hlp:
        stamp()


def gen():
    K = NAME + "_kernel"
    near, far, _ = build_tables()
    PACE = int(OPT.get("pace", "0"))
    out.append(HEADER + "; @launch grid=(256,1,1) block=(512,1,1) lds=%d" % LDS_TOTAL)
    out.append('.amdgcn_target "amdgcn-amd-amdhsa--gfx950"')
    out.append(".text")
    out.append(".globl " + K)
    out.append(".p2align 12")
    out.append(".p2align 8")
    out.append(".type %s,@function" % K)
    lab(K)
    L, N, Fa = v.lane, s.near, s.far
    if SPIN:
        e("s_memrealtime s[%d:%d]" % (s.ws, s.ws + 1))
        e("s_memrealtime s[%d:%d]" % (s.stp, s.stp + 1))
    if STAMPS:
        e("s_memrealtime s[%d:%d]" % (s.stp, s.stp + 1))
        e("s_memtime s[%d:%d]" % (s.ws, s.ws + 1))
    e("s_load_dwordx8 s[4:11], s[0:1], 0")
    e("s_getpc_b64 %s" % sr(s.pc, 2))
    lab("L_pc")
    if OPT.get("gc"):
        gm = sum((OPT["gc"][2 * x] == "L") << x for x in range(8)) * 0x01010101
        e("s_lshr_b32 s%d, s2, 5" % s.foff)
        e("s_bitcmp1_b32 0x%x, s2" % gm)
        e("s_cselect_b32 s%d, 8, 0" % s.t1)
        e("s_add_u32 s%d, s%d, s%d" % (s.foff, s.foff, s.t1))
    else:
        e("s_lshr_b32 s%d, s2, 4" % s.foff)
    e("s_lshl_b32 s%d, s%d, 5" % (s.t1, s.foff))
    e("s_load_dwordx8 %s, %s, s%d offset:L_near-L_pc" % (sr(s.near, 8), sr(s.pc, 2), s.t1))
    e("v_mul_u32_u24 v%d, PFSTRIDE, v0" % v.t0)
    e("v_readfirstlane_b32 s%d, v0" % s.wave)
    e("global_load_dword v%d, v%d, %s" % (v.pf, v.t0, sr(s.pc, 2)))
    e("s_cmp_ge_u32 s2, 256" if OPT.get("gc") else "s_cmp_ge_u32 s%d, 16" % s.foff)
    e("s_cbranch_scc1 L_end")
    e("s_bitcmp0_b32 s%d, 8" % s.wave)
    e("s_cbranch_scc1 L_mainpro")
    e("v_bfe_u32 v%d, v0, 5, 2" % v.t0)
    e("v_and_b32 v%d, 3, v0" % v.t1)
    e("v_xor_b32 v%d, v%d, v%d" % (v.t1, v.t1, v.t0))
    e("v_and_or_b32 v%d, v0, 12, v%d" % (v.t0, v.t0))
    e("v_lshlrev_b32 v%d, 12, v%d" % (v.t0, v.t0))
    e("v_lshl_add_u32 v%d, v%d, 4, v%d" % (v.t0, v.t1, v.t0))
    e("v_and_b32 v%d, 16, v0" % v.t1)
    e("v_lshl_add_u32 v%d, v%d, 2, v%d" % (v.t0, v.t1, v.t0))
    e("v_bfe_u32 v%d, v0, 7, 1" % v.t1)
    e("v_lshl_add_u32 v%d, v%d, 16, v%d" % (v.kd0, v.t1, v.t0))
    e("v_add_u32 v%d, 0x80, v%d" % (v.kd1, v.kd0))
    emit(headmap())
    e("s_lshl_b32 s%d, s%d, 6" % (s.dslot, s.wave))
    e("s_and_b32 s%d, s%d, 0x3000" % (s.dslot, s.dslot))
    e("s_mov_b32 s%d, 0x20000" % (s.sq + 3))
    e("s_mov_b32 s%d, s%d" % (s.kA + 3, s.sq + 3))
    e("s_mov_b32 s%d, 0" % s.soff)
    if OPT.get("thr", "0") != "0":
        e("s_lshr_b32 vcc_lo, %s, s%d" % (OPT.get("thr", "0"), s.t1))
        if OPT.get("thrr"):
            e("s_lshr_b32 s%d, %s, s%d" % (s.t0, OPT["thrr"], s.foff))
            e("s_and_b32 vcc_lo, vcc_lo, s%d" % s.t0)
        if OPT.get("thro"):
            e("s_lshr_b32 s%d, %s, s%d" % (s.t0, OPT["thro"], s.foff))
            e("s_or_b32 vcc_lo, vcc_lo, s%d" % s.t0)
        e("s_and_b32 vcc_lo, vcc_lo, 1")
        e("s_mov_b32 vcc_hi, 0")
    e("s_add_u32 s%d, s%d, %d" % (s.d0, s.dslot, QBASE))
    emit(flag_init())
    e("s_waitcnt lgkmcnt(0)")
    emit(far_load())
    mark("karg")
    THR = OPT.get("thr", "0")
    _th = [0]

    def throttle():
        if THR == "0":
            return []
        _th[0] += 1
        return ["s_cbranch_vccz L_th%d" % _th[0], "s_waitcnt vmcnt(%s)" % OPT.get("thn", "8"), "L_th%d:" % _th[0]]

    def qtile(i):
        w = N + 5 + i // 2
        r = ["s_bitcmp1_b32 s%d, %d" % (w, 12 + 16 * (i % 2)),
             "s_cselect_b32 s%d, s%d, s%d" % (s.sq + 2, s.qeb, s.qea),
             "s_bfe_u32 s%d, s%d, 0x%x" % (s.t0, w, 0xc0000 + 16 * (i % 2)),
             "s_add_u32 m0, s%d, %d" % (s.d0, (i // 4) * 32768 + (i % 4) * 1024),
             "s_lshl_b32 s%d, s%d, 12" % (s.t0, s.t0),
             "buffer_load_dwordx4 v%d, %s, s%d offen %s lds" % (v.kd0, sr(s.sq, 4), s.t0, LDF_Q),
             "s_add_u32 m0, m0, 0x4000", "s_nop 0",
             "buffer_load_dwordx4 v%d, %s, s%d offen %s lds" % (v.kd1, sr(s.sq, 4), s.t0, LDF_Q)]
        return r
    e("s_add_u32 s%d, s%d, s%d" % (s.qea, N + 0, N + 1))
    e("s_add_u32 s%d, s%d, s%d" % (s.qeb, N + 2, N + 3))
    e("s_add_u32 s%d, s%d, s%d" % (s.sq, s.q, s.hoff))
    e("s_addc_u32 s%d, s%d, 0" % (s.sq + 1, s.q + 1))
    emit(qtile(0))
    e("s_add_u32 s%d, s%d, s%d" % (N + 0, N + 0, s.hoff))
    e("s_add_u32 s%d, s%d, s%d" % (s.kA, s.k, N + 0))
    e("s_addc_u32 s%d, s%d, 0" % (s.kA + 1, s.k + 1))
    e("s_sub_u32 s%d, s%d, 1024" % (s.kA, s.kA))
    e("s_subb_u32 s%d, s%d, 0" % (s.kA + 1, s.kA + 1))
    e("s_add_u32 s%d, s%d, 1024" % (s.kA + 2, N + 1))
    emit(chunk(0, True, flag=False))
    for i in range(1, QL):
        emit((throttle() if i > 1 else []) + qtile(i))
    QLATE = sum((qtile(i) for i in range(QL, 4)), [])
    mark("iss")
    for b in (s.kB, s.vA, s.vB):
        e("s_mov_b32 s%d, s%d" % (b + 3, s.sq + 3))
    e("s_add_u32 s%d, s%d, s%d" % (N + 2, N + 2, s.hoff))
    e("s_add_u32 s%d, s%d, s%d" % (s.kB, s.k, N + 2))
    e("s_addc_u32 s%d, s%d, 0" % (s.kB + 1, s.k + 1))
    e("s_mov_b32 s%d, s%d" % (s.kB + 2, N + 3))
    e("s_and_b32 s%d, s%d, 0xfffff000" % (s.stepb, N + 4))
    e("s_lshr_b32 s%d, s%d, 4" % (s.rdw, s.dslot))
    e("s_add_u32 s%d, s%d, %d" % (s.rdw, s.rdw, RDYB))
    e("v_mov_b32 v%d, L_cnt-L_pc" % v.fo)
    for (srd, off, nr, d) in ((s.vA, N + 0, N + 1, 3072), (s.vB, N + 2, N + 3, 2048)):
        e("s_add_u32 s%d, s%d, %d" % (s.t0, s.stepb, d))
        e("s_add_u32 s%d, s%d, s%d" % (srd, s.vv, off))
        e("s_addc_u32 s%d, s%d, 0" % (srd + 1, s.vv + 1))
        e("s_sub_u32 s%d, s%d, s%d" % (srd, srd, s.t0))
        e("s_subb_u32 s%d, s%d, 0" % (srd + 1, srd + 1))
        e("s_add_u32 s%d, s%d, s%d" % (srd + 2, nr, s.t0))
    e("v_bfe_u32 v%d, v0, 2, 2" % v.t0)
    e("v_lshlrev_b32 v%d, 12, v%d" % (v.t0, v.t0))
    e("v_and_b32 v%d, 3, v0" % v.t1)
    e("v_lshl_add_u32 v%d, v%d, 4, v%d" % (v.t0, v.t1, v.t0))
    e("v_and_b32 v%d, 48, v0" % v.t1)
    e("v_lshl_add_u32 v%d, v%d, 2, v%d" % (v.t0, v.t1, v.t0))
    e("v_bfe_u32 v%d, v0, 6, 2" % v.t1)
    e("v_lshl_add_u32 v%d, v%d, 14, v%d" % (v.vd0, v.t1, v.t0))
    e("v_add_u32 v%d, 0x10000, v%d" % (v.vd1, v.vd0))
    e("s_setprio %s" % OPT.get("hprio", "3"))
    e("s_branch L_common")
    lab("L_mainpro")
    for b in (s.sq, s.kA, s.kB, s.vA, s.vB):
        e("s_mov_b64 %s, s[0:1]" % sr(b, 2))
        e("s_mov_b32 s%d, 0" % (b + 2))
        e("s_mov_b32 s%d, 0x20000" % (b + 3))
    for r in (v.kd0, v.kd1, v.vd0, v.vd1, v.fo):
        e("v_mov_b32 v%d, 0" % r)
    emit(headmap())
    emit(flag_init())
    e("s_waitcnt lgkmcnt(0)")
    emit(far_load())
    lab("L_common")
    e("s_lshr_b32 s%d, s%d, 6" % (s.wave, s.wave))
    e("v_and_b32 v%d, 63, v0" % L)
    e("v_and_b32 v%d, 7, v0" % v.t0)
    e("v_mul_u32_u24 v%d, 0x104, v%d" % (v.t0, v.t0))
    e("v_add_u32 v%d, %d, v%d" % (v.pra, PRGB, v.t0))
    e("v_add_u32 v%d, 0x1000, v%d" % (v.prga, v.prga))
    mark("prebar")
    e("s_barrier")
    if SPIN == "postbar":
        e("s_memrealtime s[%d:%d]" % (s.stp, s.stp + 1))
    e("s_cmp_lt_u32 s%d, 4" % s.wave)
    e("s_cbranch_scc1 L_common2")
    QH = qtile(4) + qtile(5)
    C2 = (QLATE if QLC == 2 else []) + (QH if QE == 2 else []) + chunk(0) + (QLATE if QLC == 3 else [])
    emit(FLAG + (QH if QE == 1 else []) + chunk(1, True) + STEP_ADV + (C2 if OPT.get("c2early") else []))
    lab("L_common2")
    mark("bar")
    e("v_bfe_u32 v%d, v%d, 4, 1" % (v.t0, L))
    e("v_lshlrev_b32 v%d, 13, v%d" % (v.t0, v.t0))
    e("v_bfe_u32 v%d, v%d, 1, 1" % (v.t1, L))
    e("v_lshl_add_u32 v%d, v%d, 12, v%d" % (v.t0, v.t1, v.t0))
    e("v_and_b32 v%d, 1, v%d" % (v.t1, L))
    e("v_lshl_add_u32 v%d, v%d, 9, v%d" % (v.t0, v.t1, v.t0))
    e("v_bfe_u32 v%d, v%d, 2, 2" % (v.t1, L))
    e("v_lshl_add_u32 v%d, v%d, 6, v%d" % (v.t0, v.t1, v.t0))
    e("v_lshrrev_b32 v%d, 5, v%d" % (v.t1, L))
    e("v_and_b32 v%d, 3, v%d" % (v.t2, L))
    e("v_xor_b32 v%d, v%d, v%d" % (v.t1, v.t1, v.t2))
    e("v_lshl_add_u32 v%d, v%d, 4, v%d" % (v.ka0r, v.t1, v.t0))
    e("v_xor_b32 v%d, 32, v%d" % (v.ka1r, v.ka0r))
    e("v_lshrrev_b32 v%d, 5, v%d" % (v.t0, L))
    e("v_lshlrev_b32 v%d, 12, v%d" % (v.t0, v.t0))
    e("v_bfe_u32 v%d, v%d, 2, 2" % (v.t1, L))
    e("v_lshl_add_u32 v%d, v%d, 6, v%d" % (v.t0, v.t1, v.t0))
    e("v_bfe_u32 v%d, v%d, 4, 1" % (v.t1, L))
    e("v_lshl_add_u32 v%d, v%d, 5, v%d" % (v.t0, v.t1, v.t0))
    e("v_lshl_add_u32 v%d, v%d, 3, v%d" % (v.t0, v.t2, v.t0))
    e("v_add_u32 v%d, 0x800, v%d" % (v.var, v.t0))
    e("s_mov_b32 s%d, 0x%x" % (s.thr, f2u(THRESH)))
    e("v_mul_u32_u24 v%d, 0x104, v%d" % (v.t1, v.t2))
    e("v_add_u32 v%d, %d, v%d" % (v.rdya, RDYB, v.t1))
    e("s_mov_b32 s%d, 0x8000" % s.guard)
    e("v_mov_b32 v%d, 0" % v.rdy)
    e("s_waitcnt lgkmcnt(0)")
    e("s_add_u32 s%d, s%d, s%d" % (s.t0, Fa + 0, s.hoff))
    e("s_add_u32 s%d, s%d, s%d" % (s.so, s.out, s.t0))
    e("s_addc_u32 s%d, s%d, 0" % (s.so + 1, s.out + 1))
    e("s_mov_b32 s%d, s%d" % (s.so + 2, Fa + 1))
    e("s_mov_b32 s%d, 0x20000" % (s.so + 3))
    e("s_and_b32 s%d, s%d, 0xff" % (s.n, N + 4))
    e("s_bfe_u32 s%d, s%d, 0x40008" % (s.t3, Fa + 2))
    e("s_cbranch_scc1 L_work")
    e("v_mov_b32 v%d, %d" % (v.prg, BIG))
    e(PRGW)
    e("s_cmp_lt_u32 s%d, 4" % s.wave)
    e("s_cbranch_scc1 L_fin")
    e("s_branch L_presig")
    lab("L_work")
    mark("work")
    for r in range(0, 64, 2):
        e("v_pk_mov_b32 %s, 0, 0" % vr(v.O + r, 2))
    e("s_and_b32 s%d, s%d, 0xff" % (s.U, Fa + 2))
    e("s_bfe_u32 s%d, s%d, 0x4000c" % (s.inc, Fa + 2))
    e("s_and_b32 s%d, s%d, 0xfffff" % (s.reg, Fa + 4))
    e("s_bfe_u32 s%d, s%d, 0x80010" % (s.t0, Fa + 2))
    e("s_sub_u32 s%d, s%d, 1" % (s.t0, s.t0))
    e("v_lshrrev_b32 v%d, 5, v%d" % (v.t0, L))
    e("v_lshlrev_b32 v%d, 2, v%d" % (v.t0, v.t0))
    e("v_sub_u32 v%d, s%d, v%d" % (v.t0, s.t0, v.t0))
    e("v_mov_b32 v%d, 0xff800000" % v.t1)
    for r in range(16):
        cst = 8 * (r // 4) + r % 4
        e("v_subrev_u32 v%d, %d, v%d" % (v.B + r, cst, v.t0))
        e("v_ashrrev_i32 v%d, 31, v%d" % (v.B + r, v.B + r))
        e("v_and_b32 v%d, v%d, v%d" % (v.B + r, v.t1, v.B + r))
    e("s_bfe_u32 s%d, s%d, 0x20014" % (s.t0, Fa + 4))
    e("s_lshl_b32 s%d, s%d, 10" % (s.t0, s.t0))
    e("s_bfe_u32 s%d, s%d, 0x10016" % (s.t1, Fa + 4))
    e("s_lshl_b32 s%d, s%d, 15" % (s.t1, s.t1))
    e("s_add_u32 s%d, s%d, s%d" % (s.t0, s.t0, s.t1))
    e("s_add_u32 s%d, s%d, %d" % (s.koff, s.t0, QBASE))
    e("v_add_u32 v%d, s%d, v%d" % (v.t2, s.koff, v.ka0r))
    e("v_add_u32 v%d, s%d, v%d" % (v.t3, s.koff, v.ka1r))
    e("s_cmp_lg_u32 s%d, 1" % s.t3)
    e("s_cselect_b32 s%d, 1, 0" % s.m1)
    e("s_bfe_u32 s%d, s%d, 0x2001a" % (s.t0, Fa + 4))
    e("s_lshl_b32 s%d, s%d, 15" % (s.astep, s.t0))
    e("s_bfe_u32 s%d, s%d, 0x10019" % (s.t2, Fa + 4))
    e("s_bfe_u32 s%d, s%d, 0x10018" % (s.t0, Fa + 4))
    e("s_lshl_b32 s%d, s%d, 10" % (s.t0, s.t0))
    e("s_mul_i32 s%d, s%d, s%d" % (s.t1, s.t0, s.m1))
    e("s_sub_u32 s%d, s%d, s%d" % (s.t0, s.t0, s.t1))
    e("s_lshl_b32 s%d, s%d, 15" % (s.voff, s.t2))
    e("s_add_u32 s%d, s%d, s%d" % (s.koff, s.voff, s.t0))
    e("s_add_u32 s%d, s%d, 0x8000" % (s.voff, s.voff))
    e("v_add_u32 v%d, s%d, v%d" % (v.ka0r, s.t1, v.ka0r))
    e("v_add_u32 v%d, s%d, v%d" % (v.ka1r, s.t1, v.ka1r))
    e("s_bfe_u32 s%d, s%d, 0x2001c" % (s.t0, Fa + 2))
    for j in (3, 2, 1, 0):
        e("s_add_u32 s%d, s%d, %d" % (s.col, s.t0, j))
        e("s_and_b32 s%d, s%d, 3" % (s.col, s.col))
        e("s_lshl_b32 s%d, s%d, 8" % (s.col, s.col))
        e("s_add_u32 s%d, s%d, s%d" % (s.col, s.col, s.t1))
        e("v_add_u32 v%d, s%d, v%d" % (v.var + j, s.col, v.var))
    emit(vaddr() + kaddr())
    e("s_and_b32 s%d, s%d, 0xff" % (s.t0, Fa + 3))
    e("v_mov_b32 v%d, s%d" % (v.prg, s.t0))
    e("s_bfe_u32 s%d, s%d, 0x80010" % (s.need, Fa + 3))
    e("s_cmp_lt_u32 s%d, 4" % s.wave)
    e("s_cbranch_scc1 L_sig0")
    e(PRGW)
    lab("L_presig")
    mark("presig")
    emit(([] if OPT.get("c2early") else C2) + (QH if QE == 0 else []) + chunk(1) + STEP_ADV)
    e("s_mov_b32 s%d, 4" % s.iss)
    mark("c3")
    stamp()
    e("s_cmp_eq_u32 s%d, 0" % s.t3)
    e("s_cbranch_scc1 L_hdone")
    emit(sync_call("L_head"))
    lab("L_sig0")
    mark("msetup")
    e("s_bfe_u32 s%d, s%d, 0x80008" % (s.t0, Fa + 3))
    e("s_sub_u32 s%d, s%d, s%d" % (s.t0, s.t0, s.m1))
    e("s_lshl_b32 s%d, s%d, 2" % (s.t0, s.t0))
    e("s_add_u32 s%d, s%d, L_cnt-L_pc-4" % (s.t0, s.t0))
    e("v_mov_b32 v%d, s%d" % (v.fo, s.t0))
    e("s_lshl_b32 s%d, s%d, 8" % (s.t0, s.wave))
    e("s_add_u32 m0, s%d, %d" % (s.t0, PRGB))
    stamp()
    emit(poll_rdy())
    mark("sig0")
    stamp()
    lab("L_head")
    qr = [kread(t, v.Q).replace("v%d " % v.ka0, "v%d " % v.t2).replace("v%d " % v.ka1, "v%d " % v.t3) for t in range(8)]
    kr = [kread(t, v.KF) for t in range(8)]
    for t in range(7):
        emit([qr[t], kr[t]])
    e("s_add_u32 s%d, s%d, s%d" % (s.t0, s.koff, s.astep))
    e("s_mul_i32 s%d, s%d, s%d" % (s.koff, s.t0, s.m1))
    e("s_waitcnt lgkmcnt(12)")
    e(QK0)
    emit([qr[7], kr[7], PRGW])
    for t in range(1, 8):
        e("s_waitcnt lgkmcnt(%d)" % (15 - 2 * t + (1 if t >= 2 else 0)))
        e(qk(t))
        if t == 1:
            e(RDYR)
            emit(kaddr())
            emit(adv(s.koff))
        if t == 2:
            e("v_and_b32 v%d, 31, v%d" % (v.t2, L))
            e("v_lshlrev_b32 v%d, 12, v%d" % (v.t2, v.t2))
            e("v_sub_u32 v%d, s%d, v%d" % (v.t2, Fa + 1, v.t2))
            e("v_ashrrev_i32 v%d, 31, v%d" % (v.t2, v.t2))
            e("v_and_b32 v%d, 0xff800000, v%d" % (v.t2, v.t2))
        if t == 3:
            e("s_bfe_u32 s%d, s%d, 0x80008" % (s.t0, Fa + 3))
            e("v_mov_b32 v%d, s%d" % (v.prg, s.t0))
            e("s_mov_b32 s%d, s%d" % (s.need, Fa + 6))
    e("s_cmp_lt_u32 s%d, 4" % s.wave)
    e("s_waitcnt lgkmcnt(0)")
    e("s_cbranch_scc0 L_head2")
    emit(poll_rdy())
    emit(kr)
    emit(kaddr())
    lab("L_head2")
    if OPT.get("lowh"):
        e("s_setprio 0")
    e("s_lshr_b32 s%d, s%d, 24" % (s.need, Fa + 3))
    e("s_nop 7")
    e("v_max3_f32 v%d, v%d, v%d, v%d" % (v.t0, v.S, v.S + 1, v.S + 2))
    e("v_max3_f32 v%d, v%d, v%d, v%d" % (v.t1, v.S + 3, v.S + 4, v.S + 5))
    for r in range(6, 14, 4):
        e("v_max3_f32 v%d, v%d, v%d, v%d" % (v.t0, v.t0, v.S + r, v.S + r + 1))
        e("v_max3_f32 v%d, v%d, v%d, v%d" % (v.t1, v.t1, v.S + r + 2, v.S + r + 3))
    e("v_max3_f32 v%d, v%d, v%d, v%d" % (v.t0, v.t0, v.S + 14, v.S + 15))
    e("v_max_f32 v%d, v%d, v%d" % (v.t0, v.t0, v.t1))
    e("v_mov_b32 v%d, v%d" % (v.t1, v.t0))
    e(RDYR)
    e("s_nop 0")
    e("v_permlane32_swap_b32 v%d, v%d" % (v.t0, v.t1))
    e("s_nop 1")
    e("v_max_f32 v%d, v%d, v%d" % (v.t0, v.t0, v.t1))
    e("v_fmamk_f32 v%d, v%d, 0x%x, v%d" % (v.nmc, v.t0, f2u(-C_SCALE), v.t2))
    for r in range(16):
        e(F(r))
    emit([ex(i) for i in range(8)] + [add(i) for i in range(1, 7)] + [cvt(0), cvt(1), cvt(2)])
    e("s_cmp_lt_u32 s%d, 4" % s.wave)
    e("s_waitcnt lgkmcnt(0)")
    e("s_cbranch_scc0 L_hlp_in")
    stamp()
    emit(poll_rdy())
    mark("loop")
    stamp()
    e("s_cmp_eq_u32 s%d, 1" % s.m1)
    e("s_cbranch_scc1 L_odd_m")
    out.append(".p2align %s" % OPT.get("al", "4"))
    for _ in range(int(OPT.get("sh", "0"))):
        e("s_nop 0")
    body("even")
    e("s_cbranch_vccnz L_hnd_even")
    body("odd")
    e("s_cbranch_vccz L_even_m")
    emit(poll_rdy())
    e("s_cmp_le_u32 s%d, 1" % s.U)
    e("s_cbranch_scc1 L_ho1")
    e("s_cmp_eq_u32 s%d, 0" % s.m1)
    e("s_cbranch_scc0 L_odd_m")
    e("s_branch L_even_m")
    lab("L_ho1")
    e("s_cmp_eq_u32 s%d, 0" % s.U)
    e("s_cbranch_scc1 L_tail0")
    e("s_cmp_eq_u32 s%d, 0" % s.m1)
    e(QK0M)
    e("s_cbranch_scc1 L_even_a")
    e("s_branch L_odd_a")
    lab("L_hnd_even")
    emit(poll_rdy())
    e("s_cmp_gt_u32 s%d, 1" % s.U)
    e("s_cbranch_scc1 L_odd_m")
    e("s_cmp_eq_u32 s%d, 0" % s.U)
    e("s_cbranch_scc1 L_tailm")
    e(QK0M)
    e("s_branch L_odd_a")
    lab("L_hlp_in")
    mark("hlpin")
    e(PRGW)
    stamp()
    emit(sync_call())
    stamp()
    for t in range(8):
        e(kread(t, v.KF))
    emit(kaddr())
    e("s_waitcnt lgkmcnt(4)")
    e("s_branch L_hnd_hlp")
    if OPT.get("alh"):
        out.append(".p2align %s" % OPT["alh"])
    for _ in range(int(OPT.get("shh", "0"))):
        e("s_nop 0")
    body("hlp")
    lab("L_hnd_hlp")
    e("s_cmp_gt_u32 s%d, 1" % s.U)
    e("s_cbranch_scc1 L_hlp_m")
    e("s_cmp_eq_u32 s%d, 0" % s.U)
    e("s_cbranch_scc1 L_tail")
    e(QK0M)
    e("s_branch L_hlp_a")
    lab("L_tail0")
    e("s_cmp_eq_u32 s%d, 1" % s.m1)
    e("s_cbranch_scc1 L_tailm")
    e("v_add_u32 v%d, 0x400, v%d" % (v.va, v.va))
    lab("L_tailm")
    e("s_bitcmp1_b32 s%d, 31" % (Fa + 4))
    e("s_cbranch_scc1 L_tails")
    for j in range(1, 4):
        e("v_add_u32 v%d, %d, v%d" % (v.va + j, 256 * j, v.va))
    tw, tr0, oo, rl = v.ka1, v.va, v.ka1r, v.X + 2

    def lsum():
        return ["v_mov_b32 v%d, v%d" % (v.t0, v.l), "s_nop 1",
                "v_permlane32_swap_b32 v%d, v%d" % (v.l, v.t0), "s_nop 1",
                "v_add_f32 v%d, v%d, v%d" % (v.l, v.l, v.t0)]

    def st_addr():
        r = ["v_and_b32 v%d, 31, v%d" % (v.t0, L),
             "v_lshrrev_b32 v%d, 5, v%d" % (v.t1, L),
             "v_lshlrev_b32 v%d, 3, v%d" % (v.t1, v.t1),
             "v_and_b32 v%d, 7, v%d" % (v.t2, L),
             "v_lshl_add_u32 v%d, v%d, 4, v%d" % (v.t1, v.t2, v.t1),
             "v_lshl_add_u32 v%d, v%d, 7, v%d" % (v.t0, v.t0, v.t1),
             "v_add_u32 v%d, s%d, v%d" % (tw, s.reg, v.t0)]
        r += ["v_xor_b32 v%d, %d, v%d" % (v.E + c, c * 16, tw) for c in range(8)]
        r += ["v_lshrrev_b32 v%d, 3, v%d" % (v.t0, L),
              "v_xor_b32 v%d, v%d, v%d" % (v.t1, v.t2, v.t0),
              "v_lshlrev_b32 v%d, 4, v%d" % (v.t1, v.t1),
              "v_lshl_add_u32 v%d, v%d, 7, v%d" % (v.t1, v.t0, v.t1),
              "v_add_u32 v%d, s%d, v%d" % (tr0, s.reg, v.t1),
              "v_lshlrev_b32 v%d, 12, v%d" % (v.t0, v.t0),
              "v_lshl_add_u32 v%d, v%d, 4, v%d" % (oo, v.t2, v.t0)]
        return r

    def pack_q(bb, norm=True, pk=True):
        r = []
        for g in range(4):
            c = 4 * bb + g
            o = v.O + 4 * c
            d = v.S + 2 * c
            if norm and not pk:
                r += ["v_mul_f32 v%d, v%d, v%d" % (o + i, o + i, rl) for i in range(4)]
            elif norm:
                r += ["v_pk_mul_f32 %s, %s, %s op_sel_hi:[1,0]" % (vr(o + i, 2), vr(o + i, 2), vr(rl, 2)) for i in (0, 2)]
            r += ["v_cvt_pk_bf16_f32 v%d, v%d, v%d" % (d, o, o + 1),
                  "v_cvt_pk_bf16_f32 v%d, v%d, v%d" % (d + 1, o + 2, o + 3),
                  "ds_write_b64 v%d, %s" % (v.E + c % 8, vr(d, 2))]
        return r

    def rd_half(hh):
        return ["ds_read_b128 %s, v%d offset:%d" % (vr(v.KF + 16 * hh + 4 * k, 4), tr0, k * 1024) for k in range(4)]

    def st_one(hh, k):
        return ["buffer_store_dwordx4 %s, v%d, %s, s%d offen offset:%d %s" % (
                    vr(v.KF + 16 * hh + 4 * k, 4), oo, sr(s.so, 4), s.col + k if k < 3 else s.t1, 128 * hh,
                    STF if hh == 0 else OPT.get("st2", OPT.get("st", "sc1")).replace("+", " ").replace("none", ""))]

    sa = st_addr()
    cols = ["s_mov_b32 s%d, 0" % s.col, "s_mov_b32 s%d, 0x8000" % (s.col + 1),
            "s_mov_b32 s%d, 0x10000" % (s.col + 2), "s_mov_b32 s%d, 0x18000" % s.t1]
    RCP = "v_rcp_f32 v%d, v%d" % (rl, v.l)
    lab("L_tail")
    mark("tail")
    if not OPT.get("nolowt"):
        e("s_setprio 0")
    e("v_mov_b32 v%d, %d" % (v.prg, BIG))
    k = newret()
    vord = [0, 1, 8, 9, 2, 3, 10, 11, 4, 5, 12, 13, 6, 7, 14, 15]
    for i in vord[:12]:
        e(vread(i))
    emit([ex(8), add(7), cvt(3)] + [ex(i) for i in range(9, 16)])
    e("s_cmp_lt_u32 s%d, 4" % s.wave)
    e("s_cbranch_scc0 L_t1")
    e("s_waitcnt vmcnt(0)")
    lab("L_t1")
    for i in vord[12:]:
        e(vread(i))
    e(PRGW)
    emit([add(i) for i in range(8, 16)] + [CMP, cvt(4), "s_mov_b32 s%d, %d" % (s.ret, k), "s_cbranch_vccnz L_resc",
                                           "L_ret%d:" % k, cvt(5), cvt(6), cvt(7), LADD])
    e("s_cmp_lt_u32 s%d, 4" % s.wave)
    e("s_waitcnt lgkmcnt(0)")
    e("s_cbranch_scc0 L_htail")
    lab("L_tail2")
    p0 = pack_q(0, pk=False)
    emit([pv(0)] + lsum() + [RCP])
    emit([pv(4), cols[0]] + sa[0:7])
    emit([pv(1), cols[1]] + sa[7:15])
    emit([pv(5), cols[2]] + sa[15:])
    emit([pv(2), cols[3]] + p0[0:7])
    emit([pv(6)] + p0[7:14])
    emit([pv(3)] + p0[14:21])
    emit([pv(7)] + p0[21:])
    lab("L_tail3")
    stamp(5)
    if OPT.get("stadj"):
        emit(pack_q(1) + rd_half(0) + pack_q(2) + pack_q(3) + rd_half(1))
        for k in range(4):
            emit(["s_waitcnt lgkmcnt(%d)" % (3 - k)] + st_one(0, k) + st_one(1, k))
    else:
        emit(pack_q(1) + rd_half(0))
        p2 = pack_q(2)
        emit(p2[:10] + ["s_waitcnt lgkmcnt(5)"] + st_one(0, 0) + p2[10:] + ["s_waitcnt lgkmcnt(4)"] + st_one(0, 1))
        p3 = pack_q(3)
        emit(p3[:10] + st_one(0, 2) + p3[10:] + st_one(0, 3) + rd_half(1))
        stamp(4)
        for k in range(4):
            emit(["s_waitcnt lgkmcnt(%d)" % (3 - k)] + st_one(1, k))
    k = newret()
    ool.append(["L_tails:"] + [vread(i, 0, True) for i in range(8)]
               + ["v_mov_b32 v%d, %d" % (v.prg, BIG), add(7), "s_waitcnt vmcnt(0)", PRGW, CMP, cvt(3), "s_mov_b32 s%d, %d" % (s.ret, k), "s_cbranch_vccnz L_resc",
                  "L_ret%d:" % k, LADD] + lsum() + [RCP, "s_waitcnt lgkmcnt(1)",
                  pv(0), cols[0]] + sa[0:7] + [pv(1), cols[1]] + sa[7:15] + [pv(2), cols[2]] + sa[15:]
               + [pv(3), cols[3]] + pack_q(0) + ["s_branch L_tail3"])
    lab("L_fin")
    if SPIN:
        mark("st")
        e("s_waitcnt vmcnt(0)")
        mark("end")
        if SPIN == "glob":
            e("s_load_dwordx2 s[98:99], s[0:1], 40")
            e("s_not_b32 s%d, s%d" % (s.t0, s.ws))
            e("v_mov_b32 v%d, s%d" % (v.t1, s.t0))
            e("v_mov_b32 v%d, 0" % v.t0)
            e("s_waitcnt lgkmcnt(0)")
            e("s_cmp_lg_u32 s%d, 0" % s.wave)
            e("s_cbranch_scc1 L_g1")
            e("s_mov_b64 exec, 1")
            e("global_atomic_umax v%d, v%d, s[98:99]" % (v.t0, v.t1))
            e("s_mov_b64 exec, -1")
            lab("L_g1")
        e("s_sub_u32 s%d, s%d, s%d" % (s.t0, s.stp, s.ws))
        e("s_mul_i32 s%d, s%d, %s" % (s.t0, s.t0, OPT.get("amp", "2")))
        if OPT.get("wsel"):
            e("s_lshr_b32 s%d, %s, s%d" % (s.t1, OPT["wsel"], s.wave))
            e("s_and_b32 s%d, s%d, 1" % (s.t1, s.t1))
            e("s_mul_i32 s%d, s%d, s%d" % (s.t0, s.t0, s.t1))
        if OPT.get("rmask"):
            e("s_and_b32 s%d, s2, 15" % s.t1 if OPT.get("hsel") else "s_lshr_b32 s%d, s2, 4" % s.t1)
            e("s_lshr_b32 s%d, %s, s%d" % (s.t1, OPT["rmask"], s.t1))
            e("s_and_b32 s%d, s%d, 1" % (s.t1, s.t1))
            e("s_mul_i32 s%d, s%d, s%d" % (s.t0, s.t0, s.t1))
        e("s_add_u32 s%d, s%d, 3000" % (s.t0, s.t0))
        lab("L_spin")
        e("s_sleep 2")
        e("s_memrealtime s[%d:%d]" % (s.stp, s.stp + 1))
        e("s_waitcnt lgkmcnt(0)")
        e("s_sub_u32 s%d, s%d, s%d" % (s.t1, s.stp, s.ws))
        e("s_cmp_lt_u32 s%d, s%d" % (s.t1, s.t0))
        e("s_cbranch_scc1 L_spin")
        if SPIN == "glob":
            e("global_load_dword v%d, v%d, s[98:99] sc0 sc1" % (v.t1, v.t0))
            e("s_waitcnt vmcnt(0)")
            e("v_readfirstlane_b32 s%d, v%d" % (s.t2, v.t1))
            e("s_not_b32 s%d, s%d" % (s.t2, s.t2))
            lab("L_spin2")
            e("s_sleep 2")
            e("s_memrealtime s[%d:%d]" % (s.stp, s.stp + 1))
            e("s_waitcnt lgkmcnt(0)")
            e("s_sub_u32 s%d, s%d, s%d" % (s.t1, s.stp, s.t2))
            e("s_cmp_lt_u32 s%d, 4000" % s.t1)
            e("s_cbranch_scc1 L_spin2")
    if STAMPS:
        stamp(6)
        e("s_waitcnt vmcnt(0)")
        stamp(7)
        stamp(61, True)
        e("s_getreg_b32 s%d, hwreg(HW_REG_XCC_ID)" % s.stp)
        e("v_writelane_b32 v%d, s%d, 62" % (v.st, s.stp))
        e("s_lshl_b32 s%d, s2, 3" % s.t0)
        e("s_add_u32 s%d, s%d, s%d" % (s.t0, s.t0, s.wave))
        e("s_lshl_b32 s%d, s%d, 8" % (s.t0, s.t0))
        e("v_lshlrev_b32 v%d, 2, v%d" % (v.t0, v.lane))
        e("v_add_u32 v%d, s%d, v%d" % (v.t0, s.t0, v.t0))
        if OPT.get("dbg"):
            e("v_readlane_b32 s%d, v%d, 0" % (s.t0, v.st))
            e("v_readlane_b32 s%d, v%d, 61" % (s.t1, v.st))
            e("v_readlane_b32 s%d, v%d, 1" % (s.t2, v.st))
            e("s_not_b32 s%d, s%d" % (s.t3, s.t0))
            e("v_cmp_ne_u32 vcc, 0, v%d" % v.st)
            e("v_subrev_u32 v%d, s%d, v%d" % (v.t1, s.t2, v.st))
            e("s_nop 1")
            e("v_cndmask_b32 v%d, 0, v%d, vcc" % (v.t1, v.t1))
            e("v_writelane_b32 v%d, s%d, 0" % (v.t1, s.t3))
            e("v_writelane_b32 v%d, s%d, 1" % (v.t1, s.t1))
            e("v_writelane_b32 v%d, s%d, 15" % (v.t1, s.t0))
            e("v_lshlrev_b32 v%d, 2, v%d" % (v.t0, v.lane))
            e("s_cmp_lt_u32 s%d, 4" % s.wave)
            e("s_cselect_b32 s%d, 0xffff, 0x80ff" % s.t0 if False else "s_mov_b32 s%d, 0x80ff" % s.t0)
            e("s_cselect_b32 exec_lo, 0xffff, s%d" % s.t0)
            e("s_mov_b32 exec_hi, 0")
            e("global_atomic_umax v%d, v%d, %s" % (v.t0, v.t1, sr(s.ws, 2)))
        else:
            e("global_store_dword v%d, v%d, %s" % (v.t0, v.st, sr(s.ws, 2)))
    lab("L_end")
    e("s_endpgm")
    for blk in ool:
        emit(blk)
    lab("L_sync")
    e("s_setprio %s" % OPT.get("sprio", "0"))
    e("s_min_u32 s%d, s%d, s%d" % (s.t2, s.need, s.n))
    e("s_cmp_eq_u32 s%d, 0x20000" % s.stepb)
    e("s_cselect_b32 s%d, %s, %s" % (s.t3, OPT.get("lookd", "6"), OPT.get("look", "2")))
    e("s_add_u32 s%d, s%d, s%d" % (s.t3, s.t2, s.t3))
    e("s_min_u32 s%d, s%d, s%d" % (s.t3, s.t3, s.n))
    lab("L_svc")
    e("ds_read_b32 v%d, v%d" % (v.t1, v.pra))
    e(RDYR)
    e("s_sub_i32 s%d, s%d, 5" % (s.t1, s.iss))
    e("s_cmp_gt_u32 s%d, s%d" % (s.iss, s.t3))
    e("s_waitcnt lgkmcnt(0)")
    e("s_cbranch_scc0 L_svc1")
    e("v_cmp_ge_u32 vcc, s%d, v%d" % (s.t2, v.rdy))
    e("s_cbranch_vccz L_svcx")
    e("s_cmp_gt_u32 s%d, s%d" % (s.iss, s.n))
    e("s_cbranch_scc1 L_svcs")
    lab("L_svc1")
    e("v_cmp_gt_i32 vcc, s%d, v%d" % (s.t1, v.t1))
    e("s_bitcmp1_b32 s%d, 0" % s.iss)
    e("s_cbranch_scc1 L_svcB")
    e("s_cmp_lt_u32 s%d, 8" % s.iss)
    e("s_cselect_b32 s%d, -1, s%d" % (s.t1, N + 1))
    e("s_and_b32 s%d, s%d, vcc_lo" % (s.t1, s.t1))
    e("s_and_b32 s%d, s%d, 0xff" % (s.t1, s.t1))
    e("s_cbranch_scc1 L_svc2")
    e("s_add_u32 s%d, s%d, 1" % (s.iss, s.iss))
    emit(svc_cap())
    emit(chunk(0))
    e("s_branch L_svc")
    lab("L_svcB")
    e("s_and_b32 s%d, s%d, 0xff" % (s.t1, N + 3))
    e("s_cmp_gt_u32 s%d, s%d" % (s.iss, s.t1))
    e("s_cbranch_scc1 L_svcF")
    e("s_cbranch_vccnz L_svc2")
    emit(svc_cap())
    emit(chunk(1, flag=False))
    lab("L_svcF")
    e("s_add_u32 s%d, s%d, 1" % (s.iss, s.iss))
    emit(FLAG + STEP_ADV)
    e("s_branch L_svc")
    lab("L_svc2")
    e("v_cmp_ge_u32 vcc, s%d, v%d" % (s.t2, v.rdy))
    e("s_cbranch_vccz L_svcx")
    lab("L_svcs")
    emit(spin(OPT.get("slp", "2")))
    e("s_branch L_svc")
    lab("L_svcx")
    e("s_setprio %s" % OPT.get("hprio", "3"))
    SRET_AT = len(out)
    lab("L_htail")
    e("s_mov_b32 s%d, s%d" % (s.need, s.n))
    e("s_bitcmp0_b32 s%d, 24" % (Fa + 2))
    e("s_cbranch_scc1 L_htail2")
    emit(sync_call("L_tail2"))
    lab("L_htail2")
    for i in range(8):
        e(pv(i))
    lab("L_hdone")
    e("s_mov_b32 s%d, s%d" % (s.need, s.n))
    emit(sync_call())
    e("s_sub_u32 s%d, s%d, 1" % (s.t2, s.n))
    e("s_bfe_u32 s%d, s%d, 0x40018" % (s.n, Fa + 2))
    e("s_cbranch_scc0 L_fin")
    e("s_setprio %s" % OPT.get("eprio", "0"))
    e("s_branch L_pe1")
    lab("L_pe0")
    emit(spin(OPT.get("slp", "2")))
    lab("L_pe1")
    e("ds_read_b32 v%d, v%d" % (v.t1, v.pra))
    e("s_waitcnt lgkmcnt(0)")
    e("v_cmp_gt_u32 vcc, s%d, v%d" % (s.t2, v.t1))
    e("s_cbranch_vccnz L_pe0")
    stamp(5)
    l16, l8, xa, cnt = v.ka0, v.ka0r, v.var, v.var + 1
    emit(lsum())
    e("v_lshlrev_b32 v%d, 4, v%d" % (l16, L))
    e("v_lshlrev_b32 v%d, 3, v%d" % (l8, L))
    e("s_lshl_b32 s%d, s%d, 9" % (s.t0, s.wave))
    e("s_add_u32 s%d, s%d, %d" % (s.t0, s.t0, MLBASE - 2048))
    e("v_add_u32 v%d, s%d, v%d" % (xa, s.t0, l8))
    e("ds_write_b64 v%d, %s" % (xa, vr(v.nmc, 2)))
    e("s_cmp_eq_u32 s%d, 2" % s.n)
    e("s_cbranch_scc1 L_sd2")
    for j in (1, 2, 3):
        if j == 2:
            lab("L_sd2")
        e("s_and_b32 s%d, s%d, 0xffffff" % (s.t0, Fa + 4 + j))
        e("v_add_u32 v%d, s%d, v%d" % (xa, s.t0, l16))
        for k in range(4):
            e("ds_write_b128 v%d, %s offset:%d" % (xa, vr(v.O + 16 * j + 4 * k, 4), k * 1024))
    e("s_lshr_b32 s%d, s%d, 30" % (s.t0, Fa + 2))
    e("s_lshl_b32 s%d, s%d, 2" % (s.t0, s.t0))
    e("s_add_u32 s%d, s%d, %d" % (s.t0, s.t0, CNTB))
    e("v_mov_b32 v%d, s%d" % (cnt, s.t0))
    e("v_mov_b32 v%d, 1" % v.t3)
    e("s_mov_b64 exec, 1")
    e("ds_add_u32 v%d, v%d" % (cnt, v.t3))
    e("s_mov_b64 exec, -1")
    emit(st_addr())
    e("v_add_u32 v%d, s%d, v%d" % (xa, s.reg, l16))
    for j in range(3):
        e("s_lshr_b32 s%d, s%d, 24" % (s.t0, Fa + 5 + j))
        e("s_lshl_b32 s%d, s%d, 9" % (s.t0, s.t0))
        e("s_add_u32 s%d, s%d, %d" % (s.t0, s.t0, MLBASE))
        e("v_add_u32 v%d, s%d, v%d" % (v.P + j, s.t0, l8))
    e("s_branch L_poll1")
    lab("L_poll")
    emit(spin())
    lab("L_poll1")
    e("ds_read_b32 v%d, v%d" % (v.t3, cnt))
    e("s_waitcnt lgkmcnt(0)")
    e("v_cmp_ne_u32 vcc, s%d, v%d" % (s.n, v.t3))
    e("s_cbranch_vccnz L_poll")
    stamp(4)
    for j in range(3):
        e("ds_read_b64 %s, v%d" % (vr(v.X + 2 * j, 2), v.P + j))
    for k in range(12):
        e("ds_read_b128 %s, v%d offset:%d" % (vr(v.KF + 16 + 4 * k, 4), xa, k * 1024))
    RX = v.KF + 16
    f0, f1, f2, f3 = v.X + 8, v.X + 9, v.X + 10, v.X + 11
    e("s_bfe_u32 s%d, s%d, 0x2001c" % (s.col, Fa + 2))
    e("s_lshl_b32 s%d, s%d, 6" % (s.col, s.col))
    e("s_add_u32 s%d, s%d, 0x8000" % (s.col + 1, s.col))
    e("s_add_u32 s%d, s%d, 0x10000" % (s.col + 2, s.col))
    e("s_add_u32 s%d, s%d, 0x18000" % (s.t1, s.col))
    e("s_waitcnt lgkmcnt(12)")
    e("v_min3_f32 v%d, v%d, v%d, v%d" % (v.t3, v.nmc, v.X, v.X + 2))
    e("v_min_f32 v%d, v%d, v%d" % (v.t3, v.t3, v.X + 4))
    e("v_sub_f32 v%d, v%d, v%d" % (f0, v.t3, v.nmc))
    for j, f in enumerate((f1, f2, f3)):
        e("v_sub_f32 v%d, v%d, v%d" % (f, v.t3, v.X + 2 * j))
    for f in (f0, f1, f2, f3):
        e("v_exp_f32 v%d, v%d" % (f, f))
    e("v_mul_f32 v%d, v%d, v%d" % (v.l, v.l, f0))
    e("v_fmac_f32 v%d, v%d, v%d" % (v.l, v.X + 1, f1))
    e("s_cmp_eq_u32 s%d, 2" % s.n)
    e("s_cbranch_scc1 L_mg2")
    e("v_fmac_f32 v%d, v%d, v%d" % (v.l, v.X + 3, f2))
    e("v_fmac_f32 v%d, v%d, v%d" % (v.l, v.X + 5, f3))
    e("v_rcp_f32 v%d, v%d" % (v.t3, v.l))
    e("v_and_b32 v%d, 4, v%d" % (v.t0, L))
    e("v_lshl_add_u32 v%d, v%d, 28, v%d" % (oo, v.t0, oo))
    for f in (f0, f1, f2, f3):
        e("v_mul_f32 v%d, v%d, v%d" % (f, f, v.t3))
    for i in range(16):
        e("v_mul_f32 v%d, v%d, v%d" % (v.O + i, v.O + i, f0))
    for j, f in enumerate((f1, f2, f3)):
        e("s_waitcnt lgkmcnt(%d)" % (8 - 4 * j))
        for i in range(16):
            e("v_fmac_f32 v%d, v%d, v%d" % (v.O + i, RX + 16 * j + i, f))
    e("s_branch L_mg3")
    lab("L_mg2")
    e("v_rcp_f32 v%d, v%d" % (v.t3, v.l))
    e("s_nop 0")
    for f in (f0, f1):
        e("v_mul_f32 v%d, v%d, v%d" % (f, f, v.t3))
    for i in range(32):
        e("v_mul_f32 v%d, v%d, v%d" % (v.O + i, v.O + i, f0))
    e("s_waitcnt lgkmcnt(0)")
    for i in range(32):
        e("v_fmac_f32 v%d, v%d, v%d" % (v.O + i, RX + i, f1))
    emit(pack_q(1, False))
    lab("L_mg3")
    emit(pack_q(0, False) + rd_half(0))
    for k in range(4):
        emit(["s_waitcnt lgkmcnt(%d)" % (3 - k)] + st_one(0, k))
    e("s_branch L_fin")
    lab("L_resc")
    e("v_max3_f32 v%d, v%d, v%d, v%d" % (v.t0, v.X, v.X + 1, v.X + 2))
    for r in range(3, 15, 2):
        e("v_max3_f32 v%d, v%d, v%d, v%d" % (v.t0, v.t0, v.X + r, v.X + r + 1))
    e("v_max3_f32 v%d, v%d, v%d, 0" % (v.t0, v.t0, v.X + 15))
    e("v_mov_b32 v%d, v%d" % (v.t1, v.t0))
    e("s_nop 1")
    e("v_permlane32_swap_b32 v%d, v%d" % (v.t0, v.t1))
    e("s_nop 1")
    e("v_max_f32 v%d, v%d, v%d" % (v.t0, v.t0, v.t1))
    e("v_exp_f32 v%d, -v%d" % (v.t1, v.t0))
    e("v_sub_f32 v%d, v%d, v%d" % (v.nmc, v.nmc, v.t0))
    for r in range(16):
        e("v_sub_f32 v%d, v%d, v%d" % (v.X + r, v.X + r, v.t0))
    e("v_mul_f32 v%d, v%d, v%d" % (v.l, v.l, v.t1))
    for i in range(64):
        e("v_mul_f32 v%d, v%d, v%d" % (v.O + i, v.O + i, v.t1))
    emit(soft_half_plain(0))
    emit(soft_half_plain(1))
    for k, r in enumerate(rets[:-1]):
        e("s_cmp_eq_u32 s%d, %d" % (s.ret, k))
        e("s_cbranch_scc1 %s" % r)
    e("s_branch %s" % rets[-1])
    rl_ = []
    order = [2, 1, 0, 3, 4]
    assert len(srets) == len(order)
    for k in order[:-1]:
        rl_ += ["    s_cmp_eq_u32 s%d, %d" % (s.sret, k), "    s_cbranch_scc1 %s" % srets[k]]
    rl_ += ["    s_branch %s" % srets[order[-1]]]
    out[SRET_AT:SRET_AT] = rl_
    out.append(".p2align 6")
    out.append(".type L_near,@object")
    lab("L_near")
    for ent in near:
        out.append("    .long " + ", ".join("0x%x" % x for x in ent))
    lab("L_far")
    for ent in far:
        out.append("    .long " + ", ".join("0x%x" % x for x in ent))
    lab("L_cnt")
    out.append("    .long " + ", ".join(str(i) for i in range(32)))
    out.append(".size L_near, .-L_near")
    lab("L_codeend")
    out.append("    .fill 512, 4, 0xbf800000")
    out.append('.section .rodata,"a"')
    out.append(".p2align 6")
    out.append(".amdhsa_kernel " + K)
    out.append("  .amdhsa_next_free_vgpr %d" % NV)
    out.append("  .amdhsa_next_free_sgpr %d" % NS)
    out.append("  .amdhsa_accum_offset %d" % NV)
    out.append("  .amdhsa_group_segment_fixed_size 0")
    out.append("  .amdhsa_kernarg_size 56")
    out.append("  .amdhsa_user_sgpr_count 2")
    out.append("  .amdhsa_user_sgpr_kernarg_segment_ptr 1")
    out.append("  .amdhsa_system_sgpr_workgroup_id_x 1")
    out.append(".end_amdhsa_kernel")
    txt = "\n".join(out) + "\n"
    txt = txt.replace("PFSTRIDE", OPT.get("pf", "32"))
    import subprocess, tempfile, os
    tmp = tempfile.mkdtemp()
    open(tmp + "/a.s", "w").write(txt.replace("offset:L_near-L_pc", "offset:0x100").replace("offset:L_far-L_pc", "offset:0x100"))
    subprocess.run(["clang", "-x", "assembler", "-target", "amdgcn-amd-amdhsa", "-mcpu=gfx950", "-c", tmp + "/a.s", "-o", tmp + "/a.o"], check=True)
    sy = {}
    for ln in subprocess.run(["llvm-objdump", "-t", tmp + "/a.o"], capture_output=True, text=True).stdout.splitlines():
        p = ln.split()
        if len(p) >= 5 and p[-1].startswith("L_"):
            sy[p[-1]] = int(p[0], 16)
    assert sy["L_codeend"] - sy["L_pc"] <= 512 * int(OPT.get("pf", "32")) + 128 or STAMPS or SPIN, hex(sy["L_codeend"])
    assert sy["L_codeend"] + 2048 - sy["L_pc"] >= 512 * int(OPT.get("pf", "32"))
    for t in ("L_near", "L_far"):
        txt = txt.replace("offset:%s-L_pc" % t, "offset:0x%x" % (sy[t] - sy["L_pc"]))
        txt = txt.replace(t + ":\n", t + ":\n.if (%s-L_pc) != 0x%x\n.error \"table offset\"\n.endif\n" % (t, sy[t] - sy["L_pc"])) if False else txt
    return txt


if __name__ == "__main__":
    args = [a for a in sys.argv[1:] if a.endswith(".s")]
    path = args[0] if args else "cdna_kernels/%s.s" % NAME
    open(path, "w").write(gen())
    print("wrote", path)
```

```python
import sys, struct, math

NAME = "standalone__varlen_attn_packed__ragged"
CU = [0, 289, 520, 939, 1289, 1402, 1666, 1973, 2275]
LEN = [CU[i + 1] - CU[i] for i in range(8)]
T_TOT = 2275
ROWB = 4096
TENSOR_BYTES = T_TOT * ROWB

OPT = {}
for a in sys.argv[1:]:
    if a.startswith("--"):
        k, _, val = a[2:].partition("=")
        OPT[k] = val if val else "1"
STAMPS = "stamps" in OPT or "lite" in OPT
LITE = "lite" in OPT
LDF_Q = OPT.get("ldq", "none").replace("+", " ").replace("none", "")
LDF_K = OPT.get("ldk", "none").replace("+", " ").replace("none", "")
STF = OPT.get("st", "sc1").replace("+", " ").replace("none", "")
FLY = int(OPT.get("fly", "4"))

HEADER = """; Kernarg layout for this problem (56 bytes, ptrs only, base s[0:1]):
;   offset   0: d_in[0] q  shape=(2275, 16, 128) dtype=bfloat16 strides=(4096, 256, 2) contiguous=True
;   offset   8: d_in[1] k  shape=(2275, 16, 128) dtype=bfloat16 strides=(4096, 256, 2) contiguous=True
;   offset  16: d_in[2] v  shape=(2275, 16, 128) dtype=bfloat16 strides=(4096, 256, 2) contiguous=True
;   offset  24: d_in[3] cu  shape=(9,) dtype=int32 strides=(4,) contiguous=True
;   offset  32: d_out     shape=(2275, 16, 128) dtype=bfloat16 (2 bytes/elem)
"""

DOC = """;
; Varlen (packed) non-causal attention, one 512-thread workgroup per CU, schedule specialised for the fixed cu[] table.
;   waves 0..3 : one 32-row q tile each; software pipelined flash-attention loop (S^T = K Q^T, O^T += V^T P^T,
;                v_mfma_f32_32x32x16_bf16, fp32 scale/exp2/row sums, bf16 P).
;   waves 4..7 : stream K/V blocks into an LDS ring with LDS-DMA and compute a share of the extra q tiles;
;                partial results of a shared tile are merged through LDS.
;   row sums at run time and, whenever they could become unsafe, L_resc moves the reference to the true
;   L_near / L_far: per-workgroup and per-wave work descriptors (rows, lengths, LDS regions).
"""


def f2u(x):
    return struct.unpack("<I", struct.pack("<f", x))[0]


def cdiv(a, b):
    return (a + b - 1) // b


LDS_TOTAL = 163840
QBASE = 98304
XTRA = 131072
MLBASE = XTRA + 16384
PRGB = XTRA + 7 * 4096 + 2048
RDYB = XTRA + 6 * 4096 + 3072
CNTB = XTRA + 6 * 4096 + 2048
BIG = 0x4000

ROLES = [
    ("dual", (1, 6, 2), (4, 0, 4)),
    (5, 0, 6),
    (3, 0, 5), (3, 5, 5),
    ("dual", (3, 10, 1), (5, 6, 3)),
    (1, 0, 6),
    (6, 0, 5), (6, 5, 5),
    (7, 0, 5), (7, 5, 5), (0, 0, 5), (0, 5, 5),
    (2, 0, 4), (2, 4, 4), (2, 8, 3), (2, 11, 3),
]
QL = int(OPT.get("ql", "4"))
QLC = int(OPT.get("qlc", "3"))
QE = int(OPT.get("qe", "0"))


def nrec(rows):
    return (rows - 1) * ROWB + 256 if rows > 0 else 0


def build_tables():
    near, far, desc = [], [], []
    for ri, role in enumerate(ROLES):
        W = [None] * 8
        groups = []
        if role[0] == "dual":
            (sa, ta, na), (sb, tb, nb) = role[1], role[2]
            rowA, lenA, rowB, lenB, step = CU[sa], LEN[sa], CU[sb], LEN[sb], 32
            n_it = max(cdiv(lenA, 32), cdiv(lenB, 32))
            tiles = [(sa, ta + i, 0) for i in range(na)] + [(sb, tb + i, 1) for i in range(nb)]
            nq = len(tiles)
            for i in range(4):
                sq, tl, st = tiles[i]
                W[i] = dict(seq=sq, tile=tl, ql=i, type=2, stream=st, its=list(range(cdiv(LEN[sq], 32))), hastail=1)
            for i in range(4, nq):
                sq, tl, st = tiles[i]
                nb_ = cdiv(LEN[sq], 32)
                W[i + 2] = dict(seq=sq, tile=tl, ql=i, type=3, stream=st, its=list(range(nb_)), hastail=1,
                                G=1, reg=XTRA + 4096 * i)
        else:
            sa, t0, nq = role
            rowA, lenA, rowB, lenB, step = CU[sa], LEN[sa], CU[sa] + 32, LEN[sa] - 32, 64
            nkv = cdiv(lenA, 32)
            n_it = cdiv(nkv, 2)
            tiles = [(sa, t0 + i, 0) for i in range(nq)]
            for i in range(min(nq, 4)):
                W[i] = dict(seq=sa, tile=t0 + i, ql=i, type=1, stream=0, its=list(range(nkv)), hastail=1)
            nh = 4 // (nq - 4) if nq > 4 else 0
            for i in range(4, nq):
                ws = [4, 5, 6, 7] if nh == 4 else [4 + (i - 4), 6 + (i - 4)]
                for k, w in enumerate(ws):
                    blocks = [p for p in range(nkv) if p % nh == k]
                    W[w] = dict(seq=sa, tile=t0 + i, ql=i, type=3, stream=k % 2, its=[p // 2 for p in blocks],
                                hastail=int((nkv - 1) in blocks))
                groups.append(ws)
        qrows = [CU[sq] + 32 * tl for sq, tl, _ in tiles] + [0xfff] * (6 - nq)
        qrows = [r | (0x1000 if i < nq and tiles[i][2] else 0) for i, r in enumerate(qrows)]
        maskA = sum(1 << i for i, w in enumerate(W) if w and (w["type"] == 1 or w["stream"] == 0 or i < 4 and role[0] != "dual"))
        lastB = 2 * cdiv(lenB, step) + 1
        near.append([rowA * ROWB, nrec(lenA) | maskA, rowB * ROWB, nrec(lenB) | lastB, step * ROWB | (2 * n_it + 1),
                     qrows[0] | qrows[1] << 16, qrows[2] | qrows[3] << 16, qrows[4] | qrows[5] << 16])
        areas = [((n_it + 1) % 4) * 32768, ((n_it + 2) % 4) * 32768]
        recv = [areas[0], areas[0] + 12288, areas[1], areas[1] + 12288]
        for i in range(4):
            if W[i]:
                W[i]["reg"] = XTRA + 4096 * i
        for gi, g in enumerate(groups):
            G = len(g)
            for k, w in enumerate(g):
                W[w]["reg"] = recv[w - 4]
                W[w]["G"], W[w]["k"], W[w]["gi"] = G, k, gi
                if G == 4:
                    W[w]["send"] = [recv[g[(j + k) % 4] - 4] + (j - 1) * 4096 for j in (1, 2, 3)]
                    W[w]["src"] = [g[(k - j) % 4] for j in (1, 2, 3)]
                else:
                    o = g[1 - k]
                    W[w]["send"] = [0, recv[o - 4], recv[o - 4] + 4096]
                    W[w]["src"] = [o, o, o]
        for wi in range(8):
            w = W[wi]
            desc.append(w)
            if w is None:
                far.append([0] * 8)
                continue
            sq, its, typ, sc = w["seq"], w["its"], w["type"], w["stream"]
            tail = LEN[sq] % 32
            orow = CU[sq] + 32 * w["tile"]
            onr = min(32, CU[sq + 1] - orow)
            assert onr > 0 and tail > 0
            U = len(its) - 1
            a0, st = its[0], its[1] - its[0]
            assert all(its[i] == a0 + st * i for i in range(len(its))) and st <= 2 and a0 <= 1 and U >= 1
            if typ == 1:
                inc, prg0, prg1, need1, need2 = 1, 2, 4, 0, 2
            elif typ == 2:
                inc, prg0, prg1, need1, need2 = 2, 2, 4 + sc, sc, 4 + sc
            else:
                inc, prg0, prg1, need1, need2 = 2 * st, 2 * a0 + sc + 2, 2 * (a0 + 1) + sc + 2, max(QE if QE else 3, 2 * a0 + sc), 2 * (a0 + st) + sc
            needk = max(need1 + 2 * (typ == 2), 1)
            if typ != 3 and wi >= QL:
                need1 = max(need1, QLC)
            w.update(needk=needk)
            w.update(U=U, a0=a0, st=st, inc=inc, prg0=prg0, prg1=prg1, need1=need1, need2=need2, n_it=n_it)
            hm = 0
            if typ != 3:
                nlast = 2 * n_it + 1
                pub = prg0
                w["pubs"] = []
                for b in range(U):
                    val = prg1 + inc * (b + 1)
                    want = pub < nlast - 5 and (typ == 2 or b % 2 == 1 or OPT.get("puball"))
                    if groups and pub < nlast - 1 <= val:
                        want = True
                    if typ == 2 or U - 1 - b <= 1:
                        hm |= 1 << (U - 1 - b)
                    if want and OPT.get("nodpub"):
                        hm |= 0x10001 << (U - 1 - b)
                        pub = val
                        w["pubs"].append(b)
            G, k, gi = w.get("G", 0), w.get("k", 0), w.get("gi", 0)
            rot = k * (4 // G) if G > 1 else 0
            ent = [orow * ROWB, nrec(onr),
                   U | typ << 8 | inc << 12 | (tail if w["hastail"] else 32) << 16 | G << 24 | rot << 28 | gi << 30,
                   prg0 | prg1 << 8 | need1 << 16 | need2 << 24,
                   w["reg"] | w["ql"] << 20 | (1 - sc) << 24 | a0 << 25 | st << 26 | int(typ != 3 and tail <= 16 and not OPT.get("noshort")) << 31]
            if G > 1:
                ent += [w["send"][j] | ((w["src"][j] - 4) << 24) for j in range(3)]
            if typ != 3:
                ent += [hm, needk]
            ent += [0] * (8 - len(ent))
            far.append(ent)
    return near, far, desc


class R:
    pass


v = R()
v.kd0, v.kd1, v.vd0, v.vd1 = 1, 2, 3, 4
v.ka0r, v.ka1r = 5, 6
v.ka0, v.ka1 = 7, 8
v.rdya, v.rdy = 9, 10
v.lane = 11
v.nmc, v.l = 12, 13
v.ps = 14
v.t0, v.t1, v.t2, v.t3 = 15, 16, 17, 18
v.pf = 19
v.st = 20
v.prga, v.prg = 21, 22
v.fo = 23
v.pra = 0
v.Q = 24
v.O = 56
v.S = 120
v.B = 136
v.KF = 152
v.VF = 184
v.X = 216
v.E = 232
v.P = 240
v.var = 248
v.va = 252
NV = 256

s = R()
s.q, s.k, s.vv, s.cu, s.out = 4, 6, 8, 10, 12
s.near = 16
s.far = 24
s.kA, s.kB, s.vA, s.vB, s.sq, s.so = 32, 36, 40, 44, 48, 52
s.wave, s.hoff = 56, 57
s.n = 58
s.thr = 59
s.soff = 60
s.dslot = 61
s.U = 62
s.mu = 63
s.koff, s.voff = 64, 65
s.need, s.chk = 66, 67
s.t0, s.t1, s.t2, s.t3 = 68, 69, 70, 71
s.pc = 72
s.stp = 74
s.ws = 76
s.sti = 78
s.ret = 79
s.foff = 80
s.reg = 81
s.m1 = 82
s.lnd = 83
s.inc = 84
s.col = 85
s.astep = 88
s.sret = 89
s.guard = 90
s.iss = 91
s.d0, s.rdw = 92, 93
s.qea, s.qeb = 94, 95
s.stepb = 97
NS = 100

C_SCALE = (128 ** -0.5) * math.log2(math.e)
CL = "0x%x" % f2u(C_SCALE)
THRESH = 4096.0

out = []


def e(x):
    out.append("    " + x)


def lab(x):
    out.append(x + ":")


def vr(b, n):
    return "v[%d:%d]" % (b, b + n - 1)


def sr(b, n):
    return "s[%d:%d]" % (b, b + n - 1)


def emit(lst):
    for x in lst:
        if x is None:
            continue
        if x.endswith(":"):
            out.append(x)
        else:
            e(x)


def stamp_l(k=None, real=False):
    if not STAMPS or (LITE and k not in (7, 61)):
        return []
    if OPT.get("rt") and k is None and not real:
        return stamp_l(None, True) + stamp_l(None, "c")
    real = real is True
    r = ["%s s[%d:%d]" % ("s_memrealtime" if real else "s_memtime", s.stp, s.stp + 1), "s_waitcnt lgkmcnt(0)"]
    if k is None:
        r += ["s_mov_b32 s%d, m0" % (s.stp + 1), "s_mov_b32 m0, s%d" % s.sti, "s_nop 0",
              "v_writelane_b32 v%d, s%d, m0" % (v.st, s.stp),
              "s_add_u32 s%d, s%d, 1" % (s.sti, s.sti), "s_mov_b32 m0, s%d" % (s.stp + 1)]
    else:
        r += ["v_writelane_b32 v%d, s%d, %d" % (v.st, s.stp, k)]
    return r


def stamp(k=None, real=False):
    emit(stamp_l(k, real))


SPIN = OPT.get("spin")


def mark(name):
    if SPIN == name:
        e("s_memrealtime s[%d:%d]" % (s.stp, s.stp + 1))
        e("s_waitcnt lgkmcnt(0)")


def kread(t, dst, st=0):
    return "ds_read_b128 %s, v%d offset:%d" % (vr(dst + 4 * t, 4), v.ka1 if t % 2 else v.ka0,
                                               (t // 4) * 16384 + ((t // 2) % 2) * 256 + st * 1024)


def vread(i, st=0, one=False):
    t, bb, ss = i // 8, (i // 2) % 4, i % 2
    reg = v.VF + (t * 4 + bb) * 4 + ss * 2
    if one:
        return "ds_read_b64_tr_b16 %s, v%d offset:%d" % (vr(reg, 2), v.va, (4 * t + 2 * ss) * 4096 + st * 1024 + bb * 256)
    return "ds_read_b64_tr_b16 %s, v%d offset:%d" % (vr(reg, 2), v.va + bb, (4 * t + 2 * ss) * 4096 + st * 1024)


def ld(kv, col, half, so):
    srd = {("K", 0): s.kA, ("K", 1): s.kB, ("V", 0): s.vA, ("V", 1): s.vB}[(kv, col)]
    off = (2048 if kv == "V" else 0) + (1024 if col == 0 else 0)
    vo = {("K", 0): v.kd0, ("K", 1): v.kd1, ("V", 0): v.vd0, ("V", 1): v.vd1}[(kv, half)]
    return "buffer_load_dwordx4 v%d, %s, s%d offen %s%s lds" % (vo, sr(srd, 4), so, "offset:%d " % off if off else "", LDF_K)


STEP_ADV = ["s_add_u32 s%d, s%d, s%d" % (s.soff, s.soff, s.stepb),
            "s_add_u32 s%d, s%d, 0x8000" % (s.dslot, s.dslot),
            "s_and_b32 s%d, s%d, 0x1ffff" % (s.dslot, s.dslot)]


FLAG = ["s_mov_b32 m0, s%d" % s.rdw,
        "v_add_u32 v%d, 4, v%d" % (v.fo, v.fo),
        "global_load_lds_dword v%d, %s" % (v.fo, sr(s.pc, 2))]


def chunk(col, k_only=False, pace=0, flag=True):
    p = []
    if pace:
        p = ["s_sleep %d" % pace if pace < 16 else "s_nop %d" % (pace - 16)]
    r = []
    for half, m in ((0, "s_mov_b32 m0, s%d" % s.dslot), (1, "s_add_u32 m0, s%d, 0x4000" % s.dslot)):
        r += [m, "s_nop 0"]
        if not k_only:
            r += [ld("V", col, half, s.soff)] + p
        r += [ld("K", col, half, s.soff)] + p
    return r + (FLAG if flag else [])


def qk(t):
    return "v_mfma_f32_32x32x16_bf16 %s, %s, %s, %s" % (vr(v.S, 16), vr(v.KF + 4 * t, 4), vr(v.Q + 4 * t, 4), vr(v.S, 16))


def pv(i):
    t, bb = i // 4, i % 4
    return "v_mfma_f32_32x32x16_bf16 %s, %s, %s, %s" % (
        vr(v.O + 16 * bb, 16), vr(v.VF + (t * 4 + bb) * 4, 4), vr(v.P + 4 * t, 4), vr(v.O + 16 * bb, 16))


def F(r):
    return "v_fmamk_f32 v%d, v%d, %s, v%d" % (v.X + r, v.S + r, CL, v.nmc)


def ex(r):
    return "v_exp_f32 v%d, v%d" % (v.E + r % 8, v.X + r)


def add(r):
    if r == 0:
        return None
    if r == 1:
        return "v_add_f32 v%d, v%d, v%d" % (v.ps, v.E, v.E + 1)
    return "v_add_f32 v%d, v%d, v%d" % (v.ps, v.ps, v.E + r % 8)


def cvt(i):
    return "v_cvt_pk_bf16_f32 v%d, v%d, v%d" % (v.P + i, v.E + (2 * i) % 8, v.E + (2 * i + 1) % 8)


def soft_half_plain(h):
    r = [ex(8 * h + i) for i in range(8)]
    r += [x for x in (add(8 * h + i) for i in range(8)) if x]
    r += [cvt(4 * h + i) for i in range(4)]
    return r


CMP = "v_cmp_lt_f32 vcc, s%d, v%d" % (s.thr, v.ps)
LADD = "v_add_f32 v%d, v%d, v%d" % (v.l, v.l, v.ps)
PRGW = "ds_write_b32 v%d, v%d" % (v.prga, v.prg)
RDYR = "ds_read_b32 v%d, v%d" % (v.rdy, v.rdya)
PRGINC = "v_add_u32 v%d, s%d, v%d" % (v.prg, s.inc, v.prg)
NEEDINC = "s_add_u32 s%d, s%d, s%d" % (s.need, s.need, s.inc)
QK0 = "v_mfma_f32_32x32x16_bf16 %s, %s, %s, 0" % (vr(v.S, 16), vr(v.KF, 4), vr(v.Q, 4))
QK0M = "v_mfma_f32_32x32x16_bf16 %s, %s, %s, %s" % (vr(v.S, 16), vr(v.KF, 4), vr(v.Q, 4), vr(v.B, 16))
rets, srets = [], []


def newret():
    rets.append("L_ret%d" % len(rets))
    return len(rets) - 1


def kaddr():
    return ["v_add_u32 v%d, s%d, v%d" % (v.ka0, s.koff, v.ka0r),
            "v_add_u32 v%d, s%d, v%d" % (v.ka1, s.koff, v.ka1r)]


def vaddr():
    return ["v_add_u32 v%d, s%d, v%d" % (v.va + j, s.voff, v.var + j) for j in range(4)]


def adv(reg):
    return ["s_add_u32 s%d, s%d, s%d" % (reg, reg, s.astep), "s_and_b32 s%d, s%d, 0x1ffff" % (reg, reg)]


_sc = [0]


def svc_cap():
    r = ["s_waitcnt vmcnt(%s)" % OPT.get("cap", "20")]
    if OPT.get("cap0"):
        _sc[0] += 1
        r += ["s_and_b32 s%d, s%d, %s" % (s.t1, s.hoff, OPT.get("capm", "0x300")), "s_cbranch_scc1 L_sc%d" % _sc[0],
              "s_waitcnt vmcnt(%s)" % OPT["cap0"], "L_sc%d:" % _sc[0]]
    return r


def headmap():
    if OPT.get("gc"):
        tab = sum(int(OPT["gc"][2 * x + 1]) << (4 * x) for x in range(8))
        return ["s_lshl_b32 s%d, s2, 2" % s.t1,
                "s_lshr_b32 s%d, 0x%x, s%d" % (s.t1, tab, s.t1),
                "s_and_b32 s%d, s%d, 3" % (s.t1, s.t1),
                "s_bfe_u32 s%d, s2, 0x20003" % s.hoff,
                "s_lshl2_add_u32 s%d, s%d, s%d" % (s.t1, s.hoff, s.t1),
                "s_lshl_b32 s%d, s%d, 8" % (s.hoff, s.t1)]
    cm = OPT.get("cmap", "1302")
    if not cm:
        return ["s_and_b32 s%d, s2, 15" % s.t1, "s_lshl_b32 s%d, s%d, 8" % (s.hoff, s.t1)]
    tab = 0
    cls = [int(c) for c in cm]
    for i in range(16):
        x, hs = i & 7, i >> 3
        tab |= (cls[x >> 1] + 4 * (x & 1) + 8 * hs) << (4 * i)
    return ["s_lshl_b32 s%d, s2, 2" % s.t1,
            "s_lshr_b32 s%d, 0x%x, s%d" % (s.t1, tab & 0xffffffff, s.t1),
            "s_and_b32 s%d, s%d, 7" % (s.t1, s.t1),
            "s_and_b32 s%d, s2, 8" % s.hoff,
            "s_or_b32 s%d, s%d, s%d" % (s.t1, s.t1, s.hoff),
            "s_lshl_b32 s%d, s%d, 8" % (s.hoff, s.t1)]


def flag_init():
    return ["v_lshlrev_b32 v%d, 2, v0" % v.prga,
            "v_add_u32 v%d, %d, v%d" % (v.prga, PRGB - 4096, v.prga),
            "v_mov_b32 v%d, 0" % v.l,
            "ds_write_b32 v%d, v%d" % (v.prga, v.l),
            "ds_write_b32 v%d, v%d offset:4096" % (v.prga, v.l),
            "s_lshl_b32 s%d, s%d, 8" % (s.foff, s.foff),
            "s_lshr_b32 s%d, s%d, 1" % (s.t0, s.wave),
            "s_add_u32 s%d, s%d, s%d" % (s.foff, s.foff, s.t0)]


def far_load():
    r = []
    if STAMPS:
        r += ["v_mov_b32 v%d, 0" % v.st, "s_mov_b32 s%d, 8" % s.sti,
              "v_writelane_b32 v%d, s%d, 0" % (v.st, s.stp), "v_writelane_b32 v%d, s%d, 1" % (v.st, s.ws),
              "s_load_dwordx2 %s, s[0:1], 48" % sr(s.ws, 2)]
    return r + ["s_load_dwordx8 %s, %s, s%d offset:L_far-L_pc" % (sr(s.far, 8), sr(s.pc, 2), s.foff),
                "s_load_dwordx2 s[12:13], s[0:1], 32"]


def spin(n="1"):
    r = ["s_sleep %s" % n]
    if not OPT.get("nosafe"):
        r += ["s_sub_u32 s%d, s%d, 1" % (s.guard, s.guard), "s_cbranch_scc1 L_end"]
    return r


def sync_call(target=None):
    k = len(srets)
    srets.append(target or "L_sr%d" % k)
    return ["s_mov_b32 s%d, %d" % (s.sret, k), "s_branch L_sync"] + ([] if target else ["L_sr%d:" % k])


_pl = [0]


ool = []


def poll_rdy():
    _pl[0] += 1
    a, b = "L_pa%d" % _pl[0], "L_pb%d" % _pl[0]
    ool.append([a + ":"] + spin() + [RDYR, "s_waitcnt lgkmcnt(0)", "s_branch %s" % b])
    return ["s_min_u32 s%d, s%d, s%d" % (s.t2, s.need, s.n), b + ":",
            "v_cmp_ge_u32 vcc, s%d, v%d" % (s.t2, v.rdy), "s_cbranch_vccnz %s" % a]


def body(kind):
    odd, hlp = kind != "even", kind == "hlp"
    st = 0 if odd else 1
    V = lambda i: vread(i, st, not hlp)
    K = lambda t: kread(t, v.KF, st)
    W = lambda n: "s_waitcnt lgkmcnt(%d)" % n
    k = newret()
    q = [
        [NEEDINC, V(0), V(1), ex(8), add(7), cvt(3)],
        ["s_mov_b32 s%d, %d" % (s.ret, k), V(2), V(3), ex(9), ex(10)],
        [W(4), V(4), V(5), ex(11), add(8), add(9)],
        ["s_sub_u32 s%d, s%d, 1" % (s.U, s.U), V(6), V(7), ex(12), ex(13)],
        [None, V(8), V(9), ex(14), add(10), add(11)],
        [None, V(10), V(11), ex(15), add(12), add(13)],
        [W(4), V(12), V(13), add(14), add(15), CMP, cvt(4)],
        ["s_cbranch_vccnz L_resc", "L_ret%d:" % k, V(14), V(15), LADD, cvt(5), cvt(6), cvt(7)],
    ]
    p = [
        ["s_nop 0", K(0), K(1), K(2), F(0), F(1), F(2)],
        [None, K(3), ex(0), F(3), F(4), F(5)],
        [None, K(4), ex(1), F(6), F(7), F(8)],
        [W(5), K(5), ex(2), add(1), F(9), F(10)],
        [None, K(6), ex(3), add(2), cvt(0), F(11)],
        [None, K(7), ex(4), add(3), cvt(1), F(12)],
        [W(4), ex(5), ex(6), add(4), F(13)],
        [None, ex(7), add(5), add(6), cvt(2), F(14), F(15)],
    ]
    if odd:
        q[4][0], q[5][0] = adv(s.voff)
        p[4][0], p[5][0] = adv(s.koff)
        va, ka = vaddr(), kaddr()
        p[1].append(va[0])
        if hlp:
            p[3].append(va[1])
            p[4].append(va[2])
            p[5].append(va[3])
        p[6].append(ka[0])
        p[7].append(ka[1])
    if not hlp:
        p[0][0] = "s_min_u32 s%d, s%d, s%d" % (s.chk, s.need, s.n)
        p[1][0] = "s_bitcmp1_b32 s%d, s%d" % (s.far + 5, s.U)
        p[2][0] = "s_cselect_b32 s%d, -1, s%d" % (s.chk, s.chk)
        p[2][2:2] = [RDYR]
        p[6][0] = W(3)
        if odd and (not OPT.get("nodpub")):
            q[2].append("v_add_u32 v%d, 8, v%d" % (v.fo, v.fo))
            q[3][1:1] = ["global_load_lds_dword v%d, %s" % (v.fo, sr(s.pc, 2))]
        p[7][3:3] = ["v_cmp_ge_u32 vcc, s%d, v%d" % (s.chk, v.rdy)]
    else:
        q[1].append(PRGINC)
        q[7][4:4] = [PRGW]
        sc = sync_call()
        q[3][1:1] = [sc[0]]
        p[0][0:1] = stamp_l() + sc[1:] + stamp_l()
    lab("L_%s_m" % kind)
    e(QK0)
    lab("L_%s_a" % kind)
    emit(q[0])
    for t in range(1, 8):
        e(qk(t))
        emit(q[t])
    for i in range(8):
        e(pv(i))
        emit(p[i])
    if not hlp:
        stamp()


def gen():
    K = NAME + "_kernel"
    near, far, _ = build_tables()
    PACE = int(OPT.get("pace", "0"))
    out.append(HEADER + "; @launch grid=(256,1,1) block=(512,1,1) lds=%d" % LDS_TOTAL + "\n" + DOC.rstrip())
    out.append('.amdgcn_target "amdgcn-amd-amdhsa--gfx950"')
    out.append(".text")
    out.append(".globl " + K)
    out.append(".p2align 12")
    out.append(".p2align 8")
    out.append(".type %s,@function" % K)
    lab(K)
    L, N, Fa = v.lane, s.near, s.far
    if SPIN:
        e("s_memrealtime s[%d:%d]" % (s.ws, s.ws + 1))
        e("s_memrealtime s[%d:%d]" % (s.stp, s.stp + 1))
    if STAMPS:
        e("s_memrealtime s[%d:%d]" % (s.stp, s.stp + 1))
        e("s_memtime s[%d:%d]" % (s.ws, s.ws + 1))
    e("s_load_dwordx8 s[4:11], s[0:1], 0")
    e("s_getpc_b64 %s" % sr(s.pc, 2))
    lab("L_pc")
    if OPT.get("gc"):
        gm = sum((OPT["gc"][2 * x] == "L") << x for x in range(8)) * 0x01010101
        e("s_lshr_b32 s%d, s2, 5" % s.foff)
        e("s_bitcmp1_b32 0x%x, s2" % gm)
        e("s_cselect_b32 s%d, 8, 0" % s.t1)
        e("s_add_u32 s%d, s%d, s%d" % (s.foff, s.foff, s.t1))
    else:
        e("s_lshr_b32 s%d, s2, 4" % s.foff)
    e("s_lshl_b32 s%d, s%d, 5" % (s.t1, s.foff))
    e("s_load_dwordx8 %s, %s, s%d offset:L_near-L_pc" % (sr(s.near, 8), sr(s.pc, 2), s.t1))
    e("v_mul_u32_u24 v%d, PFSTRIDE, v0" % v.t0)
    e("v_readfirstlane_b32 s%d, v0" % s.wave)
    e("global_load_dword v%d, v%d, %s" % (v.pf, v.t0, sr(s.pc, 2)))
    e("s_cmp_ge_u32 s2, 256" if OPT.get("gc") else "s_cmp_ge_u32 s%d, 16" % s.foff)
    e("s_cbranch_scc1 L_end")
    e("s_bitcmp0_b32 s%d, 8" % s.wave)
    e("s_cbranch_scc1 L_mainpro")
    e("v_bfe_u32 v%d, v0, 5, 2" % v.t0)
    e("v_and_b32 v%d, 3, v0" % v.t1)
    e("v_xor_b32 v%d, v%d, v%d" % (v.t1, v.t1, v.t0))
    e("v_and_or_b32 v%d, v0, 12, v%d" % (v.t0, v.t0))
    e("v_lshlrev_b32 v%d, 12, v%d" % (v.t0, v.t0))
    e("v_lshl_add_u32 v%d, v%d, 4, v%d" % (v.t0, v.t1, v.t0))
    e("v_and_b32 v%d, 16, v0" % v.t1)
    e("v_lshl_add_u32 v%d, v%d, 2, v%d" % (v.t0, v.t1, v.t0))
    e("v_bfe_u32 v%d, v0, 7, 1" % v.t1)
    e("v_lshl_add_u32 v%d, v%d, 16, v%d" % (v.kd0, v.t1, v.t0))
    e("v_add_u32 v%d, 0x80, v%d" % (v.kd1, v.kd0))
    emit(headmap())
    e("s_lshl_b32 s%d, s%d, 6" % (s.dslot, s.wave))
    e("s_and_b32 s%d, s%d, 0x3000" % (s.dslot, s.dslot))
    e("s_mov_b32 s%d, 0x20000" % (s.sq + 3))
    e("s_mov_b32 s%d, s%d" % (s.kA + 3, s.sq + 3))
    e("s_mov_b32 s%d, 0" % s.soff)
    if OPT.get("thr", "0") != "0":
        e("s_lshr_b32 vcc_lo, %s, s%d" % (OPT.get("thr", "0"), s.t1))
        if OPT.get("thrr"):
            e("s_lshr_b32 s%d, %s, s%d" % (s.t0, OPT["thrr"], s.foff))
            e("s_and_b32 vcc_lo, vcc_lo, s%d" % s.t0)
        if OPT.get("thro"):
            e("s_lshr_b32 s%d, %s, s%d" % (s.t0, OPT["thro"], s.foff))
            e("s_or_b32 vcc_lo, vcc_lo, s%d" % s.t0)
        e("s_and_b32 vcc_lo, vcc_lo, 1")
        e("s_mov_b32 vcc_hi, 0")
    e("s_add_u32 s%d, s%d, %d" % (s.d0, s.dslot, QBASE))
    emit(flag_init())
    e("s_waitcnt lgkmcnt(0)")
    emit(far_load())
    mark("karg")
    THR = OPT.get("thr", "0")
    _th = [0]

    def throttle():
        if THR == "0":
            return []
        _th[0] += 1
        return ["s_cbranch_vccz L_th%d" % _th[0], "s_waitcnt vmcnt(%s)" % OPT.get("thn", "8"), "L_th%d:" % _th[0]]

    def qtile(i):
        w = N + 5 + i // 2
        r = ["s_bitcmp1_b32 s%d, %d" % (w, 12 + 16 * (i % 2)),
             "s_cselect_b32 s%d, s%d, s%d" % (s.sq + 2, s.qeb, s.qea),
             "s_bfe_u32 s%d, s%d, 0x%x" % (s.t0, w, 0xc0000 + 16 * (i % 2)),
             "s_add_u32 m0, s%d, %d" % (s.d0, (i // 4) * 32768 + (i % 4) * 1024),
             "s_lshl_b32 s%d, s%d, 12" % (s.t0, s.t0),
             "buffer_load_dwordx4 v%d, %s, s%d offen %s lds" % (v.kd0, sr(s.sq, 4), s.t0, LDF_Q),
             "s_add_u32 m0, m0, 0x4000", "s_nop 0",
             "buffer_load_dwordx4 v%d, %s, s%d offen %s lds" % (v.kd1, sr(s.sq, 4), s.t0, LDF_Q)]
        return r
    e("s_add_u32 s%d, s%d, s%d" % (s.qea, N + 0, N + 1))
    e("s_add_u32 s%d, s%d, s%d" % (s.qeb, N + 2, N + 3))
    e("s_add_u32 s%d, s%d, s%d" % (s.sq, s.q, s.hoff))
    e("s_addc_u32 s%d, s%d, 0" % (s.sq + 1, s.q + 1))
    emit(qtile(0))
    e("s_add_u32 s%d, s%d, s%d" % (N + 0, N + 0, s.hoff))
    e("s_add_u32 s%d, s%d, s%d" % (s.kA, s.k, N + 0))
    e("s_addc_u32 s%d, s%d, 0" % (s.kA + 1, s.k + 1))
    e("s_sub_u32 s%d, s%d, 1024" % (s.kA, s.kA))
    e("s_subb_u32 s%d, s%d, 0" % (s.kA + 1, s.kA + 1))
    e("s_add_u32 s%d, s%d, 1024" % (s.kA + 2, N + 1))
    emit(chunk(0, True, flag=False))
    for i in range(1, QL):
        emit((throttle() if i > 1 else []) + qtile(i))
    QLATE = sum((qtile(i) for i in range(QL, 4)), [])
    mark("iss")
    for b in (s.kB, s.vA, s.vB):
        e("s_mov_b32 s%d, s%d" % (b + 3, s.sq + 3))
    e("s_add_u32 s%d, s%d, s%d" % (N + 2, N + 2, s.hoff))
    e("s_add_u32 s%d, s%d, s%d" % (s.kB, s.k, N + 2))
    e("s_addc_u32 s%d, s%d, 0" % (s.kB + 1, s.k + 1))
    e("s_mov_b32 s%d, s%d" % (s.kB + 2, N + 3))
    e("s_and_b32 s%d, s%d, 0xfffff000" % (s.stepb, N + 4))
    e("s_lshr_b32 s%d, s%d, 4" % (s.rdw, s.dslot))
    e("s_add_u32 s%d, s%d, %d" % (s.rdw, s.rdw, RDYB))
    e("v_mov_b32 v%d, L_cnt-L_pc" % v.fo)
    for (srd, off, nr, d) in ((s.vA, N + 0, N + 1, 3072), (s.vB, N + 2, N + 3, 2048)):
        e("s_add_u32 s%d, s%d, %d" % (s.t0, s.stepb, d))
        e("s_add_u32 s%d, s%d, s%d" % (srd, s.vv, off))
        e("s_addc_u32 s%d, s%d, 0" % (srd + 1, s.vv + 1))
        e("s_sub_u32 s%d, s%d, s%d" % (srd, srd, s.t0))
        e("s_subb_u32 s%d, s%d, 0" % (srd + 1, srd + 1))
        e("s_add_u32 s%d, s%d, s%d" % (srd + 2, nr, s.t0))
    e("v_bfe_u32 v%d, v0, 2, 2" % v.t0)
    e("v_lshlrev_b32 v%d, 12, v%d" % (v.t0, v.t0))
    e("v_and_b32 v%d, 3, v0" % v.t1)
    e("v_lshl_add_u32 v%d, v%d, 4, v%d" % (v.t0, v.t1, v.t0))
    e("v_and_b32 v%d, 48, v0" % v.t1)
    e("v_lshl_add_u32 v%d, v%d, 2, v%d" % (v.t0, v.t1, v.t0))
    e("v_bfe_u32 v%d, v0, 6, 2" % v.t1)
    e("v_lshl_add_u32 v%d, v%d, 14, v%d" % (v.vd0, v.t1, v.t0))
    e("v_add_u32 v%d, 0x10000, v%d" % (v.vd1, v.vd0))
    e("s_setprio %s" % OPT.get("hprio", "3"))
    e("s_branch L_common")
    lab("L_mainpro")
    for b in (s.sq, s.kA, s.kB, s.vA, s.vB):
        e("s_mov_b64 %s, s[0:1]" % sr(b, 2))
        e("s_mov_b32 s%d, 0" % (b + 2))
        e("s_mov_b32 s%d, 0x20000" % (b + 3))
    for r in (v.kd0, v.kd1, v.vd0, v.vd1, v.fo):
        e("v_mov_b32 v%d, 0" % r)
    emit(headmap())
    emit(flag_init())
    e("s_waitcnt lgkmcnt(0)")
    emit(far_load())
    lab("L_common")
    e("s_lshr_b32 s%d, s%d, 6" % (s.wave, s.wave))
    e("v_and_b32 v%d, 63, v0" % L)
    e("v_and_b32 v%d, 7, v0" % v.t0)
    e("v_mul_u32_u24 v%d, 0x104, v%d" % (v.t0, v.t0))
    e("v_add_u32 v%d, %d, v%d" % (v.pra, PRGB, v.t0))
    e("v_add_u32 v%d, 0x1000, v%d" % (v.prga, v.prga))
    mark("prebar")
    e("s_barrier")
    if SPIN == "postbar":
        e("s_memrealtime s[%d:%d]" % (s.stp, s.stp + 1))
    e("s_cmp_lt_u32 s%d, 4" % s.wave)
    e("s_cbranch_scc1 L_common2")
    QH = qtile(4) + qtile(5)
    C2 = (QLATE if QLC == 2 else []) + (QH if QE == 2 else []) + chunk(0) + (QLATE if QLC == 3 else [])
    emit(FLAG + (QH if QE == 1 else []) + chunk(1, True) + STEP_ADV + (C2 if OPT.get("c2early") else []))
    lab("L_common2")
    mark("bar")
    e("v_bfe_u32 v%d, v%d, 4, 1" % (v.t0, L))
    e("v_lshlrev_b32 v%d, 13, v%d" % (v.t0, v.t0))
    e("v_bfe_u32 v%d, v%d, 1, 1" % (v.t1, L))
    e("v_lshl_add_u32 v%d, v%d, 12, v%d" % (v.t0, v.t1, v.t0))
    e("v_and_b32 v%d, 1, v%d" % (v.t1, L))
    e("v_lshl_add_u32 v%d, v%d, 9, v%d" % (v.t0, v.t1, v.t0))
    e("v_bfe_u32 v%d, v%d, 2, 2" % (v.t1, L))
    e("v_lshl_add_u32 v%d, v%d, 6, v%d" % (v.t0, v.t1, v.t0))
    e("v_lshrrev_b32 v%d, 5, v%d" % (v.t1, L))
    e("v_and_b32 v%d, 3, v%d" % (v.t2, L))
    e("v_xor_b32 v%d, v%d, v%d" % (v.t1, v.t1, v.t2))
    e("v_lshl_add_u32 v%d, v%d, 4, v%d" % (v.ka0r, v.t1, v.t0))
    e("v_xor_b32 v%d, 32, v%d" % (v.ka1r, v.ka0r))
    e("v_lshrrev_b32 v%d, 5, v%d" % (v.t0, L))
    e("v_lshlrev_b32 v%d, 12, v%d" % (v.t0, v.t0))
    e("v_bfe_u32 v%d, v%d, 2, 2" % (v.t1, L))
    e("v_lshl_add_u32 v%d, v%d, 6, v%d" % (v.t0, v.t1, v.t0))
    e("v_bfe_u32 v%d, v%d, 4, 1" % (v.t1, L))
    e("v_lshl_add_u32 v%d, v%d, 5, v%d" % (v.t0, v.t1, v.t0))
    e("v_lshl_add_u32 v%d, v%d, 3, v%d" % (v.t0, v.t2, v.t0))
    e("v_add_u32 v%d, 0x800, v%d" % (v.var, v.t0))
    e("s_mov_b32 s%d, 0x%x" % (s.thr, f2u(THRESH)))
    e("v_mul_u32_u24 v%d, 0x104, v%d" % (v.t1, v.t2))
    e("v_add_u32 v%d, %d, v%d" % (v.rdya, RDYB, v.t1))
    e("s_mov_b32 s%d, 0x8000" % s.guard)
    e("v_mov_b32 v%d, 0" % v.rdy)
    e("s_waitcnt lgkmcnt(0)")
    e("s_add_u32 s%d, s%d, s%d" % (s.t0, Fa + 0, s.hoff))
    e("s_add_u32 s%d, s%d, s%d" % (s.so, s.out, s.t0))
    e("s_addc_u32 s%d, s%d, 0" % (s.so + 1, s.out + 1))
    e("s_mov_b32 s%d, s%d" % (s.so + 2, Fa + 1))
    e("s_mov_b32 s%d, 0x20000" % (s.so + 3))
    e("s_and_b32 s%d, s%d, 0xff" % (s.n, N + 4))
    e("s_bfe_u32 s%d, s%d, 0x40008" % (s.t3, Fa + 2))
    e("s_cbranch_scc1 L_work")
    e("v_mov_b32 v%d, %d" % (v.prg, BIG))
    e(PRGW)
    e("s_cmp_lt_u32 s%d, 4" % s.wave)
    e("s_cbranch_scc1 L_fin")
    e("s_branch L_presig")
    lab("L_work")
    mark("work")
    for r in range(0, 64, 2):
        e("v_pk_mov_b32 %s, 0, 0" % vr(v.O + r, 2))
    e("s_and_b32 s%d, s%d, 0xff" % (s.U, Fa + 2))
    e("s_bfe_u32 s%d, s%d, 0x4000c" % (s.inc, Fa + 2))
    e("s_and_b32 s%d, s%d, 0xfffff" % (s.reg, Fa + 4))
    e("s_bfe_u32 s%d, s%d, 0x80010" % (s.t0, Fa + 2))
    e("s_sub_u32 s%d, s%d, 1" % (s.t0, s.t0))
    e("v_lshrrev_b32 v%d, 5, v%d" % (v.t0, L))
    e("v_lshlrev_b32 v%d, 2, v%d" % (v.t0, v.t0))
    e("v_sub_u32 v%d, s%d, v%d" % (v.t0, s.t0, v.t0))
    e("v_mov_b32 v%d, 0xff800000" % v.t1)
    for r in range(16):
        cst = 8 * (r // 4) + r % 4
        e("v_subrev_u32 v%d, %d, v%d" % (v.B + r, cst, v.t0))
        e("v_ashrrev_i32 v%d, 31, v%d" % (v.B + r, v.B + r))
        e("v_and_b32 v%d, v%d, v%d" % (v.B + r, v.t1, v.B + r))
    e("s_bfe_u32 s%d, s%d, 0x20014" % (s.t0, Fa + 4))
    e("s_lshl_b32 s%d, s%d, 10" % (s.t0, s.t0))
    e("s_bfe_u32 s%d, s%d, 0x10016" % (s.t1, Fa + 4))
    e("s_lshl_b32 s%d, s%d, 15" % (s.t1, s.t1))
    e("s_add_u32 s%d, s%d, s%d" % (s.t0, s.t0, s.t1))
    e("s_add_u32 s%d, s%d, %d" % (s.koff, s.t0, QBASE))
    e("v_add_u32 v%d, s%d, v%d" % (v.t2, s.koff, v.ka0r))
    e("v_add_u32 v%d, s%d, v%d" % (v.t3, s.koff, v.ka1r))
    e("s_cmp_lg_u32 s%d, 1" % s.t3)
    e("s_cselect_b32 s%d, 1, 0" % s.m1)
    e("s_bfe_u32 s%d, s%d, 0x2001a" % (s.t0, Fa + 4))
    e("s_lshl_b32 s%d, s%d, 15" % (s.astep, s.t0))
    e("s_bfe_u32 s%d, s%d, 0x10019" % (s.t2, Fa + 4))
    e("s_bfe_u32 s%d, s%d, 0x10018" % (s.t0, Fa + 4))
    e("s_lshl_b32 s%d, s%d, 10" % (s.t0, s.t0))
    e("s_mul_i32 s%d, s%d, s%d" % (s.t1, s.t0, s.m1))
    e("s_sub_u32 s%d, s%d, s%d" % (s.t0, s.t0, s.t1))
    e("s_lshl_b32 s%d, s%d, 15" % (s.voff, s.t2))
    e("s_add_u32 s%d, s%d, s%d" % (s.koff, s.voff, s.t0))
    e("s_add_u32 s%d, s%d, 0x8000" % (s.voff, s.voff))
    e("v_add_u32 v%d, s%d, v%d" % (v.ka0r, s.t1, v.ka0r))
    e("v_add_u32 v%d, s%d, v%d" % (v.ka1r, s.t1, v.ka1r))
    e("s_bfe_u32 s%d, s%d, 0x2001c" % (s.t0, Fa + 2))
    for j in (3, 2, 1, 0):
        e("s_add_u32 s%d, s%d, %d" % (s.col, s.t0, j))
        e("s_and_b32 s%d, s%d, 3" % (s.col, s.col))
        e("s_lshl_b32 s%d, s%d, 8" % (s.col, s.col))
        e("s_add_u32 s%d, s%d, s%d" % (s.col, s.col, s.t1))
        e("v_add_u32 v%d, s%d, v%d" % (v.var + j, s.col, v.var))
    emit(vaddr() + kaddr())
    e("s_and_b32 s%d, s%d, 0xff" % (s.t0, Fa + 3))
    e("v_mov_b32 v%d, s%d" % (v.prg, s.t0))
    e("s_bfe_u32 s%d, s%d, 0x80010" % (s.need, Fa + 3))
    e("s_cmp_lt_u32 s%d, 4" % s.wave)
    e("s_cbranch_scc1 L_sig0")
    e(PRGW)
    lab("L_presig")
    mark("presig")
    emit(([] if OPT.get("c2early") else C2) + (QH if QE == 0 else []) + chunk(1) + STEP_ADV)
    e("s_mov_b32 s%d, 4" % s.iss)
    mark("c3")
    stamp()
    e("s_cmp_eq_u32 s%d, 0" % s.t3)
    e("s_cbranch_scc1 L_hdone")
    emit(sync_call("L_head"))
    lab("L_sig0")
    mark("msetup")
    e("s_bfe_u32 s%d, s%d, 0x80008" % (s.t0, Fa + 3))
    e("s_sub_u32 s%d, s%d, s%d" % (s.t0, s.t0, s.m1))
    e("s_lshl_b32 s%d, s%d, 2" % (s.t0, s.t0))
    e("s_add_u32 s%d, s%d, L_cnt-L_pc-4" % (s.t0, s.t0))
    e("v_mov_b32 v%d, s%d" % (v.fo, s.t0))
    e("s_lshl_b32 s%d, s%d, 8" % (s.t0, s.wave))
    e("s_add_u32 m0, s%d, %d" % (s.t0, PRGB))
    stamp()
    emit(poll_rdy())
    mark("sig0")
    stamp()
    lab("L_head")
    qr = [kread(t, v.Q).replace("v%d " % v.ka0, "v%d " % v.t2).replace("v%d " % v.ka1, "v%d " % v.t3) for t in range(8)]
    kr = [kread(t, v.KF) for t in range(8)]
    for t in range(7):
        emit([qr[t], kr[t]])
    e("s_add_u32 s%d, s%d, s%d" % (s.t0, s.koff, s.astep))
    e("s_mul_i32 s%d, s%d, s%d" % (s.koff, s.t0, s.m1))
    e("s_waitcnt lgkmcnt(12)")
    e(QK0)
    emit([qr[7], kr[7], PRGW])
    for t in range(1, 8):
        e("s_waitcnt lgkmcnt(%d)" % (15 - 2 * t + (1 if t >= 2 else 0)))
        e(qk(t))
        if t == 1:
            e(RDYR)
            emit(kaddr())
            emit(adv(s.koff))
        if t == 2:
            e("v_and_b32 v%d, 31, v%d" % (v.t2, L))
            e("v_lshlrev_b32 v%d, 12, v%d" % (v.t2, v.t2))
            e("v_sub_u32 v%d, s%d, v%d" % (v.t2, Fa + 1, v.t2))
            e("v_ashrrev_i32 v%d, 31, v%d" % (v.t2, v.t2))
            e("v_and_b32 v%d, 0xff800000, v%d" % (v.t2, v.t2))
        if t == 3:
            e("s_bfe_u32 s%d, s%d, 0x80008" % (s.t0, Fa + 3))
            e("v_mov_b32 v%d, s%d" % (v.prg, s.t0))
            e("s_mov_b32 s%d, s%d" % (s.need, Fa + 6))
    e("s_cmp_lt_u32 s%d, 4" % s.wave)
    e("s_waitcnt lgkmcnt(0)")
    e("s_cbranch_scc0 L_head2")
    emit(poll_rdy())
    emit(kr)
    emit(kaddr())
    lab("L_head2")
    if OPT.get("lowh"):
        e("s_setprio 0")
    e("s_lshr_b32 s%d, s%d, 24" % (s.need, Fa + 3))
    e("s_nop 7")
    e("v_max3_f32 v%d, v%d, v%d, v%d" % (v.t0, v.S, v.S + 1, v.S + 2))
    e("v_max3_f32 v%d, v%d, v%d, v%d" % (v.t1, v.S + 3, v.S + 4, v.S + 5))
    for r in range(6, 14, 4):
        e("v_max3_f32 v%d, v%d, v%d, v%d" % (v.t0, v.t0, v.S + r, v.S + r + 1))
        e("v_max3_f32 v%d, v%d, v%d, v%d" % (v.t1, v.t1, v.S + r + 2, v.S + r + 3))
    e("v_max3_f32 v%d, v%d, v%d, v%d" % (v.t0, v.t0, v.S + 14, v.S + 15))
    e("v_max_f32 v%d, v%d, v%d" % (v.t0, v.t0, v.t1))
    e("v_mov_b32 v%d, v%d" % (v.t1, v.t0))
    e(RDYR)
    e("s_nop 0")
    e("v_permlane32_swap_b32 v%d, v%d" % (v.t0, v.t1))
    e("s_nop 1")
    e("v_max_f32 v%d, v%d, v%d" % (v.t0, v.t0, v.t1))
    e("v_fmamk_f32 v%d, v%d, 0x%x, v%d" % (v.nmc, v.t0, f2u(-C_SCALE), v.t2))
    for r in range(16):
        e(F(r))
    emit([ex(i) for i in range(8)] + [add(i) for i in range(1, 7)] + [cvt(0), cvt(1), cvt(2)])
    e("s_cmp_lt_u32 s%d, 4" % s.wave)
    e("s_waitcnt lgkmcnt(0)")
    e("s_cbranch_scc0 L_hlp_in")
    stamp()
    emit(poll_rdy())
    mark("loop")
    stamp()
    e("s_cmp_eq_u32 s%d, 1" % s.m1)
    e("s_cbranch_scc1 L_odd_m")
    out.append(".p2align %s" % OPT.get("al", "4"))
    for _ in range(int(OPT.get("sh", "0"))):
        e("s_nop 0")
    body("even")
    e("s_cbranch_vccnz L_hnd_even")
    body("odd")
    e("s_cbranch_vccz L_even_m")
    emit(poll_rdy())
    e("s_cmp_le_u32 s%d, 1" % s.U)
    e("s_cbranch_scc1 L_ho1")
    e("s_cmp_eq_u32 s%d, 0" % s.m1)
    e("s_cbranch_scc0 L_odd_m")
    e("s_branch L_even_m")
    lab("L_ho1")
    e("s_cmp_eq_u32 s%d, 0" % s.U)
    e("s_cbranch_scc1 L_tail0")
    e("s_cmp_eq_u32 s%d, 0" % s.m1)
    e(QK0M)
    e("s_cbranch_scc1 L_even_a")
    e("s_branch L_odd_a")
    lab("L_hnd_even")
    emit(poll_rdy())
    e("s_cmp_gt_u32 s%d, 1" % s.U)
    e("s_cbranch_scc1 L_odd_m")
    e("s_cmp_eq_u32 s%d, 0" % s.U)
    e("s_cbranch_scc1 L_tailm")
    e(QK0M)
    e("s_branch L_odd_a")
    lab("L_hlp_in")
    mark("hlpin")
    e(PRGW)
    stamp()
    emit(sync_call())
    stamp()
    for t in range(8):
        e(kread(t, v.KF))
    emit(kaddr())
    e("s_waitcnt lgkmcnt(4)")
    e("s_branch L_hnd_hlp")
    if OPT.get("alh"):
        out.append(".p2align %s" % OPT["alh"])
    for _ in range(int(OPT.get("shh", "0"))):
        e("s_nop 0")
    body("hlp")
    lab("L_hnd_hlp")
    e("s_cmp_gt_u32 s%d, 1" % s.U)
    e("s_cbranch_scc1 L_hlp_m")
    e("s_cmp_eq_u32 s%d, 0" % s.U)
    e("s_cbranch_scc1 L_tail")
    e(QK0M)
    e("s_branch L_hlp_a")
    lab("L_tail0")
    e("s_cmp_eq_u32 s%d, 1" % s.m1)
    e("s_cbranch_scc1 L_tailm")
    e("v_add_u32 v%d, 0x400, v%d" % (v.va, v.va))
    lab("L_tailm")
    e("s_bitcmp1_b32 s%d, 31" % (Fa + 4))
    e("s_cbranch_scc1 L_tails")
    for j in range(1, 4):
        e("v_add_u32 v%d, %d, v%d" % (v.va + j, 256 * j, v.va))
    tw, tr0, oo, rl = v.ka1, v.va, v.ka1r, v.X + 2

    def lsum():
        return ["v_mov_b32 v%d, v%d" % (v.t0, v.l), "s_nop 1",
                "v_permlane32_swap_b32 v%d, v%d" % (v.l, v.t0), "s_nop 1",
                "v_add_f32 v%d, v%d, v%d" % (v.l, v.l, v.t0)]

    def st_addr():
        r = ["v_and_b32 v%d, 31, v%d" % (v.t0, L),
             "v_lshrrev_b32 v%d, 5, v%d" % (v.t1, L),
             "v_lshlrev_b32 v%d, 3, v%d" % (v.t1, v.t1),
             "v_and_b32 v%d, 7, v%d" % (v.t2, L),
             "v_lshl_add_u32 v%d, v%d, 4, v%d" % (v.t1, v.t2, v.t1),
             "v_lshl_add_u32 v%d, v%d, 7, v%d" % (v.t0, v.t0, v.t1),
             "v_add_u32 v%d, s%d, v%d" % (tw, s.reg, v.t0)]
        r += ["v_xor_b32 v%d, %d, v%d" % (v.E + c, c * 16, tw) for c in range(8)]
        r += ["v_lshrrev_b32 v%d, 3, v%d" % (v.t0, L),
              "v_xor_b32 v%d, v%d, v%d" % (v.t1, v.t2, v.t0),
              "v_lshlrev_b32 v%d, 4, v%d" % (v.t1, v.t1),
              "v_lshl_add_u32 v%d, v%d, 7, v%d" % (v.t1, v.t0, v.t1),
              "v_add_u32 v%d, s%d, v%d" % (tr0, s.reg, v.t1),
              "v_lshlrev_b32 v%d, 12, v%d" % (v.t0, v.t0),
              "v_lshl_add_u32 v%d, v%d, 4, v%d" % (oo, v.t2, v.t0)]
        return r

    def pack_q(bb, norm=True, pk=True):
        r = []
        for g in range(4):
            c = 4 * bb + g
            o = v.O + 4 * c
            d = v.S + 2 * c
            if norm and not pk:
                r += ["v_mul_f32 v%d, v%d, v%d" % (o + i, o + i, rl) for i in range(4)]
            elif norm:
                r += ["v_pk_mul_f32 %s, %s, %s op_sel_hi:[1,0]" % (vr(o + i, 2), vr(o + i, 2), vr(rl, 2)) for i in (0, 2)]
            r += ["v_cvt_pk_bf16_f32 v%d, v%d, v%d" % (d, o, o + 1),
                  "v_cvt_pk_bf16_f32 v%d, v%d, v%d" % (d + 1, o + 2, o + 3),
                  "ds_write_b64 v%d, %s" % (v.E + c % 8, vr(d, 2))]
        return r

    def rd_half(hh):
        return ["ds_read_b128 %s, v%d offset:%d" % (vr(v.KF + 16 * hh + 4 * k, 4), tr0, k * 1024) for k in range(4)]

    def st_one(hh, k):
        return ["buffer_store_dwordx4 %s, v%d, %s, s%d offen offset:%d %s" % (
                    vr(v.KF + 16 * hh + 4 * k, 4), oo, sr(s.so, 4), s.col + k if k < 3 else s.t1, 128 * hh,
                    STF if hh == 0 else OPT.get("st2", OPT.get("st", "sc1")).replace("+", " ").replace("none", ""))]

    sa = st_addr()
    cols = ["s_mov_b32 s%d, 0" % s.col, "s_mov_b32 s%d, 0x8000" % (s.col + 1),
            "s_mov_b32 s%d, 0x10000" % (s.col + 2), "s_mov_b32 s%d, 0x18000" % s.t1]
    RCP = "v_rcp_f32 v%d, v%d" % (rl, v.l)
    lab("L_tail")
    mark("tail")
    if not OPT.get("nolowt"):
        e("s_setprio 0")
    e("v_mov_b32 v%d, %d" % (v.prg, BIG))
    k = newret()
    vord = [0, 1, 8, 9, 2, 3, 10, 11, 4, 5, 12, 13, 6, 7, 14, 15]
    for i in vord[:12]:
        e(vread(i))
    emit([ex(8), add(7), cvt(3)] + [ex(i) for i in range(9, 16)])
    e("s_cmp_lt_u32 s%d, 4" % s.wave)
    e("s_cbranch_scc0 L_t1")
    e("s_waitcnt vmcnt(0)")
    lab("L_t1")
    for i in vord[12:]:
        e(vread(i))
    e(PRGW)
    emit([add(i) for i in range(8, 16)] + [CMP, cvt(4), "s_mov_b32 s%d, %d" % (s.ret, k), "s_cbranch_vccnz L_resc",
                                           "L_ret%d:" % k, cvt(5), cvt(6), cvt(7), LADD])
    e("s_cmp_lt_u32 s%d, 4" % s.wave)
    e("s_waitcnt lgkmcnt(0)")
    e("s_cbranch_scc0 L_htail")
    lab("L_tail2")
    p0 = pack_q(0, pk=False)
    emit([pv(0)] + lsum() + [RCP])
    emit([pv(4), cols[0]] + sa[0:7])
    emit([pv(1), cols[1]] + sa[7:15])
    emit([pv(5), cols[2]] + sa[15:])
    emit([pv(2), cols[3]] + p0[0:7])
    emit([pv(6)] + p0[7:14])
    emit([pv(3)] + p0[14:21])
    emit([pv(7)] + p0[21:])
    lab("L_tail3")
    stamp(5)
    if OPT.get("stadj"):
        emit(pack_q(1) + rd_half(0) + pack_q(2) + pack_q(3) + rd_half(1))
        for k in range(4):
            emit(["s_waitcnt lgkmcnt(%d)" % (3 - k)] + st_one(0, k) + st_one(1, k))
    else:
        emit(pack_q(1) + rd_half(0))
        p2 = pack_q(2)
        emit(p2[:10] + ["s_waitcnt lgkmcnt(5)"] + st_one(0, 0) + p2[10:] + ["s_waitcnt lgkmcnt(4)"] + st_one(0, 1))
        p3 = pack_q(3)
        emit(p3[:10] + st_one(0, 2) + p3[10:] + st_one(0, 3) + rd_half(1))
        stamp(4)
        for k in range(4):
            emit(["s_waitcnt lgkmcnt(%d)" % (3 - k)] + st_one(1, k))
    k = newret()
    ool.append(["L_tails:"] + [vread(i, 0, True) for i in range(8)]
               + ["v_mov_b32 v%d, %d" % (v.prg, BIG), add(7), "s_waitcnt vmcnt(0)", PRGW, CMP, cvt(3), "s_mov_b32 s%d, %d" % (s.ret, k), "s_cbranch_vccnz L_resc",
                  "L_ret%d:" % k, LADD] + lsum() + [RCP, "s_waitcnt lgkmcnt(1)",
                  pv(0), cols[0]] + sa[0:7] + [pv(1), cols[1]] + sa[7:15] + [pv(2), cols[2]] + sa[15:]
               + [pv(3), cols[3]] + pack_q(0) + ["s_branch L_tail3"])
    lab("L_fin")
    if SPIN:
        mark("st")
        e("s_waitcnt vmcnt(0)")
        mark("end")
        if SPIN == "glob":
            e("s_load_dwordx2 s[98:99], s[0:1], 40")
            e("s_not_b32 s%d, s%d" % (s.t0, s.ws))
            e("v_mov_b32 v%d, s%d" % (v.t1, s.t0))
            e("v_mov_b32 v%d, 0" % v.t0)
            e("s_waitcnt lgkmcnt(0)")
            e("s_cmp_lg_u32 s%d, 0" % s.wave)
            e("s_cbranch_scc1 L_g1")
            e("s_mov_b64 exec, 1")
            e("global_atomic_umax v%d, v%d, s[98:99]" % (v.t0, v.t1))
            e("s_mov_b64 exec, -1")
            lab("L_g1")
        e("s_sub_u32 s%d, s%d, s%d" % (s.t0, s.stp, s.ws))
        e("s_mul_i32 s%d, s%d, %s" % (s.t0, s.t0, OPT.get("amp", "2")))
        if OPT.get("wsel"):
            e("s_lshr_b32 s%d, %s, s%d" % (s.t1, OPT["wsel"], s.wave))
            e("s_and_b32 s%d, s%d, 1" % (s.t1, s.t1))
            e("s_mul_i32 s%d, s%d, s%d" % (s.t0, s.t0, s.t1))
        if OPT.get("rmask"):
            e("s_and_b32 s%d, s2, 15" % s.t1 if OPT.get("hsel") else "s_lshr_b32 s%d, s2, 4" % s.t1)
            e("s_lshr_b32 s%d, %s, s%d" % (s.t1, OPT["rmask"], s.t1))
            e("s_and_b32 s%d, s%d, 1" % (s.t1, s.t1))
            e("s_mul_i32 s%d, s%d, s%d" % (s.t0, s.t0, s.t1))
        e("s_add_u32 s%d, s%d, 3000" % (s.t0, s.t0))
        lab("L_spin")
        e("s_sleep 2")
        e("s_memrealtime s[%d:%d]" % (s.stp, s.stp + 1))
        e("s_waitcnt lgkmcnt(0)")
        e("s_sub_u32 s%d, s%d, s%d" % (s.t1, s.stp, s.ws))
        e("s_cmp_lt_u32 s%d, s%d" % (s.t1, s.t0))
        e("s_cbranch_scc1 L_spin")
        if SPIN == "glob":
            e("global_load_dword v%d, v%d, s[98:99] sc0 sc1" % (v.t1, v.t0))
            e("s_waitcnt vmcnt(0)")
            e("v_readfirstlane_b32 s%d, v%d" % (s.t2, v.t1))
            e("s_not_b32 s%d, s%d" % (s.t2, s.t2))
            lab("L_spin2")
            e("s_sleep 2")
            e("s_memrealtime s[%d:%d]" % (s.stp, s.stp + 1))
            e("s_waitcnt lgkmcnt(0)")
            e("s_sub_u32 s%d, s%d, s%d" % (s.t1, s.stp, s.t2))
            e("s_cmp_lt_u32 s%d, 4000" % s.t1)
            e("s_cbranch_scc1 L_spin2")
    if STAMPS:
        stamp(6)
        e("s_waitcnt vmcnt(0)")
        stamp(7)
        stamp(61, True)
        e("s_getreg_b32 s%d, hwreg(HW_REG_XCC_ID)" % s.stp)
        e("v_writelane_b32 v%d, s%d, 62" % (v.st, s.stp))
        e("s_lshl_b32 s%d, s2, 3" % s.t0)
        e("s_add_u32 s%d, s%d, s%d" % (s.t0, s.t0, s.wave))
        e("s_lshl_b32 s%d, s%d, 8" % (s.t0, s.t0))
        e("v_lshlrev_b32 v%d, 2, v%d" % (v.t0, v.lane))
        e("v_add_u32 v%d, s%d, v%d" % (v.t0, s.t0, v.t0))
        if OPT.get("dbg"):
            e("v_readlane_b32 s%d, v%d, 0" % (s.t0, v.st))
            e("v_readlane_b32 s%d, v%d, 61" % (s.t1, v.st))
            e("v_readlane_b32 s%d, v%d, 1" % (s.t2, v.st))
            e("s_not_b32 s%d, s%d" % (s.t3, s.t0))
            e("v_cmp_ne_u32 vcc, 0, v%d" % v.st)
            e("v_subrev_u32 v%d, s%d, v%d" % (v.t1, s.t2, v.st))
            e("s_nop 1")
            e("v_cndmask_b32 v%d, 0, v%d, vcc" % (v.t1, v.t1))
            e("v_writelane_b32 v%d, s%d, 0" % (v.t1, s.t3))
            e("v_writelane_b32 v%d, s%d, 1" % (v.t1, s.t1))
            e("v_writelane_b32 v%d, s%d, 15" % (v.t1, s.t0))
            e("v_lshlrev_b32 v%d, 2, v%d" % (v.t0, v.lane))
            e("s_cmp_lt_u32 s%d, 4" % s.wave)
            e("s_cselect_b32 s%d, 0xffff, 0x80ff" % s.t0 if False else "s_mov_b32 s%d, 0x80ff" % s.t0)
            e("s_cselect_b32 exec_lo, 0xffff, s%d" % s.t0)
            e("s_mov_b32 exec_hi, 0")
            e("global_atomic_umax v%d, v%d, %s" % (v.t0, v.t1, sr(s.ws, 2)))
        else:
            e("global_store_dword v%d, v%d, %s" % (v.t0, v.st, sr(s.ws, 2)))
    lab("L_end")
    e("s_endpgm")
    for blk in ool:
        emit(blk)
    lab("L_sync")
    e("s_setprio %s" % OPT.get("sprio", "0"))
    e("s_min_u32 s%d, s%d, s%d" % (s.t2, s.need, s.n))
    e("s_cmp_eq_u32 s%d, 0x20000" % s.stepb)
    e("s_cselect_b32 s%d, %s, %s" % (s.t3, OPT.get("lookd", "6"), OPT.get("look", "2")))
    e("s_cselect_b32 s%d, %s, %s" % (s.chk, OPT.get("ward", "5"), OPT.get("war", "4")))
    e("s_add_u32 s%d, s%d, s%d" % (s.t3, s.t2, s.t3))
    e("s_min_u32 s%d, s%d, s%d" % (s.t3, s.t3, s.n))
    lab("L_svc")
    e("ds_read_b32 v%d, v%d" % (v.t1, v.pra))
    e(RDYR)
    e("s_sub_i32 s%d, s%d, s%d" % (s.t1, s.iss, s.chk))
    e("s_cmp_gt_u32 s%d, s%d" % (s.iss, s.t3))
    e("s_waitcnt lgkmcnt(0)")
    e("s_cbranch_scc0 L_svc1")
    e("v_cmp_ge_u32 vcc, s%d, v%d" % (s.t2, v.rdy))
    e("s_cbranch_vccz L_svcx")
    e("s_cmp_gt_u32 s%d, s%d" % (s.iss, s.n))
    e("s_cbranch_scc1 L_svcs")
    lab("L_svc1")
    e("v_cmp_gt_i32 vcc, s%d, v%d" % (s.t1, v.t1))
    e("s_bitcmp1_b32 s%d, 0" % s.iss)
    e("s_cbranch_scc1 L_svcB")
    e("s_cmp_lt_u32 s%d, 8" % s.iss)
    e("s_cselect_b32 s%d, -1, s%d" % (s.t1, N + 1))
    e("s_and_b32 s%d, s%d, vcc_lo" % (s.t1, s.t1))
    e("s_and_b32 s%d, s%d, 0xff" % (s.t1, s.t1))
    e("s_cbranch_scc1 L_svc2")
    e("s_add_u32 s%d, s%d, 1" % (s.iss, s.iss))
    emit(svc_cap())
    emit(chunk(0))
    e("s_branch L_svc")
    lab("L_svcB")
    e("s_and_b32 s%d, s%d, 0xff" % (s.t1, N + 3))
    e("s_cmp_gt_u32 s%d, s%d" % (s.iss, s.t1))
    e("s_cbranch_scc1 L_svcF")
    e("s_cbranch_vccnz L_svc2")
    emit(svc_cap())
    emit(chunk(1, flag=False))
    lab("L_svcF")
    e("s_add_u32 s%d, s%d, 1" % (s.iss, s.iss))
    emit(FLAG + STEP_ADV)
    e("s_branch L_svc")
    lab("L_svc2")
    e("v_cmp_ge_u32 vcc, s%d, v%d" % (s.t2, v.rdy))
    e("s_cbranch_vccz L_svcx")
    lab("L_svcs")
    emit(spin(OPT.get("slp", "2")))
    e("s_branch L_svc")
    lab("L_svcx")
    e("s_setprio %s" % OPT.get("hprio", "3"))
    SRET_AT = len(out)
    lab("L_htail")
    e("s_mov_b32 s%d, s%d" % (s.need, s.n))
    e("s_bitcmp0_b32 s%d, 24" % (Fa + 2))
    e("s_cbranch_scc1 L_htail2")
    emit(sync_call("L_tail2"))
    lab("L_htail2")
    for i in range(8):
        e(pv(i))
    lab("L_hdone")
    e("s_mov_b32 s%d, s%d" % (s.need, s.n))
    emit(sync_call())
    e("s_sub_u32 s%d, s%d, 1" % (s.t2, s.n))
    e("s_bfe_u32 s%d, s%d, 0x40018" % (s.n, Fa + 2))
    e("s_cbranch_scc0 L_fin")
    e("s_setprio %s" % OPT.get("eprio", "0"))
    e("s_branch L_pe1")
    lab("L_pe0")
    emit(spin(OPT.get("slp", "2")))
    lab("L_pe1")
    e("ds_read_b32 v%d, v%d" % (v.t1, v.pra))
    e("s_waitcnt lgkmcnt(0)")
    e("v_cmp_gt_u32 vcc, s%d, v%d" % (s.t2, v.t1))
    e("s_cbranch_vccnz L_pe0")
    stamp(5)
    l16, l8, xa, cnt = v.ka0, v.ka0r, v.var, v.var + 1
    emit(lsum())
    e("v_lshlrev_b32 v%d, 4, v%d" % (l16, L))
    e("v_lshlrev_b32 v%d, 3, v%d" % (l8, L))
    e("s_lshl_b32 s%d, s%d, 9" % (s.t0, s.wave))
    e("s_add_u32 s%d, s%d, %d" % (s.t0, s.t0, MLBASE - 2048))
    e("v_add_u32 v%d, s%d, v%d" % (xa, s.t0, l8))
    e("ds_write_b64 v%d, %s" % (xa, vr(v.nmc, 2)))
    e("s_cmp_eq_u32 s%d, 2" % s.n)
    e("s_cbranch_scc1 L_sd2")
    for j in (1, 2, 3):
        if j == 2:
            lab("L_sd2")
        e("s_and_b32 s%d, s%d, 0xffffff" % (s.t0, Fa + 4 + j))
        e("v_add_u32 v%d, s%d, v%d" % (xa, s.t0, l16))
        for k in range(4):
            e("ds_write_b128 v%d, %s offset:%d" % (xa, vr(v.O + 16 * j + 4 * k, 4), k * 1024))
    e("s_lshr_b32 s%d, s%d, 30" % (s.t0, Fa + 2))
    e("s_lshl_b32 s%d, s%d, 2" % (s.t0, s.t0))
    e("s_add_u32 s%d, s%d, %d" % (s.t0, s.t0, CNTB))
    e("v_mov_b32 v%d, s%d" % (cnt, s.t0))
    e("v_mov_b32 v%d, 1" % v.t3)
    e("s_mov_b64 exec, 1")
    e("ds_add_u32 v%d, v%d" % (cnt, v.t3))
    e("s_mov_b64 exec, -1")
    emit(st_addr())
    e("v_add_u32 v%d, s%d, v%d" % (xa, s.reg, l16))
    for j in range(3):
        e("s_lshr_b32 s%d, s%d, 24" % (s.t0, Fa + 5 + j))
        e("s_lshl_b32 s%d, s%d, 9" % (s.t0, s.t0))
        e("s_add_u32 s%d, s%d, %d" % (s.t0, s.t0, MLBASE))
        e("v_add_u32 v%d, s%d, v%d" % (v.P + j, s.t0, l8))
    e("s_branch L_poll1")
    lab("L_poll")
    emit(spin())
    lab("L_poll1")
    e("ds_read_b32 v%d, v%d" % (v.t3, cnt))
    e("s_waitcnt lgkmcnt(0)")
    e("v_cmp_ne_u32 vcc, s%d, v%d" % (s.n, v.t3))
    e("s_cbranch_vccnz L_poll")
    stamp(4)
    for j in range(3):
        e("ds_read_b64 %s, v%d" % (vr(v.X + 2 * j, 2), v.P + j))
    for k in range(12):
        e("ds_read_b128 %s, v%d offset:%d" % (vr(v.KF + 16 + 4 * k, 4), xa, k * 1024))
    RX = v.KF + 16
    f0, f1, f2, f3 = v.X + 8, v.X + 9, v.X + 10, v.X + 11
    e("s_bfe_u32 s%d, s%d, 0x2001c" % (s.col, Fa + 2))
    e("s_lshl_b32 s%d, s%d, 6" % (s.col, s.col))
    e("s_add_u32 s%d, s%d, 0x8000" % (s.col + 1, s.col))
    e("s_add_u32 s%d, s%d, 0x10000" % (s.col + 2, s.col))
    e("s_add_u32 s%d, s%d, 0x18000" % (s.t1, s.col))
    e("s_waitcnt lgkmcnt(12)")
    e("v_min3_f32 v%d, v%d, v%d, v%d" % (v.t3, v.nmc, v.X, v.X + 2))
    e("v_min_f32 v%d, v%d, v%d" % (v.t3, v.t3, v.X + 4))
    e("v_sub_f32 v%d, v%d, v%d" % (f0, v.t3, v.nmc))
    for j, f in enumerate((f1, f2, f3)):
        e("v_sub_f32 v%d, v%d, v%d" % (f, v.t3, v.X + 2 * j))
    for f in (f0, f1, f2, f3):
        e("v_exp_f32 v%d, v%d" % (f, f))
    e("v_mul_f32 v%d, v%d, v%d" % (v.l, v.l, f0))
    e("v_fmac_f32 v%d, v%d, v%d" % (v.l, v.X + 1, f1))
    e("s_cmp_eq_u32 s%d, 2" % s.n)
    e("s_cbranch_scc1 L_mg2")
    e("v_fmac_f32 v%d, v%d, v%d" % (v.l, v.X + 3, f2))
    e("v_fmac_f32 v%d, v%d, v%d" % (v.l, v.X + 5, f3))
    e("v_rcp_f32 v%d, v%d" % (v.t3, v.l))
    e("v_and_b32 v%d, 4, v%d" % (v.t0, L))
    e("v_lshl_add_u32 v%d, v%d, 28, v%d" % (oo, v.t0, oo))
    for f in (f0, f1, f2, f3):
        e("v_mul_f32 v%d, v%d, v%d" % (f, f, v.t3))
    for i in range(16):
        e("v_mul_f32 v%d, v%d, v%d" % (v.O + i, v.O + i, f0))
    for j, f in enumerate((f1, f2, f3)):
        e("s_waitcnt lgkmcnt(%d)" % (8 - 4 * j))
        for i in range(16):
            e("v_fmac_f32 v%d, v%d, v%d" % (v.O + i, RX + 16 * j + i, f))
    e("s_branch L_mg3")
    lab("L_mg2")
    e("v_rcp_f32 v%d, v%d" % (v.t3, v.l))
    e("s_nop 0")
    for f in (f0, f1):
        e("v_mul_f32 v%d, v%d, v%d" % (f, f, v.t3))
    for i in range(32):
        e("v_mul_f32 v%d, v%d, v%d" % (v.O + i, v.O + i, f0))
    e("s_waitcnt lgkmcnt(0)")
    for i in range(32):
        e("v_fmac_f32 v%d, v%d, v%d" % (v.O + i, RX + i, f1))
    emit(pack_q(1, False))
    lab("L_mg3")
    emit(pack_q(0, False) + rd_half(0))
    for k in range(4):
        emit(["s_waitcnt lgkmcnt(%d)" % (3 - k)] + st_one(0, k))
    e("s_branch L_fin")
    lab("L_resc")
    e("v_max3_f32 v%d, v%d, v%d, v%d" % (v.t0, v.X, v.X + 1, v.X + 2))
    for r in range(3, 15, 2):
        e("v_max3_f32 v%d, v%d, v%d, v%d" % (v.t0, v.t0, v.X + r, v.X + r + 1))
    e("v_max3_f32 v%d, v%d, v%d, 0" % (v.t0, v.t0, v.X + 15))
    e("v_mov_b32 v%d, v%d" % (v.t1, v.t0))
    e("s_nop 1")
    e("v_permlane32_swap_b32 v%d, v%d" % (v.t0, v.t1))
    e("s_nop 1")
    e("v_max_f32 v%d, v%d, v%d" % (v.t0, v.t0, v.t1))
    e("v_exp_f32 v%d, -v%d" % (v.t1, v.t0))
    e("v_sub_f32 v%d, v%d, v%d" % (v.nmc, v.nmc, v.t0))
    for r in range(16):
        e("v_sub_f32 v%d, v%d, v%d" % (v.X + r, v.X + r, v.t0))
    e("v_mul_f32 v%d, v%d, v%d" % (v.l, v.l, v.t1))
    for i in range(64):
        e("v_mul_f32 v%d, v%d, v%d" % (v.O + i, v.O + i, v.t1))
    emit(soft_half_plain(0))
    emit(soft_half_plain(1))
    for k, r in enumerate(rets[:-1]):
        e("s_cmp_eq_u32 s%d, %d" % (s.ret, k))
        e("s_cbranch_scc1 %s" % r)
    e("s_branch %s" % rets[-1])
    rl_ = []
    order = [2, 1, 0, 3, 4]
    assert len(srets) == len(order)
    for k in order[:-1]:
        rl_ += ["    s_cmp_eq_u32 s%d, %d" % (s.sret, k), "    s_cbranch_scc1 %s" % srets[k]]
    rl_ += ["    s_branch %s" % srets[order[-1]]]
    out[SRET_AT:SRET_AT] = rl_
    out.append(".p2align 6")
    out.append(".type L_near,@object")
    lab("L_near")
    for ent in near:
        out.append("    .long " + ", ".join("0x%x" % x for x in ent))
    lab("L_far")
    for ent in far:
        out.append("    .long " + ", ".join("0x%x" % x for x in ent))
    lab("L_cnt")
    out.append("    .long " + ", ".join(str(i) for i in range(32)))
    out.append(".size L_near, .-L_near")
    lab("L_codeend")
    out.append("    .fill 512, 4, 0xbf800000")
    out.append('.section .rodata,"a"')
    out.append(".p2align 6")
    out.append(".amdhsa_kernel " + K)
    out.append("  .amdhsa_next_free_vgpr %d" % NV)
    out.append("  .amdhsa_next_free_sgpr %d" % NS)
    out.append("  .amdhsa_accum_offset %d" % NV)
    out.append("  .amdhsa_group_segment_fixed_size 0")
    out.append("  .amdhsa_kernarg_size 56")
    out.append("  .amdhsa_user_sgpr_count 2")
    out.append("  .amdhsa_user_sgpr_kernarg_segment_ptr 1")
    out.append("  .amdhsa_system_sgpr_workgroup_id_x 1")
    out.append(".end_amdhsa_kernel")
    txt = "\n".join(out) + "\n"
    txt = txt.replace("PFSTRIDE", OPT.get("pf", "32"))
    import subprocess, tempfile, os
    tmp = tempfile.mkdtemp()
    open(tmp + "/a.s", "w").write(txt.replace("offset:L_near-L_pc", "offset:0x100").replace("offset:L_far-L_pc", "offset:0x100"))
    subprocess.run(["clang", "-x", "assembler", "-target", "amdgcn-amd-amdhsa", "-mcpu=gfx950", "-c", tmp + "/a.s", "-o", tmp + "/a.o"], check=True)
    sy = {}
    for ln in subprocess.run(["llvm-objdump", "-t", tmp + "/a.o"], capture_output=True, text=True).stdout.splitlines():
        p = ln.split()
        if len(p) >= 5 and p[-1].startswith("L_"):
            sy[p[-1]] = int(p[0], 16)
    assert sy["L_codeend"] - sy["L_pc"] <= 512 * int(OPT.get("pf", "32")) + 128 or STAMPS or SPIN, hex(sy["L_codeend"])
    assert sy["L_codeend"] + 2048 - sy["L_pc"] >= 512 * int(OPT.get("pf", "32"))
    for t in ("L_near", "L_far"):
        txt = txt.replace("offset:%s-L_pc" % t, "offset:0x%x" % (sy[t] - sy["L_pc"]))
        txt = txt.replace(t + ":\n", t + ":\n.if (%s-L_pc) != 0x%x\n.error \"table offset\"\n.endif\n" % (t, sy[t] - sy["L_pc"])) if False else txt
    return txt


if __name__ == "__main__":
    args = [a for a in sys.argv[1:] if a.endswith(".s")]
    path = args[0] if args else "cdna_kernels/%s.s" % NAME
    open(path, "w").write(gen())
    print("wrote", path)
```

```python
import sys, struct, math

NAME = "standalone__varlen_attn_packed__ragged"
CU = [0, 289, 520, 939, 1289, 1402, 1666, 1973, 2275]
LEN = [CU[i + 1] - CU[i] for i in range(8)]
T_TOT = 2275
ROWB = 4096
TENSOR_BYTES = T_TOT * ROWB

OPT = {}
for a in sys.argv[1:]:
    if a.startswith("--"):
        k, _, val = a[2:].partition("=")
        OPT[k] = val if val else "1"
STAMPS = "stamps" in OPT or "lite" in OPT
LITE = "lite" in OPT
LDF_Q = OPT.get("ldq", "none").replace("+", " ").replace("none", "")
LDF_K = OPT.get("ldk", "none").replace("+", " ").replace("none", "")
STF = OPT.get("st", "none").replace("+", " ").replace("none", "")
FLY = int(OPT.get("fly", "4"))

HEADER = """; Kernarg layout for this problem (56 bytes, ptrs only, base s[0:1]):
;   offset   0: d_in[0] q  shape=(2275, 16, 128) dtype=bfloat16 strides=(4096, 256, 2) contiguous=True
;   offset   8: d_in[1] k  shape=(2275, 16, 128) dtype=bfloat16 strides=(4096, 256, 2) contiguous=True
;   offset  16: d_in[2] v  shape=(2275, 16, 128) dtype=bfloat16 strides=(4096, 256, 2) contiguous=True
;   offset  32: d_out     shape=(2275, 16, 128) dtype=bfloat16 (2 bytes/elem)
"""


def f2u(x):
    return struct.unpack("<I", struct.pack("<f", x))[0]


def cdiv(a, b):
    return (a + b - 1) // b


LDS_TOTAL = 163840
QBASE = 98304
XTRA = 131072
MLBASE = XTRA + 16384
PRGB = XTRA + 7 * 4096 + 2048
RDYB = XTRA + 6 * 4096 + 3072
CNTB = XTRA + 6 * 4096 + 2048
BIG = 0x4000

ROLES = [
    (2, 0, 4), (2, 4, 4), (2, 8, 3), (2, 11, 3),
    (3, 0, 5), (3, 5, 5),
    (5, 0, 6),
    (6, 0, 5), (6, 5, 5), (7, 0, 5), (7, 5, 5), (0, 0, 5), (0, 5, 5),
    (1, 0, 6),
    ("dual", (3, 10, 1), (5, 6, 3)),
    ("dual", (1, 6, 2), (4, 0, 4)),
]


def nrec(rows):
    return (rows - 1) * ROWB + 256 if rows > 0 else 0


def build_tables():
    near, far, desc = [], [], []
    for ri, role in enumerate(ROLES):
        W = [None] * 8
        groups = []
        if role[0] == "dual":
            (sa, ta, na), (sb, tb, nb) = role[1], role[2]
            rowA, lenA, rowB, lenB, step = CU[sa], LEN[sa], CU[sb], LEN[sb], 32
            n_it = max(cdiv(lenA, 32), cdiv(lenB, 32))
            tiles = [(sa, ta + i, 0) for i in range(na)] + [(sb, tb + i, 1) for i in range(nb)]
            nq = len(tiles)
            for i in range(4):
                sq, tl, st = tiles[i]
                W[i] = dict(seq=sq, tile=tl, ql=i, type=2, stream=st, its=list(range(cdiv(LEN[sq], 32))), hastail=1)
            for i in range(4, nq):
                sq, tl, st = tiles[i]
                nb_ = cdiv(LEN[sq], 32)
                W[i + 2] = dict(seq=sq, tile=tl, ql=i, type=3, stream=st, its=list(range(nb_)), hastail=1,
                                G=1, reg=XTRA + 4096 * i)
        else:
            sa, t0, nq = role
            rowA, lenA, rowB, lenB, step = CU[sa], LEN[sa], CU[sa] + 32, LEN[sa] - 32, 64
            nkv = cdiv(lenA, 32)
            n_it = cdiv(nkv, 2)
            tiles = [(sa, t0 + i, 0) for i in range(nq)]
            for i in range(min(nq, 4)):
                W[i] = dict(seq=sa, tile=t0 + i, ql=i, type=1, stream=0, its=list(range(nkv)), hastail=1)
            nh = 4 // (nq - 4) if nq > 4 else 0
            for i in range(4, nq):
                ws = [4 + (i - 4) * nh + k for k in range(nh)]
                for k, w in enumerate(ws):
                    blocks = [p for p in range(nkv) if p % nh == k]
                    W[w] = dict(seq=sa, tile=t0 + i, ql=i, type=3, stream=k % 2, its=[p // 2 for p in blocks],
                                hastail=int((nkv - 1) in blocks))
                groups.append(ws)
        qrows = [CU[sq] + 32 * tl for sq, tl, _ in tiles] + [0xfff] * (6 - nq)
        near.append([rowA * ROWB, nrec(lenA), rowB * ROWB, nrec(lenB), step * ROWB | (2 * n_it + 1),
                     qrows[0] | qrows[1] << 16, qrows[2] | qrows[3] << 16, qrows[4] | qrows[5] << 16])
        areas = [((n_it + 1) % 4) * 32768, ((n_it + 2) % 4) * 32768]
        recv = [areas[0], areas[0] + 12288, areas[1], areas[1] + 12288]
        for i in range(4):
            if W[i]:
                W[i]["reg"] = XTRA + 4096 * i
        for gi, g in enumerate(groups):
            G = len(g)
            for k, w in enumerate(g):
                W[w]["reg"] = recv[w - 4]
                W[w]["G"], W[w]["k"], W[w]["gi"] = G, k, gi
                if G == 4:
                    W[w]["send"] = [recv[g[(j + k) % 4] - 4] + (j - 1) * 4096 for j in (1, 2, 3)]
                    W[w]["src"] = [g[(k - j) % 4] for j in (1, 2, 3)]
                else:
                    o = g[1 - k]
                    W[w]["send"] = [0, recv[o - 4], recv[o - 4] + 4096]
                    W[w]["src"] = [o, o, o]
        for wi in range(8):
            w = W[wi]
            desc.append(w)
            if w is None:
                far.append([0] * 8)
                continue
            sq, its, typ, sc = w["seq"], w["its"], w["type"], w["stream"]
            tail = LEN[sq] % 32
            orow = CU[sq] + 32 * w["tile"]
            onr = min(32, CU[sq + 1] - orow)
            assert onr > 0 and tail > 0
            U = len(its) - 1
            a0, st = its[0], its[1] - its[0]
            assert all(its[i] == a0 + st * i for i in range(len(its))) and st <= 2 and a0 <= 1 and U >= 1
            if typ == 1:
                inc, prg0, prg1, need1, need2 = 1, 2, 4, 0, 2
            elif typ == 2:
                inc, prg0, prg1, need1, need2 = 2, 2, 4 + sc, sc, 4 + sc
            else:
                inc, prg0, prg1, need1, need2 = 2 * st, 2 * a0 + sc + 2, 2 * (a0 + 1) + sc + 2, 3, 2 * (a0 + st) + sc
            w.update(U=U, a0=a0, st=st, inc=inc, prg0=prg0, prg1=prg1, need1=need1, need2=need2, n_it=n_it)
            hm = 0
            if typ != 3:
                nlast = 2 * n_it + 1
                pub = prg0
                w["pubs"] = []
                for b in range(U):
                    val = prg1 + inc * (b + 1)
                    want = pub < nlast - 5 and (typ == 2 or b % 2 == 1 or OPT.get("puball"))
                    if groups and pub < nlast - 1 <= val:
                        want = True
                    if typ == 2 or U - 1 - b <= 1:
                        hm |= 1 << (U - 1 - b)
                    if want and OPT.get("nodpub"):
                        hm |= 0x10001 << (U - 1 - b)
                        pub = val
                        w["pubs"].append(b)
            G, k, gi = w.get("G", 0), w.get("k", 0), w.get("gi", 0)
            rot = k * (4 // G) if G > 1 else 0
            ent = [orow * ROWB, nrec(onr),
                   U | typ << 8 | inc << 12 | (tail if w["hastail"] else 32) << 16 | G << 24 | rot << 28 | gi << 30,
                   prg0 | prg1 << 8 | need1 << 16 | need2 << 24,
                   w["reg"] | w["ql"] << 20 | (1 - sc) << 24 | a0 << 25 | st << 26]
            if G > 1:
                ent += [w["send"][j] | ((w["src"][j] - 4) << 24) for j in range(3)]
            if typ != 3:
                ent += [hm, prg1 - need2]
            ent += [0] * (8 - len(ent))
            far.append(ent)
    return near, far, desc


class R:
    pass


v = R()
v.kd0, v.kd1, v.vd0, v.vd1 = 1, 2, 3, 4
v.ka0r, v.ka1r = 5, 6
v.ka0, v.ka1 = 7, 8
v.rdya, v.rdy = 9, 10
v.lane = 11
v.nmc, v.l = 12, 13
v.ps = 14
v.t0, v.t1, v.t2, v.t3 = 15, 16, 17, 18
v.pf = 19
v.st = 20
v.prga, v.prg = 21, 22
v.fo = 23
v.pra = 0
v.Q = 24
v.O = 56
v.S = 120
v.B = 136
v.KF = 152
v.VF = 184
v.X = 216
v.E = 232
v.P = 240
v.var = 248
v.va = 252
NV = 256

s = R()
s.q, s.k, s.vv, s.cu, s.out = 4, 6, 8, 10, 12
s.near = 16
s.far = 24
s.kA, s.kB, s.vA, s.vB, s.sq, s.so = 32, 36, 40, 44, 48, 52
s.wave, s.hoff = 56, 57
s.n = 58
s.thr = 59
s.soff = 60
s.dslot = 61
s.U = 62
s.mu = 63
s.koff, s.voff = 64, 65
s.need, s.chk = 66, 67
s.t0, s.t1, s.t2, s.t3 = 68, 69, 70, 71
s.pc = 72
s.stp = 74
s.ws = 76
s.sti = 78
s.ret = 79
s.foff = 80
s.reg = 81
s.m1 = 82
s.lnd = 83
s.inc = 84
s.col = 85
s.astep = 88
s.sret = 89
s.guard = 90
s.iss = 91
s.d0, s.rdw = 92, 93
s.stepb = 97
NS = 100

C_SCALE = (128 ** -0.5) * math.log2(math.e)
CL = "0x%x" % f2u(C_SCALE)
THRESH = 4096.0

out = []


def e(x):
    out.append("    " + x)


def lab(x):
    out.append(x + ":")


def vr(b, n):
    return "v[%d:%d]" % (b, b + n - 1)


def sr(b, n):
    return "s[%d:%d]" % (b, b + n - 1)


def emit(lst):
    for x in lst:
        if x is None:
            continue
        if x.endswith(":"):
            out.append(x)
        else:
            e(x)


def stamp_l(k=None, real=False):
    if not STAMPS or (LITE and k not in (7, 61)):
        return []
    if OPT.get("rt") and k is None and not real:
        return stamp_l(None, True) + stamp_l(None, "c")
    real = real is True
    r = ["%s s[%d:%d]" % ("s_memrealtime" if real else "s_memtime", s.stp, s.stp + 1), "s_waitcnt lgkmcnt(0)"]
    if k is None:
        r += ["s_mov_b32 s%d, m0" % (s.stp + 1), "s_mov_b32 m0, s%d" % s.sti, "s_nop 0",
              "v_writelane_b32 v%d, s%d, m0" % (v.st, s.stp),
              "s_add_u32 s%d, s%d, 1" % (s.sti, s.sti), "s_mov_b32 m0, s%d" % (s.stp + 1)]
    else:
        r += ["v_writelane_b32 v%d, s%d, %d" % (v.st, s.stp, k)]
    return r


def stamp(k=None, real=False):
    emit(stamp_l(k, real))


SPIN = OPT.get("spin")


def mark(name):
    if SPIN == name:
        e("s_memrealtime s[%d:%d]" % (s.stp, s.stp + 1))
        e("s_waitcnt lgkmcnt(0)")


def kread(t, dst, st=0):
    return "ds_read_b128 %s, v%d offset:%d" % (vr(dst + 4 * t, 4), v.ka1 if t % 2 else v.ka0,
                                               (t // 4) * 16384 + ((t // 2) % 2) * 256 + st * 1024)


def vread(i, st=0):
    t, bb, ss = i // 8, (i // 2) % 4, i % 2
    reg = v.VF + (t * 4 + bb) * 4 + ss * 2
    return "ds_read_b64_tr_b16 %s, v%d offset:%d" % (vr(reg, 2), v.va + bb, (4 * t + 2 * ss) * 4096 + st * 1024)


def ld(kv, col, half, so):
    srd = {("K", 0): s.kA, ("K", 1): s.kB, ("V", 0): s.vA, ("V", 1): s.vB}[(kv, col)]
    off = (2048 if kv == "V" else 0) + (1024 if col == 0 else 0)
    vo = {("K", 0): v.kd0, ("K", 1): v.kd1, ("V", 0): v.vd0, ("V", 1): v.vd1}[(kv, half)]
    return "buffer_load_dwordx4 v%d, %s, s%d offen %s%s lds" % (vo, sr(srd, 4), so, "offset:%d " % off if off else "", LDF_K)


STEP_ADV = ["s_add_u32 s%d, s%d, s%d" % (s.soff, s.soff, s.stepb),
            "s_add_u32 s%d, s%d, 0x8000" % (s.dslot, s.dslot),
            "s_and_b32 s%d, s%d, 0x1ffff" % (s.dslot, s.dslot)]


FLAG = ["s_mov_b32 m0, s%d" % s.rdw,
        "v_add_u32 v%d, 4, v%d" % (v.fo, v.fo),
        "global_load_lds_dword v%d, %s" % (v.fo, sr(s.pc, 2))]


def chunk(col, k_only=False, pace=0, flag=True):
    p = []
    if pace:
        p = ["s_sleep %d" % pace if pace < 16 else "s_nop %d" % (pace - 16)]
    r = []
    for half, m in ((0, "s_mov_b32 m0, s%d" % s.dslot), (1, "s_add_u32 m0, s%d, 0x4000" % s.dslot)):
        r += [m, "s_nop 0"]
        if not k_only:
            r += [ld("V", col, half, s.soff)] + p
        r += [ld("K", col, half, s.soff)] + p
    return r + (FLAG if flag else [])


def qk(t):
    return "v_mfma_f32_32x32x16_bf16 %s, %s, %s, %s" % (vr(v.S, 16), vr(v.KF + 4 * t, 4), vr(v.Q + 4 * t, 4), vr(v.S, 16))


def pv(i):
    t, bb = i // 4, i % 4
    return "v_mfma_f32_32x32x16_bf16 %s, %s, %s, %s" % (
        vr(v.O + 16 * bb, 16), vr(v.VF + (t * 4 + bb) * 4, 4), vr(v.P + 4 * t, 4), vr(v.O + 16 * bb, 16))


def F(r):
    return "v_fmamk_f32 v%d, v%d, %s, v%d" % (v.X + r, v.S + r, CL, v.nmc)


def ex(r):
    return "v_exp_f32 v%d, v%d" % (v.E + r % 8, v.X + r)


def add(r):
    if r == 0:
        return None
    if r == 1:
        return "v_add_f32 v%d, v%d, v%d" % (v.ps, v.E, v.E + 1)
    return "v_add_f32 v%d, v%d, v%d" % (v.ps, v.ps, v.E + r % 8)


def cvt(i):
    return "v_cvt_pk_bf16_f32 v%d, v%d, v%d" % (v.P + i, v.E + (2 * i) % 8, v.E + (2 * i + 1) % 8)


def soft_half_plain(h):
    r = [ex(8 * h + i) for i in range(8)]
    r += [x for x in (add(8 * h + i) for i in range(8)) if x]
    r += [cvt(4 * h + i) for i in range(4)]
    return r


CMP = "v_cmp_lt_f32 vcc, s%d, v%d" % (s.thr, v.ps)
LADD = "v_add_f32 v%d, v%d, v%d" % (v.l, v.l, v.ps)
PRGW = "ds_write_b32 v%d, v%d" % (v.prga, v.prg)
RDYR = "ds_read_b32 v%d, v%d" % (v.rdy, v.rdya)
PRGINC = "v_add_u32 v%d, s%d, v%d" % (v.prg, s.inc, v.prg)
NEEDINC = "s_add_u32 s%d, s%d, s%d" % (s.need, s.need, s.inc)
QK0 = "v_mfma_f32_32x32x16_bf16 %s, %s, %s, 0" % (vr(v.S, 16), vr(v.KF, 4), vr(v.Q, 4))
QK0M = "v_mfma_f32_32x32x16_bf16 %s, %s, %s, %s" % (vr(v.S, 16), vr(v.KF, 4), vr(v.Q, 4), vr(v.B, 16))
rets, srets = [], []


def newret():
    rets.append("L_ret%d" % len(rets))
    return len(rets) - 1


def kaddr():
    return ["v_add_u32 v%d, s%d, v%d" % (v.ka0, s.koff, v.ka0r),
            "v_add_u32 v%d, s%d, v%d" % (v.ka1, s.koff, v.ka1r)]


def vaddr():
    return ["v_add_u32 v%d, s%d, v%d" % (v.va + j, s.voff, v.var + j) for j in range(4)]


def adv(reg):
    return ["s_add_u32 s%d, s%d, s%d" % (reg, reg, s.astep), "s_and_b32 s%d, s%d, 0x1ffff" % (reg, reg)]


def spin(n="1"):
    r = ["s_sleep %s" % n]
    if not OPT.get("nosafe"):
        r += ["s_sub_u32 s%d, s%d, 1" % (s.guard, s.guard), "s_cbranch_scc1 L_end"]
    return r


def sync_call(target=None):
    k = len(srets)
    srets.append(target or "L_sr%d" % k)
    return ["s_mov_b32 s%d, %d" % (s.sret, k), "s_branch L_sync"] + ([] if target else ["L_sr%d:" % k])


_pl = [0]


ool = []


def poll_rdy():
    _pl[0] += 1
    a, b = "L_pa%d" % _pl[0], "L_pb%d" % _pl[0]
    ool.append([a + ":"] + spin() + [RDYR, "s_waitcnt lgkmcnt(0)", "s_branch %s" % b])
    return ["s_min_u32 s%d, s%d, s%d" % (s.t2, s.need, s.n), b + ":",
            "v_cmp_ge_u32 vcc, s%d, v%d" % (s.t2, v.rdy), "s_cbranch_vccnz %s" % a]


def body(kind):
    odd, hlp = kind != "even", kind == "hlp"
    st = 0 if odd else 1
    V = lambda i: vread(i, st)
    K = lambda t: kread(t, v.KF, st)
    W = lambda n: "s_waitcnt lgkmcnt(%d)" % n
    k = newret()
    q = [
        [NEEDINC, V(0), V(1), ex(8), add(7), cvt(3)],
        ["s_mov_b32 s%d, %d" % (s.ret, k), V(2), V(3), ex(9), ex(10)],
        [W(4), V(4), V(5), ex(11), add(8), add(9)],
        ["s_sub_u32 s%d, s%d, 1" % (s.U, s.U), V(6), V(7), ex(12), ex(13)],
        [None, V(8), V(9), ex(14), add(10), add(11)],
        [None, V(10), V(11), ex(15), add(12), add(13)],
        [W(4), V(12), V(13), add(14), add(15), CMP, cvt(4)],
        ["s_cbranch_vccnz L_resc", "L_ret%d:" % k, V(14), V(15), LADD, cvt(5), cvt(6), cvt(7)],
    ]
    p = [
        ["s_nop 0", K(0), K(1), K(2), F(0), F(1), F(2)],
        [None, K(3), ex(0), F(3), F(4), F(5)],
        [None, K(4), ex(1), F(6), F(7), F(8)],
        [W(5), K(5), ex(2), add(1), F(9), F(10)],
        [None, K(6), ex(3), add(2), cvt(0), F(11)],
        [None, K(7), ex(4), add(3), cvt(1), F(12)],
        [W(4), ex(5), ex(6), add(4), F(13)],
        [None, ex(7), add(5), add(6), cvt(2), F(14), F(15)],
    ]
    if odd:
        q[4][0], q[5][0] = adv(s.voff)
        p[4][0], p[5][0] = adv(s.koff)
        va, ka = vaddr(), kaddr()
        p[1].append(va[0])
        p[3].append(va[1])
        p[4].append(va[2])
        p[5].append(va[3])
        p[6].append(ka[0])
        p[7].append(ka[1])
    if not hlp:
        p[0][0] = "s_min_u32 s%d, s%d, s%d" % (s.chk, s.need, s.n)
        p[1][0] = "s_bitcmp1_b32 s%d, s%d" % (s.far + 5, s.U)
        p[2][0] = "s_cselect_b32 s%d, -1, s%d" % (s.chk, s.chk)
        p[2][2:2] = [RDYR]
        p[6][0] = W(3)
        if odd and (not OPT.get("nodpub")):
            q[2].append("v_add_u32 v%d, 8, v%d" % (v.fo, v.fo))
            q[3][1:1] = ["global_load_lds_dword v%d, %s" % (v.fo, sr(s.pc, 2))]
        p[7][3:3] = ["v_cmp_ge_u32 vcc, s%d, v%d" % (s.chk, v.rdy)]
    else:
        q[1].append(PRGINC)
        q[7][4:4] = [PRGW]
        sc = sync_call()
        q[3][1:1] = [sc[0]]
        p[0][0:1] = stamp_l() + sc[1:] + stamp_l()
    lab("L_%s_m" % kind)
    e(QK0)
    lab("L_%s_a" % kind)
    emit(q[0])
    for t in range(1, 8):
        e(qk(t))
        emit(q[t])
    for i in range(8):
        e(pv(i))
        emit(p[i])
    if not hlp:
        stamp()


def gen():
    K = NAME + "_kernel"
    near, far, _ = build_tables()
    PACE = int(OPT.get("pace", "0"))
    out.append(HEADER + "; @launch grid=(256,1,1) block=(512,1,1) lds=%d" % LDS_TOTAL)
    out.append('.amdgcn_target "amdgcn-amd-amdhsa--gfx950"')
    out.append(".text")
    out.append(".globl " + K)
    out.append(".p2align 12")
    out.append(".p2align 8")
    out.append(".type %s,@function" % K)
    lab(K)
    e("s_cmp_ge_u32 s2, 256")
    e("s_cbranch_scc1 L_end")
    if SPIN:
        e("s_memrealtime s[%d:%d]" % (s.ws, s.ws + 1))
        e("s_memrealtime s[%d:%d]" % (s.stp, s.stp + 1))
    e("s_load_dwordx8 s[4:11], s[0:1], 0")
    e("s_load_dwordx2 s[12:13], s[0:1], 32")
    e("s_getpc_b64 %s" % sr(s.pc, 2))
    lab("L_pc")
    e("s_lshr_b32 s%d, s2, 4" % s.t0)
    e("s_lshl_b32 s%d, s%d, 5" % (s.t1, s.t0))
    e("s_add_u32 s%d, s%d, L_near-L_pc" % (s.t1, s.t1))
    e("s_load_dwordx8 %s, %s, s%d" % (sr(s.near, 8), sr(s.pc, 2), s.t1))
    e("v_mul_u32_u24 v%d, PFSTRIDE, v0" % v.t0)
    e("global_load_dword v%d, v%d, %s" % (v.pf, v.t0, sr(s.pc, 2)))
    e("s_branch L_start")
    out.append(".p2align 5")
    out.append(".type L_near,@object")
    lab("L_near")
    for ent in near:
        out.append("    .long " + ", ".join("0x%x" % x for x in ent))
    out.append(".size L_near, .-L_near")
    out.append(".type L_start,@function")
    lab("L_start")
    if STAMPS:
        e("v_mov_b32 v%d, 0" % v.st)
        e("s_mov_b32 s%d, 8" % s.sti)
        e("s_memrealtime s[%d:%d]" % (s.stp, s.stp + 1))
        e("s_memtime s[%d:%d]" % (s.ws, s.ws + 1))
    L, N, Fa = v.lane, s.near, s.far
    e("v_lshrrev_b32 v%d, 6, v0" % v.t0)
    e("v_and_b32 v%d, 63, v0" % L)
    e("v_readfirstlane_b32 s%d, v%d" % (s.wave, v.t0))
    hm_ = OPT.get("hmap", "2")
    if hm_ == "2":
        e("s_and_b32 s%d, s2, 15" % s.t1)
        e("s_lshl_b32 s%d, s%d, 8" % (s.hoff, s.t1))
    elif hm_ == "3":
        e("s_and_b32 s%d, s2, 7" % s.t1)
        e("s_lshl_b32 s%d, s%d, 9" % (s.t1, s.t1))
        e("s_bfe_u32 s%d, s2, 0x10003" % s.t2)
        e("s_mul_i32 s%d, s%d, 0x300" % (s.t2, s.t2))
        e("s_xor_b32 s%d, s%d, s%d" % (s.hoff, s.t1, s.t2))
    else:
        if hm_ == "1":
            e("s_add_u32 s%d, s2, 1" % s.t1)
            e("s_and_b32 s%d, s%d, 7" % (s.t1, s.t1))
        else:
            e("s_and_b32 s%d, s2, 7" % s.t1)
        e("s_lshl_b32 s%d, s%d, 9" % (s.t1, s.t1))
        e("s_bfe_u32 s%d, s2, 0x10003" % s.t2)
        e("s_lshl_b32 s%d, s%d, 8" % (s.t2, s.t2))
        e("s_add_u32 s%d, s%d, s%d" % (s.hoff, s.t1, s.t2))
    e("s_lshl_b32 s%d, s%d, 3" % (s.t0, s.t0))
    e("s_add_u32 s%d, s%d, s%d" % (s.t0, s.t0, s.wave))
    e("s_lshl_b32 s%d, s%d, 5" % (s.t0, s.t0))
    e("s_add_u32 s%d, s%d, L_far-L_pc" % (s.foff, s.t0))
    e("s_cmp_lt_u32 s%d, 4" % s.wave)
    e("s_cbranch_scc1 L_mainpro")
    e("s_and_b32 s%d, s%d, 1" % (s.t0, s.wave))
    e("s_lshl_b32 s%d, s%d, 1" % (s.t0, s.t0))
    e("v_lshrrev_b32 v%d, 5, v%d" % (v.t0, L))
    e("v_add_u32 v%d, s%d, v%d" % (v.t0, s.t0, v.t0))
    e("v_and_b32 v%d, 3, v%d" % (v.t1, L))
    e("v_xor_b32 v%d, v%d, v%d" % (v.t1, v.t1, v.t0))
    e("v_and_b32 v%d, 12, v%d" % (v.t2, L))
    e("v_add_u32 v%d, v%d, v%d" % (v.t0, v.t0, v.t2))
    e("s_bfe_u32 s%d, s%d, 0x10001" % (s.t1, s.wave))
    e("s_lshl_b32 s%d, s%d, 16" % (s.t1, s.t1))
    e("v_lshlrev_b32 v%d, 12, v%d" % (v.t0, v.t0))
    e("v_lshl_add_u32 v%d, v%d, 4, v%d" % (v.t0, v.t1, v.t0))
    e("v_and_b32 v%d, 16, v%d" % (v.t2, L))
    e("v_lshl_add_u32 v%d, v%d, 2, v%d" % (v.t0, v.t2, v.t0))
    e("v_add_u32 v%d, s%d, v%d" % (v.kd0, s.t1, v.t0))
    e("v_add_u32 v%d, 0x80, v%d" % (v.kd1, v.kd0))
    e("s_and_b32 s%d, s%d, 3" % (s.t3, s.wave))
    e("s_lshl_b32 s%d, s%d, 12" % (s.dslot, s.t3))
    e("s_sub_u32 s%d, %d, s%d" % (s.sq + 2, TENSOR_BYTES, s.hoff))
    for b in (s.sq, s.kA, s.kB, s.vA, s.vB):
        e("s_mov_b32 s%d, 0x20000" % (b + 3))
    e("s_mov_b32 s%d, 0" % s.soff)
    e("s_add_u32 s%d, s%d, %d" % (s.d0, s.dslot, QBASE))
    e("s_waitcnt lgkmcnt(0)")
    if STAMPS:
        e("v_writelane_b32 v%d, s%d, 0" % (v.st, s.stp))
        e("v_writelane_b32 v%d, s%d, 1" % (v.st, s.ws))
        stamp(2)
        e("s_load_dwordx2 %s, s[0:1], %d" % (sr(s.ws, 2), 40 if OPT.get("dbg") else 48))
    mark("karg")

    def qtile(i):
        w = N + 5 + i // 2
        r = ["s_and_b32 s%d, s%d, 0xffff" % (s.t0, w) if i % 2 == 0 else "s_lshr_b32 s%d, s%d, 16" % (s.t0, w),
             "s_add_u32 m0, s%d, %d" % (s.d0, (i // 4) * 32768 + (i % 4) * 1024),
             "s_lshl_b32 s%d, s%d, 12" % (s.t0, s.t0),
             "buffer_load_dwordx4 v%d, %s, s%d offen %s lds" % (v.kd0, sr(s.sq, 4), s.t0, LDF_Q),
             "s_add_u32 m0, m0, 0x4000", "s_nop 0",
             "buffer_load_dwordx4 v%d, %s, s%d offen %s lds" % (v.kd1, sr(s.sq, 4), s.t0, LDF_Q)]
        return r
    e("s_add_u32 s%d, s%d, s%d" % (s.sq, s.q, s.hoff))
    e("s_addc_u32 s%d, s%d, 0" % (s.sq + 1, s.q + 1))
    emit(qtile(0))
    e("s_add_u32 s%d, s%d, s%d" % (N + 0, N + 0, s.hoff))
    e("s_add_u32 s%d, s%d, s%d" % (s.kA, s.k, N + 0))
    e("s_addc_u32 s%d, s%d, 0" % (s.kA + 1, s.k + 1))
    e("s_sub_u32 s%d, s%d, 1024" % (s.kA, s.kA))
    e("s_subb_u32 s%d, s%d, 0" % (s.kA + 1, s.kA + 1))
    e("s_add_u32 s%d, s%d, 1024" % (s.kA + 2, N + 1))
    emit(chunk(0, True, flag=False))
    for i in (1, 2, 3):
        emit(qtile(i))
    e("s_add_u32 s%d, s%d, s%d" % (N + 2, N + 2, s.hoff))
    e("s_add_u32 s%d, s%d, s%d" % (s.kB, s.k, N + 2))
    e("s_addc_u32 s%d, s%d, 0" % (s.kB + 1, s.k + 1))
    e("s_mov_b32 s%d, s%d" % (s.kB + 2, N + 3))
    e("s_and_b32 s%d, s%d, 0xfffff000" % (s.stepb, N + 4))
    e("s_lshl_b32 s%d, s%d, 8" % (s.rdw, s.t3))
    e("s_add_u32 s%d, s%d, %d" % (s.rdw, s.rdw, RDYB))
    e("v_mov_b32 v%d, L_cnt-L_pc" % v.fo)
    for (srd, off, nr, d) in ((s.vA, N + 0, N + 1, 3072), (s.vB, N + 2, N + 3, 2048)):
        e("s_add_u32 s%d, s%d, %d" % (s.t0, s.stepb, d))
        e("s_add_u32 s%d, s%d, s%d" % (srd, s.vv, off))
        e("s_addc_u32 s%d, s%d, 0" % (srd + 1, s.vv + 1))
        e("s_sub_u32 s%d, s%d, s%d" % (srd, srd, s.t0))
        e("s_subb_u32 s%d, s%d, 0" % (srd + 1, srd + 1))
        e("s_add_u32 s%d, s%d, s%d" % (srd + 2, nr, s.t0))
    e("v_bfe_u32 v%d, v%d, 2, 2" % (v.t0, L))
    e("v_lshlrev_b32 v%d, 12, v%d" % (v.t0, v.t0))
    e("v_and_b32 v%d, 3, v%d" % (v.t1, L))
    e("v_lshl_add_u32 v%d, v%d, 4, v%d" % (v.t0, v.t1, v.t0))
    e("v_lshrrev_b32 v%d, 4, v%d" % (v.t1, L))
    e("v_lshl_add_u32 v%d, v%d, 6, v%d" % (v.t0, v.t1, v.t0))
    e("s_lshl_b32 s%d, s%d, 14" % (s.t3, s.t3))
    e("v_add_u32 v%d, s%d, v%d" % (v.vd0, s.t3, v.t0))
    e("v_add_u32 v%d, 0x10000, v%d" % (v.vd1, v.vd0))
    e("v_and_b32 v%d, 7, v%d" % (v.t0, L))
    e("v_mul_u32_u24 v%d, 0x104, v%d" % (v.t0, v.t0))
    e("v_add_u32 v%d, %d, v%d" % (v.pra, PRGB, v.t0))
    stamp(3)
    e("s_setprio %s" % OPT.get("hprio", "3"))
    e("s_branch L_common")
    lab("L_mainpro")
    for b in (s.sq, s.kA, s.kB, s.vA, s.vB):
        e("s_mov_b64 %s, s[0:1]" % sr(b, 2))
        e("s_mov_b32 s%d, 0" % (b + 2))
        e("s_mov_b32 s%d, 0x20000" % (b + 3))
    for r in (v.kd0, v.kd1, v.vd0, v.vd1, v.fo):
        e("v_mov_b32 v%d, 0" % r)
    if STAMPS:
        e("s_waitcnt lgkmcnt(0)")
        e("v_writelane_b32 v%d, s%d, 0" % (v.st, s.stp))
        e("v_writelane_b32 v%d, s%d, 1" % (v.st, s.ws))
        stamp(2)
        e("s_load_dwordx2 %s, s[0:1], %d" % (sr(s.ws, 2), 40 if OPT.get("dbg") else 48))
    lab("L_common")
    e("s_lshl_b32 s%d, s%d, 8" % (s.t0, s.wave))
    e("s_add_u32 s%d, s%d, %d" % (s.t0, s.t0, PRGB - 4096))
    e("v_lshl_add_u32 v%d, v%d, 2, s%d" % (v.prga, L, s.t0))
    e("v_mov_b32 v%d, 0" % v.l)
    e("ds_write_b32 v%d, v%d" % (v.prga, v.l))
    e("ds_write_b32 v%d, v%d offset:4096" % (v.prga, v.l))
    e("v_add_u32 v%d, 0x1000, v%d" % (v.prga, v.prga))
    e("s_waitcnt lgkmcnt(0)")
    e("s_load_dwordx8 %s, %s, s%d" % (sr(Fa, 8), sr(s.pc, 2), s.foff))
    e("s_barrier")
    e("s_cmp_lt_u32 s%d, 4" % s.wave)
    e("s_cbranch_scc1 L_common2")
    emit(FLAG + chunk(1, True) + STEP_ADV + chunk(0))
    lab("L_common2")
    e("v_bfe_u32 v%d, v%d, 4, 1" % (v.t0, L))
    e("v_lshlrev_b32 v%d, 13, v%d" % (v.t0, v.t0))
    e("v_bfe_u32 v%d, v%d, 1, 1" % (v.t1, L))
    e("v_lshl_add_u32 v%d, v%d, 12, v%d" % (v.t0, v.t1, v.t0))
    e("v_and_b32 v%d, 1, v%d" % (v.t1, L))
    e("v_lshl_add_u32 v%d, v%d, 9, v%d" % (v.t0, v.t1, v.t0))
    e("v_bfe_u32 v%d, v%d, 2, 2" % (v.t1, L))
    e("v_lshl_add_u32 v%d, v%d, 6, v%d" % (v.t0, v.t1, v.t0))
    e("v_lshrrev_b32 v%d, 5, v%d" % (v.t1, L))
    e("v_and_b32 v%d, 3, v%d" % (v.t2, L))
    e("v_xor_b32 v%d, v%d, v%d" % (v.t1, v.t1, v.t2))
    e("v_lshl_add_u32 v%d, v%d, 4, v%d" % (v.ka0r, v.t1, v.t0))
    e("v_xor_b32 v%d, 32, v%d" % (v.ka1r, v.ka0r))
    e("v_lshrrev_b32 v%d, 5, v%d" % (v.t0, L))
    e("v_lshlrev_b32 v%d, 12, v%d" % (v.t0, v.t0))
    e("v_bfe_u32 v%d, v%d, 2, 2" % (v.t1, L))
    e("v_lshl_add_u32 v%d, v%d, 6, v%d" % (v.t0, v.t1, v.t0))
    e("v_bfe_u32 v%d, v%d, 4, 1" % (v.t1, L))
    e("v_lshl_add_u32 v%d, v%d, 5, v%d" % (v.t0, v.t1, v.t0))
    e("v_lshl_add_u32 v%d, v%d, 3, v%d" % (v.t0, v.t2, v.t0))
    e("v_add_u32 v%d, 0x800, v%d" % (v.var, v.t0))
    e("s_mov_b32 s%d, 0x%x" % (s.thr, f2u(THRESH)))
    e("v_mul_u32_u24 v%d, 0x104, v%d" % (v.t1, v.t2))
    e("v_add_u32 v%d, %d, v%d" % (v.rdya, RDYB, v.t1))
    e("s_mov_b32 s%d, 0x8000" % s.guard)
    e("v_mov_b32 v%d, 0" % v.rdy)
    e("s_waitcnt lgkmcnt(0)")
    e("s_add_u32 s%d, s%d, s%d" % (s.t0, Fa + 0, s.hoff))
    e("s_add_u32 s%d, s%d, s%d" % (s.so, s.out, s.t0))
    e("s_addc_u32 s%d, s%d, 0" % (s.so + 1, s.out + 1))
    e("s_mov_b32 s%d, s%d" % (s.so + 2, Fa + 1))
    e("s_mov_b32 s%d, 0x20000" % (s.so + 3))
    e("s_and_b32 s%d, s%d, 0xff" % (s.n, N + 4))
    e("s_bfe_u32 s%d, s%d, 0x40008" % (s.t3, Fa + 2))
    e("s_cbranch_scc1 L_work")
    e("v_mov_b32 v%d, %d" % (v.prg, BIG))
    e(PRGW)
    e("s_cmp_lt_u32 s%d, 4" % s.wave)
    e("s_cbranch_scc1 L_fin")
    e("s_branch L_presig")
    lab("L_work")
    for r in range(0, 64, 2):
        e("v_pk_mov_b32 %s, 0, 0" % vr(v.O + r, 2))
    e("s_and_b32 s%d, s%d, 0xff" % (s.U, Fa + 2))
    e("s_bfe_u32 s%d, s%d, 0x4000c" % (s.inc, Fa + 2))
    e("s_and_b32 s%d, s%d, 0xfffff" % (s.reg, Fa + 4))
    e("s_bfe_u32 s%d, s%d, 0x80010" % (s.t0, Fa + 2))
    e("s_sub_u32 s%d, s%d, 1" % (s.t0, s.t0))
    e("v_lshrrev_b32 v%d, 5, v%d" % (v.t0, L))
    e("v_lshlrev_b32 v%d, 2, v%d" % (v.t0, v.t0))
    e("v_sub_u32 v%d, s%d, v%d" % (v.t0, s.t0, v.t0))
    e("v_mov_b32 v%d, 0xff800000" % v.t1)
    for r in range(16):
        cst = 8 * (r // 4) + r % 4
        e("v_subrev_u32 v%d, %d, v%d" % (v.B + r, cst, v.t0))
        e("v_ashrrev_i32 v%d, 31, v%d" % (v.B + r, v.B + r))
        e("v_and_b32 v%d, v%d, v%d" % (v.B + r, v.t1, v.B + r))
    e("s_bfe_u32 s%d, s%d, 0x20014" % (s.t0, Fa + 4))
    e("s_lshl_b32 s%d, s%d, 10" % (s.t0, s.t0))
    e("s_bfe_u32 s%d, s%d, 0x10016" % (s.t1, Fa + 4))
    e("s_lshl_b32 s%d, s%d, 15" % (s.t1, s.t1))
    e("s_add_u32 s%d, s%d, s%d" % (s.t0, s.t0, s.t1))
    e("s_add_u32 s%d, s%d, %d" % (s.koff, s.t0, QBASE))
    emit(kaddr())
    e("s_cmp_lg_u32 s%d, 1" % s.t3)
    e("s_cselect_b32 s%d, 1, 0" % s.m1)
    e("s_bfe_u32 s%d, s%d, 0x2001a" % (s.t0, Fa + 4))
    e("s_lshl_b32 s%d, s%d, 15" % (s.astep, s.t0))
    e("s_bfe_u32 s%d, s%d, 0x10019" % (s.t2, Fa + 4))
    e("s_bfe_u32 s%d, s%d, 0x10018" % (s.t0, Fa + 4))
    e("s_lshl_b32 s%d, s%d, 10" % (s.t0, s.t0))
    e("s_mul_i32 s%d, s%d, s%d" % (s.t1, s.t0, s.m1))
    e("s_sub_u32 s%d, s%d, s%d" % (s.t0, s.t0, s.t1))
    e("s_lshl_b32 s%d, s%d, 15" % (s.voff, s.t2))
    e("s_add_u32 s%d, s%d, s%d" % (s.koff, s.voff, s.t0))
    e("s_add_u32 s%d, s%d, 0x8000" % (s.voff, s.voff))
    e("v_add_u32 v%d, s%d, v%d" % (v.ka0r, s.t1, v.ka0r))
    e("v_add_u32 v%d, s%d, v%d" % (v.ka1r, s.t1, v.ka1r))
    e("s_bfe_u32 s%d, s%d, 0x2001c" % (s.t0, Fa + 2))
    for j in (3, 2, 1, 0):
        e("s_add_u32 s%d, s%d, %d" % (s.col, s.t0, j))
        e("s_and_b32 s%d, s%d, 3" % (s.col, s.col))
        e("s_lshl_b32 s%d, s%d, 8" % (s.col, s.col))
        e("s_add_u32 s%d, s%d, s%d" % (s.col, s.col, s.t1))
        e("v_add_u32 v%d, s%d, v%d" % (v.var + j, s.col, v.var))
    emit(vaddr())
    e("s_and_b32 s%d, s%d, 0xff" % (s.t0, Fa + 3))
    e("v_mov_b32 v%d, s%d" % (v.prg, s.t0))
    e("s_bfe_u32 s%d, s%d, 0x80010" % (s.need, Fa + 3))
    e("s_cmp_lt_u32 s%d, 4" % s.wave)
    e("s_cbranch_scc1 L_sig0")
    e(PRGW)
    lab("L_presig")
    emit(qtile(4) + qtile(5))
    emit(chunk(1) + STEP_ADV)
    e("s_mov_b32 s%d, 4" % s.iss)
    stamp()
    e("s_cmp_eq_u32 s%d, 0" % s.t3)
    e("s_cbranch_scc1 L_hdone")
    emit(sync_call("L_head"))
    lab("L_sig0")
    stamp()
    emit(poll_rdy())
    mark("sig0")
    stamp()
    lab("L_head")
    for t in range(8):
        e(kread(t, v.Q))
    e(PRGW)
    emit(kaddr())
    e("s_waitcnt lgkmcnt(5)")
    for t in range(8):
        e(kread(t, v.KF))
    e("s_add_u32 s%d, s%d, s%d" % (s.t0, s.koff, s.astep))
    e("s_mul_i32 s%d, s%d, s%d" % (s.koff, s.t0, s.m1))
    e("s_lshr_b32 s%d, s%d, 24" % (s.need, Fa + 3))
    e("s_bfe_u32 s%d, s%d, 0x80008" % (s.t0, Fa + 3))
    e("v_mov_b32 v%d, s%d" % (v.prg, s.t0))
    e("s_waitcnt lgkmcnt(7)")
    e(QK0)
    for t in range(1, 8):
        e("s_waitcnt lgkmcnt(%d)" % (7 - t))
        e(qk(t))
    emit(kaddr())
    emit(adv(s.koff))
    e("s_nop 8")
    e("v_max3_f32 v%d, v%d, v%d, v%d" % (v.t0, v.S, v.S + 1, v.S + 2))
    for r in range(3, 15, 2):
        e("v_max3_f32 v%d, v%d, v%d, v%d" % (v.t0, v.t0, v.S + r, v.S + r + 1))
    e("v_max_f32 v%d, v%d, v%d" % (v.t0, v.t0, v.S + 15))
    e("v_mov_b32 v%d, v%d" % (v.t1, v.t0))
    e("s_nop 1")
    e("v_permlane32_swap_b32 v%d, v%d" % (v.t0, v.t1))
    e("s_nop 1")
    e("v_max_f32 v%d, v%d, v%d" % (v.t0, v.t0, v.t1))
    e("v_mul_f32 v%d, 0x%x, v%d" % (v.nmc, f2u(-C_SCALE), v.t0))
    for r in range(16):
        e(F(r))
    e(RDYR)
    emit([ex(i) for i in range(8)] + [add(i) for i in range(1, 7)] + [cvt(0), cvt(1), cvt(2)])
    e("s_cmp_lt_u32 s%d, 4" % s.wave)
    e("s_waitcnt lgkmcnt(0)")
    e("s_cbranch_scc0 L_hlp_in")
    stamp()
    emit(poll_rdy())
    mark("loop")
    stamp()
    for t in range(8):
        e(kread(t, v.KF))
    emit(kaddr())
    if (not OPT.get("nodpub")):
        e("s_bfe_u32 s%d, s%d, 0x80008" % (s.t0, Fa + 3))
        e("s_sub_u32 s%d, s%d, s%d" % (s.t0, s.t0, s.m1))
        e("s_lshl_b32 s%d, s%d, 2" % (s.t0, s.t0))
        e("s_add_u32 s%d, s%d, L_cnt-L_pc-4" % (s.t0, s.t0))
        e("v_mov_b32 v%d, s%d" % (v.fo, s.t0))
        e("s_lshl_b32 s%d, s%d, 8" % (s.t0, s.wave))
        e("s_add_u32 m0, s%d, %d" % (s.t0, PRGB))
    e("s_cmp_eq_u32 s%d, 1" % s.m1)
    e("s_waitcnt lgkmcnt(4)")
    e("s_cbranch_scc1 L_odd_m")
    out.append(".p2align 4")
    body("even")
    e("s_cbranch_vccnz L_hnd_even")
    body("odd")
    e("s_cbranch_vccz L_even_m")
    e("s_add_u32 s%d, s%d, 16" % (s.t0, s.U))
    e("s_bitcmp0_b32 s%d, s%d" % (Fa + 5, s.t0))
    e("s_cbranch_scc1 L_np1")
    e("s_add_u32 s%d, s%d, s%d" % (s.t0, s.need, Fa + 6))
    e("v_mov_b32 v%d, s%d" % (v.prg, s.t0))
    e(PRGW)
    lab("L_np1")
    emit(poll_rdy())
    e("s_cmp_le_u32 s%d, 1" % s.U)
    e("s_cbranch_scc1 L_ho1")
    e("s_cmp_eq_u32 s%d, 0" % s.m1)
    e("s_cbranch_scc0 L_odd_m")
    e("s_branch L_even_m")
    lab("L_ho1")
    e("s_cmp_eq_u32 s%d, 0" % s.U)
    e("s_cbranch_scc1 L_tail0")
    e("s_cmp_eq_u32 s%d, 0" % s.m1)
    e(QK0M)
    e("s_cbranch_scc1 L_even_a")
    e("s_branch L_odd_a")
    lab("L_hnd_even")
    e("s_add_u32 s%d, s%d, 16" % (s.t0, s.U))
    e("s_bitcmp0_b32 s%d, s%d" % (Fa + 5, s.t0))
    e("s_cbranch_scc1 L_np2")
    e("s_add_u32 s%d, s%d, s%d" % (s.t0, s.need, Fa + 6))
    e("v_mov_b32 v%d, s%d" % (v.prg, s.t0))
    e(PRGW)
    lab("L_np2")
    emit(poll_rdy())
    e("s_cmp_gt_u32 s%d, 1" % s.U)
    e("s_cbranch_scc1 L_odd_m")
    e("s_cmp_eq_u32 s%d, 0" % s.U)
    e("s_cbranch_scc1 L_tail")
    e(QK0M)
    e("s_branch L_odd_a")
    lab("L_hlp_in")
    e(PRGW)
    stamp()
    emit(sync_call())
    stamp()
    for t in range(8):
        e(kread(t, v.KF))
    emit(kaddr())
    e("s_waitcnt lgkmcnt(4)")
    e("s_branch L_hnd_hlp")
    body("hlp")
    lab("L_hnd_hlp")
    e("s_cmp_gt_u32 s%d, 1" % s.U)
    e("s_cbranch_scc1 L_hlp_m")
    e("s_cmp_eq_u32 s%d, 0" % s.U)
    e("s_cbranch_scc1 L_tail")
    e(QK0M)
    e("s_branch L_hlp_a")
    lab("L_tail0")
    e("s_cmp_eq_u32 s%d, 1" % s.m1)
    e("s_cbranch_scc1 L_tail")
    for j in range(4):
        e("v_add_u32 v%d, 0x400, v%d" % (v.va + j, v.va + j))
    lab("L_tail")
    mark("tail")
    k = newret()
    vord = [0, 1, 8, 9, 2, 3, 10, 11, 4, 5, 12, 13, 6, 7, 14, 15]
    for i in vord[:12]:
        e(vread(i))
    emit([ex(8), add(7), cvt(3)] + [ex(i) for i in range(9, 16)])
    e("v_mov_b32 v%d, %d" % (v.prg, BIG))
    if (not OPT.get("nodpub")):
        e("s_cmp_lt_u32 s%d, 4" % s.wave)
        e("s_cbranch_scc0 L_t1")
        e("s_waitcnt vmcnt(0)")
        lab("L_t1")
    for i in vord[12:]:
        e(vread(i))
    e(PRGW)
    emit([add(i) for i in range(8, 16)] + [CMP, cvt(4), "s_mov_b32 s%d, %d" % (s.ret, k), "s_cbranch_vccnz L_resc",
                                           "L_ret%d:" % k, cvt(5), cvt(6), cvt(7), LADD])
    e("s_cmp_lt_u32 s%d, 4" % s.wave)
    e("s_waitcnt lgkmcnt(0)")
    e("s_cbranch_scc0 L_htail")
    lab("L_tail2")
    tw, tr0, oo, rl = v.ka1, v.va, v.ka1r, v.X + 2

    def lsum():
        return ["v_mov_b32 v%d, v%d" % (v.t0, v.l), "s_nop 1",
                "v_permlane32_swap_b32 v%d, v%d" % (v.l, v.t0), "s_nop 1",
                "v_add_f32 v%d, v%d, v%d" % (v.l, v.l, v.t0)]

    def st_addr():
        r = ["v_and_b32 v%d, 31, v%d" % (v.t0, L),
             "v_lshrrev_b32 v%d, 5, v%d" % (v.t1, L),
             "v_lshlrev_b32 v%d, 3, v%d" % (v.t1, v.t1),
             "v_and_b32 v%d, 7, v%d" % (v.t2, L),
             "v_lshl_add_u32 v%d, v%d, 4, v%d" % (v.t1, v.t2, v.t1),
             "v_lshl_add_u32 v%d, v%d, 7, v%d" % (v.t0, v.t0, v.t1),
             "v_add_u32 v%d, s%d, v%d" % (tw, s.reg, v.t0)]
        r += ["v_xor_b32 v%d, %d, v%d" % (v.E + c, c * 16, tw) for c in range(8)]
        r += ["v_lshrrev_b32 v%d, 3, v%d" % (v.t0, L),
              "v_xor_b32 v%d, v%d, v%d" % (v.t1, v.t2, v.t0),
              "v_lshlrev_b32 v%d, 4, v%d" % (v.t1, v.t1),
              "v_lshl_add_u32 v%d, v%d, 7, v%d" % (v.t1, v.t0, v.t1),
              "v_add_u32 v%d, s%d, v%d" % (tr0, s.reg, v.t1),
              "v_lshlrev_b32 v%d, 12, v%d" % (v.t0, v.t0),
              "v_lshl_add_u32 v%d, v%d, 4, v%d" % (oo, v.t2, v.t0)]
        return r

    def pack_q(bb, norm=True):
        r = []
        for g in range(4):
            c = 4 * bb + g
            o = v.O + 4 * c
            d = v.S + 2 * c
            if norm:
                r += ["v_pk_mul_f32 %s, %s, %s op_sel_hi:[1,0]" % (vr(o + i, 2), vr(o + i, 2), vr(rl, 2)) for i in (0, 2)]
            r += ["v_cvt_pk_bf16_f32 v%d, v%d, v%d" % (d, o, o + 1),
                  "v_cvt_pk_bf16_f32 v%d, v%d, v%d" % (d + 1, o + 2, o + 3),
                  "ds_write_b64 v%d, %s" % (v.E + c % 8, vr(d, 2))]
        return r

    def rd_half(hh):
        return ["ds_read_b128 %s, v%d offset:%d" % (vr(v.KF + 16 * hh + 4 * k, 4), tr0, k * 1024) for k in range(4)]

    def st_one(hh, k):
        return ["buffer_store_dwordx4 %s, v%d, %s, s%d offen offset:%d %s" % (
                    vr(v.KF + 16 * hh + 4 * k, 4), oo, sr(s.so, 4), s.col + k if k < 3 else s.t1, 128 * hh, STF)]

    sa = st_addr()
    emit([pv(0)] + lsum() + ["v_rcp_f32 v%d, v%d" % (rl, v.l)])
    emit([pv(4)] + sa[0:6])
    emit([pv(1)] + sa[6:12])
    emit([pv(5)] + sa[12:18])
    emit([pv(2)] + sa[18:] + ["s_mov_b32 s%d, 0" % s.col, "s_mov_b32 s%d, 0x8000" % (s.col + 1)])
    emit([pv(6), "s_mov_b32 s%d, 0x10000" % (s.col + 2), "s_mov_b32 s%d, 0x18000" % s.t1])
    emit([pv(3), pv(7)])
    stamp(5)
    emit(pack_q(0) + pack_q(1) + rd_half(0))
    p2 = pack_q(2)
    emit(p2[:10] + ["s_waitcnt lgkmcnt(5)"] + st_one(0, 0) + p2[10:] + ["s_waitcnt lgkmcnt(4)"] + st_one(0, 1))
    p3 = pack_q(3)
    emit(p3[:10] + st_one(0, 2) + p3[10:] + st_one(0, 3) + rd_half(1))
    stamp(4)
    for k in range(4):
        emit(["s_waitcnt lgkmcnt(%d)" % (3 - k)] + st_one(1, k))
    lab("L_fin")
    if SPIN:
        mark("st")
        e("s_waitcnt vmcnt(0)")
        mark("end")
        if SPIN == "glob":
            e("s_load_dwordx2 s[98:99], s[0:1], 40")
            e("s_not_b32 s%d, s%d" % (s.t0, s.ws))
            e("v_mov_b32 v%d, s%d" % (v.t1, s.t0))
            e("v_mov_b32 v%d, 0" % v.t0)
            e("s_waitcnt lgkmcnt(0)")
            e("s_cmp_lg_u32 s%d, 0" % s.wave)
            e("s_cbranch_scc1 L_g1")
            e("s_mov_b64 exec, 1")
            e("global_atomic_umax v%d, v%d, s[98:99]" % (v.t0, v.t1))
            e("s_mov_b64 exec, -1")
            lab("L_g1")
        e("s_sub_u32 s%d, s%d, s%d" % (s.t0, s.stp, s.ws))
        e("s_mul_i32 s%d, s%d, 2" % (s.t0, s.t0))
        e("s_add_u32 s%d, s%d, 3000" % (s.t0, s.t0))
        lab("L_spin")
        e("s_sleep 2")
        e("s_memrealtime s[%d:%d]" % (s.stp, s.stp + 1))
        e("s_waitcnt lgkmcnt(0)")
        e("s_sub_u32 s%d, s%d, s%d" % (s.t1, s.stp, s.ws))
        e("s_cmp_lt_u32 s%d, s%d" % (s.t1, s.t0))
        e("s_cbranch_scc1 L_spin")
        if SPIN == "glob":
            e("global_load_dword v%d, v%d, s[98:99] sc0 sc1" % (v.t1, v.t0))
            e("s_waitcnt vmcnt(0)")
            e("v_readfirstlane_b32 s%d, v%d" % (s.t2, v.t1))
            e("s_not_b32 s%d, s%d" % (s.t2, s.t2))
            lab("L_spin2")
            e("s_sleep 2")
            e("s_memrealtime s[%d:%d]" % (s.stp, s.stp + 1))
            e("s_waitcnt lgkmcnt(0)")
            e("s_sub_u32 s%d, s%d, s%d" % (s.t1, s.stp, s.t2))
            e("s_cmp_lt_u32 s%d, 4000" % s.t1)
            e("s_cbranch_scc1 L_spin2")
    if STAMPS:
        stamp(6)
        e("s_waitcnt vmcnt(0)")
        stamp(7)
        stamp(61, True)
        e("s_getreg_b32 s%d, hwreg(HW_REG_XCC_ID)" % s.stp)
        e("v_writelane_b32 v%d, s%d, 62" % (v.st, s.stp))
        e("s_lshl_b32 s%d, s2, 3" % s.t0)
        e("s_add_u32 s%d, s%d, s%d" % (s.t0, s.t0, s.wave))
        e("s_lshl_b32 s%d, s%d, 8" % (s.t0, s.t0))
        e("v_lshlrev_b32 v%d, 2, v%d" % (v.t0, v.lane))
        e("v_add_u32 v%d, s%d, v%d" % (v.t0, s.t0, v.t0))
        if OPT.get("dbg"):
            e("v_readlane_b32 s%d, v%d, 0" % (s.t0, v.st))
            e("v_readlane_b32 s%d, v%d, 61" % (s.t1, v.st))
            e("v_readlane_b32 s%d, v%d, 1" % (s.t2, v.st))
            e("s_not_b32 s%d, s%d" % (s.t3, s.t0))
            e("v_cmp_ne_u32 vcc, 0, v%d" % v.st)
            e("v_subrev_u32 v%d, s%d, v%d" % (v.t1, s.t2, v.st))
            e("s_nop 1")
            e("v_cndmask_b32 v%d, 0, v%d, vcc" % (v.t1, v.t1))
            e("v_writelane_b32 v%d, s%d, 0" % (v.t1, s.t3))
            e("v_writelane_b32 v%d, s%d, 1" % (v.t1, s.t1))
            e("v_writelane_b32 v%d, s%d, 15" % (v.t1, s.t0))
            e("v_lshlrev_b32 v%d, 2, v%d" % (v.t0, v.lane))
            e("s_cmp_lt_u32 s%d, 4" % s.wave)
            e("s_cselect_b32 s%d, 0xffff, 0x80ff" % s.t0 if False else "s_mov_b32 s%d, 0x80ff" % s.t0)
            e("s_cselect_b32 exec_lo, 0xffff, s%d" % s.t0)
            e("s_mov_b32 exec_hi, 0")
            e("global_atomic_umax v%d, v%d, %s" % (v.t0, v.t1, sr(s.ws, 2)))
        else:
            e("global_store_dword v%d, v%d, %s" % (v.t0, v.st, sr(s.ws, 2)))
    lab("L_end")
    e("s_endpgm")
    for blk in ool:
        emit(blk)
    lab("L_sync")
    e("s_setprio %s" % OPT.get("sprio", "0"))
    e("s_min_u32 s%d, s%d, s%d" % (s.t2, s.need, s.n))
    e("s_add_u32 s%d, s%d, %s" % (s.t3, s.t2, OPT.get("look", "2")))
    e("s_min_u32 s%d, s%d, s%d" % (s.t3, s.t3, s.n))
    lab("L_svc")
    e("ds_read_b32 v%d, v%d" % (v.t1, v.pra))
    e(RDYR)
    e("s_sub_i32 s%d, s%d, 5" % (s.t1, s.iss))
    e("s_cmp_gt_u32 s%d, s%d" % (s.iss, s.t3))
    e("s_waitcnt lgkmcnt(0)")
    e("s_cbranch_scc0 L_svc1")
    e("v_cmp_ge_u32 vcc, s%d, v%d" % (s.t2, v.rdy))
    e("s_cbranch_vccz L_svcx")
    e("s_cmp_gt_u32 s%d, s%d" % (s.iss, s.n))
    e("s_cbranch_scc1 L_svcs")
    lab("L_svc1")
    e("v_cmp_gt_i32 vcc, s%d, v%d" % (s.t1, v.t1))
    e("s_cbranch_vccnz L_svc2")
    e("s_add_u32 s%d, s%d, 1" % (s.iss, s.iss))
    if OPT.get("cap"):
        e("s_waitcnt vmcnt(%s)" % OPT["cap"])
    e("s_bitcmp0_b32 s%d, 0" % s.iss)
    e("s_cbranch_scc1 L_svcB")
    emit(chunk(0, pace=PACE))
    e("s_branch L_svc")
    lab("L_svcB")
    emit(chunk(1, pace=PACE) + STEP_ADV)
    e("s_branch L_svc")
    lab("L_svc2")
    e("v_cmp_ge_u32 vcc, s%d, v%d" % (s.t2, v.rdy))
    e("s_cbranch_vccz L_svcx")
    lab("L_svcs")
    emit(spin(OPT.get("slp", "2")))
    e("s_branch L_svc")
    lab("L_svcx")
    e("s_setprio %s" % OPT.get("hprio", "3"))
    SRET_AT = len(out)
    lab("L_htail")
    e("s_mov_b32 s%d, s%d" % (s.need, s.n))
    e("s_bitcmp0_b32 s%d, 24" % (Fa + 2))
    e("s_cbranch_scc1 L_htail2")
    emit(sync_call("L_tail2"))
    lab("L_htail2")
    for i in range(8):
        e(pv(i))
    lab("L_hdone")
    e("s_mov_b32 s%d, s%d" % (s.need, s.n))
    emit(sync_call())
    e("s_sub_u32 s%d, s%d, 1" % (s.t2, s.n))
    e("s_bfe_u32 s%d, s%d, 0x40018" % (s.n, Fa + 2))
    e("s_cbranch_scc0 L_fin")
    e("s_setprio %s" % OPT.get("eprio", "0"))
    e("s_branch L_pe1")
    lab("L_pe0")
    emit(spin(OPT.get("slp", "2")))
    lab("L_pe1")
    e("ds_read_b32 v%d, v%d" % (v.t1, v.pra))
    e("s_waitcnt lgkmcnt(0)")
    e("v_cmp_gt_u32 vcc, s%d, v%d" % (s.t2, v.t1))
    e("s_cbranch_vccnz L_pe0")
    stamp(5)
    l16, l8, xa, cnt = v.ka0, v.ka0r, v.var, v.var + 1
    emit(lsum())
    e("v_lshlrev_b32 v%d, 4, v%d" % (l16, L))
    e("v_lshlrev_b32 v%d, 3, v%d" % (l8, L))
    e("s_lshl_b32 s%d, s%d, 9" % (s.t0, s.wave))
    e("s_add_u32 s%d, s%d, %d" % (s.t0, s.t0, MLBASE - 2048))
    e("v_add_u32 v%d, s%d, v%d" % (xa, s.t0, l8))
    e("ds_write_b64 v%d, %s" % (xa, vr(v.nmc, 2)))
    e("s_cmp_eq_u32 s%d, 2" % s.n)
    e("s_cbranch_scc1 L_sd2")
    for j in (1, 2, 3):
        if j == 2:
            lab("L_sd2")
        e("s_and_b32 s%d, s%d, 0xffffff" % (s.t0, Fa + 4 + j))
        e("v_add_u32 v%d, s%d, v%d" % (xa, s.t0, l16))
        for k in range(4):
            e("ds_write_b128 v%d, %s offset:%d" % (xa, vr(v.O + 16 * j + 4 * k, 4), k * 1024))
    e("s_lshr_b32 s%d, s%d, 30" % (s.t0, Fa + 2))
    e("s_lshl_b32 s%d, s%d, 2" % (s.t0, s.t0))
    e("s_add_u32 s%d, s%d, %d" % (s.t0, s.t0, CNTB))
    e("v_mov_b32 v%d, s%d" % (cnt, s.t0))
    e("v_mov_b32 v%d, 1" % v.t3)
    e("s_mov_b64 exec, 1")
    e("ds_add_u32 v%d, v%d" % (cnt, v.t3))
    e("s_mov_b64 exec, -1")
    emit(st_addr())
    e("v_add_u32 v%d, s%d, v%d" % (xa, s.reg, l16))
    for j in range(3):
        e("s_lshr_b32 s%d, s%d, 24" % (s.t0, Fa + 5 + j))
        e("s_lshl_b32 s%d, s%d, 9" % (s.t0, s.t0))
        e("s_add_u32 s%d, s%d, %d" % (s.t0, s.t0, MLBASE))
        e("v_add_u32 v%d, s%d, v%d" % (v.P + j, s.t0, l8))
    e("s_branch L_poll1")
    lab("L_poll")
    emit(spin())
    lab("L_poll1")
    e("ds_read_b32 v%d, v%d" % (v.t3, cnt))
    e("s_waitcnt lgkmcnt(0)")
    e("v_cmp_ne_u32 vcc, s%d, v%d" % (s.n, v.t3))
    e("s_cbranch_vccnz L_poll")
    stamp(4)
    for j in range(3):
        e("ds_read_b64 %s, v%d" % (vr(v.X + 2 * j, 2), v.P + j))
    for k in range(12):
        e("ds_read_b128 %s, v%d offset:%d" % (vr(v.KF + 16 + 4 * k, 4), xa, k * 1024))
    RX = v.KF + 16
    f0, f1, f2, f3 = v.X + 8, v.X + 9, v.X + 10, v.X + 11
    e("s_bfe_u32 s%d, s%d, 0x2001c" % (s.col, Fa + 2))
    e("s_lshl_b32 s%d, s%d, 6" % (s.col, s.col))
    e("s_add_u32 s%d, s%d, 0x8000" % (s.col + 1, s.col))
    e("s_add_u32 s%d, s%d, 0x10000" % (s.col + 2, s.col))
    e("s_add_u32 s%d, s%d, 0x18000" % (s.t1, s.col))
    e("s_waitcnt lgkmcnt(12)")
    e("v_min3_f32 v%d, v%d, v%d, v%d" % (v.t3, v.nmc, v.X, v.X + 2))
    e("v_min_f32 v%d, v%d, v%d" % (v.t3, v.t3, v.X + 4))
    e("v_sub_f32 v%d, v%d, v%d" % (f0, v.t3, v.nmc))
    for j, f in enumerate((f1, f2, f3)):
        e("v_sub_f32 v%d, v%d, v%d" % (f, v.t3, v.X + 2 * j))
    for f in (f0, f1, f2, f3):
        e("v_exp_f32 v%d, v%d" % (f, f))
    e("v_mul_f32 v%d, v%d, v%d" % (v.l, v.l, f0))
    e("v_fmac_f32 v%d, v%d, v%d" % (v.l, v.X + 1, f1))
    e("s_cmp_eq_u32 s%d, 2" % s.n)
    e("s_cbranch_scc1 L_mg2")
    e("v_fmac_f32 v%d, v%d, v%d" % (v.l, v.X + 3, f2))
    e("v_fmac_f32 v%d, v%d, v%d" % (v.l, v.X + 5, f3))
    e("v_rcp_f32 v%d, v%d" % (v.t3, v.l))
    e("v_and_b32 v%d, 4, v%d" % (v.t0, L))
    e("v_lshl_add_u32 v%d, v%d, 28, v%d" % (oo, v.t0, oo))
    for f in (f0, f1, f2, f3):
        e("v_mul_f32 v%d, v%d, v%d" % (f, f, v.t3))
    for i in range(16):
        e("v_mul_f32 v%d, v%d, v%d" % (v.O + i, v.O + i, f0))
    for j, f in enumerate((f1, f2, f3)):
        e("s_waitcnt lgkmcnt(%d)" % (8 - 4 * j))
        for i in range(16):
            e("v_fmac_f32 v%d, v%d, v%d" % (v.O + i, RX + 16 * j + i, f))
    e("s_branch L_mg3")
    lab("L_mg2")
    e("v_rcp_f32 v%d, v%d" % (v.t3, v.l))
    e("s_nop 0")
    for f in (f0, f1):
        e("v_mul_f32 v%d, v%d, v%d" % (f, f, v.t3))
    for i in range(32):
        e("v_mul_f32 v%d, v%d, v%d" % (v.O + i, v.O + i, f0))
    e("s_waitcnt lgkmcnt(0)")
    for i in range(32):
        e("v_fmac_f32 v%d, v%d, v%d" % (v.O + i, RX + i, f1))
    emit(pack_q(1, False))
    lab("L_mg3")
    emit(pack_q(0, False) + rd_half(0))
    for k in range(4):
        emit(["s_waitcnt lgkmcnt(%d)" % (3 - k)] + st_one(0, k))
    e("s_branch L_fin")
    lab("L_resc")
    e("v_max3_f32 v%d, v%d, v%d, v%d" % (v.t0, v.X, v.X + 1, v.X + 2))
    for r in range(3, 15, 2):
        e("v_max3_f32 v%d, v%d, v%d, v%d" % (v.t0, v.t0, v.X + r, v.X + r + 1))
    e("v_max3_f32 v%d, v%d, v%d, 0" % (v.t0, v.t0, v.X + 15))
    e("v_mov_b32 v%d, v%d" % (v.t1, v.t0))
    e("s_nop 1")
    e("v_permlane32_swap_b32 v%d, v%d" % (v.t0, v.t1))
    e("s_nop 1")
    e("v_max_f32 v%d, v%d, v%d" % (v.t0, v.t0, v.t1))
    e("v_exp_f32 v%d, -v%d" % (v.t1, v.t0))
    e("v_sub_f32 v%d, v%d, v%d" % (v.nmc, v.nmc, v.t0))
    for r in range(16):
        e("v_sub_f32 v%d, v%d, v%d" % (v.X + r, v.X + r, v.t0))
    e("v_mul_f32 v%d, v%d, v%d" % (v.l, v.l, v.t1))
    for i in range(64):
        e("v_mul_f32 v%d, v%d, v%d" % (v.O + i, v.O + i, v.t1))
    emit(soft_half_plain(0))
    emit(soft_half_plain(1))
    for k, r in enumerate(rets[:-1]):
        e("s_cmp_eq_u32 s%d, %d" % (s.ret, k))
        e("s_cbranch_scc1 %s" % r)
    e("s_branch %s" % rets[-1])
    rl_ = []
    order = [2, 1, 0, 3, 4]
    assert len(srets) == len(order)
    for k in order[:-1]:
        rl_ += ["    s_cmp_eq_u32 s%d, %d" % (s.sret, k), "    s_cbranch_scc1 %s" % srets[k]]
    rl_ += ["    s_branch %s" % srets[order[-1]]]
    out[SRET_AT:SRET_AT] = rl_
    out.append(".p2align 6")
    out.append(".type L_far,@object")
    lab("L_far")
    for ent in far:
        out.append("    .long " + ", ".join("0x%x" % x for x in ent))
    lab("L_cnt")
    out.append("    .long " + ", ".join(str(i) for i in range(32)))
    out.append(".size L_far, .-L_far")
    lab("L_codeend")
    out.append("    .fill 512, 4, 0xbf800000")
    out.append('.section .rodata,"a"')
    out.append(".p2align 6")
    out.append(".amdhsa_kernel " + K)
    out.append("  .amdhsa_next_free_vgpr %d" % NV)
    out.append("  .amdhsa_next_free_sgpr %d" % NS)
    out.append("  .amdhsa_accum_offset %d" % NV)
    out.append("  .amdhsa_group_segment_fixed_size 0")
    out.append("  .amdhsa_kernarg_size 56")
    out.append("  .amdhsa_user_sgpr_count 2")
    out.append("  .amdhsa_user_sgpr_kernarg_segment_ptr 1")
    out.append("  .amdhsa_system_sgpr_workgroup_id_x 1")
    out.append(".end_amdhsa_kernel")
    txt = "\n".join(out) + "\n"
    return txt.replace("PFSTRIDE", OPT.get("pf", "28"))


if __name__ == "__main__":
    args = [a for a in sys.argv[1:] if a.endswith(".s")]
    path = args[0] if args else "cdna_kernels/%s.s" % NAME
    open(path, "w").write(gen())
    print("wrote", path)
```

```python
import sys, re
path, var, NW = sys.argv[1], sys.argv[2], int(sys.argv[3])
sys.argv = sys.argv[:1]
import gen10 as g
from gen10 import *
K = NAME + "_kernel"
o = g.out
V = lambda i: vread(i, 0)
Kr = lambda t: kread(t, v.KF, 0)
W = lambda n: "s_waitcnt lgkmcnt(%d)" % n
q = [[None, V(0), V(1), ex(8), add(7), cvt(3)], [None, V(2), V(3), ex(9), ex(10)], [W(4), V(4), V(5), ex(11), add(8), add(9)],
     [None, V(6), V(7), ex(12), ex(13)], [None, V(8), V(9), ex(14), add(10), add(11)], [None, V(10), V(11), ex(15), add(12), add(13)],
     [W(4), V(12), V(13), add(14), add(15), CMP, cvt(4)], [None, V(14), V(15), LADD, cvt(5), cvt(6), cvt(7)]]
p = [["s_nop 0", Kr(0), Kr(1), Kr(2), F(0), F(1), F(2)], [None, Kr(3), ex(0), F(3), F(4), F(5)], [None, Kr(4), ex(1), F(6), F(7), F(8)],
     [W(5), Kr(5), ex(2), add(1), F(9), F(10)], [None, Kr(6), ex(3), add(2), cvt(0), F(11)], [None, Kr(7), ex(4), add(3), cvt(1), F(12)],
     [W(4), ex(5), ex(6), add(4), F(13)], [None, ex(7), add(5), add(6), cvt(2), F(14), F(15)]]
def m16(d, a, b, c): return "v_mfma_f32_16x16x32_bf16 %s, %s, %s, %s" % (vr(d, 4), vr(a, 4), vr(b, 4), c if c == "0" else vr(c, 4))
body = []
for t in range(8):
    gap = [x for x in q[t] if x]
    if var.startswith("m32"):
        body += [QK0 if t == 0 else qk(t)] + gap
    else:
        kt, ds = t & 1, t >> 1
        ms = [m16(v.S + 8 * kt + 4 * j, v.KF + 4 * t, v.Q + 4 * (2 * ds + j), "0" if ds == 0 else v.S + 8 * kt + 4 * j) for j in range(2)]
        h = (len(gap) + 1) // 2
        body += [ms[0]] + gap[:h] + [ms[1]] + gap[h:]
for i in range(8):
    gap = [x for x in p[i] if x]
    if var.startswith("m32"):
        body += [pv(i)] + gap
    else:
        ms = [m16(v.O + 8 * i + 4 * j, v.VF + 4 * i, v.P + 4 * j, v.O + 8 * i + 4 * j) for j in range(2)]
        h = (len(gap) + 1) // 2
        body += [ms[0]] + gap[:h] + [ms[1]] + gap[h:]
if var.endswith("nof"):
    q = [[None, V(0), V(1), ex(8), add(7), cvt(3)], [None, V(2), V(3), ex(9), add(8)], [W(4), V(4), V(5), ex(10), ex(11)],
         [None, V(6), V(7), ex(12), add(9), add(10)], [None, V(8), V(9), ex(13), ex(14)], [None, V(10), V(11), ex(15), add(11), add(12)],
         [W(4), V(12), V(13), add(13), add(14), add(15), CMP], [None, V(14), V(15), LADD, cvt(4), cvt(5)]]
    p = [["s_nop 0", Kr(0), Kr(1), cvt(6), cvt(7)], [None, Kr(2), Kr(3), ex(0)], [None, Kr(4), ex(1), ex(2)],
         [W(5), Kr(5), ex(3), add(1)], [None, Kr(6), ex(4), add(2), cvt(0)], [None, Kr(7), ex(5), add(3), cvt(1)],
         [W(4), ex(6), add(4), add(5)], [None, ex(7), add(6), cvt(2)]]
    body = []
    for t in range(8): body += [QK0M if t == 0 else qk(t)] + [x for x in q[t] if x]
    for i in range(8): body += [pv(i)] + [x for x in p[i] if x]
    pre = [F(r) for r in range(16)]
if var.endswith("nolds"): body = [x for x in body if not x.startswith("ds_")]
if var.endswith("novalu"): body = [x for x in body if not (x.startswith("v_") and not x.startswith("v_mfma"))]
if var.endswith("only"): body = [x for x in body if x.startswith("v_mfma")]
if var.endswith("nomfma"): body = [x for x in body if not x.startswith("v_mfma")]
ACC = var.endswith("acc")
if ACC:
    def remap(x):
        def f(m):
            a, b = int(m.group(1)), int(m.group(2))
            if 56 <= a < 120: return "a[%d:%d]" % (a - 56, b - 56)
            if a >= 120: return "v[%d:%d]" % (a - 64, b - 64)
            return m.group(0)
        x = re.sub(r"v\[(\d+):(\d+)\]", f, x)
        def g1(m):
            a = int(m.group(1))
            return "v%d" % (a - 64) if a >= 120 else m.group(0)
        return re.sub(r"\bv(\d+)\b", g1, x)
if var.endswith("pvord"):
    idx = [i for i, x in enumerate(body) if x in [pv(k) for k in range(8)]]
    for i, k in zip(idx, [0, 4, 1, 5, 2, 6, 3, 7]): body[i] = pv(k)
o.append("; @launch grid=(256,1,1) block=(%d,1,1) lds=163840" % (NW * 64))
o.append('.amdgcn_target "amdgcn-amd-amdhsa--gfx950"\n.text\n.globl %s\n.p2align 8\n.type %s,@function\n%s:' % (K, K, K))
e("s_cmp_ge_u32 s2, 256"); e("s_cbranch_scc1 L_end")
e("s_load_dwordx2 %s, s[0:1], 48" % sr(s.ws, 2))
e("s_load_dwordx2 s[32:33], s[0:1], 8")
e("v_lshrrev_b32 v%d, 6, v0" % v.t0); e("v_and_b32 v%d, 63, v0" % v.lane); e("v_readfirstlane_b32 s%d, v%d" % (s.wave, v.t0))
for r in list(range(1, 11)) + list(range(12, 256)): e("v_mov_b32 v%d, 0" % r)
e("v_lshlrev_b32 v%d, 4, v%d" % (v.ka0, v.lane)); e("v_add_u32 v%d, 0x400, v%d" % (v.ka1, v.ka0))
e("v_lshlrev_b32 v%d, 3, v%d" % (v.va, v.lane))
for j in range(1, 4): e("v_add_u32 v%d, %d, v%d" % (v.va + j, 512 * j, v.va))
e("s_waitcnt lgkmcnt(0)")
e("s_mov_b32 s34, %d" % TENSOR_BYTES); e("s_mov_b32 s35, 0x20000")
e("s_lshl_b32 s%d, s2, 15" % s.soff); e("s_lshl_b32 m0, s%d, 10" % s.wave); e("v_lshlrev_b32 v%d, 4, v0" % v.kd0)
for i in range(32768 // (NW * 1024)):
    e("buffer_load_dwordx4 v%d, s[32:35], s%d offen lds" % (v.kd0, s.soff)); e("s_add_u32 s%d, s%d, %d" % (s.soff, s.soff, NW * 1024)); e("s_add_u32 m0, m0, %d" % (NW * 1024))
e("s_waitcnt vmcnt(0)"); e("s_barrier")
for t in range(8): e(kread(t, v.Q, 1))
for t in range(8): e(kread(t, v.KF))
e("s_waitcnt lgkmcnt(0)")
for i in range(16): e(vread(i))
for i in range(8): e("v_mov_b32 v%d, v%d" % (v.P + i, v.Q + i))
e("v_mov_b32 v%d, -2.0" % v.nmc)
e("s_mov_b32 s%d, 0x%x" % (s.thr, f2u(THRESH)))
e("s_waitcnt lgkmcnt(0)"); e("s_barrier")
def st(k, real):
    e("%s s[%d:%d]" % ("s_memrealtime" if real else "s_memtime", s.stp, s.stp + 1)); e("s_waitcnt lgkmcnt(0)"); e("v_writelane_b32 v%d, s%d, %d" % (v.st, s.stp, k))
if var.endswith("nof"):
    for t in range(8): e(QK0 if t == 0 else qk(t))
    e("s_nop 15"); emit(pre)
st(0, True); st(1, False)
e("s_mov_b32 s%d, %d" % (s.U, 56 // NW))
lab("L_v")
emit(body)
e("s_sub_u32 s%d, s%d, 1" % (s.U, s.U)); e("s_cmp_lg_u32 s%d, 0" % s.U); e("s_cbranch_scc1 L_v")
st(2, True); st(3, False)
e("s_mul_i32 s%d, s2, %d" % (s.t0, NW)); e("s_add_u32 s%d, s%d, s%d" % (s.t0, s.t0, s.wave)); e("s_lshl_b32 s%d, s%d, 8" % (s.t0, s.t0))
e("v_lshlrev_b32 v%d, 2, v%d" % (v.t0, v.lane)); e("v_add_u32 v%d, s%d, v%d" % (v.t0, s.t0, v.t0))
e("global_store_dword v%d, v%d, %s" % (v.t0, v.st, sr(s.ws, 2)))
lab("L_end"); e("s_endpgm")
o.append('''.section .rodata,"a"
.p2align 6
.amdhsa_kernel %s
  .amdhsa_next_free_vgpr 256
  .amdhsa_next_free_sgpr 100
  .amdhsa_accum_offset 256
  .amdhsa_group_segment_fixed_size 0
  .amdhsa_kernarg_size 56
  .amdhsa_user_sgpr_count 2
  .amdhsa_user_sgpr_kernarg_segment_ptr 1
  .amdhsa_system_sgpr_workgroup_id_x 1
.end_amdhsa_kernel''' % K)
if ACC:
    o[:] = [("    v_accvgpr_write_b32 a%d, 0" % (int(re.match(r"\s+v_mov_b32 v(\d+), 0", x).group(1)) - 56)) if re.match(r"\s+v_mov_b32 v(\d+), 0$", x) and 56 <= int(re.match(r"\s+v_mov_b32 v(\d+), 0", x).group(1)) < 120 else remap(x) for x in o]
    o[-1] = o[-1].replace("accum_offset 256", "accum_offset 192")
open(path, "w").write("\n".join(o) + "\n")
```

```python
import sys, struct, math

NAME = "standalone__varlen_attn_packed__ragged"
CU = [0, 289, 520, 939, 1289, 1402, 1666, 1973, 2275]
LEN = [CU[i + 1] - CU[i] for i in range(8)]
T_TOT = 2275
ROWB = 4096
TENSOR_BYTES = T_TOT * ROWB

OPT = {}
for a in sys.argv[1:]:
    if a.startswith("--"):
        k, _, val = a[2:].partition("=")
        OPT[k] = val if val else "1"
STAMPS = "stamps" in OPT or "lite" in OPT
LITE = "lite" in OPT
LDF_Q = OPT.get("ldq", "none").replace("+", " ").replace("none", "")
LDF_K = OPT.get("ldk", "none").replace("+", " ").replace("none", "")
STF = OPT.get("st", "sc1").replace("+", " ").replace("none", "")
FLY = int(OPT.get("fly", "4"))

HEADER = """; Kernarg layout for this problem (56 bytes, ptrs only, base s[0:1]):
;   offset   0: d_in[0] q  shape=(2275, 16, 128) dtype=bfloat16 strides=(4096, 256, 2) contiguous=True
;   offset   8: d_in[1] k  shape=(2275, 16, 128) dtype=bfloat16 strides=(4096, 256, 2) contiguous=True
;   offset  16: d_in[2] v  shape=(2275, 16, 128) dtype=bfloat16 strides=(4096, 256, 2) contiguous=True
;   offset  24: d_in[3] cu  shape=(9,) dtype=int32 strides=(4,) contiguous=True
;   offset  32: d_out     shape=(2275, 16, 128) dtype=bfloat16 (2 bytes/elem)
"""

DOC = """;
; Varlen (packed) non-causal attention, one 512-thread workgroup per CU, schedule specialised for the fixed cu[] table.
;   waves 0..3 : one 32-row q tile each; software pipelined flash-attention loop (S^T = K Q^T, O^T += V^T P^T,
;                v_mfma_f32_32x32x16_bf16, fp32 scale/exp2/row sums, bf16 P).
;   waves 4..7 : stream K/V blocks into an LDS ring with LDS-DMA and compute a share of the extra q tiles;
;                partial results of a shared tile are merged through LDS.
;   row sums at run time and, whenever they could become unsafe, L_resc moves the reference to the true
;   L_near / L_far: per-workgroup and per-wave work descriptors (rows, lengths, LDS regions).
"""


def f2u(x):
    return struct.unpack("<I", struct.pack("<f", x))[0]


def cdiv(a, b):
    return (a + b - 1) // b


LDS_TOTAL = 163840
QBASE = 98304
XTRA = 131072
MLBASE = XTRA + 16384
PRGB = XTRA + 7 * 4096 + 2048
RDYB = XTRA + 6 * 4096 + 3072
CNTB = XTRA + 6 * 4096 + 2048
BIG = 0x4000

ROLES = [
    ("dual", (1, 6, 2), (4, 0, 4)),
    (5, 0, 6),
    (3, 0, 5), (3, 5, 5),
    ("dual", (3, 10, 1), (5, 6, 3)),
    (1, 0, 6),
    (6, 0, 5), (6, 5, 5),
    (7, 0, 5), (7, 5, 5), (0, 0, 5), (0, 5, 5),
    (2, 0, 4), (2, 4, 4), (2, 8, 3), (2, 11, 3),
]
QL = int(OPT.get("ql", "4"))
QLC = int(OPT.get("qlc", "3"))
QE = int(OPT.get("qe", "0"))


def nrec(rows):
    return (rows - 1) * ROWB + 256 if rows > 0 else 0


def build_tables():
    near, far, desc = [], [], []
    for ri, role in enumerate(ROLES):
        W = [None] * 8
        groups = []
        if role[0] == "dual":
            (sa, ta, na), (sb, tb, nb) = role[1], role[2]
            rowA, lenA, rowB, lenB, step = CU[sa], LEN[sa], CU[sb], LEN[sb], 32
            n_it = max(cdiv(lenA, 32), cdiv(lenB, 32))
            tiles = [(sa, ta + i, 0) for i in range(na)] + [(sb, tb + i, 1) for i in range(nb)]
            nq = len(tiles)
            for i in range(4):
                sq, tl, st = tiles[i]
                W[i] = dict(seq=sq, tile=tl, ql=i, type=2, stream=st, its=list(range(cdiv(LEN[sq], 32))), hastail=1)
            for i in range(4, nq):
                sq, tl, st = tiles[i]
                nb_ = cdiv(LEN[sq], 32)
                W[i + 2] = dict(seq=sq, tile=tl, ql=i, type=3, stream=st, its=list(range(nb_)), hastail=1,
                                G=1, reg=XTRA + 4096 * i)
        else:
            sa, t0, nq = role
            rowA, lenA, rowB, lenB, step = CU[sa], LEN[sa], CU[sa] + 32, LEN[sa] - 32, 64
            nkv = cdiv(lenA, 32)
            n_it = cdiv(nkv, 2)
            tiles = [(sa, t0 + i, 0) for i in range(nq)]
            for i in range(min(nq, 4)):
                W[i] = dict(seq=sa, tile=t0 + i, ql=i, type=1, stream=0, its=list(range(nkv)), hastail=1)
            nh = 4 // (nq - 4) if nq > 4 else 0
            for i in range(4, nq):
                ws = [4, 5, 6, 7] if nh == 4 else [4 + (i - 4), 6 + (i - 4)]
                for k, w in enumerate(ws):
                    blocks = [p for p in range(nkv) if p % nh == k]
                    W[w] = dict(seq=sa, tile=t0 + i, ql=i, type=3, stream=k % 2, its=[p // 2 for p in blocks],
                                hastail=int((nkv - 1) in blocks))
                groups.append(ws)
        qrows = [CU[sq] + 32 * tl for sq, tl, _ in tiles] + [0xfff] * (6 - nq)
        qrows = [r | (0x1000 if i < nq and tiles[i][2] else 0) for i, r in enumerate(qrows)]
        maskA = sum(1 << i for i, w in enumerate(W) if w and (w["type"] == 1 or w["stream"] == 0 or i < 4 and role[0] != "dual"))
        lastB = 2 * cdiv(lenB, step) + 1
        near.append([rowA * ROWB, nrec(lenA) | maskA, rowB * ROWB, nrec(lenB) | lastB, step * ROWB | (2 * n_it + 1),
                     qrows[0] | qrows[1] << 16, qrows[2] | qrows[3] << 16, qrows[4] | qrows[5] << 16])
        areas = [((n_it + 1) % 4) * 32768, ((n_it + 2) % 4) * 32768]
        recv = [areas[0], areas[0] + 12288, areas[1], areas[1] + 12288]
        for i in range(4):
            if W[i]:
                W[i]["reg"] = XTRA + 4096 * i
        for gi, g in enumerate(groups):
            G = len(g)
            for k, w in enumerate(g):
                W[w]["reg"] = recv[w - 4]
                W[w]["G"], W[w]["k"], W[w]["gi"] = G, k, gi
                if G == 4:
                    W[w]["send"] = [recv[g[(j + k) % 4] - 4] + (j - 1) * 4096 for j in (1, 2, 3)]
                    W[w]["src"] = [g[(k - j) % 4] for j in (1, 2, 3)]
                else:
                    o = g[1 - k]
                    W[w]["send"] = [0, recv[o - 4], recv[o - 4] + 4096]
                    W[w]["src"] = [o, o, o]
        for wi in range(8):
            w = W[wi]
            if OPT.get("xnohelp") and w and w.get("G", 0) > 1:
                w = None
            desc.append(w)
            if w is None:
                far.append([0] * 8)
                continue
            sq, its, typ, sc = w["seq"], w["its"], w["type"], w["stream"]
            tail = LEN[sq] % 32
            orow = CU[sq] + 32 * w["tile"]
            onr = min(32, CU[sq + 1] - orow)
            assert onr > 0 and tail > 0
            U = len(its) - 1
            a0, st = its[0], its[1] - its[0]
            assert all(its[i] == a0 + st * i for i in range(len(its))) and st <= 2 and a0 <= 1 and U >= 1
            if typ == 1:
                inc, prg0, prg1, need1, need2 = 1, 2, 4, 0, 2
            elif typ == 2:
                inc, prg0, prg1, need1, need2 = 2, 2, 4 + sc, sc, 4 + sc
            else:
                inc, prg0, prg1, need1, need2 = 2 * st, 2 * a0 + sc + 2, 2 * (a0 + 1) + sc + 2, max(QE if QE else 3, 2 * a0 + sc), 2 * (a0 + st) + sc
            needk = max(need1 + 2 * (typ == 2), 1)
            if typ != 3 and wi >= QL:
                need1 = max(need1, QLC)
            w.update(needk=needk)
            w.update(U=U, a0=a0, st=st, inc=inc, prg0=prg0, prg1=prg1, need1=need1, need2=need2, n_it=n_it)
            hm = 0
            if typ != 3:
                nlast = 2 * n_it + 1
                pub = prg0
                w["pubs"] = []
                for b in range(U):
                    val = prg1 + inc * (b + 1)
                    want = pub < nlast - 5 and (typ == 2 or b % 2 == 1 or OPT.get("puball"))
                    if groups and pub < nlast - 1 <= val:
                        want = True
                    if typ == 2 or U - 1 - b <= 1:
                        hm |= 1 << (U - 1 - b)
                    if want and OPT.get("nodpub"):
                        hm |= 0x10001 << (U - 1 - b)
                        pub = val
                        w["pubs"].append(b)
            G, k, gi = w.get("G", 0), w.get("k", 0), w.get("gi", 0)
            rot = k * (4 // G) if G > 1 else 0
            lastc = (U + 2) if typ == 1 else 2 * (its[-1] + 1) + sc
            w["lastc"] = lastc
            ent = [orow * ROWB | lastc, nrec(onr),
                   U | typ << 8 | inc << 12 | (tail if w["hastail"] else 32) << 16 | G << 24 | rot << 28 | gi << 30,
                   prg0 | prg1 << 8 | need1 << 16 | need2 << 24,
                   w["reg"] | w["ql"] << 20 | (1 - sc) << 24 | a0 << 25 | st << 26 | int(typ != 3 and tail <= 16 and not OPT.get("noshort")) << 31]
            if G > 1:
                ent += [w["send"][j] | ((w["src"][j] - 4) << 24) for j in range(3)]
            if typ != 3:
                ent += [hm, needk]
            ent += [0] * (8 - len(ent))
            far.append(ent)
    return near, far, desc


class R:
    pass


v = R()
v.kd0, v.kd1, v.vd0, v.vd1 = 1, 2, 3, 4
v.ka0r, v.ka1r = 5, 6
v.ka0, v.ka1 = 7, 8
v.rdya, v.rdy = 9, 10
v.lane = 11
v.nmc, v.l = 12, 13
v.ps = 14
v.t0, v.t1, v.t2, v.t3 = 15, 16, 17, 18
v.pf = 19
v.st = 20
v.prga, v.prg = 21, 22
v.fo = 23
v.pra = 0
v.Q = 24
v.O = 56
v.S = 120
v.B = 136
v.KF = 152
v.VF = 184
v.X = 216
v.E = 232
v.P = 240
v.var = 248
v.va = 252
NV = 256

s = R()
s.q, s.k, s.vv, s.cu, s.out = 4, 6, 8, 10, 12
s.near = 16
s.far = 24
s.kA, s.kB, s.vA, s.vB, s.sq, s.so = 32, 36, 40, 44, 48, 52
s.wave, s.hoff = 56, 57
s.n = 58
s.thr = 59
s.soff = 60
s.dslot = 61
s.U = 62
s.mu = 63
s.koff, s.voff = 64, 65
s.need, s.chk = 66, 67
s.t0, s.t1, s.t2, s.t3 = 68, 69, 70, 71
s.pc = 72
s.stp = 74
s.ws = 76
s.sti = 78
s.ret = 79
s.foff = 80
s.reg = 81
s.m1 = 82
s.lnd = 83
s.inc = 84
s.col = 85
s.astep = 88
s.sret = 89
s.guard = 90
s.iss = 91
s.d0, s.rdw = 92, 93
s.qea, s.qeb = 94, 95
s.stepb = 97
NS = 100

C_SCALE = (128 ** -0.5) * math.log2(math.e)
CL = "0x%x" % f2u(C_SCALE)
THRESH = 4096.0

out = []


def e(x):
    out.append("    " + x)


def lab(x):
    out.append(x + ":")


def vr(b, n):
    return "v[%d:%d]" % (b, b + n - 1)


def sr(b, n):
    return "s[%d:%d]" % (b, b + n - 1)


def emit(lst):
    for x in lst:
        if x is None:
            continue
        if x.endswith(":"):
            out.append(x)
        else:
            e(x)


def stamp_l(k=None, real=False):
    if not STAMPS or (LITE and k not in (7, 61)):
        return []
    if OPT.get("rt") and k is None and not real:
        return stamp_l(None, True) + stamp_l(None, "c")
    real = real is True
    r = ["%s s[%d:%d]" % ("s_memrealtime" if real else "s_memtime", s.stp, s.stp + 1), "s_waitcnt lgkmcnt(0)"]
    if k is None:
        r += ["s_mov_b32 s%d, m0" % (s.stp + 1), "s_mov_b32 m0, s%d" % s.sti, "s_nop 0",
              "v_writelane_b32 v%d, s%d, m0" % (v.st, s.stp),
              "s_add_u32 s%d, s%d, 1" % (s.sti, s.sti), "s_mov_b32 m0, s%d" % (s.stp + 1)]
    else:
        r += ["v_writelane_b32 v%d, s%d, %d" % (v.st, s.stp, k)]
    return r


def stamp(k=None, real=False):
    emit(stamp_l(k, real))


SPIN = OPT.get("spin")


def mark(name):
    if SPIN == name:
        e("s_memrealtime s[%d:%d]" % (s.stp, s.stp + 1))
        e("s_waitcnt lgkmcnt(0)")


def kread(t, dst, st=0):
    return "ds_read_b128 %s, v%d offset:%d" % (vr(dst + 4 * t, 4), v.ka1 if t % 2 else v.ka0,
                                               (t // 4) * 16384 + ((t // 2) % 2) * 256 + st * 1024)


def vread(i, st=0, one=False):
    t, bb, ss = i // 8, (i // 2) % 4, i % 2
    reg = v.VF + (t * 4 + bb) * 4 + ss * 2
    if one:
        return "ds_read_b64_tr_b16 %s, v%d offset:%d" % (vr(reg, 2), v.va, (4 * t + 2 * ss) * 4096 + st * 1024 + bb * 256)
    return "ds_read_b64_tr_b16 %s, v%d offset:%d" % (vr(reg, 2), v.va + bb, (4 * t + 2 * ss) * 4096 + st * 1024)


def ld(kv, col, half, so):
    srd = {("K", 0): s.kA, ("K", 1): s.kB, ("V", 0): s.vA, ("V", 1): s.vB}[(kv, col)]
    off = (2048 if kv == "V" else 0) + (1024 if col == 0 else 0)
    vo = {("K", 0): v.kd0, ("K", 1): v.kd1, ("V", 0): v.vd0, ("V", 1): v.vd1}[(kv, half)]
    return "buffer_load_dwordx4 v%d, %s, s%d offen %s%s lds" % (vo, sr(srd, 4), so, "offset:%d " % off if off else "", LDF_K)


STEP_ADV = ["s_add_u32 s%d, s%d, s%d" % (s.soff, s.soff, s.stepb),
            "s_add_u32 s%d, s%d, 0x8000" % (s.dslot, s.dslot),
            "s_and_b32 s%d, s%d, 0x1ffff" % (s.dslot, s.dslot)]


FLAG = ["s_mov_b32 m0, s%d" % s.rdw,
        "v_add_u32 v%d, 4, v%d" % (v.fo, v.fo),
        "global_load_lds_dword v%d, %s" % (v.fo, sr(s.pc, 2))]


def chunk(col, k_only=False, pace=0, flag=True):
    p = []
    if pace:
        p = ["s_sleep %d" % pace if pace < 16 else "s_nop %d" % (pace - 16)]
    r = []
    for half, m in ((0, "s_mov_b32 m0, s%d" % s.dslot), (1, "s_add_u32 m0, s%d, 0x4000" % s.dslot)):
        r += [m, "s_nop 0"]
        if not k_only:
            r += [ld("V", col, half, s.soff)] + p
        r += [ld("K", col, half, s.soff)] + p
    return r + (FLAG if flag else [])


def qk(t):
    return "v_mfma_f32_32x32x16_bf16 %s, %s, %s, %s" % (vr(v.S, 16), vr(v.KF + 4 * t, 4), vr(v.Q + 4 * t, 4), vr(v.S, 16))


def pv(i):
    t, bb = i // 4, i % 4
    return "v_mfma_f32_32x32x16_bf16 %s, %s, %s, %s" % (
        vr(v.O + 16 * bb, 16), vr(v.VF + (t * 4 + bb) * 4, 4), vr(v.P + 4 * t, 4), vr(v.O + 16 * bb, 16))


def F(r):
    return "v_fmamk_f32 v%d, v%d, %s, v%d" % (v.X + r, v.S + r, CL, v.nmc)


def ex(r):
    return "v_exp_f32 v%d, v%d" % (v.E + r % 8, v.X + r)


def add(r):
    if r == 0:
        return None
    if r == 1:
        return "v_add_f32 v%d, v%d, v%d" % (v.ps, v.E, v.E + 1)
    return "v_add_f32 v%d, v%d, v%d" % (v.ps, v.ps, v.E + r % 8)


def cvt(i):
    return "v_cvt_pk_bf16_f32 v%d, v%d, v%d" % (v.P + i, v.E + (2 * i) % 8, v.E + (2 * i + 1) % 8)


def soft_half_plain(h):
    r = [ex(8 * h + i) for i in range(8)]
    r += [x for x in (add(8 * h + i) for i in range(8)) if x]
    r += [cvt(4 * h + i) for i in range(4)]
    return r


CMP = "v_cmp_lt_f32 vcc, s%d, v%d" % (s.thr, v.ps)
LADD = "v_add_f32 v%d, v%d, v%d" % (v.l, v.l, v.ps)
PRGW = "ds_write_b32 v%d, v%d" % (v.prga, v.prg)
RDYR = "ds_read_b32 v%d, v%d" % (v.rdy, v.rdya)
PRGINC = "v_add_u32 v%d, s%d, v%d" % (v.prg, s.inc, v.prg)
NEEDINC = "s_add_u32 s%d, s%d, s%d" % (s.need, s.need, s.inc)
QK0 = "v_mfma_f32_32x32x16_bf16 %s, %s, %s, 0" % (vr(v.S, 16), vr(v.KF, 4), vr(v.Q, 4))
QK0M = "v_mfma_f32_32x32x16_bf16 %s, %s, %s, %s" % (vr(v.S, 16), vr(v.KF, 4), vr(v.Q, 4), vr(v.B, 16))
rets, srets = [], []


def newret():
    rets.append("L_ret%d" % len(rets))
    return len(rets) - 1


def kaddr():
    return ["v_add_u32 v%d, s%d, v%d" % (v.ka0, s.koff, v.ka0r),
            "v_add_u32 v%d, s%d, v%d" % (v.ka1, s.koff, v.ka1r)]


def vaddr():
    return ["v_add_u32 v%d, s%d, v%d" % (v.va + j, s.voff, v.var + j) for j in range(4)]


def adv(reg):
    return ["s_add_u32 s%d, s%d, s%d" % (reg, reg, s.astep), "s_and_b32 s%d, s%d, 0x1ffff" % (reg, reg)]


_sc = [0]


def svc_cap():
    r = ["s_waitcnt vmcnt(%s)" % OPT.get("cap", "20")]
    if OPT.get("cap0"):
        _sc[0] += 1
        r += ["s_and_b32 s%d, s%d, %s" % (s.t1, s.hoff, OPT.get("capm", "0x300")), "s_cbranch_scc1 L_sc%d" % _sc[0],
              "s_waitcnt vmcnt(%s)" % OPT["cap0"], "L_sc%d:" % _sc[0]]
    return r


def headmap():
    if OPT.get("gc"):
        tab = sum(int(OPT["gc"][2 * x + 1]) << (4 * x) for x in range(8))
        return ["s_lshl_b32 s%d, s2, 2" % s.t1,
                "s_lshr_b32 s%d, 0x%x, s%d" % (s.t1, tab, s.t1),
                "s_and_b32 s%d, s%d, 3" % (s.t1, s.t1),
                "s_bfe_u32 s%d, s2, 0x20003" % s.hoff,
                "s_lshl2_add_u32 s%d, s%d, s%d" % (s.t1, s.hoff, s.t1),
                "s_lshl_b32 s%d, s%d, 8" % (s.hoff, s.t1)]
    cm = OPT.get("cmap", "1302")
    if not cm:
        return ["s_and_b32 s%d, s2, 15" % s.t1, "s_lshl_b32 s%d, s%d, 8" % (s.hoff, s.t1)]
    tab = 0
    cls = [int(c) for c in cm]
    for i in range(16):
        x, hs = i & 7, i >> 3
        tab |= (cls[x >> 1] + 4 * (x & 1) + 8 * hs) << (4 * i)
    return ["s_lshl_b32 s%d, s2, 2" % s.t1,
            "s_lshr_b32 s%d, 0x%x, s%d" % (s.t1, tab & 0xffffffff, s.t1),
            "s_and_b32 s%d, s%d, 7" % (s.t1, s.t1),
            "s_and_b32 s%d, s2, 8" % s.hoff,
            "s_or_b32 s%d, s%d, s%d" % (s.t1, s.t1, s.hoff),
            "s_lshl_b32 s%d, s%d, 8" % (s.hoff, s.t1)]


def flag_init():
    return ["v_lshlrev_b32 v%d, 2, v0" % v.prga,
            "v_add_u32 v%d, %d, v%d" % (v.prga, PRGB - 4096, v.prga),
            "v_mov_b32 v%d, 0" % v.l,
            "ds_write_b32 v%d, v%d" % (v.prga, v.l),
            "ds_write_b32 v%d, v%d offset:4096" % (v.prga, v.l),
            "s_lshl_b32 s%d, s%d, 8" % (s.foff, s.foff),
            "s_lshr_b32 s%d, s%d, 1" % (s.t0, s.wave),
            "s_add_u32 s%d, s%d, s%d" % (s.foff, s.foff, s.t0)]


def far_load():
    r = []
    if STAMPS:
        r += ["v_mov_b32 v%d, 0" % v.st, "s_mov_b32 s%d, 8" % s.sti,
              "v_writelane_b32 v%d, s%d, 0" % (v.st, s.stp), "v_writelane_b32 v%d, s%d, 1" % (v.st, s.ws),
              "s_load_dwordx2 %s, s[0:1], 48" % sr(s.ws, 2)]
    return r + ["s_load_dwordx8 %s, %s, s%d offset:L_far-L_pc" % (sr(s.far, 8), sr(s.pc, 2), s.foff),
                "s_load_dwordx2 s[12:13], s[0:1], 32"]


def spin(n="1"):
    r = ["s_sleep %s" % n]
    if not OPT.get("nosafe"):
        r += ["s_sub_u32 s%d, s%d, 1" % (s.guard, s.guard), "s_cbranch_scc1 L_end"]
    return r


def sync_call(target=None):
    k = len(srets)
    srets.append(target or "L_sr%d" % k)
    return ["s_mov_b32 s%d, %d" % (s.sret, k), "s_branch L_sync"] + ([] if target else ["L_sr%d:" % k])


_pl = [0]


ool = []


def poll_rdy():
    _pl[0] += 1
    a, b = "L_pa%d" % _pl[0], "L_pb%d" % _pl[0]
    ool.append([a + ":"] + spin() + [RDYR, "s_waitcnt lgkmcnt(0)", "s_branch %s" % b])
    return ["s_min_u32 s%d, s%d, s%d" % (s.t2, s.need, s.mu), b + ":",
            "v_cmp_ge_u32 vcc, s%d, v%d" % (s.t2, v.rdy), "s_cbranch_vccnz %s" % a]


def body(kind):
    odd, hlp = kind != "even", kind == "hlp"
    st = 0 if odd else 1
    V = lambda i: vread(i, st, not hlp)
    K = lambda t: kread(t, v.KF, st)
    W = lambda n: "s_waitcnt lgkmcnt(%d)" % n
    k = newret()
    q = [
        [NEEDINC, V(0), V(1), ex(8), add(7), cvt(3)],
        ["s_mov_b32 s%d, %d" % (s.ret, k), V(2), V(3), ex(9), ex(10)],
        [W(4), V(4), V(5), ex(11), add(8), add(9)],
        ["s_sub_u32 s%d, s%d, 1" % (s.U, s.U), V(6), V(7), ex(12), ex(13)],
        [None, V(8), V(9), ex(14), add(10), add(11)],
        [None, V(10), V(11), ex(15), add(12), add(13)],
        [W(4), V(12), V(13), add(14), add(15), CMP, cvt(4)],
        ["s_cbranch_vccnz L_resc", "L_ret%d:" % k, V(14), V(15), LADD, cvt(5), cvt(6), cvt(7)],
    ]
    p = [
        ["s_nop 0", K(0), K(1), K(2), F(0), F(1), F(2)],
        [None, K(3), ex(0), F(3), F(4), F(5)],
        [None, K(4), ex(1), F(6), F(7), F(8)],
        [W(5), K(5), ex(2), add(1), F(9), F(10)],
        [None, K(6), ex(3), add(2), cvt(0), F(11)],
        [None, K(7), ex(4), add(3), cvt(1), F(12)],
        [W(4), ex(5), ex(6), add(4), F(13)],
        [None, ex(7), add(5), add(6), cvt(2), F(14), F(15)],
    ]
    if odd:
        q[4][0], q[5][0] = adv(s.voff)
        p[4][0], p[5][0] = adv(s.koff)
        va, ka = vaddr(), kaddr()
        p[1].append(va[0])
        if hlp:
            p[3].append(va[1])
            p[4].append(va[2])
            p[5].append(va[3])
        p[6].append(ka[0])
        p[7].append(ka[1])
    if not hlp:
        p[0][0] = "s_min_u32 s%d, s%d, s%d" % (s.chk, s.need, s.mu)
        p[1][0] = "s_bitcmp1_b32 s%d, s%d" % (s.far + 5, s.U)
        p[2][0] = "s_cselect_b32 s%d, -1, s%d" % (s.chk, s.chk)
        p[2][2:2] = [RDYR]
        p[6][0] = W(3)
        if odd and (not OPT.get("nodpub")):
            q[2].append("v_add_u32 v%d, 8, v%d" % (v.fo, v.fo))
            if OPT.get("pubq"):
                q[3][1:1] = ["global_load_lds_dword v%d, %s" % (v.fo, sr(s.pc, 2))]
            else:
                p[3][1:1] = ["global_load_lds_dword v%d, %s" % (v.fo, sr(s.pc, 2))]
        p[7][3:3] = ["v_cmp_ge_u32 vcc, s%d, v%d" % (s.chk, v.rdy)]
    else:
        q[1].append(PRGINC)
        q[7][4:4] = [PRGW]
        sc = sync_call()
        q[3][1:1] = [sc[0]]
        p[0][0:1] = stamp_l() + sc[1:] + stamp_l()
    lab("L_%s_m" % kind)
    e(QK0)
    lab("L_%s_a" % kind)
    emit(q[0])
    for t in range(1, 8):
        e(qk(t))
        emit(q[t])
    for i in range(8):
        e(pv(i))
        emit(p[i])
    if not hlp:
        stamp()


def gen():
    K = NAME + "_kernel"
    near, far, _ = build_tables()
    PACE = int(OPT.get("pace", "0"))
    out.append(HEADER + "; @launch grid=(256,1,1) block=(512,1,1) lds=%d" % LDS_TOTAL + "\n" + DOC.rstrip())
    out.append('.amdgcn_target "amdgcn-amd-amdhsa--gfx950"')
    out.append(".text")
    out.append(".globl " + K)
    out.append(".p2align 12")
    out.append(".p2align 8")
    out.append(".type %s,@function" % K)
    lab(K)
    L, N, Fa = v.lane, s.near, s.far
    if SPIN:
        e("s_memrealtime s[%d:%d]" % (s.ws, s.ws + 1))
        e("s_memrealtime s[%d:%d]" % (s.stp, s.stp + 1))
    if STAMPS:
        e("s_memrealtime s[%d:%d]" % (s.stp, s.stp + 1))
        e("s_memtime s[%d:%d]" % (s.ws, s.ws + 1))
    e("s_load_dwordx8 s[4:11], s[0:1], 0")
    e("s_getpc_b64 %s" % sr(s.pc, 2))
    lab("L_pc")
    if OPT.get("gc"):
        gm = sum((OPT["gc"][2 * x] == "L") << x for x in range(8)) * 0x01010101
        e("s_lshr_b32 s%d, s2, 5" % s.foff)
        e("s_bitcmp1_b32 0x%x, s2" % gm)
        e("s_cselect_b32 s%d, 8, 0" % s.t1)
        e("s_add_u32 s%d, s%d, s%d" % (s.foff, s.foff, s.t1))
    else:
        e("s_lshr_b32 s%d, s2, 4" % s.foff)
    e("s_lshl_b32 s%d, s%d, 5" % (s.t1, s.foff))
    e("s_load_dwordx8 %s, %s, s%d offset:L_near-L_pc" % (sr(s.near, 8), sr(s.pc, 2), s.t1))
    e("v_mul_u32_u24 v%d, PFSTRIDE, v0" % v.t0)
    e("v_readfirstlane_b32 s%d, v0" % s.wave)
    e("global_load_dword v%d, v%d, %s" % (v.pf, v.t0, sr(s.pc, 2)))
    e("s_cmp_ge_u32 s2, 256" if OPT.get("gc") else "s_cmp_ge_u32 s%d, 16" % s.foff)
    e("s_cbranch_scc1 L_end")
    e("s_bitcmp0_b32 s%d, 8" % s.wave)
    e("s_cbranch_scc1 L_mainpro")
    e("v_bfe_u32 v%d, v0, 5, 2" % v.t0)
    e("v_and_b32 v%d, 3, v0" % v.t1)
    e("v_xor_b32 v%d, v%d, v%d" % (v.t1, v.t1, v.t0))
    e("v_and_or_b32 v%d, v0, 12, v%d" % (v.t0, v.t0))
    e("v_lshlrev_b32 v%d, 12, v%d" % (v.t0, v.t0))
    e("v_lshl_add_u32 v%d, v%d, 4, v%d" % (v.t0, v.t1, v.t0))
    e("v_and_b32 v%d, 16, v0" % v.t1)
    e("v_lshl_add_u32 v%d, v%d, 2, v%d" % (v.t0, v.t1, v.t0))
    e("v_bfe_u32 v%d, v0, 7, 1" % v.t1)
    e("v_lshl_add_u32 v%d, v%d, 16, v%d" % (v.kd0, v.t1, v.t0))
    e("v_add_u32 v%d, 0x80, v%d" % (v.kd1, v.kd0))
    emit(headmap())
    e("s_lshl_b32 s%d, s%d, 6" % (s.dslot, s.wave))
    e("s_and_b32 s%d, s%d, 0x3000" % (s.dslot, s.dslot))
    e("s_mov_b32 s%d, 0x20000" % (s.sq + 3))
    e("s_mov_b32 s%d, s%d" % (s.kA + 3, s.sq + 3))
    e("s_mov_b32 s%d, 0" % s.soff)
    if OPT.get("thr", "0") != "0":
        e("s_lshr_b32 vcc_lo, %s, s%d" % (OPT.get("thr", "0"), s.t1))
        if OPT.get("thrr"):
            e("s_lshr_b32 s%d, %s, s%d" % (s.t0, OPT["thrr"], s.foff))
            e("s_and_b32 vcc_lo, vcc_lo, s%d" % s.t0)
        if OPT.get("thro"):
            e("s_lshr_b32 s%d, %s, s%d" % (s.t0, OPT["thro"], s.foff))
            e("s_or_b32 vcc_lo, vcc_lo, s%d" % s.t0)
        e("s_and_b32 vcc_lo, vcc_lo, 1")
        e("s_mov_b32 vcc_hi, 0")
    e("s_add_u32 s%d, s%d, %d" % (s.d0, s.dslot, QBASE))
    emit(flag_init())
    e("s_waitcnt lgkmcnt(0)")
    emit(far_load())
    mark("karg")
    THR = OPT.get("thr", "0")
    _th = [0]

    def throttle():
        if THR == "0":
            return []
        _th[0] += 1
        return ["s_cbranch_vccz L_th%d" % _th[0], "s_waitcnt vmcnt(%s)" % OPT.get("thn", "8"), "L_th%d:" % _th[0]]

    def qtile(i):
        w = N + 5 + i // 2
        r = ["s_bitcmp1_b32 s%d, %d" % (w, 12 + 16 * (i % 2)),
             "s_cselect_b32 s%d, s%d, s%d" % (s.sq + 2, s.qeb, s.qea),
             "s_bfe_u32 s%d, s%d, 0x%x" % (s.t0, w, 0xc0000 + 16 * (i % 2)),
             "s_add_u32 m0, s%d, %d" % (s.d0, (i // 4) * 32768 + (i % 4) * 1024),
             "s_lshl_b32 s%d, s%d, 12" % (s.t0, s.t0),
             "buffer_load_dwordx4 v%d, %s, s%d offen %s lds" % (v.kd0, sr(s.sq, 4), s.t0, LDF_Q),
             "s_add_u32 m0, m0, 0x4000", "s_nop 0",
             "buffer_load_dwordx4 v%d, %s, s%d offen %s lds" % (v.kd1, sr(s.sq, 4), s.t0, LDF_Q)]
        return r
    e("s_add_u32 s%d, s%d, s%d" % (s.qea, N + 0, N + 1))
    e("s_add_u32 s%d, s%d, s%d" % (s.qeb, N + 2, N + 3))
    e("s_add_u32 s%d, s%d, s%d" % (s.sq, s.q, s.hoff))
    e("s_addc_u32 s%d, s%d, 0" % (s.sq + 1, s.q + 1))
    emit(qtile(0))
    e("s_add_u32 s%d, s%d, s%d" % (N + 0, N + 0, s.hoff))
    e("s_add_u32 s%d, s%d, s%d" % (s.kA, s.k, N + 0))
    e("s_addc_u32 s%d, s%d, 0" % (s.kA + 1, s.k + 1))
    e("s_sub_u32 s%d, s%d, 1024" % (s.kA, s.kA))
    e("s_subb_u32 s%d, s%d, 0" % (s.kA + 1, s.kA + 1))
    e("s_add_u32 s%d, s%d, 1024" % (s.kA + 2, N + 1))
    emit(chunk(0, True, flag=False))
    for i in range(1, QL):
        emit((throttle() if i > 1 else []) + qtile(i))
    QLATE = sum((qtile(i) for i in range(QL, 4)), [])
    mark("iss")
    for b in (s.kB, s.vA, s.vB):
        e("s_mov_b32 s%d, s%d" % (b + 3, s.sq + 3))
    e("s_add_u32 s%d, s%d, s%d" % (N + 2, N + 2, s.hoff))
    e("s_add_u32 s%d, s%d, s%d" % (s.kB, s.k, N + 2))
    e("s_addc_u32 s%d, s%d, 0" % (s.kB + 1, s.k + 1))
    e("s_mov_b32 s%d, s%d" % (s.kB + 2, N + 3))
    e("s_and_b32 s%d, s%d, 0xfffff000" % (s.stepb, N + 4))
    e("s_lshr_b32 s%d, s%d, 4" % (s.rdw, s.dslot))
    e("s_add_u32 s%d, s%d, %d" % (s.rdw, s.rdw, RDYB))
    e("v_mov_b32 v%d, L_cnt-L_pc" % v.fo)
    for (srd, off, nr, d) in ((s.vA, N + 0, N + 1, 3072), (s.vB, N + 2, N + 3, 2048)):
        e("s_add_u32 s%d, s%d, %d" % (s.t0, s.stepb, d))
        e("s_add_u32 s%d, s%d, s%d" % (srd, s.vv, off))
        e("s_addc_u32 s%d, s%d, 0" % (srd + 1, s.vv + 1))
        e("s_sub_u32 s%d, s%d, s%d" % (srd, srd, s.t0))
        e("s_subb_u32 s%d, s%d, 0" % (srd + 1, srd + 1))
        e("s_add_u32 s%d, s%d, s%d" % (srd + 2, nr, s.t0))
    e("v_bfe_u32 v%d, v0, 2, 2" % v.t0)
    e("v_lshlrev_b32 v%d, 12, v%d" % (v.t0, v.t0))
    e("v_and_b32 v%d, 3, v0" % v.t1)
    e("v_lshl_add_u32 v%d, v%d, 4, v%d" % (v.t0, v.t1, v.t0))
    e("v_and_b32 v%d, 48, v0" % v.t1)
    e("v_lshl_add_u32 v%d, v%d, 2, v%d" % (v.t0, v.t1, v.t0))
    e("v_bfe_u32 v%d, v0, 6, 2" % v.t1)
    e("v_lshl_add_u32 v%d, v%d, 14, v%d" % (v.vd0, v.t1, v.t0))
    e("v_add_u32 v%d, 0x10000, v%d" % (v.vd1, v.vd0))
    e("s_setprio %s" % OPT.get("hprio", "3"))
    e("s_branch L_common")
    lab("L_mainpro")
    for b in (s.sq, s.kA, s.kB, s.vA, s.vB):
        e("s_mov_b64 %s, s[0:1]" % sr(b, 2))
        e("s_mov_b32 s%d, 0" % (b + 2))
        e("s_mov_b32 s%d, 0x20000" % (b + 3))
    for r in (v.kd0, v.kd1, v.vd0, v.vd1, v.fo):
        e("v_mov_b32 v%d, 0" % r)
    emit(headmap())
    emit(flag_init())
    e("s_waitcnt lgkmcnt(0)")
    emit(far_load())
    lab("L_common")
    e("s_lshr_b32 s%d, s%d, 6" % (s.wave, s.wave))
    e("v_and_b32 v%d, 63, v0" % L)
    e("v_and_b32 v%d, 7, v0" % v.t0)
    e("v_mul_u32_u24 v%d, 0x104, v%d" % (v.t0, v.t0))
    e("v_add_u32 v%d, %d, v%d" % (v.pra, PRGB, v.t0))
    e("v_add_u32 v%d, 0x1000, v%d" % (v.prga, v.prga))
    mark("prebar")
    e("s_barrier")
    if SPIN == "postbar":
        e("s_memrealtime s[%d:%d]" % (s.stp, s.stp + 1))
    e("s_cmp_lt_u32 s%d, 4" % s.wave)
    e("s_cbranch_scc1 L_common2")
    QH = qtile(4) + qtile(5)
    C2 = (QLATE if QLC == 2 else []) + (QH if QE == 2 else []) + chunk(0) + (QLATE if QLC == 3 else [])
    emit(FLAG + (QH if QE == 1 else []) + chunk(1, True) + STEP_ADV + (C2 if OPT.get("c2early") else []))
    lab("L_common2")
    mark("bar")
    e("v_bfe_u32 v%d, v%d, 4, 1" % (v.t0, L))
    e("v_lshlrev_b32 v%d, 13, v%d" % (v.t0, v.t0))
    e("v_bfe_u32 v%d, v%d, 1, 1" % (v.t1, L))
    e("v_lshl_add_u32 v%d, v%d, 12, v%d" % (v.t0, v.t1, v.t0))
    e("v_and_b32 v%d, 1, v%d" % (v.t1, L))
    e("v_lshl_add_u32 v%d, v%d, 9, v%d" % (v.t0, v.t1, v.t0))
    e("v_bfe_u32 v%d, v%d, 2, 2" % (v.t1, L))
    e("v_lshl_add_u32 v%d, v%d, 6, v%d" % (v.t0, v.t1, v.t0))
    e("v_lshrrev_b32 v%d, 5, v%d" % (v.t1, L))
    e("v_and_b32 v%d, 3, v%d" % (v.t2, L))
    e("v_xor_b32 v%d, v%d, v%d" % (v.t1, v.t1, v.t2))
    e("v_lshl_add_u32 v%d, v%d, 4, v%d" % (v.ka0r, v.t1, v.t0))
    e("v_xor_b32 v%d, 32, v%d" % (v.ka1r, v.ka0r))
    e("v_lshrrev_b32 v%d, 5, v%d" % (v.t0, L))
    e("v_lshlrev_b32 v%d, 12, v%d" % (v.t0, v.t0))
    e("v_bfe_u32 v%d, v%d, 2, 2" % (v.t1, L))
    e("v_lshl_add_u32 v%d, v%d, 6, v%d" % (v.t0, v.t1, v.t0))
    e("v_bfe_u32 v%d, v%d, 4, 1" % (v.t1, L))
    e("v_lshl_add_u32 v%d, v%d, 5, v%d" % (v.t0, v.t1, v.t0))
    e("v_lshl_add_u32 v%d, v%d, 3, v%d" % (v.t0, v.t2, v.t0))
    e("v_add_u32 v%d, 0x800, v%d" % (v.var, v.t0))
    e("s_mov_b32 s%d, 0x%x" % (s.thr, f2u(THRESH)))
    e("v_mul_u32_u24 v%d, 0x104, v%d" % (v.t1, v.t2))
    e("v_add_u32 v%d, %d, v%d" % (v.rdya, RDYB, v.t1))
    e("s_mov_b32 s%d, 0x8000" % s.guard)
    e("v_mov_b32 v%d, 0" % v.rdy)
    e("s_waitcnt lgkmcnt(0)")
    e("s_and_b32 s%d, s%d, 0xff" % (s.mu, Fa + 0))
    e("s_sub_u32 s%d, s%d, s%d" % (s.t0, Fa + 0, s.mu))
    e("s_add_u32 s%d, s%d, s%d" % (s.t0, s.t0, s.hoff))
    e("s_add_u32 s%d, s%d, s%d" % (s.so, s.out, s.t0))
    e("s_addc_u32 s%d, s%d, 0" % (s.so + 1, s.out + 1))
    e("s_mov_b32 s%d, s%d" % (s.so + 2, Fa + 1))
    e("s_mov_b32 s%d, 0x20000" % (s.so + 3))
    e("s_and_b32 s%d, s%d, 0xff" % (s.n, N + 4))
    e("s_bfe_u32 s%d, s%d, 0x40008" % (s.t3, Fa + 2))
    e("s_cbranch_scc1 L_work")
    e("v_mov_b32 v%d, %d" % (v.prg, BIG))
    e(PRGW)
    e("s_cmp_lt_u32 s%d, 4" % s.wave)
    e("s_cbranch_scc1 L_fin")
    e("s_branch L_presig")
    lab("L_work")
    mark("work")
    for r in range(0, 64, 2):
        e("v_pk_mov_b32 %s, 0, 0" % vr(v.O + r, 2))
    e("s_and_b32 s%d, s%d, 0xff" % (s.U, Fa + 2))
    e("s_bfe_u32 s%d, s%d, 0x4000c" % (s.inc, Fa + 2))
    e("s_and_b32 s%d, s%d, 0xfffff" % (s.reg, Fa + 4))
    e("s_bfe_u32 s%d, s%d, 0x80010" % (s.t0, Fa + 2))
    e("s_sub_u32 s%d, s%d, 1" % (s.t0, s.t0))
    e("v_lshrrev_b32 v%d, 5, v%d" % (v.t0, L))
    e("v_lshlrev_b32 v%d, 2, v%d" % (v.t0, v.t0))
    e("v_sub_u32 v%d, s%d, v%d" % (v.t0, s.t0, v.t0))
    e("v_mov_b32 v%d, 0xff800000" % v.t1)
    for r in range(16):
        cst = 8 * (r // 4) + r % 4
        e("v_subrev_u32 v%d, %d, v%d" % (v.B + r, cst, v.t0))
        e("v_ashrrev_i32 v%d, 31, v%d" % (v.B + r, v.B + r))
        e("v_and_b32 v%d, v%d, v%d" % (v.B + r, v.t1, v.B + r))
    e("s_bfe_u32 s%d, s%d, 0x20014" % (s.t0, Fa + 4))
    e("s_lshl_b32 s%d, s%d, 10" % (s.t0, s.t0))
    e("s_bfe_u32 s%d, s%d, 0x10016" % (s.t1, Fa + 4))
    e("s_lshl_b32 s%d, s%d, 15" % (s.t1, s.t1))
    e("s_add_u32 s%d, s%d, s%d" % (s.t0, s.t0, s.t1))
    e("s_add_u32 s%d, s%d, %d" % (s.koff, s.t0, QBASE))
    e("v_add_u32 v%d, s%d, v%d" % (v.t2, s.koff, v.ka0r))
    e("v_add_u32 v%d, s%d, v%d" % (v.t3, s.koff, v.ka1r))
    e("s_cmp_lg_u32 s%d, 1" % s.t3)
    e("s_cselect_b32 s%d, 1, 0" % s.m1)
    e("s_bfe_u32 s%d, s%d, 0x2001a" % (s.t0, Fa + 4))
    e("s_lshl_b32 s%d, s%d, 15" % (s.astep, s.t0))
    e("s_bfe_u32 s%d, s%d, 0x10019" % (s.t2, Fa + 4))
    e("s_bfe_u32 s%d, s%d, 0x10018" % (s.t0, Fa + 4))
    e("s_lshl_b32 s%d, s%d, 10" % (s.t0, s.t0))
    e("s_mul_i32 s%d, s%d, s%d" % (s.t1, s.t0, s.m1))
    e("s_sub_u32 s%d, s%d, s%d" % (s.t0, s.t0, s.t1))
    e("s_lshl_b32 s%d, s%d, 15" % (s.voff, s.t2))
    e("s_add_u32 s%d, s%d, s%d" % (s.koff, s.voff, s.t0))
    e("s_add_u32 s%d, s%d, 0x8000" % (s.voff, s.voff))
    e("v_add_u32 v%d, s%d, v%d" % (v.ka0r, s.t1, v.ka0r))
    e("v_add_u32 v%d, s%d, v%d" % (v.ka1r, s.t1, v.ka1r))
    e("s_bfe_u32 s%d, s%d, 0x2001c" % (s.t0, Fa + 2))
    for j in (3, 2, 1, 0):
        e("s_add_u32 s%d, s%d, %d" % (s.col, s.t0, j))
        e("s_and_b32 s%d, s%d, 3" % (s.col, s.col))
        e("s_lshl_b32 s%d, s%d, 8" % (s.col, s.col))
        e("s_add_u32 s%d, s%d, s%d" % (s.col, s.col, s.t1))
        e("v_add_u32 v%d, s%d, v%d" % (v.var + j, s.col, v.var))
    emit(vaddr() + kaddr())
    e("s_and_b32 s%d, s%d, 0xff" % (s.t0, Fa + 3))
    e("v_mov_b32 v%d, s%d" % (v.prg, s.t0))
    e("s_bfe_u32 s%d, s%d, 0x80010" % (s.need, Fa + 3))
    e("s_cmp_lt_u32 s%d, 4" % s.wave)
    e("s_cbranch_scc1 L_sig0")
    e(PRGW)
    lab("L_presig")
    mark("presig")
    emit(([] if OPT.get("c2early") else C2) + (QH if QE == 0 else []) + chunk(1) + STEP_ADV)
    e("s_mov_b32 s%d, 4" % s.iss)
    mark("c3")
    stamp()
    e("s_cmp_eq_u32 s%d, 0" % s.t3)
    e("s_cbranch_scc1 L_hdone")
    emit(sync_call("L_head"))
    lab("L_sig0")
    mark("msetup")
    e("s_bfe_u32 s%d, s%d, 0x80008" % (s.t0, Fa + 3))
    e("s_%s_u32 s%d, s%d, s%d" % ("sub" if OPT.get("pubq") else "add", s.t0, s.t0, s.m1))
    e("s_lshl_b32 s%d, s%d, 2" % (s.t0, s.t0))
    e("s_add_u32 s%d, s%d, L_cnt-L_pc-4" % (s.t0, s.t0))
    e("v_mov_b32 v%d, s%d" % (v.fo, s.t0))
    e("s_lshl_b32 s%d, s%d, 8" % (s.t0, s.wave))
    e("s_add_u32 m0, s%d, %d" % (s.t0, PRGB))
    stamp()
    emit(poll_rdy())
    mark("sig0")
    stamp()
    lab("L_head")
    qr = [kread(t, v.Q).replace("v%d " % v.ka0, "v%d " % v.t2).replace("v%d " % v.ka1, "v%d " % v.t3) for t in range(8)]
    kr = [kread(t, v.KF) for t in range(8)]
    for t in range(7):
        emit([qr[t], kr[t]])
    e("s_add_u32 s%d, s%d, s%d" % (s.t0, s.koff, s.astep))
    e("s_mul_i32 s%d, s%d, s%d" % (s.koff, s.t0, s.m1))
    e("s_waitcnt lgkmcnt(12)")
    e(QK0)
    emit([qr[7], kr[7]])
    for t in range(1, 8):
        e("s_waitcnt lgkmcnt(%d)" % (14 - 2 * t + (1 if t >= 2 else 0)))
        e(qk(t))
        if t == 1:
            e(RDYR)
            emit(kaddr())
            emit(adv(s.koff))
        if t == 2:
            e("v_and_b32 v%d, 31, v%d" % (v.t2, L))
            e("v_lshlrev_b32 v%d, 12, v%d" % (v.t2, v.t2))
            e("v_sub_u32 v%d, s%d, v%d" % (v.t2, Fa + 1, v.t2))
            e("v_ashrrev_i32 v%d, 31, v%d" % (v.t2, v.t2))
            e("v_and_b32 v%d, 0xff800000, v%d" % (v.t2, v.t2))
        if t == 3:
            e("v_mov_b32 v%d, L_cnt-L_pc+8" % v.t3)
            e("s_bfe_u32 s%d, s%d, 0x80008" % (s.t0, Fa + 3))
            e("v_mov_b32 v%d, s%d" % (v.prg, s.t0))
            e("s_mov_b32 s%d, s%d" % (s.need, Fa + 6))
    e("s_cmp_lt_u32 s%d, 4" % s.wave)
    e("s_waitcnt lgkmcnt(0)")
    e("s_cbranch_scc0 L_head2")
    e("global_load_lds_dword v%d, %s" % (v.t3, sr(s.pc, 2)))
    emit(poll_rdy())
    emit(kr)
    emit(kaddr())
    lab("L_head2")
    if OPT.get("lowh"):
        e("s_setprio 0")
    e("s_lshr_b32 s%d, s%d, 24" % (s.need, Fa + 3))
    e("s_nop 7")
    e("v_max3_f32 v%d, v%d, v%d, v%d" % (v.t0, v.S, v.S + 1, v.S + 2))
    e("v_max3_f32 v%d, v%d, v%d, v%d" % (v.t1, v.S + 3, v.S + 4, v.S + 5))
    for r in range(6, 14, 4):
        e("v_max3_f32 v%d, v%d, v%d, v%d" % (v.t0, v.t0, v.S + r, v.S + r + 1))
        e("v_max3_f32 v%d, v%d, v%d, v%d" % (v.t1, v.t1, v.S + r + 2, v.S + r + 3))
    e("v_max3_f32 v%d, v%d, v%d, v%d" % (v.t0, v.t0, v.S + 14, v.S + 15))
    e("v_max_f32 v%d, v%d, v%d" % (v.t0, v.t0, v.t1))
    e("v_mov_b32 v%d, v%d" % (v.t1, v.t0))
    e(RDYR)
    e("s_nop 0")
    e("v_permlane32_swap_b32 v%d, v%d" % (v.t0, v.t1))
    e("s_nop 1")
    e("v_max_f32 v%d, v%d, v%d" % (v.t0, v.t0, v.t1))
    e("v_fmamk_f32 v%d, v%d, 0x%x, v%d" % (v.nmc, v.t0, f2u(-C_SCALE), v.t2))
    for r in range(16):
        e(F(r))
    emit([ex(i) for i in range(8)] + [add(i) for i in range(1, 7)] + [cvt(0), cvt(1), cvt(2)])
    e("s_cmp_lt_u32 s%d, 4" % s.wave)
    e("s_waitcnt lgkmcnt(0)")
    e("s_cbranch_scc0 L_hlp_in")
    stamp()
    emit(poll_rdy())
    mark("loop")
    stamp()
    e("s_cmp_eq_u32 s%d, 1" % s.m1)
    e("s_cbranch_scc1 L_odd_m")
    out.append(".p2align %s" % OPT.get("al", "4"))
    for _ in range(int(OPT.get("sh", "0"))):
        e("s_nop 0")
    body("even")
    e("s_cbranch_vccnz L_hnd_even")
    body("odd")
    e("s_cbranch_vccz L_even_m")
    emit(poll_rdy())
    e("s_cmp_le_u32 s%d, 1" % s.U)
    e("s_cbranch_scc1 L_ho1")
    e("s_cmp_eq_u32 s%d, 0" % s.m1)
    e("s_cbranch_scc0 L_odd_m")
    e("s_branch L_even_m")
    lab("L_ho1")
    e("s_cmp_eq_u32 s%d, 0" % s.m1)
    e("s_cbranch_scc0 L_ho2")
    e("v_mov_b32 v%d, v%d" % (v.va + 1, v.va))
    e("v_add_u32 v%d, 0x400, v%d" % (v.va, v.va))
    e("s_branch L_last")
    lab("L_hnd_even")
    emit(poll_rdy())
    e("s_cmp_gt_u32 s%d, 1" % s.U)
    e("s_cbranch_scc1 L_odd_m")
    e("v_add_u32 v%d, 0x400, v%d" % (v.var, v.var))
    lab("L_ho2")
    emit(adv(s.voff))
    e("v_add_u32 v%d, s%d, v%d" % (v.va + 1, s.voff, v.var))
    e("s_branch L_last")
    lab("L_hlp_in")
    mark("hlpin")
    e(PRGW)
    stamp()
    emit(sync_call())
    stamp()
    for t in range(8):
        e(kread(t, v.KF))
    emit(kaddr())
    e("s_waitcnt lgkmcnt(4)")
    e("s_branch L_hnd_hlp")
    if OPT.get("alh"):
        out.append(".p2align %s" % OPT["alh"])
    for _ in range(int(OPT.get("shh", "0"))):
        e("s_nop 0")
    body("hlp")
    lab("L_hnd_hlp")
    e("s_cmp_gt_u32 s%d, 1" % s.U)
    e("s_cbranch_scc1 L_hlp_m")
    e("s_cmp_eq_u32 s%d, 0" % s.U)
    e("s_cbranch_scc1 L_tail")
    e(QK0M)
    e("s_branch L_hlp_a")
    tw, tr0, oo, rl, WA, CD = v.ka1, v.va + 2, v.ka1r, v.B + 8, v.B, v.VF

    def lsum():
        return ["v_mov_b32 v%d, v%d" % (v.t0, v.l), "s_nop 1",
                "v_permlane32_swap_b32 v%d, v%d" % (v.l, v.t0), "s_nop 1",
                "v_add_f32 v%d, v%d, v%d" % (v.l, v.l, v.t0)]

    def st_addr():
        a, b, c, d = v.t0, v.t1, v.t2, v.t3
        r = ["v_and_b32 v%d, 31, v%d" % (a, L),
             "v_lshrrev_b32 v%d, 2, v%d" % (b, L),
             "v_and_b32 v%d, 7, v%d" % (c, L),
             "v_lshrrev_b32 v%d, 3, v%d" % (d, L),
             "v_lshlrev_b32 v%d, 7, v%d" % (a, a),
             "v_xor_b32 v%d, v%d, v%d" % (b, b, L),
             "v_xor_b32 v%d, v%d, v%d" % (tr0, c, d),
             "v_and_b32 v%d, 8, v%d" % (b, b),
             "v_lshlrev_b32 v%d, 4, v%d" % (c, c),
             "v_add3_u32 v%d, v%d, v%d, s%d" % (a, a, b, s.reg),
             "v_lshlrev_b32 v%d, 4, v%d" % (tr0, tr0),
             "v_lshlrev_b32 v%d, 7, v%d" % (b, d),
             "v_add_u32 v%d, v%d, v%d" % (WA, a, c),
             "v_lshl_add_u32 v%d, v%d, 12, v%d" % (oo, d, c),
             "v_add3_u32 v%d, v%d, v%d, s%d" % (tr0, tr0, b, s.reg)]
        r += ["v_xor_b32 v%d, %d, v%d" % (WA + k, k * 16, WA) for k in range(1, 8)]
        r += ["v_add_u32 v%d, 0x800, v%d" % (tw, tr0)]
        return r

    def q_mul(bb, pk=True):
        o = v.O + 16 * bb
        if pk:
            return ["v_pk_mul_f32 %s, %s, %s op_sel_hi:[1,0]" % (vr(o + i, 2), vr(o + i, 2), vr(rl, 2)) for i in range(0, 16, 2)]
        return ["v_mul_f32 v%d, v%d, v%d" % (o + i, o + i, rl) for i in range(16)]

    def q_cvt(bb):
        return ["v_cvt_pk_bf16_f32 v%d, v%d, v%d" % (CD + 8 * bb + i, v.O + 16 * bb + 2 * i, v.O + 16 * bb + 2 * i + 1) for i in range(8)]

    def q_wr(bb):
        return ["ds_write_b64 v%d, %s" % (WA + (4 * bb + g) % 8, vr(CD + 8 * bb + 2 * g, 2)) for g in range(4)]

    def mix(valu, other):
        r, n, m = [], len(valu), len(other)
        k = 0
        for i, x in enumerate(valu):
            while k < m and k * n <= i * m:
                r.append(other[k]); k += 1
            r.append(x)
        return r + other[k:]

    def pack_q(bb, norm=True):
        return (q_mul(bb) if norm else []) + q_cvt(bb) + q_wr(bb)

    def rd_half(hh):
        return [("ds_read2_b64 %s, v%d offset0:129 offset1:128" if k % 2 else "ds_read_b128 %s, v%d")
                % (vr(v.KF + 16 * hh + 4 * k, 4), tw if k >= 2 else tr0) for k in range(4)]

    def st_one(hh, k):
        return ["buffer_store_dwordx4 %s, v%d, %s, s%d offen offset:%d %s" % (
                    vr(v.KF + 16 * hh + 4 * k, 4), oo, sr(s.so, 4), s.col + k if k < 3 else s.t1, 128 * hh,
                    STF if hh == 0 else OPT.get("st2", OPT.get("st", "sc1")).replace("+", " ").replace("none", ""))]

    sa = st_addr()
    cols = ["s_mov_b32 s%d, 0" % s.col, "s_mov_b32 s%d, 0x8000" % (s.col + 1),
            "s_mov_b32 s%d, 0x10000" % (s.col + 2), "s_mov_b32 s%d, 0x18000" % s.t1]
    RCP = "v_rcp_f32 v%d, v%d" % (rl, v.l)
    GL = "global_load_lds_dword v%d, %s" % (v.fo, sr(s.pc, 2))
    FO31 = "v_mov_b32 v%d, L_cnt-L_pc+124" % v.fo
    lab("L_tail")
    mark("tail")
    if not OPT.get("nolowt"):
        e("s_setprio 0")
    k = newret()
    for i in range(12):
        e(vread(i))
    emit([ex(8), add(7), cvt(3)] + [ex(i) for i in range(9, 16)])
    e("v_mov_b32 v%d, %d" % (v.prg, BIG))
    for i in range(12, 16):
        e(vread(i))
    e(PRGW)
    emit([add(i) for i in range(8, 16)] + [CMP, cvt(4), "s_mov_b32 s%d, %d" % (s.ret, k), "s_cbranch_vccnz L_resc",
                                           "L_ret%d:" % k, cvt(5), cvt(6), cvt(7), LADD])
    e("s_waitcnt lgkmcnt(0)")
    for i in range(8):
        e(pv(i))
    e("s_branch L_hdone")
    lab("L_solo")
    emit(lsum() + [RCP] + sa + cols + q_mul(0) + q_cvt(0) + ["s_branch L_tail3"])
    V = lambda i: vread(i, 0, True)
    W = lambda n: "s_waitcnt lgkmcnt(%d)" % n

    def V2(i):
        t, bb, ss = i // 8, (i // 2) % 4, i % 2
        return "ds_read_b64_tr_b16 %s, v%d offset:%d" % (vr(v.KF + (t * 4 + bb) * 4 + ss * 2, 2), v.va + 1,
                                                         (4 * t + 2 * ss) * 4096 + bb * 256)

    def pv2(i):
        return pv(i).replace(vr(v.VF + 4 * i, 4), vr(v.KF + 4 * i, 4))
    k = newret()
    q = [
        [NEEDINC, "s_lshl2_add_u32 s%d, s%d, L_cnt-L_pc" % (s.t0, s.mu), V(0), V(1), ex(8), add(7), cvt(3)],
        ["s_mov_b32 s%d, %d" % (s.ret, k), V(2), V(3), ex(9), ex(10), "v_mov_b32 v%d, s%d" % (v.fo, s.t0)],
        [W(4), GL, V(4), V(5), ex(11), add(8), add(9)],
        [cols[0], V(6), V(7), RDYR, ex(12), ex(13)],
        [cols[1], V(8), V(9), ex(14), add(10), add(11)],
        [cols[2], V(10), V(11), ex(15), add(12), add(13)],
        [W(4), V(12), V(13), add(14), add(15), CMP, cvt(4)],
        ["s_cbranch_vccnz L_resc", "L_ret%d:" % k, V(14), V(15), LADD, cvt(5), cvt(6), cvt(7)],
    ]
    lab("L_last")
    mark("tail")
    for t in range(8):
        e(QK0M if t == 0 else qk(t))
        emit(q[t])
    e(pv(0))
    emit(poll_rdy())
    e("s_bitcmp1_b32 s%d, 31" % (Fa + 4))
    e("s_cbranch_scc1 L_lasts")
    k = newret()
    vo = [0, 1, 8, 9, 2, 3, 10, 11, 4, 5, 12, 13, 6, 7, 14, 15]
    v2 = [V2(i) for i in vo]
    p = [
        v2[0:3] + [F(0), F(1), F(2), F(3)],
        [cols[3]] + v2[3:5] + [ex(0), ex(1), F(4), F(5), F(6), F(7)],
        ["s_mov_b32 s%d, %d" % (s.ret, k)] + v2[5:7] + [ex(2), ex(3), add(1), F(8), F(9), F(10)],
        [W(7)] + v2[7:10] + [ex(4), ex(5), add(2), add(3), F(11), F(12)],
        [None] + v2[10:12] + [ex(6), ex(7), cvt(0), cvt(1), add(4), add(5), F(13)],
        [None] + v2[12:14] + [ex(8), ex(9), cvt(2), add(6), add(7), cvt(3), F(14), F(15)],
        [None] + v2[14:16] + [ex(10), ex(11), ex(12), add(8), add(9), FO31],
        [None, ex(13), ex(14), ex(15), add(10), add(11), add(12), add(13), add(14), add(15), CMP, cvt(4), cvt(5), cvt(6), cvt(7),
         "s_cbranch_vccnz L_resc", "L_ret%d:" % k, LADD, W(0)],
    ]
    emit(p[0])
    for i in range(1, 8):
        e(pv(i))
        emit(p[i])
    m0_, m1_, c0_ = q_mul(0, False), q_mul(1, False), q_cvt(0)
    emit([pv2(0), GL] + lsum() + [RCP])
    emit([pv2(4)] + sa[0:8])
    emit([pv2(1)] + sa[8:16])
    emit([pv2(5)] + sa[16:])
    emit([pv2(2)] + m0_[0:6])
    emit([pv2(6)] + m0_[6:12])
    emit([pv2(3)] + m0_[12:] + c0_[:2])
    emit([pv2(7)] + c0_[2:])
    lab("L_tail3")
    stamp(5)
    emit(mix(q_mul(1) + q_cvt(1), q_wr(0)))
    emit(mix(q_mul(2) + q_cvt(2), q_wr(1) + rd_half(0)))
    emit(mix(q_mul(3) + q_cvt(3), q_wr(2) + ["s_waitcnt lgkmcnt(4)"] + st_one(0, 0) + st_one(0, 1)))
    emit(q_wr(3) + rd_half(1) + st_one(0, 2) + st_one(0, 3))
    stamp(4)
    for k in range(4):
        emit(["s_waitcnt lgkmcnt(%d)" % (3 - k)] + st_one(1, k))
    k = newret()
    v2 = [V2(i) for i in range(8)]
    ps_ = [
        v2[0:3] + [F(0), F(1), F(2), F(3)],
        [cols[3]] + v2[3:5] + [ex(0), F(4), F(5), F(6), F(7)],
        ["s_mov_b32 s%d, %d" % (s.ret, k)] + v2[5:7] + [ex(1), ex(2), FO31],
        [W(7)] + v2[7:8] + [ex(3), ex(4), add(1), add(2)],
        [None, ex(5), ex(6), cvt(0), add(3), cvt(1)],
        [None, ex(7), add(4), add(5), cvt(2), add(6)],
        [None, add(7), cvt(3), CMP] + sa[0:4],
        [W(0), GL] + sa[4:10] + ["s_cbranch_vccnz L_resc8", "L_ret%d:" % k, LADD],
    ]
    blk = ["L_lasts:"] + ps_[0]
    for i in range(1, 8):
        blk += [pv(i)] + ps_[i]
    ls_ = [x.replace("v%d" % v.t0, "v%d" % v.ps) for x in lsum()]
    blk += [pv2(0)] + ls_ + [RCP] + [pv2(1)] + sa[10:17] + [pv2(2)] + sa[17:] + [pv2(3)] + q_mul(0, False) + q_cvt(0) + ["s_branch L_tail3"]
    ool.append(blk)
    ool.append(["L_resc8:"] + [F(r) for r in range(8, 16)] + ["s_branch L_resc"])
    lab("L_fin")
    if SPIN:
        mark("st")
        e("s_waitcnt vmcnt(0)")
        mark("end")
        if SPIN == "glob":
            e("s_load_dwordx2 s[98:99], s[0:1], 40")
            e("s_not_b32 s%d, s%d" % (s.t0, s.ws))
            e("v_mov_b32 v%d, s%d" % (v.t1, s.t0))
            e("v_mov_b32 v%d, 0" % v.t0)
            e("s_waitcnt lgkmcnt(0)")
            e("s_cmp_lg_u32 s%d, 0" % s.wave)
            e("s_cbranch_scc1 L_g1")
            e("s_mov_b64 exec, 1")
            e("global_atomic_umax v%d, v%d, s[98:99]" % (v.t0, v.t1))
            e("s_mov_b64 exec, -1")
            lab("L_g1")
        e("s_sub_u32 s%d, s%d, s%d" % (s.t0, s.stp, s.ws))
        e("s_mul_i32 s%d, s%d, %s" % (s.t0, s.t0, OPT.get("amp", "2")))
        if OPT.get("wsel"):
            e("s_lshr_b32 s%d, %s, s%d" % (s.t1, OPT["wsel"], s.wave))
            e("s_and_b32 s%d, s%d, 1" % (s.t1, s.t1))
            e("s_mul_i32 s%d, s%d, s%d" % (s.t0, s.t0, s.t1))
        if OPT.get("rmask"):
            e("s_and_b32 s%d, s2, 15" % s.t1 if OPT.get("hsel") else "s_lshr_b32 s%d, s2, 4" % s.t1)
            e("s_lshr_b32 s%d, %s, s%d" % (s.t1, OPT["rmask"], s.t1))
            e("s_and_b32 s%d, s%d, 1" % (s.t1, s.t1))
            e("s_mul_i32 s%d, s%d, s%d" % (s.t0, s.t0, s.t1))
        e("s_add_u32 s%d, s%d, 3000" % (s.t0, s.t0))
        lab("L_spin")
        e("s_sleep 2")
        e("s_memrealtime s[%d:%d]" % (s.stp, s.stp + 1))
        e("s_waitcnt lgkmcnt(0)")
        e("s_sub_u32 s%d, s%d, s%d" % (s.t1, s.stp, s.ws))
        e("s_cmp_lt_u32 s%d, s%d" % (s.t1, s.t0))
        e("s_cbranch_scc1 L_spin")
        if SPIN == "glob":
            e("global_load_dword v%d, v%d, s[98:99] sc0 sc1" % (v.t1, v.t0))
            e("s_waitcnt vmcnt(0)")
            e("v_readfirstlane_b32 s%d, v%d" % (s.t2, v.t1))
            e("s_not_b32 s%d, s%d" % (s.t2, s.t2))
            lab("L_spin2")
            e("s_sleep 2")
            e("s_memrealtime s[%d:%d]" % (s.stp, s.stp + 1))
            e("s_waitcnt lgkmcnt(0)")
            e("s_sub_u32 s%d, s%d, s%d" % (s.t1, s.stp, s.t2))
            e("s_cmp_lt_u32 s%d, 4000" % s.t1)
            e("s_cbranch_scc1 L_spin2")
    if STAMPS:
        stamp(6)
        e("s_waitcnt vmcnt(0)")
        stamp(7)
        stamp(61, True)
        e("s_getreg_b32 s%d, hwreg(HW_REG_XCC_ID)" % s.stp)
        e("v_writelane_b32 v%d, s%d, 62" % (v.st, s.stp))
        e("s_lshl_b32 s%d, s2, 3" % s.t0)
        e("s_add_u32 s%d, s%d, s%d" % (s.t0, s.t0, s.wave))
        e("s_lshl_b32 s%d, s%d, 8" % (s.t0, s.t0))
        e("v_lshlrev_b32 v%d, 2, v%d" % (v.t0, v.lane))
        e("v_add_u32 v%d, s%d, v%d" % (v.t0, s.t0, v.t0))
        if OPT.get("dbg"):
            e("v_readlane_b32 s%d, v%d, 0" % (s.t0, v.st))
            e("v_readlane_b32 s%d, v%d, 61" % (s.t1, v.st))
            e("v_readlane_b32 s%d, v%d, 1" % (s.t2, v.st))
            e("s_not_b32 s%d, s%d" % (s.t3, s.t0))
            e("v_cmp_ne_u32 vcc, 0, v%d" % v.st)
            e("v_subrev_u32 v%d, s%d, v%d" % (v.t1, s.t2, v.st))
            e("s_nop 1")
            e("v_cndmask_b32 v%d, 0, v%d, vcc" % (v.t1, v.t1))
            e("v_writelane_b32 v%d, s%d, 0" % (v.t1, s.t3))
            e("v_writelane_b32 v%d, s%d, 1" % (v.t1, s.t1))
            e("v_writelane_b32 v%d, s%d, 15" % (v.t1, s.t0))
            e("v_lshlrev_b32 v%d, 2, v%d" % (v.t0, v.lane))
            e("s_cmp_lt_u32 s%d, 4" % s.wave)
            e("s_cselect_b32 s%d, 0xffff, 0x80ff" % s.t0 if False else "s_mov_b32 s%d, 0x80ff" % s.t0)
            e("s_cselect_b32 exec_lo, 0xffff, s%d" % s.t0)
            e("s_mov_b32 exec_hi, 0")
            e("global_atomic_umax v%d, v%d, %s" % (v.t0, v.t1, sr(s.ws, 2)))
        else:
            e("global_store_dword v%d, v%d, %s" % (v.t0, v.st, sr(s.ws, 2)))
    lab("L_end")
    e("s_endpgm")
    for blk in ool:
        emit(blk)
    lab("L_sync")
    e("s_setprio %s" % OPT.get("sprio", "0"))
    e("s_min_u32 s%d, s%d, s%d" % (s.t2, s.need, s.mu))
    e("s_cmp_eq_u32 s%d, 0x20000" % s.stepb)
    e("s_cselect_b32 s%d, %s, %s" % (s.t3, OPT.get("lookd", "6"), OPT.get("look", "2")))
    e("s_cselect_b32 s%d, %s, %s" % (s.chk, OPT.get("ward", "5"), OPT.get("war", "4")))
    e("s_add_u32 s%d, s%d, s%d" % (s.t3, s.need, s.t3))
    e("s_min_u32 s%d, s%d, s%d" % (s.t3, s.t3, s.n))
    lab("L_svc")
    e("ds_read_b32 v%d, v%d" % (v.t1, v.pra))
    e(RDYR)
    e("s_cmp_lt_u32 s%d, %s" % (s.iss, OPT.get("warn", "8")))
    e("s_cselect_b32 s%d, s%d, 5" % (s.t1, s.chk))
    e("s_sub_i32 s%d, s%d, s%d" % (s.t1, s.iss, s.t1))
    e("s_cmp_gt_u32 s%d, s%d" % (s.iss, s.t3))
    e("s_waitcnt lgkmcnt(0)")
    e("s_cbranch_scc0 L_svc1")
    e("v_cmp_ge_u32 vcc, s%d, v%d" % (s.t2, v.rdy))
    e("s_cbranch_vccz L_svcx")
    e("s_cmp_gt_u32 s%d, s%d" % (s.iss, s.n))
    e("s_cbranch_scc1 L_svcs")
    lab("L_svc1")
    e("v_cmp_gt_i32 vcc, s%d, v%d" % (s.t1, v.t1))
    e("s_bitcmp1_b32 s%d, 0" % s.iss)
    e("s_cbranch_scc1 L_svcB")
    e("s_cmp_lt_u32 s%d, 8" % s.iss)
    e("s_cselect_b32 s%d, -1, s%d" % (s.t1, N + 1))
    e("s_and_b32 s%d, s%d, vcc_lo" % (s.t1, s.t1))
    e("s_and_b32 s%d, s%d, 0xff" % (s.t1, s.t1))
    e("s_cbranch_scc1 L_svc2")
    e("s_add_u32 s%d, s%d, 1" % (s.iss, s.iss))
    emit(svc_cap())
    emit(chunk(0))
    e("s_branch L_svc")
    lab("L_svcB")
    e("s_and_b32 s%d, s%d, 0xff" % (s.t1, N + 3))
    e("s_cmp_gt_u32 s%d, s%d" % (s.iss, s.t1))
    e("s_cbranch_scc1 L_svcF")
    e("s_cbranch_vccnz L_svc2")
    emit(svc_cap())
    emit(chunk(1, flag=False))
    lab("L_svcF")
    e("s_add_u32 s%d, s%d, 1" % (s.iss, s.iss))
    emit(FLAG + STEP_ADV)
    e("s_branch L_svc")
    lab("L_svc2")
    e("v_cmp_ge_u32 vcc, s%d, v%d" % (s.t2, v.rdy))
    e("s_cbranch_vccz L_svcx")
    lab("L_svcs")
    emit(spin(OPT.get("slp", "2")))
    e("s_branch L_svc")
    lab("L_svcx")
    e("s_setprio %s" % OPT.get("hprio", "3"))
    SRET_AT = len(out)
    lab("L_hdone")
    e("s_mov_b32 s%d, s%d" % (s.need, s.n))
    e("s_mov_b32 s%d, s%d" % (s.mu, s.n))
    emit(sync_call())
    e("s_sub_u32 s%d, s%d, 1" % (s.t2, s.n))
    e("s_bfe_u32 s%d, s%d, 0x40018" % (s.n, Fa + 2))
    e("s_cbranch_scc0 L_fin")
    e("s_cmp_eq_u32 s%d, 1" % s.n)
    e("s_cbranch_scc1 L_solo")
    e("s_setprio %s" % OPT.get("eprio", "0"))
    stamp(5)
    l16, l8, xa, cnt, xr = v.ka0, v.ka0r, v.var, v.var + 1, v.var + 2
    emit(lsum())
    e("v_lshlrev_b32 v%d, 4, v%d" % (l16, L))
    e("v_lshlrev_b32 v%d, 3, v%d" % (l8, L))
    e("s_lshl_b32 s%d, s%d, 9" % (s.t0, s.wave))
    e("s_add_u32 s%d, s%d, %d" % (s.t0, s.t0, MLBASE - 2048))
    e("v_add_u32 v%d, s%d, v%d" % (xa, s.t0, l8))
    e("ds_write_b64 v%d, %s" % (xa, vr(v.nmc, 2)))
    emit(st_addr())
    e("v_add_u32 v%d, s%d, v%d" % (xr, s.reg, l16))
    for j in range(3):
        e("s_lshr_b32 s%d, s%d, 24" % (s.t0, Fa + 5 + j))
        e("s_lshl_b32 s%d, s%d, 9" % (s.t0, s.t0))
        e("s_add_u32 s%d, s%d, %d" % (s.t0, s.t0, MLBASE))
        e("v_add_u32 v%d, s%d, v%d" % (v.P + j, s.t0, l8))
    e("s_lshr_b32 s%d, s%d, 30" % (s.t0, Fa + 2))
    e("s_lshl_b32 s%d, s%d, 2" % (s.t0, s.t0))
    e("s_add_u32 s%d, s%d, %d" % (s.t0, s.t0, CNTB))
    e("v_mov_b32 v%d, s%d" % (cnt, s.t0))
    e("v_mov_b32 v%d, 1" % v.t3)
    e("s_branch L_pe1")
    lab("L_pe0")
    emit(spin(OPT.get("slp", "2")))
    lab("L_pe1")
    e("ds_read_b32 v%d, v%d" % (v.t1, v.pra))
    e("s_waitcnt lgkmcnt(0)")
    e("v_cmp_gt_u32 vcc, s%d, v%d" % (s.t2, v.t1))
    e("s_cbranch_vccnz L_pe0")
    stamp(2)
    e("s_cmp_eq_u32 s%d, 2" % s.n)
    e("s_cbranch_scc1 L_sd2")
    for j in (1, 2, 3):
        if j == 2:
            lab("L_sd2")
        e("s_and_b32 s%d, s%d, 0xffffff" % (s.t0, Fa + 4 + j))
        e("v_add_u32 v%d, s%d, v%d" % (xa, s.t0, l16))
        for k in range(2 if OPT.get("xhalfw") else 4):
            e("ds_write_b128 v%d, %s offset:%d" % (xa, vr(v.O + 16 * j + 4 * k, 4), k * 1024))
    e("s_mov_b64 exec, 1")
    e("ds_add_u32 v%d, v%d" % (cnt, v.t3))
    e("s_mov_b64 exec, -1")
    stamp(3)
    e("s_branch L_poll1")
    lab("L_poll")
    emit(spin())
    lab("L_poll1")
    e("ds_read_b32 v%d, v%d" % (v.t3, cnt))
    e("s_waitcnt lgkmcnt(0)")
    e("v_cmp_ne_u32 vcc, s%d, v%d" % (s.n, v.t3))
    e("s_cbranch_vccnz L_poll")
    stamp(4)
    for j in range(3):
        e("ds_read_b64 %s, v%d" % (vr(v.X + 2 * j, 2), v.P + j))
    for k in range(12):
        e("ds_read_b128 %s, v%d offset:%d" % (vr(v.KF + 16 + 4 * k, 4), xr, k * 1024))
    RX = v.KF + 16
    f0, f1, f2, f3 = v.X + 8, v.X + 10, v.X + 12, v.X + 14
    e("s_bfe_u32 s%d, s%d, 0x2001c" % (s.col, Fa + 2))
    e("s_lshl_b32 s%d, s%d, 6" % (s.col, s.col))
    e("s_add_u32 s%d, s%d, 0x8000" % (s.col + 1, s.col))
    e("s_add_u32 s%d, s%d, 0x10000" % (s.col + 2, s.col))
    e("s_add_u32 s%d, s%d, 0x18000" % (s.t1, s.col))
    PK = not OPT.get("nopk")

    def vmul(n, f):
        if PK:
            return ["v_pk_mul_f32 %s, %s, %s op_sel_hi:[1,0]" % (vr(v.O + i, 2), vr(v.O + i, 2), vr(f, 2)) for i in range(0, n, 2)]
        return ["v_mul_f32 v%d, v%d, v%d" % (v.O + i, v.O + i, f) for i in range(n)]

    def vfma(n, src_, f):
        if PK:
            return ["v_pk_fma_f32 %s, %s, %s, %s op_sel_hi:[1,0,1]" % (vr(v.O + i, 2), vr(src_ + i, 2), vr(f, 2), vr(v.O + i, 2)) for i in range(0, n, 2)]
        return ["v_fmac_f32 v%d, v%d, v%d" % (v.O + i, src_ + i, f) for i in range(n)]

    def direct(bb):
        r = ["v_cvt_pk_bf16_f32 v%d, v%d, v%d" % (v.S + 8 * bb + i, v.O + 16 * bb + 2 * i, v.O + 16 * bb + 2 * i + 1) for i in range(8)]
        for g in (0, 1):
            d = v.S + 8 * bb + 4 * g
            r += ["v_permlane32_swap_b32 v%d, v%d" % (d, d + 2), "v_permlane32_swap_b32 v%d, v%d" % (d + 1, d + 3),
                  "buffer_store_dwordx4 %s, v%d, %s, s%d offen offset:%d %s" % (vr(d, 4), oo, sr(s.so, 4), s.col, 64 * bb + 32 * g, STF)]
        return r
    e("s_waitcnt lgkmcnt(12)")
    e("v_min3_f32 v%d, v%d, v%d, v%d" % (v.t3, v.nmc, v.X, v.X + 2))
    e("v_min_f32 v%d, v%d, v%d" % (v.t3, v.t3, v.X + 4))
    e("v_sub_f32 v%d, v%d, v%d" % (f0, v.t3, v.nmc))
    for j, f in enumerate((f1, f2, f3)):
        e("v_sub_f32 v%d, v%d, v%d" % (f, v.t3, v.X + 2 * j))
    for f in (f0, f1, f2, f3):
        e("v_exp_f32 v%d, v%d" % (f, f))
    e("v_mul_f32 v%d, v%d, v%d" % (v.l, v.l, f0))
    e("v_fmac_f32 v%d, v%d, v%d" % (v.l, v.X + 1, f1))
    e("s_cmp_eq_u32 s%d, 2" % s.n)
    e("s_cbranch_scc1 L_mg2")
    e("v_fmac_f32 v%d, v%d, v%d" % (v.l, v.X + 3, f2))
    e("v_fmac_f32 v%d, v%d, v%d" % (v.l, v.X + 5, f3))
    e("v_rcp_f32 v%d, v%d" % (v.t3, v.l))
    e("v_and_b32 v%d, 4, v%d" % (v.t0, L))
    e("v_lshl_add_u32 v%d, v%d, 28, v%d" % (oo, v.t0, oo))
    for f in (f0, f1, f2, f3):
        e("v_mul_f32 v%d, v%d, v%d" % (f, f, v.t3))
    emit(vmul(16, f0))
    for j, f in enumerate((f1, f2, f3)):
        e("s_waitcnt lgkmcnt(%d)" % (8 - 4 * j))
        emit(vfma(16, RX + 16 * j, f))
    e("s_branch L_mg3")
    lab("L_mg2")
    e("v_rcp_f32 v%d, v%d" % (v.t3, v.l))
    e("s_nop 0")
    for f in (f0, f1):
        e("v_mul_f32 v%d, v%d, v%d" % (f, f, v.t3))
    emit(vmul(32, f0))
    e("s_waitcnt lgkmcnt(4)")
    emit(vfma(32, RX, f1))
    emit(pack_q(1, False))
    lab("L_mg3")
    emit(pack_q(0, False) + rd_half(0))
    for k in range(4):
        emit(["s_waitcnt lgkmcnt(%d)" % (3 - k)] + st_one(0, k))
    e("s_branch L_fin")
    lab("L_resc")
    e("v_max3_f32 v%d, v%d, v%d, v%d" % (v.E, v.X, v.X + 1, v.X + 2))
    for r in range(3, 15, 2):
        e("v_max3_f32 v%d, v%d, v%d, v%d" % (v.E, v.E, v.X + r, v.X + r + 1))
    e("v_max3_f32 v%d, v%d, v%d, 0" % (v.E, v.E, v.X + 15))
    e("v_mov_b32 v%d, v%d" % (v.E + 1, v.E))
    e("s_nop 1")
    e("v_permlane32_swap_b32 v%d, v%d" % (v.E, v.E + 1))
    e("s_nop 1")
    e("v_max_f32 v%d, v%d, v%d" % (v.E, v.E, v.E + 1))
    e("v_exp_f32 v%d, -v%d" % (v.E + 1, v.E))
    e("v_sub_f32 v%d, v%d, v%d" % (v.nmc, v.nmc, v.E))
    for r in range(16):
        e("v_sub_f32 v%d, v%d, v%d" % (v.X + r, v.X + r, v.E))
    e("v_mul_f32 v%d, v%d, v%d" % (v.l, v.l, v.E + 1))
    for i in range(64):
        e("v_mul_f32 v%d, v%d, v%d" % (v.O + i, v.O + i, v.E + 1))
    emit(soft_half_plain(0))
    emit(soft_half_plain(1))
    for k, r in enumerate(rets[:-1]):
        e("s_cmp_eq_u32 s%d, %d" % (s.ret, k))
        e("s_cbranch_scc1 %s" % r)
    e("s_branch %s" % rets[-1])
    rl_ = []
    order = [2, 1, 0, 3]
    assert len(srets) == len(order)
    for k in order[:-1]:
        rl_ += ["    s_cmp_eq_u32 s%d, %d" % (s.sret, k), "    s_cbranch_scc1 %s" % srets[k]]
    rl_ += ["    s_branch %s" % srets[order[-1]]]
    out[SRET_AT:SRET_AT] = rl_
    out.append(".p2align 6")
    out.append(".type L_near,@object")
    lab("L_near")
    for ent in near:
        out.append("    .long " + ", ".join("0x%x" % x for x in ent))
    lab("L_far")
    for ent in far:
        out.append("    .long " + ", ".join("0x%x" % x for x in ent))
    lab("L_cnt")
    out.append("    .long " + ", ".join(str(i) for i in range(32)))
    out.append(".size L_near, .-L_near")
    lab("L_codeend")
    out.append("    .fill 512, 4, 0xbf800000")
    out.append('.section .rodata,"a"')
    out.append(".p2align 6")
    out.append(".amdhsa_kernel " + K)
    out.append("  .amdhsa_next_free_vgpr %d" % NV)
    out.append("  .amdhsa_next_free_sgpr %d" % NS)
    out.append("  .amdhsa_accum_offset %d" % NV)
    out.append("  .amdhsa_group_segment_fixed_size 0")
    out.append("  .amdhsa_kernarg_size 56")
    out.append("  .amdhsa_user_sgpr_count 2")
    out.append("  .amdhsa_user_sgpr_kernarg_segment_ptr 1")
    out.append("  .amdhsa_system_sgpr_workgroup_id_x 1")
    out.append(".end_amdhsa_kernel")
    txt = "\n".join(out) + "\n"
    txt = txt.replace("PFSTRIDE", OPT.get("pf", "32"))
    import subprocess, tempfile, os
    tmp = tempfile.mkdtemp()
    open(tmp + "/a.s", "w").write(txt.replace("offset:L_near-L_pc", "offset:0x100").replace("offset:L_far-L_pc", "offset:0x100"))
    subprocess.run(["clang", "-x", "assembler", "-target", "amdgcn-amd-amdhsa", "-mcpu=gfx950", "-c", tmp + "/a.s", "-o", tmp + "/a.o"], check=True)
    sy = {}
    for ln in subprocess.run(["llvm-objdump", "-t", tmp + "/a.o"], capture_output=True, text=True).stdout.splitlines():
        p = ln.split()
        if len(p) >= 5 and p[-1].startswith("L_"):
            sy[p[-1]] = int(p[0], 16)
    assert sy["L_codeend"] - sy["L_pc"] <= 512 * int(OPT.get("pf", "32")) + 128 or STAMPS or SPIN, hex(sy["L_codeend"])
    assert sy["L_codeend"] + 2048 - sy["L_pc"] >= 512 * int(OPT.get("pf", "32"))
    for t in ("L_near", "L_far"):
        txt = txt.replace("offset:%s-L_pc" % t, "offset:0x%x" % (sy[t] - sy["L_pc"]))
        txt = txt.replace(t + ":\n", t + ":\n.if (%s-L_pc) != 0x%x\n.error \"table offset\"\n.endif\n" % (t, sy[t] - sy["L_pc"])) if False else txt
    return txt


if __name__ == "__main__":
    args = [a for a in sys.argv[1:] if a.endswith(".s")]
    path = args[0] if args else "cdna_kernels/%s.s" % NAME
    open(path, "w").write(gen())
    print("wrote", path)
```

```python
import sys, struct, math

NAME = "standalone__varlen_attn_packed__ragged"
CU = [0, 289, 520, 939, 1289, 1402, 1666, 1973, 2275]
LEN = [CU[i + 1] - CU[i] for i in range(8)]
T_TOT = 2275
ROWB = 4096
TENSOR_BYTES = T_TOT * ROWB

OPT = {}
for a in sys.argv[1:]:
    if a.startswith("--"):
        k, _, val = a[2:].partition("=")
        OPT[k] = val if val else "1"
STAMPS = "stamps" in OPT or "lite" in OPT
LITE = "lite" in OPT
LDF_Q = OPT.get("ldq", "none").replace("+", " ").replace("none", "")
LDF_K = OPT.get("ldk", "none").replace("+", " ").replace("none", "")
STF = OPT.get("st", "sc1").replace("+", " ").replace("none", "")
FLY = int(OPT.get("fly", "4"))

HEADER = """; Kernarg layout for this problem (56 bytes, ptrs only, base s[0:1]):
;   offset   0: d_in[0] q  shape=(2275, 16, 128) dtype=bfloat16 strides=(4096, 256, 2) contiguous=True
;   offset   8: d_in[1] k  shape=(2275, 16, 128) dtype=bfloat16 strides=(4096, 256, 2) contiguous=True
;   offset  16: d_in[2] v  shape=(2275, 16, 128) dtype=bfloat16 strides=(4096, 256, 2) contiguous=True
;   offset  24: d_in[3] cu  shape=(9,) dtype=int32 strides=(4,) contiguous=True
;   offset  32: d_out     shape=(2275, 16, 128) dtype=bfloat16 (2 bytes/elem)
"""

DOC = """;
; Varlen (packed) non-causal attention, one 512-thread workgroup per CU, schedule specialised for the fixed cu[] table.
;   waves 0..3 : one 32-row q tile each; software pipelined flash-attention loop (S^T = K Q^T, O^T += V^T P^T,
;                v_mfma_f32_32x32x16_bf16, fp32 scale/exp2/row sums, bf16 P).
;   waves 4..7 : stream K/V blocks into an LDS ring with LDS-DMA and compute a share of the extra q tiles;
;                partial results of a shared tile are merged through LDS.
;   row sums at run time and, whenever they could become unsafe, L_resc moves the reference to the true
;   L_near / L_far: per-workgroup and per-wave work descriptors (rows, lengths, LDS regions).
"""


def f2u(x):
    return struct.unpack("<I", struct.pack("<f", x))[0]


def cdiv(a, b):
    return (a + b - 1) // b


LDS_TOTAL = 163840
QBASE = 98304
XTRA = 131072
MLBASE = XTRA + 16384
PRGB = XTRA + 7 * 4096 + 2048
RDYB = XTRA + 6 * 4096 + 3072
CNTB = XTRA + 6 * 4096 + 2048
BIG = 0x4000

ROLES = [
    ("dual", (1, 6, 2), (4, 0, 4)),
    (5, 0, 6),
    (3, 0, 5), (3, 5, 5),
    ("dual", (3, 10, 1), (5, 6, 3)),
    (1, 0, 6),
    (6, 0, 5), (6, 5, 5),
    (7, 0, 5), (7, 5, 5), (0, 0, 5), (0, 5, 5),
    (2, 0, 4), (2, 4, 4), (2, 8, 3), (2, 11, 3),
]
WARS = OPT.get("wars") or "".join(OPT.get("ward", "5") if r[0] == "dual" else OPT.get("war", "4") for r in ROLES)
QL = int(OPT.get("ql", "4"))
QLC = int(OPT.get("qlc", "3"))
QE = int(OPT.get("qe", "0"))


def nrec(rows):
    return (rows - 1) * ROWB + 256 if rows > 0 else 0


def build_tables():
    near, far, desc = [], [], []
    for ri, role in enumerate(ROLES):
        W = [None] * 8
        groups = []
        if role[0] == "dual":
            (sa, ta, na), (sb, tb, nb) = role[1], role[2]
            rowA, lenA, rowB, lenB, step = CU[sa], LEN[sa], CU[sb], LEN[sb], 32
            n_it = max(cdiv(lenA, 32), cdiv(lenB, 32))
            tiles = [(sa, ta + i, 0) for i in range(na)] + [(sb, tb + i, 1) for i in range(nb)]
            nq = len(tiles)
            for i in range(4):
                sq, tl, st = tiles[i]
                W[i] = dict(seq=sq, tile=tl, ql=i, type=2, stream=st, its=list(range(cdiv(LEN[sq], 32))), hastail=1)
            for i in range(4, nq):
                sq, tl, st = tiles[i]
                nb_ = cdiv(LEN[sq], 32)
                W[i + 2] = dict(seq=sq, tile=tl, ql=i, type=3, stream=st, its=list(range(nb_)), hastail=1,
                                G=1, reg=XTRA + 4096 * i)
        else:
            sa, t0, nq = role
            rowA, lenA, rowB, lenB, step = CU[sa], LEN[sa], CU[sa] + 32, LEN[sa] - 32, 64
            nkv = cdiv(lenA, 32)
            n_it = cdiv(nkv, 2)
            tiles = [(sa, t0 + i, 0) for i in range(nq)]
            for i in range(min(nq, 4)):
                W[i] = dict(seq=sa, tile=t0 + i, ql=i, type=1, stream=0, its=list(range(nkv)), hastail=1)
            nh = 4 // (nq - 4) if nq > 4 else 0
            for i in range(4, nq):
                ws = [4, 5, 6, 7] if nh == 4 else [4 + (i - 4), 6 + (i - 4)]
                for k, w in enumerate(ws):
                    blocks = [p for p in range(nkv) if p % nh == k]
                    W[w] = dict(seq=sa, tile=t0 + i, ql=i, type=3, stream=k % 2, its=[p // 2 for p in blocks],
                                hastail=int((nkv - 1) in blocks))
                groups.append(ws)
        qrows = [CU[sq] + 32 * tl for sq, tl, _ in tiles] + [0xfff] * (6 - nq)
        qrows = [r | (0x1000 if i < nq and tiles[i][2] else 0) for i, r in enumerate(qrows)]
        maskA = sum(1 << i for i, w in enumerate(W) if w and (w["type"] == 1 or w["stream"] == 0 or i < 4 and role[0] != "dual"))
        lastB = 2 * cdiv(lenB, step) + 1
        near.append([rowA * ROWB, nrec(lenA) | maskA, rowB * ROWB, nrec(lenB) | lastB, step * ROWB | (2 * n_it + 1) | int(WARS[ri]) << 8,
                     qrows[0] | qrows[1] << 16, qrows[2] | qrows[3] << 16, qrows[4] | qrows[5] << 16])
        areas = [((n_it + 1) % 4) * 32768, ((n_it + 2) % 4) * 32768]
        recv = [areas[0], areas[0] + 12288, areas[1], areas[1] + 12288]
        for i in range(4):
            if W[i]:
                W[i]["reg"] = XTRA + 4096 * i
        for gi, g in enumerate(groups):
            G = len(g)
            for k, w in enumerate(g):
                W[w]["reg"] = recv[w - 4]
                W[w]["G"], W[w]["k"], W[w]["gi"] = G, k, gi
                if G == 4:
                    W[w]["send"] = [recv[g[(j + k) % 4] - 4] + (j - 1) * 4096 for j in (1, 2, 3)]
                    W[w]["src"] = [g[(k - j) % 4] for j in (1, 2, 3)]
                else:
                    o = g[1 - k]
                    W[w]["send"] = [0, recv[o - 4], recv[o - 4] + 4096]
                    W[w]["src"] = [o, o, o]
        for wi in range(8):
            w = W[wi]
            if OPT.get("xnohelp") and w and w.get("G", 0) > 1:
                w = None
            desc.append(w)
            if w is None:
                far.append([0] * 8)
                continue
            sq, its, typ, sc = w["seq"], w["its"], w["type"], w["stream"]
            tail = LEN[sq] % 32
            orow = CU[sq] + 32 * w["tile"]
            onr = min(32, CU[sq + 1] - orow)
            assert onr > 0 and tail > 0
            U = len(its) - 1
            a0, st = its[0], its[1] - its[0]
            assert all(its[i] == a0 + st * i for i in range(len(its))) and st <= 2 and a0 <= 1 and U >= 1
            if typ == 1:
                inc, prg0, prg1, need1, need2 = 1, 2, 4, 0, 2
            elif typ == 2:
                inc, prg0, prg1, need1, need2 = 2, 2, 4 + sc, sc, 4 + sc
            else:
                inc, prg0, prg1, need1, need2 = 2 * st, 2 * a0 + sc + 2, 2 * (a0 + 1) + sc + 2, max(QE if QE else 3, 2 * a0 + sc), 2 * (a0 + st) + sc
            needk = max(need1 + 2 * (typ == 2), 1)
            if typ != 3 and wi >= QL:
                need1 = max(need1, QLC)
            w.update(needk=needk)
            w.update(U=U, a0=a0, st=st, inc=inc, prg0=prg0, prg1=prg1, need1=need1, need2=need2, n_it=n_it)
            hm = 0
            if typ != 3:
                nlast = 2 * n_it + 1
                pub = prg0
                w["pubs"] = []
                for b in range(U):
                    val = prg1 + inc * (b + 1)
                    want = pub < nlast - 5 and (typ == 2 or b % 2 == 1 or OPT.get("puball"))
                    if groups and pub < nlast - 1 <= val:
                        want = True
                    if typ == 2 or U - 1 - b <= 1:
                        hm |= 1 << (U - 1 - b)
                    if want and OPT.get("nodpub"):
                        hm |= 0x10001 << (U - 1 - b)
                        pub = val
                        w["pubs"].append(b)
            G, k, gi = w.get("G", 0), w.get("k", 0), w.get("gi", 0)
            rot = k * (4 // G) if G > 1 else 0
            lastc = (U + 2) if typ == 1 else 2 * (its[-1] + 1) + sc
            w["lastc"] = lastc
            ent = [orow * ROWB | lastc, nrec(onr),
                   U | typ << 8 | inc << 12 | (tail if w["hastail"] else 32) << 16 | G << 24 | rot << 28 | gi << 30,
                   prg0 | prg1 << 8 | need1 << 16 | need2 << 24,
                   w["reg"] | w["ql"] << 20 | (1 - sc) << 24 | a0 << 25 | st << 26 | int(typ != 3 and tail <= 16 and not OPT.get("noshort")) << 31]
            if G > 1:
                ent += [w["send"][j] | ((w["src"][j] - 4) << 24) for j in range(3)]
            if typ != 3:
                ent += [hm, needk]
            ent += [0] * (8 - len(ent))
            far.append(ent)
    return near, far, desc


class R:
    pass


v = R()
v.kd0, v.kd1, v.vd0, v.vd1 = 1, 2, 3, 4
v.ka0r, v.ka1r = 5, 6
v.ka0, v.ka1 = 7, 8
v.rdya, v.rdy = 9, 10
v.lane = 11
v.nmc, v.l = 12, 13
v.ps = 14
v.t0, v.t1, v.t2, v.t3 = 15, 16, 17, 18
v.pf = 19
v.st = 20
v.prga, v.prg = 21, 22
v.fo = 23
v.pra = 0
v.Q = 24
v.O = 56
v.S = 120
v.B = 136
v.KF = 152
v.VF = 184
v.X = 216
v.E = 232
v.P = 240
v.var = 248
v.va = 252
NV = 256

s = R()
s.q, s.k, s.vv, s.cu, s.out = 4, 6, 8, 10, 12
s.near = 16
s.far = 24
s.kA, s.kB, s.vA, s.vB, s.sq, s.so = 32, 36, 40, 44, 48, 52
s.wave, s.hoff = 56, 57
s.n = 58
s.thr = 59
s.soff = 60
s.dslot = 61
s.U = 62
s.mu = 63
s.koff, s.voff = 64, 65
s.need, s.chk = 66, 67
s.t0, s.t1, s.t2, s.t3 = 68, 69, 70, 71
s.pc = 72
s.stp = 74
s.ws = 76
s.sti = 78
s.ret = 79
s.foff = 80
s.reg = 81
s.m1 = 82
s.lnd = 83
s.inc = 84
s.col = 85
s.astep = 88
s.sret = 89
s.guard = 90
s.iss = 91
s.d0, s.rdw = 92, 93
s.qea, s.qeb = 94, 95
s.stepb = 97
NS = 100

C_SCALE = (128 ** -0.5) * math.log2(math.e)
CL = "0x%x" % f2u(C_SCALE)
THRESH = 4096.0

out = []


def e(x):
    out.append("    " + x)


def lab(x):
    out.append(x + ":")


def vr(b, n):
    return "v[%d:%d]" % (b, b + n - 1)


def sr(b, n):
    return "s[%d:%d]" % (b, b + n - 1)


def emit(lst):
    for x in lst:
        if x is None:
            continue
        if x.endswith(":"):
            out.append(x)
        else:
            e(x)


def stamp_l(k=None, real=False):
    if not STAMPS or (LITE and k not in (7, 61)):
        return []
    if OPT.get("rt") and k is None and not real:
        return stamp_l(None, True) + stamp_l(None, "c")
    real = real is True
    r = ["%s s[%d:%d]" % ("s_memrealtime" if real else "s_memtime", s.stp, s.stp + 1), "s_waitcnt lgkmcnt(0)"]
    if k is None:
        r += ["s_mov_b32 s%d, m0" % (s.stp + 1), "s_mov_b32 m0, s%d" % s.sti, "s_nop 0",
              "v_writelane_b32 v%d, s%d, m0" % (v.st, s.stp),
              "s_add_u32 s%d, s%d, 1" % (s.sti, s.sti), "s_mov_b32 m0, s%d" % (s.stp + 1)]
    else:
        r += ["v_writelane_b32 v%d, s%d, %d" % (v.st, s.stp, k)]
    return r


def stamp(k=None, real=False):
    emit(stamp_l(k, real))


SPIN = OPT.get("spin")


def mark(name):
    if SPIN == name:
        e("s_memrealtime s[%d:%d]" % (s.stp, s.stp + 1))
        e("s_waitcnt lgkmcnt(0)")


def kread(t, dst, st=0):
    return "ds_read_b128 %s, v%d offset:%d" % (vr(dst + 4 * t, 4), v.ka1 if t % 2 else v.ka0,
                                               (t // 4) * 16384 + ((t // 2) % 2) * 256 + st * 1024)


def vread(i, st=0, one=False):
    t, bb, ss = i // 8, (i // 2) % 4, i % 2
    reg = v.VF + (t * 4 + bb) * 4 + ss * 2
    if one:
        return "ds_read_b64_tr_b16 %s, v%d offset:%d" % (vr(reg, 2), v.va, (4 * t + 2 * ss) * 4096 + st * 1024 + bb * 256)
    return "ds_read_b64_tr_b16 %s, v%d offset:%d" % (vr(reg, 2), v.va + bb, (4 * t + 2 * ss) * 4096 + st * 1024)


def ld(kv, col, half, so):
    srd = {("K", 0): s.kA, ("K", 1): s.kB, ("V", 0): s.vA, ("V", 1): s.vB}[(kv, col)]
    off = (2048 if kv == "V" else 0) + (1024 if col == 0 else 0)
    vo = {("K", 0): v.kd0, ("K", 1): v.kd1, ("V", 0): v.vd0, ("V", 1): v.vd1}[(kv, half)]
    return "buffer_load_dwordx4 v%d, %s, s%d offen %s%s lds" % (vo, sr(srd, 4), so, "offset:%d " % off if off else "", LDF_K)


STEP_ADV = ["s_add_u32 s%d, s%d, s%d" % (s.soff, s.soff, s.stepb),
            "s_add_u32 s%d, s%d, 0x8000" % (s.dslot, s.dslot),
            "s_and_b32 s%d, s%d, 0x1ffff" % (s.dslot, s.dslot)]


FLAG = ["s_mov_b32 m0, s%d" % s.rdw,
        "v_add_u32 v%d, 4, v%d" % (v.fo, v.fo),
        "global_load_lds_dword v%d, %s" % (v.fo, sr(s.pc, 2))]


def chunk(col, k_only=False, pace=0, flag=True):
    p = []
    if pace:
        p = ["s_sleep %d" % pace if pace < 16 else "s_nop %d" % (pace - 16)]
    r = []
    for half, m in ((0, "s_mov_b32 m0, s%d" % s.dslot), (1, "s_add_u32 m0, s%d, 0x4000" % s.dslot)):
        r += [m, "s_nop 0"]
        if not k_only:
            r += [ld("V", col, half, s.soff)] + p
        r += [ld("K", col, half, s.soff)] + p
    return r + (FLAG if flag else [])


def qk(t):
    return "v_mfma_f32_32x32x16_bf16 %s, %s, %s, %s" % (vr(v.S, 16), vr(v.KF + 4 * t, 4), vr(v.Q + 4 * t, 4), vr(v.S, 16))


def pv(i):
    t, bb = i // 4, i % 4
    return "v_mfma_f32_32x32x16_bf16 %s, %s, %s, %s" % (
        vr(v.O + 16 * bb, 16), vr(v.VF + (t * 4 + bb) * 4, 4), vr(v.P + 4 * t, 4), vr(v.O + 16 * bb, 16))


def F(r):
    return "v_fmamk_f32 v%d, v%d, %s, v%d" % (v.X + r, v.S + r, CL, v.nmc)


def ex(r):
    return "v_exp_f32 v%d, v%d" % (v.E + r % 8, v.X + r)


def add(r):
    if r == 0:
        return None
    if r == 1:
        return "v_add_f32 v%d, v%d, v%d" % (v.ps, v.E, v.E + 1)
    return "v_add_f32 v%d, v%d, v%d" % (v.ps, v.ps, v.E + r % 8)


def cvt(i):
    return "v_cvt_pk_bf16_f32 v%d, v%d, v%d" % (v.P + i, v.E + (2 * i) % 8, v.E + (2 * i + 1) % 8)


def soft_half_plain(h):
    r = [ex(8 * h + i) for i in range(8)]
    r += [x for x in (add(8 * h + i) for i in range(8)) if x]
    r += [cvt(4 * h + i) for i in range(4)]
    return r


CMP = "v_cmp_lt_f32 vcc, s%d, v%d" % (s.thr, v.ps)
LADD = "v_add_f32 v%d, v%d, v%d" % (v.l, v.l, v.ps)
PRGW = "ds_write_b32 v%d, v%d" % (v.prga, v.prg)
RDYR = "ds_read_b32 v%d, v%d" % (v.rdy, v.rdya)
PRGINC = "v_add_u32 v%d, s%d, v%d" % (v.prg, s.inc, v.prg)
NEEDINC = "s_add_u32 s%d, s%d, s%d" % (s.need, s.need, s.inc)
QK0 = "v_mfma_f32_32x32x16_bf16 %s, %s, %s, 0" % (vr(v.S, 16), vr(v.KF, 4), vr(v.Q, 4))
QK0M = "v_mfma_f32_32x32x16_bf16 %s, %s, %s, %s" % (vr(v.S, 16), vr(v.KF, 4), vr(v.Q, 4), vr(v.B, 16))
rets, srets = [], []


def newret():
    rets.append("L_ret%d" % len(rets))
    return len(rets) - 1


def kaddr():
    return ["v_add_u32 v%d, s%d, v%d" % (v.ka0, s.koff, v.ka0r),
            "v_add_u32 v%d, s%d, v%d" % (v.ka1, s.koff, v.ka1r)]


def vaddr():
    return ["v_add_u32 v%d, s%d, v%d" % (v.va + j, s.voff, v.var + j) for j in range(4)]


def adv(reg):
    return ["s_add_u32 s%d, s%d, s%d" % (reg, reg, s.astep), "s_and_b32 s%d, s%d, 0x1ffff" % (reg, reg)]


_sc = [0]


def svc_cap():
    r = ["s_waitcnt vmcnt(%s)" % OPT.get("cap", "20")]
    if OPT.get("cap0"):
        _sc[0] += 1
        r += ["s_and_b32 s%d, s%d, %s" % (s.t1, s.hoff, OPT.get("capm", "0x300")), "s_cbranch_scc1 L_sc%d" % _sc[0],
              "s_waitcnt vmcnt(%s)" % OPT["cap0"], "L_sc%d:" % _sc[0]]
    return r


def headmap():
    if OPT.get("gc"):
        tab = sum(int(OPT["gc"][2 * x + 1]) << (4 * x) for x in range(8))
        return ["s_lshl_b32 s%d, s2, 2" % s.t1,
                "s_lshr_b32 s%d, 0x%x, s%d" % (s.t1, tab, s.t1),
                "s_and_b32 s%d, s%d, 3" % (s.t1, s.t1),
                "s_bfe_u32 s%d, s2, 0x20003" % s.hoff,
                "s_lshl2_add_u32 s%d, s%d, s%d" % (s.t1, s.hoff, s.t1),
                "s_lshl_b32 s%d, s%d, 8" % (s.hoff, s.t1)]
    cm = OPT.get("cmap", "1302")
    if not cm:
        return ["s_and_b32 s%d, s2, 15" % s.t1, "s_lshl_b32 s%d, s%d, 8" % (s.hoff, s.t1)]
    tab = 0
    cls = [int(c) for c in cm]
    for i in range(16):
        x, hs = i & 7, i >> 3
        tab |= (cls[x >> 1] + 4 * (x & 1) + 8 * hs) << (4 * i)
    return ["s_lshl_b32 s%d, s2, 2" % s.t1,
            "s_lshr_b32 s%d, 0x%x, s%d" % (s.t1, tab & 0xffffffff, s.t1),
            "s_and_b32 s%d, s%d, 7" % (s.t1, s.t1),
            "s_and_b32 s%d, s2, 8" % s.hoff,
            "s_or_b32 s%d, s%d, s%d" % (s.t1, s.t1, s.hoff),
            "s_lshl_b32 s%d, s%d, 8" % (s.hoff, s.t1)]


def flag_init():
    return ["v_lshlrev_b32 v%d, 2, v0" % v.prga,
            "v_add_u32 v%d, %d, v%d" % (v.prga, PRGB - 4096, v.prga),
            "v_mov_b32 v%d, 0" % v.l,
            "ds_write_b32 v%d, v%d" % (v.prga, v.l),
            "ds_write_b32 v%d, v%d offset:4096" % (v.prga, v.l),
            "s_lshl_b32 s%d, s%d, 8" % (s.foff, s.foff),
            "s_lshr_b32 s%d, s%d, 1" % (s.t0, s.wave),
            "s_add_u32 s%d, s%d, s%d" % (s.foff, s.foff, s.t0)]


def far_load():
    r = []
    if STAMPS:
        r += ["v_mov_b32 v%d, 0" % v.st, "s_mov_b32 s%d, 8" % s.sti,
              "v_writelane_b32 v%d, s%d, 0" % (v.st, s.stp), "v_writelane_b32 v%d, s%d, 1" % (v.st, s.ws),
              "s_load_dwordx2 %s, s[0:1], 48" % sr(s.ws, 2)]
    return r + ["s_load_dwordx8 %s, %s, s%d offset:L_far-L_pc" % (sr(s.far, 8), sr(s.pc, 2), s.foff),
                "s_load_dwordx2 s[12:13], s[0:1], 32"]


def spin(n="1"):
    r = ["s_sleep %s" % n]
    if not OPT.get("nosafe"):
        r += ["s_sub_u32 s%d, s%d, 1" % (s.guard, s.guard), "s_cbranch_scc1 L_end"]
    return r


def sync_call(target=None):
    k = len(srets)
    srets.append(target or "L_sr%d" % k)
    return ["s_mov_b32 s%d, %d" % (s.sret, k), "s_branch L_sync"] + ([] if target else ["L_sr%d:" % k])


_pl = [0]


ool = []


def poll_rdy():
    _pl[0] += 1
    a, b = "L_pa%d" % _pl[0], "L_pb%d" % _pl[0]
    ool.append([a + ":"] + spin() + [RDYR, "s_waitcnt lgkmcnt(0)", "s_branch %s" % b])
    return ["s_min_u32 s%d, s%d, s%d" % (s.t2, s.need, s.mu), b + ":",
            "v_cmp_ge_u32 vcc, s%d, v%d" % (s.t2, v.rdy), "s_cbranch_vccnz %s" % a]


def body(kind):
    odd, hlp = kind != "even", kind == "hlp"
    st = 0 if odd else 1
    V = lambda i: vread(i, st, not hlp)
    K = lambda t: kread(t, v.KF, st)
    W = lambda n: "s_waitcnt lgkmcnt(%d)" % n
    k = newret()
    q = [
        [NEEDINC, V(0), V(1), ex(8), add(7), cvt(3)],
        ["s_mov_b32 s%d, %d" % (s.ret, k), V(2), V(3), ex(9), ex(10)],
        [W(4), V(4), V(5), ex(11), add(8), add(9)],
        ["s_sub_u32 s%d, s%d, 1" % (s.U, s.U), V(6), V(7), ex(12), ex(13)],
        [None, V(8), V(9), ex(14), add(10), add(11)],
        [None, V(10), V(11), ex(15), add(12), add(13)],
        [W(4), V(12), V(13), add(14), add(15), CMP, cvt(4)],
        ["s_cbranch_vccnz L_resc", "L_ret%d:" % k, V(14), V(15), LADD, cvt(5), cvt(6), cvt(7)],
    ]
    p = [
        ["s_nop 0", K(0), K(1), K(2), F(0), F(1), F(2)],
        [None, K(3), ex(0), F(3), F(4), F(5)],
        [None, K(4), ex(1), F(6), F(7), F(8)],
        [W(5), K(5), ex(2), add(1), F(9), F(10)],
        [None, K(6), ex(3), add(2), cvt(0), F(11)],
        [None, K(7), ex(4), add(3), cvt(1), F(12)],
        [W(4), ex(5), ex(6), add(4), F(13)],
        [None, ex(7), add(5), add(6), cvt(2), F(14), F(15)],
    ]
    if odd:
        q[4][0], q[5][0] = adv(s.voff)
        p[4][0], p[5][0] = adv(s.koff)
        va, ka = vaddr(), kaddr()
        p[1].append(va[0])
        if hlp:
            p[3].append(va[1])
            p[4].append(va[2])
            p[5].append(va[3])
        p[6].append(ka[0])
        p[7].append(ka[1])
    if not hlp:
        p[0][0] = "s_min_u32 s%d, s%d, s%d" % (s.chk, s.need, s.mu)
        p[1][0] = "s_bitcmp1_b32 s%d, s%d" % (s.far + 5, s.U)
        p[2][0] = "s_cselect_b32 s%d, -1, s%d" % (s.chk, s.chk)
        p[2][2:2] = [RDYR]
        p[6][0] = W(3)
        if odd and (not OPT.get("nodpub")):
            q[2].append("v_add_u32 v%d, 8, v%d" % (v.fo, v.fo))
            if OPT.get("pubq"):
                q[3][1:1] = ["global_load_lds_dword v%d, %s" % (v.fo, sr(s.pc, 2))]
            else:
                p[3][1:1] = ["global_load_lds_dword v%d, %s" % (v.fo, sr(s.pc, 2))]
        p[7][3:3] = ["v_cmp_ge_u32 vcc, s%d, v%d" % (s.chk, v.rdy)]
    else:
        q[1].append(PRGINC)
        q[7][4:4] = [PRGW]
        sc = sync_call()
        q[3][1:1] = [sc[0]]
        p[0][0:1] = stamp_l() + sc[1:] + stamp_l()
    lab("L_%s_m" % kind)
    e(QK0)
    lab("L_%s_a" % kind)
    emit(q[0])
    for t in range(1, 8):
        e(qk(t))
        emit(q[t])
    for i in range(8):
        e(pv(i))
        emit(p[i])
    if not hlp:
        stamp()


def gen():
    K = NAME + "_kernel"
    near, far, _ = build_tables()
    PACE = int(OPT.get("pace", "0"))
    out.append(HEADER + "; @launch grid=(256,1,1) block=(512,1,1) lds=%d" % LDS_TOTAL + "\n" + DOC.rstrip())
    out.append('.amdgcn_target "amdgcn-amd-amdhsa--gfx950"')
    out.append(".text")
    out.append(".globl " + K)
    out.append(".p2align 12")
    out.append(".p2align 8")
    out.append(".type %s,@function" % K)
    lab(K)
    L, N, Fa = v.lane, s.near, s.far
    if SPIN:
        e("s_memrealtime s[%d:%d]" % (s.ws, s.ws + 1))
        e("s_memrealtime s[%d:%d]" % (s.stp, s.stp + 1))
    if STAMPS:
        e("s_memrealtime s[%d:%d]" % (s.stp, s.stp + 1))
        e("s_memtime s[%d:%d]" % (s.ws, s.ws + 1))
    e("s_load_dwordx8 s[4:11], s[0:1], 0")
    e("s_getpc_b64 %s" % sr(s.pc, 2))
    lab("L_pc")
    if OPT.get("gc"):
        gm = sum((OPT["gc"][2 * x] == "L") << x for x in range(8)) * 0x01010101
        e("s_lshr_b32 s%d, s2, 5" % s.foff)
        e("s_bitcmp1_b32 0x%x, s2" % gm)
        e("s_cselect_b32 s%d, 8, 0" % s.t1)
        e("s_add_u32 s%d, s%d, s%d" % (s.foff, s.foff, s.t1))
    else:
        e("s_lshr_b32 s%d, s2, 4" % s.foff)
    e("s_lshl_b32 s%d, s%d, 5" % (s.t1, s.foff))
    e("s_load_dwordx8 %s, %s, s%d offset:L_near-L_pc" % (sr(s.near, 8), sr(s.pc, 2), s.t1))
    e("v_mul_u32_u24 v%d, PFSTRIDE, v0" % v.t0)
    e("v_readfirstlane_b32 s%d, v0" % s.wave)
    e("global_load_dword v%d, v%d, %s" % (v.pf, v.t0, sr(s.pc, 2)))
    e("s_cmp_ge_u32 s2, 256" if OPT.get("gc") else "s_cmp_ge_u32 s%d, 16" % s.foff)
    e("s_cbranch_scc1 L_end")
    e("s_bitcmp0_b32 s%d, 8" % s.wave)
    e("s_cbranch_scc1 L_mainpro")
    e("v_bfe_u32 v%d, v0, 5, 2" % v.t0)
    e("v_and_b32 v%d, 3, v0" % v.t1)
    e("v_xor_b32 v%d, v%d, v%d" % (v.t1, v.t1, v.t0))
    e("v_and_or_b32 v%d, v0, 12, v%d" % (v.t0, v.t0))
    e("v_lshlrev_b32 v%d, 12, v%d" % (v.t0, v.t0))
    e("v_lshl_add_u32 v%d, v%d, 4, v%d" % (v.t0, v.t1, v.t0))
    e("v_and_b32 v%d, 16, v0" % v.t1)
    e("v_lshl_add_u32 v%d, v%d, 2, v%d" % (v.t0, v.t1, v.t0))
    e("v_bfe_u32 v%d, v0, 7, 1" % v.t1)
    e("v_lshl_add_u32 v%d, v%d, 16, v%d" % (v.kd0, v.t1, v.t0))
    e("v_add_u32 v%d, 0x80, v%d" % (v.kd1, v.kd0))
    emit(headmap())
    e("s_lshl_b32 s%d, s%d, 6" % (s.dslot, s.wave))
    e("s_and_b32 s%d, s%d, 0x3000" % (s.dslot, s.dslot))
    e("s_mov_b32 s%d, 0x20000" % (s.sq + 3))
    e("s_mov_b32 s%d, s%d" % (s.kA + 3, s.sq + 3))
    e("s_mov_b32 s%d, 0" % s.soff)
    if OPT.get("thr", "0") != "0":
        e("s_lshr_b32 vcc_lo, %s, s%d" % (OPT.get("thr", "0"), s.foff))
        if OPT.get("thrr"):
            e("s_lshr_b32 s%d, %s, s%d" % (s.t0, OPT["thrr"], s.foff))
            e("s_and_b32 vcc_lo, vcc_lo, s%d" % s.t0)
        if OPT.get("thro"):
            e("s_lshr_b32 s%d, %s, s%d" % (s.t0, OPT["thro"], s.foff))
            e("s_or_b32 vcc_lo, vcc_lo, s%d" % s.t0)
        e("s_and_b32 vcc_lo, vcc_lo, 1")
        e("s_mov_b32 vcc_hi, 0")
    e("s_add_u32 s%d, s%d, %d" % (s.d0, s.dslot, QBASE))
    emit(flag_init())
    e("s_waitcnt lgkmcnt(0)")
    emit(far_load())
    mark("karg")
    THR = OPT.get("thr", "0")
    _th = [0]

    def throttle():
        if THR == "0":
            return []
        _th[0] += 1
        return ["s_cbranch_vccz L_th%d" % _th[0], "s_waitcnt vmcnt(%s)" % OPT.get("thn", "8"), "L_th%d:" % _th[0]]

    def qtile(i):
        w = N + 5 + i // 2
        r = ["s_bitcmp1_b32 s%d, %d" % (w, 12 + 16 * (i % 2)),
             "s_cselect_b32 s%d, s%d, s%d" % (s.sq + 2, s.qeb, s.qea),
             "s_bfe_u32 s%d, s%d, 0x%x" % (s.t0, w, 0xc0000 + 16 * (i % 2)),
             "s_add_u32 m0, s%d, %d" % (s.d0, (i // 4) * 32768 + (i % 4) * 1024),
             "s_lshl_b32 s%d, s%d, 12" % (s.t0, s.t0),
             "buffer_load_dwordx4 v%d, %s, s%d offen %s lds" % (v.kd0, sr(s.sq, 4), s.t0, LDF_Q),
             "s_add_u32 m0, m0, 0x4000", "s_nop 0",
             "buffer_load_dwordx4 v%d, %s, s%d offen %s lds" % (v.kd1, sr(s.sq, 4), s.t0, LDF_Q)]
        return r
    e("s_add_u32 s%d, s%d, s%d" % (s.qea, N + 0, N + 1))
    e("s_add_u32 s%d, s%d, s%d" % (s.qeb, N + 2, N + 3))
    e("s_add_u32 s%d, s%d, s%d" % (s.sq, s.q, s.hoff))
    e("s_addc_u32 s%d, s%d, 0" % (s.sq + 1, s.q + 1))
    emit(qtile(0))
    e("s_add_u32 s%d, s%d, s%d" % (N + 0, N + 0, s.hoff))
    e("s_add_u32 s%d, s%d, s%d" % (s.kA, s.k, N + 0))
    e("s_addc_u32 s%d, s%d, 0" % (s.kA + 1, s.k + 1))
    e("s_sub_u32 s%d, s%d, 1024" % (s.kA, s.kA))
    e("s_subb_u32 s%d, s%d, 0" % (s.kA + 1, s.kA + 1))
    e("s_add_u32 s%d, s%d, 1024" % (s.kA + 2, N + 1))
    emit(chunk(0, True, flag=False))
    for i in range(1, QL):
        emit((throttle() if i > 1 else []) + qtile(i))
    QLATE = sum((qtile(i) for i in range(QL, 4)), [])
    mark("iss")
    for b in (s.kB, s.vA, s.vB):
        e("s_mov_b32 s%d, s%d" % (b + 3, s.sq + 3))
    e("s_add_u32 s%d, s%d, s%d" % (N + 2, N + 2, s.hoff))
    e("s_add_u32 s%d, s%d, s%d" % (s.kB, s.k, N + 2))
    e("s_addc_u32 s%d, s%d, 0" % (s.kB + 1, s.k + 1))
    e("s_mov_b32 s%d, s%d" % (s.kB + 2, N + 3))
    e("s_and_b32 s%d, s%d, 0xfffff000" % (s.stepb, N + 4))
    e("s_lshr_b32 s%d, s%d, 4" % (s.rdw, s.dslot))
    e("s_add_u32 s%d, s%d, %d" % (s.rdw, s.rdw, RDYB))
    e("v_mov_b32 v%d, L_cnt-L_pc" % v.fo)
    for (srd, off, nr, d) in ((s.vA, N + 0, N + 1, 3072), (s.vB, N + 2, N + 3, 2048)):
        e("s_add_u32 s%d, s%d, %d" % (s.t0, s.stepb, d))
        e("s_add_u32 s%d, s%d, s%d" % (srd, s.vv, off))
        e("s_addc_u32 s%d, s%d, 0" % (srd + 1, s.vv + 1))
        e("s_sub_u32 s%d, s%d, s%d" % (srd, srd, s.t0))
        e("s_subb_u32 s%d, s%d, 0" % (srd + 1, srd + 1))
        e("s_add_u32 s%d, s%d, s%d" % (srd + 2, nr, s.t0))
    e("v_bfe_u32 v%d, v0, 2, 2" % v.t0)
    e("v_lshlrev_b32 v%d, 12, v%d" % (v.t0, v.t0))
    e("v_and_b32 v%d, 3, v0" % v.t1)
    e("v_lshl_add_u32 v%d, v%d, 4, v%d" % (v.t0, v.t1, v.t0))
    e("v_and_b32 v%d, 48, v0" % v.t1)
    e("v_lshl_add_u32 v%d, v%d, 2, v%d" % (v.t0, v.t1, v.t0))
    e("v_bfe_u32 v%d, v0, 6, 2" % v.t1)
    e("v_lshl_add_u32 v%d, v%d, 14, v%d" % (v.vd0, v.t1, v.t0))
    e("v_add_u32 v%d, 0x10000, v%d" % (v.vd1, v.vd0))
    e("s_setprio %s" % OPT.get("hprio", "3"))
    e("s_branch L_common")
    lab("L_mainpro")
    for b in (s.sq, s.kA, s.kB, s.vA, s.vB):
        e("s_mov_b64 %s, s[0:1]" % sr(b, 2))
        e("s_mov_b32 s%d, 0" % (b + 2))
        e("s_mov_b32 s%d, 0x20000" % (b + 3))
    for r in (v.kd0, v.kd1, v.vd0, v.vd1, v.fo):
        e("v_mov_b32 v%d, 0" % r)
    emit(headmap())
    emit(flag_init())
    e("s_waitcnt lgkmcnt(0)")
    emit(far_load())
    lab("L_common")
    e("s_lshr_b32 s%d, s%d, 6" % (s.wave, s.wave))
    e("v_and_b32 v%d, 63, v0" % L)
    e("v_and_b32 v%d, 7, v0" % v.t0)
    e("v_mul_u32_u24 v%d, 0x104, v%d" % (v.t0, v.t0))
    e("v_add_u32 v%d, %d, v%d" % (v.pra, PRGB, v.t0))
    e("v_add_u32 v%d, 0x1000, v%d" % (v.prga, v.prga))
    mark("prebar")
    e("s_barrier")
    if SPIN == "postbar":
        e("s_memrealtime s[%d:%d]" % (s.stp, s.stp + 1))
    e("s_cmp_lt_u32 s%d, 4" % s.wave)
    e("s_cbranch_scc1 L_common2")
    QH = qtile(4) + qtile(5)
    C2 = (QLATE if QLC == 2 else []) + (QH if QE == 2 else []) + chunk(0) + (QLATE if QLC == 3 else [])
    emit(FLAG + throttle() + (QH if QE == 1 else []) + chunk(1, True) + STEP_ADV + (C2 if OPT.get("c2early") else []))
    lab("L_common2")
    mark("bar")
    e("v_bfe_u32 v%d, v%d, 4, 1" % (v.t0, L))
    e("v_lshlrev_b32 v%d, 13, v%d" % (v.t0, v.t0))
    e("v_bfe_u32 v%d, v%d, 1, 1" % (v.t1, L))
    e("v_lshl_add_u32 v%d, v%d, 12, v%d" % (v.t0, v.t1, v.t0))
    e("v_and_b32 v%d, 1, v%d" % (v.t1, L))
    e("v_lshl_add_u32 v%d, v%d, 9, v%d" % (v.t0, v.t1, v.t0))
    e("v_bfe_u32 v%d, v%d, 2, 2" % (v.t1, L))
    e("v_lshl_add_u32 v%d, v%d, 6, v%d" % (v.t0, v.t1, v.t0))
    e("v_lshrrev_b32 v%d, 5, v%d" % (v.t1, L))
    e("v_and_b32 v%d, 3, v%d" % (v.t2, L))
    e("v_xor_b32 v%d, v%d, v%d" % (v.t1, v.t1, v.t2))
    e("v_lshl_add_u32 v%d, v%d, 4, v%d" % (v.ka0r, v.t1, v.t0))
    e("v_xor_b32 v%d, 32, v%d" % (v.ka1r, v.ka0r))
    e("v_lshrrev_b32 v%d, 5, v%d" % (v.t0, L))
    e("v_lshlrev_b32 v%d, 12, v%d" % (v.t0, v.t0))
    e("v_bfe_u32 v%d, v%d, 2, 2" % (v.t1, L))
    e("v_lshl_add_u32 v%d, v%d, 6, v%d" % (v.t0, v.t1, v.t0))
    e("v_bfe_u32 v%d, v%d, 4, 1" % (v.t1, L))
    e("v_lshl_add_u32 v%d, v%d, 5, v%d" % (v.t0, v.t1, v.t0))
    e("v_lshl_add_u32 v%d, v%d, 3, v%d" % (v.t0, v.t2, v.t0))
    e("v_add_u32 v%d, 0x800, v%d" % (v.var, v.t0))
    e("s_mov_b32 s%d, 0x%x" % (s.thr, f2u(THRESH)))
    e("v_mul_u32_u24 v%d, 0x104, v%d" % (v.t1, v.t2))
    e("v_add_u32 v%d, %d, v%d" % (v.rdya, RDYB, v.t1))
    e("s_mov_b32 s%d, 0x8000" % s.guard)
    e("v_mov_b32 v%d, 0" % v.rdy)
    e("s_waitcnt lgkmcnt(0)")
    e("s_and_b32 s%d, s%d, 0xff" % (s.mu, Fa + 0))
    e("s_sub_u32 s%d, s%d, s%d" % (s.t0, Fa + 0, s.mu))
    e("s_add_u32 s%d, s%d, s%d" % (s.t0, s.t0, s.hoff))
    e("s_add_u32 s%d, s%d, s%d" % (s.so, s.out, s.t0))
    e("s_addc_u32 s%d, s%d, 0" % (s.so + 1, s.out + 1))
    e("s_mov_b32 s%d, s%d" % (s.so + 2, Fa + 1))
    e("s_mov_b32 s%d, 0x20000" % (s.so + 3))
    e("s_and_b32 s%d, s%d, 0xff" % (s.n, N + 4))
    e("s_bfe_u32 s%d, s%d, 0x40008" % (s.t3, Fa + 2))
    e("s_cbranch_scc1 L_work")
    e("v_mov_b32 v%d, %d" % (v.prg, BIG))
    e(PRGW)
    e("s_cmp_lt_u32 s%d, 4" % s.wave)
    e("s_cbranch_scc1 %s" % ("L_probe" if OPT.get("probe") else "L_fin"))
    e("s_branch L_presig")
    if OPT.get("probe"):
        lab("L_probe")
        for kk in range(8, 60, 2):
            e("s_sleep 12")
            e("s_memrealtime s[%d:%d]" % (s.stp, s.stp + 1))
            e("s_memtime s[%d:%d]" % (s.t0, s.t0 + 1))
            e("s_waitcnt lgkmcnt(0)")
            e("v_writelane_b32 v%d, s%d, %d" % (v.st, s.stp, kk))
            e("v_writelane_b32 v%d, s%d, %d" % (v.st, s.t0, kk + 1))
        e("s_branch L_fin")
    lab("L_work")
    mark("work")
    for r in range(0, 64, 2):
        e("v_pk_mov_b32 %s, 0, 0" % vr(v.O + r, 2))
    e("s_and_b32 s%d, s%d, 0xff" % (s.U, Fa + 2))
    e("s_bfe_u32 s%d, s%d, 0x4000c" % (s.inc, Fa + 2))
    e("s_and_b32 s%d, s%d, 0xfffff" % (s.reg, Fa + 4))
    e("s_bfe_u32 s%d, s%d, 0x80010" % (s.t0, Fa + 2))
    e("s_sub_u32 s%d, s%d, 1" % (s.t0, s.t0))
    e("v_lshrrev_b32 v%d, 5, v%d" % (v.t0, L))
    e("v_lshlrev_b32 v%d, 2, v%d" % (v.t0, v.t0))
    e("v_sub_u32 v%d, s%d, v%d" % (v.t0, s.t0, v.t0))
    e("v_mov_b32 v%d, 0xff800000" % v.t1)
    for r in range(16):
        cst = 8 * (r // 4) + r % 4
        e("v_subrev_u32 v%d, %d, v%d" % (v.B + r, cst, v.t0))
        e("v_ashrrev_i32 v%d, 31, v%d" % (v.B + r, v.B + r))
        e("v_and_b32 v%d, v%d, v%d" % (v.B + r, v.t1, v.B + r))
    e("s_bfe_u32 s%d, s%d, 0x20014" % (s.t0, Fa + 4))
    e("s_lshl_b32 s%d, s%d, 10" % (s.t0, s.t0))
    e("s_bfe_u32 s%d, s%d, 0x10016" % (s.t1, Fa + 4))
    e("s_lshl_b32 s%d, s%d, 15" % (s.t1, s.t1))
    e("s_add_u32 s%d, s%d, s%d" % (s.t0, s.t0, s.t1))
    e("s_add_u32 s%d, s%d, %d" % (s.koff, s.t0, QBASE))
    e("v_add_u32 v%d, s%d, v%d" % (v.t2, s.koff, v.ka0r))
    e("v_add_u32 v%d, s%d, v%d" % (v.t3, s.koff, v.ka1r))
    e("s_cmp_lg_u32 s%d, 1" % s.t3)
    e("s_cselect_b32 s%d, 1, 0" % s.m1)
    e("s_bfe_u32 s%d, s%d, 0x2001a" % (s.t0, Fa + 4))
    e("s_lshl_b32 s%d, s%d, 15" % (s.astep, s.t0))
    e("s_bfe_u32 s%d, s%d, 0x10019" % (s.t2, Fa + 4))
    e("s_bfe_u32 s%d, s%d, 0x10018" % (s.t0, Fa + 4))
    e("s_lshl_b32 s%d, s%d, 10" % (s.t0, s.t0))
    e("s_mul_i32 s%d, s%d, s%d" % (s.t1, s.t0, s.m1))
    e("s_sub_u32 s%d, s%d, s%d" % (s.t0, s.t0, s.t1))
    e("s_lshl_b32 s%d, s%d, 15" % (s.voff, s.t2))
    e("s_add_u32 s%d, s%d, s%d" % (s.koff, s.voff, s.t0))
    e("s_add_u32 s%d, s%d, 0x8000" % (s.voff, s.voff))
    e("v_add_u32 v%d, s%d, v%d" % (v.ka0r, s.t1, v.ka0r))
    e("v_add_u32 v%d, s%d, v%d" % (v.ka1r, s.t1, v.ka1r))
    e("s_bfe_u32 s%d, s%d, 0x2001c" % (s.t0, Fa + 2))
    for j in (3, 2, 1, 0):
        e("s_add_u32 s%d, s%d, %d" % (s.col, s.t0, j))
        e("s_and_b32 s%d, s%d, 3" % (s.col, s.col))
        e("s_lshl_b32 s%d, s%d, 8" % (s.col, s.col))
        e("s_add_u32 s%d, s%d, s%d" % (s.col, s.col, s.t1))
        e("v_add_u32 v%d, s%d, v%d" % (v.var + j, s.col, v.var))
    emit(vaddr() + kaddr())
    e("s_and_b32 s%d, s%d, 0xff" % (s.t0, Fa + 3))
    e("v_mov_b32 v%d, s%d" % (v.prg, s.t0))
    e("s_bfe_u32 s%d, s%d, 0x80010" % (s.need, Fa + 3))
    e("s_cmp_lt_u32 s%d, 4" % s.wave)
    e("s_cbranch_scc1 L_sig0")
    e(PRGW)
    lab("L_presig")
    mark("presig")
    emit(([] if OPT.get("c2early") else C2) + (QH if QE == 0 else []) + chunk(1) + STEP_ADV)
    e("s_mov_b32 s%d, 4" % s.iss)
    mark("c3")
    stamp()
    e("s_cmp_eq_u32 s%d, 0" % s.t3)
    e("s_cbranch_scc1 L_hdone")
    emit(sync_call("L_head"))
    lab("L_sig0")
    mark("msetup")
    e("s_bfe_u32 s%d, s%d, 0x80008" % (s.t0, Fa + 3))
    e("s_%s_u32 s%d, s%d, s%d" % ("sub" if OPT.get("pubq") else "add", s.t0, s.t0, s.m1))
    e("s_lshl_b32 s%d, s%d, 2" % (s.t0, s.t0))
    e("s_add_u32 s%d, s%d, L_cnt-L_pc-4" % (s.t0, s.t0))
    e("v_mov_b32 v%d, s%d" % (v.fo, s.t0))
    e("s_lshl_b32 s%d, s%d, 8" % (s.t0, s.wave))
    e("s_add_u32 m0, s%d, %d" % (s.t0, PRGB))
    stamp()
    emit(poll_rdy())
    mark("sig0")
    stamp()
    lab("L_head")
    qr = [kread(t, v.Q).replace("v%d " % v.ka0, "v%d " % v.t2).replace("v%d " % v.ka1, "v%d " % v.t3) for t in range(8)]
    kr = [kread(t, v.KF) for t in range(8)]
    for t in range(7):
        emit([qr[t], kr[t]])
    e("s_add_u32 s%d, s%d, s%d" % (s.t0, s.koff, s.astep))
    e("s_mul_i32 s%d, s%d, s%d" % (s.koff, s.t0, s.m1))
    e("s_waitcnt lgkmcnt(12)")
    e(QK0)
    emit([qr[7], kr[7]])
    for t in range(1, 8):
        e("s_waitcnt lgkmcnt(%d)" % (14 - 2 * t + (1 if t >= 2 else 0)))
        e(qk(t))
        if t == 1:
            e(RDYR)
            emit(kaddr())
            emit(adv(s.koff))
        if t == 2:
            e("v_and_b32 v%d, 31, v%d" % (v.t2, L))
            e("v_lshlrev_b32 v%d, 12, v%d" % (v.t2, v.t2))
            e("v_sub_u32 v%d, s%d, v%d" % (v.t2, Fa + 1, v.t2))
            e("v_ashrrev_i32 v%d, 31, v%d" % (v.t2, v.t2))
            e("v_and_b32 v%d, 0xff800000, v%d" % (v.t2, v.t2))
        if t == 3:
            e("v_mov_b32 v%d, L_cnt-L_pc+8" % v.t3)
            e("s_bfe_u32 s%d, s%d, 0x80008" % (s.t0, Fa + 3))
            e("v_mov_b32 v%d, s%d" % (v.prg, s.t0))
            e("s_mov_b32 s%d, s%d" % (s.need, Fa + 6))
    e("s_cmp_lt_u32 s%d, 4" % s.wave)
    e("s_waitcnt lgkmcnt(0)")
    e("s_cbranch_scc0 L_head2")
    e("global_load_lds_dword v%d, %s" % (v.t3, sr(s.pc, 2)))
    emit(poll_rdy())
    emit(kr)
    emit(kaddr())
    lab("L_head2")
    if OPT.get("lowh"):
        e("s_setprio 0")
    e("s_lshr_b32 s%d, s%d, 24" % (s.need, Fa + 3))
    e("s_nop 7")
    e("v_max3_f32 v%d, v%d, v%d, v%d" % (v.t0, v.S, v.S + 1, v.S + 2))
    e("v_max3_f32 v%d, v%d, v%d, v%d" % (v.t1, v.S + 3, v.S + 4, v.S + 5))
    for r in range(6, 14, 4):
        e("v_max3_f32 v%d, v%d, v%d, v%d" % (v.t0, v.t0, v.S + r, v.S + r + 1))
        e("v_max3_f32 v%d, v%d, v%d, v%d" % (v.t1, v.t1, v.S + r + 2, v.S + r + 3))
    e("v_max3_f32 v%d, v%d, v%d, v%d" % (v.t0, v.t0, v.S + 14, v.S + 15))
    e("v_max_f32 v%d, v%d, v%d" % (v.t0, v.t0, v.t1))
    e("v_mov_b32 v%d, v%d" % (v.t1, v.t0))
    e(RDYR)
    e("s_nop 0")
    e("v_permlane32_swap_b32 v%d, v%d" % (v.t0, v.t1))
    e("s_nop 1")
    e("v_max_f32 v%d, v%d, v%d" % (v.t0, v.t0, v.t1))
    e("v_fmamk_f32 v%d, v%d, 0x%x, v%d" % (v.nmc, v.t0, f2u(-C_SCALE), v.t2))
    for r in range(16):
        e(F(r))
    emit([ex(i) for i in range(8)] + [add(i) for i in range(1, 7)] + [cvt(0), cvt(1), cvt(2)])
    e("s_cmp_lt_u32 s%d, 4" % s.wave)
    e("s_waitcnt lgkmcnt(0)")
    e("s_cbranch_scc0 L_hlp_in")
    stamp()
    emit(poll_rdy())
    mark("loop")
    stamp()
    e("s_cmp_eq_u32 s%d, 1" % s.m1)
    e("s_cbranch_scc1 L_odd_m")
    out.append(".p2align %s" % OPT.get("al", "4"))
    for _ in range(int(OPT.get("sh", "0"))):
        e("s_nop 0")
    body("even")
    e("s_cbranch_vccnz L_hnd_even")
    body("odd")
    e("s_cbranch_vccz L_even_m")
    emit(poll_rdy())
    e("s_cmp_le_u32 s%d, 1" % s.U)
    e("s_cbranch_scc1 L_ho1")
    e("s_cmp_eq_u32 s%d, 0" % s.m1)
    e("s_cbranch_scc0 L_odd_m")
    e("s_branch L_even_m")
    lab("L_ho1")
    e("s_cmp_eq_u32 s%d, 0" % s.m1)
    e("s_cbranch_scc0 L_ho2")
    e("v_mov_b32 v%d, v%d" % (v.va + 1, v.va))
    e("v_add_u32 v%d, 0x400, v%d" % (v.va, v.va))
    e("s_branch L_last")
    lab("L_hnd_even")
    emit(poll_rdy())
    e("s_cmp_gt_u32 s%d, 1" % s.U)
    e("s_cbranch_scc1 L_odd_m")
    e("v_add_u32 v%d, 0x400, v%d" % (v.var, v.var))
    lab("L_ho2")
    emit(adv(s.voff))
    e("v_add_u32 v%d, s%d, v%d" % (v.va + 1, s.voff, v.var))
    e("s_branch L_last")
    lab("L_hlp_in")
    mark("hlpin")
    e(PRGW)
    stamp()
    emit(sync_call())
    stamp()
    for t in range(8):
        e(kread(t, v.KF))
    emit(kaddr())
    e("s_waitcnt lgkmcnt(4)")
    e("s_branch L_hnd_hlp")
    if OPT.get("alh"):
        out.append(".p2align %s" % OPT["alh"])
    for _ in range(int(OPT.get("shh", "0"))):
        e("s_nop 0")
    body("hlp")
    lab("L_hnd_hlp")
    e("s_cmp_gt_u32 s%d, 1" % s.U)
    e("s_cbranch_scc1 L_hlp_m")
    e("s_cmp_eq_u32 s%d, 0" % s.U)
    e("s_cbranch_scc1 L_tail")
    e(QK0M)
    e("s_branch L_hlp_a")
    tw, tr0, oo, rl, WA, CD = v.ka1, v.va + 2, v.ka1r, v.B + 8, v.B, v.VF

    def lsum():
        return ["v_mov_b32 v%d, v%d" % (v.t0, v.l), "s_nop 1",
                "v_permlane32_swap_b32 v%d, v%d" % (v.l, v.t0), "s_nop 1",
                "v_add_f32 v%d, v%d, v%d" % (v.l, v.l, v.t0)]

    def st_addr():
        a, b, c, d = v.t0, v.t1, v.t2, v.t3
        r = ["v_and_b32 v%d, 31, v%d" % (a, L),
             "v_lshrrev_b32 v%d, 2, v%d" % (b, L),
             "v_and_b32 v%d, 7, v%d" % (c, L),
             "v_lshrrev_b32 v%d, 3, v%d" % (d, L),
             "v_lshlrev_b32 v%d, 7, v%d" % (a, a),
             "v_xor_b32 v%d, v%d, v%d" % (b, b, L),
             "v_xor_b32 v%d, v%d, v%d" % (tr0, c, d),
             "v_and_b32 v%d, 8, v%d" % (b, b),
             "v_lshlrev_b32 v%d, 4, v%d" % (c, c),
             "v_add3_u32 v%d, v%d, v%d, s%d" % (a, a, b, s.reg),
             "v_lshlrev_b32 v%d, 4, v%d" % (tr0, tr0),
             "v_lshlrev_b32 v%d, 7, v%d" % (b, d),
             "v_add_u32 v%d, v%d, v%d" % (WA, a, c),
             "v_lshl_add_u32 v%d, v%d, 12, v%d" % (oo, d, c),
             "v_add3_u32 v%d, v%d, v%d, s%d" % (tr0, tr0, b, s.reg)]
        r += ["v_xor_b32 v%d, %d, v%d" % (WA + k, k * 16, WA) for k in range(1, 8)]
        r += ["v_add_u32 v%d, 0x800, v%d" % (tw, tr0)]
        return r

    def q_mul(bb, pk=True):
        o = v.O + 16 * bb
        if pk:
            return ["v_pk_mul_f32 %s, %s, %s op_sel_hi:[1,0]" % (vr(o + i, 2), vr(o + i, 2), vr(rl, 2)) for i in range(0, 16, 2)]
        return ["v_mul_f32 v%d, v%d, v%d" % (o + i, o + i, rl) for i in range(16)]

    def q_cvt(bb):
        return ["v_cvt_pk_bf16_f32 v%d, v%d, v%d" % (CD + 8 * bb + i, v.O + 16 * bb + 2 * i, v.O + 16 * bb + 2 * i + 1) for i in range(8)]

    def q_wr(bb):
        return ["ds_write_b64 v%d, %s" % (WA + (4 * bb + g) % 8, vr(CD + 8 * bb + 2 * g, 2)) for g in range(4)]

    def mix(valu, other):
        r, n, m = [], len(valu), len(other)
        k = 0
        for i, x in enumerate(valu):
            while k < m and k * n <= i * m:
                r.append(other[k]); k += 1
            r.append(x)
        return r + other[k:]

    def pack_q(bb, norm=True):
        return (q_mul(bb) if norm else []) + q_cvt(bb) + q_wr(bb)

    def rd_half(hh):
        return [("ds_read2_b64 %s, v%d offset0:129 offset1:128" if k % 2 else "ds_read_b128 %s, v%d")
                % (vr(v.KF + 16 * hh + 4 * k, 4), tw if k >= 2 else tr0) for k in range(4)]

    def st_one(hh, k):
        return ["buffer_store_dwordx4 %s, v%d, %s, s%d offen offset:%d %s" % (
                    vr(v.KF + 16 * hh + 4 * k, 4), oo, sr(s.so, 4), s.col + k if k < 3 else s.t1, 128 * hh,
                    STF if hh == 0 else OPT.get("st2", OPT.get("st", "sc1")).replace("+", " ").replace("none", ""))]

    sa = st_addr()
    cols = ["s_mov_b32 s%d, 0" % s.col, "s_mov_b32 s%d, 0x8000" % (s.col + 1),
            "s_mov_b32 s%d, 0x10000" % (s.col + 2), "s_mov_b32 s%d, 0x18000" % s.t1]
    RCP = "v_rcp_f32 v%d, v%d" % (rl, v.l)
    GL = "global_load_lds_dword v%d, %s" % (v.fo, sr(s.pc, 2))
    FO31 = "v_mov_b32 v%d, L_cnt-L_pc+124" % v.fo
    lab("L_tail")
    mark("tail")
    if not OPT.get("nolowt"):
        e("s_setprio 0")
    k = newret()
    for i in range(12):
        e(vread(i))
    emit([ex(8), add(7), cvt(3)] + [ex(i) for i in range(9, 16)])
    e("v_mov_b32 v%d, %d" % (v.prg, BIG))
    for i in range(12, 16):
        e(vread(i))
    e(PRGW)
    emit([add(i) for i in range(8, 16)] + [CMP, cvt(4), "s_mov_b32 s%d, %d" % (s.ret, k), "s_cbranch_vccnz L_resc",
                                           "L_ret%d:" % k, cvt(5), cvt(6), cvt(7), LADD])
    e("s_waitcnt lgkmcnt(0)")
    for i in range(8):
        e(pv(i))
    e("s_branch L_hdone")
    lab("L_solo")
    emit(lsum() + [RCP] + sa + cols + q_mul(0) + q_cvt(0) + ["s_branch L_tail3"])
    V = lambda i: vread(i, 0, True)
    W = lambda n: "s_waitcnt lgkmcnt(%d)" % n

    def V2(i):
        t, bb, ss = i // 8, (i // 2) % 4, i % 2
        return "ds_read_b64_tr_b16 %s, v%d offset:%d" % (vr(v.KF + (t * 4 + bb) * 4 + ss * 2, 2), v.va + 1,
                                                         (4 * t + 2 * ss) * 4096 + bb * 256)

    def pv2(i):
        return pv(i).replace(vr(v.VF + 4 * i, 4), vr(v.KF + 4 * i, 4))
    k = newret()
    q = [
        [NEEDINC, "s_lshl2_add_u32 s%d, s%d, L_cnt-L_pc" % (s.t0, s.mu), V(0), V(1), ex(8), add(7), cvt(3)],
        ["s_mov_b32 s%d, %d" % (s.ret, k), V(2), V(3), ex(9), ex(10), "v_mov_b32 v%d, s%d" % (v.fo, s.t0)],
        [W(4), GL, V(4), V(5), ex(11), add(8), add(9)],
        [cols[0], V(6), V(7), RDYR, ex(12), ex(13)],
        [cols[1], V(8), V(9), ex(14), add(10), add(11)],
        [cols[2], V(10), V(11), ex(15), add(12), add(13)],
        [W(4), V(12), V(13), add(14), add(15), CMP, cvt(4)],
        ["s_cbranch_vccnz L_resc", "L_ret%d:" % k, V(14), V(15), LADD, cvt(5), cvt(6), cvt(7)],
    ]
    lab("L_last")
    mark("tail")
    for t in range(8):
        e(QK0M if t == 0 else qk(t))
        emit(q[t])
    e(pv(0))
    emit(poll_rdy())
    e("s_bitcmp1_b32 s%d, 31" % (Fa + 4))
    e("s_cbranch_scc1 L_lasts")
    k = newret()
    vo = [0, 1, 8, 9, 2, 3, 10, 11, 4, 5, 12, 13, 6, 7, 14, 15]
    v2 = [V2(i) for i in vo]
    p = [
        v2[0:3] + [F(0), F(1), F(2), F(3)],
        [cols[3]] + v2[3:5] + [ex(0), ex(1), F(4), F(5), F(6), F(7)],
        ["s_mov_b32 s%d, %d" % (s.ret, k)] + v2[5:7] + [ex(2), ex(3), add(1), F(8), F(9), F(10)],
        [W(7)] + v2[7:10] + [ex(4), ex(5), add(2), add(3), F(11), F(12)],
        [None] + v2[10:12] + [ex(6), ex(7), cvt(0), cvt(1), add(4), add(5), F(13)],
        [None] + v2[12:14] + [ex(8), ex(9), cvt(2), add(6), add(7), cvt(3), F(14), F(15)],
        [None] + v2[14:16] + [ex(10), ex(11), ex(12), add(8), add(9), FO31],
        [None, ex(13), ex(14), ex(15), add(10), add(11), add(12), add(13), add(14), add(15), CMP, cvt(4), cvt(5), cvt(6), cvt(7),
         "s_cbranch_vccnz L_resc", "L_ret%d:" % k, LADD, W(0)],
    ]
    emit(p[0])
    for i in range(1, 8):
        e(pv(i))
        emit(p[i])
    m0_, m1_, c0_ = q_mul(0, False), q_mul(1, False), q_cvt(0)
    emit([pv2(0), GL] + lsum() + [RCP])
    emit([pv2(4)] + sa[0:8])
    emit([pv2(1)] + sa[8:16])
    emit([pv2(5)] + sa[16:])
    emit([pv2(2)] + m0_[0:6])
    emit([pv2(6)] + m0_[6:12])
    emit([pv2(3)] + m0_[12:] + c0_[:2])
    emit([pv2(7)] + c0_[2:])
    lab("L_tail3")
    stamp(5)
    emit(mix(q_mul(1) + q_cvt(1), q_wr(0)))
    emit(mix(q_mul(2) + q_cvt(2), q_wr(1) + rd_half(0)))
    emit(mix(q_mul(3) + q_cvt(3), q_wr(2) + ["s_waitcnt lgkmcnt(4)"] + st_one(0, 0) + st_one(0, 1)))
    emit(q_wr(3) + rd_half(1) + st_one(0, 2) + st_one(0, 3))
    stamp(4)
    for k in range(4):
        emit(["s_waitcnt lgkmcnt(%d)" % (3 - k)] + st_one(1, k))
    k = newret()
    v2 = [V2(i) for i in range(8)]
    ps_ = [
        v2[0:3] + [F(0), F(1), F(2), F(3)],
        [cols[3]] + v2[3:5] + [ex(0), F(4), F(5), F(6), F(7)],
        ["s_mov_b32 s%d, %d" % (s.ret, k)] + v2[5:7] + [ex(1), ex(2), FO31],
        [W(7)] + v2[7:8] + [ex(3), ex(4), add(1), add(2)],
        [None, ex(5), ex(6), cvt(0), add(3), cvt(1)],
        [None, ex(7), add(4), add(5), cvt(2), add(6)],
        [None, add(7), cvt(3), CMP] + sa[0:4],
        [W(0), GL] + sa[4:10] + ["s_cbranch_vccnz L_resc8", "L_ret%d:" % k, LADD],
    ]
    blk = ["L_lasts:"] + ps_[0]
    for i in range(1, 8):
        blk += [pv(i)] + ps_[i]
    ls_ = [x.replace("v%d" % v.t0, "v%d" % v.ps) for x in lsum()]
    blk += [pv2(0)] + ls_ + [RCP] + [pv2(1)] + sa[10:17] + [pv2(2)] + sa[17:] + [pv2(3)] + q_mul(0, False) + q_cvt(0) + ["s_branch L_tail3"]
    ool.append(blk)
    ool.append(["L_resc8:"] + [F(r) for r in range(8, 16)] + ["s_branch L_resc"])
    lab("L_fin")
    if SPIN:
        mark("st")
        e("s_waitcnt vmcnt(0)")
        mark("end")
        if SPIN == "glob":
            e("s_load_dwordx2 s[98:99], s[0:1], 40")
            e("s_not_b32 s%d, s%d" % (s.t0, s.ws))
            e("v_mov_b32 v%d, s%d" % (v.t1, s.t0))
            e("v_mov_b32 v%d, 0" % v.t0)
            e("s_waitcnt lgkmcnt(0)")
            e("s_cmp_lg_u32 s%d, 0" % s.wave)
            e("s_cbranch_scc1 L_g1")
            e("s_mov_b64 exec, 1")
            e("global_atomic_umax v%d, v%d, s[98:99]" % (v.t0, v.t1))
            e("s_mov_b64 exec, -1")
            lab("L_g1")
        e("s_sub_u32 s%d, s%d, s%d" % (s.t0, s.stp, s.ws))
        e("s_mul_i32 s%d, s%d, %s" % (s.t0, s.t0, OPT.get("amp", "2")))
        if OPT.get("wsel"):
            e("s_lshr_b32 s%d, %s, s%d" % (s.t1, OPT["wsel"], s.wave))
            e("s_and_b32 s%d, s%d, 1" % (s.t1, s.t1))
            e("s_mul_i32 s%d, s%d, s%d" % (s.t0, s.t0, s.t1))
        if OPT.get("rmask"):
            e("s_and_b32 s%d, s2, 15" % s.t1 if OPT.get("hsel") else "s_lshr_b32 s%d, s2, 4" % s.t1)
            e("s_lshr_b32 s%d, %s, s%d" % (s.t1, OPT["rmask"], s.t1))
            e("s_and_b32 s%d, s%d, 1" % (s.t1, s.t1))
            e("s_mul_i32 s%d, s%d, s%d" % (s.t0, s.t0, s.t1))
        e("s_add_u32 s%d, s%d, 3000" % (s.t0, s.t0))
        lab("L_spin")
        e("s_sleep 2")
        e("s_memrealtime s[%d:%d]" % (s.stp, s.stp + 1))
        e("s_waitcnt lgkmcnt(0)")
        e("s_sub_u32 s%d, s%d, s%d" % (s.t1, s.stp, s.ws))
        e("s_cmp_lt_u32 s%d, s%d" % (s.t1, s.t0))
        e("s_cbranch_scc1 L_spin")
        if SPIN == "glob":
            e("global_load_dword v%d, v%d, s[98:99] sc0 sc1" % (v.t1, v.t0))
            e("s_waitcnt vmcnt(0)")
            e("v_readfirstlane_b32 s%d, v%d" % (s.t2, v.t1))
            e("s_not_b32 s%d, s%d" % (s.t2, s.t2))
            lab("L_spin2")
            e("s_sleep 2")
            e("s_memrealtime s[%d:%d]" % (s.stp, s.stp + 1))
            e("s_waitcnt lgkmcnt(0)")
            e("s_sub_u32 s%d, s%d, s%d" % (s.t1, s.stp, s.t2))
            e("s_cmp_lt_u32 s%d, 4000" % s.t1)
            e("s_cbranch_scc1 L_spin2")
    if STAMPS:
        stamp(6)
        e("s_waitcnt vmcnt(0)")
        stamp(7)
        stamp(61, True)
        e("s_getreg_b32 s%d, hwreg(HW_REG_XCC_ID)" % s.stp)
        e("v_writelane_b32 v%d, s%d, 62" % (v.st, s.stp))
        e("s_lshl_b32 s%d, s2, 3" % s.t0)
        e("s_add_u32 s%d, s%d, s%d" % (s.t0, s.t0, s.wave))
        e("s_lshl_b32 s%d, s%d, 8" % (s.t0, s.t0))
        e("v_lshlrev_b32 v%d, 2, v%d" % (v.t0, v.lane))
        e("v_add_u32 v%d, s%d, v%d" % (v.t0, s.t0, v.t0))
        if OPT.get("dbg"):
            e("v_readlane_b32 s%d, v%d, 0" % (s.t0, v.st))
            e("v_readlane_b32 s%d, v%d, 61" % (s.t1, v.st))
            e("v_readlane_b32 s%d, v%d, 1" % (s.t2, v.st))
            e("s_not_b32 s%d, s%d" % (s.t3, s.t0))
            e("v_cmp_ne_u32 vcc, 0, v%d" % v.st)
            e("v_subrev_u32 v%d, s%d, v%d" % (v.t1, s.t2, v.st))
            e("s_nop 1")
            e("v_cndmask_b32 v%d, 0, v%d, vcc" % (v.t1, v.t1))
            e("v_writelane_b32 v%d, s%d, 0" % (v.t1, s.t3))
            e("v_writelane_b32 v%d, s%d, 1" % (v.t1, s.t1))
            e("v_writelane_b32 v%d, s%d, 15" % (v.t1, s.t0))
            e("v_lshlrev_b32 v%d, 2, v%d" % (v.t0, v.lane))
            e("s_cmp_lt_u32 s%d, 4" % s.wave)
            e("s_cselect_b32 s%d, 0xffff, 0x80ff" % s.t0 if False else "s_mov_b32 s%d, 0x80ff" % s.t0)
            e("s_cselect_b32 exec_lo, 0xffff, s%d" % s.t0)
            e("s_mov_b32 exec_hi, 0")
            e("global_atomic_umax v%d, v%d, %s" % (v.t0, v.t1, sr(s.ws, 2)))
        else:
            e("global_store_dword v%d, v%d, %s" % (v.t0, v.st, sr(s.ws, 2)))
    lab("L_end")
    e("s_endpgm")
    for blk in ool:
        emit(blk)
    lab("L_sync")
    e("s_setprio %s" % OPT.get("sprio", "0"))
    e("s_min_u32 s%d, s%d, s%d" % (s.t2, s.need, s.mu))
    e("s_cmp_eq_u32 s%d, 0x20000" % s.stepb)
    e("s_cselect_b32 s%d, %s, %s" % (s.t3, OPT.get("lookd", "6"), OPT.get("look", "2")))
    e("s_add_u32 s%d, s%d, s%d" % (s.t3, s.need, s.t3))
    e("s_min_u32 s%d, s%d, s%d" % (s.t3, s.t3, s.n))
    e("s_bfe_u32 s%d, s%d, 0x40008" % (s.chk, N + 4))
    lab("L_svc")
    e("ds_read_b32 v%d, v%d" % (v.t1, v.pra))
    e(RDYR)
    e("s_cmp_lt_u32 s%d, %s" % (s.iss, OPT.get("warn", "8")))
    e("s_cselect_b32 s%d, s%d, 5" % (s.t1, s.chk))
    e("s_sub_i32 s%d, s%d, s%d" % (s.t1, s.iss, s.t1))
    e("s_cmp_gt_u32 s%d, s%d" % (s.iss, s.t3))
    e("s_waitcnt lgkmcnt(0)")
    e("s_cbranch_scc0 L_svc1")
    e("v_cmp_ge_u32 vcc, s%d, v%d" % (s.t2, v.rdy))
    e("s_cbranch_vccz L_svcx")
    e("s_cmp_gt_u32 s%d, s%d" % (s.iss, s.n))
    e("s_cbranch_scc1 L_svcs")
    lab("L_svc1")
    e("v_cmp_gt_i32 vcc, s%d, v%d" % (s.t1, v.t1))
    e("s_bitcmp1_b32 s%d, 0" % s.iss)
    e("s_cbranch_scc1 L_svcB")
    e("s_cmp_lt_u32 s%d, 8" % s.iss)
    e("s_cselect_b32 s%d, -1, s%d" % (s.t1, N + 1))
    e("s_and_b32 s%d, s%d, vcc_lo" % (s.t1, s.t1))
    e("s_and_b32 s%d, s%d, 0xff" % (s.t1, s.t1))
    e("s_cbranch_scc1 L_svc2")
    e("s_add_u32 s%d, s%d, 1" % (s.iss, s.iss))
    emit(svc_cap())
    emit(chunk(0))
    e("s_branch L_svc")
    lab("L_svcB")
    e("s_and_b32 s%d, s%d, 0xff" % (s.t1, N + 3))
    e("s_cmp_gt_u32 s%d, s%d" % (s.iss, s.t1))
    e("s_cbranch_scc1 L_svcF")
    e("s_cbranch_vccnz L_svc2")
    emit(svc_cap())
    emit(chunk(1, flag=False))
    lab("L_svcF")
    e("s_add_u32 s%d, s%d, 1" % (s.iss, s.iss))
    emit(FLAG + STEP_ADV)
    e("s_branch L_svc")
    lab("L_svc2")
    e("v_cmp_ge_u32 vcc, s%d, v%d" % (s.t2, v.rdy))
    e("s_cbranch_vccz L_svcx")
    lab("L_svcs")
    emit(spin(OPT.get("slp", "2")))
    e("s_branch L_svc")
    lab("L_svcx")
    e("s_setprio %s" % OPT.get("hprio", "3"))
    SRET_AT = len(out)
    lab("L_hdone")
    e("s_mov_b32 s%d, s%d" % (s.need, s.n))
    e("s_mov_b32 s%d, s%d" % (s.mu, s.n))
    emit(sync_call())
    e("s_sub_u32 s%d, s%d, 1" % (s.t2, s.n))
    e("s_bfe_u32 s%d, s%d, 0x40018" % (s.n, Fa + 2))
    e("s_cbranch_scc0 L_fin")
    e("s_cmp_eq_u32 s%d, 1" % s.n)
    e("s_cbranch_scc1 L_solo")
    e("s_setprio %s" % OPT.get("eprio", "0"))
    stamp(5)
    l16, l8, xa, cnt, xr = v.ka0, v.ka0r, v.var, v.var + 1, v.var + 2
    emit(lsum())
    e("v_lshlrev_b32 v%d, 4, v%d" % (l16, L))
    e("v_lshlrev_b32 v%d, 3, v%d" % (l8, L))
    e("s_lshl_b32 s%d, s%d, 9" % (s.t0, s.wave))
    e("s_add_u32 s%d, s%d, %d" % (s.t0, s.t0, MLBASE - 2048))
    e("v_add_u32 v%d, s%d, v%d" % (xa, s.t0, l8))
    e("ds_write_b64 v%d, %s" % (xa, vr(v.nmc, 2)))
    emit(st_addr())
    e("v_add_u32 v%d, s%d, v%d" % (xr, s.reg, l16))
    for j in range(3):
        e("s_lshr_b32 s%d, s%d, 24" % (s.t0, Fa + 5 + j))
        e("s_lshl_b32 s%d, s%d, 9" % (s.t0, s.t0))
        e("s_add_u32 s%d, s%d, %d" % (s.t0, s.t0, MLBASE))
        e("v_add_u32 v%d, s%d, v%d" % (v.P + j, s.t0, l8))
    e("s_lshr_b32 s%d, s%d, 30" % (s.t0, Fa + 2))
    e("s_lshl_b32 s%d, s%d, 2" % (s.t0, s.t0))
    e("s_add_u32 s%d, s%d, %d" % (s.t0, s.t0, CNTB))
    e("v_mov_b32 v%d, s%d" % (cnt, s.t0))
    e("v_mov_b32 v%d, 1" % v.t3)
    e("s_branch L_pe1")
    lab("L_pe0")
    emit(spin(OPT.get("slp", "2")))
    lab("L_pe1")
    e("ds_read_b32 v%d, v%d" % (v.t1, v.pra))
    e("s_waitcnt lgkmcnt(0)")
    e("v_cmp_gt_u32 vcc, s%d, v%d" % (s.t2, v.t1))
    e("s_cbranch_vccnz L_pe0")
    stamp(2)
    e("s_cmp_eq_u32 s%d, 2" % s.n)
    e("s_cbranch_scc1 L_sd2")
    for j in (1, 2, 3):
        if j == 2:
            lab("L_sd2")
        e("s_and_b32 s%d, s%d, 0xffffff" % (s.t0, Fa + 4 + j))
        e("v_add_u32 v%d, s%d, v%d" % (xa, s.t0, l16))
        for k in range(2 if OPT.get("xhalfw") else 4):
            e("ds_write_b128 v%d, %s offset:%d" % (xa, vr(v.O + 16 * j + 4 * k, 4), k * 1024))
    e("s_mov_b64 exec, 1")
    e("ds_add_u32 v%d, v%d" % (cnt, v.t3))
    e("s_mov_b64 exec, -1")
    stamp(3)
    e("s_branch L_poll1")
    lab("L_poll")
    emit(spin())
    lab("L_poll1")
    e("ds_read_b32 v%d, v%d" % (v.t3, cnt))
    e("s_waitcnt lgkmcnt(0)")
    e("v_cmp_ne_u32 vcc, s%d, v%d" % (s.n, v.t3))
    e("s_cbranch_vccnz L_poll")
    stamp(4)
    for j in range(3):
        e("ds_read_b64 %s, v%d" % (vr(v.X + 2 * j, 2), v.P + j))
    for k in range(12):
        e("ds_read_b128 %s, v%d offset:%d" % (vr(v.KF + 16 + 4 * k, 4), xr, k * 1024))
    RX = v.KF + 16
    f0, f1, f2, f3 = v.X + 8, v.X + 10, v.X + 12, v.X + 14
    e("s_bfe_u32 s%d, s%d, 0x2001c" % (s.col, Fa + 2))
    e("s_lshl_b32 s%d, s%d, 6" % (s.col, s.col))
    e("s_add_u32 s%d, s%d, 0x8000" % (s.col + 1, s.col))
    e("s_add_u32 s%d, s%d, 0x10000" % (s.col + 2, s.col))
    e("s_add_u32 s%d, s%d, 0x18000" % (s.t1, s.col))
    PK = not OPT.get("nopk")

    def vmul(n, f):
        if PK:
            return ["v_pk_mul_f32 %s, %s, %s op_sel_hi:[1,0]" % (vr(v.O + i, 2), vr(v.O + i, 2), vr(f, 2)) for i in range(0, n, 2)]
        return ["v_mul_f32 v%d, v%d, v%d" % (v.O + i, v.O + i, f) for i in range(n)]

    def vfma(n, src_, f):
        if PK:
            return ["v_pk_fma_f32 %s, %s, %s, %s op_sel_hi:[1,0,1]" % (vr(v.O + i, 2), vr(src_ + i, 2), vr(f, 2), vr(v.O + i, 2)) for i in range(0, n, 2)]
        return ["v_fmac_f32 v%d, v%d, v%d" % (v.O + i, src_ + i, f) for i in range(n)]

    def direct(bb):
        r = ["v_cvt_pk_bf16_f32 v%d, v%d, v%d" % (v.S + 8 * bb + i, v.O + 16 * bb + 2 * i, v.O + 16 * bb + 2 * i + 1) for i in range(8)]
        for g in (0, 1):
            d = v.S + 8 * bb + 4 * g
            r += ["v_permlane32_swap_b32 v%d, v%d" % (d, d + 2), "v_permlane32_swap_b32 v%d, v%d" % (d + 1, d + 3),
                  "buffer_store_dwordx4 %s, v%d, %s, s%d offen offset:%d %s" % (vr(d, 4), oo, sr(s.so, 4), s.col, 64 * bb + 32 * g, STF)]
        return r
    e("s_waitcnt lgkmcnt(12)")
    e("v_min3_f32 v%d, v%d, v%d, v%d" % (v.t3, v.nmc, v.X, v.X + 2))
    e("v_min_f32 v%d, v%d, v%d" % (v.t3, v.t3, v.X + 4))
    e("v_sub_f32 v%d, v%d, v%d" % (f0, v.t3, v.nmc))
    for j, f in enumerate((f1, f2, f3)):
        e("v_sub_f32 v%d, v%d, v%d" % (f, v.t3, v.X + 2 * j))
    for f in (f0, f1, f2, f3):
        e("v_exp_f32 v%d, v%d" % (f, f))
    e("v_mul_f32 v%d, v%d, v%d" % (v.l, v.l, f0))
    e("v_fmac_f32 v%d, v%d, v%d" % (v.l, v.X + 1, f1))
    e("s_cmp_eq_u32 s%d, 2" % s.n)
    e("s_cbranch_scc1 L_mg2")
    e("v_fmac_f32 v%d, v%d, v%d" % (v.l, v.X + 3, f2))
    e("v_fmac_f32 v%d, v%d, v%d" % (v.l, v.X + 5, f3))
    e("v_rcp_f32 v%d, v%d" % (v.t3, v.l))
    e("v_and_b32 v%d, 4, v%d" % (v.t0, L))
    e("v_lshl_add_u32 v%d, v%d, 28, v%d" % (oo, v.t0, oo))
    for f in (f0, f1, f2, f3):
        e("v_mul_f32 v%d, v%d, v%d" % (f, f, v.t3))
    emit(vmul(16, f0))
    for j, f in enumerate((f1, f2, f3)):
        e("s_waitcnt lgkmcnt(%d)" % (8 - 4 * j))
        emit(vfma(16, RX + 16 * j, f))
    e("s_branch L_mg3")
    lab("L_mg2")
    e("v_rcp_f32 v%d, v%d" % (v.t3, v.l))
    e("s_nop 0")
    for f in (f0, f1):
        e("v_mul_f32 v%d, v%d, v%d" % (f, f, v.t3))
    emit(vmul(32, f0))
    e("s_waitcnt lgkmcnt(4)")
    emit(vfma(32, RX, f1))
    emit(pack_q(1, False))
    lab("L_mg3")
    emit(pack_q(0, False) + rd_half(0))
    for k in range(4):
        emit(["s_waitcnt lgkmcnt(%d)" % (3 - k)] + st_one(0, k))
    e("s_branch L_fin")
    lab("L_resc")
    e("v_max3_f32 v%d, v%d, v%d, v%d" % (v.E, v.X, v.X + 1, v.X + 2))
    for r in range(3, 15, 2):
        e("v_max3_f32 v%d, v%d, v%d, v%d" % (v.E, v.E, v.X + r, v.X + r + 1))
    e("v_max3_f32 v%d, v%d, v%d, 0" % (v.E, v.E, v.X + 15))
    e("v_mov_b32 v%d, v%d" % (v.E + 1, v.E))
    e("s_nop 1")
    e("v_permlane32_swap_b32 v%d, v%d" % (v.E, v.E + 1))
    e("s_nop 1")
    e("v_max_f32 v%d, v%d, v%d" % (v.E, v.E, v.E + 1))
    e("v_exp_f32 v%d, -v%d" % (v.E + 1, v.E))
    e("v_sub_f32 v%d, v%d, v%d" % (v.nmc, v.nmc, v.E))
    for r in range(16):
        e("v_sub_f32 v%d, v%d, v%d" % (v.X + r, v.X + r, v.E))
    e("v_mul_f32 v%d, v%d, v%d" % (v.l, v.l, v.E + 1))
    for i in range(64):
        e("v_mul_f32 v%d, v%d, v%d" % (v.O + i, v.O + i, v.E + 1))
    emit(soft_half_plain(0))
    emit(soft_half_plain(1))
    for k, r in enumerate(rets[:-1]):
        e("s_cmp_eq_u32 s%d, %d" % (s.ret, k))
        e("s_cbranch_scc1 %s" % r)
    e("s_branch %s" % rets[-1])
    rl_ = []
    order = [2, 1, 0, 3]
    assert len(srets) == len(order)
    for k in order[:-1]:
        rl_ += ["    s_cmp_eq_u32 s%d, %d" % (s.sret, k), "    s_cbranch_scc1 %s" % srets[k]]
    rl_ += ["    s_branch %s" % srets[order[-1]]]
    out[SRET_AT:SRET_AT] = rl_
    out.append(".p2align 6")
    out.append(".type L_near,@object")
    lab("L_near")
    for ent in near:
        out.append("    .long " + ", ".join("0x%x" % x for x in ent))
    lab("L_far")
    for ent in far:
        out.append("    .long " + ", ".join("0x%x" % x for x in ent))
    lab("L_cnt")
    out.append("    .long " + ", ".join(str(i) for i in range(32)))
    out.append(".size L_near, .-L_near")
    lab("L_codeend")
    out.append("    .fill 512, 4, 0xbf800000")
    out.append('.section .rodata,"a"')
    out.append(".p2align 6")
    out.append(".amdhsa_kernel " + K)
    out.append("  .amdhsa_next_free_vgpr %d" % NV)
    out.append("  .amdhsa_next_free_sgpr %d" % NS)
    out.append("  .amdhsa_accum_offset %d" % NV)
    out.append("  .amdhsa_group_segment_fixed_size 0")
    out.append("  .amdhsa_kernarg_size 56")
    out.append("  .amdhsa_user_sgpr_count 2")
    out.append("  .amdhsa_user_sgpr_kernarg_segment_ptr 1")
    out.append("  .amdhsa_system_sgpr_workgroup_id_x 1")
    out.append(".end_amdhsa_kernel")
    txt = "\n".join(out) + "\n"
    txt = txt.replace("PFSTRIDE", OPT.get("pf", "32"))
    import subprocess, tempfile, os
    tmp = tempfile.mkdtemp()
    open(tmp + "/a.s", "w").write(txt.replace("offset:L_near-L_pc", "offset:0x100").replace("offset:L_far-L_pc", "offset:0x100"))
    subprocess.run(["clang", "-x", "assembler", "-target", "amdgcn-amd-amdhsa", "-mcpu=gfx950", "-c", tmp + "/a.s", "-o", tmp + "/a.o"], check=True)
    sy = {}
    for ln in subprocess.run(["llvm-objdump", "-t", tmp + "/a.o"], capture_output=True, text=True).stdout.splitlines():
        p = ln.split()
        if len(p) >= 5 and p[-1].startswith("L_"):
            sy[p[-1]] = int(p[0], 16)
    assert sy["L_codeend"] - sy["L_pc"] <= 512 * int(OPT.get("pf", "32")) + 128 or STAMPS or SPIN, hex(sy["L_codeend"])
    assert sy["L_codeend"] + 2048 - sy["L_pc"] >= 512 * int(OPT.get("pf", "32"))
    for t in ("L_near", "L_far"):
        txt = txt.replace("offset:%s-L_pc" % t, "offset:0x%x" % (sy[t] - sy["L_pc"]))
        txt = txt.replace(t + ":\n", t + ":\n.if (%s-L_pc) != 0x%x\n.error \"table offset\"\n.endif\n" % (t, sy[t] - sy["L_pc"])) if False else txt
    return txt


if __name__ == "__main__":
    args = [a for a in sys.argv[1:] if a.endswith(".s")]
    path = args[0] if args else "cdna_kernels/%s.s" % NAME
    open(path, "w").write(gen())
    print("wrote", path)
```

```python
import sys, struct, math

NAME = "standalone__varlen_attn_packed__ragged"
CU = [0, 289, 520, 939, 1289, 1402, 1666, 1973, 2275]
LEN = [CU[i + 1] - CU[i] for i in range(8)]
T_TOT = 2275
ROWB = 4096
TENSOR_BYTES = T_TOT * ROWB

OPT = {}
for a in sys.argv[1:]:
    if a.startswith("--"):
        k, _, val = a[2:].partition("=")
        OPT[k] = val if val else "1"
STAMPS = "stamps" in OPT or "lite" in OPT
LITE = "lite" in OPT
LDF_Q = OPT.get("ldq", "none").replace("+", " ").replace("none", "")
LDF_K = OPT.get("ldk", "none").replace("+", " ").replace("none", "")
STF = OPT.get("st", "sc1").replace("+", " ").replace("none", "")
FLY = int(OPT.get("fly", "4"))

HEADER = """; Kernarg layout for this problem (56 bytes, ptrs only, base s[0:1]):
;   offset   0: d_in[0] q  shape=(2275, 16, 128) dtype=bfloat16 strides=(4096, 256, 2) contiguous=True
;   offset   8: d_in[1] k  shape=(2275, 16, 128) dtype=bfloat16 strides=(4096, 256, 2) contiguous=True
;   offset  16: d_in[2] v  shape=(2275, 16, 128) dtype=bfloat16 strides=(4096, 256, 2) contiguous=True
;   offset  24: d_in[3] cu  shape=(9,) dtype=int32 strides=(4,) contiguous=True
;   offset  32: d_out     shape=(2275, 16, 128) dtype=bfloat16 (2 bytes/elem)
"""

DOC = """;
; Varlen (packed) non-causal attention, one 512-thread workgroup per CU, schedule specialised for the fixed cu[] table.
;   waves 0..3 : one 32-row q tile each; software pipelined flash-attention loop (S^T = K Q^T, O^T += V^T P^T,
;   waves 4..7 : stream K/V blocks into an LDS ring with LDS-DMA and compute a share of the extra q tiles;
;                partial results of a shared tile are merged through LDS.
;   row sums at run time and, whenever they could become unsafe, L_resc moves the reference to the true
;   L_near / L_far: per-workgroup and per-wave work descriptors (rows, lengths, LDS regions).
"""


def f2u(x):
    return struct.unpack("<I", struct.pack("<f", x))[0]


def cdiv(a, b):
    return (a + b - 1) // b


LDS_TOTAL = 163840
QBASE = 98304
XTRA = 131072
MLBASE = XTRA + 16384
PRGB = XTRA + 7 * 4096 + 2048
RDYB = XTRA + 6 * 4096 + 3072
CNTB = XTRA + 6 * 4096 + 2048
BIG = 0x4000

ROLES = [
    ("dual", (1, 6, 2), (4, 0, 4)),
    (5, 0, 6),
    (3, 0, 5), (3, 5, 5),
    ("dual", (3, 10, 1), (5, 6, 3)),
    (1, 0, 6),
    (6, 0, 5), (6, 5, 5),
    (7, 0, 5), (7, 5, 5), (0, 0, 5), (0, 5, 5),
    (2, 0, 4), (2, 4, 4), (2, 8, 3), (2, 11, 3),
]
WARS = OPT.get("wars", None if ("war" in OPT or "ward" in OPT) else "5444533333333333") or "".join(OPT.get("ward", "5") if r[0] == "dual" else OPT.get("war", "4") for r in ROLES)
QL = int(OPT.get("ql", "4"))
QLC = int(OPT.get("qlc", "3"))
QE = int(OPT.get("qe", "0"))


def nrec(rows):
    return (rows - 1) * ROWB + 256 if rows > 0 else 0


def build_tables():
    near, far, desc = [], [], []
    for ri, role in enumerate(ROLES):
        W = [None] * 8
        groups = []
        if role[0] == "dual":
            (sa, ta, na), (sb, tb, nb) = role[1], role[2]
            rowA, lenA, rowB, lenB, step = CU[sa], LEN[sa], CU[sb], LEN[sb], 32
            n_it = max(cdiv(lenA, 32), cdiv(lenB, 32))
            tiles = [(sa, ta + i, 0) for i in range(na)] + [(sb, tb + i, 1) for i in range(nb)]
            nq = len(tiles)
            for i in range(4):
                sq, tl, st = tiles[i]
                W[i] = dict(seq=sq, tile=tl, ql=i, type=2, stream=st, its=list(range(cdiv(LEN[sq], 32))), hastail=1)
            for i in range(4, nq):
                sq, tl, st = tiles[i]
                nb_ = cdiv(LEN[sq], 32)
                W[i + 2] = dict(seq=sq, tile=tl, ql=i, type=3, stream=st, its=list(range(nb_)), hastail=1,
                                G=1, reg=XTRA + 4096 * i)
        else:
            sa, t0, nq = role
            rowA, lenA, rowB, lenB, step = CU[sa], LEN[sa], CU[sa] + 32, LEN[sa] - 32, 64
            nkv = cdiv(lenA, 32)
            n_it = cdiv(nkv, 2)
            tiles = [(sa, t0 + i, 0) for i in range(nq)]
            for i in range(min(nq, 4)):
                W[i] = dict(seq=sa, tile=t0 + i, ql=i, type=1, stream=0, its=list(range(nkv)), hastail=1)
            nh = 4 // (nq - 4) if nq > 4 else 0
            for i in range(4, nq):
                ws = [4, 5, 6, 7] if nh == 4 else [4 + (i - 4), 6 + (i - 4)]
                for k, w in enumerate(ws):
                    blocks = [p for p in range(nkv) if p % nh == k]
                    W[w] = dict(seq=sa, tile=t0 + i, ql=i, type=3, stream=k % 2, its=[p // 2 for p in blocks],
                                hastail=int((nkv - 1) in blocks))
                groups.append(ws)
        qrows = [CU[sq] + 32 * tl for sq, tl, _ in tiles] + [0xfff] * (6 - nq)
        qrows = [r | (0x1000 if i < nq and tiles[i][2] else 0) for i, r in enumerate(qrows)]
        maskA = sum(1 << i for i, w in enumerate(W) if w and (w["type"] == 1 or w["stream"] == 0 or i < 4 and role[0] != "dual"))
        lastB = 2 * cdiv(lenB, step) + 1
        near.append([rowA * ROWB, nrec(lenA) | maskA, rowB * ROWB, nrec(lenB) | lastB, step * ROWB | (2 * n_it + 1) | int(WARS[ri]) << 8,
                     qrows[0] | qrows[1] << 16, qrows[2] | qrows[3] << 16, qrows[4] | qrows[5] << 16])
        areas = [((n_it + 1) % 4) * 32768, ((n_it + 2) % 4) * 32768]
        recv = [areas[0], areas[0] + 12288, areas[1], areas[1] + 12288]
        for i in range(4):
            if W[i]:
                W[i]["reg"] = XTRA + 4096 * i
        for gi, g in enumerate(groups):
            G = len(g)
            for k, w in enumerate(g):
                W[w]["reg"] = recv[w - 4]
                W[w]["G"], W[w]["k"], W[w]["gi"] = G, k, gi
                if G == 4:
                    W[w]["send"] = [recv[g[(j + k) % 4] - 4] + (j - 1) * 4096 for j in (1, 2, 3)]
                    W[w]["src"] = [g[(k - j) % 4] for j in (1, 2, 3)]
                else:
                    o = g[1 - k]
                    W[w]["send"] = [0, recv[o - 4], recv[o - 4] + 4096]
                    W[w]["src"] = [o, o, o]
        for wi in range(8):
            w = W[wi]
            if OPT.get("xnohelp") and w and w.get("G", 0) > 1:
                w = None
            desc.append(w)
            if w is None:
                far.append([0] * 8)
                continue
            sq, its, typ, sc = w["seq"], w["its"], w["type"], w["stream"]
            tail = LEN[sq] % 32
            orow = CU[sq] + 32 * w["tile"]
            onr = min(32, CU[sq + 1] - orow)
            assert onr > 0 and tail > 0
            U = len(its) - 1
            a0, st = its[0], its[1] - its[0]
            assert all(its[i] == a0 + st * i for i in range(len(its))) and st <= 2 and a0 <= 1 and U >= 1
            if typ == 1:
                inc, prg0, prg1, need1, need2 = 1, 2, 4, 0, 2
            elif typ == 2:
                inc, prg0, prg1, need1, need2 = 2, 2, 4 + sc, sc, 4 + sc
            else:
                inc, prg0, prg1, need1, need2 = 2 * st, 2 * a0 + sc + 2, 2 * (a0 + 1) + sc + 2, max(QE if QE else 3, 2 * a0 + sc), 2 * (a0 + st) + sc
            needk = max(need1 + 2 * (typ == 2), 1)
            if typ != 3 and wi >= QL:
                need1 = max(need1, QLC)
            w.update(needk=needk)
            w.update(U=U, a0=a0, st=st, inc=inc, prg0=prg0, prg1=prg1, need1=need1, need2=need2, n_it=n_it)
            hm = 0
            if typ != 3:
                nlast = 2 * n_it + 1
                pub = prg0
                w["pubs"] = []
                for b in range(U):
                    val = prg1 + inc * (b + 1)
                    want = pub < nlast - 5 and (typ == 2 or b % 2 == 1 or OPT.get("puball"))
                    if groups and pub < nlast - 1 <= val:
                        want = True
                    if typ == 2 or U - 1 - b <= 1:
                        hm |= 1 << (U - 1 - b)
                    if want and OPT.get("nodpub"):
                        hm |= 0x10001 << (U - 1 - b)
                        pub = val
                        w["pubs"].append(b)
            G, k, gi = w.get("G", 0), w.get("k", 0), w.get("gi", 0)
            rot = k * (4 // G) if G > 1 else 0
            lastc = (U + 2) if typ == 1 else 2 * (its[-1] + 1) + sc
            w["lastc"] = lastc
            ent = [orow * ROWB | lastc, nrec(onr),
                   U | typ << 8 | inc << 12 | (tail if w["hastail"] else 32) << 16 | G << 24 | rot << 28 | gi << 30,
                   prg0 | prg1 << 8 | need1 << 16 | need2 << 24,
                   w["reg"] | w["ql"] << 20 | (1 - sc) << 24 | a0 << 25 | st << 26 | int(typ != 3 and tail <= 16 and not OPT.get("noshort")) << 31]
            if G > 1:
                ent += [w["send"][j] | ((w["src"][j] - 4) << 24) for j in range(3)]
            if typ != 3:
                ent += [hm, needk]
            ent += [0] * (8 - len(ent))
            far.append(ent)
    return near, far, desc


class R:
    pass


v = R()
v.kd0, v.kd1, v.vd0, v.vd1 = 1, 2, 3, 4
v.ka0r, v.ka1r = 5, 6
v.ka0, v.ka1 = 7, 8
v.rdya, v.rdy = 9, 10
v.lane = 11
v.nmc, v.l = 12, 13
v.ps = 14
v.t0, v.t1, v.t2, v.t3 = 15, 16, 17, 18
v.pf = 19
v.st = 20
v.prga, v.prg = 21, 22
v.fo = 23
v.pra = 0
v.Q = 24
v.O = 56
v.S = 120
v.B = 136
v.KF = 152
v.VF = 184
v.X = 216
v.E = 232
v.P = 240
v.var = 248
v.va = 252
NV = 256

s = R()
s.q, s.k, s.vv, s.cu, s.out = 4, 6, 8, 10, 12
s.near = 16
s.far = 24
s.kA, s.kB, s.vA, s.vB, s.sq, s.so = 32, 36, 40, 44, 48, 52
s.wave, s.hoff = 56, 57
s.n = 58
s.thr = 59
s.soff = 60
s.dslot = 61
s.U = 62
s.mu = 63
s.koff, s.voff = 64, 65
s.need, s.chk = 66, 67
s.t0, s.t1, s.t2, s.t3 = 68, 69, 70, 71
s.pc = 72
s.stp = 74
s.ws = 76
s.sti = 78
s.ret = 79
s.foff = 80
s.reg = 81
s.m1 = 82
s.lnd = 83
s.inc = 84
s.col = 85
s.astep = 88
s.sret = 89
s.guard = 90
s.iss = 91
s.d0, s.rdw = 92, 93
s.qea, s.qeb = 94, 95
s.stepb = 97
NS = 100

C_SCALE = (128 ** -0.5) * math.log2(math.e)
CL = "0x%x" % f2u(C_SCALE)
THRESH = 4096.0

out = []


def e(x):
    out.append("    " + x)


def lab(x):
    out.append(x + ":")


def vr(b, n):
    return "v[%d:%d]" % (b, b + n - 1)


def sr(b, n):
    return "s[%d:%d]" % (b, b + n - 1)


def emit(lst):
    for x in lst:
        if x is None:
            continue
        if x.endswith(":"):
            out.append(x)
        else:
            e(x)


def stamp_l(k=None, real=False):
    if not STAMPS or (LITE and k not in (7, 61)):
        return []
    if OPT.get("rt") and k is None and not real:
        return stamp_l(None, True) + stamp_l(None, "c")
    real = real is True
    r = ["%s s[%d:%d]" % ("s_memrealtime" if real else "s_memtime", s.stp, s.stp + 1), "s_waitcnt lgkmcnt(0)"]
    if k is None:
        r += ["s_mov_b32 s%d, m0" % (s.stp + 1), "s_mov_b32 m0, s%d" % s.sti, "s_nop 0",
              "v_writelane_b32 v%d, s%d, m0" % (v.st, s.stp),
              "s_add_u32 s%d, s%d, 1" % (s.sti, s.sti), "s_mov_b32 m0, s%d" % (s.stp + 1)]
    else:
        r += ["v_writelane_b32 v%d, s%d, %d" % (v.st, s.stp, k)]
    return r


def stamp(k=None, real=False):
    emit(stamp_l(k, real))


SPIN = OPT.get("spin")


def mark(name):
    if SPIN == name:
        e("s_memrealtime s[%d:%d]" % (s.stp, s.stp + 1))
        e("s_waitcnt lgkmcnt(0)")


def kread(t, dst, st=0):
    return "ds_read_b128 %s, v%d offset:%d" % (vr(dst + 4 * t, 4), v.ka1 if t % 2 else v.ka0,
                                               (t // 4) * 16384 + ((t // 2) % 2) * 256 + st * 1024)


def vread(i, st=0, one=False):
    t, bb, ss = i // 8, (i // 2) % 4, i % 2
    reg = v.VF + (t * 4 + bb) * 4 + ss * 2
    if one:
        return "ds_read_b64_tr_b16 %s, v%d offset:%d" % (vr(reg, 2), v.va, (4 * t + 2 * ss) * 4096 + st * 1024 + bb * 256)
    return "ds_read_b64_tr_b16 %s, v%d offset:%d" % (vr(reg, 2), v.va + bb, (4 * t + 2 * ss) * 4096 + st * 1024)


def ld(kv, col, half, so):
    srd = {("K", 0): s.kA, ("K", 1): s.kB, ("V", 0): s.vA, ("V", 1): s.vB}[(kv, col)]
    off = (2048 if kv == "V" else 0) + (1024 if col == 0 else 0)
    vo = {("K", 0): v.kd0, ("K", 1): v.kd1, ("V", 0): v.vd0, ("V", 1): v.vd1}[(kv, half)]
    return "buffer_load_dwordx4 v%d, %s, s%d offen %s%s lds" % (vo, sr(srd, 4), so, "offset:%d " % off if off else "", LDF_K)


STEP_ADV = ["s_add_u32 s%d, s%d, s%d" % (s.soff, s.soff, s.stepb),
            "s_add_u32 s%d, s%d, 0x8000" % (s.dslot, s.dslot),
            "s_and_b32 s%d, s%d, 0x1ffff" % (s.dslot, s.dslot)]


FLAG = ["s_mov_b32 m0, s%d" % s.rdw,
        "v_add_u32 v%d, 4, v%d" % (v.fo, v.fo),
        "global_load_lds_dword v%d, %s" % (v.fo, sr(s.pc, 2))]


def chunk(col, k_only=False, pace=0, flag=True):
    p = []
    if pace:
        p = ["s_sleep %d" % pace if pace < 16 else "s_nop %d" % (pace - 16)]
    r = []
    for half, m in ((0, "s_mov_b32 m0, s%d" % s.dslot), (1, "s_add_u32 m0, s%d, 0x4000" % s.dslot)):
        r += [m, "s_nop 0"]
        if not k_only:
            r += [ld("V", col, half, s.soff)] + p
        r += [ld("K", col, half, s.soff)] + p
    return r + (FLAG if flag else [])


def qk(t):
    return "v_mfma_f32_32x32x16_bf16 %s, %s, %s, %s" % (vr(v.S, 16), vr(v.KF + 4 * t, 4), vr(v.Q + 4 * t, 4), vr(v.S, 16))


def pv(i):
    t, bb = i // 4, i % 4
    return "v_mfma_f32_32x32x16_bf16 %s, %s, %s, %s" % (
        vr(v.O + 16 * bb, 16), vr(v.VF + (t * 4 + bb) * 4, 4), vr(v.P + 4 * t, 4), vr(v.O + 16 * bb, 16))


def F(r):
    return "v_fmamk_f32 v%d, v%d, %s, v%d" % (v.X + r, v.S + r, CL, v.nmc)


def ex(r):
    return "v_exp_f32 v%d, v%d" % (v.E + r % 8, v.X + r)


def add(r):
    if r == 0:
        return None
    if r == 1:
        return "v_add_f32 v%d, v%d, v%d" % (v.ps, v.E, v.E + 1)
    return "v_add_f32 v%d, v%d, v%d" % (v.ps, v.ps, v.E + r % 8)


def cvt(i):
    return "v_cvt_pk_bf16_f32 v%d, v%d, v%d" % (v.P + i, v.E + (2 * i) % 8, v.E + (2 * i + 1) % 8)


def soft_half_plain(h):
    r = [ex(8 * h + i) for i in range(8)]
    r += [x for x in (add(8 * h + i) for i in range(8)) if x]
    r += [cvt(4 * h + i) for i in range(4)]
    return r


CMP = "v_cmp_lt_f32 vcc, s%d, v%d" % (s.thr, v.ps)
LADD = "v_add_f32 v%d, v%d, v%d" % (v.l, v.l, v.ps)
PRGW = "ds_write_b32 v%d, v%d" % (v.prga, v.prg)
RDYR = "ds_read_b32 v%d, v%d" % (v.rdy, v.rdya)
PRGINC = "v_add_u32 v%d, s%d, v%d" % (v.prg, s.inc, v.prg)
NEEDINC = "s_add_u32 s%d, s%d, s%d" % (s.need, s.need, s.inc)
QK0 = "v_mfma_f32_32x32x16_bf16 %s, %s, %s, 0" % (vr(v.S, 16), vr(v.KF, 4), vr(v.Q, 4))
QK0M = "v_mfma_f32_32x32x16_bf16 %s, %s, %s, %s" % (vr(v.S, 16), vr(v.KF, 4), vr(v.Q, 4), vr(v.B, 16))
rets, srets = [], []


def newret():
    rets.append("L_ret%d" % len(rets))
    return len(rets) - 1


def kaddr():
    return ["v_add_u32 v%d, s%d, v%d" % (v.ka0, s.koff, v.ka0r),
            "v_add_u32 v%d, s%d, v%d" % (v.ka1, s.koff, v.ka1r)]


def vaddr():
    return ["v_add_u32 v%d, s%d, v%d" % (v.va + j, s.voff, v.var + j) for j in range(4)]


def adv(reg):
    return ["s_add_u32 s%d, s%d, s%d" % (reg, reg, s.astep), "s_and_b32 s%d, s%d, 0x1ffff" % (reg, reg)]


_sc = [0]


def svc_cap():
    r = ["s_waitcnt vmcnt(%s)" % OPT.get("cap", "20")]
    if OPT.get("cap0"):
        _sc[0] += 1
        r += ["s_and_b32 s%d, s%d, %s" % (s.t1, s.hoff, OPT.get("capm", "0x300")), "s_cbranch_scc1 L_sc%d" % _sc[0],
              "s_waitcnt vmcnt(%s)" % OPT["cap0"], "L_sc%d:" % _sc[0]]
    return r


def headmap():
    if OPT.get("gc"):
        tab = sum(int(OPT["gc"][2 * x + 1]) << (4 * x) for x in range(8))
        return ["s_lshl_b32 s%d, s2, 2" % s.t1,
                "s_lshr_b32 s%d, 0x%x, s%d" % (s.t1, tab, s.t1),
                "s_and_b32 s%d, s%d, 3" % (s.t1, s.t1),
                "s_bfe_u32 s%d, s2, 0x20003" % s.hoff,
                "s_lshl2_add_u32 s%d, s%d, s%d" % (s.t1, s.hoff, s.t1),
                "s_lshl_b32 s%d, s%d, 8" % (s.hoff, s.t1)]
    cm = OPT.get("cmap", "1302")
    if not cm:
        return ["s_and_b32 s%d, s2, 15" % s.t1, "s_lshl_b32 s%d, s%d, 8" % (s.hoff, s.t1)]
    tab = 0
    cls = [int(c) for c in cm]
    for i in range(16):
        x, hs = i & 7, i >> 3
        tab |= (cls[x >> 1] + 4 * (x & 1) + 8 * hs) << (4 * i)
    return ["s_lshl_b32 s%d, s2, 2" % s.t1,
            "s_lshr_b32 s%d, 0x%x, s%d" % (s.t1, tab & 0xffffffff, s.t1),
            "s_and_b32 s%d, s%d, 7" % (s.t1, s.t1),
            "s_and_b32 s%d, s2, 8" % s.hoff,
            "s_or_b32 s%d, s%d, s%d" % (s.t1, s.t1, s.hoff),
            "s_lshl_b32 s%d, s%d, 8" % (s.hoff, s.t1)]


def flag_init():
    return ["v_lshlrev_b32 v%d, 2, v0" % v.prga,
            "v_add_u32 v%d, %d, v%d" % (v.prga, PRGB - 4096, v.prga),
            "v_mov_b32 v%d, 0" % v.l,
            "ds_write_b32 v%d, v%d" % (v.prga, v.l),
            "ds_write_b32 v%d, v%d offset:4096" % (v.prga, v.l),
            "s_lshl_b32 s%d, s%d, 8" % (s.foff, s.foff),
            "s_lshr_b32 s%d, s%d, 1" % (s.t0, s.wave),
            "s_add_u32 s%d, s%d, s%d" % (s.foff, s.foff, s.t0)]


def far_load():
    r = []
    if STAMPS:
        r += ["v_mov_b32 v%d, 0" % v.st, "s_mov_b32 s%d, 8" % s.sti,
              "v_writelane_b32 v%d, s%d, 0" % (v.st, s.stp), "v_writelane_b32 v%d, s%d, 1" % (v.st, s.ws),
              "s_load_dwordx2 %s, s[0:1], 48" % sr(s.ws, 2)]
    return r + ["s_load_dwordx8 %s, %s, s%d offset:L_far-L_pc" % (sr(s.far, 8), sr(s.pc, 2), s.foff),
                "s_load_dwordx2 s[12:13], s[0:1], 32"]


def spin(n="1"):
    r = ["s_sleep %s" % n]
    if not OPT.get("nosafe"):
        r += ["s_sub_u32 s%d, s%d, 1" % (s.guard, s.guard), "s_cbranch_scc1 L_end"]
    return r


def sync_call(target=None):
    k = len(srets)
    srets.append(target or "L_sr%d" % k)
    return ["s_mov_b32 s%d, %d" % (s.sret, k), "s_branch L_sync"] + ([] if target else ["L_sr%d:" % k])


_pl = [0]


ool = []


def poll_rdy():
    _pl[0] += 1
    a, b = "L_pa%d" % _pl[0], "L_pb%d" % _pl[0]
    ool.append([a + ":"] + spin() + [RDYR, "s_waitcnt lgkmcnt(0)", "s_branch %s" % b])
    return ["s_min_u32 s%d, s%d, s%d" % (s.t2, s.need, s.mu), b + ":",
            "v_cmp_ge_u32 vcc, s%d, v%d" % (s.t2, v.rdy), "s_cbranch_vccnz %s" % a]


def body(kind):
    odd, hlp = kind != "even", kind == "hlp"
    st = 0 if odd else 1
    V = lambda i: vread(i, st, not hlp)
    K = lambda t: kread(t, v.KF, st)
    W = lambda n: "s_waitcnt lgkmcnt(%d)" % n
    k = newret()
    q = [
        [NEEDINC, V(0), V(1), ex(8), add(7), cvt(3)],
        ["s_mov_b32 s%d, %d" % (s.ret, k), V(2), V(3), ex(9), ex(10)],
        [W(4), V(4), V(5), ex(11), add(8), add(9)],
        ["s_sub_u32 s%d, s%d, 1" % (s.U, s.U), V(6), V(7), ex(12), ex(13)],
        [None, V(8), V(9), ex(14), add(10), add(11)],
        [None, V(10), V(11), ex(15), add(12), add(13)],
        [W(4), V(12), V(13), add(14), add(15), CMP, cvt(4)],
        ["s_cbranch_vccnz L_resc", "L_ret%d:" % k, V(14), V(15), LADD, cvt(5), cvt(6), cvt(7)],
    ]
    p = [
        ["s_nop 0", K(0), K(1), K(2), F(0), F(1), F(2)],
        [None, K(3), ex(0), F(3), F(4), F(5)],
        [None, K(4), ex(1), F(6), F(7), F(8)],
        [W(5), K(5), ex(2), add(1), F(9), F(10)],
        [None, K(6), ex(3), add(2), cvt(0), F(11)],
        [None, K(7), ex(4), add(3), cvt(1), F(12)],
        [W(4), ex(5), ex(6), add(4), F(13)],
        [None, ex(7), add(5), add(6), cvt(2), F(14), F(15)],
    ]
    if odd:
        q[4][0], q[5][0] = adv(s.voff)
        p[4][0], p[5][0] = adv(s.koff)
        va, ka = vaddr(), kaddr()
        p[1].append(va[0])
        if hlp:
            p[3].append(va[1])
            p[4].append(va[2])
            p[5].append(va[3])
        p[6].append(ka[0])
        p[7].append(ka[1])
    if not hlp:
        p[0][0] = "s_min_u32 s%d, s%d, s%d" % (s.chk, s.need, s.mu)
        p[1][0] = "s_bitcmp1_b32 s%d, s%d" % (s.far + 5, s.U)
        p[2][0] = "s_cselect_b32 s%d, -1, s%d" % (s.chk, s.chk)
        p[2][2:2] = [RDYR]
        p[6][0] = W(3)
        if odd and (not OPT.get("nodpub")):
            q[2].append("v_add_u32 v%d, 8, v%d" % (v.fo, v.fo))
            if OPT.get("pubq"):
                q[3][1:1] = ["global_load_lds_dword v%d, %s" % (v.fo, sr(s.pc, 2))]
            else:
                p[3][1:1] = ["global_load_lds_dword v%d, %s" % (v.fo, sr(s.pc, 2))]
        p[7][3:3] = ["v_cmp_ge_u32 vcc, s%d, v%d" % (s.chk, v.rdy)]
    else:
        q[1].append(PRGINC)
        q[7][4:4] = [PRGW]
        sc = sync_call()
        q[3][1:1] = [sc[0]]
        p[0][0:1] = stamp_l() + sc[1:] + stamp_l()
    lab("L_%s_m" % kind)
    e(QK0)
    lab("L_%s_a" % kind)
    emit(q[0])
    for t in range(1, 8):
        e(qk(t))
        emit(q[t])
    for i in range(8):
        e(pv(i))
        emit(p[i])
    if not hlp:
        stamp()


def gen():
    K = NAME + "_kernel"
    near, far, _ = build_tables()
    PACE = int(OPT.get("pace", "0"))
    out.append(HEADER + "; @launch grid=(256,1,1) block=(512,1,1) lds=%d" % LDS_TOTAL + "\n" + DOC.rstrip())
    out.append('.amdgcn_target "amdgcn-amd-amdhsa--gfx950"')
    out.append(".text")
    out.append(".globl " + K)
    out.append(".p2align 12")
    out.append(".p2align 8")
    out.append(".type %s,@function" % K)
    lab(K)
    L, N, Fa = v.lane, s.near, s.far
    if SPIN:
        e("s_memrealtime s[%d:%d]" % (s.ws, s.ws + 1))
        e("s_memrealtime s[%d:%d]" % (s.stp, s.stp + 1))
    if STAMPS:
        e("s_memrealtime s[%d:%d]" % (s.stp, s.stp + 1))
        e("s_memtime s[%d:%d]" % (s.ws, s.ws + 1))
    e("s_load_dwordx8 s[4:11], s[0:1], 0")
    e("s_getpc_b64 %s" % sr(s.pc, 2))
    lab("L_pc")
    if OPT.get("gc"):
        gm = sum((OPT["gc"][2 * x] == "L") << x for x in range(8)) * 0x01010101
        e("s_lshr_b32 s%d, s2, 5" % s.foff)
        e("s_bitcmp1_b32 0x%x, s2" % gm)
        e("s_cselect_b32 s%d, 8, 0" % s.t1)
        e("s_add_u32 s%d, s%d, s%d" % (s.foff, s.foff, s.t1))
    else:
        e("s_lshr_b32 s%d, s2, 4" % s.foff)
    e("s_lshl_b32 s%d, s%d, 5" % (s.t1, s.foff))
    e("s_load_dwordx8 %s, %s, s%d offset:L_near-L_pc" % (sr(s.near, 8), sr(s.pc, 2), s.t1))
    e("v_mul_u32_u24 v%d, PFSTRIDE, v0" % v.t0)
    e("v_readfirstlane_b32 s%d, v0" % s.wave)
    e("global_load_dword v%d, v%d, %s" % (v.pf, v.t0, sr(s.pc, 2)))
    e("s_cmp_ge_u32 s2, 256" if OPT.get("gc") else "s_cmp_ge_u32 s%d, 16" % s.foff)
    e("s_cbranch_scc1 L_end")
    e("s_bitcmp0_b32 s%d, 8" % s.wave)
    e("s_cbranch_scc1 L_mainpro")
    e("v_bfe_u32 v%d, v0, 5, 2" % v.t0)
    e("v_and_b32 v%d, 3, v0" % v.t1)
    e("v_xor_b32 v%d, v%d, v%d" % (v.t1, v.t1, v.t0))
    e("v_and_or_b32 v%d, v0, 12, v%d" % (v.t0, v.t0))
    e("v_lshlrev_b32 v%d, 12, v%d" % (v.t0, v.t0))
    e("v_lshl_add_u32 v%d, v%d, 4, v%d" % (v.t0, v.t1, v.t0))
    e("v_and_b32 v%d, 16, v0" % v.t1)
    e("v_lshl_add_u32 v%d, v%d, 2, v%d" % (v.t0, v.t1, v.t0))
    e("v_bfe_u32 v%d, v0, 7, 1" % v.t1)
    e("v_lshl_add_u32 v%d, v%d, 16, v%d" % (v.kd0, v.t1, v.t0))
    e("v_add_u32 v%d, 0x80, v%d" % (v.kd1, v.kd0))
    emit(headmap())
    e("s_lshl_b32 s%d, s%d, 6" % (s.dslot, s.wave))
    e("s_and_b32 s%d, s%d, 0x3000" % (s.dslot, s.dslot))
    e("s_mov_b32 s%d, 0x20000" % (s.sq + 3))
    e("s_mov_b32 s%d, s%d" % (s.kA + 3, s.sq + 3))
    e("s_mov_b32 s%d, 0" % s.soff)
    if OPT.get("thr", "0xf000") != "0":
        e("s_lshr_b32 vcc_lo, %s, s%d" % (OPT.get("thr", "0xf000"), s.foff))
        if OPT.get("thrr"):
            e("s_lshr_b32 s%d, %s, s%d" % (s.t0, OPT["thrr"], s.foff))
            e("s_and_b32 vcc_lo, vcc_lo, s%d" % s.t0)
        if OPT.get("thro"):
            e("s_lshr_b32 s%d, %s, s%d" % (s.t0, OPT["thro"], s.foff))
            e("s_or_b32 vcc_lo, vcc_lo, s%d" % s.t0)
        e("s_and_b32 vcc_lo, vcc_lo, 1")
        if OPT.get("c1t"):
            e("s_and_b32 s%d, s2, 6" % s.t0)
            e("s_cselect_b32 vcc_lo, vcc_lo, 0")
        e("s_mov_b32 vcc_hi, 0")
    e("s_add_u32 s%d, s%d, %d" % (s.d0, s.dslot, QBASE))
    emit(flag_init())
    e("s_waitcnt lgkmcnt(0)")
    emit(far_load())
    mark("karg")
    THR = OPT.get("thr", "0xf000")
    _th = [0]

    def throttle():
        if THR == "0":
            return []
        _th[0] += 1
        return ["s_cbranch_vccz L_th%d" % _th[0], "s_waitcnt vmcnt(%s)" % OPT.get("thn", "4"), "L_th%d:" % _th[0]]

    def qtile(i):
        w = N + 5 + i // 2
        r = ["s_bitcmp1_b32 s%d, %d" % (w, 12 + 16 * (i % 2)),
             "s_cselect_b32 s%d, s%d, s%d" % (s.sq + 2, s.qeb, s.qea),
             "s_bfe_u32 s%d, s%d, 0x%x" % (s.t0, w, 0xc0000 + 16 * (i % 2)),
             "s_add_u32 m0, s%d, %d" % (s.d0, (i // 4) * 32768 + (i % 4) * 1024),
             "s_lshl_b32 s%d, s%d, 12" % (s.t0, s.t0),
             "buffer_load_dwordx4 v%d, %s, s%d offen %s lds" % (v.kd0, sr(s.sq, 4), s.t0, LDF_Q),
             "s_add_u32 m0, m0, 0x4000", "s_nop 0",
             "buffer_load_dwordx4 v%d, %s, s%d offen %s lds" % (v.kd1, sr(s.sq, 4), s.t0, LDF_Q)]
        return r
    e("s_add_u32 s%d, s%d, s%d" % (s.qea, N + 0, N + 1))
    e("s_add_u32 s%d, s%d, s%d" % (s.qeb, N + 2, N + 3))
    e("s_add_u32 s%d, s%d, s%d" % (s.sq, s.q, s.hoff))
    e("s_addc_u32 s%d, s%d, 0" % (s.sq + 1, s.q + 1))
    emit(qtile(0))
    e("s_add_u32 s%d, s%d, s%d" % (N + 0, N + 0, s.hoff))
    e("s_add_u32 s%d, s%d, s%d" % (s.kA, s.k, N + 0))
    e("s_addc_u32 s%d, s%d, 0" % (s.kA + 1, s.k + 1))
    e("s_sub_u32 s%d, s%d, 1024" % (s.kA, s.kA))
    e("s_subb_u32 s%d, s%d, 0" % (s.kA + 1, s.kA + 1))
    e("s_add_u32 s%d, s%d, 1024" % (s.kA + 2, N + 1))
    emit(chunk(0, True, flag=False))
    for i in range(1, QL):
        emit((throttle() if i > 1 else []) + qtile(i))
    QLATE = sum((qtile(i) for i in range(QL, 4)), [])
    mark("iss")
    for b in (s.kB, s.vA, s.vB):
        e("s_mov_b32 s%d, s%d" % (b + 3, s.sq + 3))
    e("s_add_u32 s%d, s%d, s%d" % (N + 2, N + 2, s.hoff))
    e("s_add_u32 s%d, s%d, s%d" % (s.kB, s.k, N + 2))
    e("s_addc_u32 s%d, s%d, 0" % (s.kB + 1, s.k + 1))
    e("s_mov_b32 s%d, s%d" % (s.kB + 2, N + 3))
    e("s_and_b32 s%d, s%d, 0xfffff000" % (s.stepb, N + 4))
    e("s_lshr_b32 s%d, s%d, 4" % (s.rdw, s.dslot))
    e("s_add_u32 s%d, s%d, %d" % (s.rdw, s.rdw, RDYB))
    e("v_mov_b32 v%d, L_cnt-L_pc" % v.fo)
    for (srd, off, nr, d) in ((s.vA, N + 0, N + 1, 3072), (s.vB, N + 2, N + 3, 2048)):
        e("s_add_u32 s%d, s%d, %d" % (s.t0, s.stepb, d))
        e("s_add_u32 s%d, s%d, s%d" % (srd, s.vv, off))
        e("s_addc_u32 s%d, s%d, 0" % (srd + 1, s.vv + 1))
        e("s_sub_u32 s%d, s%d, s%d" % (srd, srd, s.t0))
        e("s_subb_u32 s%d, s%d, 0" % (srd + 1, srd + 1))
        e("s_add_u32 s%d, s%d, s%d" % (srd + 2, nr, s.t0))
    e("v_bfe_u32 v%d, v0, 2, 2" % v.t0)
    e("v_lshlrev_b32 v%d, 12, v%d" % (v.t0, v.t0))
    e("v_and_b32 v%d, 3, v0" % v.t1)
    e("v_lshl_add_u32 v%d, v%d, 4, v%d" % (v.t0, v.t1, v.t0))
    e("v_and_b32 v%d, 48, v0" % v.t1)
    e("v_lshl_add_u32 v%d, v%d, 2, v%d" % (v.t0, v.t1, v.t0))
    e("v_bfe_u32 v%d, v0, 6, 2" % v.t1)
    e("v_lshl_add_u32 v%d, v%d, 14, v%d" % (v.vd0, v.t1, v.t0))
    e("v_add_u32 v%d, 0x10000, v%d" % (v.vd1, v.vd0))
    e("s_setprio %s" % OPT.get("hprio", "3"))
    e("s_branch L_common")
    lab("L_mainpro")
    for b in (s.sq, s.kA, s.kB, s.vA, s.vB):
        e("s_mov_b64 %s, s[0:1]" % sr(b, 2))
        e("s_mov_b32 s%d, 0" % (b + 2))
        e("s_mov_b32 s%d, 0x20000" % (b + 3))
    for r in (v.kd0, v.kd1, v.vd0, v.vd1, v.fo):
        e("v_mov_b32 v%d, 0" % r)
    emit(headmap())
    emit(flag_init())
    e("s_waitcnt lgkmcnt(0)")
    emit(far_load())
    lab("L_common")
    e("s_lshr_b32 s%d, s%d, 6" % (s.wave, s.wave))
    e("v_and_b32 v%d, 63, v0" % L)
    e("v_and_b32 v%d, 7, v0" % v.t0)
    e("v_mul_u32_u24 v%d, 0x104, v%d" % (v.t0, v.t0))
    e("v_add_u32 v%d, %d, v%d" % (v.pra, PRGB, v.t0))
    e("v_add_u32 v%d, 0x1000, v%d" % (v.prga, v.prga))
    mark("prebar")
    e("s_barrier")
    if SPIN == "postbar":
        e("s_memrealtime s[%d:%d]" % (s.stp, s.stp + 1))
    e("s_cmp_lt_u32 s%d, 4" % s.wave)
    e("s_cbranch_scc1 L_common2")
    QH = qtile(4) + qtile(5)
    C2 = (QLATE if QLC == 2 else []) + (QH if QE == 2 else []) + chunk(0) + (QLATE if QLC == 3 else [])
    emit(FLAG + throttle() + (QH if QE == 1 else []) + chunk(1, True) + STEP_ADV + (C2 if OPT.get("c2early") else []))
    lab("L_common2")
    mark("bar")
    e("v_bfe_u32 v%d, v%d, 4, 1" % (v.t0, L))
    e("v_lshlrev_b32 v%d, 13, v%d" % (v.t0, v.t0))
    e("v_bfe_u32 v%d, v%d, 1, 1" % (v.t1, L))
    e("v_lshl_add_u32 v%d, v%d, 12, v%d" % (v.t0, v.t1, v.t0))
    e("v_and_b32 v%d, 1, v%d" % (v.t1, L))
    e("v_lshl_add_u32 v%d, v%d, 9, v%d" % (v.t0, v.t1, v.t0))
    e("v_bfe_u32 v%d, v%d, 2, 2" % (v.t1, L))
    e("v_lshl_add_u32 v%d, v%d, 6, v%d" % (v.t0, v.t1, v.t0))
    e("v_lshrrev_b32 v%d, 5, v%d" % (v.t1, L))
    e("v_and_b32 v%d, 3, v%d" % (v.t2, L))
    e("v_xor_b32 v%d, v%d, v%d" % (v.t1, v.t1, v.t2))
    e("v_lshl_add_u32 v%d, v%d, 4, v%d" % (v.ka0r, v.t1, v.t0))
    e("v_xor_b32 v%d, 32, v%d" % (v.ka1r, v.ka0r))
    e("v_lshrrev_b32 v%d, 5, v%d" % (v.t0, L))
    e("v_lshlrev_b32 v%d, 12, v%d" % (v.t0, v.t0))
    e("v_bfe_u32 v%d, v%d, 2, 2" % (v.t1, L))
    e("v_lshl_add_u32 v%d, v%d, 6, v%d" % (v.t0, v.t1, v.t0))
    e("v_bfe_u32 v%d, v%d, 4, 1" % (v.t1, L))
    e("v_lshl_add_u32 v%d, v%d, 5, v%d" % (v.t0, v.t1, v.t0))
    e("v_lshl_add_u32 v%d, v%d, 3, v%d" % (v.t0, v.t2, v.t0))
    e("v_add_u32 v%d, 0x800, v%d" % (v.var, v.t0))
    e("s_mov_b32 s%d, 0x%x" % (s.thr, f2u(THRESH)))
    e("v_mul_u32_u24 v%d, 0x104, v%d" % (v.t1, v.t2))
    e("v_add_u32 v%d, %d, v%d" % (v.rdya, RDYB, v.t1))
    e("s_mov_b32 s%d, 0x8000" % s.guard)
    e("v_mov_b32 v%d, 0" % v.rdy)
    e("s_waitcnt lgkmcnt(0)")
    e("s_and_b32 s%d, s%d, 0xff" % (s.mu, Fa + 0))
    e("s_sub_u32 s%d, s%d, s%d" % (s.t0, Fa + 0, s.mu))
    e("s_add_u32 s%d, s%d, s%d" % (s.t0, s.t0, s.hoff))
    e("s_add_u32 s%d, s%d, s%d" % (s.so, s.out, s.t0))
    e("s_addc_u32 s%d, s%d, 0" % (s.so + 1, s.out + 1))
    e("s_mov_b32 s%d, s%d" % (s.so + 2, Fa + 1))
    e("s_mov_b32 s%d, 0x20000" % (s.so + 3))
    e("s_and_b32 s%d, s%d, 0xff" % (s.n, N + 4))
    e("s_bfe_u32 s%d, s%d, 0x40008" % (s.t3, Fa + 2))
    e("s_cbranch_scc1 L_work")
    e("v_mov_b32 v%d, %d" % (v.prg, BIG))
    e(PRGW)
    e("s_cmp_lt_u32 s%d, 4" % s.wave)
    e("s_cbranch_scc1 %s" % ("L_probe" if OPT.get("probe") else "L_fin"))
    e("s_branch L_presig")
    if OPT.get("probe"):
        lab("L_probe")
        for kk in range(8, 60, 2):
            e("s_sleep 12")
            e("s_memrealtime s[%d:%d]" % (s.stp, s.stp + 1))
            e("s_memtime s[%d:%d]" % (s.t0, s.t0 + 1))
            e("s_waitcnt lgkmcnt(0)")
            e("v_writelane_b32 v%d, s%d, %d" % (v.st, s.stp, kk))
            e("v_writelane_b32 v%d, s%d, %d" % (v.st, s.t0, kk + 1))
        e("s_branch L_fin")
    lab("L_work")
    mark("work")
    for r in range(0, 64, 2):
        e("v_pk_mov_b32 %s, 0, 0" % vr(v.O + r, 2))
    e("s_and_b32 s%d, s%d, 0xff" % (s.U, Fa + 2))
    e("s_bfe_u32 s%d, s%d, 0x4000c" % (s.inc, Fa + 2))
    e("s_and_b32 s%d, s%d, 0xfffff" % (s.reg, Fa + 4))
    e("s_bfe_u32 s%d, s%d, 0x80010" % (s.t0, Fa + 2))
    e("s_sub_u32 s%d, s%d, 1" % (s.t0, s.t0))
    e("v_lshrrev_b32 v%d, 5, v%d" % (v.t0, L))
    e("v_lshlrev_b32 v%d, 2, v%d" % (v.t0, v.t0))
    e("v_sub_u32 v%d, s%d, v%d" % (v.t0, s.t0, v.t0))
    e("v_mov_b32 v%d, 0xff800000" % v.t1)
    for r in range(16):
        cst = 8 * (r // 4) + r % 4
        e("v_subrev_u32 v%d, %d, v%d" % (v.B + r, cst, v.t0))
        e("v_ashrrev_i32 v%d, 31, v%d" % (v.B + r, v.B + r))
        e("v_and_b32 v%d, v%d, v%d" % (v.B + r, v.t1, v.B + r))
    e("s_bfe_u32 s%d, s%d, 0x20014" % (s.t0, Fa + 4))
    e("s_lshl_b32 s%d, s%d, 10" % (s.t0, s.t0))
    e("s_bfe_u32 s%d, s%d, 0x10016" % (s.t1, Fa + 4))
    e("s_lshl_b32 s%d, s%d, 15" % (s.t1, s.t1))
    e("s_add_u32 s%d, s%d, s%d" % (s.t0, s.t0, s.t1))
    e("s_add_u32 s%d, s%d, %d" % (s.koff, s.t0, QBASE))
    e("v_add_u32 v%d, s%d, v%d" % (v.t2, s.koff, v.ka0r))
    e("v_add_u32 v%d, s%d, v%d" % (v.t3, s.koff, v.ka1r))
    e("s_cmp_lg_u32 s%d, 1" % s.t3)
    e("s_cselect_b32 s%d, 1, 0" % s.m1)
    e("s_bfe_u32 s%d, s%d, 0x2001a" % (s.t0, Fa + 4))
    e("s_lshl_b32 s%d, s%d, 15" % (s.astep, s.t0))
    e("s_bfe_u32 s%d, s%d, 0x10019" % (s.t2, Fa + 4))
    e("s_bfe_u32 s%d, s%d, 0x10018" % (s.t0, Fa + 4))
    e("s_lshl_b32 s%d, s%d, 10" % (s.t0, s.t0))
    e("s_mul_i32 s%d, s%d, s%d" % (s.t1, s.t0, s.m1))
    e("s_sub_u32 s%d, s%d, s%d" % (s.t0, s.t0, s.t1))
    e("s_lshl_b32 s%d, s%d, 15" % (s.voff, s.t2))
    e("s_add_u32 s%d, s%d, s%d" % (s.koff, s.voff, s.t0))
    e("s_add_u32 s%d, s%d, 0x8000" % (s.voff, s.voff))
    e("v_add_u32 v%d, s%d, v%d" % (v.ka0r, s.t1, v.ka0r))
    e("v_add_u32 v%d, s%d, v%d" % (v.ka1r, s.t1, v.ka1r))
    e("s_bfe_u32 s%d, s%d, 0x2001c" % (s.t0, Fa + 2))
    for j in (3, 2, 1, 0):
        e("s_add_u32 s%d, s%d, %d" % (s.col, s.t0, j))
        e("s_and_b32 s%d, s%d, 3" % (s.col, s.col))
        e("s_lshl_b32 s%d, s%d, 8" % (s.col, s.col))
        e("s_add_u32 s%d, s%d, s%d" % (s.col, s.col, s.t1))
        e("v_add_u32 v%d, s%d, v%d" % (v.var + j, s.col, v.var))
    emit(vaddr() + kaddr())
    e("s_and_b32 s%d, s%d, 0xff" % (s.t0, Fa + 3))
    e("v_mov_b32 v%d, s%d" % (v.prg, s.t0))
    e("s_bfe_u32 s%d, s%d, 0x80010" % (s.need, Fa + 3))
    e("s_cmp_lt_u32 s%d, 4" % s.wave)
    e("s_cbranch_scc1 L_sig0")
    e(PRGW)
    lab("L_presig")
    mark("presig")
    emit(([] if OPT.get("c2early") else C2) + (QH if QE == 0 else []) + chunk(1) + STEP_ADV)
    e("s_mov_b32 s%d, 4" % s.iss)
    mark("c3")
    stamp()
    e("s_cmp_eq_u32 s%d, 0" % s.t3)
    e("s_cbranch_scc1 L_hdone")
    emit(sync_call("L_head"))
    lab("L_sig0")
    mark("msetup")
    e("s_bfe_u32 s%d, s%d, 0x80008" % (s.t0, Fa + 3))
    e("s_%s_u32 s%d, s%d, s%d" % ("sub" if OPT.get("pubq") else "add", s.t0, s.t0, s.m1))
    e("s_lshl_b32 s%d, s%d, 2" % (s.t0, s.t0))
    e("s_add_u32 s%d, s%d, L_cnt-L_pc-4" % (s.t0, s.t0))
    e("v_mov_b32 v%d, s%d" % (v.fo, s.t0))
    e("s_lshl_b32 s%d, s%d, 8" % (s.t0, s.wave))
    e("s_add_u32 m0, s%d, %d" % (s.t0, PRGB))
    stamp()
    emit(poll_rdy())
    mark("sig0")
    stamp()
    lab("L_head")
    qr = [kread(t, v.Q).replace("v%d " % v.ka0, "v%d " % v.t2).replace("v%d " % v.ka1, "v%d " % v.t3) for t in range(8)]
    kr = [kread(t, v.KF) for t in range(8)]
    for t in range(7):
        emit([qr[t], kr[t]])
    e("s_add_u32 s%d, s%d, s%d" % (s.t0, s.koff, s.astep))
    e("s_mul_i32 s%d, s%d, s%d" % (s.koff, s.t0, s.m1))
    e("s_waitcnt lgkmcnt(12)")
    e(QK0)
    emit([qr[7], kr[7]])
    for t in range(1, 8):
        e("s_waitcnt lgkmcnt(%d)" % (14 - 2 * t + (1 if t >= 2 else 0)))
        e(qk(t))
        if t == 1:
            e(RDYR)
            emit(kaddr())
            emit(adv(s.koff))
        if t == 2:
            e("v_and_b32 v%d, 31, v%d" % (v.t2, L))
            e("v_lshlrev_b32 v%d, 12, v%d" % (v.t2, v.t2))
            e("v_sub_u32 v%d, s%d, v%d" % (v.t2, Fa + 1, v.t2))
            e("v_ashrrev_i32 v%d, 31, v%d" % (v.t2, v.t2))
            e("v_and_b32 v%d, 0xff800000, v%d" % (v.t2, v.t2))
        if t == 3:
            e("v_mov_b32 v%d, L_cnt-L_pc+8" % v.t3)
            e("s_bfe_u32 s%d, s%d, 0x80008" % (s.t0, Fa + 3))
            e("v_mov_b32 v%d, s%d" % (v.prg, s.t0))
            e("s_mov_b32 s%d, s%d" % (s.need, Fa + 6))
    e("s_cmp_lt_u32 s%d, 4" % s.wave)
    e("s_waitcnt lgkmcnt(0)")
    e("s_cbranch_scc0 L_head2")
    e("global_load_lds_dword v%d, %s" % (v.t3, sr(s.pc, 2)))
    emit(poll_rdy())
    emit(kr)
    emit(kaddr())
    lab("L_head2")
    if OPT.get("lowh"):
        e("s_setprio 0")
    e("s_lshr_b32 s%d, s%d, 24" % (s.need, Fa + 3))
    e("s_nop 7")
    e("v_max3_f32 v%d, v%d, v%d, v%d" % (v.t0, v.S, v.S + 1, v.S + 2))
    e("v_max3_f32 v%d, v%d, v%d, v%d" % (v.t1, v.S + 3, v.S + 4, v.S + 5))
    for r in range(6, 14, 4):
        e("v_max3_f32 v%d, v%d, v%d, v%d" % (v.t0, v.t0, v.S + r, v.S + r + 1))
        e("v_max3_f32 v%d, v%d, v%d, v%d" % (v.t1, v.t1, v.S + r + 2, v.S + r + 3))
    e("v_max3_f32 v%d, v%d, v%d, v%d" % (v.t0, v.t0, v.S + 14, v.S + 15))
    e("v_max_f32 v%d, v%d, v%d" % (v.t0, v.t0, v.t1))
    e("v_mov_b32 v%d, v%d" % (v.t1, v.t0))
    e(RDYR)
    e("s_nop 0")
    e("v_permlane32_swap_b32 v%d, v%d" % (v.t0, v.t1))
    e("s_nop 1")
    e("v_max_f32 v%d, v%d, v%d" % (v.t0, v.t0, v.t1))
    e("v_fmamk_f32 v%d, v%d, 0x%x, v%d" % (v.nmc, v.t0, f2u(-C_SCALE), v.t2))
    for r in range(16):
        e(F(r))
    emit([ex(i) for i in range(8)] + [add(i) for i in range(1, 7)] + [cvt(0), cvt(1), cvt(2)])
    e("s_cmp_lt_u32 s%d, 4" % s.wave)
    e("s_waitcnt lgkmcnt(0)")
    e("s_cbranch_scc0 L_hlp_in")
    stamp()
    emit(poll_rdy())
    mark("loop")
    stamp()
    e("s_cmp_eq_u32 s%d, 1" % s.m1)
    e("s_cbranch_scc1 L_odd_m")
    out.append(".p2align %s" % OPT.get("al", "4"))
    for _ in range(int(OPT.get("sh", "0"))):
        e("s_nop 0")
    body("even")
    e("s_cbranch_vccnz L_hnd_even")
    body("odd")
    e("s_cbranch_vccz L_even_m")
    emit(poll_rdy())
    e("s_cmp_le_u32 s%d, 1" % s.U)
    e("s_cbranch_scc1 L_ho1")
    e("s_cmp_eq_u32 s%d, 0" % s.m1)
    e("s_cbranch_scc0 L_odd_m")
    e("s_branch L_even_m")
    lab("L_ho1")
    e("s_cmp_eq_u32 s%d, 0" % s.m1)
    e("s_cbranch_scc0 L_ho2")
    e("v_mov_b32 v%d, v%d" % (v.va + 1, v.va))
    e("v_add_u32 v%d, 0x400, v%d" % (v.va, v.va))
    e("s_branch L_last")
    lab("L_hnd_even")
    emit(poll_rdy())
    e("s_cmp_gt_u32 s%d, 1" % s.U)
    e("s_cbranch_scc1 L_odd_m")
    e("v_add_u32 v%d, 0x400, v%d" % (v.var, v.var))
    lab("L_ho2")
    emit(adv(s.voff))
    e("v_add_u32 v%d, s%d, v%d" % (v.va + 1, s.voff, v.var))
    e("s_branch L_last")
    lab("L_hlp_in")
    mark("hlpin")
    e(PRGW)
    stamp()
    emit(sync_call())
    stamp()
    for t in range(8):
        e(kread(t, v.KF))
    emit(kaddr())
    e("s_waitcnt lgkmcnt(4)")
    e("s_branch L_hnd_hlp")
    if OPT.get("alh"):
        out.append(".p2align %s" % OPT["alh"])
    for _ in range(int(OPT.get("shh", "0"))):
        e("s_nop 0")
    body("hlp")
    lab("L_hnd_hlp")
    e("s_cmp_gt_u32 s%d, 1" % s.U)
    e("s_cbranch_scc1 L_hlp_m")
    e("s_cmp_eq_u32 s%d, 0" % s.U)
    e("s_cbranch_scc1 L_tail")
    e(QK0M)
    e("s_branch L_hlp_a")
    tw, tr0, oo, rl, WA, CD = v.ka1, v.va + 2, v.ka1r, v.B + 8, v.B, v.VF

    def lsum():
        return ["v_mov_b32 v%d, v%d" % (v.t0, v.l), "s_nop 1",
                "v_permlane32_swap_b32 v%d, v%d" % (v.l, v.t0), "s_nop 1",
                "v_add_f32 v%d, v%d, v%d" % (v.l, v.l, v.t0)]

    def st_addr():
        a, b, c, d = v.t0, v.t1, v.t2, v.t3
        r = ["v_and_b32 v%d, 31, v%d" % (a, L),
             "v_lshrrev_b32 v%d, 2, v%d" % (b, L),
             "v_and_b32 v%d, 7, v%d" % (c, L),
             "v_lshrrev_b32 v%d, 3, v%d" % (d, L),
             "v_lshlrev_b32 v%d, 7, v%d" % (a, a),
             "v_xor_b32 v%d, v%d, v%d" % (b, b, L),
             "v_xor_b32 v%d, v%d, v%d" % (tr0, c, d),
             "v_and_b32 v%d, 8, v%d" % (b, b),
             "v_lshlrev_b32 v%d, 4, v%d" % (c, c),
             "v_add3_u32 v%d, v%d, v%d, s%d" % (a, a, b, s.reg),
             "v_lshlrev_b32 v%d, 4, v%d" % (tr0, tr0),
             "v_lshlrev_b32 v%d, 7, v%d" % (b, d),
             "v_add_u32 v%d, v%d, v%d" % (WA, a, c),
             "v_lshl_add_u32 v%d, v%d, 12, v%d" % (oo, d, c),
             "v_add3_u32 v%d, v%d, v%d, s%d" % (tr0, tr0, b, s.reg)]
        r += ["v_xor_b32 v%d, %d, v%d" % (WA + k, k * 16, WA) for k in range(1, 8)]
        r += ["v_add_u32 v%d, 0x800, v%d" % (tw, tr0)]
        return r

    def q_mul(bb, pk=True):
        o = v.O + 16 * bb
        if pk:
            return ["v_pk_mul_f32 %s, %s, %s op_sel_hi:[1,0]" % (vr(o + i, 2), vr(o + i, 2), vr(rl, 2)) for i in range(0, 16, 2)]
        return ["v_mul_f32 v%d, v%d, v%d" % (o + i, o + i, rl) for i in range(16)]

    def q_cvt(bb):
        return ["v_cvt_pk_bf16_f32 v%d, v%d, v%d" % (CD + 8 * bb + i, v.O + 16 * bb + 2 * i, v.O + 16 * bb + 2 * i + 1) for i in range(8)]

    def q_wr(bb):
        return ["ds_write_b64 v%d, %s" % (WA + (4 * bb + g) % 8, vr(CD + 8 * bb + 2 * g, 2)) for g in range(4)]

    def mix(valu, other):
        r, n, m = [], len(valu), len(other)
        k = 0
        for i, x in enumerate(valu):
            while k < m and k * n <= i * m:
                r.append(other[k]); k += 1
            r.append(x)
        return r + other[k:]

    def pack_q(bb, norm=True):
        return (q_mul(bb) if norm else []) + q_cvt(bb) + q_wr(bb)

    def rd_half(hh):
        return [("ds_read2_b64 %s, v%d offset0:129 offset1:128" if k % 2 else "ds_read_b128 %s, v%d")
                % (vr(v.KF + 16 * hh + 4 * k, 4), tw if k >= 2 else tr0) for k in range(4)]

    def st_one(hh, k):
        return ["buffer_store_dwordx4 %s, v%d, %s, s%d offen offset:%d %s" % (
                    vr(v.KF + 16 * hh + 4 * k, 4), oo, sr(s.so, 4), s.col + k if k < 3 else s.t1, 128 * hh,
                    STF if hh == 0 else OPT.get("st2", OPT.get("st", "sc1")).replace("+", " ").replace("none", ""))]

    sa = st_addr()
    cols = ["s_mov_b32 s%d, 0" % s.col, "s_mov_b32 s%d, 0x8000" % (s.col + 1),
            "s_mov_b32 s%d, 0x10000" % (s.col + 2), "s_mov_b32 s%d, 0x18000" % s.t1]
    RCP = "v_rcp_f32 v%d, v%d" % (rl, v.l)
    GL = "global_load_lds_dword v%d, %s" % (v.fo, sr(s.pc, 2))
    FO31 = "v_mov_b32 v%d, L_cnt-L_pc+124" % v.fo
    lab("L_tail")
    mark("tail")
    if not OPT.get("nolowt"):
        e("s_setprio 0")
    k = newret()
    for i in range(12):
        e(vread(i))
    emit([ex(8), add(7), cvt(3)] + [ex(i) for i in range(9, 16)])
    e("v_mov_b32 v%d, %d" % (v.prg, BIG))
    for i in range(12, 16):
        e(vread(i))
    e(PRGW)
    emit([add(i) for i in range(8, 16)] + [CMP, cvt(4), "s_mov_b32 s%d, %d" % (s.ret, k), "s_cbranch_vccnz L_resc",
                                           "L_ret%d:" % k, cvt(5), cvt(6), cvt(7), LADD])
    e("s_waitcnt lgkmcnt(0)")
    for i in range(8):
        e(pv(i))
    e("s_branch L_hdone")
    lab("L_solo")
    emit(lsum() + [RCP] + sa + cols + q_mul(0) + q_cvt(0) + ["s_branch L_tail3"])
    V = lambda i: vread(i, 0, True)
    W = lambda n: "s_waitcnt lgkmcnt(%d)" % n

    def V2(i):
        t, bb, ss = i // 8, (i // 2) % 4, i % 2
        return "ds_read_b64_tr_b16 %s, v%d offset:%d" % (vr(v.KF + (t * 4 + bb) * 4 + ss * 2, 2), v.va + 1,
                                                         (4 * t + 2 * ss) * 4096 + bb * 256)

    def pv2(i):
        return pv(i).replace(vr(v.VF + 4 * i, 4), vr(v.KF + 4 * i, 4))
    k = newret()
    q = [
        [NEEDINC, "s_lshl2_add_u32 s%d, s%d, L_cnt-L_pc" % (s.t0, s.mu), V(0), V(1), ex(8), add(7), cvt(3)],
        ["s_mov_b32 s%d, %d" % (s.ret, k), V(2), V(3), ex(9), ex(10), "v_mov_b32 v%d, s%d" % (v.fo, s.t0)],
        [W(4), GL, V(4), V(5), ex(11), add(8), add(9)],
        [cols[0], V(6), V(7), RDYR, ex(12), ex(13)],
        [cols[1], V(8), V(9), ex(14), add(10), add(11)],
        [cols[2], V(10), V(11), ex(15), add(12), add(13)],
        [W(4), V(12), V(13), add(14), add(15), CMP, cvt(4)],
        ["s_cbranch_vccnz L_resc", "L_ret%d:" % k, V(14), V(15), LADD, cvt(5), cvt(6), cvt(7)],
    ]
    lab("L_last")
    mark("tail")
    for t in range(8):
        e(QK0M if t == 0 else qk(t))
        emit(q[t])
    e(pv(0))
    emit(poll_rdy())
    e("s_bitcmp1_b32 s%d, 31" % (Fa + 4))
    e("s_cbranch_scc1 L_lasts")
    k = newret()
    vo = [0, 1, 8, 9, 2, 3, 10, 11, 4, 5, 12, 13, 6, 7, 14, 15]
    v2 = [V2(i) for i in vo]
    p = [
        v2[0:3] + [F(0), F(1), F(2), F(3)],
        [cols[3]] + v2[3:5] + [ex(0), ex(1), F(4), F(5), F(6), F(7)],
        ["s_mov_b32 s%d, %d" % (s.ret, k)] + v2[5:7] + [ex(2), ex(3), add(1), F(8), F(9), F(10)],
        [W(7)] + v2[7:10] + [ex(4), ex(5), add(2), add(3), F(11), F(12)],
        [None] + v2[10:12] + [ex(6), ex(7), cvt(0), cvt(1), add(4), add(5), F(13)],
        [None] + v2[12:14] + [ex(8), ex(9), cvt(2), add(6), add(7), cvt(3), F(14), F(15)],
        [None] + v2[14:16] + [ex(10), ex(11), ex(12), add(8), add(9), FO31],
        [None, ex(13), ex(14), ex(15), add(10), add(11), add(12), add(13), add(14), add(15), CMP, cvt(4), cvt(5), cvt(6), cvt(7),
         "s_cbranch_vccnz L_resc", "L_ret%d:" % k, LADD, W(0)],
    ]
    emit(p[0])
    for i in range(1, 8):
        e(pv(i))
        emit(p[i])
    m0_, m1_, c0_ = q_mul(0, False), q_mul(1, False), q_cvt(0)
    emit([pv2(0), GL] + lsum() + [RCP])
    emit([pv2(4)] + sa[0:8])
    emit([pv2(1)] + sa[8:16])
    emit([pv2(5)] + sa[16:])
    emit([pv2(2)] + m0_[0:6])
    emit([pv2(6)] + m0_[6:12])
    emit([pv2(3)] + m0_[12:] + c0_[:2])
    emit([pv2(7)] + c0_[2:])
    lab("L_tail3")
    stamp(5)
    emit(mix(q_mul(1) + q_cvt(1), q_wr(0)))
    emit(mix(q_mul(2) + q_cvt(2), q_wr(1) + rd_half(0)))
    emit(mix(q_mul(3) + q_cvt(3), q_wr(2) + ["s_waitcnt lgkmcnt(4)"] + st_one(0, 0) + st_one(0, 1)))
    emit(q_wr(3) + rd_half(1) + st_one(0, 2) + st_one(0, 3))
    stamp(4)
    for k in range(4):
        emit(["s_waitcnt lgkmcnt(%d)" % (3 - k)] + st_one(1, k))
    k = newret()
    v2 = [V2(i) for i in range(8)]
    ps_ = [
        v2[0:3] + [F(0), F(1), F(2), F(3)],
        [cols[3]] + v2[3:5] + [ex(0), F(4), F(5), F(6), F(7)],
        ["s_mov_b32 s%d, %d" % (s.ret, k)] + v2[5:7] + [ex(1), ex(2), FO31],
        [W(7)] + v2[7:8] + [ex(3), ex(4), add(1), add(2)],
        [None, ex(5), ex(6), cvt(0), add(3), cvt(1)],
        [None, ex(7), add(4), add(5), cvt(2), add(6)],
        [None, add(7), cvt(3), CMP] + sa[0:4],
        [W(0), GL] + sa[4:10] + ["s_cbranch_vccnz L_resc8", "L_ret%d:" % k, LADD],
    ]
    blk = ["L_lasts:"] + ps_[0]
    for i in range(1, 8):
        blk += [pv(i)] + ps_[i]
    ls_ = [x.replace("v%d" % v.t0, "v%d" % v.ps) for x in lsum()]
    blk += [pv2(0)] + ls_ + [RCP] + [pv2(1)] + sa[10:17] + [pv2(2)] + sa[17:] + [pv2(3)] + q_mul(0, False) + q_cvt(0) + ["s_branch L_tail3"]
    ool.append(blk)
    ool.append(["L_resc8:"] + [F(r) for r in range(8, 16)] + ["s_branch L_resc"])
    lab("L_fin")
    if SPIN:
        mark("st")
        e("s_waitcnt vmcnt(0)")
        mark("end")
        if SPIN == "glob":
            e("s_load_dwordx2 s[98:99], s[0:1], 40")
            e("s_not_b32 s%d, s%d" % (s.t0, s.ws))
            e("v_mov_b32 v%d, s%d" % (v.t1, s.t0))
            e("v_mov_b32 v%d, 0" % v.t0)
            e("s_waitcnt lgkmcnt(0)")
            e("s_cmp_lg_u32 s%d, 0" % s.wave)
            e("s_cbranch_scc1 L_g1")
            e("s_mov_b64 exec, 1")
            e("global_atomic_umax v%d, v%d, s[98:99]" % (v.t0, v.t1))
            e("s_mov_b64 exec, -1")
            lab("L_g1")
        e("s_sub_u32 s%d, s%d, s%d" % (s.t0, s.stp, s.ws))
        e("s_mul_i32 s%d, s%d, %s" % (s.t0, s.t0, OPT.get("amp", "2")))
        if OPT.get("wsel"):
            e("s_lshr_b32 s%d, %s, s%d" % (s.t1, OPT["wsel"], s.wave))
            e("s_and_b32 s%d, s%d, 1" % (s.t1, s.t1))
            e("s_mul_i32 s%d, s%d, s%d" % (s.t0, s.t0, s.t1))
        if OPT.get("rmask"):
            e("s_and_b32 s%d, s2, 15" % s.t1 if OPT.get("hsel") else "s_lshr_b32 s%d, s2, 4" % s.t1)
            e("s_lshr_b32 s%d, %s, s%d" % (s.t1, OPT["rmask"], s.t1))
            e("s_and_b32 s%d, s%d, 1" % (s.t1, s.t1))
            e("s_mul_i32 s%d, s%d, s%d" % (s.t0, s.t0, s.t1))
        e("s_add_u32 s%d, s%d, 3000" % (s.t0, s.t0))
        lab("L_spin")
        e("s_sleep 2")
        e("s_memrealtime s[%d:%d]" % (s.stp, s.stp + 1))
        e("s_waitcnt lgkmcnt(0)")
        e("s_sub_u32 s%d, s%d, s%d" % (s.t1, s.stp, s.ws))
        e("s_cmp_lt_u32 s%d, s%d" % (s.t1, s.t0))
        e("s_cbranch_scc1 L_spin")
        if SPIN == "glob":
            e("global_load_dword v%d, v%d, s[98:99] sc0 sc1" % (v.t1, v.t0))
            e("s_waitcnt vmcnt(0)")
            e("v_readfirstlane_b32 s%d, v%d" % (s.t2, v.t1))
            e("s_not_b32 s%d, s%d" % (s.t2, s.t2))
            lab("L_spin2")
            e("s_sleep 2")
            e("s_memrealtime s[%d:%d]" % (s.stp, s.stp + 1))
            e("s_waitcnt lgkmcnt(0)")
            e("s_sub_u32 s%d, s%d, s%d" % (s.t1, s.stp, s.t2))
            e("s_cmp_lt_u32 s%d, 4000" % s.t1)
            e("s_cbranch_scc1 L_spin2")
    if STAMPS:
        stamp(6)
        e("s_waitcnt vmcnt(0)")
        stamp(7)
        stamp(61, True)
        e("s_getreg_b32 s%d, hwreg(HW_REG_XCC_ID)" % s.stp)
        e("v_writelane_b32 v%d, s%d, 62" % (v.st, s.stp))
        e("s_lshl_b32 s%d, s2, 3" % s.t0)
        e("s_add_u32 s%d, s%d, s%d" % (s.t0, s.t0, s.wave))
        e("s_lshl_b32 s%d, s%d, 8" % (s.t0, s.t0))
        e("v_lshlrev_b32 v%d, 2, v%d" % (v.t0, v.lane))
        e("v_add_u32 v%d, s%d, v%d" % (v.t0, s.t0, v.t0))
        if OPT.get("dbg"):
            e("v_readlane_b32 s%d, v%d, 0" % (s.t0, v.st))
            e("v_readlane_b32 s%d, v%d, 61" % (s.t1, v.st))
            e("v_readlane_b32 s%d, v%d, 1" % (s.t2, v.st))
            e("s_not_b32 s%d, s%d" % (s.t3, s.t0))
            e("v_cmp_ne_u32 vcc, 0, v%d" % v.st)
            e("v_subrev_u32 v%d, s%d, v%d" % (v.t1, s.t2, v.st))
            e("s_nop 1")
            e("v_cndmask_b32 v%d, 0, v%d, vcc" % (v.t1, v.t1))
            e("v_writelane_b32 v%d, s%d, 0" % (v.t1, s.t3))
            e("v_writelane_b32 v%d, s%d, 1" % (v.t1, s.t1))
            e("v_writelane_b32 v%d, s%d, 15" % (v.t1, s.t0))
            e("v_lshlrev_b32 v%d, 2, v%d" % (v.t0, v.lane))
            e("s_cmp_lt_u32 s%d, 4" % s.wave)
            e("s_cselect_b32 s%d, 0xffff, 0x80ff" % s.t0 if False else "s_mov_b32 s%d, 0x80ff" % s.t0)
            e("s_cselect_b32 exec_lo, 0xffff, s%d" % s.t0)
            e("s_mov_b32 exec_hi, 0")
            e("global_atomic_umax v%d, v%d, %s" % (v.t0, v.t1, sr(s.ws, 2)))
        else:
            e("global_store_dword v%d, v%d, %s" % (v.t0, v.st, sr(s.ws, 2)))
    lab("L_end")
    e("s_endpgm")
    for blk in ool:
        emit(blk)
    lab("L_sync")
    e("s_setprio %s" % OPT.get("sprio", "0"))
    e("s_min_u32 s%d, s%d, s%d" % (s.t2, s.need, s.mu))
    e("s_cmp_eq_u32 s%d, 0x20000" % s.stepb)
    e("s_cselect_b32 s%d, %s, %s" % (s.t3, OPT.get("lookd", "6"), OPT.get("look", "2")))
    e("s_add_u32 s%d, s%d, s%d" % (s.t3, s.need, s.t3))
    e("s_min_u32 s%d, s%d, s%d" % (s.t3, s.t3, s.n))
    e("s_bfe_u32 s%d, s%d, 0x40008" % (s.chk, N + 4))
    if OPT.get("c1w"):
        e("s_and_b32 s%d, s2, 6" % s.t1)
        e("s_cselect_b32 s%d, s%d, %s" % (s.chk, s.chk, OPT["c1w"]))
    lab("L_svc")
    e("ds_read_b32 v%d, v%d" % (v.t1, v.pra))
    e(RDYR)
    e("s_cmp_lt_u32 s%d, %s" % (s.iss, OPT.get("warn", "8")))
    e("s_cselect_b32 s%d, s%d, 5" % (s.t1, s.chk))
    e("s_sub_i32 s%d, s%d, s%d" % (s.t1, s.iss, s.t1))
    e("s_cmp_gt_u32 s%d, s%d" % (s.iss, s.t3))
    e("s_waitcnt lgkmcnt(0)")
    e("s_cbranch_scc0 L_svc1")
    e("v_cmp_ge_u32 vcc, s%d, v%d" % (s.t2, v.rdy))
    e("s_cbranch_vccz L_svcx")
    e("s_cmp_gt_u32 s%d, s%d" % (s.iss, s.n))
    e("s_cbranch_scc1 L_svcs")
    lab("L_svc1")
    e("v_cmp_gt_i32 vcc, s%d, v%d" % (s.t1, v.t1))
    e("s_bitcmp1_b32 s%d, 0" % s.iss)
    e("s_cbranch_scc1 L_svcB")
    e("s_cmp_lt_u32 s%d, 8" % s.iss)
    e("s_cselect_b32 s%d, -1, s%d" % (s.t1, N + 1))
    e("s_and_b32 s%d, s%d, vcc_lo" % (s.t1, s.t1))
    e("s_and_b32 s%d, s%d, 0xff" % (s.t1, s.t1))
    e("s_cbranch_scc1 L_svc2")
    e("s_add_u32 s%d, s%d, 1" % (s.iss, s.iss))
    emit(svc_cap())
    emit(chunk(0))
    e("s_branch L_svc")
    lab("L_svcB")
    e("s_and_b32 s%d, s%d, 0xff" % (s.t1, N + 3))
    e("s_cmp_gt_u32 s%d, s%d" % (s.iss, s.t1))
    e("s_cbranch_scc1 L_svcF")
    e("s_cbranch_vccnz L_svc2")
    emit(svc_cap())
    emit(chunk(1, flag=False))
    lab("L_svcF")
    e("s_add_u32 s%d, s%d, 1" % (s.iss, s.iss))
    emit(FLAG + STEP_ADV)
    e("s_branch L_svc")
    lab("L_svc2")
    e("v_cmp_ge_u32 vcc, s%d, v%d" % (s.t2, v.rdy))
    e("s_cbranch_vccz L_svcx")
    lab("L_svcs")
    emit(spin(OPT.get("slp", "2")))
    e("s_branch L_svc")
    lab("L_svcx")
    e("s_setprio %s" % OPT.get("hprio", "3"))
    SRET_AT = len(out)
    lab("L_hdone")
    e("s_mov_b32 s%d, s%d" % (s.need, s.n))
    e("s_mov_b32 s%d, s%d" % (s.mu, s.n))
    emit(sync_call())
    e("s_sub_u32 s%d, s%d, 1" % (s.t2, s.n))
    e("s_bfe_u32 s%d, s%d, 0x40018" % (s.n, Fa + 2))
    e("s_cbranch_scc0 L_fin")
    e("s_cmp_eq_u32 s%d, 1" % s.n)
    e("s_cbranch_scc1 L_solo")
    e("s_setprio %s" % OPT.get("eprio", "0"))
    stamp(5)
    l16, l8, xa, cnt, xr = v.ka0, v.ka0r, v.var, v.var + 1, v.var + 2
    emit(lsum())
    e("v_lshlrev_b32 v%d, 4, v%d" % (l16, L))
    e("v_lshlrev_b32 v%d, 3, v%d" % (l8, L))
    e("s_lshl_b32 s%d, s%d, 9" % (s.t0, s.wave))
    e("s_add_u32 s%d, s%d, %d" % (s.t0, s.t0, MLBASE - 2048))
    e("v_add_u32 v%d, s%d, v%d" % (xa, s.t0, l8))
    e("ds_write_b64 v%d, %s" % (xa, vr(v.nmc, 2)))
    emit(st_addr())
    e("v_add_u32 v%d, s%d, v%d" % (xr, s.reg, l16))
    for j in range(3):
        e("s_lshr_b32 s%d, s%d, 24" % (s.t0, Fa + 5 + j))
        e("s_lshl_b32 s%d, s%d, 9" % (s.t0, s.t0))
        e("s_add_u32 s%d, s%d, %d" % (s.t0, s.t0, MLBASE))
        e("v_add_u32 v%d, s%d, v%d" % (v.P + j, s.t0, l8))
    e("s_lshr_b32 s%d, s%d, 30" % (s.t0, Fa + 2))
    e("s_lshl_b32 s%d, s%d, 2" % (s.t0, s.t0))
    e("s_add_u32 s%d, s%d, %d" % (s.t0, s.t0, CNTB))
    e("v_mov_b32 v%d, s%d" % (cnt, s.t0))
    e("v_mov_b32 v%d, 1" % v.t3)
    e("s_branch L_pe1")
    lab("L_pe0")
    emit(spin(OPT.get("slp", "2")))
    lab("L_pe1")
    e("ds_read_b32 v%d, v%d" % (v.t1, v.pra))
    e("s_waitcnt lgkmcnt(0)")
    e("v_cmp_gt_u32 vcc, s%d, v%d" % (s.t2, v.t1))
    e("s_cbranch_vccnz L_pe0")
    stamp(2)
    e("s_cmp_eq_u32 s%d, 2" % s.n)
    e("s_cbranch_scc1 L_sd2")
    for j in (1, 2, 3):
        if j == 2:
            lab("L_sd2")
        e("s_and_b32 s%d, s%d, 0xffffff" % (s.t0, Fa + 4 + j))
        e("v_add_u32 v%d, s%d, v%d" % (xa, s.t0, l16))
        for k in range(2 if OPT.get("xhalfw") else 4):
            e("ds_write_b128 v%d, %s offset:%d" % (xa, vr(v.O + 16 * j + 4 * k, 4), k * 1024))
    e("s_mov_b64 exec, 1")
    e("ds_add_u32 v%d, v%d" % (cnt, v.t3))
    e("s_mov_b64 exec, -1")
    stamp(3)
    e("s_branch L_poll1")
    lab("L_poll")
    emit(spin())
    lab("L_poll1")
    e("ds_read_b32 v%d, v%d" % (v.t3, cnt))
    e("s_waitcnt lgkmcnt(0)")
    e("v_cmp_ne_u32 vcc, s%d, v%d" % (s.n, v.t3))
    e("s_cbranch_vccnz L_poll")
    stamp(4)
    for j in range(3):
        e("ds_read_b64 %s, v%d" % (vr(v.X + 2 * j, 2), v.P + j))
    for k in range(12):
        e("ds_read_b128 %s, v%d offset:%d" % (vr(v.KF + 16 + 4 * k, 4), xr, k * 1024))
    RX = v.KF + 16
    f0, f1, f2, f3 = v.X + 8, v.X + 10, v.X + 12, v.X + 14
    e("s_bfe_u32 s%d, s%d, 0x2001c" % (s.col, Fa + 2))
    e("s_lshl_b32 s%d, s%d, 6" % (s.col, s.col))
    e("s_add_u32 s%d, s%d, 0x8000" % (s.col + 1, s.col))
    e("s_add_u32 s%d, s%d, 0x10000" % (s.col + 2, s.col))
    e("s_add_u32 s%d, s%d, 0x18000" % (s.t1, s.col))
    PK = not OPT.get("nopk")

    def vmul(n, f):
        if PK:
            return ["v_pk_mul_f32 %s, %s, %s op_sel_hi:[1,0]" % (vr(v.O + i, 2), vr(v.O + i, 2), vr(f, 2)) for i in range(0, n, 2)]
        return ["v_mul_f32 v%d, v%d, v%d" % (v.O + i, v.O + i, f) for i in range(n)]

    def vfma(n, src_, f):
        if PK:
            return ["v_pk_fma_f32 %s, %s, %s, %s op_sel_hi:[1,0,1]" % (vr(v.O + i, 2), vr(src_ + i, 2), vr(f, 2), vr(v.O + i, 2)) for i in range(0, n, 2)]
        return ["v_fmac_f32 v%d, v%d, v%d" % (v.O + i, src_ + i, f) for i in range(n)]

    def direct(bb):
        r = ["v_cvt_pk_bf16_f32 v%d, v%d, v%d" % (v.S + 8 * bb + i, v.O + 16 * bb + 2 * i, v.O + 16 * bb + 2 * i + 1) for i in range(8)]
        for g in (0, 1):
            d = v.S + 8 * bb + 4 * g
            r += ["v_permlane32_swap_b32 v%d, v%d" % (d, d + 2), "v_permlane32_swap_b32 v%d, v%d" % (d + 1, d + 3),
                  "buffer_store_dwordx4 %s, v%d, %s, s%d offen offset:%d %s" % (vr(d, 4), oo, sr(s.so, 4), s.col, 64 * bb + 32 * g, STF)]
        return r
    e("s_waitcnt lgkmcnt(12)")
    e("v_min3_f32 v%d, v%d, v%d, v%d" % (v.t3, v.nmc, v.X, v.X + 2))
    e("v_min_f32 v%d, v%d, v%d" % (v.t3, v.t3, v.X + 4))
    e("v_sub_f32 v%d, v%d, v%d" % (f0, v.t3, v.nmc))
    for j, f in enumerate((f1, f2, f3)):
        e("v_sub_f32 v%d, v%d, v%d" % (f, v.t3, v.X + 2 * j))
    for f in (f0, f1, f2, f3):
        e("v_exp_f32 v%d, v%d" % (f, f))
    e("v_mul_f32 v%d, v%d, v%d" % (v.l, v.l, f0))
    e("v_fmac_f32 v%d, v%d, v%d" % (v.l, v.X + 1, f1))
    e("s_cmp_eq_u32 s%d, 2" % s.n)
    e("s_cbranch_scc1 L_mg2")
    e("v_fmac_f32 v%d, v%d, v%d" % (v.l, v.X + 3, f2))
    e("v_fmac_f32 v%d, v%d, v%d" % (v.l, v.X + 5, f3))
    e("v_rcp_f32 v%d, v%d" % (v.t3, v.l))
    e("v_and_b32 v%d, 4, v%d" % (v.t0, L))
    e("v_lshl_add_u32 v%d, v%d, 28, v%d" % (oo, v.t0, oo))
    for f in (f0, f1, f2, f3):
        e("v_mul_f32 v%d, v%d, v%d" % (f, f, v.t3))
    emit(vmul(16, f0))
    for j, f in enumerate((f1, f2, f3)):
        e("s_waitcnt lgkmcnt(%d)" % (8 - 4 * j))
        emit(vfma(16, RX + 16 * j, f))
    e("s_branch L_mg3")
    lab("L_mg2")
    e("v_rcp_f32 v%d, v%d" % (v.t3, v.l))
    e("s_nop 0")
    for f in (f0, f1):
        e("v_mul_f32 v%d, v%d, v%d" % (f, f, v.t3))
    emit(vmul(32, f0))
    e("s_waitcnt lgkmcnt(4)")
    emit(vfma(32, RX, f1))
    emit(pack_q(1, False))
    lab("L_mg3")
    emit(pack_q(0, False) + rd_half(0))
    for k in range(4):
        emit(["s_waitcnt lgkmcnt(%d)" % (3 - k)] + st_one(0, k))
    e("s_branch L_fin")
    lab("L_resc")
    e("v_max3_f32 v%d, v%d, v%d, v%d" % (v.E, v.X, v.X + 1, v.X + 2))
    for r in range(3, 15, 2):
        e("v_max3_f32 v%d, v%d, v%d, v%d" % (v.E, v.E, v.X + r, v.X + r + 1))
    e("v_max3_f32 v%d, v%d, v%d, 0" % (v.E, v.E, v.X + 15))
    e("v_mov_b32 v%d, v%d" % (v.E + 1, v.E))
    e("s_nop 1")
    e("v_permlane32_swap_b32 v%d, v%d" % (v.E, v.E + 1))
    e("s_nop 1")
    e("v_max_f32 v%d, v%d, v%d" % (v.E, v.E, v.E + 1))
    e("v_exp_f32 v%d, -v%d" % (v.E + 1, v.E))
    e("v_sub_f32 v%d, v%d, v%d" % (v.nmc, v.nmc, v.E))
    for r in range(16):
        e("v_sub_f32 v%d, v%d, v%d" % (v.X + r, v.X + r, v.E))
    e("v_mul_f32 v%d, v%d, v%d" % (v.l, v.l, v.E + 1))
    for i in range(64):
        e("v_mul_f32 v%d, v%d, v%d" % (v.O + i, v.O + i, v.E + 1))
    emit(soft_half_plain(0))
    emit(soft_half_plain(1))
    for k, r in enumerate(rets[:-1]):
        e("s_cmp_eq_u32 s%d, %d" % (s.ret, k))
        e("s_cbranch_scc1 %s" % r)
    e("s_branch %s" % rets[-1])
    rl_ = []
    order = [2, 1, 0, 3]
    assert len(srets) == len(order)
    for k in order[:-1]:
        rl_ += ["    s_cmp_eq_u32 s%d, %d" % (s.sret, k), "    s_cbranch_scc1 %s" % srets[k]]
    rl_ += ["    s_branch %s" % srets[order[-1]]]
    out[SRET_AT:SRET_AT] = rl_
    out.append(".p2align 6")
    out.append(".type L_near,@object")
    lab("L_near")
    for ent in near:
        out.append("    .long " + ", ".join("0x%x" % x for x in ent))
    lab("L_far")
    for ent in far:
        out.append("    .long " + ", ".join("0x%x" % x for x in ent))
    lab("L_cnt")
    out.append("    .long " + ", ".join(str(i) for i in range(32)))
    out.append(".size L_near, .-L_near")
    lab("L_codeend")
    out.append("    .fill 768, 4, 0xbf800000")
    out.append('.section .rodata,"a"')
    out.append(".p2align 6")
    out.append(".amdhsa_kernel " + K)
    out.append("  .amdhsa_next_free_vgpr %d" % NV)
    out.append("  .amdhsa_next_free_sgpr %d" % NS)
    out.append("  .amdhsa_accum_offset %d" % NV)
    out.append("  .amdhsa_group_segment_fixed_size 0")
    out.append("  .amdhsa_kernarg_size 56")
    out.append("  .amdhsa_user_sgpr_count 2")
    out.append("  .amdhsa_user_sgpr_kernarg_segment_ptr 1")
    out.append("  .amdhsa_system_sgpr_workgroup_id_x 1")
    out.append(".end_amdhsa_kernel")
    txt = "\n".join(out) + "\n"
    txt = txt.replace("PFSTRIDE", OPT.get("pf", "36"))
    import subprocess, tempfile, os
    tmp = tempfile.mkdtemp()
    open(tmp + "/a.s", "w").write(txt.replace("offset:L_near-L_pc", "offset:0x100").replace("offset:L_far-L_pc", "offset:0x100"))
    subprocess.run(["clang", "-x", "assembler", "-target", "amdgcn-amd-amdhsa", "-mcpu=gfx950", "-c", tmp + "/a.s", "-o", tmp + "/a.o"], check=True)
    sy = {}
    for ln in subprocess.run(["llvm-objdump", "-t", tmp + "/a.o"], capture_output=True, text=True).stdout.splitlines():
        p = ln.split()
        if len(p) >= 5 and p[-1].startswith("L_"):
            sy[p[-1]] = int(p[0], 16)
    assert sy["L_codeend"] - sy["L_pc"] <= 512 * int(OPT.get("pf", "36")) + 128 or STAMPS or SPIN, hex(sy["L_codeend"])
    assert sy["L_codeend"] + 3072 - sy["L_pc"] >= 512 * int(OPT.get("pf", "36"))
    for t in ("L_near", "L_far"):
        txt = txt.replace("offset:%s-L_pc" % t, "offset:0x%x" % (sy[t] - sy["L_pc"]))
        txt = txt.replace(t + ":\n", t + ":\n.if (%s-L_pc) != 0x%x\n.error \"table offset\"\n.endif\n" % (t, sy[t] - sy["L_pc"])) if False else txt
    return txt


if __name__ == "__main__":
    args = [a for a in sys.argv[1:] if a.endswith(".s")]
    path = args[0] if args else "cdna_kernels/%s.s" % NAME
    txt = gen()
    open(path, "w").write(txt)
    print("wrote", path)
```

```python
import sys, struct, math

NAME = "standalone__varlen_attn_packed__ragged"
CU = [0, 289, 520, 939, 1289, 1402, 1666, 1973, 2275]
LEN = [CU[i + 1] - CU[i] for i in range(8)]
T_TOT = 2275
ROWB = 4096
TENSOR_BYTES = T_TOT * ROWB

OPT = {}
for a in sys.argv[1:]:
    if a.startswith("--"):
        k, _, val = a[2:].partition("=")
        OPT[k] = val if val else "1"
STAMPS = "stamps" in OPT or "lite" in OPT
LITE = "lite" in OPT
LDF_Q = OPT.get("ldq", "none").replace("+", " ").replace("none", "")
LDF_K = OPT.get("ldk", "none").replace("+", " ").replace("none", "")
STF = OPT.get("st", "sc1").replace("+", " ").replace("none", "")
FLY = int(OPT.get("fly", "4"))

HEADER = """; Kernarg layout for this problem (56 bytes, ptrs only, base s[0:1]):
;   offset   0: d_in[0] q  shape=(2275, 16, 128) dtype=bfloat16 strides=(4096, 256, 2) contiguous=True
;   offset   8: d_in[1] k  shape=(2275, 16, 128) dtype=bfloat16 strides=(4096, 256, 2) contiguous=True
;   offset  16: d_in[2] v  shape=(2275, 16, 128) dtype=bfloat16 strides=(4096, 256, 2) contiguous=True
;   offset  24: d_in[3] cu  shape=(9,) dtype=int32 strides=(4,) contiguous=True
;   offset  32: d_out     shape=(2275, 16, 128) dtype=bfloat16 (2 bytes/elem)
"""

DOC = """;
; Varlen (packed) non-causal attention, one 512-thread workgroup per CU, schedule specialised for the fixed cu[] table.
;   waves 0..3 : one 32-row q tile each; software pipelined flash-attention loop (S^T = K Q^T, O^T += V^T P^T,
;   waves 4..7 : stream K/V blocks into an LDS ring with LDS-DMA and compute a share of the extra q tiles;
;                partial results of a shared tile are merged through LDS.
;   row sums at run time and, whenever they could become unsafe, L_resc moves the reference to the true
;   L_near / L_far: per-workgroup and per-wave work descriptors (rows, lengths, LDS regions).
"""


def f2u(x):
    return struct.unpack("<I", struct.pack("<f", x))[0]


def cdiv(a, b):
    return (a + b - 1) // b


LDS_TOTAL = 163840
QBASE = 98304
XTRA = 131072
MLBASE = XTRA + 6 * 4096
PRGB = XTRA + 7 * 4096 + 2048
RDYB = XTRA + 6 * 4096 + 3072
CNTB = XTRA + 6 * 4096 + 2048
BIG = 0x4000

ROLES = [
    ("dual", (1, 6, 2), (4, 0, 4)),
    (5, 0, 6),
    (3, 0, 5), (3, 5, 5),
    ("dual", (3, 10, 1), (5, 6, 3)),
    (1, 0, 6),
    (6, 0, 5), (6, 5, 5),
    (7, 0, 5), (7, 5, 5), (0, 0, 5), (0, 5, 5),
    (2, 0, 4), (2, 4, 4), (2, 8, 3), (2, 11, 3),
]
WARS = OPT.get("wars", None if ("war" in OPT or "ward" in OPT) else "5444533333333333") or "".join(OPT.get("ward", "5") if r[0] == "dual" else OPT.get("war", "4") for r in ROLES)
QL = int(OPT.get("ql", "4"))
QLC = int(OPT.get("qlc", "3"))
QE = int(OPT.get("qe", "0"))


def nrec(rows):
    return (rows - 1) * ROWB + 256 if rows > 0 else 0


def build_tables():
    near, far, desc = [], [], []
    for ri, role in enumerate(ROLES):
        W = [None] * 8
        groups = []
        if role[0] == "dual":
            (sa, ta, na), (sb, tb, nb) = role[1], role[2]
            rowA, lenA, rowB, lenB, step = CU[sa], LEN[sa], CU[sb], LEN[sb], 32
            n_it = max(cdiv(lenA, 32), cdiv(lenB, 32))
            tiles = [(sa, ta + i, 0) for i in range(na)] + [(sb, tb + i, 1) for i in range(nb)]
            nq = len(tiles)
            for i in range(4):
                sq, tl, st = tiles[i]
                W[i] = dict(seq=sq, tile=tl, ql=i, type=2, stream=st, its=list(range(cdiv(LEN[sq], 32))), hastail=1)
            for i in range(4, nq):
                sq, tl, st = tiles[i]
                nb_ = cdiv(LEN[sq], 32)
                W[i + 2] = dict(seq=sq, tile=tl, ql=i, type=3, stream=st, its=list(range(nb_)), hastail=1,
                                G=1, reg=XTRA + 4096 * i)
        else:
            sa, t0, nq = role
            rowA, lenA, rowB, lenB, step = CU[sa], LEN[sa], CU[sa] + 32, LEN[sa] - 32, 64
            nkv = cdiv(lenA, 32)
            n_it = cdiv(nkv, 2)
            tiles = [(sa, t0 + i, 0) for i in range(nq)]
            for i in range(min(nq, 4)):
                W[i] = dict(seq=sa, tile=t0 + i, ql=i, type=1, stream=0, its=list(range(nkv)), hastail=1)
            nh = 4 // (nq - 4) if nq > 4 else 0
            for i in range(4, nq):
                ws = [4, 5, 6, 7] if nh == 4 else [4 + (i - 4), 6 + (i - 4)]
                for k, w in enumerate(ws):
                    blocks = [p for p in range(nkv) if p % nh == k]
                    W[w] = dict(seq=sa, tile=t0 + i, ql=i, type=3, stream=k % 2, its=[p // 2 for p in blocks],
                                hastail=int((nkv - 1) in blocks))
                groups.append(ws)
        qrows = [CU[sq] + 32 * tl for sq, tl, _ in tiles] + [0xfff] * (6 - nq)
        qrows = [r | (0x1000 if i < nq and tiles[i][2] else 0) for i, r in enumerate(qrows)]
        maskA = sum(1 << i for i, w in enumerate(W) if w and (w["type"] == 1 or w["stream"] == 0 or i < 4 and role[0] != "dual"))
        lastB = 2 * cdiv(lenB, step) + 1
        near.append([rowA * ROWB, nrec(lenA) | maskA, rowB * ROWB, nrec(lenB) | lastB, step * ROWB | (2 * n_it + 1) | int(WARS[ri]) << 8,
                     qrows[0] | qrows[1] << 16, qrows[2] | qrows[3] << 16, qrows[4] | qrows[5] << 16])
        areas = [((n_it + 1) % 4) * 32768, ((n_it + 2) % 4) * 32768]
        recv = [areas[0], areas[0] + 12288, areas[1], areas[1] + 12288]
        for i in range(4):
            if W[i]:
                W[i]["reg"] = XTRA + 4096 * i
        for gi, g in enumerate(groups):
            G = len(g)
            for k, w in enumerate(g):
                W[w]["reg"] = recv[w - 4]
                W[w]["G"], W[w]["k"], W[w]["gi"] = G, k, gi
                if G == 4:
                    W[w]["send"] = [recv[g[(j + k) % 4] - 4] + (j - 1) * 4096 for j in (1, 2, 3)]
                    W[w]["src"] = [g[(k - j) % 4] for j in (1, 2, 3)]
                else:
                    o = g[1 - k]
                    W[w]["send"] = [0, recv[o - 4], recv[o - 4] + 4096]
                    W[w]["src"] = [o, o, o]
        for wi in range(8):
            w = W[wi]
            if OPT.get("xnohelp") and w and w.get("G", 0) > 1:
                w = None
            desc.append(w)
            if w is None:
                far.append([0] * 8)
                continue
            sq, its, typ, sc = w["seq"], w["its"], w["type"], w["stream"]
            tail = LEN[sq] % 32
            orow = CU[sq] + 32 * w["tile"]
            onr = min(32, CU[sq + 1] - orow)
            assert onr > 0 and tail > 0
            U = len(its) - 1
            a0, st = its[0], its[1] - its[0]
            assert all(its[i] == a0 + st * i for i in range(len(its))) and st <= 2 and a0 <= 1 and U >= 1
            if typ == 1:
                inc, prg0, prg1, need1, need2 = 1, 2, 4, 0, 2
            elif typ == 2:
                inc, prg0, prg1, need1, need2 = 2, 2, 4 + sc, sc, 4 + sc
            else:
                inc, prg0, prg1, need1, need2 = 2 * st, 2 * a0 + sc + 2, 2 * (a0 + 1) + sc + 2, max(QE if QE else 3, 2 * a0 + sc), 2 * (a0 + st) + sc
            needk = max(need1 + 2 * (typ == 2), 1)
            if typ != 3 and wi >= QL:
                need1 = max(need1, QLC)
            w.update(needk=needk)
            w.update(U=U, a0=a0, st=st, inc=inc, prg0=prg0, prg1=prg1, need1=need1, need2=need2, n_it=n_it)
            hm = 0
            if typ != 3:
                nlast = 2 * n_it + 1
                pub = prg0
                w["pubs"] = []
                for b in range(U):
                    val = prg1 + inc * (b + 1)
                    want = pub < nlast - 5 and (typ == 2 or b % 2 == 1 or OPT.get("puball"))
                    if groups and pub < nlast - 1 <= val:
                        want = True
                    if typ == 2 or U - 1 - b <= 1:
                        hm |= 1 << (U - 1 - b)
                    if want and OPT.get("nodpub"):
                        hm |= 0x10001 << (U - 1 - b)
                        pub = val
                        w["pubs"].append(b)
            G, k, gi = w.get("G", 0), w.get("k", 0), w.get("gi", 0)
            rot = k * (4 // G) if G > 1 else 0
            lastc = (U + 2) if typ == 1 else 2 * (its[-1] + 1) + sc
            w["lastc"] = lastc
            ent = [orow * ROWB | lastc, nrec(onr),
                   U | typ << 8 | inc << 12 | (tail if w["hastail"] else 32) << 16 | G << 24 | rot << 28 | gi << 30,
                   prg0 | prg1 << 8 | need1 << 16 | need2 << 24,
                   w["reg"] | w["ql"] << 20 | (1 - sc) << 24 | a0 << 25 | st << 26 | int(typ != 3 and tail <= 16 and not OPT.get("noshort")) << 31]
            if G > 1:
                ent += [w["send"][j] | ((w["src"][j] - 4) << 24) for j in range(3)]
            if typ != 3:
                ent += [hm, needk]
            ent += [0] * (8 - len(ent))
            far.append(ent)
    return near, far, desc


class R:
    pass


v = R()
v.kd0, v.kd1, v.vd0, v.vd1 = 1, 2, 3, 4
v.ka0r, v.ka1r = 5, 6
v.ka0, v.ka1 = 7, 8
v.rdya, v.rdy = 9, 10
v.lane = 11
v.nmc, v.l = 12, 13
v.ps = 14
v.t0, v.t1, v.t2, v.t3 = 15, 16, 17, 18
v.pf = 19
v.st = 20
v.prga, v.prg = 21, 22
v.fo = 23
v.pra = 0
v.Q = 24
v.O = 56
v.S = 120
v.B = 136
v.KF = 152
v.VF = 184
v.X = 216
v.E = 232
v.P = 240
v.var = 248
v.va = 252
NV = 256

s = R()
s.q, s.k, s.vv, s.cu, s.out = 4, 6, 8, 10, 12
s.near = 16
s.far = 24
s.kA, s.kB, s.vA, s.vB, s.sq, s.so = 32, 36, 40, 44, 48, 52
s.wave, s.hoff = 56, 57
s.n = 58
s.thr = 59
s.soff = 60
s.dslot = 61
s.U = 62
s.mu = 63
s.koff, s.voff = 64, 65
s.need, s.chk = 66, 67
s.t0, s.t1, s.t2, s.t3 = 68, 69, 70, 71
s.pc = 72
s.stp = 74
s.ws = 76
s.sti = 78
s.ret = 79
s.foff = 80
s.reg = 81
s.m1 = 82
s.lnd = 83
s.inc = 84
s.col = 85
s.astep = 88
s.sret = 89
s.guard = 90
s.iss = 91
s.d0, s.rdw = 92, 93
s.qea, s.qeb = 94, 95
s.stepb = 97
NS = 100

C_SCALE = (128 ** -0.5) * math.log2(math.e)
CL = "0x%x" % f2u(C_SCALE)
THRESH = 4096.0

out = []


def e(x):
    out.append("    " + x)


def lab(x):
    out.append(x + ":")


def vr(b, n):
    return "v[%d:%d]" % (b, b + n - 1)


def sr(b, n):
    return "s[%d:%d]" % (b, b + n - 1)


def emit(lst):
    for x in lst:
        if x is None:
            continue
        if x.endswith(":"):
            out.append(x)
        else:
            e(x)


def stamp_l(k=None, real=False):
    if not STAMPS or (LITE and k not in (7, 61)):
        return []
    if OPT.get("rt") and k is None and not real:
        return stamp_l(None, True) + stamp_l(None, "c")
    real = real is True
    r = ["%s s[%d:%d]" % ("s_memrealtime" if real else "s_memtime", s.stp, s.stp + 1), "s_waitcnt lgkmcnt(0)"]
    if k is None:
        r += ["s_mov_b32 s%d, m0" % (s.stp + 1), "s_mov_b32 m0, s%d" % s.sti, "s_nop 0",
              "v_writelane_b32 v%d, s%d, m0" % (v.st, s.stp),
              "s_add_u32 s%d, s%d, 1" % (s.sti, s.sti), "s_mov_b32 m0, s%d" % (s.stp + 1)]
    else:
        r += ["v_writelane_b32 v%d, s%d, %d" % (v.st, s.stp, k)]
    return r


def stamp(k=None, real=False):
    emit(stamp_l(k, real))


SPIN = OPT.get("spin")


def mark(name):
    if SPIN == name:
        e("s_memrealtime s[%d:%d]" % (s.stp, s.stp + 1))
        e("s_waitcnt lgkmcnt(0)")


def kread(t, dst, st=0):
    return "ds_read_b128 %s, v%d offset:%d" % (vr(dst + 4 * t, 4), v.ka1 if t % 2 else v.ka0,
                                               (t // 4) * 16384 + ((t // 2) % 2) * 256 + st * 1024)


def vread(i, st=0, one=False):
    t, bb, ss = i // 8, (i // 2) % 4, i % 2
    reg = v.VF + (t * 4 + bb) * 4 + ss * 2
    if one:
        return "ds_read_b64_tr_b16 %s, v%d offset:%d" % (vr(reg, 2), v.va, (4 * t + 2 * ss) * 4096 + st * 1024 + bb * 256)
    return "ds_read_b64_tr_b16 %s, v%d offset:%d" % (vr(reg, 2), v.va + bb, (4 * t + 2 * ss) * 4096 + st * 1024)


def ld(kv, col, half, so):
    srd = {("K", 0): s.kA, ("K", 1): s.kB, ("V", 0): s.vA, ("V", 1): s.vB}[(kv, col)]
    off = (2048 if kv == "V" else 0) + (1024 if col == 0 else 0)
    vo = {("K", 0): v.kd0, ("K", 1): v.kd1, ("V", 0): v.vd0, ("V", 1): v.vd1}[(kv, half)]
    return "buffer_load_dwordx4 v%d, %s, s%d offen %s%s lds" % (vo, sr(srd, 4), so, "offset:%d " % off if off else "", LDF_K)


STEP_ADV = ["s_add_u32 s%d, s%d, s%d" % (s.soff, s.soff, s.stepb),
            "s_add_u32 s%d, s%d, 0x8000" % (s.dslot, s.dslot),
            "s_and_b32 s%d, s%d, 0x1ffff" % (s.dslot, s.dslot)]


FLAG = ["s_mov_b32 m0, s%d" % s.rdw,
        "v_add_u32 v%d, 4, v%d" % (v.fo, v.fo),
        "global_load_lds_dword v%d, %s" % (v.fo, sr(s.pc, 2))]


def chunk(col, k_only=False, pace=0, flag=True):
    p = []
    if pace:
        p = ["s_sleep %d" % pace if pace < 16 else "s_nop %d" % (pace - 16)]
    r = []
    for half, m in ((0, "s_mov_b32 m0, s%d" % s.dslot), (1, "s_add_u32 m0, s%d, 0x4000" % s.dslot)):
        r += [m, "s_nop 0"]
        if not k_only:
            r += [ld("V", col, half, s.soff)] + p
        r += [ld("K", col, half, s.soff)] + p
    return r + (FLAG if flag else [])


def qk(t):
    return "v_mfma_f32_32x32x16_bf16 %s, %s, %s, %s" % (vr(v.S, 16), vr(v.KF + 4 * t, 4), vr(v.Q + 4 * t, 4), vr(v.S, 16))


def pv(i):
    t, bb = i // 4, i % 4
    return "v_mfma_f32_32x32x16_bf16 %s, %s, %s, %s" % (
        vr(v.O + 16 * bb, 16), vr(v.VF + (t * 4 + bb) * 4, 4), vr(v.P + 4 * t, 4), vr(v.O + 16 * bb, 16))


def F(r):
    return "v_fmamk_f32 v%d, v%d, %s, v%d" % (v.X + r, v.S + r, CL, v.nmc)


def ex(r):
    return "v_exp_f32 v%d, v%d" % (v.E + r % 8, v.X + r)


def add(r):
    if r == 0:
        return None
    if r == 1:
        return "v_add_f32 v%d, v%d, v%d" % (v.ps, v.E, v.E + 1)
    return "v_add_f32 v%d, v%d, v%d" % (v.ps, v.ps, v.E + r % 8)


def cvt(i):
    return "v_cvt_pk_bf16_f32 v%d, v%d, v%d" % (v.P + i, v.E + (2 * i) % 8, v.E + (2 * i + 1) % 8)


def soft_half_plain(h):
    r = [ex(8 * h + i) for i in range(8)]
    r += [x for x in (add(8 * h + i) for i in range(8)) if x]
    r += [cvt(4 * h + i) for i in range(4)]
    return r


CMP = "v_cmp_lt_f32 vcc, s%d, v%d" % (s.thr, v.ps)
LADD = "v_add_f32 v%d, v%d, v%d" % (v.l, v.l, v.ps)
PRGW = "ds_write_b32 v%d, v%d" % (v.prga, v.prg)
RDYR = "ds_read_b32 v%d, v%d" % (v.rdy, v.rdya)
PRGINC = "v_add_u32 v%d, s%d, v%d" % (v.prg, s.inc, v.prg)
NEEDINC = "s_add_u32 s%d, s%d, s%d" % (s.need, s.need, s.inc)
QK0 = "v_mfma_f32_32x32x16_bf16 %s, %s, %s, 0" % (vr(v.S, 16), vr(v.KF, 4), vr(v.Q, 4))
QK0M = "v_mfma_f32_32x32x16_bf16 %s, %s, %s, %s" % (vr(v.S, 16), vr(v.KF, 4), vr(v.Q, 4), vr(v.B, 16))
rets, srets = [], []


def newret():
    rets.append("L_ret%d" % len(rets))
    return len(rets) - 1


def kaddr():
    return ["v_add_u32 v%d, s%d, v%d" % (v.ka0, s.koff, v.ka0r),
            "v_add_u32 v%d, s%d, v%d" % (v.ka1, s.koff, v.ka1r)]


def vaddr():
    return ["v_add_u32 v%d, s%d, v%d" % (v.va + j, s.voff, v.var + j) for j in range(4)]


def adv(reg):
    return ["s_add_u32 s%d, s%d, s%d" % (reg, reg, s.astep), "s_and_b32 s%d, s%d, 0x1ffff" % (reg, reg)]


_sc = [0]


def svc_cap():
    r = ["s_waitcnt vmcnt(%s)" % OPT.get("cap", "20")]
    if OPT.get("cap0"):
        _sc[0] += 1
        r += ["s_and_b32 s%d, s%d, %s" % (s.t1, s.hoff, OPT.get("capm", "0x300")), "s_cbranch_scc1 L_sc%d" % _sc[0],
              "s_waitcnt vmcnt(%s)" % OPT["cap0"], "L_sc%d:" % _sc[0]]
    return r


def headmap():
    if OPT.get("gc"):
        tab = sum(int(OPT["gc"][2 * x + 1]) << (4 * x) for x in range(8))
        return ["s_lshl_b32 s%d, s2, 2" % s.t1,
                "s_lshr_b32 s%d, 0x%x, s%d" % (s.t1, tab, s.t1),
                "s_and_b32 s%d, s%d, 3" % (s.t1, s.t1),
                "s_bfe_u32 s%d, s2, 0x20003" % s.hoff,
                "s_lshl2_add_u32 s%d, s%d, s%d" % (s.t1, s.hoff, s.t1),
                "s_lshl_b32 s%d, s%d, 8" % (s.hoff, s.t1)]
    cm = OPT.get("cmap", "1302")
    if not cm:
        return ["s_and_b32 s%d, s2, 15" % s.t1, "s_lshl_b32 s%d, s%d, 8" % (s.hoff, s.t1)]
    tab = 0
    cls = [int(c) for c in cm]
    for i in range(16):
        x, hs = i & 7, i >> 3
        tab |= (cls[x >> 1] + 4 * (x & 1) + 8 * hs) << (4 * i)
    return ["s_lshl_b32 s%d, s2, 2" % s.t1,
            "s_lshr_b32 s%d, 0x%x, s%d" % (s.t1, tab & 0xffffffff, s.t1),
            "s_and_b32 s%d, s%d, 7" % (s.t1, s.t1),
            "s_and_b32 s%d, s2, 8" % s.hoff,
            "s_or_b32 s%d, s%d, s%d" % (s.t1, s.t1, s.hoff),
            "s_lshl_b32 s%d, s%d, 8" % (s.hoff, s.t1)]


def flag_init():
    return ["v_lshlrev_b32 v%d, 2, v0" % v.prga,
            "v_add_u32 v%d, %d, v%d" % (v.prga, PRGB - 4096, v.prga),
            "v_mov_b32 v%d, 0" % v.l,
            "ds_write_b32 v%d, v%d" % (v.prga, v.l),
            "ds_write_b32 v%d, v%d offset:4096" % (v.prga, v.l),
            "s_lshl_b32 s%d, s%d, 8" % (s.foff, s.foff),
            "s_lshr_b32 s%d, s%d, 1" % (s.t0, s.wave),
            "s_add_u32 s%d, s%d, s%d" % (s.foff, s.foff, s.t0)]


def far_load():
    r = []
    if STAMPS:
        r += ["v_mov_b32 v%d, 0" % v.st, "s_mov_b32 s%d, 8" % s.sti,
              "v_writelane_b32 v%d, s%d, 0" % (v.st, s.stp), "v_writelane_b32 v%d, s%d, 1" % (v.st, s.ws),
              "s_load_dwordx2 %s, s[0:1], 48" % sr(s.ws, 2)]
    return r + ["s_load_dwordx8 %s, %s, s%d offset:L_far-L_pc" % (sr(s.far, 8), sr(s.pc, 2), s.foff),
                "s_load_dwordx2 s[12:13], s[0:1], 32"]


def spin(n="1"):
    r = ["s_sleep %s" % n]
    if not OPT.get("nosafe"):
        r += ["s_sub_u32 s%d, s%d, 1" % (s.guard, s.guard), "s_cbranch_scc1 L_end"]
    return r


def sync_call(target=None):
    k = len(srets)
    srets.append(target or "L_sr%d" % k)
    return ["s_mov_b32 s%d, %d" % (s.sret, k), "s_branch L_sync"] + ([] if target else ["L_sr%d:" % k])


_pl = [0]


ool = []


def poll_rdy():
    _pl[0] += 1
    a, b = "L_pa%d" % _pl[0], "L_pb%d" % _pl[0]
    ool.append([a + ":"] + spin() + [RDYR, "s_waitcnt lgkmcnt(0)", "s_branch %s" % b])
    return ["s_min_u32 s%d, s%d, s%d" % (s.t2, s.need, s.mu), b + ":",
            "v_cmp_ge_u32 vcc, s%d, v%d" % (s.t2, v.rdy), "s_cbranch_vccnz %s" % a]


def body(kind):
    odd, hlp = kind != "even", kind == "hlp"
    st = 0 if odd else 1
    V = lambda i: vread(i, st, not hlp)
    K = lambda t: kread(t, v.KF, st)
    W = lambda n: "s_waitcnt lgkmcnt(%d)" % n
    k = newret()
    q = [
        [NEEDINC, V(0), V(1), ex(8), add(7), cvt(3)],
        ["s_mov_b32 s%d, %d" % (s.ret, k), V(2), V(3), ex(9), ex(10)],
        [W(4), V(4), V(5), ex(11), add(8), add(9)],
        ["s_sub_u32 s%d, s%d, 1" % (s.U, s.U), V(6), V(7), ex(12), ex(13)],
        [None, V(8), V(9), ex(14), add(10), add(11)],
        [None, V(10), V(11), ex(15), add(12), add(13)],
        [W(4), V(12), V(13), add(14), add(15), CMP, cvt(4)],
        ["s_cbranch_vccnz L_resc", "L_ret%d:" % k, V(14), V(15), LADD, cvt(5), cvt(6), cvt(7)],
    ]
    p = [
        ["s_nop 0", K(0), K(1), K(2), F(0), F(1), F(2)],
        [None, K(3), ex(0), F(3), F(4), F(5)],
        [None, K(4), ex(1), F(6), F(7), F(8)],
        [W(5), K(5), ex(2), add(1), F(9), F(10)],
        [None, K(6), ex(3), add(2), cvt(0), F(11)],
        [None, K(7), ex(4), add(3), cvt(1), F(12)],
        [W(4), ex(5), ex(6), add(4), F(13)],
        [None, ex(7), add(5), add(6), cvt(2), F(14), F(15)],
    ]
    if odd:
        q[4][0], q[5][0] = adv(s.voff)
        p[4][0], p[5][0] = adv(s.koff)
        va, ka = vaddr(), kaddr()
        p[1].append(va[0])
        if hlp:
            p[3].append(va[1])
            p[4].append(va[2])
            p[5].append(va[3])
        p[6].append(ka[0])
        p[7].append(ka[1])
    if not hlp:
        p[0][0] = "s_min_u32 s%d, s%d, s%d" % (s.chk, s.need, s.mu)
        p[1][0] = "s_bitcmp1_b32 s%d, s%d" % (s.far + 5, s.U)
        p[2][0] = "s_cselect_b32 s%d, -1, s%d" % (s.chk, s.chk)
        p[2][2:2] = [RDYR]
        p[6][0] = W(3)
        if odd and (not OPT.get("nodpub")):
            q[2].append("v_add_u32 v%d, 8, v%d" % (v.fo, v.fo))
            if OPT.get("pubq"):
                q[3][1:1] = ["global_load_lds_dword v%d, %s" % (v.fo, sr(s.pc, 2))]
            else:
                p[3][1:1] = ["global_load_lds_dword v%d, %s" % (v.fo, sr(s.pc, 2))]
        p[7][3:3] = ["v_cmp_ge_u32 vcc, s%d, v%d" % (s.chk, v.rdy)]
    else:
        q[1].append(PRGINC)
        q[7][4:4] = [PRGW]
        sc = sync_call()
        q[3][1:1] = [sc[0]]
        p[0][0:1] = stamp_l() + sc[1:] + stamp_l()
    lab("L_%s_m" % kind)
    e(QK0)
    lab("L_%s_a" % kind)
    emit(q[0])
    for t in range(1, 8):
        e(qk(t))
        emit(q[t])
    for i in range(8):
        e(pv(i))
        emit(p[i])
    if not hlp:
        stamp()


def gen():
    K = NAME + "_kernel"
    near, far, _ = build_tables()
    PACE = int(OPT.get("pace", "0"))
    out.append(HEADER + "; @launch grid=(256,1,1) block=(512,1,1) lds=%d" % LDS_TOTAL + "\n" + DOC.rstrip())
    out.append('.amdgcn_target "amdgcn-amd-amdhsa--gfx950"')
    out.append(".text")
    out.append(".globl " + K)
    out.append(".p2align 12")
    out.append(".p2align 8")
    out.append(".type %s,@function" % K)
    lab(K)
    L, N, Fa = v.lane, s.near, s.far
    if SPIN:
        e("s_memrealtime s[%d:%d]" % (s.ws, s.ws + 1))
        e("s_memrealtime s[%d:%d]" % (s.stp, s.stp + 1))
    if STAMPS:
        e("s_memrealtime s[%d:%d]" % (s.stp, s.stp + 1))
        e("s_memtime s[%d:%d]" % (s.ws, s.ws + 1))
    e("s_load_dwordx8 s[4:11], s[0:1], 0")
    e("s_getpc_b64 %s" % sr(s.pc, 2))
    lab("L_pc")
    if OPT.get("gc"):
        gm = sum((OPT["gc"][2 * x] == "L") << x for x in range(8)) * 0x01010101
        e("s_lshr_b32 s%d, s2, 5" % s.foff)
        e("s_bitcmp1_b32 0x%x, s2" % gm)
        e("s_cselect_b32 s%d, 8, 0" % s.t1)
        e("s_add_u32 s%d, s%d, s%d" % (s.foff, s.foff, s.t1))
    else:
        e("s_lshr_b32 s%d, s2, 4" % s.foff)
    e("s_lshl_b32 s%d, s%d, 5" % (s.t1, s.foff))
    e("s_load_dwordx8 %s, %s, s%d offset:L_near-L_pc" % (sr(s.near, 8), sr(s.pc, 2), s.t1))
    e("v_mul_u32_u24 v%d, PFSTRIDE, v0" % v.t0)
    e("v_readfirstlane_b32 s%d, v0" % s.wave)
    e("global_load_dword v%d, v%d, %s" % (v.pf, v.t0, sr(s.pc, 2)))
    e("s_cmp_ge_u32 s2, 256" if OPT.get("gc") else "s_cmp_ge_u32 s%d, 16" % s.foff)
    e("s_cbranch_scc1 L_end")
    e("s_bitcmp0_b32 s%d, 8" % s.wave)
    e("s_cbranch_scc1 L_mainpro")
    e("v_bfe_u32 v%d, v0, 5, 2" % v.t0)
    e("v_and_b32 v%d, 3, v0" % v.t1)
    e("v_xor_b32 v%d, v%d, v%d" % (v.t1, v.t1, v.t0))
    e("v_and_or_b32 v%d, v0, 12, v%d" % (v.t0, v.t0))
    e("v_lshlrev_b32 v%d, 12, v%d" % (v.t0, v.t0))
    e("v_lshl_add_u32 v%d, v%d, 4, v%d" % (v.t0, v.t1, v.t0))
    e("v_and_b32 v%d, 16, v0" % v.t1)
    e("v_lshl_add_u32 v%d, v%d, 2, v%d" % (v.t0, v.t1, v.t0))
    e("v_bfe_u32 v%d, v0, 7, 1" % v.t1)
    e("v_lshl_add_u32 v%d, v%d, 16, v%d" % (v.kd0, v.t1, v.t0))
    e("v_add_u32 v%d, 0x80, v%d" % (v.kd1, v.kd0))
    emit(headmap())
    e("s_lshl_b32 s%d, s%d, 6" % (s.dslot, s.wave))
    e("s_and_b32 s%d, s%d, 0x3000" % (s.dslot, s.dslot))
    e("s_mov_b32 s%d, 0x20000" % (s.sq + 3))
    e("s_mov_b32 s%d, s%d" % (s.kA + 3, s.sq + 3))
    e("s_mov_b32 s%d, 0" % s.soff)
    if OPT.get("thr", "0xf000") != "0":
        e("s_lshr_b32 vcc_lo, %s, s%d" % (OPT.get("thr", "0xf000"), s.foff))
        if OPT.get("thrr"):
            e("s_lshr_b32 s%d, %s, s%d" % (s.t0, OPT["thrr"], s.foff))
            e("s_and_b32 vcc_lo, vcc_lo, s%d" % s.t0)
        if OPT.get("thro"):
            e("s_lshr_b32 s%d, %s, s%d" % (s.t0, OPT["thro"], s.foff))
            e("s_or_b32 vcc_lo, vcc_lo, s%d" % s.t0)
        e("s_and_b32 vcc_lo, vcc_lo, 1")
        if OPT.get("c1t"):
            e("s_and_b32 s%d, s2, 6" % s.t0)
            e("s_cselect_b32 vcc_lo, vcc_lo, 0")
        e("s_mov_b32 vcc_hi, 0")
    e("s_add_u32 s%d, s%d, %d" % (s.d0, s.dslot, QBASE))
    emit(flag_init())
    e("s_waitcnt lgkmcnt(0)")
    emit(far_load())
    mark("karg")
    THR = OPT.get("thr", "0xf000")
    _th = [0]

    def throttle():
        if THR == "0":
            return []
        _th[0] += 1
        return ["s_cbranch_vccz L_th%d" % _th[0], "s_waitcnt vmcnt(%s)" % OPT.get("thn", "4"), "L_th%d:" % _th[0]]

    def qtile(i):
        w = N + 5 + i // 2
        r = ["s_bitcmp1_b32 s%d, %d" % (w, 12 + 16 * (i % 2)),
             "s_cselect_b32 s%d, s%d, s%d" % (s.sq + 2, s.qeb, s.qea),
             "s_bfe_u32 s%d, s%d, 0x%x" % (s.t0, w, 0xc0000 + 16 * (i % 2)),
             "s_add_u32 m0, s%d, %d" % (s.d0, (i // 4) * 32768 + (i % 4) * 1024),
             "s_lshl_b32 s%d, s%d, 12" % (s.t0, s.t0),
             "buffer_load_dwordx4 v%d, %s, s%d offen %s lds" % (v.kd0, sr(s.sq, 4), s.t0, LDF_Q),
             "s_add_u32 m0, m0, 0x4000", "s_nop 0",
             "buffer_load_dwordx4 v%d, %s, s%d offen %s lds" % (v.kd1, sr(s.sq, 4), s.t0, LDF_Q)]
        return r
    e("s_add_u32 s%d, s%d, s%d" % (s.qea, N + 0, N + 1))
    e("s_add_u32 s%d, s%d, s%d" % (s.qeb, N + 2, N + 3))
    e("s_add_u32 s%d, s%d, s%d" % (s.sq, s.q, s.hoff))
    e("s_addc_u32 s%d, s%d, 0" % (s.sq + 1, s.q + 1))
    emit(qtile(0))
    e("s_add_u32 s%d, s%d, s%d" % (N + 0, N + 0, s.hoff))
    e("s_add_u32 s%d, s%d, s%d" % (s.kA, s.k, N + 0))
    e("s_addc_u32 s%d, s%d, 0" % (s.kA + 1, s.k + 1))
    e("s_sub_u32 s%d, s%d, 1024" % (s.kA, s.kA))
    e("s_subb_u32 s%d, s%d, 0" % (s.kA + 1, s.kA + 1))
    e("s_add_u32 s%d, s%d, 1024" % (s.kA + 2, N + 1))
    emit(chunk(0, True, flag=False))
    for i in range(1, QL):
        emit((throttle() if i > 1 else []) + qtile(i))
    QLATE = sum((qtile(i) for i in range(QL, 4)), [])
    mark("iss")
    for b in (s.kB, s.vA, s.vB):
        e("s_mov_b32 s%d, s%d" % (b + 3, s.sq + 3))
    e("s_add_u32 s%d, s%d, s%d" % (N + 2, N + 2, s.hoff))
    e("s_add_u32 s%d, s%d, s%d" % (s.kB, s.k, N + 2))
    e("s_addc_u32 s%d, s%d, 0" % (s.kB + 1, s.k + 1))
    e("s_mov_b32 s%d, s%d" % (s.kB + 2, N + 3))
    e("s_and_b32 s%d, s%d, 0xfffff000" % (s.stepb, N + 4))
    e("s_lshr_b32 s%d, s%d, 4" % (s.rdw, s.dslot))
    e("s_add_u32 s%d, s%d, %d" % (s.rdw, s.rdw, RDYB))
    e("v_mov_b32 v%d, L_cnt-L_pc" % v.fo)
    for (srd, off, nr, d) in ((s.vA, N + 0, N + 1, 3072), (s.vB, N + 2, N + 3, 2048)):
        e("s_add_u32 s%d, s%d, %d" % (s.t0, s.stepb, d))
        e("s_add_u32 s%d, s%d, s%d" % (srd, s.vv, off))
        e("s_addc_u32 s%d, s%d, 0" % (srd + 1, s.vv + 1))
        e("s_sub_u32 s%d, s%d, s%d" % (srd, srd, s.t0))
        e("s_subb_u32 s%d, s%d, 0" % (srd + 1, srd + 1))
        e("s_add_u32 s%d, s%d, s%d" % (srd + 2, nr, s.t0))
    e("v_bfe_u32 v%d, v0, 2, 2" % v.t0)
    e("v_lshlrev_b32 v%d, 12, v%d" % (v.t0, v.t0))
    e("v_and_b32 v%d, 3, v0" % v.t1)
    e("v_lshl_add_u32 v%d, v%d, 4, v%d" % (v.t0, v.t1, v.t0))
    e("v_and_b32 v%d, 48, v0" % v.t1)
    e("v_lshl_add_u32 v%d, v%d, 2, v%d" % (v.t0, v.t1, v.t0))
    e("v_bfe_u32 v%d, v0, 6, 2" % v.t1)
    e("v_lshl_add_u32 v%d, v%d, 14, v%d" % (v.vd0, v.t1, v.t0))
    e("v_add_u32 v%d, 0x10000, v%d" % (v.vd1, v.vd0))
    e("s_setprio %s" % OPT.get("hprio", "3"))
    e("s_branch L_common")
    lab("L_mainpro")
    for b in (s.sq, s.kA, s.kB, s.vA, s.vB):
        e("s_mov_b64 %s, s[0:1]" % sr(b, 2))
        e("s_mov_b32 s%d, 0" % (b + 2))
        e("s_mov_b32 s%d, 0x20000" % (b + 3))
    for r in (v.kd0, v.kd1, v.vd0, v.vd1, v.fo):
        e("v_mov_b32 v%d, 0" % r)
    emit(headmap())
    emit(flag_init())
    e("s_waitcnt lgkmcnt(0)")
    emit(far_load())
    lab("L_common")
    e("s_lshr_b32 s%d, s%d, 6" % (s.wave, s.wave))
    e("v_and_b32 v%d, 63, v0" % L)
    e("v_and_b32 v%d, 7, v0" % v.t0)
    e("v_mul_u32_u24 v%d, 0x104, v%d" % (v.t0, v.t0))
    e("v_add_u32 v%d, %d, v%d" % (v.pra, PRGB, v.t0))
    e("v_add_u32 v%d, 0x1000, v%d" % (v.prga, v.prga))
    mark("prebar")
    e("s_barrier")
    if SPIN == "postbar":
        e("s_memrealtime s[%d:%d]" % (s.stp, s.stp + 1))
    e("s_cmp_lt_u32 s%d, 4" % s.wave)
    e("s_cbranch_scc1 L_common2")
    QH = qtile(4) + qtile(5)
    C2 = (QLATE if QLC == 2 else []) + (QH if QE == 2 else []) + chunk(0) + (QLATE if QLC == 3 else [])
    emit(FLAG + throttle() + (QH if QE == 1 else []) + chunk(1, True) + STEP_ADV + (C2 if OPT.get("c2early") else []))
    lab("L_common2")
    mark("bar")
    e("v_bfe_u32 v%d, v%d, 4, 1" % (v.t0, L))
    e("v_lshlrev_b32 v%d, 13, v%d" % (v.t0, v.t0))
    e("v_bfe_u32 v%d, v%d, 1, 1" % (v.t1, L))
    e("v_lshl_add_u32 v%d, v%d, 12, v%d" % (v.t0, v.t1, v.t0))
    e("v_and_b32 v%d, 1, v%d" % (v.t1, L))
    e("v_lshl_add_u32 v%d, v%d, 9, v%d" % (v.t0, v.t1, v.t0))
    e("v_bfe_u32 v%d, v%d, 2, 2" % (v.t1, L))
    e("v_lshl_add_u32 v%d, v%d, 6, v%d" % (v.t0, v.t1, v.t0))
    e("v_lshrrev_b32 v%d, 5, v%d" % (v.t1, L))
    e("v_and_b32 v%d, 3, v%d" % (v.t2, L))
    e("v_xor_b32 v%d, v%d, v%d" % (v.t1, v.t1, v.t2))
    e("v_lshl_add_u32 v%d, v%d, 4, v%d" % (v.ka0r, v.t1, v.t0))
    e("v_xor_b32 v%d, 32, v%d" % (v.ka1r, v.ka0r))
    e("v_lshrrev_b32 v%d, 5, v%d" % (v.t0, L))
    e("v_lshlrev_b32 v%d, 12, v%d" % (v.t0, v.t0))
    e("v_bfe_u32 v%d, v%d, 2, 2" % (v.t1, L))
    e("v_lshl_add_u32 v%d, v%d, 6, v%d" % (v.t0, v.t1, v.t0))
    e("v_bfe_u32 v%d, v%d, 4, 1" % (v.t1, L))
    e("v_lshl_add_u32 v%d, v%d, 5, v%d" % (v.t0, v.t1, v.t0))
    e("v_lshl_add_u32 v%d, v%d, 3, v%d" % (v.t0, v.t2, v.t0))
    e("v_add_u32 v%d, 0x800, v%d" % (v.var, v.t0))
    e("s_mov_b32 s%d, 0x%x" % (s.thr, f2u(THRESH)))
    e("v_mul_u32_u24 v%d, 0x104, v%d" % (v.t1, v.t2))
    e("v_add_u32 v%d, %d, v%d" % (v.rdya, RDYB, v.t1))
    e("s_mov_b32 s%d, 0x8000" % s.guard)
    e("v_mov_b32 v%d, 0" % v.rdy)
    e("s_waitcnt lgkmcnt(0)")
    e("s_and_b32 s%d, s%d, 0xff" % (s.mu, Fa + 0))
    e("s_sub_u32 s%d, s%d, s%d" % (s.t0, Fa + 0, s.mu))
    e("s_add_u32 s%d, s%d, s%d" % (s.t0, s.t0, s.hoff))
    e("s_add_u32 s%d, s%d, s%d" % (s.so, s.out, s.t0))
    e("s_addc_u32 s%d, s%d, 0" % (s.so + 1, s.out + 1))
    e("s_mov_b32 s%d, s%d" % (s.so + 2, Fa + 1))
    e("s_mov_b32 s%d, 0x20000" % (s.so + 3))
    e("s_and_b32 s%d, s%d, 0xff" % (s.n, N + 4))
    e("s_bfe_u32 s%d, s%d, 0x40008" % (s.t3, Fa + 2))
    e("s_cbranch_scc1 L_work")
    e("v_mov_b32 v%d, %d" % (v.prg, BIG))
    e(PRGW)
    e("s_cmp_lt_u32 s%d, 4" % s.wave)
    e("s_cbranch_scc1 %s" % ("L_probe" if OPT.get("probe") else "L_fin"))
    e("s_branch L_presig")
    if OPT.get("probe"):
        lab("L_probe")
        for kk in range(8, 60, 2):
            e("s_sleep 12")
            e("s_memrealtime s[%d:%d]" % (s.stp, s.stp + 1))
            e("s_memtime s[%d:%d]" % (s.t0, s.t0 + 1))
            e("s_waitcnt lgkmcnt(0)")
            e("v_writelane_b32 v%d, s%d, %d" % (v.st, s.stp, kk))
            e("v_writelane_b32 v%d, s%d, %d" % (v.st, s.t0, kk + 1))
        e("s_branch L_fin")
    lab("L_work")
    mark("work")
    for r in range(0, 64, 2):
        e("v_pk_mov_b32 %s, 0, 0" % vr(v.O + r, 2))
    e("s_and_b32 s%d, s%d, 0xff" % (s.U, Fa + 2))
    e("s_bfe_u32 s%d, s%d, 0x4000c" % (s.inc, Fa + 2))
    e("s_and_b32 s%d, s%d, 0xfffff" % (s.reg, Fa + 4))
    e("s_bfe_u32 s%d, s%d, 0x80010" % (s.t0, Fa + 2))
    e("s_sub_u32 s%d, s%d, 1" % (s.t0, s.t0))
    e("v_lshrrev_b32 v%d, 5, v%d" % (v.t0, L))
    e("v_lshlrev_b32 v%d, 2, v%d" % (v.t0, v.t0))
    e("v_sub_u32 v%d, s%d, v%d" % (v.t0, s.t0, v.t0))
    e("v_mov_b32 v%d, 0xff800000" % v.t1)
    for r in range(16):
        cst = 8 * (r // 4) + r % 4
        e("v_subrev_u32 v%d, %d, v%d" % (v.B + r, cst, v.t0))
        e("v_ashrrev_i32 v%d, 31, v%d" % (v.B + r, v.B + r))
        e("v_and_b32 v%d, v%d, v%d" % (v.B + r, v.t1, v.B + r))
    e("s_bfe_u32 s%d, s%d, 0x20014" % (s.t0, Fa + 4))
    e("s_lshl_b32 s%d, s%d, 10" % (s.t0, s.t0))
    e("s_bfe_u32 s%d, s%d, 0x10016" % (s.t1, Fa + 4))
    e("s_lshl_b32 s%d, s%d, 15" % (s.t1, s.t1))
    e("s_add_u32 s%d, s%d, s%d" % (s.t0, s.t0, s.t1))
    e("s_add_u32 s%d, s%d, %d" % (s.koff, s.t0, QBASE))
    e("v_add_u32 v%d, s%d, v%d" % (v.t2, s.koff, v.ka0r))
    e("v_add_u32 v%d, s%d, v%d" % (v.t3, s.koff, v.ka1r))
    e("s_cmp_lg_u32 s%d, 1" % s.t3)
    e("s_cselect_b32 s%d, 1, 0" % s.m1)
    e("s_bfe_u32 s%d, s%d, 0x2001a" % (s.t0, Fa + 4))
    e("s_lshl_b32 s%d, s%d, 15" % (s.astep, s.t0))
    e("s_bfe_u32 s%d, s%d, 0x10019" % (s.t2, Fa + 4))
    e("s_bfe_u32 s%d, s%d, 0x10018" % (s.t0, Fa + 4))
    e("s_lshl_b32 s%d, s%d, 10" % (s.t0, s.t0))
    e("s_mul_i32 s%d, s%d, s%d" % (s.t1, s.t0, s.m1))
    e("s_sub_u32 s%d, s%d, s%d" % (s.t0, s.t0, s.t1))
    e("s_lshl_b32 s%d, s%d, 15" % (s.voff, s.t2))
    e("s_add_u32 s%d, s%d, s%d" % (s.koff, s.voff, s.t0))
    e("s_add_u32 s%d, s%d, 0x8000" % (s.voff, s.voff))
    e("v_add_u32 v%d, s%d, v%d" % (v.ka0r, s.t1, v.ka0r))
    e("v_add_u32 v%d, s%d, v%d" % (v.ka1r, s.t1, v.ka1r))
    e("s_bfe_u32 s%d, s%d, 0x2001c" % (s.t0, Fa + 2))
    for j in (3, 2, 1, 0):
        e("s_add_u32 s%d, s%d, %d" % (s.col, s.t0, j))
        e("s_and_b32 s%d, s%d, 3" % (s.col, s.col))
        e("s_lshl_b32 s%d, s%d, 8" % (s.col, s.col))
        e("s_add_u32 s%d, s%d, s%d" % (s.col, s.col, s.t1))
        e("v_add_u32 v%d, s%d, v%d" % (v.var + j, s.col, v.var))
    emit(vaddr() + kaddr())
    e("s_and_b32 s%d, s%d, 0xff" % (s.t0, Fa + 3))
    e("v_mov_b32 v%d, s%d" % (v.prg, s.t0))
    e("s_bfe_u32 s%d, s%d, 0x80010" % (s.need, Fa + 3))
    e("s_cmp_lt_u32 s%d, 4" % s.wave)
    e("s_cbranch_scc1 L_sig0")
    e(PRGW)
    lab("L_presig")
    mark("presig")
    emit(([] if OPT.get("c2early") else C2) + (QH if QE == 0 else []) + chunk(1) + STEP_ADV)
    e("s_mov_b32 s%d, 4" % s.iss)
    mark("c3")
    stamp()
    e("s_cmp_eq_u32 s%d, 0" % s.t3)
    e("s_cbranch_scc1 L_hdone")
    emit(sync_call("L_head"))
    lab("L_sig0")
    mark("msetup")
    e("s_bfe_u32 s%d, s%d, 0x80008" % (s.t0, Fa + 3))
    e("s_%s_u32 s%d, s%d, s%d" % ("sub" if OPT.get("pubq") else "add", s.t0, s.t0, s.m1))
    e("s_lshl_b32 s%d, s%d, 2" % (s.t0, s.t0))
    e("s_add_u32 s%d, s%d, L_cnt-L_pc-4" % (s.t0, s.t0))
    e("v_mov_b32 v%d, s%d" % (v.fo, s.t0))
    e("s_lshl_b32 s%d, s%d, 8" % (s.t0, s.wave))
    e("s_add_u32 m0, s%d, %d" % (s.t0, PRGB))
    stamp()
    emit(poll_rdy())
    mark("sig0")
    stamp()
    lab("L_head")
    qr = [kread(t, v.Q).replace("v%d " % v.ka0, "v%d " % v.t2).replace("v%d " % v.ka1, "v%d " % v.t3) for t in range(8)]
    kr = [kread(t, v.KF) for t in range(8)]
    for t in range(7):
        emit([qr[t], kr[t]])
    e("s_add_u32 s%d, s%d, s%d" % (s.t0, s.koff, s.astep))
    e("s_mul_i32 s%d, s%d, s%d" % (s.koff, s.t0, s.m1))
    e("s_waitcnt lgkmcnt(12)")
    e(QK0)
    emit([qr[7], kr[7]])
    for t in range(1, 8):
        e("s_waitcnt lgkmcnt(%d)" % (14 - 2 * t + (1 if t >= 2 else 0)))
        e(qk(t))
        if t == 1:
            e(RDYR)
            emit(kaddr())
            emit(adv(s.koff))
        if t == 2:
            e("v_and_b32 v%d, 31, v%d" % (v.t2, L))
            e("v_lshlrev_b32 v%d, 12, v%d" % (v.t2, v.t2))
            e("v_sub_u32 v%d, s%d, v%d" % (v.t2, Fa + 1, v.t2))
            e("v_ashrrev_i32 v%d, 31, v%d" % (v.t2, v.t2))
            e("v_and_b32 v%d, 0xff800000, v%d" % (v.t2, v.t2))
        if t == 3:
            e("v_mov_b32 v%d, L_cnt-L_pc+8" % v.t3)
            e("s_bfe_u32 s%d, s%d, 0x80008" % (s.t0, Fa + 3))
            e("v_mov_b32 v%d, s%d" % (v.prg, s.t0))
            e("s_mov_b32 s%d, s%d" % (s.need, Fa + 6))
    e("s_cmp_lt_u32 s%d, 4" % s.wave)
    e("s_waitcnt lgkmcnt(0)")
    e("s_cbranch_scc0 L_head2")
    e("global_load_lds_dword v%d, %s" % (v.t3, sr(s.pc, 2)))
    emit(poll_rdy())
    emit(kr)
    emit(kaddr())
    lab("L_head2")
    if OPT.get("lowh"):
        e("s_setprio 0")
    e("s_lshr_b32 s%d, s%d, 24" % (s.need, Fa + 3))
    e("s_nop 7")
    e("v_max3_f32 v%d, v%d, v%d, v%d" % (v.t0, v.S, v.S + 1, v.S + 2))
    e("v_max3_f32 v%d, v%d, v%d, v%d" % (v.t1, v.S + 3, v.S + 4, v.S + 5))
    for r in range(6, 14, 4):
        e("v_max3_f32 v%d, v%d, v%d, v%d" % (v.t0, v.t0, v.S + r, v.S + r + 1))
        e("v_max3_f32 v%d, v%d, v%d, v%d" % (v.t1, v.t1, v.S + r + 2, v.S + r + 3))
    e("v_max3_f32 v%d, v%d, v%d, v%d" % (v.t0, v.t0, v.S + 14, v.S + 15))
    e("v_max_f32 v%d, v%d, v%d" % (v.t0, v.t0, v.t1))
    e("v_mov_b32 v%d, v%d" % (v.t1, v.t0))
    e(RDYR)
    e("s_nop 0")
    e("v_permlane32_swap_b32 v%d, v%d" % (v.t0, v.t1))
    e("s_nop 1")
    e("v_max_f32 v%d, v%d, v%d" % (v.t0, v.t0, v.t1))
    e("v_fmamk_f32 v%d, v%d, 0x%x, v%d" % (v.nmc, v.t0, f2u(-C_SCALE), v.t2))
    for r in range(16):
        e(F(r))
    emit([ex(i) for i in range(8)] + [add(i) for i in range(1, 7)] + [cvt(0), cvt(1), cvt(2)])
    e("s_cmp_lt_u32 s%d, 4" % s.wave)
    e("s_waitcnt lgkmcnt(0)")
    e("s_cbranch_scc0 L_hlp_in")
    stamp()
    emit(poll_rdy())
    mark("loop")
    stamp()
    e("s_cmp_eq_u32 s%d, 1" % s.m1)
    e("s_cbranch_scc1 L_odd_m")
    out.append(".p2align %s" % OPT.get("al", "4"))
    for _ in range(int(OPT.get("sh", "0"))):
        e("s_nop 0")
    body("even")
    e("s_cbranch_vccnz L_hnd_even")
    body("odd")
    e("s_cbranch_vccz L_even_m")
    emit(poll_rdy())
    e("s_cmp_le_u32 s%d, 1" % s.U)
    e("s_cbranch_scc1 L_ho1")
    e("s_cmp_eq_u32 s%d, 0" % s.m1)
    e("s_cbranch_scc0 L_odd_m")
    e("s_branch L_even_m")
    lab("L_ho1")
    e("s_cmp_eq_u32 s%d, 0" % s.m1)
    e("s_cbranch_scc0 L_ho2")
    e("v_mov_b32 v%d, v%d" % (v.va + 1, v.va))
    e("v_add_u32 v%d, 0x400, v%d" % (v.va, v.va))
    e("s_branch L_last")
    lab("L_hnd_even")
    emit(poll_rdy())
    e("s_cmp_gt_u32 s%d, 1" % s.U)
    e("s_cbranch_scc1 L_odd_m")
    e("v_add_u32 v%d, 0x400, v%d" % (v.var, v.var))
    lab("L_ho2")
    emit(adv(s.voff))
    e("v_add_u32 v%d, s%d, v%d" % (v.va + 1, s.voff, v.var))
    e("s_branch L_last")
    lab("L_hlp_in")
    mark("hlpin")
    e(PRGW)
    stamp()
    emit(sync_call())
    stamp()
    for t in range(8):
        e(kread(t, v.KF))
    emit(kaddr())
    e("s_waitcnt lgkmcnt(4)")
    e("s_branch L_hnd_hlp")
    if OPT.get("alh"):
        out.append(".p2align %s" % OPT["alh"])
    for _ in range(int(OPT.get("shh", "0"))):
        e("s_nop 0")
    body("hlp")
    lab("L_hnd_hlp")
    e("s_cmp_gt_u32 s%d, 1" % s.U)
    e("s_cbranch_scc1 L_hlp_m")
    e("s_cmp_eq_u32 s%d, 0" % s.U)
    e("s_cbranch_scc1 L_tail")
    e(QK0M)
    e("s_branch L_hlp_a")
    tw, tr0, oo, rl, WA, CD = v.ka1, v.va + 2, v.ka1r, v.B + 8, v.B, v.VF

    def lsum():
        return ["v_mov_b32 v%d, v%d" % (v.t0, v.l), "s_nop 1",
                "v_permlane32_swap_b32 v%d, v%d" % (v.l, v.t0), "s_nop 1",
                "v_add_f32 v%d, v%d, v%d" % (v.l, v.l, v.t0)]

    def st_addr():
        a, b, c, d = v.t0, v.t1, v.t2, v.t3
        r = ["v_and_b32 v%d, 31, v%d" % (a, L),
             "v_lshrrev_b32 v%d, 2, v%d" % (b, L),
             "v_and_b32 v%d, 7, v%d" % (c, L),
             "v_lshrrev_b32 v%d, 3, v%d" % (d, L),
             "v_lshlrev_b32 v%d, 7, v%d" % (a, a),
             "v_xor_b32 v%d, v%d, v%d" % (b, b, L),
             "v_xor_b32 v%d, v%d, v%d" % (tr0, c, d),
             "v_and_b32 v%d, 8, v%d" % (b, b),
             "v_lshlrev_b32 v%d, 4, v%d" % (c, c),
             "v_add3_u32 v%d, v%d, v%d, s%d" % (a, a, b, s.reg),
             "v_lshlrev_b32 v%d, 4, v%d" % (tr0, tr0),
             "v_lshlrev_b32 v%d, 7, v%d" % (b, d),
             "v_add_u32 v%d, v%d, v%d" % (WA, a, c),
             "v_lshl_add_u32 v%d, v%d, 12, v%d" % (oo, d, c),
             "v_add3_u32 v%d, v%d, v%d, s%d" % (tr0, tr0, b, s.reg)]
        r += ["v_xor_b32 v%d, %d, v%d" % (WA + k, k * 16, WA) for k in range(1, 8)]
        r += ["v_add_u32 v%d, 0x800, v%d" % (tw, tr0)]
        return r

    def q_mul(bb, pk=True):
        o = v.O + 16 * bb
        if pk:
            return ["v_pk_mul_f32 %s, %s, %s op_sel_hi:[1,0]" % (vr(o + i, 2), vr(o + i, 2), vr(rl, 2)) for i in range(0, 16, 2)]
        return ["v_mul_f32 v%d, v%d, v%d" % (o + i, o + i, rl) for i in range(16)]

    def q_cvt(bb):
        return ["v_cvt_pk_bf16_f32 v%d, v%d, v%d" % (CD + 8 * bb + i, v.O + 16 * bb + 2 * i, v.O + 16 * bb + 2 * i + 1) for i in range(8)]

    def q_wr(bb):
        return ["ds_write_b64 v%d, %s" % (WA + (4 * bb + g) % 8, vr(CD + 8 * bb + 2 * g, 2)) for g in range(4)]

    def mix(valu, other):
        r, n, m = [], len(valu), len(other)
        k = 0
        for i, x in enumerate(valu):
            while k < m and k * n <= i * m:
                r.append(other[k]); k += 1
            r.append(x)
        return r + other[k:]

    def pack_q(bb, norm=True):
        return (q_mul(bb) if norm else []) + q_cvt(bb) + q_wr(bb)

    def rd_half(hh):
        return [("ds_read2_b64 %s, v%d offset0:129 offset1:128" if k % 2 else "ds_read_b128 %s, v%d")
                % (vr(v.KF + 16 * hh + 4 * k, 4), tw if k >= 2 else tr0) for k in range(4)]

    def st_one(hh, k):
        return ["buffer_store_dwordx4 %s, v%d, %s, s%d offen offset:%d %s" % (
                    vr(v.KF + 16 * hh + 4 * k, 4), oo, sr(s.so, 4), s.col + k if k < 3 else s.t1, 128 * hh,
                    STF if hh == 0 else OPT.get("st2", OPT.get("st", "sc1")).replace("+", " ").replace("none", ""))]

    sa = st_addr()
    cols = ["s_mov_b32 s%d, 0" % s.col, "s_mov_b32 s%d, 0x8000" % (s.col + 1),
            "s_mov_b32 s%d, 0x10000" % (s.col + 2), "s_mov_b32 s%d, 0x18000" % s.t1]
    RCP = "v_rcp_f32 v%d, v%d" % (rl, v.l)
    GL = "global_load_lds_dword v%d, %s" % (v.fo, sr(s.pc, 2))
    FO31 = "v_mov_b32 v%d, L_cnt-L_pc+124" % v.fo
    lab("L_tail")
    mark("tail")
    if not OPT.get("nolowt"):
        e("s_setprio 0")
    k = newret()
    for i in range(12):
        e(vread(i))
    emit([ex(8), add(7), cvt(3)] + [ex(i) for i in range(9, 16)])
    e("v_mov_b32 v%d, %d" % (v.prg, BIG))
    for i in range(12, 16):
        e(vread(i))
    e(PRGW)
    emit([add(i) for i in range(8, 16)] + [CMP, cvt(4), "s_mov_b32 s%d, %d" % (s.ret, k), "s_cbranch_vccnz L_resc",
                                           "L_ret%d:" % k, cvt(5), cvt(6), cvt(7), LADD])
    e("s_waitcnt lgkmcnt(0)")
    l16, l8, cnt, xr, one = v.ka0, v.ka0r, v.var + 1, v.var + 2, v.var + 3
    prep = lsum() + ["v_lshlrev_b32 v%d, 4, v%d" % (l16, L), "v_lshlrev_b32 v%d, 3, v%d" % (l8, L),
                     "s_lshl_b32 s%d, s%d, 9" % (s.t0, s.wave), "s_add_u32 s%d, s%d, %d" % (s.t0, s.t0, MLBASE - 2048),
                     "v_add_u32 v%d, s%d, v%d" % (v.var, s.t0, l8),
                     "v_add_u32 v%d, s%d, v%d" % (xr, s.reg, l16),
                     "ds_write_b64 v%d, %s" % (v.var, vr(v.nmc, 2))]
    for j in range(3):
        prep += ["s_lshr_b32 s%d, s%d, 24" % (s.t0, Fa + 5 + j), "s_lshl_b32 s%d, s%d, 9" % (s.t0, s.t0),
                 "s_add_u32 s%d, s%d, %d" % (s.t0, s.t0, MLBASE), "v_add_u32 v%d, s%d, v%d" % (v.E + j, s.t0, l8),
                 "s_and_b32 s%d, s%d, 0xffffff" % (s.t0, Fa + 5 + j), "v_add_u32 v%d, s%d, v%d" % (v.E + 4 + j, s.t0, l16)]
    prep += ["s_lshr_b32 s%d, s%d, 30" % (s.t0, Fa + 2), "s_lshl2_add_u32 s%d, s%d, %d" % (s.t0, s.t0, CNTB),
             "v_mov_b32 v%d, s%d" % (cnt, s.t0), "v_mov_b32 v%d, 1" % one] + sa
    prep += ["ds_read_b32 v%d, v%d" % (v.ps, v.pra)]
    nper = cdiv(len(prep), 8)
    for g, i in enumerate((3, 7, 2, 6, 1, 5, 0, 4)):
        emit([pv(i)] + prep[g * nper:(g + 1) * nper])
    e("s_cmp_gt_u32 s%d, s%d" % (s.iss, s.n))
    e("s_cbranch_scc1 L_hfree")
    e("s_branch L_hdone")
    lab("L_solo")
    emit([RCP] + cols + ["s_nop 4"] + q_mul(0) + q_cvt(0) + ["s_branch L_tail3"])
    V = lambda i: vread(i, 0, True)
    W = lambda n: "s_waitcnt lgkmcnt(%d)" % n

    def V2(i):
        t, bb, ss = i // 8, (i // 2) % 4, i % 2
        return "ds_read_b64_tr_b16 %s, v%d offset:%d" % (vr(v.KF + (t * 4 + bb) * 4 + ss * 2, 2), v.va + 1,
                                                         (4 * t + 2 * ss) * 4096 + bb * 256)

    def pv2(i):
        return pv(i).replace(vr(v.VF + 4 * i, 4), vr(v.KF + 4 * i, 4))
    k = newret()
    q = [
        [NEEDINC, "s_lshl2_add_u32 s%d, s%d, L_cnt-L_pc" % (s.t0, s.mu), V(0), V(1), ex(8), add(7), cvt(3)],
        ["s_mov_b32 s%d, %d" % (s.ret, k), V(2), V(3), ex(9), ex(10), "v_mov_b32 v%d, s%d" % (v.fo, s.t0)],
        [W(4), GL, V(4), V(5), ex(11), add(8), add(9)],
        [cols[0], V(6), V(7), RDYR, ex(12), ex(13)],
        [cols[1], V(8), V(9), ex(14), add(10), add(11)],
        [cols[2], V(10), V(11), ex(15), add(12), add(13)],
        [W(4), V(12), V(13), add(14), add(15), CMP, cvt(4)],
        ["s_cbranch_vccnz L_resc", "L_ret%d:" % k, V(14), V(15), LADD, cvt(5), cvt(6), cvt(7)],
    ]
    lab("L_last")
    mark("tail")
    for t in range(8):
        e(QK0M if t == 0 else qk(t))
        emit(q[t])
    e(pv(0))
    emit(poll_rdy())
    e("s_bitcmp1_b32 s%d, 31" % (Fa + 4))
    e("s_cbranch_scc1 L_lasts")
    k = newret()
    vo = [0, 1, 8, 9, 2, 3, 10, 11, 4, 5, 12, 13, 6, 7, 14, 15]
    v2 = [V2(i) for i in vo]
    p = [
        v2[0:3] + [F(0), F(1), F(2), F(3)],
        [cols[3]] + v2[3:5] + [ex(0), ex(1), F(4), F(5), F(6), F(7)],
        ["s_mov_b32 s%d, %d" % (s.ret, k)] + v2[5:7] + [ex(2), ex(3), add(1), F(8), F(9), F(10)],
        [W(7)] + v2[7:10] + [ex(4), ex(5), add(2), add(3), F(11), F(12)],
        [None] + v2[10:12] + [ex(6), ex(7), cvt(0), cvt(1), add(4), add(5), F(13)],
        [None] + v2[12:14] + [ex(8), ex(9), cvt(2), add(6), add(7), cvt(3), F(14), F(15)],
        [None] + v2[14:16] + [ex(10), ex(11), ex(12), add(8), add(9), FO31],
        [None, ex(13), ex(14), ex(15), add(10), add(11), add(12), add(13), add(14), add(15), CMP, cvt(4), cvt(5), cvt(6), cvt(7),
         "s_cbranch_vccnz L_resc", "L_ret%d:" % k, LADD, W(0)],
    ]
    emit(p[0])
    for i in range(1, 8):
        e(pv(i))
        emit(p[i])
    m0_, m1_, c0_ = q_mul(0, False), q_mul(1, False), q_cvt(0)
    emit([pv2(0), GL] + lsum() + [RCP])
    emit([pv2(4)] + sa[0:8])
    emit([pv2(1)] + sa[8:16])
    emit([pv2(5)] + sa[16:])
    emit([pv2(2)] + m0_[0:6])
    emit([pv2(6)] + m0_[6:12])
    emit([pv2(3)] + m0_[12:] + c0_[:2])
    emit([pv2(7)] + c0_[2:])
    lab("L_tail3")
    stamp(5)
    emit(mix(q_mul(1) + q_cvt(1), q_wr(0)))
    emit(mix(q_mul(2) + q_cvt(2), q_wr(1) + rd_half(0)))
    emit(mix(q_mul(3) + q_cvt(3), q_wr(2) + ["s_waitcnt lgkmcnt(4)"] + st_one(0, 0) + st_one(0, 1)))
    emit(q_wr(3) + rd_half(1) + st_one(0, 2) + st_one(0, 3))
    stamp(4)
    for k in range(4):
        emit(["s_waitcnt lgkmcnt(%d)" % (3 - k)] + st_one(1, k))
    k = newret()
    v2 = [V2(i) for i in range(8)]
    ps_ = [
        v2[0:3] + [F(0), F(1), F(2), F(3)],
        [cols[3]] + v2[3:5] + [ex(0), F(4), F(5), F(6), F(7)],
        ["s_mov_b32 s%d, %d" % (s.ret, k)] + v2[5:7] + [ex(1), ex(2), FO31],
        [W(7)] + v2[7:8] + [ex(3), ex(4), add(1), add(2)],
        [None, ex(5), ex(6), cvt(0), add(3), cvt(1)],
        [None, ex(7), add(4), add(5), cvt(2), add(6)],
        [None, add(7), cvt(3), CMP] + sa[0:4],
        [W(0), GL] + sa[4:10] + ["s_cbranch_vccnz L_resc8", "L_ret%d:" % k, LADD],
    ]
    blk = ["L_lasts:"] + ps_[0]
    for i in range(1, 8):
        blk += [pv(i)] + ps_[i]
    ls_ = [x.replace("v%d" % v.t0, "v%d" % v.ps) for x in lsum()]
    blk += [pv2(0)] + ls_ + [RCP] + [pv2(1)] + sa[10:17] + [pv2(2)] + sa[17:] + [pv2(3)] + q_mul(0, False) + q_cvt(0) + ["s_branch L_tail3"]
    ool.append(blk)
    ool.append(["L_resc8:"] + [F(r) for r in range(8, 16)] + ["s_branch L_resc"])
    lab("L_fin")
    if SPIN:
        mark("st")
        e("s_waitcnt vmcnt(0)")
        mark("end")
        if SPIN == "glob":
            e("s_load_dwordx2 s[98:99], s[0:1], 40")
            e("s_not_b32 s%d, s%d" % (s.t0, s.ws))
            e("v_mov_b32 v%d, s%d" % (v.t1, s.t0))
            e("v_mov_b32 v%d, 0" % v.t0)
            e("s_waitcnt lgkmcnt(0)")
            e("s_cmp_lg_u32 s%d, 0" % s.wave)
            e("s_cbranch_scc1 L_g1")
            e("s_mov_b64 exec, 1")
            e("global_atomic_umax v%d, v%d, s[98:99]" % (v.t0, v.t1))
            e("s_mov_b64 exec, -1")
            lab("L_g1")
        e("s_sub_u32 s%d, s%d, s%d" % (s.t0, s.stp, s.ws))
        e("s_mul_i32 s%d, s%d, %s" % (s.t0, s.t0, OPT.get("amp", "2")))
        if OPT.get("wsel"):
            e("s_lshr_b32 s%d, %s, s%d" % (s.t1, OPT["wsel"], s.wave))
            e("s_and_b32 s%d, s%d, 1" % (s.t1, s.t1))
            e("s_mul_i32 s%d, s%d, s%d" % (s.t0, s.t0, s.t1))
        if OPT.get("rmask"):
            e("s_and_b32 s%d, s2, 15" % s.t1 if OPT.get("hsel") else "s_lshr_b32 s%d, s2, 4" % s.t1)
            e("s_lshr_b32 s%d, %s, s%d" % (s.t1, OPT["rmask"], s.t1))
            e("s_and_b32 s%d, s%d, 1" % (s.t1, s.t1))
            e("s_mul_i32 s%d, s%d, s%d" % (s.t0, s.t0, s.t1))
        e("s_add_u32 s%d, s%d, 3000" % (s.t0, s.t0))
        lab("L_spin")
        e("s_sleep 2")
        e("s_memrealtime s[%d:%d]" % (s.stp, s.stp + 1))
        e("s_waitcnt lgkmcnt(0)")
        e("s_sub_u32 s%d, s%d, s%d" % (s.t1, s.stp, s.ws))
        e("s_cmp_lt_u32 s%d, s%d" % (s.t1, s.t0))
        e("s_cbranch_scc1 L_spin")
        if SPIN == "glob":
            e("global_load_dword v%d, v%d, s[98:99] sc0 sc1" % (v.t1, v.t0))
            e("s_waitcnt vmcnt(0)")
            e("v_readfirstlane_b32 s%d, v%d" % (s.t2, v.t1))
            e("s_not_b32 s%d, s%d" % (s.t2, s.t2))
            lab("L_spin2")
            e("s_sleep 2")
            e("s_memrealtime s[%d:%d]" % (s.stp, s.stp + 1))
            e("s_waitcnt lgkmcnt(0)")
            e("s_sub_u32 s%d, s%d, s%d" % (s.t1, s.stp, s.t2))
            e("s_cmp_lt_u32 s%d, 4000" % s.t1)
            e("s_cbranch_scc1 L_spin2")
    if STAMPS:
        stamp(6)
        e("s_waitcnt vmcnt(0)")
        stamp(7)
        stamp(61, True)
        e("s_getreg_b32 s%d, hwreg(HW_REG_XCC_ID)" % s.stp)
        e("v_writelane_b32 v%d, s%d, 62" % (v.st, s.stp))
        e("s_lshl_b32 s%d, s2, 3" % s.t0)
        e("s_add_u32 s%d, s%d, s%d" % (s.t0, s.t0, s.wave))
        e("s_lshl_b32 s%d, s%d, 8" % (s.t0, s.t0))
        e("v_lshlrev_b32 v%d, 2, v%d" % (v.t0, v.lane))
        e("v_add_u32 v%d, s%d, v%d" % (v.t0, s.t0, v.t0))
        if OPT.get("dbg"):
            e("v_readlane_b32 s%d, v%d, 0" % (s.t0, v.st))
            e("v_readlane_b32 s%d, v%d, 61" % (s.t1, v.st))
            e("v_readlane_b32 s%d, v%d, 1" % (s.t2, v.st))
            e("s_not_b32 s%d, s%d" % (s.t3, s.t0))
            e("v_cmp_ne_u32 vcc, 0, v%d" % v.st)
            e("v_subrev_u32 v%d, s%d, v%d" % (v.t1, s.t2, v.st))
            e("s_nop 1")
            e("v_cndmask_b32 v%d, 0, v%d, vcc" % (v.t1, v.t1))
            e("v_writelane_b32 v%d, s%d, 0" % (v.t1, s.t3))
            e("v_writelane_b32 v%d, s%d, 1" % (v.t1, s.t1))
            e("v_writelane_b32 v%d, s%d, 15" % (v.t1, s.t0))
            e("v_lshlrev_b32 v%d, 2, v%d" % (v.t0, v.lane))
            e("s_cmp_lt_u32 s%d, 4" % s.wave)
            e("s_cselect_b32 s%d, 0xffff, 0x80ff" % s.t0 if False else "s_mov_b32 s%d, 0x80ff" % s.t0)
            e("s_cselect_b32 exec_lo, 0xffff, s%d" % s.t0)
            e("s_mov_b32 exec_hi, 0")
            e("global_atomic_umax v%d, v%d, %s" % (v.t0, v.t1, sr(s.ws, 2)))
        else:
            e("global_store_dword v%d, v%d, %s" % (v.t0, v.st, sr(s.ws, 2)))
    e("s_waitcnt vmcnt(0)")
    lab("L_end")
    e("s_endpgm")
    for blk in ool:
        emit(blk)
    lab("L_sync")
    e("s_setprio %s" % OPT.get("sprio", "0"))
    e("s_min_u32 s%d, s%d, s%d" % (s.t2, s.need, s.mu))
    e("s_cmp_eq_u32 s%d, 0x20000" % s.stepb)
    e("s_cselect_b32 s%d, %s, %s" % (s.t3, OPT.get("lookd", "6"), OPT.get("look", "2")))
    e("s_add_u32 s%d, s%d, s%d" % (s.t3, s.need, s.t3))
    e("s_min_u32 s%d, s%d, s%d" % (s.t3, s.t3, s.n))
    e("s_bfe_u32 s%d, s%d, 0x40008" % (s.chk, N + 4))
    if not OPT.get("noc1o"):
        e("s_and_b32 s%d, s2, 6" % s.t1)
        e("s_cselect_b32 s%d, 0, 1" % s.t1)
        e("s_or_b32 s%d, s%d, s%d" % (s.chk, s.chk, s.t1))
    if OPT.get("c1w"):
        e("s_and_b32 s%d, s2, 6" % s.t1)
        e("s_cselect_b32 s%d, s%d, %s" % (s.chk, s.chk, OPT["c1w"]))
    lab("L_svc")
    e("ds_read_b32 v%d, v%d" % (v.t1, v.pra))
    e(RDYR)
    e("s_cmp_lt_u32 s%d, %s" % (s.iss, OPT.get("warn", "8")))
    e("s_cselect_b32 s%d, s%d, 5" % (s.t1, s.chk))
    e("s_sub_i32 s%d, s%d, s%d" % (s.t1, s.iss, s.t1))
    e("s_cmp_gt_u32 s%d, s%d" % (s.iss, s.t3))
    e("s_waitcnt lgkmcnt(0)")
    e("s_cbranch_scc0 L_svc1")
    e("v_cmp_ge_u32 vcc, s%d, v%d" % (s.t2, v.rdy))
    e("s_cbranch_vccz L_svcx")
    e("s_cmp_gt_u32 s%d, s%d" % (s.iss, s.n))
    e("s_cbranch_scc1 L_svcs")
    lab("L_svc1")
    e("v_cmp_gt_i32 vcc, s%d, v%d" % (s.t1, v.t1))
    e("s_bitcmp1_b32 s%d, 0" % s.iss)
    e("s_cbranch_scc1 L_svcB")
    e("s_cmp_lt_u32 s%d, 8" % s.iss)
    e("s_cselect_b32 s%d, -1, s%d" % (s.t1, N + 1))
    e("s_and_b32 s%d, s%d, vcc_lo" % (s.t1, s.t1))
    e("s_and_b32 s%d, s%d, 0xff" % (s.t1, s.t1))
    e("s_cbranch_scc1 L_svc2")
    e("s_add_u32 s%d, s%d, 1" % (s.iss, s.iss))
    emit(svc_cap())
    emit(chunk(0))
    e("s_branch L_svc")
    lab("L_svcB")
    e("s_and_b32 s%d, s%d, 0xff" % (s.t1, N + 3))
    e("s_cmp_gt_u32 s%d, s%d" % (s.iss, s.t1))
    e("s_cbranch_scc1 L_svcF")
    e("s_cbranch_vccnz L_svc2")
    emit(svc_cap())
    emit(chunk(1, flag=False))
    lab("L_svcF")
    e("s_add_u32 s%d, s%d, 1" % (s.iss, s.iss))
    emit(FLAG + STEP_ADV)
    e("s_branch L_svc")
    lab("L_svc2")
    e("v_cmp_ge_u32 vcc, s%d, v%d" % (s.t2, v.rdy))
    e("s_cbranch_vccz L_svcx")
    lab("L_svcs")
    emit(spin(OPT.get("slp", "2")))
    e("s_branch L_svc")
    lab("L_svcx")
    e("s_setprio %s" % OPT.get("hprio", "3"))
    SRET_AT = len(out)
    lab("L_hdone")
    e("s_mov_b32 s%d, s%d" % (s.need, s.n))
    e("s_mov_b32 s%d, s%d" % (s.mu, s.n))
    emit(sync_call())
    e("s_setprio %s" % OPT.get("eprio", "0"))
    lab("L_hfree")
    e("s_sub_u32 s%d, s%d, 1" % (s.t2, s.n))
    e("s_bfe_u32 s%d, s%d, 0x40018" % (s.n, Fa + 2))
    e("s_cbranch_scc0 L_fin")
    e("s_cmp_eq_u32 s%d, 1" % s.n)
    e("s_cbranch_scc1 L_solo")
    stamp(5)
    lab("L_pe1")
    e("s_waitcnt lgkmcnt(0)")
    e("v_cmp_gt_u32 vcc, s%d, v%d" % (s.t2, v.ps))
    e("s_cbranch_vccnz L_pe0")
    stamp(2)
    if OPT.get("mprio"):
        e("s_setprio %s" % OPT["mprio"])
    e("s_cmp_eq_u32 s%d, 2" % s.n)
    for j in (3, 2, 1):
        if j == 1:
            e("s_cbranch_scc1 L_sd2")
        for k in range(4):
            e("ds_write_b128 v%d, %s offset:%d" % (v.E + 3 + j, vr(v.O + 16 * j + 4 * k, 4), k * 1024))
    lab("L_sd2")
    e("s_mov_b64 exec, 1")
    e("ds_add_u32 v%d, v%d" % (cnt, one))
    e("s_mov_b64 exec, -1")
    stamp(3)
    e("s_waitcnt lgkmcnt(0)")
    lab("L_rx")
    e("ds_read_b32 v%d, v%d" % (v.t3, cnt))
    for j in range(3):
        e("ds_read_b64 %s, v%d" % (vr(v.X + 2 * j, 2), v.E + j))
    for k in range(11):
        e("ds_read_b128 %s, v%d offset:%d" % (vr(v.KF + 16 + 4 * k, 4), xr, k * 1024))
    e("s_waitcnt lgkmcnt(14)")
    e("v_cmp_ne_u32 vcc, s%d, v%d" % (s.n, v.t3))
    e("ds_read_b128 %s, v%d offset:%d" % (vr(v.KF + 60, 4), xr, 11 * 1024))
    e("s_cbranch_vccnz L_poll")
    stamp(4)
    late = (["L_pe0:"] + spin(OPT.get("slp", "2")) + ["ds_read_b32 v%d, v%d" % (v.ps, v.pra), "s_branch L_pe1"]
            + ["L_poll:"] + spin() + ["ds_read_b32 v%d, v%d" % (v.t3, cnt), "s_waitcnt lgkmcnt(0)",
                                      "v_cmp_ne_u32 vcc, s%d, v%d" % (s.n, v.t3), "s_cbranch_vccnz L_poll", "s_branch L_rx"])
    RX = v.KF + 16
    f0, f1, f2, f3 = v.X + 8, v.X + 10, v.X + 12, v.X + 14
    e("s_bfe_u32 s%d, s%d, 0x2001c" % (s.col, Fa + 2))
    e("s_lshl_b32 s%d, s%d, 6" % (s.col, s.col))
    e("s_add_u32 s%d, s%d, 0x8000" % (s.col + 1, s.col))
    e("s_add_u32 s%d, s%d, 0x10000" % (s.col + 2, s.col))
    e("s_add_u32 s%d, s%d, 0x18000" % (s.t1, s.col))
    PK = not OPT.get("nopk")

    def vmul(n, f):
        if PK:
            return ["v_pk_mul_f32 %s, %s, %s op_sel_hi:[1,0]" % (vr(v.O + i, 2), vr(v.O + i, 2), vr(f, 2)) for i in range(0, n, 2)]
        return ["v_mul_f32 v%d, v%d, v%d" % (v.O + i, v.O + i, f) for i in range(n)]

    def vfma(n, src_, f):
        if PK:
            return ["v_pk_fma_f32 %s, %s, %s, %s op_sel_hi:[1,0,1]" % (vr(v.O + i, 2), vr(src_ + i, 2), vr(f, 2), vr(v.O + i, 2)) for i in range(0, n, 2)]
        return ["v_fmac_f32 v%d, v%d, v%d" % (v.O + i, src_ + i, f) for i in range(n)]

    def direct(bb):
        r = ["v_cvt_pk_bf16_f32 v%d, v%d, v%d" % (v.S + 8 * bb + i, v.O + 16 * bb + 2 * i, v.O + 16 * bb + 2 * i + 1) for i in range(8)]
        for g in (0, 1):
            d = v.S + 8 * bb + 4 * g
            r += ["v_permlane32_swap_b32 v%d, v%d" % (d, d + 2), "v_permlane32_swap_b32 v%d, v%d" % (d + 1, d + 3),
                  "buffer_store_dwordx4 %s, v%d, %s, s%d offen offset:%d %s" % (vr(d, 4), oo, sr(s.so, 4), s.col, 64 * bb + 32 * g, STF)]
        return r
    e("s_waitcnt lgkmcnt(12)")
    e("v_min3_f32 v%d, v%d, v%d, v%d" % (v.t3, v.nmc, v.X, v.X + 2))
    e("v_min_f32 v%d, v%d, v%d" % (v.t3, v.t3, v.X + 4))
    e("v_sub_f32 v%d, v%d, v%d" % (f0, v.t3, v.nmc))
    for j, f in enumerate((f1, f2, f3)):
        e("v_sub_f32 v%d, v%d, v%d" % (f, v.t3, v.X + 2 * j))
    for f in (f0, f1, f2, f3):
        e("v_exp_f32 v%d, v%d" % (f, f))
    e("v_mul_f32 v%d, v%d, v%d" % (v.l, v.l, f0))
    e("v_fmac_f32 v%d, v%d, v%d" % (v.l, v.X + 1, f1))
    e("s_cmp_eq_u32 s%d, 2" % s.n)
    e("s_cbranch_scc1 L_mg2")
    e("v_fmac_f32 v%d, v%d, v%d" % (v.l, v.X + 3, f2))
    e("v_fmac_f32 v%d, v%d, v%d" % (v.l, v.X + 5, f3))
    e("v_rcp_f32 v%d, v%d" % (v.t3, v.l))
    e("v_and_b32 v%d, 4, v%d" % (v.t0, L))
    e("v_lshl_add_u32 v%d, v%d, 28, v%d" % (oo, v.t0, oo))
    for f in (f0, f1, f2, f3):
        e("v_mul_f32 v%d, v%d, v%d" % (f, f, v.t3))
    emit(vmul(16, f0))
    for j, f in enumerate((f1, f2, f3)):
        e("s_waitcnt lgkmcnt(%d)" % (8 - 4 * j))
        emit(vfma(16, RX + 16 * j, f))
    e("s_branch L_mg3")
    lab("L_mg2")
    e("v_rcp_f32 v%d, v%d" % (v.t3, v.l))
    e("s_nop 0")
    for f in (f0, f1):
        e("v_mul_f32 v%d, v%d, v%d" % (f, f, v.t3))
    emit(vmul(32, f0))
    e("s_waitcnt lgkmcnt(4)")
    emit(vfma(32, RX, f1))
    emit(pack_q(1, False))
    lab("L_mg3")
    emit(pack_q(0, False) + rd_half(0))
    for k in range(4):
        emit(["s_waitcnt lgkmcnt(%d)" % (3 - k)] + st_one(0, k))
    e("s_branch L_fin")
    emit(late)
    lab("L_resc")
    e("v_max3_f32 v%d, v%d, v%d, v%d" % (v.E, v.X, v.X + 1, v.X + 2))
    for r in range(3, 15, 2):
        e("v_max3_f32 v%d, v%d, v%d, v%d" % (v.E, v.E, v.X + r, v.X + r + 1))
    e("v_max3_f32 v%d, v%d, v%d, 0" % (v.E, v.E, v.X + 15))
    e("v_mov_b32 v%d, v%d" % (v.E + 1, v.E))
    e("s_nop 1")
    e("v_permlane32_swap_b32 v%d, v%d" % (v.E, v.E + 1))
    e("s_nop 1")
    e("v_max_f32 v%d, v%d, v%d" % (v.E, v.E, v.E + 1))
    e("v_exp_f32 v%d, -v%d" % (v.E + 1, v.E))
    e("v_sub_f32 v%d, v%d, v%d" % (v.nmc, v.nmc, v.E))
    for r in range(16):
        e("v_sub_f32 v%d, v%d, v%d" % (v.X + r, v.X + r, v.E))
    e("v_mul_f32 v%d, v%d, v%d" % (v.l, v.l, v.E + 1))
    for i in range(64):
        e("v_mul_f32 v%d, v%d, v%d" % (v.O + i, v.O + i, v.E + 1))
    emit(soft_half_plain(0))
    emit(soft_half_plain(1))
    for k, r in enumerate(rets[:-1]):
        e("s_cmp_eq_u32 s%d, %d" % (s.ret, k))
        e("s_cbranch_scc1 %s" % r)
    e("s_branch %s" % rets[-1])
    rl_ = []
    order = [2, 1, 0, 3]
    assert len(srets) == len(order)
    for k in order[:-1]:
        rl_ += ["    s_cmp_eq_u32 s%d, %d" % (s.sret, k), "    s_cbranch_scc1 %s" % srets[k]]
    rl_ += ["    s_branch %s" % srets[order[-1]]]
    out[SRET_AT:SRET_AT] = rl_
    out.append(".p2align 6")
    out.append(".type L_near,@object")
    lab("L_near")
    for ent in near:
        out.append("    .long " + ", ".join("0x%x" % x for x in ent))
    lab("L_far")
    for ent in far:
        out.append("    .long " + ", ".join("0x%x" % x for x in ent))
    lab("L_cnt")
    out.append("    .long " + ", ".join(str(i) for i in range(32)))
    out.append(".size L_near, .-L_near")
    lab("L_codeend")
    out.append("    .fill 768, 4, 0xbf800000")
    out.append('.section .rodata,"a"')
    out.append(".p2align 6")
    out.append(".amdhsa_kernel " + K)
    out.append("  .amdhsa_next_free_vgpr %d" % NV)
    out.append("  .amdhsa_next_free_sgpr %d" % NS)
    out.append("  .amdhsa_accum_offset %d" % NV)
    out.append("  .amdhsa_group_segment_fixed_size 0")
    out.append("  .amdhsa_kernarg_size 56")
    out.append("  .amdhsa_user_sgpr_count 2")
    out.append("  .amdhsa_user_sgpr_kernarg_segment_ptr 1")
    out.append("  .amdhsa_system_sgpr_workgroup_id_x 1")
    out.append(".end_amdhsa_kernel")
    txt = "\n".join(out) + "\n"
    txt = txt.replace("PFSTRIDE", OPT.get("pf", "36"))
    import subprocess, tempfile, os
    tmp = tempfile.mkdtemp()
    open(tmp + "/a.s", "w").write(txt.replace("offset:L_near-L_pc", "offset:0x100").replace("offset:L_far-L_pc", "offset:0x100"))
    subprocess.run(["clang", "-x", "assembler", "-target", "amdgcn-amd-amdhsa", "-mcpu=gfx950", "-c", tmp + "/a.s", "-o", tmp + "/a.o"], check=True)
    sy = {}
    for ln in subprocess.run(["llvm-objdump", "-t", tmp + "/a.o"], capture_output=True, text=True).stdout.splitlines():
        p = ln.split()
        if len(p) >= 5 and p[-1].startswith("L_"):
            sy[p[-1]] = int(p[0], 16)
    assert sy["L_codeend"] - sy["L_pc"] <= 512 * int(OPT.get("pf", "36")) + 128 or STAMPS or SPIN, hex(sy["L_codeend"])
    assert sy["L_codeend"] + 3072 - sy["L_pc"] >= 512 * int(OPT.get("pf", "36"))
    for t in ("L_near", "L_far"):
        txt = txt.replace("offset:%s-L_pc" % t, "offset:0x%x" % (sy[t] - sy["L_pc"]))
        txt = txt.replace(t + ":\n", t + ":\n.if (%s-L_pc) != 0x%x\n.error \"table offset\"\n.endif\n" % (t, sy[t] - sy["L_pc"])) if False else txt
    return txt


if __name__ == "__main__":
    args = [a for a in sys.argv[1:] if a.endswith(".s")]
    path = args[0] if args else "cdna_kernels/%s.s" % NAME
    txt = gen()
    open(path, "w").write(txt)
    print("wrote", path)
```
